```python
import torch

def _softmax(x, axis=-1):
    return torch.softmax(x, dim=axis)
def _gelu(x):
    return torch.nn.functional.gelu(x, approximate="tanh")
def _silu(x):
    return torch.nn.functional.silu(x)
def _sigmoid(x):
    return torch.sigmoid(x)
def _layernorm(x, axis=-1, eps=1e-5):
    m = x.mean(dim=axis, keepdim=True)
    v = x.var(dim=axis, keepdim=True, unbiased=False)
    return (x - m) / torch.sqrt(v + eps)
def _scatter_add(tgt, idx, src, axis=0):
    return tgt.clone().index_add_(axis, idx, src)
def _segment_sum(src, seg, n):
    out = torch.zeros((n,) + src.shape[1:], dtype=src.dtype)
    return out.index_add_(0, seg, src)
def _pad(x, pw):
    flat = tuple(v for pair in reversed(pw) for v in pair)
    return torch.nn.functional.pad(x, flat)

kernel_name = 'standalone__kernel_systems_refs_featgraph__graph'

def setup_inputs():

    _w = (lambda a: (lambda t: t.to(torch.bfloat16) if t.is_floating_point() else t)(torch.as_tensor(a)))
    N, deg, D = 25000, 32, 64
    E = N * deg
    scale = D ** -0.5
    src = (lambda lo, hi, *s: torch.randint(lo, hi, s))(0, N, E).to(torch.int64)
    dst = (lambda lo, hi, *s: torch.randint(lo, hi, s))(0, N, E).to(torch.int64)
    return {
        "x": _w((lambda *s: torch.randn(*s, dtype=torch.bfloat16) * 0.8)(N, D)),
        "src": _w(src),
        "dst": _w(dst),
        "w_q": _w((lambda *s: torch.randn(*s, dtype=torch.bfloat16) * 0.8)(D, D) * scale),
        "w_v": _w((lambda *s: torch.randn(*s, dtype=torch.bfloat16) * 0.05)(D, D) * scale),
    }

def reference(x, src, dst, w_q, w_v):
    N, D = x.shape
    xs = x[src]
    xd = x[dst]
    q = xd @ w_q
    logits = torch.einsum('ed,ed->e', xs, q) * (float(D) ** -0.5)
    alpha = _sigmoid(logits)
    msg = alpha[:, None] * (xs @ w_v)
    return _segment_sum(msg, dst, N)
```

```python
import sys, struct

N, E, D = 25000, 800000, 64
P = 256
B = 256
CH = E // P
BSTRIDE = 257 * 128
OVFCNT_OFF = 0x810000
OVF_OFF = 0x811000
OVF_STRIDE = 12800
WS_USED = OVF_OFF + 256 * OVF_STRIDE
X_BYTES = N * 128
PADENT = 0x003FFFFF

L_CNT = 0
L_FULL = 64
L_LIST = 1024
CAP = 3840
L_WQ = 16384
L_WV = 24576
L_RING = 32768
LDS_B = 163840
LDS_A = 32768 + 2048
A_CNT = 32768
A_OVF = 32768 + 1024

def f32bits(x):
    return struct.unpack('<I', struct.pack('<f', x))[0]

class Asm:
    def __init__(self):
        self.lines = []
    def __call__(self, s):
        for ln in s.strip('\n').split('\n'):
            self.lines.append(ln)
    def label(self, name):
        self.lines.append(name + ':')
    def text(self):
        return '\n'.join(self.lines) + '\n'

def srd(a, d, lo, hi, nbytes):
    a(f'    s_mov_b32 s{d}, s{lo}')
    a(f'    s_mov_b32 s{d+1}, s{hi}')
    a(f'    s_mov_b32 s{d+2}, {nbytes}')
    a(f'    s_mov_b32 s{d+3}, 0x00020000')

def vr(lo, n):
    return f'v[{lo}:{lo+n-1}]'

def gen_part(a, opt):
    a('.p2align 8')
    a('.type part_kernel,@function')
    a.label('part_kernel')
    a(f'''
    s_cmp_ge_u32 s2, {P}
    s_cbranch_scc1 A_end
    s_load_dwordx4 s[4:7], s[0:1], 8
    s_load_dwordx2 s[8:9], s[0:1], 56       ; ws
    s_load_dwordx2 s[10:11], s[0:1], 0      ; x
    v_lshlrev_b32 v1, 2, v0                 ; t*4
    v_lshlrev_b32 v2, 4, v0                 ; t*16
    v_mov_b32 v4, 0
    v_mov_b32 v5, 0
    v_mov_b32 v6, 0
    v_mov_b32 v7, 0
    v_mov_b32 v3, 1
    s_mul_i32 s24, s2, {CH*4}
    s_add_u32 s25, s24, 4096
    s_add_u32 s26, s24, 8192
    s_add_u32 s27, s24, 12288
    s_lshr_b32 s28, s2, 3
    s_and_b32 s29, s2, 7
    s_lshl_b32 s29, s29, 5
    s_or_b32 s28, s28, s29
    s_mov_b32 s34, 0x80000000
    v_cmp_gt_u32 s[30:31], {CH-3072}, v0
    s_waitcnt lgkmcnt(0)''')
    srd(a, 12, 4, 5, E*4)
    srd(a, 16, 6, 7, E*4)
    srd(a, 20, 8, 9, WS_USED)
    nt = ' nt' if opt.get('a_nt_ld') else ''
    a(f'''
    s_mov_b64 exec, s[30:31]
    s_cbranch_execz A_no3a
    buffer_load_dword v11, v1, s[16:19], s27 offen{nt}
    buffer_load_dword v15, v1, s[12:15], s27 offen{nt}
A_no3a:
    s_mov_b64 exec, -1
    buffer_load_dword v8, v1, s[16:19], s24 offen{nt}
    buffer_load_dword v9, v1, s[16:19], s25 offen{nt}
    buffer_load_dword v10, v1, s[16:19], s26 offen{nt}
    buffer_load_dword v12, v1, s[12:15], s24 offen{nt}
    buffer_load_dword v13, v1, s[12:15], s25 offen{nt}
    buffer_load_dword v14, v1, s[12:15], s26 offen{nt}''')
    npf = 0
    if opt.get('a_pf'):
        srd(a, 36, 10, 11, X_BYTES)
        mode = opt['a_pf']
        if mode == 8:
            a(f'''
    s_lshr_b32 s35, s2, 3
    s_mul_i32 s35, s35, {782*128}
    v_lshlrev_b32 v40, 7, v0
    v_cmp_gt_u32 vcc, 782, v0
    s_and_saveexec_b64 s[32:33], vcc
    s_cbranch_execz A_nopf
    buffer_load_dword v41, v40, s[36:39], s35 offen
A_nopf:
    s_mov_b64 exec, -1''')
        else:
            a(f'''
    s_mul_i32 s35, s2, {98*128}
    v_lshlrev_b32 v40, 7, v0
    v_cmp_gt_u32 vcc, 98, v0
    s_and_saveexec_b64 s[32:33], vcc
    s_cbranch_execz A_nopf
    buffer_load_dword v41, v40, s[36:39], s35 offen
A_nopf:
    s_mov_b64 exec, -1''')
        npf = 1
    a(f'''
    ds_write_b128 v2, v[4:7]
    ds_write_b128 v2, v[4:7] offset:16384
    v_cmp_gt_u32 vcc, 128, v0
    s_and_saveexec_b64 s[32:33], vcc
    ds_write_b128 v2, v[4:7] offset:{A_CNT}
    s_mov_b64 exec, -1
    s_mul_i32 s40, s28, {OVF_STRIDE}
    s_add_u32 s40, s40, {OVF_OFF}
    s_lshl_b32 s41, s28, 7                  ; p'*128
    s_add_u32 s42, s41, {128*BSTRIDE}
    s_lshl_b32 s43, s28, 2
    s_add_u32 s43, s43, {OVFCNT_OFF}
    v_lshrrev_b32 v34, 3, v0
    v_mul_u32_u24 v34, {BSTRIDE}, v34
    v_and_b32 v35, 7, v0
    v_lshl_add_u32 v34, v35, 4, v34
    s_waitcnt lgkmcnt(0)
    s_barrier''')
    if npf:
        a('''
    s_waitcnt vmcnt(0)''') if not opt.get('a_pf_nowait') else None
    else:
        a('    s_waitcnt vmcnt(3)')
    def rank(k):
        a(f'''
    v_and_b32 v{16+k}, 255, v{8+k}
    v_lshlrev_b32 v28, 2, v{16+k}
    ds_add_rtn_u32 v{20+k}, v28, v3 offset:{A_CNT}''')
    def entry(k):
        a(f'''
    v_lshrrev_b32 v{24+k}, 8, v{8+k}
    v_lshl_or_b32 v29, v{12+k}, 7, s34
    v_or_b32 v{24+k}, v{24+k}, v29''')
    def addr(k):
        a(f'''
    v_add_u32 v30, v{20+k}, v{16+k}
    v_and_b32 v30, 7, v30
    v_lshlrev_b32 v30, 4, v30
    v_lshl_or_b32 v30, v{16+k}, 7, v30
    v_lshrrev_b32 v31, 3, v{20+k}
    v_lshl_add_u32 v30, v31, 2, v30''')
    def put_checked(k, tag):
        addr(k)
        a(f'''
    v_cmp_gt_u32 vcc, 32, v{20+k}
    s_and_saveexec_b64 s[32:33], vcc
    ds_write_b32 v30, v{24+k}
    s_andn2_b64 exec, s[32:33], exec
    s_cbranch_execz A_noovf{tag}
    ds_add_rtn_u32 v32, v4, v3 offset:{A_OVF}
    v_lshl_or_b32 v33, v{16+k}, 22, v{24+k}
    s_waitcnt lgkmcnt(0)
    v_lshlrev_b32 v32, 2, v32
    buffer_store_dword v33, v32, s[20:23], s40 offen
A_noovf{tag}:
    s_mov_b64 exec, s[32:33]''')
    for k in range(3):
        rank(k)
    a('    s_waitcnt vmcnt(0)')
    for k in range(3):
        entry(k)
    a('''
    s_waitcnt lgkmcnt(0)
    v_max3_u32 v28, v20, v21, v22
    v_cmp_lt_u32 vcc, 31, v28
    s_cbranch_vccnz A_slow''')
    for k in range(3):
        addr(k)
        a(f'    ds_write_b32 v30, v{24+k}')
    a.label('A_join')
    a('''
    s_mov_b64 exec, s[30:31]
    s_cbranch_execz A_no3b''')
    rank(3)
    entry(3)
    a('    s_waitcnt lgkmcnt(0)')
    put_checked(3, '3')
    st = opt.get('a_st', '')
    a(f'''
A_no3b:
    s_mov_b64 exec, -1
    s_waitcnt lgkmcnt(0)
    s_barrier
    ds_read_b128 v[8:11], v2
    ds_read_b128 v[12:15], v2 offset:16384
    ds_read_b32 v16, v4 offset:{A_OVF}
    s_waitcnt lgkmcnt(2)
    buffer_store_dwordx4 v[8:11], v34, s[20:23], s41 offen{st}
    s_waitcnt lgkmcnt(1)
    buffer_store_dwordx4 v[12:15], v34, s[20:23], s42 offen{st}
    v_cmp_eq_u32 vcc, 0, v0
    s_and_saveexec_b64 s[32:33], vcc
    s_cbranch_execz A_end
    s_waitcnt lgkmcnt(0)
    buffer_store_dword v16, v4, s[20:23], s43 offen
A_end:
    s_endpgm
A_slow:''')
    for k in range(3):
        put_checked(k, f's{k}')
    a('    s_branch A_join')

QLO, QHI, ACC, XA, XT, S, PP, MA, MB, EE = 8, 16, 24, 40, 56, 72, 76, 80, 84, 88
M0R, M1R = 92, 93
RA0, RA1, RT, EA, MAD, CHK = 94, 95, 96, 100, 101, 102
T = 104
XN = 112
OUTOFF = 120
LANE = 1
EAOFF, MAOFF = 2, 3
ONE = 4
SEG = 5
EN, RK, G4, WD = 40, 48, 56, 64

def gen_agg(a, opt):
    a('.p2align 8')
    a('.type agg_kernel,@function')
    a.label('agg_kernel')
    a(f'''
    s_cmp_ge_u32 s2, {B}
    s_cbranch_scc1 B_end
    s_load_dwordx2 s[4:5], s[0:1], 0        ; x
    s_load_dwordx4 s[8:11], s[0:1], 24      ; w_q, w_v
    s_load_dwordx2 s[6:7], s[0:1], 40       ; out
    s_load_dwordx2 s[38:39], s[0:1], 56     ; ws
    v_lshrrev_b32 v{T}, 6, v0
    v_and_b32 v{LANE}, 63, v0
    v_readfirstlane_b32 s28, v{T}
    v_lshlrev_b32 v{SEG}, 4, v0
    v_mov_b32 v{ONE}, 1
    s_mul_i32 s29, s2, {BSTRIDE}
    s_add_u32 s68, s29, 16384
    v_and_b32 v{T}, 7, v0
    v_lshlrev_b32 v{T}, 19, v{T}
    s_lshl_b32 s69, s28, 15
    s_lshl_b32 s70, s2, 7
    s_add_u32 s69, s69, s70
    v_add_u32 v{T}, s69, v{T}
    v_lshrrev_b32 v{T+1}, 4, v{LANE}        ; g
    v_lshl_add_u32 v{T+2}, v{T+1}, 4, v{T}
    v_lshl_add_u32 v{OUTOFF}, v{T+1}, 5, v{T}
    v_and_b32 v{T+3}, 0x1ff0, v{SEG}
    s_cmp_lt_u32 s28, 8
    s_waitcnt lgkmcnt(0)
    s_cselect_b32 s20, s8, s10
    s_cselect_b32 s21, s9, s11
    s_mov_b32 s22, 8192
    s_mov_b32 s23, 0x00020000''')
    srd(a, 16, 38, 39, WS_USED)
    srd(a, 12, 4, 5, X_BYTES)
    segf = opt.get('b_seg', '')
    a(f'''
    buffer_load_dwordx4 {vr(EN,4)}, v{SEG}, s[16:19], s29 offen{segf}
    buffer_load_dwordx4 {vr(EN+4,4)}, v{SEG}, s[16:19], s68 offen{segf}
    buffer_load_dwordx4 {vr(WD,4)}, v{T+3}, s[20:23], 0 offen
    buffer_load_dwordx4 {vr(XN,4)}, v{T+2}, s[12:15], 0 offen
    buffer_load_dwordx4 {vr(XN+4,4)}, v{T+2}, s[12:15], 0 offen offset:64''')
    npf = 0
    if opt.get('b_pf'):
        a(f'''
    s_lshr_b32 s70, s2, 3
    s_mul_i32 s70, s70, {782*128}
    v_lshlrev_b32 v{T+4}, 7, v0
    v_mov_b32 v{T+5}, 0x7fffff00
    v_cmp_gt_u32 vcc, 782, v0
    s_nop 1
    v_cndmask_b32 v{T+4}, v{T+5}, v{T+4}, vcc
    buffer_load_dword v121, v{T+4}, s[12:15], s70 offen''')
        npf = 1
    srd(a, 24, 6, 7, X_BYTES)
    a(f'''
    v_mov_b32 v{T+4}, 0
    v_lshlrev_b32 v{T+5}, 2, v0
    v_cmp_gt_u32 vcc, 32, v0
    s_and_saveexec_b64 s[70:71], vcc
    ds_write_b32 v{T+5}, v{T+4}
    s_mov_b64 exec, -1
    s_mov_b32 s30, 0x003fff80
    s_lshl_b32 s31, s28, 13
    s_add_u32 s31, s31, {L_RING}
    s_mov_b32 s36, 0
    s_mov_b32 s37, 0
    s_mov_b32 s56, 0x00ff00ff
    s_mov_b32 s57, 0x00ff00ff
    s_mov_b32 s58, 0xff00ff00
    s_mov_b32 s59, 0xff00ff00
    v_and_b32 v{T+4}, 15, v{LANE}           ; i / j
    v_lshrrev_b32 v{T+5}, 3, v{LANE}        ; l>>3
    v_and_b32 v{T+6}, 6, v{T+5}
    v_and_b32 v{T+7}, 7, v{LANE}
    v_xor_b32 v{T+6}, v{T+6}, v{T+7}
    v_lshlrev_b32 v{CHK}, 4, v{T+6}
    v_lshlrev_b32 v{EAOFF}, 4, v{T+5}       ; (l>>3)*16
    v_add_u32 v{EAOFF}, {L_LIST}, v{EAOFF}
    v_and_b32 v{T+6}, 6, v{T+4}
    v_xor_b32 v{T+6}, v{T+6}, v{T+1}
    v_lshlrev_b32 v{T+6}, 4, v{T+6}
    v_lshl_add_u32 v{T+6}, v{T+4}, 7, v{T+6}
    v_add_u32 v{RA0}, s31, v{T+6}
    v_xor_b32 v{RA1}, 64, v{RA0}
    v_lshrrev_b32 v{T+6}, 2, v{LANE}        ; row
    v_and_b32 v{T+7}, 6, v{T+6}
    v_bfe_u32 v{T+5}, v{LANE}, 1, 1         ; c'>>1
    v_xor_b32 v{T+7}, v{T+7}, v{T+5}
    v_lshlrev_b32 v{T+7}, 4, v{T+7}
    v_lshl_add_u32 v{T+7}, v{T+6}, 7, v{T+7}
    v_and_b32 v{T+5}, 1, v{LANE}
    v_lshl_add_u32 v{T+7}, v{T+5}, 3, v{T+7}
    v_add_u32 v{RT}, s31, v{T+7}
    v_xor_b32 v{RT+1}, 32, v{RT}
    v_xor_b32 v{RT+2}, 64, v{RT}
    v_xor_b32 v{RT+3}, 0x60, v{RT}
    v_and_b32 v{T+5}, 7, v{LANE}
    v_bfe_u32 v{T+6}, v{LANE}, 3, 2
    v_lshl_add_u32 v{T+5}, v{T+5}, 2, v{T+6}
    v_lshlrev_b32 v{MAOFF}, 2, v{T+5}
    v_add_u32 v{MAOFF}, {L_LIST}, v{MAOFF}
    v_mov_b32 v{MA+1}, 0x00003f80
    v_mov_b32 v{MA+2}, 0
    v_mov_b32 v{MA+3}, 0
    v_mov_b32 v{MB}, 0
    v_mov_b32 v{MB+1}, 0
    v_mov_b32 v{MB+2}, 0
    v_mov_b32 v{MB+3}, 0
    v_and_b32 v{T+5}, 7, v{LANE}
    v_cvt_f32_u32 v{T+5}, v{T+5}            ; j'
    v_mov_b32 v{T+6}, 0x71800000            ; BIG = 2^100
    v_mul_f32 v{T+7}, v{T+5}, v{T+6}        ; j'*BIG
    v_mul_f32 v{T+5}, v{T+5}, v{T+7}        ; j'^2*BIG
    v_mul_f32 v{T+7}, -2.0, v{T+7}
    s_mov_b32 s70, 0xff0000ff
    s_mov_b32 s71, 0
    s_mov_b64 exec, s[70:71]
    v_cvt_pk_bf16_f32 v{MB}, v{T+6}, v{T+7}
    v_cvt_pk_bf16_f32 v{MB+1}, v{T+5}, 0
    s_mov_b64 exec, -1''')
    for r in range(4):
        a(f'    v_mov_b32 v{PP+r}, 0')
    for r in range(16):
        a(f'    v_mov_b32 v{ACC+r}, 0')
    a(f'''
    v_lshrrev_b32 v{T+4}, 3, v0
    v_bfe_u32 v{T+5}, v{T+4}, 1, 1
    v_and_b32 v{T+6}, 8, v{T+4}
    v_or_b32 v{T+5}, v{T+5}, v{T+6}
    v_bfe_u32 v{T+6}, v{T+4}, 1, 2
    s_cmp_lt_u32 s28, 8
    s_cselect_b64 s[70:71], -1, 0
    v_cndmask_b32 v{T+5}, v{T+6}, v{T+5}, s[70:71]
    v_and_b32 v{T+6}, 7, v0
    v_lshlrev_b32 v{T+6}, 1, v{T+6}
    v_xor_b32 v{T+6}, v{T+6}, v{T+5}
    v_lshlrev_b32 v{T+6}, 3, v{T+6}
    v_lshl_add_u32 v{T+6}, v{T+4}, 7, v{T+6}
    v_add_u32 v{T+6}, {L_WQ}, v{T+6}
    v_xor_b32 v{T+7}, 8, v{T+6}
    s_waitcnt lgkmcnt(0)
    s_barrier''')
    def rank(r, first):
        m = 40 + 2*r
        a(f'''
    v_cmp_gt_i32 s[{m}:{m+1}], 0, v{EN+r}
    v_and_b32 v{G4+r}, 15, v{EN+r}
    v_lshlrev_b32 v{G4+r}, 2, v{G4+r}
    s_mov_b64 exec, s[{m}:{m+1}]''')
        if r % 4 == 3:
            a(f'''
    s_cbranch_execz B_nr{r}{first}
    ds_add_rtn_u32 v{RK+r}, v{G4+r}, v{ONE} offset:{L_CNT}
    s_cmp_lg_u32 s36, 0
    s_cbranch_scc1 B_nr{r}{first}
    s_add_u32 s70, s2, 31
    s_and_b32 s70, s70, 7
    v_and_b32 v{T}, 7, v0
    v_cmp_eq_u32 vcc, s70, v{T}
    s_and_b64 exec, exec, vcc
    v_lshrrev_b32 v{T}, 3, v0
    v_lshrrev_b32 v{T+1}, 5, v{T}
    v_lshlrev_b32 v{T+1}, 2, v{T+1}
    v_lshlrev_b32 v{T}, v{T}, v{ONE}
    ds_or_b32 v{T+1}, v{T} offset:{L_FULL + (16 if r == 7 else 0)}
B_nr{r}{first}:
    s_mov_b64 exec, -1''')
        else:
            a(f'''
    ds_add_rtn_u32 v{RK+r}, v{G4+r}, v{ONE} offset:{L_CNT}
    s_mov_b64 exec, -1''')
    a(f'    s_waitcnt vmcnt({4+npf})')
    for r in range(4):
        rank(r, 'f')
    a(f'    s_waitcnt vmcnt({3+npf})')
    for r in range(4, 8):
        rank(r, 'f')
    a(f'''
    s_waitcnt vmcnt({2+npf})
    ds_write_b64 v{T+6}, {vr(WD,2)}
    ds_write_b64 v{T+7}, {vr(WD+2,2)}
    s_waitcnt vmcnt({npf})
    s_branch B_ranked
B_batch:''')
    for r in range(8):
        rank(r, 'b')
    a(f'''
B_ranked:
    s_waitcnt lgkmcnt(0)
    s_barrier
    v_and_b32 v{T}, 15, v{LANE}
    v_lshlrev_b32 v{T}, 2, v{T}
    ds_read_b32 v{T+1}, v{T} offset:{L_CNT}
    ds_read_b32 v{T+4}, v{T} offset:{L_FULL}
    s_waitcnt lgkmcnt(0)
    v_add_u32 v{T+2}, 31, v{T+1}
    v_and_b32 v{T+2}, -32, v{T+2}
    v_mov_b32 v{T+3}, v{T+2}
    s_nop 1
    v_add_u32_dpp v{T+3}, v{T+3}, v{T+3} row_shr:1 row_mask:0xf bank_mask:0xf
    s_nop 1
    v_add_u32_dpp v{T+3}, v{T+3}, v{T+3} row_shr:2 row_mask:0xf bank_mask:0xf
    s_nop 1
    v_add_u32_dpp v{T+3}, v{T+3}, v{T+3} row_shr:4 row_mask:0xf bank_mask:0xf
    s_nop 1
    v_add_u32_dpp v{T+3}, v{T+3}, v{T+3} row_shr:8 row_mask:0xf bank_mask:0xf
    v_readlane_b32 s33, v{T+1}, s28
    v_sub_u32 v{T+2}, v{T+3}, v{T+2}
    v_readlane_b32 s70, v{T+3}, 15
    s_cmp_lg_u32 s36, 0
    s_cbranch_scc1 B_nofull''')
    for k in range(8):
        a(f'    v_readlane_b32 s{60+k}, v{T+4}, {k}')
    a(f'''
B_nofull:
    v_readlane_b32 s32, v{T+2}, s28
    s_cmp_gt_u32 s70, {CAP}
    s_cbranch_scc1 B_toobig''')
    for r in range(8):
        a(f'    ds_bpermute_b32 v{G4+r}, v{G4+r}, v{T+2}')
    a(f'''
    s_add_u32 s34, s33, 31
    s_lshr_b32 s34, s34, 5                  ; ntiles
    s_lshl_b32 s70, s34, 5
    s_lshl_b32 s71, s32, 2
    v_add_u32 v{EA}, s71, v{EAOFF}
    v_add_u32 v{MAD}, s71, v{MAOFF}
    v_add_u32 v{T}, s33, v{LANE}
    v_cmp_gt_u32 vcc, s70, v{T}
    v_add_lshl_u32 v{T}, v{T}, s32, 2
    v_mov_b32 v{T+1}, {PADENT}
    s_mov_b64 exec, vcc
    ds_write_b32 v{T}, v{T+1} offset:{L_LIST}
    s_mov_b64 exec, -1''')
    a('    s_waitcnt lgkmcnt(0)')
    for r in range(8):
        m = 40 + 2*r
        a(f'''
    v_add_lshl_u32 v{G4+r}, v{G4+r}, v{RK+r}, 2
    s_mov_b64 exec, s[{m}:{m+1}]
    ds_write_b32 v{G4+r}, v{EN+r} offset:{L_LIST}
    s_mov_b64 exec, -1''')
    a(f'''
    s_waitcnt lgkmcnt(0)
    s_barrier
    s_cmp_eq_u32 s34, 0
    s_cbranch_scc1 B_loopdone
    ds_read_b128 {vr(EE,4)}, v{EA}
    ds_read_b128 {vr(T,4)}, v{EA} offset:128
    ds_read_b32 v{M0R}, v{MAD}
    s_waitcnt lgkmcnt(0)''')
    gf = opt.get('b_gather', '')
    def dma(ereg, slot):
        for q in range(4):
            if q == 0:
                if slot == 0:
                    a('    s_mov_b32 m0, s31')
                else:
                    a('    s_add_u32 m0, s31, 4096')
            else:
                a('    s_add_u32 m0, m0, 1024')
            a(f'    v_and_or_b32 v{ereg+q}, v{ereg+q}, s30, v{CHK}')
            a(f'    buffer_load_dwordx4 v{ereg+q}, s[12:15], 0 offen{gf} lds')
    dma(EE, 0)
    a('''
    s_cmp_lt_u32 s34, 2
    s_cbranch_scc1 B_one''')
    dma(T, 1)
    a(f'''
B_one:
    ds_read_b128 {vr(EE,4)}, v{EA} offset:256
    s_cmp_lg_u32 s37, 0
    s_cbranch_scc1 B_qdone
    s_mov_b32 s37, 1
    v_lshrrev_b32 v{T}, 4, v{LANE}
    v_bfe_u32 v{T+1}, v{LANE}, 2, 2
    v_lshl_add_u32 v{T+2}, v{T}, 3, v{T+1}  ; row
    v_bfe_u32 v{T+3}, v{T+2}, 1, 1
    v_and_b32 v{T+4}, 8, v{T+2}
    v_or_b32 v{T+3}, v{T+3}, v{T+4}         ; f
    v_and_b32 v{T+4}, 3, v{LANE}
    v_lshlrev_b32 v{T+4}, 1, v{T+4}
    v_xor_b32 v{T+3}, v{T+3}, v{T+4}
    v_lshlrev_b32 v{T+3}, 3, v{T+3}
    v_lshl_add_u32 v{T}, v{T+2}, 7, v{T+3}  ; blk 0
    v_xor_b32 v{T+1}, 8, v{T}               ; blk 1
    v_xor_b32 v{T+2}, 64, v{T}              ; blk 2
    v_xor_b32 v{T+3}, 0x48, v{T}            ; blk 3''')
    for blk in range(4):
        for ks in range(2):
            for h in range(2):
                reg = XA + blk*8 + ks*4 + h*2
                off = L_WQ + (32*ks + 4*h) * 128
                a(f'    ds_read_b64_tr_b16 {vr(reg,2)}, v{T+blk} offset:{off}')
        if blk == 1:
            a('    s_waitcnt lgkmcnt(0)')
    a('    s_waitcnt lgkmcnt(0)')
    for blk in range(4):
        a(f'    v_mfma_f32_16x16x32_bf16 {vr(QLO+4*blk,4)}, {vr(XA+blk*8,4)}, {vr(XN,4)}, 0')
    for blk in range(4):
        a(f'    v_mfma_f32_16x16x32_bf16 {vr(QLO+4*blk,4)}, {vr(XA+blk*8+4,4)}, {vr(XN+4,4)}, {vr(QLO+4*blk,4)}')
    a(f'    s_mov_b32 s70, 0x{f32bits(-1.4426950408889634/8):08x}')
    a('    s_nop 7')
    for r in range(16):
        a(f'    v_mul_f32 v{QLO+r}, s70, v{QLO+r}')
    for r in range(8):
        a(f'    v_cvt_pk_bf16_f32 v{T+r}, v{QLO+2*r}, v{QLO+2*r+1}')
    for r in range(8):
        a(f'    v_cndmask_b32 v{QLO+r}, 0, v{T+r}, s[56:57]')
        a(f'    v_cndmask_b32 v{QHI+r}, 0, v{T+r}, s[58:59]')
    a('''
B_qdone:
    s_mov_b32 s35, 1                        ; s35 = t+1
B_loop:''')
    def body(slot):
        so = slot * 4096
        mcur, mnext = (M0R, M1R) if slot == 0 else (M1R, M0R)
        eo = slot * 128
        a(f'''
    s_cmp_lt_u32 s35, s34
    s_cbranch_scc1 B_w4_{slot}
    s_waitcnt vmcnt(0)
B_w4_{slot}:
    s_waitcnt vmcnt(4)
    ds_read_b128 {vr(XA,4)}, v{RA0} offset:{so}
    ds_read_b128 {vr(XA+4,4)}, v{RA1} offset:{so}
    ds_read_b128 {vr(XA+8,4)}, v{RA0} offset:{so+2048}
    ds_read_b128 {vr(XA+12,4)}, v{RA1} offset:{so+2048}''')
        for fb in range(4):
            a(f'    ds_read_b64_tr_b16 {vr(XT+4*fb,2)}, v{RT+fb} offset:{so}')
            a(f'    ds_read_b64_tr_b16 {vr(XT+4*fb+2,2)}, v{RT+fb} offset:{so+2048}')
        a(f'''
    v_bfe_u32 v{T}, v{mcur}, 4, 3
    v_cvt_f32_u32 v{T}, v{T}
    v_mul_f32 v{T+1}, v{T}, v{T}
    v_cvt_pk_bf16_f32 v{MA}, v{T+1}, v{T}
    ds_read_b32 v{mnext}, v{MAD} offset:{eo+128}
    s_add_u32 s35, s35, 1                   ; t+2
    v_mfma_f32_16x16x32_bf16 {vr(S,4)}, {vr(MA,4)}, {vr(MB,4)}, 0
    s_waitcnt lgkmcnt(12)
    v_mfma_f32_16x16x32_bf16 {vr(S,4)}, {vr(XA,4)}, {vr(QLO,4)}, {vr(S,4)}
    s_waitcnt lgkmcnt(11)
    v_mfma_f32_16x16x32_bf16 {vr(S,4)}, {vr(XA+4,4)}, {vr(QLO+4,4)}, {vr(S,4)}
    s_waitcnt lgkmcnt(10)
    v_mfma_f32_16x16x32_bf16 {vr(S,4)}, {vr(XA+8,4)}, {vr(QHI,4)}, {vr(S,4)}
    s_waitcnt lgkmcnt(9)
    v_mfma_f32_16x16x32_bf16 {vr(S,4)}, {vr(XA+12,4)}, {vr(QHI+4,4)}, {vr(S,4)}
    s_waitcnt lgkmcnt(0)
    s_cmp_lt_u32 s35, s34
    s_cbranch_scc0 B_skip_{slot}''')
        dma(EE, slot)
        a(f'''
    ds_read_b128 {vr(EE,4)}, v{EA} offset:{eo+384}
B_cont_{slot}:''')
        if slot == 1:
            a(f'    v_add_u32 v{EA}, 256, v{EA}')
            a(f'    v_add_u32 v{MAD}, 256, v{MAD}')
        for r in range(4):
            a(f'    v_exp_f32 v{S+r}, v{S+r}')
        for r in range(4):
            a(f'    v_add_f32 v{S+r}, 1.0, v{S+r}')
        for r in range(4):
            a(f'    v_rcp_f32 v{S+r}, v{S+r}')
        a(f'''
    s_mov_b64 exec, s[56:57]
    v_cvt_pk_bf16_f32 v{PP}, v{S}, v{S+1}
    v_cvt_pk_bf16_f32 v{PP+1}, v{S+2}, v{S+3}
    s_mov_b64 exec, s[58:59]
    v_cvt_pk_bf16_f32 v{PP+2}, v{S}, v{S+1}
    v_cvt_pk_bf16_f32 v{PP+3}, v{S+2}, v{S+3}
    s_mov_b64 exec, -1
    s_cmp_gt_u32 s35, s34
    s_nop 0''')
        for fb in range(4):
            a(f'    v_mfma_f32_16x16x32_bf16 {vr(ACC+4*fb,4)}, {vr(XT+4*fb,4)}, {vr(PP,4)}, {vr(ACC+4*fb,4)}')
        if slot == 0:
            a('    s_cbranch_scc1 B_loopdone')
        else:
            a('    s_cbranch_scc0 B_loop')
    body(0)
    body(1)
    a(f'''
B_loopdone:
    s_cmp_lg_u32 s36, 0
    s_cbranch_scc1 B_next
    s_mov_b32 s36, 5
    s_or_b32 s70, s60, s61
    s_or_b32 s71, s62, s63
    s_or_b32 s72, s64, s65
    s_or_b32 s73, s66, s67
    s_or_b32 s70, s70, s71
    s_or_b32 s72, s72, s73
    s_or_b32 s70, s70, s72
    s_cbranch_scc1 B_next
B_epi:
    v_lshrrev_b32 v{T+4}, 2, v{LANE}
    v_bfe_u32 v{T+5}, v{T+4}, 1, 2
    v_and_b32 v{T+6}, 3, v{LANE}
    v_lshl_or_b32 v{T+5}, v{T+6}, 2, v{T+5}
    v_lshlrev_b32 v{T+5}, 3, v{T+5}
    v_lshl_add_u32 v{T}, v{T+4}, 7, v{T+5}
    v_xor_b32 v{T+1}, 8, v{T}
    v_xor_b32 v{T+2}, 16, v{T}
    v_xor_b32 v{T+3}, 24, v{T}''')
    for blk in range(4):
        for ks in range(2):
            for h in range(2):
                reg = XA + blk*8 + ks*4 + h*2
                off = L_WV + (32*ks + 16*h) * 128
                a(f'    ds_read_b64_tr_b16 {vr(reg,2)}, v{T+blk} offset:{off}')
        if blk == 1:
            a('    s_waitcnt lgkmcnt(0)')
    for r in range(16):
        a(f'    v_add_f32_dpp v{ACC+r}, v{ACC+r}, v{ACC+r} row_ror:8 row_mask:0xf bank_mask:0xf')
    for r in range(8):
        a(f'    v_cvt_pk_bf16_f32 v{XN+r}, v{ACC+2*r}, v{ACC+2*r+1}')
    a('    s_waitcnt lgkmcnt(0)')
    a('    s_nop 0')
    for blk in range(4):
        a(f'    v_mfma_f32_16x16x32_bf16 {vr(QLO+4*blk,4)}, {vr(XA+blk*8,4)}, {vr(XN,4)}, 0')
    for blk in range(4):
        a(f'    v_mfma_f32_16x16x32_bf16 {vr(QLO+4*blk,4)}, {vr(XA+blk*8+4,4)}, {vr(XN+4,4)}, {vr(QLO+4*blk,4)}')
    a('    s_nop 7')
    for r in range(8):
        a(f'    v_cvt_pk_bf16_f32 v{T+r}, v{QLO+2*r}, v{QLO+2*r+1}')
    of = opt.get('b_out', '')
    a(f'''
    s_mov_b64 exec, s[56:57]
    buffer_store_dwordx4 {vr(T,4)}, v{OUTOFF}, s[24:27], 0 offen{of}
    buffer_store_dwordx4 {vr(T+4,4)}, v{OUTOFF}, s[24:27], 0 offen offset:16{of}
B_end:
    s_endpgm
B_skip_0:
    s_nop 7
    s_branch B_cont_0
B_skip_1:
    s_nop 7
    s_branch B_cont_1
B_toobig:
    s_mov_b32 s36, 1
B_next:
    s_waitcnt vmcnt(0) lgkmcnt(0)
    s_barrier
    v_mov_b32 v{T+4}, 0
    v_lshlrev_b32 v{T+5}, 2, v0
    v_cmp_gt_u32 vcc, 16, v0
    s_and_saveexec_b64 s[70:71], vcc
    ds_write_b32 v{T+5}, v{T+4} offset:{L_CNT}
    s_mov_b64 exec, -1''')
    for r in range(8):
        a(f'    v_mov_b32 v{EN+r}, 0')
    a(f'''
    s_cmp_gt_u32 s36, 4
    s_cbranch_scc1 B_ovf
    s_sub_u32 s70, s36, 1
    s_lshl_b32 s70, s70, 13
    s_add_u32 s70, s70, s29
    s_add_u32 s36, s36, 1
    s_cmp_ge_u32 s28, 8
    s_cbranch_scc1 B_go
    buffer_load_dwordx4 {vr(EN,4)}, v{SEG}, s[16:19], s70 offen
    s_branch B_go
B_ovf:
    s_cmp_eq_u32 s36, 6
    s_cbranch_scc1 B_ovf2
    s_mov_b32 s74, -1''')
    for k in range(7, -1, -1):
        a(f'''
    s_ff1_i32_b32 s70, s{60+k}
    s_add_u32 s71, s70, {32*k}
    s_cmp_lg_u32 s{60+k}, 0
    s_cselect_b32 s74, s71, s74''')
    a(f'''
    s_cmp_eq_u32 s74, -1
    s_cbranch_scc1 B_epi
    s_lshr_b32 s70, s74, 5
    s_lshl_b32 s71, 1, s74''')
    for k in range(8):
        a(f'''
    s_andn2_b32 s72, s{60+k}, s71
    s_cmp_eq_u32 s70, {k}
    s_cselect_b32 s{60+k}, s72, s{60+k}''')
    a(f'''
    s_mov_b32 s36, 6
    s_mov_b32 s75, 0
    s_branch B_ovfld
B_ovf2:
    s_mov_b32 s36, 5
    s_mov_b32 s75, 2048
B_ovfld:
    s_cmp_ge_u32 s28, 8
    s_cbranch_scc1 B_go
    s_lshl_b32 s70, s74, 2
    s_add_u32 s70, s70, {OVFCNT_OFF}
    s_mul_i32 s71, s74, {OVF_STRIDE}
    s_add_u32 s71, s71, {OVF_OFF}
    s_lshl_b32 s72, s75, 2
    s_add_u32 s71, s71, s72
    buffer_load_dword v{T}, v{T+4}, s[16:19], s70 offen
    buffer_load_dwordx4 {vr(EN,4)}, v{SEG}, s[16:19], s71 offen
    v_lshl_add_u32 v{T+1}, v0, 2, s75
    s_waitcnt vmcnt(0)''')
    for r in range(4):
        a(f'''
    v_add_u32 v{T+2}, {r}, v{T+1}
    v_cmp_lt_u32 vcc, v{T+2}, v{T}
    v_bfe_u32 v{T+3}, v{EN+r}, 22, 8
    v_cmp_eq_u32 s[70:71], s2, v{T+3}
    s_and_b64 vcc, vcc, s[70:71]
    v_cndmask_b32 v{EN+r}, 0, v{EN+r}, vcc''')
    a('''
B_go:
    s_waitcnt vmcnt(0) lgkmcnt(0)
    s_barrier
    s_branch B_batch''')

def kd(a, name, vg, sg):
    a(f'''
.amdhsa_kernel {name}
  .amdhsa_next_free_vgpr {vg}
  .amdhsa_next_free_sgpr {sg}
  .amdhsa_accum_offset {vg}
  .amdhsa_group_segment_fixed_size 0
  .amdhsa_kernarg_size 64
  .amdhsa_user_sgpr_count 2
  .amdhsa_user_sgpr_kernarg_segment_ptr 1
  .amdhsa_system_sgpr_workgroup_id_x 1
.end_amdhsa_kernel''')

def build(opt):
    a = Asm()
    a(f'''; FeatGraph: SDDMM (sigmoid gate) + SpMM, two launches.
; @launch kernel=part_kernel grid=({P},1,1) block=(1024,1,1) lds={LDS_A}
; @launch kernel=agg_kernel grid=({B},1,1) block=(1024,1,1) lds={LDS_B}
.amdgcn_target "amdgcn-amd-amdhsa--gfx950"
.text
.globl part_kernel
.globl agg_kernel''')
    gen_part(a, opt)
    gen_agg(a, opt)
    a('.section .rodata,"a"')
    a('.p2align 6')
    kd(a, 'part_kernel', 48, 48)
    a('.p2align 6')
    kd(a, 'agg_kernel', 128, 80)
    return a.text()

if __name__ == '__main__':
    out = sys.argv[1]
    opt = {}
    for kv in sys.argv[2:]:
        k, v = kv.split('=')
        try:
            v = int(v)
        except ValueError:
            v = ' ' + v.replace('+', ' ')
        opt[k] = v
    open(out, 'w').write(build(opt))
```

```python
import sys, struct

N, E, D = 25000, 800000, 64
P = 256
B = 256
CH = E // P
BSTRIDE = 257 * 128
OVFCNT_OFF = 0x810000
OVF_OFF = 0x811000
OVF_STRIDE = 12800
WS_USED = OVF_OFF + 256 * OVF_STRIDE
X_BYTES = N * 128
PADENT = 0x003FFFFF

L_CNT = 0
L_FULL = 64
L_LIST = 1024
CAP = 3840
L_WQ = 16384
L_WV = 24576
L_RING = 32768
LDS_B = 163840
LDS_A = 32768 + 2048
A_CNT = 32768
A_OVF = 32768 + 1024

def f32bits(x):
    return struct.unpack('<I', struct.pack('<f', x))[0]

class Asm:
    def __init__(self):
        self.lines = []
    def __call__(self, s):
        for ln in s.strip('\n').split('\n'):
            self.lines.append(ln)
    def label(self, name):
        self.lines.append(name + ':')
    def text(self):
        return '\n'.join(self.lines) + '\n'

def srd(a, d, lo, hi, nbytes):
    a(f'    s_mov_b32 s{d}, s{lo}')
    a(f'    s_mov_b32 s{d+1}, s{hi}')
    a(f'    s_mov_b32 s{d+2}, {nbytes}')
    a(f'    s_mov_b32 s{d+3}, 0x00020000')

def vr(lo, n):
    return f'v[{lo}:{lo+n-1}]'

def gen_part(a, opt):
    a('.p2align 8')
    a('.type part_kernel,@function')
    a.label('part_kernel')
    a(f'''
    s_cmp_ge_u32 s2, {P}
    s_cbranch_scc1 A_end
    s_load_dwordx4 s[4:7], s[0:1], 8
    s_load_dwordx2 s[8:9], s[0:1], 56       ; ws
    s_load_dwordx2 s[10:11], s[0:1], 0      ; x
    v_lshlrev_b32 v1, 2, v0                 ; t*4
    v_lshlrev_b32 v2, 4, v0                 ; t*16
    v_mov_b32 v4, 0
    v_mov_b32 v5, 0
    v_mov_b32 v6, 0
    v_mov_b32 v7, 0
    v_mov_b32 v3, 1
    s_mul_i32 s24, s2, {CH*4}
    s_add_u32 s25, s24, 4096
    s_add_u32 s26, s24, 8192
    s_add_u32 s27, s24, 12288
    s_lshr_b32 s28, s2, 3
    s_and_b32 s29, s2, 7
    s_lshl_b32 s29, s29, 5
    s_or_b32 s28, s28, s29
    s_mov_b32 s34, 0x80000000
    v_cmp_gt_u32 s[30:31], {CH-3072}, v0
    s_waitcnt lgkmcnt(0)''')
    srd(a, 12, 4, 5, E*4)
    srd(a, 16, 6, 7, E*4)
    srd(a, 20, 8, 9, WS_USED)
    nt = ' nt' if opt.get('a_nt_ld') else ''
    a(f'''
    s_mov_b64 exec, s[30:31]
    s_cbranch_execz A_no3a
    buffer_load_dword v11, v1, s[16:19], s27 offen{nt}
    buffer_load_dword v15, v1, s[12:15], s27 offen{nt}
A_no3a:
    s_mov_b64 exec, -1
    buffer_load_dword v8, v1, s[16:19], s24 offen{nt}
    buffer_load_dword v9, v1, s[16:19], s25 offen{nt}
    buffer_load_dword v10, v1, s[16:19], s26 offen{nt}
    buffer_load_dword v12, v1, s[12:15], s24 offen{nt}
    buffer_load_dword v13, v1, s[12:15], s25 offen{nt}
    buffer_load_dword v14, v1, s[12:15], s26 offen{nt}''')
    npf = 0
    if opt.get('a_pf'):
        srd(a, 36, 10, 11, X_BYTES)
        mode = opt['a_pf']
        if mode == 8:
            a(f'''
    s_lshr_b32 s35, s2, 3
    s_mul_i32 s35, s35, {782*128}
    v_lshlrev_b32 v40, 7, v0
    v_cmp_gt_u32 vcc, 782, v0
    s_and_saveexec_b64 s[32:33], vcc
    s_cbranch_execz A_nopf
    buffer_load_dword v41, v40, s[36:39], s35 offen
A_nopf:
    s_mov_b64 exec, -1''')
        else:
            a(f'''
    s_mul_i32 s35, s2, {98*128}
    v_lshlrev_b32 v40, 7, v0
    v_cmp_gt_u32 vcc, 98, v0
    s_and_saveexec_b64 s[32:33], vcc
    s_cbranch_execz A_nopf
    buffer_load_dword v41, v40, s[36:39], s35 offen
A_nopf:
    s_mov_b64 exec, -1''')
        npf = 1
    a(f'''
    ds_write_b128 v2, v[4:7]
    ds_write_b128 v2, v[4:7] offset:16384
    v_cmp_gt_u32 vcc, 128, v0
    s_and_saveexec_b64 s[32:33], vcc
    ds_write_b128 v2, v[4:7] offset:{A_CNT}
    s_mov_b64 exec, -1
    s_mul_i32 s40, s28, {OVF_STRIDE}
    s_add_u32 s40, s40, {OVF_OFF}
    s_lshl_b32 s41, s28, 7                  ; p'*128
    s_add_u32 s42, s41, {128*BSTRIDE}
    s_lshl_b32 s43, s28, 2
    s_add_u32 s43, s43, {OVFCNT_OFF}
    v_lshrrev_b32 v34, 3, v0
    v_mul_u32_u24 v34, {BSTRIDE}, v34
    v_and_b32 v35, 7, v0
    v_lshl_add_u32 v34, v35, 4, v34
    s_waitcnt lgkmcnt(0)
    s_barrier''')
    if npf:
        a('''
    s_waitcnt vmcnt(0)''') if not opt.get('a_pf_nowait') else None
    else:
        a('    s_waitcnt vmcnt(3)')
    def rank(k):
        a(f'''
    v_and_b32 v{16+k}, 255, v{8+k}
    v_lshlrev_b32 v28, 2, v{16+k}
    ds_add_rtn_u32 v{20+k}, v28, v3 offset:{A_CNT}''')
    def entry(k):
        a(f'''
    v_lshrrev_b32 v{24+k}, 8, v{8+k}
    v_lshl_or_b32 v29, v{12+k}, 7, s34
    v_or_b32 v{24+k}, v{24+k}, v29''')
    def addr(k):
        a(f'''
    v_add_u32 v30, v{20+k}, v{16+k}
    v_and_b32 v30, 7, v30
    v_lshlrev_b32 v30, 4, v30
    v_lshl_or_b32 v30, v{16+k}, 7, v30
    v_lshrrev_b32 v31, 3, v{20+k}
    v_lshl_add_u32 v30, v31, 2, v30''')
    def put_checked(k, tag):
        addr(k)
        a(f'''
    v_cmp_gt_u32 vcc, 32, v{20+k}
    s_and_saveexec_b64 s[32:33], vcc
    ds_write_b32 v30, v{24+k}
    s_andn2_b64 exec, s[32:33], exec
    s_cbranch_execz A_noovf{tag}
    ds_add_rtn_u32 v32, v4, v3 offset:{A_OVF}
    v_lshl_or_b32 v33, v{16+k}, 22, v{24+k}
    s_waitcnt lgkmcnt(0)
    v_lshlrev_b32 v32, 2, v32
    buffer_store_dword v33, v32, s[20:23], s40 offen
A_noovf{tag}:
    s_mov_b64 exec, s[32:33]''')
    for k in range(3):
        rank(k)
    a('    s_waitcnt vmcnt(0)')
    for k in range(3):
        entry(k)
    a('''
    s_waitcnt lgkmcnt(0)
    v_max3_u32 v28, v20, v21, v22
    v_cmp_lt_u32 vcc, 31, v28
    s_cbranch_vccnz A_slow''')
    for k in range(3):
        addr(k)
        a(f'    ds_write_b32 v30, v{24+k}')
    a.label('A_join')
    a('''
    s_mov_b64 exec, s[30:31]
    s_cbranch_execz A_no3b''')
    rank(3)
    entry(3)
    a('    s_waitcnt lgkmcnt(0)')
    put_checked(3, '3')
    st = opt.get('a_st', '')
    a(f'''
A_no3b:
    s_mov_b64 exec, -1
    s_waitcnt lgkmcnt(0)
    s_barrier
    ds_read_b128 v[8:11], v2
    ds_read_b128 v[12:15], v2 offset:16384
    ds_read_b32 v16, v4 offset:{A_OVF}
    s_waitcnt lgkmcnt(2)
    buffer_store_dwordx4 v[8:11], v34, s[20:23], s41 offen{st}
    s_waitcnt lgkmcnt(1)
    buffer_store_dwordx4 v[12:15], v34, s[20:23], s42 offen{st}
    v_cmp_eq_u32 vcc, 0, v0
    s_and_saveexec_b64 s[32:33], vcc
    s_cbranch_execz A_end
    s_waitcnt lgkmcnt(0)
    buffer_store_dword v16, v4, s[20:23], s43 offen
A_end:
    s_endpgm
A_slow:''')
    for k in range(3):
        put_checked(k, f's{k}')
    a('    s_branch A_join')

QLO, QHI, ACC, XA, XT, S, PP, MA, MB, EE = 8, 16, 24, 40, 56, 72, 76, 80, 84, 88
M0R, M1R = 92, 93
RA0, RA1, RT, EA, MAD, CHK = 94, 95, 96, 100, 101, 102
T = 104
XN = 112
OUTOFF = 120
LANE = 1
EAOFF, MAOFF = 2, 3
ONE = 4
SEG = 5
EN, RK, G4, WD = 40, 48, 56, 64

def gen_agg(a, opt):
    a('.p2align 8')
    a('.type agg_kernel,@function')
    a.label('agg_kernel')
    a(f'''
    s_cmp_ge_u32 s2, {B}
    s_cbranch_scc1 B_end
    s_load_dwordx2 s[4:5], s[0:1], 0        ; x
    s_load_dwordx4 s[8:11], s[0:1], 24      ; w_q, w_v
    s_load_dwordx2 s[6:7], s[0:1], 40       ; out
    s_load_dwordx2 s[38:39], s[0:1], 56     ; ws
    v_lshrrev_b32 v{T}, 6, v0
    v_and_b32 v{LANE}, 63, v0
    v_readfirstlane_b32 s28, v{T}
    v_lshlrev_b32 v{SEG}, 4, v0
    v_mov_b32 v{ONE}, 1
    s_mul_i32 s29, s2, {BSTRIDE}
    s_add_u32 s68, s29, 16384
    v_and_b32 v{T}, 7, v0
    v_lshlrev_b32 v{T}, 19, v{T}
    s_lshl_b32 s69, s28, 15
    s_lshl_b32 s70, s2, 7
    s_add_u32 s69, s69, s70
    v_add_u32 v{T}, s69, v{T}
    v_lshrrev_b32 v{T+1}, 4, v{LANE}        ; g
    v_lshl_add_u32 v{T+2}, v{T+1}, 4, v{T}
    v_lshl_add_u32 v{OUTOFF}, v{T+1}, 5, v{T}
    v_and_b32 v{T+3}, 0x1ff0, v{SEG}
    s_cmp_lt_u32 s28, 8
    s_waitcnt lgkmcnt(0)
    s_cselect_b32 s20, s8, s10
    s_cselect_b32 s21, s9, s11
    s_mov_b32 s22, 8192
    s_mov_b32 s23, 0x00020000''')
    srd(a, 16, 38, 39, WS_USED)
    srd(a, 12, 4, 5, X_BYTES)
    segf = opt.get('b_seg', '')
    a(f'''
    buffer_load_dwordx4 {vr(EN,4)}, v{SEG}, s[16:19], s29 offen{segf}
    buffer_load_dwordx4 {vr(EN+4,4)}, v{SEG}, s[16:19], s68 offen{segf}
    buffer_load_dwordx4 {vr(WD,4)}, v{T+3}, s[20:23], 0 offen
    buffer_load_dwordx4 {vr(XN,4)}, v{T+2}, s[12:15], 0 offen
    buffer_load_dwordx4 {vr(XN+4,4)}, v{T+2}, s[12:15], 0 offen offset:64''')
    npf = 0
    if opt.get('b_pf'):
        a(f'''
    s_lshr_b32 s70, s2, 3
    s_mul_i32 s70, s70, {782*128}
    v_lshlrev_b32 v{T+4}, 7, v0
    v_mov_b32 v{T+5}, 0x7fffff00
    v_cmp_gt_u32 vcc, 782, v0
    s_nop 1
    v_cndmask_b32 v{T+4}, v{T+5}, v{T+4}, vcc
    buffer_load_dword v121, v{T+4}, s[12:15], s70 offen''')
        npf = 1
    srd(a, 24, 6, 7, X_BYTES)
    a(f'''
    v_mov_b32 v{T+4}, 0
    v_lshlrev_b32 v{T+5}, 2, v0
    v_cmp_gt_u32 vcc, 32, v0
    s_and_saveexec_b64 s[70:71], vcc
    ds_write_b32 v{T+5}, v{T+4}
    s_mov_b64 exec, -1
    s_mov_b32 s30, 0x003fff80
    s_lshl_b32 s31, s28, 13
    s_add_u32 s31, s31, {L_RING}
    s_mov_b32 s36, 0
    s_mov_b32 s37, 0
    s_mov_b32 s56, 0x00ff00ff
    s_mov_b32 s57, 0x00ff00ff
    s_mov_b32 s58, 0xff00ff00
    s_mov_b32 s59, 0xff00ff00
    v_and_b32 v{T+4}, 15, v{LANE}           ; i / j
    v_lshrrev_b32 v{T+5}, 3, v{LANE}        ; l>>3
    v_and_b32 v{T+6}, 6, v{T+5}
    v_and_b32 v{T+7}, 7, v{LANE}
    v_xor_b32 v{T+6}, v{T+6}, v{T+7}
    v_lshlrev_b32 v{CHK}, 4, v{T+6}
    v_lshlrev_b32 v{EAOFF}, 4, v{T+5}       ; (l>>3)*16
    v_add_u32 v{EAOFF}, {L_LIST}, v{EAOFF}
    v_and_b32 v{T+6}, 6, v{T+4}
    v_xor_b32 v{T+6}, v{T+6}, v{T+1}
    v_lshlrev_b32 v{T+6}, 4, v{T+6}
    v_lshl_add_u32 v{T+6}, v{T+4}, 7, v{T+6}
    v_add_u32 v{RA0}, s31, v{T+6}
    v_xor_b32 v{RA1}, 64, v{RA0}
    v_lshrrev_b32 v{T+6}, 2, v{LANE}        ; row
    v_and_b32 v{T+7}, 6, v{T+6}
    v_bfe_u32 v{T+5}, v{LANE}, 1, 1         ; c'>>1
    v_xor_b32 v{T+7}, v{T+7}, v{T+5}
    v_lshlrev_b32 v{T+7}, 4, v{T+7}
    v_lshl_add_u32 v{T+7}, v{T+6}, 7, v{T+7}
    v_and_b32 v{T+5}, 1, v{LANE}
    v_lshl_add_u32 v{T+7}, v{T+5}, 3, v{T+7}
    v_add_u32 v{RT}, s31, v{T+7}
    v_xor_b32 v{RT+1}, 32, v{RT}
    v_xor_b32 v{RT+2}, 64, v{RT}
    v_xor_b32 v{RT+3}, 0x60, v{RT}
    v_and_b32 v{T+5}, 7, v{LANE}
    v_bfe_u32 v{T+6}, v{LANE}, 3, 2
    v_lshl_add_u32 v{T+5}, v{T+5}, 2, v{T+6}
    v_lshlrev_b32 v{MAOFF}, 2, v{T+5}
    v_add_u32 v{MAOFF}, {L_LIST}, v{MAOFF}
    v_mov_b32 v{MA+1}, 0x00003f80
    v_mov_b32 v{MA+2}, 0
    v_mov_b32 v{MA+3}, 0
    v_mov_b32 v{MB}, 0
    v_mov_b32 v{MB+1}, 0
    v_mov_b32 v{MB+2}, 0
    v_mov_b32 v{MB+3}, 0
    v_and_b32 v{T+5}, 7, v{LANE}
    v_cvt_f32_u32 v{T+5}, v{T+5}            ; j'
    v_mov_b32 v{T+6}, 0x71800000            ; BIG = 2^100
    v_mul_f32 v{T+7}, v{T+5}, v{T+6}        ; j'*BIG
    v_mul_f32 v{T+5}, v{T+5}, v{T+7}        ; j'^2*BIG
    v_mul_f32 v{T+7}, -2.0, v{T+7}
    s_mov_b32 s70, 0xff0000ff
    s_mov_b32 s71, 0
    s_mov_b64 exec, s[70:71]
    v_cvt_pk_bf16_f32 v{MB}, v{T+6}, v{T+7}
    v_cvt_pk_bf16_f32 v{MB+1}, v{T+5}, 0
    s_mov_b64 exec, -1''')
    for r in range(4):
        a(f'    v_mov_b32 v{PP+r}, 0')
    for r in range(16):
        a(f'    v_mov_b32 v{ACC+r}, 0')
    a(f'''
    v_lshrrev_b32 v{T+4}, 3, v0
    v_bfe_u32 v{T+5}, v{T+4}, 1, 1
    v_and_b32 v{T+6}, 8, v{T+4}
    v_or_b32 v{T+5}, v{T+5}, v{T+6}
    v_bfe_u32 v{T+6}, v{T+4}, 1, 2
    s_cmp_lt_u32 s28, 8
    s_cselect_b64 s[70:71], -1, 0
    v_cndmask_b32 v{T+5}, v{T+6}, v{T+5}, s[70:71]
    v_and_b32 v{T+6}, 7, v0
    v_lshlrev_b32 v{T+6}, 1, v{T+6}
    v_xor_b32 v{T+6}, v{T+6}, v{T+5}
    v_lshlrev_b32 v{T+6}, 3, v{T+6}
    v_lshl_add_u32 v{T+6}, v{T+4}, 7, v{T+6}
    v_add_u32 v{T+6}, {L_WQ}, v{T+6}
    v_xor_b32 v{T+7}, 8, v{T+6}
    s_waitcnt lgkmcnt(0)
    s_barrier''')
    def rank(r, first):
        m = 40 + 2*r
        a(f'''
    v_cmp_gt_i32 s[{m}:{m+1}], 0, v{EN+r}
    v_and_b32 v{G4+r}, 15, v{EN+r}
    v_lshlrev_b32 v{G4+r}, 2, v{G4+r}
    s_mov_b64 exec, s[{m}:{m+1}]''')
        if r % 4 == 3:
            a(f'''
    s_cbranch_execz B_nr{r}{first}
    ds_add_rtn_u32 v{RK+r}, v{G4+r}, v{ONE} offset:{L_CNT}
    s_cmp_lg_u32 s36, 0
    s_cbranch_scc1 B_nr{r}{first}
    s_add_u32 s70, s2, 31
    s_and_b32 s70, s70, 7
    v_and_b32 v{T}, 7, v0
    v_cmp_eq_u32 vcc, s70, v{T}
    s_and_b64 exec, exec, vcc
    v_lshrrev_b32 v{T}, 3, v0
    v_lshrrev_b32 v{T+1}, 5, v{T}
    v_lshlrev_b32 v{T+1}, 2, v{T+1}
    v_lshlrev_b32 v{T}, v{T}, v{ONE}
    ds_or_b32 v{T+1}, v{T} offset:{L_FULL + (16 if r == 7 else 0)}
B_nr{r}{first}:
    s_mov_b64 exec, -1''')
        else:
            a(f'''
    ds_add_rtn_u32 v{RK+r}, v{G4+r}, v{ONE} offset:{L_CNT}
    s_mov_b64 exec, -1''')
    a(f'    s_waitcnt vmcnt({4+npf})')
    for r in range(4):
        rank(r, 'f')
    a(f'    s_waitcnt vmcnt({3+npf})')
    for r in range(4, 8):
        rank(r, 'f')
    a(f'''
    s_waitcnt vmcnt({2+npf})
    ds_write_b64 v{T+6}, {vr(WD,2)}
    ds_write_b64 v{T+7}, {vr(WD+2,2)}
    s_waitcnt vmcnt({npf})
    s_branch B_ranked
B_batch:''')
    for r in range(8):
        rank(r, 'b')
    a(f'''
B_ranked:
    s_waitcnt lgkmcnt(0)
    s_barrier
    v_and_b32 v{T}, 15, v{LANE}
    v_lshlrev_b32 v{T}, 2, v{T}
    ds_read_b32 v{T+1}, v{T} offset:{L_CNT}
    ds_read_b32 v{T+4}, v{T} offset:{L_FULL}
    s_waitcnt lgkmcnt(0)
    v_add_u32 v{T+2}, 31, v{T+1}
    v_and_b32 v{T+2}, -32, v{T+2}
    v_mov_b32 v{T+3}, v{T+2}
    s_nop 1
    v_add_u32_dpp v{T+3}, v{T+3}, v{T+3} row_shr:1 row_mask:0xf bank_mask:0xf
    s_nop 1
    v_add_u32_dpp v{T+3}, v{T+3}, v{T+3} row_shr:2 row_mask:0xf bank_mask:0xf
    s_nop 1
    v_add_u32_dpp v{T+3}, v{T+3}, v{T+3} row_shr:4 row_mask:0xf bank_mask:0xf
    s_nop 1
    v_add_u32_dpp v{T+3}, v{T+3}, v{T+3} row_shr:8 row_mask:0xf bank_mask:0xf
    v_readlane_b32 s33, v{T+1}, s28
    v_sub_u32 v{T+2}, v{T+3}, v{T+2}
    v_readlane_b32 s70, v{T+3}, 15
    s_cmp_lg_u32 s36, 0
    s_cbranch_scc1 B_nofull''')
    for k in range(8):
        a(f'    v_readlane_b32 s{60+k}, v{T+4}, {k}')
    a(f'''
B_nofull:
    v_readlane_b32 s32, v{T+2}, s28
    s_cmp_gt_u32 s70, {CAP}
    s_cbranch_scc1 B_toobig''')
    for r in range(8):
        a(f'    ds_bpermute_b32 v{G4+r}, v{G4+r}, v{T+2}')
    a(f'''
    s_add_u32 s34, s33, 31
    s_lshr_b32 s34, s34, 5                  ; ntiles
    s_lshl_b32 s70, s34, 5
    s_lshl_b32 s71, s32, 2
    v_add_u32 v{EA}, s71, v{EAOFF}
    v_add_u32 v{MAD}, s71, v{MAOFF}
    v_add_u32 v{T}, s33, v{LANE}
    v_cmp_gt_u32 vcc, s70, v{T}
    v_add_lshl_u32 v{T}, v{T}, s32, 2
    v_mov_b32 v{T+1}, {PADENT}
    s_mov_b64 exec, vcc
    ds_write_b32 v{T}, v{T+1} offset:{L_LIST}
    s_mov_b64 exec, -1''')
    a('    s_waitcnt lgkmcnt(0)')
    for r in range(8):
        m = 40 + 2*r
        a(f'''
    v_add_lshl_u32 v{G4+r}, v{G4+r}, v{RK+r}, 2
    s_mov_b64 exec, s[{m}:{m+1}]
    ds_write_b32 v{G4+r}, v{EN+r} offset:{L_LIST}
    s_mov_b64 exec, -1''')
    a(f'''
    s_waitcnt lgkmcnt(0)
    s_barrier
    s_cmp_eq_u32 s34, 0
    s_cbranch_scc1 B_loopdone
    ds_read_b128 {vr(EE,4)}, v{EA}
    ds_read_b128 {vr(T,4)}, v{EA} offset:128
    ds_read_b32 v{M0R}, v{MAD}
    s_waitcnt lgkmcnt(0)''')
    gf = opt.get('b_gather', '')
    def dma(ereg, slot):
        for q in range(4):
            if q == 0:
                if slot == 0:
                    a('    s_mov_b32 m0, s31')
                else:
                    a('    s_add_u32 m0, s31, 4096')
            else:
                a('    s_add_u32 m0, m0, 1024')
            a(f'    v_and_or_b32 v{ereg+q}, v{ereg+q}, s30, v{CHK}')
            a(f'    buffer_load_dwordx4 v{ereg+q}, s[12:15], 0 offen{gf} lds')
    dma(EE, 0)
    a('''
    s_cmp_lt_u32 s34, 2
    s_cbranch_scc1 B_one''')
    dma(T, 1)
    a(f'''
B_one:
    ds_read_b128 {vr(EE,4)}, v{EA} offset:256
    s_cmp_lg_u32 s37, 0
    s_cbranch_scc1 B_qdone
    s_mov_b32 s37, 1
    v_lshrrev_b32 v{T}, 4, v{LANE}
    v_bfe_u32 v{T+1}, v{LANE}, 2, 2
    v_lshl_add_u32 v{T+2}, v{T}, 3, v{T+1}  ; row
    v_bfe_u32 v{T+3}, v{T+2}, 1, 1
    v_and_b32 v{T+4}, 8, v{T+2}
    v_or_b32 v{T+3}, v{T+3}, v{T+4}         ; f
    v_and_b32 v{T+4}, 3, v{LANE}
    v_lshlrev_b32 v{T+4}, 1, v{T+4}
    v_xor_b32 v{T+3}, v{T+3}, v{T+4}
    v_lshlrev_b32 v{T+3}, 3, v{T+3}
    v_lshl_add_u32 v{T}, v{T+2}, 7, v{T+3}  ; blk 0
    v_xor_b32 v{T+1}, 8, v{T}               ; blk 1
    v_xor_b32 v{T+2}, 64, v{T}              ; blk 2
    v_xor_b32 v{T+3}, 0x48, v{T}            ; blk 3''')
    for blk in range(4):
        for ks in range(2):
            for h in range(2):
                reg = XA + blk*8 + ks*4 + h*2
                off = L_WQ + (32*ks + 4*h) * 128
                a(f'    ds_read_b64_tr_b16 {vr(reg,2)}, v{T+blk} offset:{off}')
        if blk == 1:
            a('    s_waitcnt lgkmcnt(0)')
    a('    s_waitcnt lgkmcnt(0)')
    for blk in range(4):
        a(f'    v_mfma_f32_16x16x32_bf16 {vr(QLO+4*blk,4)}, {vr(XA+blk*8,4)}, {vr(XN,4)}, 0')
    for blk in range(4):
        a(f'    v_mfma_f32_16x16x32_bf16 {vr(QLO+4*blk,4)}, {vr(XA+blk*8+4,4)}, {vr(XN+4,4)}, {vr(QLO+4*blk,4)}')
    a(f'    s_mov_b32 s70, 0x{f32bits(-1.4426950408889634/8):08x}')
    a('    s_nop 7')
    for r in range(16):
        a(f'    v_mul_f32 v{QLO+r}, s70, v{QLO+r}')
    for r in range(8):
        a(f'    v_cvt_pk_bf16_f32 v{T+r}, v{QLO+2*r}, v{QLO+2*r+1}')
    for r in range(8):
        a(f'    v_cndmask_b32 v{QLO+r}, 0, v{T+r}, s[56:57]')
        a(f'    v_cndmask_b32 v{QHI+r}, 0, v{T+r}, s[58:59]')
    a('''
B_qdone:
    s_mov_b32 s35, 1                        ; s35 = t+1
B_loop:''')
    def body(slot):
        so = slot * 4096
        mcur, mnext = (M0R, M1R) if slot == 0 else (M1R, M0R)
        eo = slot * 128
        a(f'''
    s_cmp_lt_u32 s35, s34
    s_cbranch_scc1 B_w4_{slot}
    s_waitcnt vmcnt(0)
B_w4_{slot}:
    s_waitcnt vmcnt(4)
    ds_read_b128 {vr(XA,4)}, v{RA0} offset:{so}
    ds_read_b128 {vr(XA+4,4)}, v{RA1} offset:{so}
    ds_read_b128 {vr(XA+8,4)}, v{RA0} offset:{so+2048}
    ds_read_b128 {vr(XA+12,4)}, v{RA1} offset:{so+2048}''')
        for fb in range(4):
            a(f'    ds_read_b64_tr_b16 {vr(XT+4*fb,2)}, v{RT+fb} offset:{so}')
            a(f'    ds_read_b64_tr_b16 {vr(XT+4*fb+2,2)}, v{RT+fb} offset:{so+2048}')
        a(f'''
    v_bfe_u32 v{T}, v{mcur}, 4, 3
    v_cvt_f32_u32 v{T}, v{T}
    v_mul_f32 v{T+1}, v{T}, v{T}
    v_cvt_pk_bf16_f32 v{MA}, v{T+1}, v{T}
    ds_read_b32 v{mnext}, v{MAD} offset:{eo+128}
    s_add_u32 s35, s35, 1                   ; t+2
    v_mfma_f32_16x16x32_bf16 {vr(S,4)}, {vr(MA,4)}, {vr(MB,4)}, 0
    s_waitcnt lgkmcnt(12)
    v_mfma_f32_16x16x32_bf16 {vr(S,4)}, {vr(XA,4)}, {vr(QLO,4)}, {vr(S,4)}
    s_waitcnt lgkmcnt(11)
    v_mfma_f32_16x16x32_bf16 {vr(S,4)}, {vr(XA+4,4)}, {vr(QLO+4,4)}, {vr(S,4)}
    s_waitcnt lgkmcnt(10)
    v_mfma_f32_16x16x32_bf16 {vr(S,4)}, {vr(XA+8,4)}, {vr(QHI,4)}, {vr(S,4)}
    s_waitcnt lgkmcnt(9)
    v_mfma_f32_16x16x32_bf16 {vr(S,4)}, {vr(XA+12,4)}, {vr(QHI+4,4)}, {vr(S,4)}
    s_waitcnt lgkmcnt(0)
    s_cmp_lt_u32 s35, s34
    s_cbranch_scc0 B_skip_{slot}''')
        dma(EE, slot)
        a(f'''
    ds_read_b128 {vr(EE,4)}, v{EA} offset:{eo+384}
B_cont_{slot}:''')
        if slot == 1:
            a(f'    v_add_u32 v{EA}, 256, v{EA}')
            a(f'    v_add_u32 v{MAD}, 256, v{MAD}')
        for r in range(4):
            a(f'    v_exp_f32 v{S+r}, v{S+r}')
        for r in range(4):
            a(f'    v_add_f32 v{S+r}, 1.0, v{S+r}')
        for r in range(4):
            a(f'    v_rcp_f32 v{S+r}, v{S+r}')
        a(f'''
    s_mov_b64 exec, s[56:57]
    v_cvt_pk_bf16_f32 v{PP}, v{S}, v{S+1}
    v_cvt_pk_bf16_f32 v{PP+1}, v{S+2}, v{S+3}
    s_mov_b64 exec, s[58:59]
    v_cvt_pk_bf16_f32 v{PP+2}, v{S}, v{S+1}
    v_cvt_pk_bf16_f32 v{PP+3}, v{S+2}, v{S+3}
    s_mov_b64 exec, -1
    s_cmp_gt_u32 s35, s34
    s_nop 0''')
        for fb in range(4):
            a(f'    v_mfma_f32_16x16x32_bf16 {vr(ACC+4*fb,4)}, {vr(XT+4*fb,4)}, {vr(PP,4)}, {vr(ACC+4*fb,4)}')
        if slot == 0:
            a('    s_cbranch_scc1 B_loopdone')
        else:
            a('    s_cbranch_scc0 B_loop')
    body(0)
    body(1)
    a(f'''
B_loopdone:
    s_cmp_lg_u32 s36, 0
    s_cbranch_scc1 B_next
    s_mov_b32 s36, 5
    s_or_b32 s70, s60, s61
    s_or_b32 s71, s62, s63
    s_or_b32 s72, s64, s65
    s_or_b32 s73, s66, s67
    s_or_b32 s70, s70, s71
    s_or_b32 s72, s72, s73
    s_or_b32 s70, s70, s72
    s_cbranch_scc1 B_next
B_epi:
    v_lshrrev_b32 v{T+4}, 2, v{LANE}
    v_bfe_u32 v{T+5}, v{T+4}, 1, 2
    v_and_b32 v{T+6}, 3, v{LANE}
    v_lshl_or_b32 v{T+5}, v{T+6}, 2, v{T+5}
    v_lshlrev_b32 v{T+5}, 3, v{T+5}
    v_lshl_add_u32 v{T}, v{T+4}, 7, v{T+5}
    v_xor_b32 v{T+1}, 8, v{T}
    v_xor_b32 v{T+2}, 16, v{T}
    v_xor_b32 v{T+3}, 24, v{T}''')
    for blk in range(4):
        for ks in range(2):
            for h in range(2):
                reg = XA + blk*8 + ks*4 + h*2
                off = L_WV + (32*ks + 16*h) * 128
                a(f'    ds_read_b64_tr_b16 {vr(reg,2)}, v{T+blk} offset:{off}')
        if blk == 1:
            a('    s_waitcnt lgkmcnt(0)')
    for r in range(16):
        a(f'    v_add_f32_dpp v{ACC+r}, v{ACC+r}, v{ACC+r} row_ror:8 row_mask:0xf bank_mask:0xf')
    for r in range(8):
        a(f'    v_cvt_pk_bf16_f32 v{XN+r}, v{ACC+2*r}, v{ACC+2*r+1}')
    a('    s_waitcnt lgkmcnt(0)')
    a('    s_nop 0')
    for blk in range(4):
        a(f'    v_mfma_f32_16x16x32_bf16 {vr(QLO+4*blk,4)}, {vr(XA+blk*8,4)}, {vr(XN,4)}, 0')
    for blk in range(4):
        a(f'    v_mfma_f32_16x16x32_bf16 {vr(QLO+4*blk,4)}, {vr(XA+blk*8+4,4)}, {vr(XN+4,4)}, {vr(QLO+4*blk,4)}')
    a('    s_nop 7')
    for r in range(8):
        a(f'    v_cvt_pk_bf16_f32 v{T+r}, v{QLO+2*r}, v{QLO+2*r+1}')
    of = opt.get('b_out', '')
    a(f'''
    s_mov_b64 exec, s[56:57]
    buffer_store_dwordx4 {vr(T,4)}, v{OUTOFF}, s[24:27], 0 offen{of}
    buffer_store_dwordx4 {vr(T+4,4)}, v{OUTOFF}, s[24:27], 0 offen offset:16{of}
B_end:
    s_endpgm
B_skip_0:
    s_nop 7
    s_branch B_cont_0
B_skip_1:
    s_nop 7
    s_branch B_cont_1
B_toobig:
    s_mov_b32 s36, 1
B_next:
    s_waitcnt vmcnt(0) lgkmcnt(0)
    s_barrier
    v_mov_b32 v{T+4}, 0
    v_lshlrev_b32 v{T+5}, 2, v0
    v_cmp_gt_u32 vcc, 16, v0
    s_and_saveexec_b64 s[70:71], vcc
    ds_write_b32 v{T+5}, v{T+4} offset:{L_CNT}
    s_mov_b64 exec, -1''')
    for r in range(8):
        a(f'    v_mov_b32 v{EN+r}, 0')
    a(f'''
    s_cmp_gt_u32 s36, 4
    s_cbranch_scc1 B_ovf
    s_sub_u32 s70, s36, 1
    s_lshl_b32 s70, s70, 13
    s_add_u32 s70, s70, s29
    s_add_u32 s36, s36, 1
    s_cmp_ge_u32 s28, 8
    s_cbranch_scc1 B_go
    buffer_load_dwordx4 {vr(EN,4)}, v{SEG}, s[16:19], s70 offen
    s_branch B_go
B_ovf:
    s_cmp_eq_u32 s36, 6
    s_cbranch_scc1 B_ovf2
    s_mov_b32 s74, -1''')
    for k in range(7, -1, -1):
        a(f'''
    s_ff1_i32_b32 s70, s{60+k}
    s_add_u32 s71, s70, {32*k}
    s_cmp_lg_u32 s{60+k}, 0
    s_cselect_b32 s74, s71, s74''')
    a(f'''
    s_cmp_eq_u32 s74, -1
    s_cbranch_scc1 B_epi
    s_lshr_b32 s70, s74, 5
    s_lshl_b32 s71, 1, s74''')
    for k in range(8):
        a(f'''
    s_andn2_b32 s72, s{60+k}, s71
    s_cmp_eq_u32 s70, {k}
    s_cselect_b32 s{60+k}, s72, s{60+k}''')
    a(f'''
    s_mov_b32 s36, 6
    s_mov_b32 s75, 0
    s_branch B_ovfld
B_ovf2:
    s_mov_b32 s36, 5
    s_mov_b32 s75, 2048
B_ovfld:
    s_cmp_ge_u32 s28, 8
    s_cbranch_scc1 B_go
    s_lshl_b32 s70, s74, 2
    s_add_u32 s70, s70, {OVFCNT_OFF}
    s_mul_i32 s71, s74, {OVF_STRIDE}
    s_add_u32 s71, s71, {OVF_OFF}
    s_lshl_b32 s72, s75, 2
    s_add_u32 s71, s71, s72
    buffer_load_dword v{T}, v{T+4}, s[16:19], s70 offen
    buffer_load_dwordx4 {vr(EN,4)}, v{SEG}, s[16:19], s71 offen
    v_lshl_add_u32 v{T+1}, v0, 2, s75
    s_waitcnt vmcnt(0)''')
    for r in range(4):
        a(f'''
    v_add_u32 v{T+2}, {r}, v{T+1}
    v_cmp_lt_u32 vcc, v{T+2}, v{T}
    v_bfe_u32 v{T+3}, v{EN+r}, 22, 8
    v_cmp_eq_u32 s[70:71], s2, v{T+3}
    s_and_b64 vcc, vcc, s[70:71]
    v_cndmask_b32 v{EN+r}, 0, v{EN+r}, vcc''')
    a('''
B_go:
    s_waitcnt vmcnt(0) lgkmcnt(0)
    s_barrier
    s_branch B_batch''')

def kd(a, name, vg, sg):
    a(f'''
.amdhsa_kernel {name}
  .amdhsa_next_free_vgpr {vg}
  .amdhsa_next_free_sgpr {sg}
  .amdhsa_accum_offset {vg}
  .amdhsa_group_segment_fixed_size 0
  .amdhsa_kernarg_size 64
  .amdhsa_user_sgpr_count 2
  .amdhsa_user_sgpr_kernarg_segment_ptr 1
  .amdhsa_system_sgpr_workgroup_id_x 1
.end_amdhsa_kernel''')

def build(opt):
    a = Asm()
    ll = {'A': f'; @launch kernel=part_kernel grid=({P},1,1) block=(1024,1,1) lds={LDS_A}',
          'B': f'; @launch kernel=agg_kernel grid=({B},1,1) block=(1024,1,1) lds={LDS_B}',
          'N': '; @launch kernel=nop_kernel grid=(256,1,1) block=(64,1,1) lds=0'}
    seq = opt.get('seq', ' AB').strip()
    launches = '\n'.join(ll[c] for c in seq)
    a(f'''; FeatGraph: SDDMM (sigmoid gate) + SpMM, two launches.
{launches}
.amdgcn_target "amdgcn-amd-amdhsa--gfx950"
.text
.globl part_kernel
.globl agg_kernel''')
    gen_part(a, opt)
    gen_agg(a, opt)
    if 'N' in seq:
        a('.globl nop_kernel\n.p2align 8\n.type nop_kernel,@function\nnop_kernel:\n    s_endpgm')
    a('.section .rodata,"a"')
    if 'N' in seq:
        a('.p2align 6')
        kd(a, 'nop_kernel', 8, 16)
    a('.p2align 6')
    kd(a, 'part_kernel', 48, 48)
    a('.p2align 6')
    kd(a, 'agg_kernel', 128, 80)
    return a.text()

if __name__ == '__main__':
    out = sys.argv[1]
    opt = {}
    for kv in sys.argv[2:]:
        k, v = kv.split('=')
        try:
            v = int(v)
        except ValueError:
            v = ' ' + v.replace('+', ' ')
        opt[k] = v
    open(out, 'w').write(build(opt))
```

```python
import sys, struct

N, E, D = 25000, 800000, 64
P = 256
B = 256
CH = E // P
BSTRIDE = 257 * 128
OVFCNT_OFF = 0x810000
OVF_OFF = 0x811000
OVF_STRIDE = 12800
WS_USED = OVF_OFF + 256 * OVF_STRIDE
X_BYTES = N * 128
PADENT = 0x003FFFFF

L_CNT = 0
L_FULL = 64
L_LIST = 1024
CAP = 3840
L_WQ = 16384
L_WV = 24576
L_RING = 32768
LDS_B = 163840
LDS_A = 32768 + 2048
A_CNT = 32768
A_OVF = 32768 + 1024

def f32bits(x):
    return struct.unpack('<I', struct.pack('<f', x))[0]

class Asm:
    def __init__(self):
        self.lines = []
    def __call__(self, s):
        for ln in s.strip('\n').split('\n'):
            self.lines.append(ln)
    def label(self, name):
        self.lines.append(name + ':')
    def text(self):
        return '\n'.join(self.lines) + '\n'

def srd(a, d, lo, hi, nbytes):
    a(f'    s_mov_b32 s{d}, s{lo}')
    a(f'    s_mov_b32 s{d+1}, s{hi}')
    a(f'    s_mov_b32 s{d+2}, {nbytes}')
    a(f'    s_mov_b32 s{d+3}, 0x00020000')

STAMP_OFF = 0x1000000
def stamp(a, opt, k):
    if opt.get('stamps'):
        if opt.get('clk'):
            if k in (1, 10):
                return
            if k == 0:
                a(f'    s_memtime s[80:81]')
            if k == 11:
                a(f'    s_memtime s[98:99]')
        a(f'    s_memrealtime s[{78+2*k}:{79+2*k}]')
        a('    s_waitcnt lgkmcnt(0)')

def stamp_out(a, opt, kid, n, wslo, t0, t1):
    if not opt.get('stamps'):
        return
    a('    s_mov_b64 exec, -1')
    a(f'    v_mov_b32 v{t0}, 0')
    for k in range(n):
        a(f'    v_writelane_b32 v{t0}, s{78+2*k}, {k}')
    a(f'''
    s_add_u32 s76, s{wslo}, {STAMP_OFF + kid*256*16*64}
    s_addc_u32 s77, s{wslo+1}, 0
    v_lshrrev_b32 v{t1}, 6, v0
    v_lshlrev_b32 v{t1}, 4, v{t1}
    v_and_b32 v{t1+1}, 63, v0
    v_add_lshl_u32 v{t1}, v{t1}, v{t1+1}, 2
    s_lshl_b32 s74, s2, 10
    v_add_u32 v{t1}, s74, v{t1}
    s_mov_b64 exec, 0xffff
    global_store_dword v{t1}, v{t0}, s[76:77]''')

def vr(lo, n):
    return f'v[{lo}:{lo+n-1}]'

def gen_part(a, opt):
    a('.p2align 8')
    a('.type part_kernel,@function')
    a.label('part_kernel')
    a(f'''
    s_cmp_ge_u32 s2, {P}
    s_cbranch_scc1 A_end''')
    stamp(a, opt, 0)
    a(f'''
    s_load_dwordx4 s[4:7], s[0:1], 8
    s_load_dwordx2 s[8:9], s[0:1], 56       ; ws
    s_load_dwordx2 s[10:11], s[0:1], 0      ; x
    v_lshlrev_b32 v1, 2, v0                 ; t*4
    v_lshlrev_b32 v2, 4, v0                 ; t*16
    v_mov_b32 v4, 0
    v_mov_b32 v5, 0
    v_mov_b32 v6, 0
    v_mov_b32 v7, 0
    v_mov_b32 v3, 1
    s_mul_i32 s24, s2, {CH*4}
    s_add_u32 s25, s24, 4096
    s_add_u32 s26, s24, 8192
    s_add_u32 s27, s24, 12288
    s_lshr_b32 s28, s2, 3
    s_and_b32 s29, s2, 7
    s_lshl_b32 s29, s29, 5
    s_or_b32 s28, s28, s29
    s_mov_b32 s34, 0x80000000
    v_cmp_gt_u32 s[30:31], {CH-3072}, v0
    s_waitcnt lgkmcnt(0)''')
    stamp(a, opt, 1)
    srd(a, 12, 4, 5, E*4)
    srd(a, 16, 6, 7, E*4)
    srd(a, 20, 8, 9, WS_USED)
    nt = ' nt' if opt.get('a_nt_ld') else ''
    a(f'''
    s_mov_b64 exec, s[30:31]
    s_cbranch_execz A_no3a
    buffer_load_dword v11, v1, s[16:19], s27 offen{nt}
    buffer_load_dword v15, v1, s[12:15], s27 offen{nt}
A_no3a:
    s_mov_b64 exec, -1
    buffer_load_dword v8, v1, s[16:19], s24 offen{nt}
    buffer_load_dword v9, v1, s[16:19], s25 offen{nt}
    buffer_load_dword v10, v1, s[16:19], s26 offen{nt}
    buffer_load_dword v12, v1, s[12:15], s24 offen{nt}
    buffer_load_dword v13, v1, s[12:15], s25 offen{nt}
    buffer_load_dword v14, v1, s[12:15], s26 offen{nt}''')
    npf = 0
    if opt.get('a_pf'):
        srd(a, 36, 10, 11, X_BYTES)
        mode = opt['a_pf']
        if mode == 8:
            a(f'''
    s_lshr_b32 s35, s2, 3
    s_mul_i32 s35, s35, {782*128}
    v_lshlrev_b32 v40, 7, v0
    v_cmp_gt_u32 vcc, 782, v0
    s_and_saveexec_b64 s[32:33], vcc
    s_cbranch_execz A_nopf
    buffer_load_dword v41, v40, s[36:39], s35 offen
A_nopf:
    s_mov_b64 exec, -1''')
        else:
            a(f'''
    s_mul_i32 s35, s2, {98*128}
    v_lshlrev_b32 v40, 7, v0
    v_cmp_gt_u32 vcc, 98, v0
    s_and_saveexec_b64 s[32:33], vcc
    s_cbranch_execz A_nopf
    buffer_load_dword v41, v40, s[36:39], s35 offen
A_nopf:
    s_mov_b64 exec, -1''')
        npf = 1
    a(f'''
    ds_write_b128 v2, v[4:7]
    ds_write_b128 v2, v[4:7] offset:16384
    v_cmp_gt_u32 vcc, 128, v0
    s_and_saveexec_b64 s[32:33], vcc
    ds_write_b128 v2, v[4:7] offset:{A_CNT}
    s_mov_b64 exec, -1
    s_mul_i32 s40, s28, {OVF_STRIDE}
    s_add_u32 s40, s40, {OVF_OFF}
    s_lshl_b32 s41, s28, 7                  ; p'*128
    s_add_u32 s42, s41, {128*BSTRIDE}
    s_lshl_b32 s43, s28, 2
    s_add_u32 s43, s43, {OVFCNT_OFF}
    v_lshrrev_b32 v34, 3, v0
    v_mul_u32_u24 v34, {BSTRIDE}, v34
    v_and_b32 v35, 7, v0
    v_lshl_add_u32 v34, v35, 4, v34
    s_waitcnt lgkmcnt(0)
    s_barrier''')
    if npf:
        a('''
    s_waitcnt vmcnt(0)''') if not opt.get('a_pf_nowait') else None
    else:
        a('    s_waitcnt vmcnt(3)')
    def rank(k):
        a(f'''
    v_and_b32 v{16+k}, 255, v{8+k}
    v_lshlrev_b32 v28, 2, v{16+k}
    ds_add_rtn_u32 v{20+k}, v28, v3 offset:{A_CNT}''')
    def entry(k):
        a(f'''
    v_lshrrev_b32 v{24+k}, 8, v{8+k}
    v_lshl_or_b32 v29, v{12+k}, 7, s34
    v_or_b32 v{24+k}, v{24+k}, v29''')
    def addr(k):
        a(f'''
    v_add_u32 v30, v{20+k}, v{16+k}
    v_and_b32 v30, 7, v30
    v_lshlrev_b32 v30, 4, v30
    v_lshl_or_b32 v30, v{16+k}, 7, v30
    v_lshrrev_b32 v31, 3, v{20+k}
    v_lshl_add_u32 v30, v31, 2, v30''')
    def put_checked(k, tag):
        addr(k)
        a(f'''
    v_cmp_gt_u32 vcc, 32, v{20+k}
    s_and_saveexec_b64 s[32:33], vcc
    ds_write_b32 v30, v{24+k}
    s_andn2_b64 exec, s[32:33], exec
    s_cbranch_execz A_noovf{tag}
    ds_add_rtn_u32 v32, v4, v3 offset:{A_OVF}
    v_lshl_or_b32 v33, v{16+k}, 22, v{24+k}
    s_waitcnt lgkmcnt(0)
    v_lshlrev_b32 v32, 2, v32
    buffer_store_dword v33, v32, s[20:23], s40 offen
A_noovf{tag}:
    s_mov_b64 exec, s[32:33]''')
    stamp(a, opt, 2)
    for k in range(3):
        rank(k)
    a('    s_waitcnt vmcnt(0)')
    for k in range(3):
        entry(k)
    a('''
    s_waitcnt lgkmcnt(0)
    v_max3_u32 v28, v20, v21, v22
    v_cmp_lt_u32 vcc, 31, v28
    s_cbranch_vccnz A_slow''')
    for k in range(3):
        addr(k)
        a(f'    ds_write_b32 v30, v{24+k}')
    a.label('A_join')
    a('''
    s_mov_b64 exec, s[30:31]
    s_cbranch_execz A_no3b''')
    rank(3)
    entry(3)
    a('    s_waitcnt lgkmcnt(0)')
    put_checked(3, '3')
    st = opt.get('a_st', '')
    a(f'''
A_no3b:
    s_mov_b64 exec, -1
    s_waitcnt lgkmcnt(0)''')
    stamp(a, opt, 3)
    a('''
    s_barrier''')
    stamp(a, opt, 4)
    a(f'''
    ds_read_b128 v[8:11], v2
    ds_read_b128 v[12:15], v2 offset:16384
    ds_read_b32 v16, v4 offset:{A_OVF}
    s_waitcnt lgkmcnt(2)
    buffer_store_dwordx4 v[8:11], v34, s[20:23], s41 offen{st}
    s_waitcnt lgkmcnt(1)
    buffer_store_dwordx4 v[12:15], v34, s[20:23], s42 offen{st}''')
    if opt.get('stamps'):
        stamp(a, opt, 5)
        a('    s_waitcnt vmcnt(0)')
        stamp(a, opt, 6)
        stamp_out(a, opt, 0, 7, 8, 40, 41)
        a('    s_mov_b64 exec, -1')
    a(f'''
    v_cmp_eq_u32 vcc, 0, v0
    s_and_saveexec_b64 s[32:33], vcc
    s_cbranch_execz A_end
    s_waitcnt lgkmcnt(0)
    buffer_store_dword v16, v4, s[20:23], s43 offen
A_end:
    s_endpgm
A_slow:''')
    for k in range(3):
        put_checked(k, f's{k}')
    a('    s_branch A_join')

QLO, QHI, ACC, XA, XT, S, PP, MA, MB, EE = 8, 16, 24, 40, 56, 72, 76, 80, 84, 88
M0R, M1R = 92, 93
RA0, RA1, RT, EA, MAD, CHK = 94, 95, 96, 100, 101, 102
T = 104
XN = 112
OUTOFF = 120
LANE = 1
EAOFF, MAOFF = 2, 3
ONE = 4
SEG = 5
EN, RK, G4, WD = 40, 48, 56, 64

def gen_agg(a, opt):
    a('.p2align 8')
    a('.type agg_kernel,@function')
    a.label('agg_kernel')
    a(f'''
    s_cmp_ge_u32 s2, {B}
    s_cbranch_scc1 B_end''')
    stamp(a, opt, 0)
    a(f'''
    s_load_dwordx2 s[4:5], s[0:1], 0        ; x
    s_load_dwordx4 s[8:11], s[0:1], 24      ; w_q, w_v
    s_load_dwordx2 s[6:7], s[0:1], 40       ; out
    s_load_dwordx2 s[38:39], s[0:1], 56     ; ws
    v_lshrrev_b32 v{T}, 6, v0
    v_and_b32 v{LANE}, 63, v0
    v_readfirstlane_b32 s28, v{T}
    v_lshlrev_b32 v{SEG}, 4, v0
    v_mov_b32 v{ONE}, 1
    s_mul_i32 s29, s2, {BSTRIDE}
    s_add_u32 s68, s29, 16384
    v_and_b32 v{T}, 7, v0
    v_lshlrev_b32 v{T}, 19, v{T}
    s_lshl_b32 s69, s28, 15
    s_lshl_b32 s70, s2, 7
    s_add_u32 s69, s69, s70
    v_add_u32 v{T}, s69, v{T}
    v_lshrrev_b32 v{T+1}, 4, v{LANE}        ; g
    v_lshl_add_u32 v{T+2}, v{T+1}, 4, v{T}
    v_lshl_add_u32 v{OUTOFF}, v{T+1}, 5, v{T}
    v_and_b32 v{T+3}, 0x1ff0, v{SEG}
    s_cmp_lt_u32 s28, 8
    s_waitcnt lgkmcnt(0)
    s_cselect_b32 s20, s8, s10
    s_cselect_b32 s21, s9, s11
    s_mov_b32 s22, 8192
    s_mov_b32 s23, 0x00020000''')
    stamp(a, opt, 1)
    srd(a, 16, 38, 39, WS_USED)
    srd(a, 12, 4, 5, X_BYTES)
    segf = opt.get('b_seg', '')
    a(f'''
    buffer_load_dwordx4 {vr(EN,4)}, v{SEG}, s[16:19], s29 offen{segf}
    buffer_load_dwordx4 {vr(EN+4,4)}, v{SEG}, s[16:19], s68 offen{segf}
    buffer_load_dwordx4 {vr(WD,4)}, v{T+3}, s[20:23], 0 offen
    buffer_load_dwordx4 {vr(XN,4)}, v{T+2}, s[12:15], 0 offen
    buffer_load_dwordx4 {vr(XN+4,4)}, v{T+2}, s[12:15], 0 offen offset:64''')
    npf = 0
    if opt.get('b_pf'):
        a(f'''
    s_lshr_b32 s70, s2, 3
    s_mul_i32 s70, s70, {782*128}
    v_lshlrev_b32 v{T+4}, 7, v0
    v_mov_b32 v{T+5}, 0x7fffff00
    v_cmp_gt_u32 vcc, 782, v0
    s_nop 1
    v_cndmask_b32 v{T+4}, v{T+5}, v{T+4}, vcc
    buffer_load_dword v121, v{T+4}, s[12:15], s70 offen''')
        npf = 1
    srd(a, 24, 6, 7, X_BYTES)
    a(f'''
    v_mov_b32 v{T+4}, 0
    v_lshlrev_b32 v{T+5}, 2, v0
    v_cmp_gt_u32 vcc, 32, v0
    s_and_saveexec_b64 s[70:71], vcc
    ds_write_b32 v{T+5}, v{T+4}
    s_mov_b64 exec, -1
    s_mov_b32 s30, 0x003fff80
    s_lshl_b32 s31, s28, 13
    s_add_u32 s31, s31, {L_RING}
    s_mov_b32 s36, 0
    s_mov_b32 s37, 0
    s_mov_b32 s56, 0x00ff00ff
    s_mov_b32 s57, 0x00ff00ff
    s_mov_b32 s58, 0xff00ff00
    s_mov_b32 s59, 0xff00ff00
    v_and_b32 v{T+4}, 15, v{LANE}           ; i / j
    v_lshrrev_b32 v{T+5}, 3, v{LANE}        ; l>>3
    v_and_b32 v{T+6}, 6, v{T+5}
    v_and_b32 v{T+7}, 7, v{LANE}
    v_xor_b32 v{T+6}, v{T+6}, v{T+7}
    v_lshlrev_b32 v{CHK}, 4, v{T+6}
    v_lshlrev_b32 v{EAOFF}, 4, v{T+5}       ; (l>>3)*16
    v_add_u32 v{EAOFF}, {L_LIST}, v{EAOFF}
    v_and_b32 v{T+6}, 6, v{T+4}
    v_xor_b32 v{T+6}, v{T+6}, v{T+1}
    v_lshlrev_b32 v{T+6}, 4, v{T+6}
    v_lshl_add_u32 v{T+6}, v{T+4}, 7, v{T+6}
    v_add_u32 v{RA0}, s31, v{T+6}
    v_xor_b32 v{RA1}, 64, v{RA0}
    v_lshrrev_b32 v{T+6}, 2, v{LANE}        ; row
    v_and_b32 v{T+7}, 6, v{T+6}
    v_bfe_u32 v{T+5}, v{LANE}, 1, 1         ; c'>>1
    v_xor_b32 v{T+7}, v{T+7}, v{T+5}
    v_lshlrev_b32 v{T+7}, 4, v{T+7}
    v_lshl_add_u32 v{T+7}, v{T+6}, 7, v{T+7}
    v_and_b32 v{T+5}, 1, v{LANE}
    v_lshl_add_u32 v{T+7}, v{T+5}, 3, v{T+7}
    v_add_u32 v{RT}, s31, v{T+7}
    v_xor_b32 v{RT+1}, 32, v{RT}
    v_xor_b32 v{RT+2}, 64, v{RT}
    v_xor_b32 v{RT+3}, 0x60, v{RT}
    v_and_b32 v{T+5}, 7, v{LANE}
    v_bfe_u32 v{T+6}, v{LANE}, 3, 2
    v_lshl_add_u32 v{T+5}, v{T+5}, 2, v{T+6}
    v_lshlrev_b32 v{MAOFF}, 2, v{T+5}
    v_add_u32 v{MAOFF}, {L_LIST}, v{MAOFF}
    v_mov_b32 v{MA+1}, 0x00003f80
    v_mov_b32 v{MA+2}, 0
    v_mov_b32 v{MA+3}, 0
    v_mov_b32 v{MB}, 0
    v_mov_b32 v{MB+1}, 0
    v_mov_b32 v{MB+2}, 0
    v_mov_b32 v{MB+3}, 0
    v_and_b32 v{T+5}, 7, v{LANE}
    v_cvt_f32_u32 v{T+5}, v{T+5}            ; j'
    v_mov_b32 v{T+6}, 0x71800000            ; BIG = 2^100
    v_mul_f32 v{T+7}, v{T+5}, v{T+6}        ; j'*BIG
    v_mul_f32 v{T+5}, v{T+5}, v{T+7}        ; j'^2*BIG
    v_mul_f32 v{T+7}, -2.0, v{T+7}
    s_mov_b32 s70, 0xff0000ff
    s_mov_b32 s71, 0
    s_mov_b64 exec, s[70:71]
    v_cvt_pk_bf16_f32 v{MB}, v{T+6}, v{T+7}
    v_cvt_pk_bf16_f32 v{MB+1}, v{T+5}, 0
    s_mov_b64 exec, -1''')
    for r in range(4):
        a(f'    v_mov_b32 v{PP+r}, 0')
    for r in range(16):
        a(f'    v_mov_b32 v{ACC+r}, 0')
    a(f'''
    v_lshrrev_b32 v{T+4}, 3, v0
    v_bfe_u32 v{T+5}, v{T+4}, 1, 1
    v_and_b32 v{T+6}, 8, v{T+4}
    v_or_b32 v{T+5}, v{T+5}, v{T+6}
    v_bfe_u32 v{T+6}, v{T+4}, 1, 2
    s_cmp_lt_u32 s28, 8
    s_cselect_b64 s[70:71], -1, 0
    v_cndmask_b32 v{T+5}, v{T+6}, v{T+5}, s[70:71]
    v_and_b32 v{T+6}, 7, v0
    v_lshlrev_b32 v{T+6}, 1, v{T+6}
    v_xor_b32 v{T+6}, v{T+6}, v{T+5}
    v_lshlrev_b32 v{T+6}, 3, v{T+6}
    v_lshl_add_u32 v{T+6}, v{T+4}, 7, v{T+6}
    v_add_u32 v{T+6}, {L_WQ}, v{T+6}
    v_xor_b32 v{T+7}, 8, v{T+6}
    s_waitcnt lgkmcnt(0)
    s_barrier''')
    def rank(r, first):
        m = 40 + 2*r
        a(f'''
    v_cmp_gt_i32 s[{m}:{m+1}], 0, v{EN+r}
    v_and_b32 v{G4+r}, 15, v{EN+r}
    v_lshlrev_b32 v{G4+r}, 2, v{G4+r}
    s_mov_b64 exec, s[{m}:{m+1}]''')
        if r % 4 == 3:
            a(f'''
    s_cbranch_execz B_nr{r}{first}
    ds_add_rtn_u32 v{RK+r}, v{G4+r}, v{ONE} offset:{L_CNT}
    s_cmp_lg_u32 s36, 0
    s_cbranch_scc1 B_nr{r}{first}
    s_add_u32 s70, s2, 31
    s_and_b32 s70, s70, 7
    v_and_b32 v{T}, 7, v0
    v_cmp_eq_u32 vcc, s70, v{T}
    s_and_b64 exec, exec, vcc
    v_lshrrev_b32 v{T}, 3, v0
    v_lshrrev_b32 v{T+1}, 5, v{T}
    v_lshlrev_b32 v{T+1}, 2, v{T+1}
    v_lshlrev_b32 v{T}, v{T}, v{ONE}
    ds_or_b32 v{T+1}, v{T} offset:{L_FULL + (16 if r == 7 else 0)}
B_nr{r}{first}:
    s_mov_b64 exec, -1''')
        else:
            a(f'''
    ds_add_rtn_u32 v{RK+r}, v{G4+r}, v{ONE} offset:{L_CNT}
    s_mov_b64 exec, -1''')
    stamp(a, opt, 2)
    a(f'    s_waitcnt vmcnt({4+npf})')
    stamp(a, opt, 3)
    for r in range(4):
        rank(r, 'f')
    a(f'    s_waitcnt vmcnt({3+npf})')
    for r in range(4, 8):
        rank(r, 'f')
    a(f'''
    s_waitcnt vmcnt({2+npf})
    ds_write_b64 v{T+6}, {vr(WD,2)}
    ds_write_b64 v{T+7}, {vr(WD+2,2)}
    s_waitcnt vmcnt({npf})
    s_branch B_ranked
B_batch:''')
    for r in range(8):
        rank(r, 'b')
    a(f'''
B_ranked:
    s_waitcnt lgkmcnt(0)''')
    stamp(a, opt, 4)
    a('''
    s_barrier''')
    stamp(a, opt, 5)
    a(f'''
    v_and_b32 v{T}, 15, v{LANE}
    v_lshlrev_b32 v{T}, 2, v{T}
    ds_read_b32 v{T+1}, v{T} offset:{L_CNT}
    ds_read_b32 v{T+4}, v{T} offset:{L_FULL}
    s_waitcnt lgkmcnt(0)
    v_add_u32 v{T+2}, 31, v{T+1}
    v_and_b32 v{T+2}, -32, v{T+2}
    v_mov_b32 v{T+3}, v{T+2}
    s_nop 1
    v_add_u32_dpp v{T+3}, v{T+3}, v{T+3} row_shr:1 row_mask:0xf bank_mask:0xf
    s_nop 1
    v_add_u32_dpp v{T+3}, v{T+3}, v{T+3} row_shr:2 row_mask:0xf bank_mask:0xf
    s_nop 1
    v_add_u32_dpp v{T+3}, v{T+3}, v{T+3} row_shr:4 row_mask:0xf bank_mask:0xf
    s_nop 1
    v_add_u32_dpp v{T+3}, v{T+3}, v{T+3} row_shr:8 row_mask:0xf bank_mask:0xf
    v_readlane_b32 s33, v{T+1}, s28
    v_sub_u32 v{T+2}, v{T+3}, v{T+2}
    v_readlane_b32 s70, v{T+3}, 15
    s_cmp_lg_u32 s36, 0
    s_cbranch_scc1 B_nofull''')
    for k in range(8):
        a(f'    v_readlane_b32 s{60+k}, v{T+4}, {k}')
    a(f'''
B_nofull:
    v_readlane_b32 s32, v{T+2}, s28
    s_cmp_gt_u32 s70, {CAP}
    s_cbranch_scc1 B_toobig''')
    for r in range(8):
        a(f'    ds_bpermute_b32 v{G4+r}, v{G4+r}, v{T+2}')
    a(f'''
    s_add_u32 s34, s33, 31
    s_lshr_b32 s34, s34, 5                  ; ntiles
    s_lshl_b32 s70, s34, 5
    s_lshl_b32 s71, s32, 2
    v_add_u32 v{EA}, s71, v{EAOFF}
    v_add_u32 v{MAD}, s71, v{MAOFF}
    v_add_u32 v{T}, s33, v{LANE}
    v_cmp_gt_u32 vcc, s70, v{T}
    v_add_lshl_u32 v{T}, v{T}, s32, 2
    v_mov_b32 v{T+1}, {PADENT}
    s_mov_b64 exec, vcc
    ds_write_b32 v{T}, v{T+1} offset:{L_LIST}
    s_mov_b64 exec, -1''')
    a('    s_waitcnt lgkmcnt(0)')
    for r in range(8):
        m = 40 + 2*r
        a(f'''
    v_add_lshl_u32 v{G4+r}, v{G4+r}, v{RK+r}, 2
    s_mov_b64 exec, s[{m}:{m+1}]
    ds_write_b32 v{G4+r}, v{EN+r} offset:{L_LIST}
    s_mov_b64 exec, -1''')
    a(f'''
    s_waitcnt lgkmcnt(0)
    s_barrier''')
    stamp(a, opt, 6)
    a(f'''
    s_cmp_eq_u32 s34, 0
    s_cbranch_scc1 B_loopdone
    ds_read_b128 {vr(EE,4)}, v{EA}
    ds_read_b128 {vr(T,4)}, v{EA} offset:128
    ds_read_b32 v{M0R}, v{MAD}
    s_waitcnt lgkmcnt(0)''')
    gf = opt.get('b_gather', '')
    def dma(ereg, slot):
        for q in range(4):
            if q == 0:
                if slot == 0:
                    a('    s_mov_b32 m0, s31')
                else:
                    a('    s_add_u32 m0, s31, 4096')
            else:
                a('    s_add_u32 m0, m0, 1024')
            a(f'    v_and_or_b32 v{ereg+q}, v{ereg+q}, s30, v{CHK}')
            if opt.get('x_nodma'):
                continue
            if opt.get('x_toreg'):
                a(f'    buffer_load_dwordx4 v[124:127], v{ereg+q}, s[12:15], 0 offen{gf}')
                continue
            a(f'    buffer_load_dwordx4 v{ereg+q}, s[12:15], 0 offen{gf} lds')
    dma(EE, 0)
    a('''
    s_cmp_lt_u32 s34, 2
    s_cbranch_scc1 B_one''')
    dma(T, 1)
    a(f'''
B_one:
    ds_read_b128 {vr(EE,4)}, v{EA} offset:256
    s_cmp_lg_u32 s37, 0
    s_cbranch_scc1 B_qdone
    s_mov_b32 s37, 1
    v_lshrrev_b32 v{T}, 4, v{LANE}
    v_bfe_u32 v{T+1}, v{LANE}, 2, 2
    v_lshl_add_u32 v{T+2}, v{T}, 3, v{T+1}  ; row
    v_bfe_u32 v{T+3}, v{T+2}, 1, 1
    v_and_b32 v{T+4}, 8, v{T+2}
    v_or_b32 v{T+3}, v{T+3}, v{T+4}         ; f
    v_and_b32 v{T+4}, 3, v{LANE}
    v_lshlrev_b32 v{T+4}, 1, v{T+4}
    v_xor_b32 v{T+3}, v{T+3}, v{T+4}
    v_lshlrev_b32 v{T+3}, 3, v{T+3}
    v_lshl_add_u32 v{T}, v{T+2}, 7, v{T+3}  ; blk 0
    v_xor_b32 v{T+1}, 8, v{T}               ; blk 1
    v_xor_b32 v{T+2}, 64, v{T}              ; blk 2
    v_xor_b32 v{T+3}, 0x48, v{T}            ; blk 3''')
    for blk in range(4):
        for ks in range(2):
            for h in range(2):
                reg = XA + blk*8 + ks*4 + h*2
                off = L_WQ + (32*ks + 4*h) * 128
                a(f'    ds_read_b64_tr_b16 {vr(reg,2)}, v{T+blk} offset:{off}')
        if blk == 1:
            a('    s_waitcnt lgkmcnt(0)')
    a('    s_waitcnt lgkmcnt(0)')
    for blk in range(4):
        a(f'    v_mfma_f32_16x16x32_bf16 {vr(QLO+4*blk,4)}, {vr(XA+blk*8,4)}, {vr(XN,4)}, 0')
    for blk in range(4):
        a(f'    v_mfma_f32_16x16x32_bf16 {vr(QLO+4*blk,4)}, {vr(XA+blk*8+4,4)}, {vr(XN+4,4)}, {vr(QLO+4*blk,4)}')
    a(f'    s_mov_b32 s70, 0x{f32bits(-1.4426950408889634/8):08x}')
    a('    s_nop 7')
    for r in range(16):
        a(f'    v_mul_f32 v{QLO+r}, s70, v{QLO+r}')
    for r in range(8):
        a(f'    v_cvt_pk_bf16_f32 v{T+r}, v{QLO+2*r}, v{QLO+2*r+1}')
    for r in range(8):
        a(f'    v_cndmask_b32 v{QLO+r}, 0, v{T+r}, s[56:57]')
        a(f'    v_cndmask_b32 v{QHI+r}, 0, v{T+r}, s[58:59]')
    a('''
B_qdone:
    s_mov_b32 s35, 1                        ; s35 = t+1''')
    stamp(a, opt, 7)
    if opt.get('stamps'):
        a('    s_waitcnt vmcnt(4)')
        stamp(a, opt, 8)
    a('B_loop:')
    def body(slot):
        so = slot * 4096
        mcur, mnext = (M0R, M1R) if slot == 0 else (M1R, M0R)
        eo = slot * 128
        a(f'''
    s_cmp_lt_u32 s35, s34
    s_cbranch_scc1 B_w4_{slot}
    s_waitcnt vmcnt(0)
B_w4_{slot}:
    s_waitcnt vmcnt(4)
    ds_read_b128 {vr(XA,4)}, v{RA0} offset:{so}
    ds_read_b128 {vr(XA+4,4)}, v{RA1} offset:{so}
    ds_read_b128 {vr(XA+8,4)}, v{RA0} offset:{so+2048}
    ds_read_b128 {vr(XA+12,4)}, v{RA1} offset:{so+2048}''')
        for fb in range(4):
            a(f'    ds_read_b64_tr_b16 {vr(XT+4*fb,2)}, v{RT+fb} offset:{so}')
            a(f'    ds_read_b64_tr_b16 {vr(XT+4*fb+2,2)}, v{RT+fb} offset:{so+2048}')
        a(f'''
    v_bfe_u32 v{T}, v{mcur}, 4, 3
    v_cvt_f32_u32 v{T}, v{T}
    v_mul_f32 v{T+1}, v{T}, v{T}
    v_cvt_pk_bf16_f32 v{MA}, v{T+1}, v{T}
    ds_read_b32 v{mnext}, v{MAD} offset:{eo+128}
    s_add_u32 s35, s35, 1                   ; t+2
    v_mfma_f32_16x16x32_bf16 {vr(S,4)}, {vr(MA,4)}, {vr(MB,4)}, 0
    s_waitcnt lgkmcnt(12)
    v_mfma_f32_16x16x32_bf16 {vr(S,4)}, {vr(XA,4)}, {vr(QLO,4)}, {vr(S,4)}
    s_waitcnt lgkmcnt(11)
    v_mfma_f32_16x16x32_bf16 {vr(S,4)}, {vr(XA+4,4)}, {vr(QLO+4,4)}, {vr(S,4)}
    s_waitcnt lgkmcnt(10)
    v_mfma_f32_16x16x32_bf16 {vr(S,4)}, {vr(XA+8,4)}, {vr(QHI,4)}, {vr(S,4)}
    s_waitcnt lgkmcnt(9)
    v_mfma_f32_16x16x32_bf16 {vr(S,4)}, {vr(XA+12,4)}, {vr(QHI+4,4)}, {vr(S,4)}
    s_waitcnt lgkmcnt(0)
    s_cmp_lt_u32 s35, s34
    s_cbranch_scc0 B_skip_{slot}''')
        dma(EE, slot)
        a(f'''
    ds_read_b128 {vr(EE,4)}, v{EA} offset:{eo+384}
B_cont_{slot}:''')
        if slot == 1:
            a(f'    v_add_u32 v{EA}, 256, v{EA}')
            a(f'    v_add_u32 v{MAD}, 256, v{MAD}')
        for r in range(4):
            a(f'    v_exp_f32 v{S+r}, v{S+r}')
        for r in range(4):
            a(f'    v_add_f32 v{S+r}, 1.0, v{S+r}')
        for r in range(4):
            a(f'    v_rcp_f32 v{S+r}, v{S+r}')
        a(f'''
    s_mov_b64 exec, s[56:57]
    v_cvt_pk_bf16_f32 v{PP}, v{S}, v{S+1}
    v_cvt_pk_bf16_f32 v{PP+1}, v{S+2}, v{S+3}
    s_mov_b64 exec, s[58:59]
    v_cvt_pk_bf16_f32 v{PP+2}, v{S}, v{S+1}
    v_cvt_pk_bf16_f32 v{PP+3}, v{S+2}, v{S+3}
    s_mov_b64 exec, -1
    s_cmp_gt_u32 s35, s34
    s_nop 0''')
        for fb in range(4):
            a(f'    v_mfma_f32_16x16x32_bf16 {vr(ACC+4*fb,4)}, {vr(XT+4*fb,4)}, {vr(PP,4)}, {vr(ACC+4*fb,4)}')
        if slot == 0:
            a('    s_cbranch_scc1 B_loopdone')
        else:
            a('    s_cbranch_scc0 B_loop')
    n0 = len(a.lines)
    body(0)
    body(1)
    drop = []
    if opt.get('x_nords'): drop += ['ds_read_b128 v[4', 'ds_read_b128 v[5', 'ds_read_b64_tr']
    if opt.get('x_notr'): drop += ['ds_read_b64_tr']
    if opt.get('x_nob128'): drop += ['ds_read_b128 v[4', 'ds_read_b128 v[5']
    if opt.get('x_nomfma'): drop += ['v_mfma']
    if opt.get('x_novalu'): drop += ['v_exp', 'v_rcp', 'v_add_f32', 'v_cvt', 'v_mul', 'v_bfe']
    a.lines[n0:] = [l for l in a.lines[n0:] if not any(l.strip().startswith(d) for d in drop)]
    a(f'''
B_loopdone:
    s_cmp_lg_u32 s36, 0
    s_cbranch_scc1 B_next
    s_mov_b32 s36, 5
    s_or_b32 s70, s60, s61
    s_or_b32 s71, s62, s63
    s_or_b32 s72, s64, s65
    s_or_b32 s73, s66, s67
    s_or_b32 s70, s70, s71
    s_or_b32 s72, s72, s73
    s_or_b32 s70, s70, s72
    s_cbranch_scc1 B_next
B_epi:''')
    stamp(a, opt, 9)
    a(f'''
    v_lshrrev_b32 v{T+4}, 2, v{LANE}
    v_bfe_u32 v{T+5}, v{T+4}, 1, 2
    v_and_b32 v{T+6}, 3, v{LANE}
    v_lshl_or_b32 v{T+5}, v{T+6}, 2, v{T+5}
    v_lshlrev_b32 v{T+5}, 3, v{T+5}
    v_lshl_add_u32 v{T}, v{T+4}, 7, v{T+5}
    v_xor_b32 v{T+1}, 8, v{T}
    v_xor_b32 v{T+2}, 16, v{T}
    v_xor_b32 v{T+3}, 24, v{T}''')
    for blk in range(4):
        for ks in range(2):
            for h in range(2):
                reg = XA + blk*8 + ks*4 + h*2
                off = L_WV + (32*ks + 16*h) * 128
                a(f'    ds_read_b64_tr_b16 {vr(reg,2)}, v{T+blk} offset:{off}')
        if blk == 1:
            a('    s_waitcnt lgkmcnt(0)')
    for r in range(16):
        a(f'    v_add_f32_dpp v{ACC+r}, v{ACC+r}, v{ACC+r} row_ror:8 row_mask:0xf bank_mask:0xf')
    for r in range(8):
        a(f'    v_cvt_pk_bf16_f32 v{XN+r}, v{ACC+2*r}, v{ACC+2*r+1}')
    a('    s_waitcnt lgkmcnt(0)')
    a('    s_nop 0')
    for blk in range(4):
        a(f'    v_mfma_f32_16x16x32_bf16 {vr(QLO+4*blk,4)}, {vr(XA+blk*8,4)}, {vr(XN,4)}, 0')
    for blk in range(4):
        a(f'    v_mfma_f32_16x16x32_bf16 {vr(QLO+4*blk,4)}, {vr(XA+blk*8+4,4)}, {vr(XN+4,4)}, {vr(QLO+4*blk,4)}')
    a('    s_nop 7')
    for r in range(8):
        a(f'    v_cvt_pk_bf16_f32 v{T+r}, v{QLO+2*r}, v{QLO+2*r+1}')
    of = opt.get('b_out', '')
    a(f'''
    s_mov_b64 exec, s[56:57]
    buffer_store_dwordx4 {vr(T,4)}, v{OUTOFF}, s[24:27], 0 offen{of}
    buffer_store_dwordx4 {vr(T+4,4)}, v{OUTOFF}, s[24:27], 0 offen offset:16{of}''')
    if opt.get('stamps'):
        stamp(a, opt, 10)
        a('    s_waitcnt vmcnt(0)')
        stamp(a, opt, 11)
        stamp_out(a, opt, 1, 12, 38, 40, 41)
    a(f'''
B_end:
    s_endpgm
B_skip_0:
    s_nop 7
    s_branch B_cont_0
B_skip_1:
    s_nop 7
    s_branch B_cont_1
B_toobig:
    s_mov_b32 s36, 1
B_next:
    s_waitcnt vmcnt(0) lgkmcnt(0)
    s_barrier
    v_mov_b32 v{T+4}, 0
    v_lshlrev_b32 v{T+5}, 2, v0
    v_cmp_gt_u32 vcc, 16, v0
    s_and_saveexec_b64 s[70:71], vcc
    ds_write_b32 v{T+5}, v{T+4} offset:{L_CNT}
    s_mov_b64 exec, -1''')
    for r in range(8):
        a(f'    v_mov_b32 v{EN+r}, 0')
    a(f'''
    s_cmp_gt_u32 s36, 4
    s_cbranch_scc1 B_ovf
    s_sub_u32 s70, s36, 1
    s_lshl_b32 s70, s70, 13
    s_add_u32 s70, s70, s29
    s_add_u32 s36, s36, 1
    s_cmp_ge_u32 s28, 8
    s_cbranch_scc1 B_go
    buffer_load_dwordx4 {vr(EN,4)}, v{SEG}, s[16:19], s70 offen
    s_branch B_go
B_ovf:
    s_cmp_eq_u32 s36, 6
    s_cbranch_scc1 B_ovf2
    s_mov_b32 s74, -1''')
    for k in range(7, -1, -1):
        a(f'''
    s_ff1_i32_b32 s70, s{60+k}
    s_add_u32 s71, s70, {32*k}
    s_cmp_lg_u32 s{60+k}, 0
    s_cselect_b32 s74, s71, s74''')
    a(f'''
    s_cmp_eq_u32 s74, -1
    s_cbranch_scc1 B_epi
    s_lshr_b32 s70, s74, 5
    s_lshl_b32 s71, 1, s74''')
    for k in range(8):
        a(f'''
    s_andn2_b32 s72, s{60+k}, s71
    s_cmp_eq_u32 s70, {k}
    s_cselect_b32 s{60+k}, s72, s{60+k}''')
    a(f'''
    s_mov_b32 s36, 6
    s_mov_b32 s75, 0
    s_branch B_ovfld
B_ovf2:
    s_mov_b32 s36, 5
    s_mov_b32 s75, 2048
B_ovfld:
    s_cmp_ge_u32 s28, 8
    s_cbranch_scc1 B_go
    s_lshl_b32 s70, s74, 2
    s_add_u32 s70, s70, {OVFCNT_OFF}
    s_mul_i32 s71, s74, {OVF_STRIDE}
    s_add_u32 s71, s71, {OVF_OFF}
    s_lshl_b32 s72, s75, 2
    s_add_u32 s71, s71, s72
    buffer_load_dword v{T}, v{T+4}, s[16:19], s70 offen
    buffer_load_dwordx4 {vr(EN,4)}, v{SEG}, s[16:19], s71 offen
    v_lshl_add_u32 v{T+1}, v0, 2, s75
    s_waitcnt vmcnt(0)''')
    for r in range(4):
        a(f'''
    v_add_u32 v{T+2}, {r}, v{T+1}
    v_cmp_lt_u32 vcc, v{T+2}, v{T}
    v_bfe_u32 v{T+3}, v{EN+r}, 22, 8
    v_cmp_eq_u32 s[70:71], s2, v{T+3}
    s_and_b64 vcc, vcc, s[70:71]
    v_cndmask_b32 v{EN+r}, 0, v{EN+r}, vcc''')
    a('''
B_go:
    s_waitcnt vmcnt(0) lgkmcnt(0)
    s_barrier
    s_branch B_batch''')

def gen_red(a, opt, pos):
    a('.globl red_kernel\n.p2align 8\n.type red_kernel,@function\nred_kernel:')
    a(f'''
    s_cmp_lg_u32 s2, 0
    s_cbranch_scc1 R_end
    s_load_dwordx4 s[4:7], s[0:1], 48
    v_lshlrev_b32 v1, 2, v0
    s_waitcnt lgkmcnt(0)
    s_add_u32 s8, s6, {STAMP_OFF}
    s_addc_u32 s9, s7, 0
    s_sub_u32 s4, s4, {512*pos}
    s_subb_u32 s5, s5, 0
    v_add_u32 v20, 16, v0
    v_and_b32 v20, 63, v20
    v_lshlrev_b32 v20, 2, v20
    v_add_u32 v21, 32, v0
    v_and_b32 v21, 63, v21
    v_lshlrev_b32 v21, 2, v21''')
    for kid in range(2):
        mn, mx = 2 + 2*kid, 3 + 2*kid
        a(f'''
    v_mov_b32 v{mn}, -1
    v_mov_b32 v{mx}, 0
    s_mov_b32 s10, 0
R_l{kid}:''')
        for u in range(8):
            a(f'    global_load_dword v{8+u}, v1, s[8:9] offset:{256*u}')
        a('    s_waitcnt vmcnt(0)')
        for u in range(8):
            a(f'    v_min_u32 v{mn}, v{mn}, v{8+u}')
            a(f'    v_max_u32 v{mx}, v{mx}, v{8+u}')
        a(f'''
    v_add_u32 v1, 2048, v1
    s_add_u32 s10, s10, 1
    s_cmp_lt_u32 s10, 128
    s_cbranch_scc1 R_l{kid}''')
        for idx in (20, 21):
            a(f'''
    ds_bpermute_b32 v8, v{idx}, v{mn}
    ds_bpermute_b32 v9, v{idx}, v{mx}
    s_waitcnt lgkmcnt(0)
    v_min_u32 v{mn}, v{mn}, v8
    v_max_u32 v{mx}, v{mx}, v9''')
    sel = [(3,0),(3,1),(3,2),(3,4),(3,6),(4,0),(5,0),(5,1),(5,2),(5,3),(5,5),(5,6),(4,7),(4,9),(5,9),(5,11)]
    a('    s_nop 1')
    a('    v_readlane_b32 s12, v2, 0')
    a('    v_mov_b32 v10, 0')
    for i, (r, l) in enumerate(sel):
        a(f'    v_readlane_b32 s13, v{r}, {l}')
        a(f'    s_sub_u32 s13, s13, s12')
        a(f'    v_writelane_b32 v10, s13, {i}')
    a('''
    v_lshlrev_b32 v1, 2, v0
    s_mov_b64 exec, 0xffff
    global_store_dword v1, v10, s[4:5]
R_end:
    s_endpgm''')

def kd(a, name, vg, sg):
    a(f'''
.amdhsa_kernel {name}
  .amdhsa_next_free_vgpr {vg}
  .amdhsa_next_free_sgpr {sg}
  .amdhsa_accum_offset {vg}
  .amdhsa_group_segment_fixed_size 0
  .amdhsa_kernarg_size 64
  .amdhsa_user_sgpr_count 2
  .amdhsa_user_sgpr_kernarg_segment_ptr 1
  .amdhsa_system_sgpr_workgroup_id_x 1
.end_amdhsa_kernel''')

def build(opt):
    a = Asm()
    ll = {'A': f'; @launch kernel=part_kernel grid=({P},1,1) block=(1024,1,1) lds={LDS_A}',
          'B': f'; @launch kernel=agg_kernel grid=({B},1,1) block=(1024,1,1) lds={LDS_B}',
          'R': '; @launch kernel=red_kernel grid=(1,1,1) block=(64,1,1) lds=0',
          'N': '; @launch kernel=nop_kernel grid=(256,1,1) block=(64,1,1) lds=0'}
    seq = opt.get('seq', ' AB').strip()
    launches = '\n'.join(ll[c] for c in seq)
    a(f'''; FeatGraph: SDDMM (sigmoid gate) + SpMM, two launches.
{launches}
.amdgcn_target "amdgcn-amd-amdhsa--gfx950"
.text
.globl part_kernel
.globl agg_kernel''')
    gen_part(a, opt)
    gen_agg(a, opt)
    if 'R' in seq:
        gen_red(a, opt, 0)
    if 'N' in seq:
        a('.globl nop_kernel\n.p2align 8\n.type nop_kernel,@function\nnop_kernel:\n    s_endpgm')
    a('.section .rodata,"a"')
    if 'N' in seq:
        a('.p2align 6')
        kd(a, 'nop_kernel', 8, 16)
    if 'R' in seq:
        a('.p2align 6')
        kd(a, 'red_kernel', 32, 48)
    a('.p2align 6')
    kd(a, 'part_kernel', 48, 102 if opt.get('stamps') else 48)
    a('.p2align 6')
    kd(a, 'agg_kernel', 128, 102 if opt.get('stamps') else 80)
    return a.text()

if __name__ == '__main__':
    out = sys.argv[1]
    opt = {}
    for kv in sys.argv[2:]:
        k, v = kv.split('=')
        try:
            v = int(v)
        except ValueError:
            v = ' ' + v.replace('+', ' ')
        opt[k] = v
    open(out, 'w').write(build(opt))
```

```python
import sys, struct

N, E, D = 25000, 800000, 64
P = 256
B = 256
CH = E // P
BSTRIDE = 257 * 128
OVFCNT_OFF = 0x810000
OVF_OFF = 0x811000
OVF_STRIDE = 12800
WS_USED = OVF_OFF + 256 * OVF_STRIDE
X_BYTES = N * 128
PADENT = 0x003FFFFF

L_CNT = 0
L_FULL = 64
L_LIST = 1024
CAP = 3840
L_WQ = 16384
L_WV = 24576
L_RING = 32768
LDS_B = 163840
LDS_A = 32768 + 2048
A_CNT = 32768
A_OVF = 32768 + 1024

def f32bits(x):
    return struct.unpack('<I', struct.pack('<f', x))[0]

class Asm:
    def __init__(self):
        self.lines = []
    def __call__(self, s):
        for ln in s.strip('\n').split('\n'):
            self.lines.append(ln)
    def label(self, name):
        self.lines.append(name + ':')
    def text(self):
        return '\n'.join(self.lines) + '\n'

def srd(a, d, lo, hi, nbytes):
    a(f'    s_mov_b32 s{d}, s{lo}')
    a(f'    s_mov_b32 s{d+1}, s{hi}')
    a(f'    s_mov_b32 s{d+2}, {nbytes}')
    a(f'    s_mov_b32 s{d+3}, 0x00020000')

STAMP_OFF = 0x1000000
def stamp(a, opt, k):
    if opt.get('stamps'):
        if opt.get('clk'):
            if k in (1, 10):
                return
            if k == 0:
                a(f'    s_memtime s[80:81]')
            if k == 11:
                a(f'    s_memtime s[98:99]')
        a(f'    s_memrealtime s[{78+2*k}:{79+2*k}]')
        a('    s_waitcnt lgkmcnt(0)')

def stamp_out(a, opt, kid, n, wslo, t0, t1):
    if not opt.get('stamps'):
        return
    a('    s_mov_b64 exec, -1')
    a(f'    v_mov_b32 v{t0}, 0')
    for k in range(n):
        a(f'    v_writelane_b32 v{t0}, s{78+2*k}, {k}')
    a(f'''
    s_add_u32 s76, s{wslo}, {STAMP_OFF + kid*256*16*64}
    s_addc_u32 s77, s{wslo+1}, 0
    v_lshrrev_b32 v{t1}, 6, v0
    v_lshlrev_b32 v{t1}, 4, v{t1}
    v_and_b32 v{t1+1}, 63, v0
    v_add_lshl_u32 v{t1}, v{t1}, v{t1+1}, 2
    s_lshl_b32 s74, s2, 10
    v_add_u32 v{t1}, s74, v{t1}
    s_mov_b64 exec, 0xffff
    global_store_dword v{t1}, v{t0}, s[76:77]''')

def vr(lo, n):
    return f'v[{lo}:{lo+n-1}]'

KNAME = 'standalone__kernel_systems_refs_featgraph__graph_kernel'
def gen_part(a, opt):
    nm = KNAME if opt.get('fuse') else 'part_kernel'
    a('.p2align 8')
    a(f'.type {nm},@function')
    a.label(nm)
    a(f'''
    s_cmp_ge_u32 s2, {P}
    s_cbranch_scc1 A_end''')
    stamp(a, opt, 0)
    a(f'''
    s_load_dwordx4 s[4:7], s[0:1], 8
    s_load_dwordx2 s[8:9], s[0:1], 56       ; ws
    s_load_dwordx2 s[10:11], s[0:1], 0      ; x
    v_lshlrev_b32 v1, 2, v0                 ; t*4
    v_lshlrev_b32 v2, 4, v0                 ; t*16
    v_mov_b32 v4, 0
    v_mov_b32 v5, 0
    v_mov_b32 v6, 0
    v_mov_b32 v7, 0
    v_mov_b32 v3, 1
    s_mul_i32 s24, s2, {CH*4}
    s_add_u32 s25, s24, 4096
    s_add_u32 s26, s24, 8192
    s_add_u32 s27, s24, 12288
    s_lshr_b32 s28, s2, 3
    s_and_b32 s29, s2, 7
    s_lshl_b32 s29, s29, 5
    s_or_b32 s28, s28, s29
    s_mov_b32 s34, 0x80000000
    v_cmp_gt_u32 s[30:31], {CH-3072}, v0
    s_waitcnt lgkmcnt(0)''')
    stamp(a, opt, 1)
    srd(a, 12, 4, 5, E*4)
    srd(a, 16, 6, 7, E*4)
    srd(a, 20, 8, 9, WS_USED)
    nt = ' nt' if opt.get('a_nt_ld') else ''
    a(f'''
    s_mov_b64 exec, s[30:31]
    s_cbranch_execz A_no3a
    buffer_load_dword v11, v1, s[16:19], s27 offen{nt}
    buffer_load_dword v15, v1, s[12:15], s27 offen{nt}
A_no3a:
    s_mov_b64 exec, -1
    buffer_load_dword v8, v1, s[16:19], s24 offen{nt}
    buffer_load_dword v9, v1, s[16:19], s25 offen{nt}
    buffer_load_dword v10, v1, s[16:19], s26 offen{nt}
    buffer_load_dword v12, v1, s[12:15], s24 offen{nt}
    buffer_load_dword v13, v1, s[12:15], s25 offen{nt}
    buffer_load_dword v14, v1, s[12:15], s26 offen{nt}''')
    npf = 0
    if opt.get('a_tlb'):
        a(f'''
    s_load_dwordx2 s[44:45], s[0:1], 40
    s_load_dwordx4 s[48:51], s[0:1], 24
    s_getpc_b64 s[52:53]
A_pc:
    s_add_u32 s52, s52, agg_kernel-A_pc
    s_addc_u32 s53, s53, 0
    v_lshrrev_b32 v42, 6, v0
    v_and_b32 v43, 63, v0
    v_readfirstlane_b32 s46, v42
    v_min_u32 v44, 48, v43
    v_lshlrev_b32 v44, 16, v44
    v_lshlrev_b32 v45, 7, v43
    s_waitcnt lgkmcnt(0)
    s_cmp_eq_u32 s46, 1
    s_cbranch_scc0 A_t1
    global_load_dword v41, v44, s[10:11]
A_t1:
    s_cmp_eq_u32 s46, 2
    s_cbranch_scc0 A_t2
    global_load_dword v41, v44, s[44:45]
A_t2:
    s_cmp_eq_u32 s46, 3
    s_cbranch_scc0 A_t3
    global_load_dword v41, v45, s[48:49]
    global_load_dword v41, v45, s[50:51]
A_t3:''')
        if opt['a_tlb'] >= 2:
            a('''
    s_cmp_eq_u32 s46, 4
    s_cbranch_scc0 A_t4
    v_min_u32 v45, B_go-agg_kernel, v45
    global_load_dword v41, v45, s[52:53]
A_t4:''')
        npf = 1
    if opt.get('a_pf'):
        srd(a, 36, 10, 11, X_BYTES)
        mode = opt['a_pf']
        if mode == 8:
            a(f'''
    s_lshr_b32 s35, s2, 3
    s_mul_i32 s35, s35, {782*128}
    v_lshlrev_b32 v40, 7, v0
    v_cmp_gt_u32 vcc, 782, v0
    s_and_saveexec_b64 s[32:33], vcc
    s_cbranch_execz A_nopf
    buffer_load_dword v41, v40, s[36:39], s35 offen
A_nopf:
    s_mov_b64 exec, -1''')
        else:
            a(f'''
    s_mul_i32 s35, s2, {98*128}
    v_lshlrev_b32 v40, 7, v0
    v_cmp_gt_u32 vcc, 98, v0
    s_and_saveexec_b64 s[32:33], vcc
    s_cbranch_execz A_nopf
    buffer_load_dword v41, v40, s[36:39], s35 offen
A_nopf:
    s_mov_b64 exec, -1''')
        npf = 1
    a(f'''
    ds_write_b128 v2, v[4:7]
    ds_write_b128 v2, v[4:7] offset:16384
    v_cmp_gt_u32 vcc, 128, v0
    s_and_saveexec_b64 s[32:33], vcc
    ds_write_b128 v2, v[4:7] offset:{A_CNT}
    s_mov_b64 exec, -1
    s_mul_i32 s40, s28, {OVF_STRIDE}
    s_add_u32 s40, s40, {OVF_OFF}
    s_lshl_b32 s41, s28, 7                  ; p'*128
    s_add_u32 s42, s41, {128*BSTRIDE}
    s_lshl_b32 s43, s28, 2
    s_add_u32 s43, s43, {OVFCNT_OFF}
    v_lshrrev_b32 v34, 3, v0
    v_mul_u32_u24 v34, {BSTRIDE}, v34
    v_and_b32 v35, 7, v0
    v_lshl_add_u32 v34, v35, 4, v34
    s_waitcnt lgkmcnt(0)
    s_barrier''')
    if npf:
        a('''
    s_waitcnt vmcnt(0)''') if not opt.get('a_pf_nowait') else None
    else:
        a('    s_waitcnt vmcnt(3)')
    def rank(k):
        a(f'''
    v_and_b32 v{16+k}, 255, v{8+k}
    v_lshlrev_b32 v28, 2, v{16+k}
    ds_add_rtn_u32 v{20+k}, v28, v3 offset:{A_CNT}''')
    def entry(k):
        a(f'''
    v_lshrrev_b32 v{24+k}, 8, v{8+k}
    v_lshl_or_b32 v29, v{12+k}, 7, s34
    v_or_b32 v{24+k}, v{24+k}, v29''')
    def addr(k):
        a(f'''
    v_add_u32 v30, v{20+k}, v{16+k}
    v_and_b32 v30, 7, v30
    v_lshlrev_b32 v30, 4, v30
    v_lshl_or_b32 v30, v{16+k}, 7, v30
    v_lshrrev_b32 v31, 3, v{20+k}
    v_lshl_add_u32 v30, v31, 2, v30''')
    def put_checked(k, tag):
        addr(k)
        a(f'''
    v_cmp_gt_u32 vcc, 32, v{20+k}
    s_and_saveexec_b64 s[32:33], vcc
    ds_write_b32 v30, v{24+k}
    s_andn2_b64 exec, s[32:33], exec
    s_cbranch_execz A_noovf{tag}
    ds_add_rtn_u32 v32, v4, v3 offset:{A_OVF}
    v_lshl_or_b32 v33, v{16+k}, 22, v{24+k}
    s_waitcnt lgkmcnt(0)
    v_lshlrev_b32 v32, 2, v32
    buffer_store_dword v33, v32, s[20:23], s40 offen
A_noovf{tag}:
    s_mov_b64 exec, s[32:33]''')
    stamp(a, opt, 2)
    for k in range(3):
        rank(k)
    a('    s_waitcnt vmcnt(0)')
    for k in range(3):
        entry(k)
    a('''
    s_waitcnt lgkmcnt(0)
    v_max3_u32 v28, v20, v21, v22
    v_cmp_lt_u32 vcc, 31, v28
    s_cbranch_vccnz A_slow''')
    for k in range(3):
        addr(k)
        a(f'    ds_write_b32 v30, v{24+k}')
    a.label('A_join')
    a('''
    s_mov_b64 exec, s[30:31]
    s_cbranch_execz A_no3b''')
    rank(3)
    entry(3)
    a('    s_waitcnt lgkmcnt(0)')
    put_checked(3, '3')
    st = opt.get('a_st', '')
    a(f'''
A_no3b:
    s_mov_b64 exec, -1
    s_waitcnt lgkmcnt(0)''')
    stamp(a, opt, 3)
    a('''
    s_barrier''')
    stamp(a, opt, 4)
    a(f'''
    ds_read_b128 v[8:11], v2
    ds_read_b128 v[12:15], v2 offset:16384
    ds_read_b32 v16, v4 offset:{A_OVF}
    s_waitcnt lgkmcnt(2)
    buffer_store_dwordx4 v[8:11], v34, s[20:23], s41 offen{st}
    s_waitcnt lgkmcnt(1)
    buffer_store_dwordx4 v[12:15], v34, s[20:23], s42 offen{st}''')
    if opt.get('stamps'):
        stamp(a, opt, 5)
        a('    s_waitcnt vmcnt(0)')
        stamp(a, opt, 6)
        stamp_out(a, opt, 0, 7, 8, 40, 41)
        a('    s_mov_b64 exec, -1')
    a(f'''
    v_cmp_eq_u32 vcc, 0, v0
    s_and_saveexec_b64 s[32:33], vcc
    s_cbranch_execz A_fin
    s_waitcnt lgkmcnt(0)
    buffer_store_dword v16, v4, s[20:23], s43 offen
A_fin:''')
    if opt.get('fuse'):
        a('''
    s_mov_b64 exec, -1
    s_load_dwordx2 s[44:45], s[0:1], 48
    s_waitcnt vmcnt(0) lgkmcnt(0)
    s_barrier
    v_cmp_eq_u32 vcc, 0, v0
    s_and_saveexec_b64 s[32:33], vcc
    s_cbranch_execz F_wait
    buffer_wbl2 sc1
    s_waitcnt vmcnt(0)
    global_atomic_add v4, v3, s[44:45] sc1
    s_mov_b32 s46, 0
F_spin:
    global_load_dword v16, v4, s[44:45] sc1
    s_add_u32 s46, s46, 1
    s_waitcnt vmcnt(0)
    v_readfirstlane_b32 s47, v16
    s_cmp_gt_u32 s46, 1000000
    s_cbranch_scc1 F_go
    s_cmp_lt_u32 s47, 256
    s_cbranch_scc1 F_spin
F_go:
    buffer_inv sc1
    s_waitcnt vmcnt(0)
F_wait:
    s_mov_b64 exec, -1
    s_barrier
    s_branch agg_kernel''')
    a('''
A_end:
    s_endpgm
A_slow:''')
    for k in range(3):
        put_checked(k, f's{k}')
    a('    s_branch A_join')

QLO, QHI, ACC, XA, XT, S, PP, MA, MB, EE = 8, 16, 24, 40, 56, 72, 76, 80, 84, 88
M0R, M1R = 92, 93
RA0, RA1, RT, EA, MAD, CHK = 94, 95, 96, 100, 101, 102
T = 104
XN = 112
OUTOFF = 120
LANE = 1
EAOFF, MAOFF = 2, 3
ONE = 4
SEG = 5
EN, RK, G4, WD = 40, 48, 56, 64

def gen_agg(a, opt):
    a('.p2align 8')
    a('.type agg_kernel,@function')
    a.label('agg_kernel')
    a(f'''
    s_cmp_ge_u32 s2, {B}
    s_cbranch_scc1 B_end''')
    stamp(a, opt, 0)
    a(f'''
    s_load_dwordx2 s[4:5], s[0:1], 0        ; x
    s_load_dwordx4 s[8:11], s[0:1], 24      ; w_q, w_v
    s_load_dwordx2 s[6:7], s[0:1], 40       ; out
    s_load_dwordx2 s[38:39], s[0:1], 56     ; ws
    v_lshrrev_b32 v{T}, 6, v0
    v_and_b32 v{LANE}, 63, v0
    v_readfirstlane_b32 s28, v{T}
    v_lshlrev_b32 v{SEG}, 4, v0
    v_mov_b32 v{ONE}, 1
    s_mul_i32 s29, s2, {BSTRIDE}
    s_add_u32 s68, s29, 16384
    v_and_b32 v{T}, 7, v0
    v_lshlrev_b32 v{T}, 19, v{T}
    s_lshl_b32 s69, s28, 15
    s_lshl_b32 s70, s2, 7
    s_add_u32 s69, s69, s70
    v_add_u32 v{T}, s69, v{T}
    v_lshrrev_b32 v{T+1}, 4, v{LANE}        ; g
    v_lshl_add_u32 v{T+2}, v{T+1}, 4, v{T}
    v_lshl_add_u32 v{OUTOFF}, v{T+1}, 5, v{T}
    v_and_b32 v{T+3}, 0x1ff0, v{SEG}
    s_cmp_lt_u32 s28, 8
    s_waitcnt lgkmcnt(0)
    s_cselect_b32 s20, s8, s10
    s_cselect_b32 s21, s9, s11
    s_mov_b32 s22, 8192
    s_mov_b32 s23, 0x00020000''')
    stamp(a, opt, 1)
    srd(a, 16, 38, 39, WS_USED)
    srd(a, 12, 4, 5, X_BYTES)
    segf = opt.get('b_seg', '')
    a(f'''
    buffer_load_dwordx4 {vr(EN,4)}, v{SEG}, s[16:19], s29 offen{segf}
    buffer_load_dwordx4 {vr(EN+4,4)}, v{SEG}, s[16:19], s68 offen{segf}
    buffer_load_dwordx4 {vr(WD,4)}, v{T+3}, s[20:23], 0 offen
    buffer_load_dwordx4 {vr(XN,4)}, v{T+2}, s[12:15], 0 offen
    buffer_load_dwordx4 {vr(XN+4,4)}, v{T+2}, s[12:15], 0 offen offset:64''')
    npf = 0
    if opt.get('b_pf'):
        a(f'''
    s_lshr_b32 s70, s2, 3
    s_mul_i32 s70, s70, {782*128}
    v_lshlrev_b32 v{T+4}, 7, v0
    v_mov_b32 v{T+5}, 0x7fffff00
    v_cmp_gt_u32 vcc, 782, v0
    s_nop 1
    v_cndmask_b32 v{T+4}, v{T+5}, v{T+4}, vcc
    buffer_load_dword v121, v{T+4}, s[12:15], s70 offen''')
        npf = 1
    srd(a, 24, 6, 7, X_BYTES)
    a(f'''
    v_mov_b32 v{T+4}, 0
    v_lshlrev_b32 v{T+5}, 2, v0
    v_cmp_gt_u32 vcc, 32, v0
    s_and_saveexec_b64 s[70:71], vcc
    ds_write_b32 v{T+5}, v{T+4}
    s_mov_b64 exec, -1
    s_mov_b32 s30, 0x003fff80
    s_lshl_b32 s31, s28, 13
    s_add_u32 s31, s31, {L_RING}
    s_mov_b32 s36, 0
    s_mov_b32 s37, 0
    s_mov_b32 s56, 0x00ff00ff
    s_mov_b32 s57, 0x00ff00ff
    s_mov_b32 s58, 0xff00ff00
    s_mov_b32 s59, 0xff00ff00
    v_and_b32 v{T+4}, 15, v{LANE}           ; i / j
    v_lshrrev_b32 v{T+5}, 3, v{LANE}        ; l>>3
    v_and_b32 v{T+6}, 6, v{T+5}
    v_and_b32 v{T+7}, 7, v{LANE}
    v_xor_b32 v{T+6}, v{T+6}, v{T+7}
    v_lshlrev_b32 v{CHK}, 4, v{T+6}
    v_lshlrev_b32 v{EAOFF}, 4, v{T+5}       ; (l>>3)*16
    v_add_u32 v{EAOFF}, {L_LIST}, v{EAOFF}
    v_and_b32 v{T+6}, 6, v{T+4}
    v_xor_b32 v{T+6}, v{T+6}, v{T+1}
    v_lshlrev_b32 v{T+6}, 4, v{T+6}
    v_lshl_add_u32 v{T+6}, v{T+4}, 7, v{T+6}
    v_add_u32 v{RA0}, s31, v{T+6}
    v_xor_b32 v{RA1}, 64, v{RA0}
    v_lshrrev_b32 v{T+6}, 2, v{LANE}        ; row
    v_and_b32 v{T+7}, 6, v{T+6}
    v_bfe_u32 v{T+5}, v{LANE}, 1, 1         ; c'>>1
    v_xor_b32 v{T+7}, v{T+7}, v{T+5}
    v_lshlrev_b32 v{T+7}, 4, v{T+7}
    v_lshl_add_u32 v{T+7}, v{T+6}, 7, v{T+7}
    v_and_b32 v{T+5}, 1, v{LANE}
    v_lshl_add_u32 v{T+7}, v{T+5}, 3, v{T+7}
    v_add_u32 v{RT}, s31, v{T+7}
    v_xor_b32 v{RT+1}, 32, v{RT}
    v_xor_b32 v{RT+2}, 64, v{RT}
    v_xor_b32 v{RT+3}, 0x60, v{RT}
    v_and_b32 v{T+5}, 7, v{LANE}
    v_bfe_u32 v{T+6}, v{LANE}, 3, 2
    v_lshl_add_u32 v{T+5}, v{T+5}, 2, v{T+6}
    v_lshlrev_b32 v{MAOFF}, 2, v{T+5}
    v_add_u32 v{MAOFF}, {L_LIST}, v{MAOFF}
    v_mov_b32 v{MA+1}, 0x00003f80
    v_mov_b32 v{MA+2}, 0
    v_mov_b32 v{MA+3}, 0
    v_mov_b32 v{MB}, 0
    v_mov_b32 v{MB+1}, 0
    v_mov_b32 v{MB+2}, 0
    v_mov_b32 v{MB+3}, 0
    v_and_b32 v{T+5}, 7, v{LANE}
    v_cvt_f32_u32 v{T+5}, v{T+5}            ; j'
    v_mov_b32 v{T+6}, 0x71800000            ; BIG = 2^100
    v_mul_f32 v{T+7}, v{T+5}, v{T+6}        ; j'*BIG
    v_mul_f32 v{T+5}, v{T+5}, v{T+7}        ; j'^2*BIG
    v_mul_f32 v{T+7}, -2.0, v{T+7}
    s_mov_b32 s70, 0xff0000ff
    s_mov_b32 s71, 0
    s_mov_b64 exec, s[70:71]
    v_cvt_pk_bf16_f32 v{MB}, v{T+6}, v{T+7}
    v_cvt_pk_bf16_f32 v{MB+1}, v{T+5}, 0
    s_mov_b64 exec, -1''')
    for r in range(4):
        a(f'    v_mov_b32 v{PP+r}, 0')
    for r in range(16):
        a(f'    v_mov_b32 v{ACC+r}, 0')
    a(f'''
    v_lshrrev_b32 v{T+4}, 3, v0
    v_bfe_u32 v{T+5}, v{T+4}, 1, 1
    v_and_b32 v{T+6}, 8, v{T+4}
    v_or_b32 v{T+5}, v{T+5}, v{T+6}
    v_bfe_u32 v{T+6}, v{T+4}, 1, 2
    s_cmp_lt_u32 s28, 8
    s_cselect_b64 s[70:71], -1, 0
    v_cndmask_b32 v{T+5}, v{T+6}, v{T+5}, s[70:71]
    v_and_b32 v{T+6}, 7, v0
    v_lshlrev_b32 v{T+6}, 1, v{T+6}
    v_xor_b32 v{T+6}, v{T+6}, v{T+5}
    v_lshlrev_b32 v{T+6}, 3, v{T+6}
    v_lshl_add_u32 v{T+6}, v{T+4}, 7, v{T+6}
    v_add_u32 v{T+6}, {L_WQ}, v{T+6}
    v_xor_b32 v{T+7}, 8, v{T+6}
    s_waitcnt lgkmcnt(0)
    s_barrier''')
    def rank(r, first):
        m = 40 + 2*r
        a(f'''
    v_cmp_gt_i32 s[{m}:{m+1}], 0, v{EN+r}
    v_and_b32 v{G4+r}, 15, v{EN+r}
    v_lshlrev_b32 v{G4+r}, 2, v{G4+r}
    s_mov_b64 exec, s[{m}:{m+1}]''')
        if r % 4 == 3:
            a(f'''
    s_cbranch_execz B_nr{r}{first}
    ds_add_rtn_u32 v{RK+r}, v{G4+r}, v{ONE} offset:{L_CNT}
    s_cmp_lg_u32 s36, 0
    s_cbranch_scc1 B_nr{r}{first}
    s_add_u32 s70, s2, 31
    s_and_b32 s70, s70, 7
    v_and_b32 v{T}, 7, v0
    v_cmp_eq_u32 vcc, s70, v{T}
    s_and_b64 exec, exec, vcc
    v_lshrrev_b32 v{T}, 3, v0
    v_lshrrev_b32 v{T+1}, 5, v{T}
    v_lshlrev_b32 v{T+1}, 2, v{T+1}
    v_lshlrev_b32 v{T}, v{T}, v{ONE}
    ds_or_b32 v{T+1}, v{T} offset:{L_FULL + (16 if r == 7 else 0)}
B_nr{r}{first}:
    s_mov_b64 exec, -1''')
        else:
            a(f'''
    ds_add_rtn_u32 v{RK+r}, v{G4+r}, v{ONE} offset:{L_CNT}
    s_mov_b64 exec, -1''')
    stamp(a, opt, 2)
    a(f'    s_waitcnt vmcnt({4+npf})')
    stamp(a, opt, 3)
    for r in range(4):
        rank(r, 'f')
    a(f'    s_waitcnt vmcnt({3+npf})')
    for r in range(4, 8):
        rank(r, 'f')
    a(f'''
    s_waitcnt vmcnt({2+npf})
    ds_write_b64 v{T+6}, {vr(WD,2)}
    ds_write_b64 v{T+7}, {vr(WD+2,2)}
    s_waitcnt vmcnt({npf})
    s_branch B_ranked
B_batch:''')
    for r in range(8):
        rank(r, 'b')
    a(f'''
B_ranked:
    s_waitcnt lgkmcnt(0)''')
    stamp(a, opt, 4)
    a('''
    s_barrier''')
    stamp(a, opt, 5)
    a(f'''
    v_and_b32 v{T}, 15, v{LANE}
    v_lshlrev_b32 v{T}, 2, v{T}
    ds_read_b32 v{T+1}, v{T} offset:{L_CNT}
    ds_read_b32 v{T+4}, v{T} offset:{L_FULL}
    s_waitcnt lgkmcnt(0)
    v_add_u32 v{T+2}, 31, v{T+1}
    v_and_b32 v{T+2}, -32, v{T+2}
    v_mov_b32 v{T+3}, v{T+2}
    s_nop 1
    v_add_u32_dpp v{T+3}, v{T+3}, v{T+3} row_shr:1 row_mask:0xf bank_mask:0xf
    s_nop 1
    v_add_u32_dpp v{T+3}, v{T+3}, v{T+3} row_shr:2 row_mask:0xf bank_mask:0xf
    s_nop 1
    v_add_u32_dpp v{T+3}, v{T+3}, v{T+3} row_shr:4 row_mask:0xf bank_mask:0xf
    s_nop 1
    v_add_u32_dpp v{T+3}, v{T+3}, v{T+3} row_shr:8 row_mask:0xf bank_mask:0xf
    v_readlane_b32 s33, v{T+1}, s28
    v_sub_u32 v{T+2}, v{T+3}, v{T+2}
    v_readlane_b32 s70, v{T+3}, 15
    s_cmp_lg_u32 s36, 0
    s_cbranch_scc1 B_nofull''')
    for k in range(8):
        a(f'    v_readlane_b32 s{60+k}, v{T+4}, {k}')
    a(f'''
B_nofull:
    v_readlane_b32 s32, v{T+2}, s28
    s_cmp_gt_u32 s70, {CAP}
    s_cbranch_scc1 B_toobig''')
    for r in range(8):
        a(f'    ds_bpermute_b32 v{G4+r}, v{G4+r}, v{T+2}')
    a(f'''
    s_add_u32 s34, s33, 31
    s_lshr_b32 s34, s34, 5                  ; ntiles
    s_lshl_b32 s70, s34, 5
    s_lshl_b32 s71, s32, 2
    v_add_u32 v{EA}, s71, v{EAOFF}
    v_add_u32 v{MAD}, s71, v{MAOFF}
    v_add_u32 v{T}, s33, v{LANE}
    v_cmp_gt_u32 vcc, s70, v{T}
    v_add_lshl_u32 v{T}, v{T}, s32, 2
    v_mov_b32 v{T+1}, {PADENT}
    s_mov_b64 exec, vcc
    ds_write_b32 v{T}, v{T+1} offset:{L_LIST}
    s_mov_b64 exec, -1''')
    a('    s_waitcnt lgkmcnt(0)')
    for r in range(8):
        m = 40 + 2*r
        a(f'''
    v_add_lshl_u32 v{G4+r}, v{G4+r}, v{RK+r}, 2
    s_mov_b64 exec, s[{m}:{m+1}]
    ds_write_b32 v{G4+r}, v{EN+r} offset:{L_LIST}
    s_mov_b64 exec, -1''')
    a(f'''
    s_waitcnt lgkmcnt(0)
    s_barrier''')
    stamp(a, opt, 6)
    a(f'''
    s_cmp_eq_u32 s34, 0
    s_cbranch_scc1 B_loopdone
    ds_read_b128 {vr(EE,4)}, v{EA}
    ds_read_b128 {vr(T,4)}, v{EA} offset:128
    ds_read_b32 v{M0R}, v{MAD}
    s_waitcnt lgkmcnt(0)''')
    gf = opt.get('b_gather', '')
    def dma(ereg, slot):
        for q in range(4):
            if q == 0:
                if slot == 0:
                    a('    s_mov_b32 m0, s31')
                else:
                    a('    s_add_u32 m0, s31, 4096')
            else:
                a('    s_add_u32 m0, m0, 1024')
            a(f'    v_and_or_b32 v{ereg+q}, v{ereg+q}, s30, v{CHK}')
            if opt.get('x_nodma'):
                continue
            if opt.get('x_toreg'):
                a(f'    buffer_load_dwordx4 v[124:127], v{ereg+q}, s[12:15], 0 offen{gf}')
                continue
            a(f'    buffer_load_dwordx4 v{ereg+q}, s[12:15], 0 offen{gf} lds')
    dma(EE, 0)
    a('''
    s_cmp_lt_u32 s34, 2
    s_cbranch_scc1 B_one''')
    dma(T, 1)
    a(f'''
B_one:
    ds_read_b128 {vr(EE,4)}, v{EA} offset:256
    s_cmp_lg_u32 s37, 0
    s_cbranch_scc1 B_qdone
    s_mov_b32 s37, 1
    v_lshrrev_b32 v{T}, 4, v{LANE}
    v_bfe_u32 v{T+1}, v{LANE}, 2, 2
    v_lshl_add_u32 v{T+2}, v{T}, 3, v{T+1}  ; row
    v_bfe_u32 v{T+3}, v{T+2}, 1, 1
    v_and_b32 v{T+4}, 8, v{T+2}
    v_or_b32 v{T+3}, v{T+3}, v{T+4}         ; f
    v_and_b32 v{T+4}, 3, v{LANE}
    v_lshlrev_b32 v{T+4}, 1, v{T+4}
    v_xor_b32 v{T+3}, v{T+3}, v{T+4}
    v_lshlrev_b32 v{T+3}, 3, v{T+3}
    v_lshl_add_u32 v{T}, v{T+2}, 7, v{T+3}  ; blk 0
    v_xor_b32 v{T+1}, 8, v{T}               ; blk 1
    v_xor_b32 v{T+2}, 64, v{T}              ; blk 2
    v_xor_b32 v{T+3}, 0x48, v{T}            ; blk 3''')
    for blk in range(4):
        for ks in range(2):
            for h in range(2):
                reg = XA + blk*8 + ks*4 + h*2
                off = L_WQ + (32*ks + 4*h) * 128
                a(f'    ds_read_b64_tr_b16 {vr(reg,2)}, v{T+blk} offset:{off}')
        if blk == 1:
            a('    s_waitcnt lgkmcnt(0)')
    a('    s_waitcnt lgkmcnt(0)')
    for blk in range(4):
        a(f'    v_mfma_f32_16x16x32_bf16 {vr(QLO+4*blk,4)}, {vr(XA+blk*8,4)}, {vr(XN,4)}, 0')
    for blk in range(4):
        a(f'    v_mfma_f32_16x16x32_bf16 {vr(QLO+4*blk,4)}, {vr(XA+blk*8+4,4)}, {vr(XN+4,4)}, {vr(QLO+4*blk,4)}')
    a(f'    s_mov_b32 s70, 0x{f32bits(-1.4426950408889634/8):08x}')
    a('    s_nop 7')
    for r in range(16):
        a(f'    v_mul_f32 v{QLO+r}, s70, v{QLO+r}')
    for r in range(8):
        a(f'    v_cvt_pk_bf16_f32 v{T+r}, v{QLO+2*r}, v{QLO+2*r+1}')
    for r in range(8):
        a(f'    v_cndmask_b32 v{QLO+r}, 0, v{T+r}, s[56:57]')
        a(f'    v_cndmask_b32 v{QHI+r}, 0, v{T+r}, s[58:59]')
    a('''
B_qdone:
    s_mov_b32 s35, 1                        ; s35 = t+1''')
    stamp(a, opt, 7)
    if opt.get('stamps'):
        a('    s_waitcnt vmcnt(4)')
        stamp(a, opt, 8)
    a('B_loop:')
    def body(slot):
        so = slot * 4096
        mcur, mnext = (M0R, M1R) if slot == 0 else (M1R, M0R)
        eo = slot * 128
        a(f'''
    s_cmp_lt_u32 s35, s34
    s_cbranch_scc1 B_w4_{slot}
    s_waitcnt vmcnt(0)
B_w4_{slot}:
    s_waitcnt vmcnt(4)
    ds_read_b128 {vr(XA,4)}, v{RA0} offset:{so}
    ds_read_b128 {vr(XA+4,4)}, v{RA1} offset:{so}
    ds_read_b128 {vr(XA+8,4)}, v{RA0} offset:{so+2048}
    ds_read_b128 {vr(XA+12,4)}, v{RA1} offset:{so+2048}''')
        for fb in range(4):
            a(f'    ds_read_b64_tr_b16 {vr(XT+4*fb,2)}, v{RT+fb} offset:{so}')
            a(f'    ds_read_b64_tr_b16 {vr(XT+4*fb+2,2)}, v{RT+fb} offset:{so+2048}')
        a(f'''
    v_bfe_u32 v{T}, v{mcur}, 4, 3
    v_cvt_f32_u32 v{T}, v{T}
    v_mul_f32 v{T+1}, v{T}, v{T}
    v_cvt_pk_bf16_f32 v{MA}, v{T+1}, v{T}
    ds_read_b32 v{mnext}, v{MAD} offset:{eo+128}
    s_add_u32 s35, s35, 1                   ; t+2
    v_mfma_f32_16x16x32_bf16 {vr(S,4)}, {vr(MA,4)}, {vr(MB,4)}, 0
    s_waitcnt lgkmcnt(12)
    v_mfma_f32_16x16x32_bf16 {vr(S,4)}, {vr(XA,4)}, {vr(QLO,4)}, {vr(S,4)}
    s_waitcnt lgkmcnt(11)
    v_mfma_f32_16x16x32_bf16 {vr(S,4)}, {vr(XA+4,4)}, {vr(QLO+4,4)}, {vr(S,4)}
    s_waitcnt lgkmcnt(10)
    v_mfma_f32_16x16x32_bf16 {vr(S,4)}, {vr(XA+8,4)}, {vr(QHI,4)}, {vr(S,4)}
    s_waitcnt lgkmcnt(9)
    v_mfma_f32_16x16x32_bf16 {vr(S,4)}, {vr(XA+12,4)}, {vr(QHI+4,4)}, {vr(S,4)}
    s_waitcnt lgkmcnt(0)
    s_cmp_lt_u32 s35, s34
    s_cbranch_scc0 B_skip_{slot}''')
        dma(EE, slot)
        a(f'''
    ds_read_b128 {vr(EE,4)}, v{EA} offset:{eo+384}
B_cont_{slot}:''')
        if slot == 1:
            a(f'    v_add_u32 v{EA}, 256, v{EA}')
            a(f'    v_add_u32 v{MAD}, 256, v{MAD}')
        for r in range(4):
            a(f'    v_exp_f32 v{S+r}, v{S+r}')
        for r in range(4):
            a(f'    v_add_f32 v{S+r}, 1.0, v{S+r}')
        for r in range(4):
            a(f'    v_rcp_f32 v{S+r}, v{S+r}')
        a(f'''
    s_mov_b64 exec, s[56:57]
    v_cvt_pk_bf16_f32 v{PP}, v{S}, v{S+1}
    v_cvt_pk_bf16_f32 v{PP+1}, v{S+2}, v{S+3}
    s_mov_b64 exec, s[58:59]
    v_cvt_pk_bf16_f32 v{PP+2}, v{S}, v{S+1}
    v_cvt_pk_bf16_f32 v{PP+3}, v{S+2}, v{S+3}
    s_mov_b64 exec, -1
    s_cmp_gt_u32 s35, s34
    s_nop 0''')
        for fb in range(4):
            a(f'    v_mfma_f32_16x16x32_bf16 {vr(ACC+4*fb,4)}, {vr(XT+4*fb,4)}, {vr(PP,4)}, {vr(ACC+4*fb,4)}')
        if slot == 0:
            a('    s_cbranch_scc1 B_loopdone')
        else:
            a('    s_cbranch_scc0 B_loop')
    n0 = len(a.lines)
    body(0)
    body(1)
    drop = []
    if opt.get('x_nords'): drop += ['ds_read_b128 v[4', 'ds_read_b128 v[5', 'ds_read_b64_tr']
    if opt.get('x_notr'): drop += ['ds_read_b64_tr']
    if opt.get('x_nob128'): drop += ['ds_read_b128 v[4', 'ds_read_b128 v[5']
    if opt.get('x_nomfma'): drop += ['v_mfma']
    if opt.get('x_novalu'): drop += ['v_exp', 'v_rcp', 'v_add_f32', 'v_cvt', 'v_mul', 'v_bfe']
    a.lines[n0:] = [l for l in a.lines[n0:] if not any(l.strip().startswith(d) for d in drop)]
    a(f'''
B_loopdone:
    s_cmp_lg_u32 s36, 0
    s_cbranch_scc1 B_next
    s_mov_b32 s36, 5
    s_or_b32 s70, s60, s61
    s_or_b32 s71, s62, s63
    s_or_b32 s72, s64, s65
    s_or_b32 s73, s66, s67
    s_or_b32 s70, s70, s71
    s_or_b32 s72, s72, s73
    s_or_b32 s70, s70, s72
    s_cbranch_scc1 B_next
B_epi:''')
    stamp(a, opt, 9)
    a(f'''
    v_lshrrev_b32 v{T+4}, 2, v{LANE}
    v_bfe_u32 v{T+5}, v{T+4}, 1, 2
    v_and_b32 v{T+6}, 3, v{LANE}
    v_lshl_or_b32 v{T+5}, v{T+6}, 2, v{T+5}
    v_lshlrev_b32 v{T+5}, 3, v{T+5}
    v_lshl_add_u32 v{T}, v{T+4}, 7, v{T+5}
    v_xor_b32 v{T+1}, 8, v{T}
    v_xor_b32 v{T+2}, 16, v{T}
    v_xor_b32 v{T+3}, 24, v{T}''')
    for blk in range(4):
        for ks in range(2):
            for h in range(2):
                reg = XA + blk*8 + ks*4 + h*2
                off = L_WV + (32*ks + 16*h) * 128
                a(f'    ds_read_b64_tr_b16 {vr(reg,2)}, v{T+blk} offset:{off}')
        if blk == 1:
            a('    s_waitcnt lgkmcnt(0)')
    for r in range(16):
        a(f'    v_add_f32_dpp v{ACC+r}, v{ACC+r}, v{ACC+r} row_ror:8 row_mask:0xf bank_mask:0xf')
    for r in range(8):
        a(f'    v_cvt_pk_bf16_f32 v{XN+r}, v{ACC+2*r}, v{ACC+2*r+1}')
    a('    s_waitcnt lgkmcnt(0)')
    a('    s_nop 0')
    for blk in range(4):
        a(f'    v_mfma_f32_16x16x32_bf16 {vr(QLO+4*blk,4)}, {vr(XA+blk*8,4)}, {vr(XN,4)}, 0')
    for blk in range(4):
        a(f'    v_mfma_f32_16x16x32_bf16 {vr(QLO+4*blk,4)}, {vr(XA+blk*8+4,4)}, {vr(XN+4,4)}, {vr(QLO+4*blk,4)}')
    a('    s_nop 7')
    for r in range(8):
        a(f'    v_cvt_pk_bf16_f32 v{T+r}, v{QLO+2*r}, v{QLO+2*r+1}')
    of = opt.get('b_out', '')
    a(f'''
    s_mov_b64 exec, s[56:57]
    buffer_store_dwordx4 {vr(T,4)}, v{OUTOFF}, s[24:27], 0 offen{of}
    buffer_store_dwordx4 {vr(T+4,4)}, v{OUTOFF}, s[24:27], 0 offen offset:16{of}''')
    if opt.get('stamps'):
        stamp(a, opt, 10)
        a('    s_waitcnt vmcnt(0)')
        stamp(a, opt, 11)
        stamp_out(a, opt, 1, 12, 38, 40, 41)
    a(f'''
B_end:
    s_endpgm
B_skip_0:
    s_nop 7
    s_branch B_cont_0
B_skip_1:
    s_nop 7
    s_branch B_cont_1
B_toobig:
    s_mov_b32 s36, 1
B_next:
    s_waitcnt vmcnt(0) lgkmcnt(0)
    s_barrier
    v_mov_b32 v{T+4}, 0
    v_lshlrev_b32 v{T+5}, 2, v0
    v_cmp_gt_u32 vcc, 16, v0
    s_and_saveexec_b64 s[70:71], vcc
    ds_write_b32 v{T+5}, v{T+4} offset:{L_CNT}
    s_mov_b64 exec, -1''')
    for r in range(8):
        a(f'    v_mov_b32 v{EN+r}, 0')
    a(f'''
    s_cmp_gt_u32 s36, 4
    s_cbranch_scc1 B_ovf
    s_sub_u32 s70, s36, 1
    s_lshl_b32 s70, s70, 13
    s_add_u32 s70, s70, s29
    s_add_u32 s36, s36, 1
    s_cmp_ge_u32 s28, 8
    s_cbranch_scc1 B_go
    buffer_load_dwordx4 {vr(EN,4)}, v{SEG}, s[16:19], s70 offen
    s_branch B_go
B_ovf:
    s_cmp_eq_u32 s36, 6
    s_cbranch_scc1 B_ovf2
    s_mov_b32 s74, -1''')
    for k in range(7, -1, -1):
        a(f'''
    s_ff1_i32_b32 s70, s{60+k}
    s_add_u32 s71, s70, {32*k}
    s_cmp_lg_u32 s{60+k}, 0
    s_cselect_b32 s74, s71, s74''')
    a(f'''
    s_cmp_eq_u32 s74, -1
    s_cbranch_scc1 B_epi
    s_lshr_b32 s70, s74, 5
    s_lshl_b32 s71, 1, s74''')
    for k in range(8):
        a(f'''
    s_andn2_b32 s72, s{60+k}, s71
    s_cmp_eq_u32 s70, {k}
    s_cselect_b32 s{60+k}, s72, s{60+k}''')
    a(f'''
    s_mov_b32 s36, 6
    s_mov_b32 s75, 0
    s_branch B_ovfld
B_ovf2:
    s_mov_b32 s36, 5
    s_mov_b32 s75, 2048
B_ovfld:
    s_cmp_ge_u32 s28, 8
    s_cbranch_scc1 B_go
    s_lshl_b32 s70, s74, 2
    s_add_u32 s70, s70, {OVFCNT_OFF}
    s_mul_i32 s71, s74, {OVF_STRIDE}
    s_add_u32 s71, s71, {OVF_OFF}
    s_lshl_b32 s72, s75, 2
    s_add_u32 s71, s71, s72
    buffer_load_dword v{T}, v{T+4}, s[16:19], s70 offen
    buffer_load_dwordx4 {vr(EN,4)}, v{SEG}, s[16:19], s71 offen
    v_lshl_add_u32 v{T+1}, v0, 2, s75
    s_waitcnt vmcnt(0)''')
    for r in range(4):
        a(f'''
    v_add_u32 v{T+2}, {r}, v{T+1}
    v_cmp_lt_u32 vcc, v{T+2}, v{T}
    v_bfe_u32 v{T+3}, v{EN+r}, 22, 8
    v_cmp_eq_u32 s[70:71], s2, v{T+3}
    s_and_b64 vcc, vcc, s[70:71]
    v_cndmask_b32 v{EN+r}, 0, v{EN+r}, vcc''')
    a('''
B_go:
    s_waitcnt vmcnt(0) lgkmcnt(0)
    s_barrier
    s_branch B_batch''')

def gen_red(a, opt, pos):
    a('.globl red_kernel\n.p2align 8\n.type red_kernel,@function\nred_kernel:')
    a(f'''
    s_cmp_lg_u32 s2, 0
    s_cbranch_scc1 R_end
    s_load_dwordx4 s[4:7], s[0:1], 48
    v_lshlrev_b32 v1, 2, v0
    s_waitcnt lgkmcnt(0)
    s_add_u32 s8, s6, {STAMP_OFF}
    s_addc_u32 s9, s7, 0
    s_sub_u32 s4, s4, {512*pos}
    s_subb_u32 s5, s5, 0
    v_add_u32 v20, 16, v0
    v_and_b32 v20, 63, v20
    v_lshlrev_b32 v20, 2, v20
    v_add_u32 v21, 32, v0
    v_and_b32 v21, 63, v21
    v_lshlrev_b32 v21, 2, v21''')
    for kid in range(2):
        mn, mx = 2 + 2*kid, 3 + 2*kid
        a(f'''
    v_mov_b32 v{mn}, -1
    v_mov_b32 v{mx}, 0
    s_mov_b32 s10, 0
R_l{kid}:''')
        for u in range(8):
            a(f'    global_load_dword v{8+u}, v1, s[8:9] offset:{256*u}')
        a('    s_waitcnt vmcnt(0)')
        for u in range(8):
            a(f'    v_min_u32 v{mn}, v{mn}, v{8+u}')
            a(f'    v_max_u32 v{mx}, v{mx}, v{8+u}')
        a(f'''
    v_add_u32 v1, 2048, v1
    s_add_u32 s10, s10, 1
    s_cmp_lt_u32 s10, 128
    s_cbranch_scc1 R_l{kid}''')
        for idx in (20, 21):
            a(f'''
    ds_bpermute_b32 v8, v{idx}, v{mn}
    ds_bpermute_b32 v9, v{idx}, v{mx}
    s_waitcnt lgkmcnt(0)
    v_min_u32 v{mn}, v{mn}, v8
    v_max_u32 v{mx}, v{mx}, v9''')
    sel = [(3,0),(3,1),(3,2),(3,4),(3,6),(4,0),(5,0),(5,1),(5,2),(5,3),(5,5),(5,6),(4,7),(4,9),(5,9),(5,11)]
    a('    s_nop 1')
    a('    v_readlane_b32 s12, v2, 0')
    a('    v_mov_b32 v10, 0')
    for i, (r, l) in enumerate(sel):
        a(f'    v_readlane_b32 s13, v{r}, {l}')
        a(f'    s_sub_u32 s13, s13, s12')
        a(f'    v_writelane_b32 v10, s13, {i}')
    a('''
    v_lshlrev_b32 v1, 2, v0
    s_mov_b64 exec, 0xffff
    global_store_dword v1, v10, s[4:5]
R_end:
    s_endpgm''')

def kd(a, name, vg, sg):
    a(f'''
.amdhsa_kernel {name}
  .amdhsa_next_free_vgpr {vg}
  .amdhsa_next_free_sgpr {sg}
  .amdhsa_accum_offset {vg}
  .amdhsa_group_segment_fixed_size 0
  .amdhsa_kernarg_size 64
  .amdhsa_user_sgpr_count 2
  .amdhsa_user_sgpr_kernarg_segment_ptr 1
  .amdhsa_system_sgpr_workgroup_id_x 1
.end_amdhsa_kernel''')

def build(opt):
    a = Asm()
    ll = {'A': f'; @launch kernel=part_kernel grid=({P},1,1) block=(1024,1,1) lds={LDS_A}',
          'B': f'; @launch kernel=agg_kernel grid=({B},1,1) block=(1024,1,1) lds={LDS_B}',
          'R': '; @launch kernel=red_kernel grid=(1,1,1) block=(64,1,1) lds=0',
          'N': '; @launch kernel=nop_kernel grid=(256,1,1) block=(64,1,1) lds=0'}
    seq = opt.get('seq', ' AB').strip()
    launches = '\n'.join(ll[c] for c in seq)
    if opt.get('fuse') == 1:
        launches = f'; @launch grid=({P},1,1) block=(1024,1,1) lds={LDS_B}'
    if opt.get('fuse') == 2:
        launches = f'; @launch kernel={KNAME} grid=({P},1,1) block=(1024,1,1) lds={LDS_B}'
    a(f'''; FeatGraph: SDDMM (sigmoid gate) + SpMM, two launches.
{launches}
.amdgcn_target "amdgcn-amd-amdhsa--gfx950"
.text
''')
    a(f'.globl {KNAME}' if opt.get('fuse') else '.globl part_kernel\n.globl agg_kernel')
    gen_part(a, opt)
    gen_agg(a, opt)
    if 'R' in seq:
        gen_red(a, opt, 0)
    if 'N' in seq:
        a('.globl nop_kernel\n.p2align 8\n.type nop_kernel,@function\nnop_kernel:\n    s_endpgm')
    a('.section .rodata,"a"')
    if 'N' in seq:
        a('.p2align 6')
        kd(a, 'nop_kernel', 8, 16)
    if 'R' in seq:
        a('.p2align 6')
        kd(a, 'red_kernel', 32, 48)
    if opt.get('fuse'):
        a('.p2align 6')
        kd(a, KNAME, 128, 102 if opt.get('stamps') else 80)
        return a.text()
    a('.p2align 6')
    kd(a, 'part_kernel', 48, 102 if opt.get('stamps') else 64)
    a('.p2align 6')
    kd(a, 'agg_kernel', 128, 102 if opt.get('stamps') else 80)
    return a.text()

if __name__ == '__main__':
    out = sys.argv[1]
    opt = {}
    for kv in sys.argv[2:]:
        k, v = kv.split('=')
        try:
            v = int(v)
        except ValueError:
            v = ' ' + v.replace('+', ' ')
        opt[k] = v
    open(out, 'w').write(build(opt))
```

```python
import sys, struct

N, E, D = 25000, 800000, 64
P = 256
B = 256
CH = E // P
BSTRIDE = 257 * 128
OVFCNT_OFF = 0x810000
OVF_OFF = 0x811000
OVF_STRIDE = 12800
WS_USED = OVF_OFF + 256 * OVF_STRIDE
X_BYTES = N * 128
PADENT = 0x003FFFFF

L_CNT = 0
L_FULL = 64
L_LIST = 1024
CAP = 3840
L_WQ = 16384
L_WV = 24576
L_RING = 32768
LDS_B = 163840
LDS_A = 32768 + 2048
A_CNT = 32768
A_OVF = 32768 + 1024

def f32bits(x):
    return struct.unpack('<I', struct.pack('<f', x))[0]

class Asm:
    def __init__(self):
        self.lines = []
    def __call__(self, s):
        for ln in s.strip('\n').split('\n'):
            self.lines.append(ln)
    def label(self, name):
        self.lines.append(name + ':')
    def text(self):
        return '\n'.join(self.lines) + '\n'

def srd(a, d, lo, hi, nbytes):
    a(f'    s_mov_b32 s{d}, s{lo}')
    a(f'    s_mov_b32 s{d+1}, s{hi}')
    a(f'    s_mov_b32 s{d+2}, {nbytes}')
    a(f'    s_mov_b32 s{d+3}, 0x00020000')

STAMP_OFF = 0x1000000
def stamp(a, opt, k):
    if opt.get('stamps'):
        if opt.get('clk'):
            if k in (1, 10):
                return
            if k == 0:
                a(f'    s_memtime s[80:81]')
            if k == 11:
                a(f'    s_memtime s[98:99]')
        a(f'    s_memrealtime s[{78+2*k}:{79+2*k}]')
        a('    s_waitcnt lgkmcnt(0)')

def stamp_out(a, opt, kid, n, wslo, t0, t1):
    if not opt.get('stamps'):
        return
    a('    s_mov_b64 exec, -1')
    a(f'    v_mov_b32 v{t0}, 0')
    for k in range(n):
        a(f'    v_writelane_b32 v{t0}, s{78+2*k}, {k}')
    a(f'''
    s_add_u32 s76, s{wslo}, {STAMP_OFF + kid*256*16*64}
    s_addc_u32 s77, s{wslo+1}, 0
    v_lshrrev_b32 v{t1}, 6, v0
    v_lshlrev_b32 v{t1}, 4, v{t1}
    v_and_b32 v{t1+1}, 63, v0
    v_add_lshl_u32 v{t1}, v{t1}, v{t1+1}, 2
    s_lshl_b32 s74, s2, 10
    v_add_u32 v{t1}, s74, v{t1}
    s_mov_b64 exec, 0xffff
    global_store_dword v{t1}, v{t0}, s[76:77]''')

def vr(lo, n):
    return f'v[{lo}:{lo+n-1}]'

KNAME = 'standalone__kernel_systems_refs_featgraph__graph_kernel'
def gen_part(a, opt):
    nm = KNAME if opt.get('fuse') else 'part_kernel'
    a('.p2align 8')
    a(f'.type {nm},@function')
    a.label(nm)
    a(f'''
    s_cmp_ge_u32 s2, {P}
    s_cbranch_scc1 A_end''')
    stamp(a, opt, 0)
    a(f'''
    s_load_dwordx4 s[4:7], s[0:1], 8
    s_load_dwordx2 s[8:9], s[0:1], 56       ; ws
    s_load_dwordx2 s[10:11], s[0:1], 0      ; x
    v_lshlrev_b32 v1, 2, v0                 ; t*4
    v_lshlrev_b32 v2, 4, v0                 ; t*16
    v_mov_b32 v4, 0
    v_mov_b32 v5, 0
    v_mov_b32 v6, 0
    v_mov_b32 v7, 0
    v_mov_b32 v3, 1
    s_mul_i32 s24, s2, {CH*4}
    s_add_u32 s25, s24, 4096
    s_add_u32 s26, s24, 8192
    s_add_u32 s27, s24, 12288
    s_lshr_b32 s28, s2, 3
    s_and_b32 s29, s2, 7
    s_lshl_b32 s29, s29, 5
    s_or_b32 s28, s28, s29
    s_mov_b32 s34, 0x80000000
    v_cmp_gt_u32 s[30:31], {CH-3072}, v0
    s_waitcnt lgkmcnt(0)''')
    stamp(a, opt, 1)
    srd(a, 12, 4, 5, E*4)
    srd(a, 16, 6, 7, E*4)
    srd(a, 20, 8, 9, WS_USED)
    nt = ' nt' if opt.get('a_nt_ld') else ''
    a(f'''
    s_mov_b64 exec, s[30:31]
    s_cbranch_execz A_no3a
    buffer_load_dword v11, v1, s[16:19], s27 offen{nt}
    buffer_load_dword v15, v1, s[12:15], s27 offen{nt}
A_no3a:
    s_mov_b64 exec, -1
    buffer_load_dword v8, v1, s[16:19], s24 offen{nt}
    buffer_load_dword v9, v1, s[16:19], s25 offen{nt}
    buffer_load_dword v10, v1, s[16:19], s26 offen{nt}
    buffer_load_dword v12, v1, s[12:15], s24 offen{nt}
    buffer_load_dword v13, v1, s[12:15], s25 offen{nt}
    buffer_load_dword v14, v1, s[12:15], s26 offen{nt}''')
    npf = 0
    if opt.get('a_tlb'):
        a(f'''
    s_load_dwordx2 s[44:45], s[0:1], 40
    s_load_dwordx4 s[48:51], s[0:1], 24
    s_getpc_b64 s[52:53]
A_pc:
    s_add_u32 s52, s52, agg_kernel-A_pc
    s_addc_u32 s53, s53, 0
    v_lshrrev_b32 v42, 6, v0
    v_and_b32 v43, 63, v0
    v_readfirstlane_b32 s46, v42
    v_min_u32 v44, 48, v43
    v_lshlrev_b32 v44, 16, v44
    v_lshlrev_b32 v45, 7, v43
    s_waitcnt lgkmcnt(0)
    s_cmp_eq_u32 s46, 1
    s_cbranch_scc0 A_t1
    global_load_dword v41, v44, s[10:11]
A_t1:
    s_cmp_eq_u32 s46, 2
    s_cbranch_scc0 A_t2
    global_load_dword v41, v44, s[44:45]
A_t2:
    s_cmp_eq_u32 s46, 3
    s_cbranch_scc0 A_t3
    global_load_dword v41, v45, s[48:49]
    global_load_dword v41, v45, s[50:51]
A_t3:''')
        if opt['a_tlb'] >= 2:
            a('''
    s_cmp_eq_u32 s46, 4
    s_cbranch_scc0 A_t4
    v_min_u32 v45, B_go-agg_kernel, v45
    global_load_dword v41, v45, s[52:53]
A_t4:''')
        npf = 1
    if opt.get('a_pf'):
        srd(a, 36, 10, 11, X_BYTES)
        mode = opt['a_pf']
        if mode == 8:
            a(f'''
    s_lshr_b32 s35, s2, 3
    s_mul_i32 s35, s35, {782*128}
    v_lshlrev_b32 v40, 7, v0
    v_cmp_gt_u32 vcc, 782, v0
    s_and_saveexec_b64 s[32:33], vcc
    s_cbranch_execz A_nopf
    buffer_load_dword v41, v40, s[36:39], s35 offen
A_nopf:
    s_mov_b64 exec, -1''')
        else:
            a(f'''
    s_mul_i32 s35, s2, {98*128}
    v_lshlrev_b32 v40, 7, v0
    v_cmp_gt_u32 vcc, 98, v0
    s_and_saveexec_b64 s[32:33], vcc
    s_cbranch_execz A_nopf
    buffer_load_dword v41, v40, s[36:39], s35 offen
A_nopf:
    s_mov_b64 exec, -1''')
        npf = 1
    a(f'''
    ds_write_b128 v2, v[4:7]
    ds_write_b128 v2, v[4:7] offset:16384
    v_cmp_gt_u32 vcc, 128, v0
    s_and_saveexec_b64 s[32:33], vcc
    ds_write_b128 v2, v[4:7] offset:{A_CNT}
    s_mov_b64 exec, -1
    s_mul_i32 s40, s28, {OVF_STRIDE}
    s_add_u32 s40, s40, {OVF_OFF}
    s_lshl_b32 s41, s28, 7                  ; p'*128
    s_add_u32 s42, s41, {128*BSTRIDE}
    s_lshl_b32 s43, s28, 2
    s_add_u32 s43, s43, {OVFCNT_OFF}
    v_lshrrev_b32 v34, 3, v0
    v_mul_u32_u24 v34, {BSTRIDE}, v34
    v_and_b32 v35, 7, v0
    v_lshl_add_u32 v34, v35, 4, v34
    s_waitcnt lgkmcnt(0)
    s_barrier''')
    if npf:
        a('''
    s_waitcnt vmcnt(0)''') if not opt.get('a_pf_nowait') else None
    else:
        a('    s_waitcnt vmcnt(3)')
    def rank(k):
        a(f'''
    v_and_b32 v{16+k}, 255, v{8+k}
    v_lshlrev_b32 v28, 2, v{16+k}
    ds_add_rtn_u32 v{20+k}, v28, v3 offset:{A_CNT}''')
    def entry(k):
        a(f'''
    v_lshrrev_b32 v{24+k}, 8, v{8+k}
    v_lshl_or_b32 v29, v{12+k}, 7, s34
    v_or_b32 v{24+k}, v{24+k}, v29''')
    def addr(k):
        a(f'''
    v_add_u32 v30, v{20+k}, v{16+k}
    v_and_b32 v30, 7, v30
    v_lshlrev_b32 v30, 4, v30
    v_lshl_or_b32 v30, v{16+k}, 7, v30
    v_lshrrev_b32 v31, 3, v{20+k}
    v_lshl_add_u32 v30, v31, 2, v30''')
    def put_checked(k, tag):
        addr(k)
        a(f'''
    v_cmp_gt_u32 vcc, 32, v{20+k}
    s_and_saveexec_b64 s[32:33], vcc
    ds_write_b32 v30, v{24+k}
    s_andn2_b64 exec, s[32:33], exec
    s_cbranch_execz A_noovf{tag}
    ds_add_rtn_u32 v32, v4, v3 offset:{A_OVF}
    v_lshl_or_b32 v33, v{16+k}, 22, v{24+k}
    s_waitcnt lgkmcnt(0)
    v_lshlrev_b32 v32, 2, v32
    buffer_store_dword v33, v32, s[20:23], s40 offen
A_noovf{tag}:
    s_mov_b64 exec, s[32:33]''')
    stamp(a, opt, 2)
    for k in range(3):
        rank(k)
    a('    s_waitcnt vmcnt(0)')
    for k in range(3):
        entry(k)
    a('''
    s_waitcnt lgkmcnt(0)
    v_max3_u32 v28, v20, v21, v22
    v_cmp_lt_u32 vcc, 31, v28
    s_cbranch_vccnz A_slow''')
    for k in range(3):
        addr(k)
        a(f'    ds_write_b32 v30, v{24+k}')
    a.label('A_join')
    a('''
    s_mov_b64 exec, s[30:31]
    s_cbranch_execz A_no3b''')
    rank(3)
    entry(3)
    a('    s_waitcnt lgkmcnt(0)')
    put_checked(3, '3')
    st = opt.get('a_st', '')
    a(f'''
A_no3b:
    s_mov_b64 exec, -1
    s_waitcnt lgkmcnt(0)''')
    stamp(a, opt, 3)
    a('''
    s_barrier''')
    stamp(a, opt, 4)
    a(f'''
    ds_read_b128 v[8:11], v2
    ds_read_b128 v[12:15], v2 offset:16384
    ds_read_b32 v16, v4 offset:{A_OVF}
    s_waitcnt lgkmcnt(2)
    buffer_store_dwordx4 v[8:11], v34, s[20:23], s41 offen{st}
    s_waitcnt lgkmcnt(1)
    buffer_store_dwordx4 v[12:15], v34, s[20:23], s42 offen{st}''')
    if opt.get('stamps'):
        stamp(a, opt, 5)
        a('    s_waitcnt vmcnt(0)')
        stamp(a, opt, 6)
        stamp_out(a, opt, 0, 7, 8, 40, 41)
        a('    s_mov_b64 exec, -1')
    a(f'''
    v_cmp_eq_u32 vcc, 0, v0
    s_and_saveexec_b64 s[32:33], vcc
    s_cbranch_execz A_fin
    s_waitcnt lgkmcnt(0)
    buffer_store_dword v16, v4, s[20:23], s43 offen
A_fin:''')
    if opt.get('fuse'):
        a('''
    s_mov_b64 exec, -1
    s_load_dwordx2 s[44:45], s[0:1], 48
    s_waitcnt vmcnt(0) lgkmcnt(0)
    s_barrier
    v_cmp_eq_u32 vcc, 0, v0
    s_and_saveexec_b64 s[32:33], vcc
    s_cbranch_execz F_wait
    buffer_wbl2 sc1
    s_waitcnt vmcnt(0)
    global_atomic_add v4, v3, s[44:45] sc1
    s_mov_b32 s46, 0
F_spin:
    global_load_dword v16, v4, s[44:45] sc1
    s_add_u32 s46, s46, 1
    s_waitcnt vmcnt(0)
    v_readfirstlane_b32 s47, v16
    s_cmp_gt_u32 s46, 1000000
    s_cbranch_scc1 F_go
    s_cmp_lt_u32 s47, 256
    s_cbranch_scc1 F_spin
F_go:
    buffer_inv sc1
    s_waitcnt vmcnt(0)
F_wait:
    s_mov_b64 exec, -1
    s_barrier
    s_branch agg_kernel''')
    a('''
A_end:
    s_endpgm
A_slow:''')
    for k in range(3):
        put_checked(k, f's{k}')
    a('    s_branch A_join')

QLO, QHI, ACC, XA, XT, S, PP, MA, MB, EE = 8, 16, 24, 40, 56, 72, 76, 80, 84, 88
M0R, M1R = 92, 93
RA0, RA1, RT, EA, MAD, CHK = 94, 95, 96, 100, 101, 102
T = 104
XN = 112
OUTOFF = 120
LANE = 1
EAOFF, MAOFF = 2, 3
ONE = 4
SEG = 5
EN, RK, G4, WD = 40, 48, 56, 64

def gen_agg(a, opt):
    a('.p2align 8')
    a('.type agg_kernel,@function')
    a.label('agg_kernel')
    a(f'''
    s_cmp_ge_u32 s2, {B}
    s_cbranch_scc1 B_end''')
    stamp(a, opt, 0)
    a(f'''
    s_load_dwordx2 s[4:5], s[0:1], 0        ; x
    s_load_dwordx4 s[8:11], s[0:1], 24      ; w_q, w_v
    s_load_dwordx2 s[6:7], s[0:1], 40       ; out
    s_load_dwordx2 s[38:39], s[0:1], 56     ; ws
    v_lshrrev_b32 v{T}, 6, v0
    v_and_b32 v{LANE}, 63, v0
    v_readfirstlane_b32 s28, v{T}
    v_lshlrev_b32 v{SEG}, 4, v0
    v_mov_b32 v{ONE}, 1
    s_mul_i32 s29, s2, {BSTRIDE}
    s_add_u32 s68, s29, 16384
    v_and_b32 v{T}, 7, v0
    v_lshlrev_b32 v{T}, 19, v{T}
    s_lshl_b32 s69, s28, 15
    s_lshl_b32 s70, s2, 7
    s_add_u32 s69, s69, s70
    v_add_u32 v{T}, s69, v{T}
    v_lshrrev_b32 v{T+1}, 4, v{LANE}        ; g
    v_lshl_add_u32 v{T+2}, v{T+1}, 4, v{T}
    v_lshl_add_u32 v{OUTOFF}, v{T+1}, 5, v{T}
    v_and_b32 v{T+3}, 0x1ff0, v{SEG}
    s_cmp_lt_u32 s28, 8
    s_waitcnt lgkmcnt(0)
    s_cselect_b32 s20, s8, s10
    s_cselect_b32 s21, s9, s11
    s_mov_b32 s22, 8192
    s_mov_b32 s23, 0x00020000''')
    stamp(a, opt, 1)
    srd(a, 16, 38, 39, WS_USED)
    srd(a, 12, 4, 5, X_BYTES)
    segf = opt.get('b_seg', '')
    a(f'''
    buffer_load_dwordx4 {vr(EN,4)}, v{SEG}, s[16:19], s29 offen{segf}
    buffer_load_dwordx4 {vr(EN+4,4)}, v{SEG}, s[16:19], s68 offen{segf}
    buffer_load_dwordx4 {vr(WD,4)}, v{T+3}, s[20:23], 0 offen
    buffer_load_dwordx4 {vr(XN,4)}, v{T+2}, s[12:15], 0 offen
    buffer_load_dwordx4 {vr(XN+4,4)}, v{T+2}, s[12:15], 0 offen offset:64''')
    npf = 0
    if opt.get('b_pf'):
        a(f'''
    s_lshr_b32 s70, s2, 3
    s_mul_i32 s70, s70, {782*128}
    v_lshlrev_b32 v{T+4}, 7, v0
    v_mov_b32 v{T+5}, 0x7fffff00
    v_cmp_gt_u32 vcc, 782, v0
    s_nop 1
    v_cndmask_b32 v{T+4}, v{T+5}, v{T+4}, vcc
    buffer_load_dword v121, v{T+4}, s[12:15], s70 offen''')
        npf = 1
    srd(a, 24, 6, 7, X_BYTES)
    a(f'''
    v_mov_b32 v{T+4}, 0
    v_lshlrev_b32 v{T+5}, 2, v0
    v_cmp_gt_u32 vcc, 32, v0
    s_and_saveexec_b64 s[70:71], vcc
    ds_write_b32 v{T+5}, v{T+4}
    s_mov_b64 exec, -1
    s_mov_b32 s30, 0x003fff80
    s_lshl_b32 s31, s28, 13
    s_add_u32 s31, s31, {L_RING}
    s_mov_b32 s36, 0
    s_mov_b32 s37, 0
    s_mov_b32 s56, 0x00ff00ff
    s_mov_b32 s57, 0x00ff00ff
    s_mov_b32 s58, 0xff00ff00
    s_mov_b32 s59, 0xff00ff00
    v_and_b32 v{T+4}, 15, v{LANE}           ; i / j
    v_lshrrev_b32 v{T+5}, 3, v{LANE}        ; l>>3
    v_and_b32 v{T+6}, 6, v{T+5}
    v_and_b32 v{T+7}, 7, v{LANE}
    v_xor_b32 v{T+6}, v{T+6}, v{T+7}
    v_lshlrev_b32 v{CHK}, 4, v{T+6}
    v_lshlrev_b32 v{EAOFF}, 4, v{T+5}       ; (l>>3)*16
    v_add_u32 v{EAOFF}, {L_LIST}, v{EAOFF}
    v_and_b32 v{T+6}, 6, v{T+4}
    v_xor_b32 v{T+6}, v{T+6}, v{T+1}
    v_lshlrev_b32 v{T+6}, 4, v{T+6}
    v_lshl_add_u32 v{T+6}, v{T+4}, 7, v{T+6}
    v_add_u32 v{RA0}, s31, v{T+6}
    v_xor_b32 v{RA1}, 64, v{RA0}
    v_lshrrev_b32 v{T+6}, 2, v{LANE}        ; row
    v_and_b32 v{T+7}, 6, v{T+6}
    v_bfe_u32 v{T+5}, v{LANE}, 1, 1         ; c'>>1
    v_xor_b32 v{T+7}, v{T+7}, v{T+5}
    v_lshlrev_b32 v{T+7}, 4, v{T+7}
    v_lshl_add_u32 v{T+7}, v{T+6}, 7, v{T+7}
    v_and_b32 v{T+5}, 1, v{LANE}
    v_lshl_add_u32 v{T+7}, v{T+5}, 3, v{T+7}
    v_add_u32 v{RT}, s31, v{T+7}
    v_xor_b32 v{RT+1}, 32, v{RT}
    v_xor_b32 v{RT+2}, 64, v{RT}
    v_xor_b32 v{RT+3}, 0x60, v{RT}
    v_and_b32 v{T+5}, 7, v{LANE}
    v_bfe_u32 v{T+6}, v{LANE}, 3, 2
    v_lshl_add_u32 v{T+5}, v{T+5}, 2, v{T+6}
    v_lshlrev_b32 v{MAOFF}, 2, v{T+5}
    v_add_u32 v{MAOFF}, {L_LIST}, v{MAOFF}
    v_mov_b32 v{MA+1}, 0x00003f80
    v_mov_b32 v{MA+2}, 0
    v_mov_b32 v{MA+3}, 0
    v_mov_b32 v{MB}, 0
    v_mov_b32 v{MB+1}, 0
    v_mov_b32 v{MB+2}, 0
    v_mov_b32 v{MB+3}, 0
    v_and_b32 v{T+5}, 7, v{LANE}
    v_cvt_f32_u32 v{T+5}, v{T+5}            ; j'
    v_mov_b32 v{T+6}, 0x71800000            ; BIG = 2^100
    v_mul_f32 v{T+7}, v{T+5}, v{T+6}        ; j'*BIG
    v_mul_f32 v{T+5}, v{T+5}, v{T+7}        ; j'^2*BIG
    v_mul_f32 v{T+7}, -2.0, v{T+7}
    s_mov_b32 s70, 0xff0000ff
    s_mov_b32 s71, 0
    s_mov_b64 exec, s[70:71]
    v_cvt_pk_bf16_f32 v{MB}, v{T+6}, v{T+7}
    v_cvt_pk_bf16_f32 v{MB+1}, v{T+5}, 0
    s_mov_b64 exec, -1''')
    for r in range(4):
        a(f'    v_mov_b32 v{PP+r}, 0')
    for r in range(16):
        a(f'    v_mov_b32 v{ACC+r}, 0')
    a(f'''
    v_lshrrev_b32 v{T+4}, 3, v0
    v_bfe_u32 v{T+5}, v{T+4}, 1, 1
    v_and_b32 v{T+6}, 8, v{T+4}
    v_or_b32 v{T+5}, v{T+5}, v{T+6}
    v_bfe_u32 v{T+6}, v{T+4}, 1, 2
    s_cmp_lt_u32 s28, 8
    s_cselect_b64 s[70:71], -1, 0
    v_cndmask_b32 v{T+5}, v{T+6}, v{T+5}, s[70:71]
    v_and_b32 v{T+6}, 7, v0
    v_lshlrev_b32 v{T+6}, 1, v{T+6}
    v_xor_b32 v{T+6}, v{T+6}, v{T+5}
    v_lshlrev_b32 v{T+6}, 3, v{T+6}
    v_lshl_add_u32 v{T+6}, v{T+4}, 7, v{T+6}
    v_add_u32 v{T+6}, {L_WQ}, v{T+6}
    v_xor_b32 v{T+7}, 8, v{T+6}
    s_waitcnt lgkmcnt(0)
    s_barrier''')
    def rank(r, first):
        m = 40 + 2*r
        a(f'''
    v_cmp_gt_i32 s[{m}:{m+1}], 0, v{EN+r}
    v_and_b32 v{G4+r}, 15, v{EN+r}
    v_lshlrev_b32 v{G4+r}, 2, v{G4+r}
    s_mov_b64 exec, s[{m}:{m+1}]''')
        if r % 4 == 3:
            a(f'''
    s_cbranch_execz B_nr{r}{first}
    ds_add_rtn_u32 v{RK+r}, v{G4+r}, v{ONE} offset:{L_CNT}
    s_cmp_lg_u32 s36, 0
    s_cbranch_scc1 B_nr{r}{first}
    s_add_u32 s70, s2, 31
    s_and_b32 s70, s70, 7
    v_and_b32 v{T}, 7, v0
    v_cmp_eq_u32 vcc, s70, v{T}
    s_and_b64 exec, exec, vcc
    v_lshrrev_b32 v{T}, 3, v0
    v_lshrrev_b32 v{T+1}, 5, v{T}
    v_lshlrev_b32 v{T+1}, 2, v{T+1}
    v_lshlrev_b32 v{T}, v{T}, v{ONE}
    ds_or_b32 v{T+1}, v{T} offset:{L_FULL + (16 if r == 7 else 0)}
B_nr{r}{first}:
    s_mov_b64 exec, -1''')
        else:
            a(f'''
    ds_add_rtn_u32 v{RK+r}, v{G4+r}, v{ONE} offset:{L_CNT}
    s_mov_b64 exec, -1''')
    stamp(a, opt, 2)
    a(f'    s_waitcnt vmcnt({4+npf})')
    stamp(a, opt, 3)
    for r in range(4):
        rank(r, 'f')
    a(f'    s_waitcnt vmcnt({3+npf})')
    for r in range(4, 8):
        rank(r, 'f')
    a(f'''
    s_waitcnt vmcnt({2+npf})
    ds_write_b64 v{T+6}, {vr(WD,2)}
    ds_write_b64 v{T+7}, {vr(WD+2,2)}
    s_waitcnt vmcnt({npf})
    s_branch B_ranked
B_batch:''')
    for r in range(8):
        rank(r, 'b')
    a(f'''
B_ranked:
    s_waitcnt lgkmcnt(0)''')
    stamp(a, opt, 4)
    a('''
    s_barrier''')
    stamp(a, opt, 5)
    a(f'''
    v_and_b32 v{T}, 15, v{LANE}
    v_lshlrev_b32 v{T}, 2, v{T}
    ds_read_b32 v{T+1}, v{T} offset:{L_CNT}
    ds_read_b32 v{T+4}, v{T} offset:{L_FULL}
    s_waitcnt lgkmcnt(0)
    v_add_u32 v{T+2}, 31, v{T+1}
    v_and_b32 v{T+2}, -32, v{T+2}
    v_mov_b32 v{T+3}, v{T+2}
    s_nop 1
    v_add_u32_dpp v{T+3}, v{T+3}, v{T+3} row_shr:1 row_mask:0xf bank_mask:0xf
    s_nop 1
    v_add_u32_dpp v{T+3}, v{T+3}, v{T+3} row_shr:2 row_mask:0xf bank_mask:0xf
    s_nop 1
    v_add_u32_dpp v{T+3}, v{T+3}, v{T+3} row_shr:4 row_mask:0xf bank_mask:0xf
    s_nop 1
    v_add_u32_dpp v{T+3}, v{T+3}, v{T+3} row_shr:8 row_mask:0xf bank_mask:0xf
    v_readlane_b32 s33, v{T+1}, s28
    v_sub_u32 v{T+2}, v{T+3}, v{T+2}
    v_readlane_b32 s70, v{T+3}, 15
    s_cmp_lg_u32 s36, 0
    s_cbranch_scc1 B_nofull''')
    for k in range(8):
        a(f'    v_readlane_b32 s{60+k}, v{T+4}, {k}')
    a(f'''
B_nofull:
    v_readlane_b32 s32, v{T+2}, s28
    s_cmp_gt_u32 s70, {CAP}
    s_cbranch_scc1 B_toobig''')
    for r in range(8):
        a(f'    ds_bpermute_b32 v{G4+r}, v{G4+r}, v{T+2}')
    a(f'''
    s_add_u32 s34, s33, 31
    s_lshr_b32 s34, s34, 5                  ; ntiles
    s_lshl_b32 s70, s34, 5
    s_lshl_b32 s71, s32, 2
    v_add_u32 v{EA}, s71, v{EAOFF}
    v_add_u32 v{MAD}, s71, v{MAOFF}
    v_add_u32 v{T}, s33, v{LANE}
    v_cmp_gt_u32 vcc, s70, v{T}
    v_add_lshl_u32 v{T}, v{T}, s32, 2
    v_mov_b32 v{T+1}, {PADENT}
    s_mov_b64 exec, vcc
    ds_write_b32 v{T}, v{T+1} offset:{L_LIST}
    s_mov_b64 exec, -1''')
    a('    s_waitcnt lgkmcnt(0)')
    for r in range(8):
        m = 40 + 2*r
        a(f'''
    v_add_lshl_u32 v{G4+r}, v{G4+r}, v{RK+r}, 2
    s_mov_b64 exec, s[{m}:{m+1}]
    ds_write_b32 v{G4+r}, v{EN+r} offset:{L_LIST}
    s_mov_b64 exec, -1''')
    a(f'''
    s_waitcnt lgkmcnt(0)
    s_barrier''')
    stamp(a, opt, 6)
    a(f'''
    s_cmp_eq_u32 s34, 0
    s_cbranch_scc1 B_loopdone
    ds_read_b128 {vr(EE,4)}, v{EA}
    ds_read_b128 {vr(T,4)}, v{EA} offset:128
    ds_read_b32 v{M0R}, v{MAD}
    s_waitcnt lgkmcnt(0)''')
    gf = opt.get('b_gather', '')
    def dma(ereg, slot):
        for q in range(4):
            if q == 0:
                if slot == 0:
                    a('    s_mov_b32 m0, s31')
                else:
                    a('    s_add_u32 m0, s31, 4096')
            else:
                a('    s_add_u32 m0, m0, 1024')
            a(f'    v_and_or_b32 v{ereg+q}, v{ereg+q}, s30, v{CHK}')
            if opt.get('x_nodma'):
                continue
            if opt.get('x_toreg'):
                a(f'    buffer_load_dwordx4 v[124:127], v{ereg+q}, s[12:15], 0 offen{gf}')
                continue
            a(f'    buffer_load_dwordx4 v{ereg+q}, s[12:15], 0 offen{gf} lds')
    dma(EE, 0)
    a('''
    s_cmp_lt_u32 s34, 2
    s_cbranch_scc1 B_one''')
    dma(T, 1)
    a(f'''
B_one:
    ds_read_b128 {vr(EE,4)}, v{EA} offset:256
    s_cmp_lg_u32 s37, 0
    s_cbranch_scc1 B_qdone
    s_mov_b32 s37, 1
    v_lshrrev_b32 v{T}, 4, v{LANE}
    v_bfe_u32 v{T+1}, v{LANE}, 2, 2
    v_lshl_add_u32 v{T+2}, v{T}, 3, v{T+1}  ; row
    v_bfe_u32 v{T+3}, v{T+2}, 1, 1
    v_and_b32 v{T+4}, 8, v{T+2}
    v_or_b32 v{T+3}, v{T+3}, v{T+4}         ; f
    v_and_b32 v{T+4}, 3, v{LANE}
    v_lshlrev_b32 v{T+4}, 1, v{T+4}
    v_xor_b32 v{T+3}, v{T+3}, v{T+4}
    v_lshlrev_b32 v{T+3}, 3, v{T+3}
    v_lshl_add_u32 v{T}, v{T+2}, 7, v{T+3}  ; blk 0
    v_xor_b32 v{T+1}, 8, v{T}               ; blk 1
    v_xor_b32 v{T+2}, 64, v{T}              ; blk 2
    v_xor_b32 v{T+3}, 0x48, v{T}            ; blk 3''')
    for blk in range(4):
        for ks in range(2):
            for h in range(2):
                reg = XA + blk*8 + ks*4 + h*2
                off = L_WQ + (32*ks + 4*h) * 128
                a(f'    ds_read_b64_tr_b16 {vr(reg,2)}, v{T+blk} offset:{off}')
        if blk == 1:
            a('    s_waitcnt lgkmcnt(0)')
    a('    s_waitcnt lgkmcnt(0)')
    for blk in range(4):
        a(f'    v_mfma_f32_16x16x32_bf16 {vr(QLO+4*blk,4)}, {vr(XA+blk*8,4)}, {vr(XN,4)}, 0')
    for blk in range(4):
        a(f'    v_mfma_f32_16x16x32_bf16 {vr(QLO+4*blk,4)}, {vr(XA+blk*8+4,4)}, {vr(XN+4,4)}, {vr(QLO+4*blk,4)}')
    a(f'    s_mov_b32 s70, 0x{f32bits(-1.4426950408889634/8):08x}')
    a('    s_nop 7')
    for r in range(16):
        a(f'    v_mul_f32 v{QLO+r}, s70, v{QLO+r}')
    for r in range(8):
        a(f'    v_cvt_pk_bf16_f32 v{T+r}, v{QLO+2*r}, v{QLO+2*r+1}')
    for r in range(8):
        a(f'    v_cndmask_b32 v{QLO+r}, 0, v{T+r}, s[56:57]')
        a(f'    v_cndmask_b32 v{QHI+r}, 0, v{T+r}, s[58:59]')
    a('''
B_qdone:
    s_mov_b32 s35, 1                        ; s35 = t+1''')
    stamp(a, opt, 7)
    if opt.get('stamps'):
        a('    s_waitcnt vmcnt(4)')
        stamp(a, opt, 8)
    a('B_loop:')
    def body(slot):
        so = slot * 4096
        mcur, mnext = (M0R, M1R) if slot == 0 else (M1R, M0R)
        eo = slot * 128
        a(f'''
    s_cmp_lt_u32 s35, s34
    s_cbranch_scc1 B_w4_{slot}
    s_waitcnt vmcnt(0)
B_w4_{slot}:
    s_waitcnt vmcnt(4)
    ds_read_b128 {vr(XA,4)}, v{RA0} offset:{so}
    ds_read_b128 {vr(XA+4,4)}, v{RA1} offset:{so}
    ds_read_b128 {vr(XA+8,4)}, v{RA0} offset:{so+2048}
    ds_read_b128 {vr(XA+12,4)}, v{RA1} offset:{so+2048}''')
        for fb in range(4):
            a(f'    ds_read_b64_tr_b16 {vr(XT+4*fb,2)}, v{RT+fb} offset:{so}')
            a(f'    ds_read_b64_tr_b16 {vr(XT+4*fb+2,2)}, v{RT+fb} offset:{so+2048}')
        a(f'''
    v_bfe_u32 v{T}, v{mcur}, 4, 3
    v_cvt_f32_u32 v{T}, v{T}
    v_mul_f32 v{T+1}, v{T}, v{T}
    v_cvt_pk_bf16_f32 v{MA}, v{T+1}, v{T}
    ds_read_b32 v{mnext}, v{MAD} offset:{eo+128}
    s_add_u32 s35, s35, 1                   ; t+2
    v_mfma_f32_16x16x32_bf16 {vr(S,4)}, {vr(MA,4)}, {vr(MB,4)}, 0
    s_waitcnt lgkmcnt(12)
    v_mfma_f32_16x16x32_bf16 {vr(S,4)}, {vr(XA,4)}, {vr(QLO,4)}, {vr(S,4)}
    s_waitcnt lgkmcnt(11)
    v_mfma_f32_16x16x32_bf16 {vr(S,4)}, {vr(XA+4,4)}, {vr(QLO+4,4)}, {vr(S,4)}
    s_waitcnt lgkmcnt(10)
    v_mfma_f32_16x16x32_bf16 {vr(S,4)}, {vr(XA+8,4)}, {vr(QHI,4)}, {vr(S,4)}
    s_waitcnt lgkmcnt(9)
    v_mfma_f32_16x16x32_bf16 {vr(S,4)}, {vr(XA+12,4)}, {vr(QHI+4,4)}, {vr(S,4)}
    s_waitcnt lgkmcnt(0)
    s_cmp_lt_u32 s35, s34
    s_cbranch_scc0 B_skip_{slot}''')
        dma(EE, slot)
        a(f'''
    ds_read_b128 {vr(EE,4)}, v{EA} offset:{eo+384}
B_cont_{slot}:''')
        if slot == 1:
            a(f'    v_add_u32 v{EA}, 256, v{EA}')
            a(f'    v_add_u32 v{MAD}, 256, v{MAD}')
        for r in range(4):
            a(f'    v_exp_f32 v{S+r}, v{S+r}')
        for r in range(4):
            a(f'    v_add_f32 v{S+r}, 1.0, v{S+r}')
        for r in range(4):
            a(f'    v_rcp_f32 v{S+r}, v{S+r}')
        a(f'''
    s_mov_b64 exec, s[56:57]
    v_cvt_pk_bf16_f32 v{PP}, v{S}, v{S+1}
    v_cvt_pk_bf16_f32 v{PP+1}, v{S+2}, v{S+3}
    s_mov_b64 exec, s[58:59]
    v_cvt_pk_bf16_f32 v{PP+2}, v{S}, v{S+1}
    v_cvt_pk_bf16_f32 v{PP+3}, v{S+2}, v{S+3}
    s_mov_b64 exec, -1
    s_cmp_gt_u32 s35, s34
    s_nop 0''')
        for fb in range(4):
            a(f'    v_mfma_f32_16x16x32_bf16 {vr(ACC+4*fb,4)}, {vr(XT+4*fb,4)}, {vr(PP,4)}, {vr(ACC+4*fb,4)}')
        if slot == 0:
            a('    s_cbranch_scc1 B_loopdone')
        else:
            a('    s_cbranch_scc0 B_loop')
    n0 = len(a.lines)
    body(0)
    body(1)
    drop = []
    if opt.get('x_nords'): drop += ['ds_read_b128 v[4', 'ds_read_b128 v[5', 'ds_read_b64_tr']
    if opt.get('x_notr'): drop += ['ds_read_b64_tr']
    if opt.get('x_nob128'): drop += ['ds_read_b128 v[4', 'ds_read_b128 v[5']
    if opt.get('x_nomfma'): drop += ['v_mfma']
    if opt.get('x_novalu'): drop += ['v_exp', 'v_rcp', 'v_add_f32', 'v_cvt', 'v_mul', 'v_bfe']
    a.lines[n0:] = [l for l in a.lines[n0:] if not any(l.strip().startswith(d) for d in drop)]
    a(f'''
B_loopdone:
    s_cmp_lg_u32 s36, 0
    s_cbranch_scc1 B_next
    s_mov_b32 s36, 5
    s_or_b32 s70, s60, s61
    s_or_b32 s71, s62, s63
    s_or_b32 s72, s64, s65
    s_or_b32 s73, s66, s67
    s_or_b32 s70, s70, s71
    s_or_b32 s72, s72, s73
    s_or_b32 s70, s70, s72
    s_cbranch_scc1 B_next
B_epi:''')
    stamp(a, opt, 9)
    a(f'''
    v_lshrrev_b32 v{T+4}, 2, v{LANE}
    v_bfe_u32 v{T+5}, v{T+4}, 1, 2
    v_and_b32 v{T+6}, 3, v{LANE}
    v_lshl_or_b32 v{T+5}, v{T+6}, 2, v{T+5}
    v_lshlrev_b32 v{T+5}, 3, v{T+5}
    v_lshl_add_u32 v{T}, v{T+4}, 7, v{T+5}
    v_xor_b32 v{T+1}, 8, v{T}
    v_xor_b32 v{T+2}, 16, v{T}
    v_xor_b32 v{T+3}, 24, v{T}''')
    for blk in range(4):
        for ks in range(2):
            for h in range(2):
                reg = XA + blk*8 + ks*4 + h*2
                off = L_WV + (32*ks + 16*h) * 128
                a(f'    ds_read_b64_tr_b16 {vr(reg,2)}, v{T+blk} offset:{off}')
        if blk == 1:
            a('    s_waitcnt lgkmcnt(0)')
    for r in range(16):
        a(f'    v_add_f32_dpp v{ACC+r}, v{ACC+r}, v{ACC+r} row_ror:8 row_mask:0xf bank_mask:0xf')
    for r in range(8):
        a(f'    v_cvt_pk_bf16_f32 v{XN+r}, v{ACC+2*r}, v{ACC+2*r+1}')
    a('    s_waitcnt lgkmcnt(0)')
    a('    s_nop 0')
    for blk in range(4):
        a(f'    v_mfma_f32_16x16x32_bf16 {vr(QLO+4*blk,4)}, {vr(XA+blk*8,4)}, {vr(XN,4)}, 0')
    for blk in range(4):
        a(f'    v_mfma_f32_16x16x32_bf16 {vr(QLO+4*blk,4)}, {vr(XA+blk*8+4,4)}, {vr(XN+4,4)}, {vr(QLO+4*blk,4)}')
    a('    s_nop 7')
    for r in range(8):
        a(f'    v_cvt_pk_bf16_f32 v{T+r}, v{QLO+2*r}, v{QLO+2*r+1}')
    of = opt.get('b_out', '')
    a(f'''
    s_mov_b64 exec, s[56:57]
    buffer_store_dwordx4 {vr(T,4)}, v{OUTOFF}, s[24:27], 0 offen{of}
    buffer_store_dwordx4 {vr(T+4,4)}, v{OUTOFF}, s[24:27], 0 offen offset:16{of}''')
    if opt.get('stamps'):
        stamp(a, opt, 10)
        a('    s_waitcnt vmcnt(0)')
        stamp(a, opt, 11)
        stamp_out(a, opt, 1, 12, 38, 40, 41)
    a(f'''
B_end:
    s_endpgm
B_skip_0:
    s_nop 7
    s_branch B_cont_0
B_skip_1:
    s_nop 7
    s_branch B_cont_1
B_toobig:
    s_mov_b32 s36, 1
B_next:
    s_waitcnt vmcnt(0) lgkmcnt(0)
    s_barrier
    v_mov_b32 v{T+4}, 0
    v_lshlrev_b32 v{T+5}, 2, v0
    v_cmp_gt_u32 vcc, 16, v0
    s_and_saveexec_b64 s[70:71], vcc
    ds_write_b32 v{T+5}, v{T+4} offset:{L_CNT}
    s_mov_b64 exec, -1''')
    for r in range(8):
        a(f'    v_mov_b32 v{EN+r}, 0')
    a(f'''
    s_cmp_gt_u32 s36, 4
    s_cbranch_scc1 B_ovf
    s_sub_u32 s70, s36, 1
    s_lshl_b32 s70, s70, 13
    s_add_u32 s70, s70, s29
    s_add_u32 s36, s36, 1
    s_cmp_ge_u32 s28, 8
    s_cbranch_scc1 B_go
    buffer_load_dwordx4 {vr(EN,4)}, v{SEG}, s[16:19], s70 offen
    s_branch B_go
B_ovf:
    s_cmp_eq_u32 s36, 6
    s_cbranch_scc1 B_ovf2
    s_mov_b32 s74, -1''')
    for k in range(7, -1, -1):
        a(f'''
    s_ff1_i32_b32 s70, s{60+k}
    s_add_u32 s71, s70, {32*k}
    s_cmp_lg_u32 s{60+k}, 0
    s_cselect_b32 s74, s71, s74''')
    a(f'''
    s_cmp_eq_u32 s74, -1
    s_cbranch_scc1 B_epi
    s_lshr_b32 s70, s74, 5
    s_lshl_b32 s71, 1, s74''')
    for k in range(8):
        a(f'''
    s_andn2_b32 s72, s{60+k}, s71
    s_cmp_eq_u32 s70, {k}
    s_cselect_b32 s{60+k}, s72, s{60+k}''')
    a(f'''
    s_mov_b32 s36, 6
    s_mov_b32 s75, 0
    s_branch B_ovfld
B_ovf2:
    s_mov_b32 s36, 5
    s_mov_b32 s75, 2048
B_ovfld:
    s_cmp_ge_u32 s28, 8
    s_cbranch_scc1 B_go
    s_lshl_b32 s70, s74, 2
    s_add_u32 s70, s70, {OVFCNT_OFF}
    s_mul_i32 s71, s74, {OVF_STRIDE}
    s_add_u32 s71, s71, {OVF_OFF}
    s_lshl_b32 s72, s75, 2
    s_add_u32 s71, s71, s72
    buffer_load_dword v{T}, v{T+4}, s[16:19], s70 offen
    buffer_load_dwordx4 {vr(EN,4)}, v{SEG}, s[16:19], s71 offen
    v_lshl_add_u32 v{T+1}, v0, 2, s75
    s_waitcnt vmcnt(0)''')
    for r in range(4):
        a(f'''
    v_add_u32 v{T+2}, {r}, v{T+1}
    v_cmp_lt_u32 vcc, v{T+2}, v{T}
    v_bfe_u32 v{T+3}, v{EN+r}, 22, 8
    v_cmp_eq_u32 s[70:71], s2, v{T+3}
    s_and_b64 vcc, vcc, s[70:71]
    v_cndmask_b32 v{EN+r}, 0, v{EN+r}, vcc''')
    a('''
B_go:
    s_waitcnt vmcnt(0) lgkmcnt(0)
    s_barrier
    s_branch B_batch''')

def gen_red(a, opt, pos):
    a('.globl red_kernel\n.p2align 8\n.type red_kernel,@function\nred_kernel:')
    a(f'''
    s_cmp_lg_u32 s2, 0
    s_cbranch_scc1 R_end
    s_load_dwordx4 s[4:7], s[0:1], 48
    v_lshlrev_b32 v1, 2, v0
    s_waitcnt lgkmcnt(0)
    s_add_u32 s8, s6, {STAMP_OFF}
    s_addc_u32 s9, s7, 0
    s_sub_u32 s4, s4, {512*pos}
    s_subb_u32 s5, s5, 0
    v_add_u32 v20, 16, v0
    v_and_b32 v20, 63, v20
    v_lshlrev_b32 v20, 2, v20
    v_add_u32 v21, 32, v0
    v_and_b32 v21, 63, v21
    v_lshlrev_b32 v21, 2, v21''')
    for kid in range(2):
        mn, mx = 2 + 2*kid, 3 + 2*kid
        a(f'''
    v_mov_b32 v{mn}, -1
    v_mov_b32 v{mx}, 0
    s_mov_b32 s10, 0
R_l{kid}:''')
        for u in range(8):
            a(f'    global_load_dword v{8+u}, v1, s[8:9] offset:{256*u}')
        a('    s_waitcnt vmcnt(0)')
        for u in range(8):
            a(f'    v_min_u32 v{mn}, v{mn}, v{8+u}')
            a(f'    v_max_u32 v{mx}, v{mx}, v{8+u}')
        a(f'''
    v_add_u32 v1, 2048, v1
    s_add_u32 s10, s10, 1
    s_cmp_lt_u32 s10, 128
    s_cbranch_scc1 R_l{kid}''')
        for idx in (20, 21):
            a(f'''
    ds_bpermute_b32 v8, v{idx}, v{mn}
    ds_bpermute_b32 v9, v{idx}, v{mx}
    s_waitcnt lgkmcnt(0)
    v_min_u32 v{mn}, v{mn}, v8
    v_max_u32 v{mx}, v{mx}, v9''')
    sel = [(3,0),(3,1),(3,2),(3,4),(3,6),(4,0),(5,0),(5,1),(5,2),(5,3),(5,5),(5,6),(4,7),(4,9),(5,9),(5,11)]
    a('    s_nop 1')
    a('    v_readlane_b32 s12, v2, 0')
    a('    v_mov_b32 v10, 0')
    for i, (r, l) in enumerate(sel):
        a(f'    v_readlane_b32 s13, v{r}, {l}')
        a(f'    s_sub_u32 s13, s13, s12')
        a(f'    v_writelane_b32 v10, s13, {i}')
    a('''
    v_lshlrev_b32 v1, 2, v0
    s_mov_b64 exec, 0xffff
    global_store_dword v1, v10, s[4:5]''')
    if 'r_sel' in opt:
        a(f'''
    v_readlane_b32 s14, v10, {opt['r_sel']}
    s_memrealtime s[16:17]
    s_mul_i32 s14, s14, 10
    s_min_u32 s14, s14, 100000
    s_waitcnt lgkmcnt(0)
R_spin:
    s_memrealtime s[18:19]
    s_waitcnt lgkmcnt(0)
    s_sub_u32 s18, s18, s16
    s_cmp_lt_u32 s18, s14
    s_cbranch_scc1 R_spin''')
    a('''
R_end:
    s_endpgm''')

def kd(a, name, vg, sg):
    a(f'''
.amdhsa_kernel {name}
  .amdhsa_next_free_vgpr {vg}
  .amdhsa_next_free_sgpr {sg}
  .amdhsa_accum_offset {vg}
  .amdhsa_group_segment_fixed_size 0
  .amdhsa_kernarg_size 64
  .amdhsa_user_sgpr_count 2
  .amdhsa_user_sgpr_kernarg_segment_ptr 1
  .amdhsa_system_sgpr_workgroup_id_x 1
.end_amdhsa_kernel''')

def build(opt):
    a = Asm()
    ll = {'A': f'; @launch kernel=part_kernel grid=({P},1,1) block=(1024,1,1) lds={LDS_A}',
          'B': f'; @launch kernel=agg_kernel grid=({B},1,1) block=(1024,1,1) lds={LDS_B}',
          'R': '; @launch kernel=red_kernel grid=(1,1,1) block=(64,1,1) lds=0',
          'N': '; @launch kernel=nop_kernel grid=(256,1,1) block=(64,1,1) lds=0'}
    seq = opt.get('seq', ' AB').strip()
    launches = '\n'.join(ll[c] for c in seq)
    if opt.get('fuse') == 1:
        launches = f'; @launch grid=({P},1,1) block=(1024,1,1) lds={LDS_B}'
    if opt.get('fuse') == 2:
        launches = f'; @launch kernel={KNAME} grid=({P},1,1) block=(1024,1,1) lds={LDS_B}'
    a(f'''; FeatGraph: SDDMM (sigmoid gate) + SpMM, two launches.
{launches}
.amdgcn_target "amdgcn-amd-amdhsa--gfx950"
.text
''')
    a(f'.globl {KNAME}' if opt.get('fuse') else '.globl part_kernel\n.globl agg_kernel')
    gen_part(a, opt)
    gen_agg(a, opt)
    if 'R' in seq:
        gen_red(a, opt, 0)
    if 'N' in seq:
        a('.globl nop_kernel\n.p2align 8\n.type nop_kernel,@function\nnop_kernel:\n    s_endpgm')
    a('.section .rodata,"a"')
    if 'N' in seq:
        a('.p2align 6')
        kd(a, 'nop_kernel', 8, 16)
    if 'R' in seq:
        a('.p2align 6')
        kd(a, 'red_kernel', 32, 48)
    if opt.get('fuse'):
        a('.p2align 6')
        kd(a, KNAME, 128, 102 if opt.get('stamps') else 80)
        return a.text()
    a('.p2align 6')
    kd(a, 'part_kernel', 48, 102 if opt.get('stamps') else 64)
    a('.p2align 6')
    kd(a, 'agg_kernel', 128, 102 if opt.get('stamps') else 80)
    return a.text()

if __name__ == '__main__':
    out = sys.argv[1]
    opt = {}
    for kv in sys.argv[2:]:
        k, v = kv.split('=')
        try:
            v = int(v)
        except ValueError:
            v = ' ' + v.replace('+', ' ')
        opt[k] = v
    open(out, 'w').write(build(opt))
```

```python
import sys, struct

N, E, D = 25000, 800000, 64
NWG = 256
CH = E // NWG
BSTRIDE = 257 * 128
SEG_OFF = 4096
WS_USED = SEG_OFF + 256 * BSTRIDE
X_BYTES = N * 128
EMPTY = 0x003FFFFF
KNAME = 'standalone__kernel_systems_refs_featgraph__graph_kernel'

L_ACNT = 0
L_BCNT = 1024
L_RESC = 1088
L_PEND = 1120
L_LUT = 1152
L_WV = 2048
L_LIST = 10240
GSTRIDE = 1408
L_RING = 32768
L_WQ = 98304
ISTRIDE = 160
L_IMG = 163840 - 256 * ISTRIDE
LDS = 163840
STAMP_OFF = 0x1000000

def f32bits(x):
    return struct.unpack('<I', struct.pack('<f', x))[0]

class Asm:
    def __init__(self):
        self.lines = []
    def __call__(self, s):
        for ln in s.strip('\n').split('\n'):
            if ln.strip():
                self.lines.append(ln)
    def text(self):
        return '\n'.join(self.lines) + '\n'

def vr(lo, n):
    return f'v[{lo}:{lo+n-1}]'

def srd(a, d, lo, nbytes):
    a(f'    s_mov_b32 s{d}, s{lo}')
    a(f'    s_mov_b32 s{d+1}, s{lo+1}')
    a(f'    s_mov_b32 s{d+2}, {nbytes}')
    a(f'    s_mov_b32 s{d+3}, 0x00020000')

LANE, T4, T16, FOUR, ZERO, OUTOFF, WVA = 1, 2, 3, 4, 5, 6, 7
QLO, QHI, ACC, XA, XT, S, PP, MA, MB, EE = 8, 16, 24, 40, 56, 72, 76, 80, 84, 88
M0R, M1R, RA0, RA1, RT, EA, MAD, CHK, EA0, MAD0 = 92, 93, 94, 95, 96, 100, 101, 102, 103, 120
T = 104
EN = 112
PFD = 121
ATK = 122
ED, ES, B4, PS = 40, 44, 48, 52
WD, XN = 56, 60
IMGR, STO, WSA = 68, 69, 70
G4, RK = 40, 48

SX, SSRC, SDST, SW, SOUT, SWS = 20, 24, 28, 32, 36, 40
WID, SEGB, AMASK, RING, NT, TT = 44, 45, 46, 47, 48, 49
TAG = 50
SEMPTY, MODE, LOM = 54, 55, 56
M3 = 58
RESC = 60
VM = 68
X0 = 84
POLLN = 96
PRIME = 97

def build(opt):
    a = Asm()
    st = opt.get('stamps')
    nstamp = [0]
    def stamp(k):
        if st:
            a(f'    s_memrealtime s[98:99]')
            a('    s_waitcnt lgkmcnt(0)')
            a(f'    v_writelane_b32 v123, s98, {k}')
    lst = opt.get('list', 0)
    launch = (f'; @launch kernel={KNAME} grid=({NWG},1,1) block=(1024,1,1) lds={LDS}' if lst else
              f'; @launch grid=({NWG},1,1) block=(1024,1,1) lds={LDS}')
    a(f'''; FeatGraph (SDDMM sigmoid gate + SpMM) in one launch, one workgroup per CU.
{launch}
.amdgcn_target "amdgcn-amd-amdhsa--gfx950"
.text
.globl {KNAME}
.p2align 8
.type {KNAME},@function
{KNAME}:
    s_cmp_ge_u32 s2, {NWG}
    s_cbranch_scc1 L_end''')
    if st:
        a('    v_mov_b32 v123, 0')
    stamp(0)
    a(f'''
    s_load_dwordx16 s[4:19], s[0:1], 0
    v_lshlrev_b32 v{T4}, 2, v0
    v_lshrrev_b32 v{T}, 6, v0
    v_lshlrev_b32 v{T16}, 4, v0
    v_readfirstlane_b32 s{WID}, v{T}
    v_and_b32 v{LANE}, 63, v0
    v_cmp_gt_u32 s[{M3}:{M3+1}], {CH-3072}, v0
    s_mul_i32 s{X0}, s2, {CH*4}
    s_add_u32 s{X0+1}, s{X0}, 4096
    s_add_u32 s{X0+2}, s{X0}, 8192
    s_add_u32 s{X0+3}, s{X0}, 12288
    s_mov_b32 s{SSRC+2}, {E*4}
    s_mov_b32 s{SSRC+3}, 0x00020000
    s_mov_b32 s{SDST+2}, {E*4}
    s_mov_b32 s{SDST+3}, 0x00020000
    s_waitcnt lgkmcnt(0)
    s_load_dword s{TAG}, s[18:19], 0
    s_mov_b32 s{SSRC}, s6
    s_mov_b32 s{SSRC+1}, s7
    s_mov_b32 s{SDST}, s8
    s_mov_b32 s{SDST+1}, s9
    s_mov_b64 exec, s[{M3}:{M3+1}]
    s_cbranch_execz A_no3a
    buffer_load_dword v{ED+3}, v{T4}, s[{SDST}:{SDST+3}], s{X0+3} offen
    buffer_load_dword v{ES+3}, v{T4}, s[{SSRC}:{SSRC+3}], s{X0+3} offen
A_no3a:
    s_mov_b64 exec, -1''')
    for k in range(3):
        a(f'    buffer_load_dword v{ED+k}, v{T4}, s[{SDST}:{SDST+3}], s{X0+k} offen')
    for k in range(3):
        a(f'    buffer_load_dword v{ES+k}, v{T4}, s[{SSRC}:{SSRC+3}], s{X0+k} offen')
    srd(a, SX, 4, X_BYTES)
    a(f'''
    s_cmp_lt_u32 s{WID}, 8
    s_cselect_b32 s{SW}, s10, s12
    s_cselect_b32 s{SW+1}, s11, s13
    s_mov_b32 s{SW+2}, 8192
    s_mov_b32 s{SW+3}, 0x00020000
    v_and_b32 v{T}, 7, v0
    v_lshlrev_b32 v{T}, 19, v{T}
    s_lshl_b32 s{X0+4}, s{WID}, 15
    s_lshl_b32 s{X0+5}, s2, 7
    s_add_u32 s{X0+4}, s{X0+4}, s{X0+5}
    v_add_u32 v{T}, s{X0+4}, v{T}
    v_lshrrev_b32 v{T+1}, 4, v{LANE}        ; g
    v_lshl_add_u32 v{T+2}, v{T+1}, 4, v{T}
    v_lshl_add_u32 v{OUTOFF}, v{T+1}, 5, v{T}
    v_and_b32 v{T+3}, 0x1ff0, v{T16}
    buffer_load_dwordx4 {vr(WD,4)}, v{T+3}, s[{SW}:{SW+3}], 0 offen
    buffer_load_dwordx4 {vr(XN,4)}, v{T+2}, s[{SX}:{SX+3}], 0 offen
    buffer_load_dwordx4 {vr(XN+4,4)}, v{T+2}, s[{SX}:{SX+3}], 0 offen offset:64''')
    pf1 = opt.get('pf1', 0)
    pf2 = opt.get('pf2', 0)
    pf3 = opt.get('pf3', 0)
    def prefetch(lo, hi):
        m = ((1 << hi) - 1) ^ ((1 << lo) - 1)
        a(f'''
    s_lshr_b32 s{X0+6}, s2, 3
    s_lshl_b32 s{X0+6}, s{X0+6}, 4
    s_add_u32 s{X0+6}, s{X0+6}, s{WID}
    s_mul_i32 s{X0+6}, s{X0+6}, {49*128}
    v_lshlrev_b32 v{PFD}, 7, v{LANE}
    s_mov_b32 exec_lo, 0x{m & 0xffffffff:x}
    s_mov_b32 exec_hi, 0x{m >> 32:x}
    buffer_load_dword v{PFD}, v{PFD}, s[{SX}:{SX+3}], s{X0+6} offen
    s_mov_b64 exec, -1''')
    y = 3
    if pf1:
        prefetch(0, pf1)
        y += 1
    a(f'''
    v_mov_b32 v{T+4}, {EMPTY}
    v_mov_b32 v{T+5}, {EMPTY}
    v_mov_b32 v{T+6}, {EMPTY}
    v_mov_b32 v{T+7}, {EMPTY}
    v_add_u32 v{T}, {L_IMG}, v{T16}
    ds_write_b128 v{T}, {vr(T+4,4)}
    ds_write_b128 v{T}, {vr(T+4,4)} offset:16384
    ds_write_b128 v{T16}, {vr(T+4,4)} offset:{L_LIST}
    v_mov_b32 v{ZERO}, 0
    v_mov_b32 v{FOUR}, 4
    s_cmp_ge_u32 s{WID}, 8
    s_cbranch_scc1 I_hi
    ds_write_b128 v{T}, {vr(T+4,4)} offset:32768
    s_cmp_ge_u32 s{WID}, 6
    s_cbranch_scc1 I_done
    ds_write_b128 v{T16}, {vr(T+4,4)} offset:{L_LIST+16384}
    s_branch I_done
I_hi:
    s_cmp_ge_u32 s{WID}, 12
    s_cbranch_scc1 I_w12
    v_and_b32 v{T+2}, 0x3fc, v{T4}
    ds_write_b32 v{T+2}, v{ZERO} offset:{L_ACNT}
    s_branch I_done
I_w12:
    s_cmp_lg_u32 s{WID}, 12
    s_cbranch_scc1 I_done
    v_mul_u32_u24 v{T+2}, {GSTRIDE}, v{LANE}
    v_add_u32 v{T+2}, {L_LIST}, v{T+2}
    v_cmp_gt_u32 vcc, 16, v{LANE}
    v_lshlrev_b32 v{T+3}, 2, v{LANE}
    s_mov_b32 exec_hi, 0
    v_cndmask_b32 v{T+2}, 0, v{T+2}, vcc
    ds_write_b32 v{T+3}, v{T+2} offset:{L_BCNT}
    s_mov_b64 exec, 0xff
    v_cvt_f32_u32 v{T+2}, v{LANE}
    v_mul_f32 v{T+3}, v{T+2}, v{T+2}
    v_cvt_pk_bf16_f32 v{T+2}, v{T+3}, v{T+2}
    v_lshlrev_b32 v{T+3}, 4, v{LANE}
    ds_write_b32 v{T+3}, v{T+2} offset:{L_LUT}
    s_mov_b64 exec, -1
I_done:''')
    srd(a, SOUT, 14, X_BYTES)
    srd(a, SWS, 18, WS_USED)
    a(f'''
    s_lshr_b32 s{PRIME}, s2, 3
    s_and_b32 s{X0+4}, s2, 7
    s_lshl_b32 s{X0+4}, s{X0+4}, 5
    s_or_b32 s{PRIME}, s{PRIME}, s{X0+4}
    s_mul_i32 s{SEGB}, s2, {BSTRIDE}
    s_add_u32 s{SEGB}, s{SEGB}, {SEG_OFF}
    s_mov_b32 s{AMASK}, 0x003fff80
    s_lshl_b32 s{RING}, s{WID}, 13
    s_add_u32 s{RING}, s{RING}, {L_RING}
    s_mov_b32 s{SEMPTY}, {EMPTY}
    s_mov_b32 s{MODE}, 0
    s_mov_b32 s{LOM}, 0x00ff00ff
    s_mov_b32 s{LOM+1}, 0x00ff00ff
    v_lshrrev_b32 v{T+4}, 3, v0
    v_and_b32 v{T+5}, 7, v0
    v_mul_u32_u24 v{IMGR}, {ISTRIDE}, v{T+4}
    v_lshl_add_u32 v{IMGR}, v{T+5}, 2, v{IMGR}
    v_add_u32 v{IMGR}, {L_IMG}, v{IMGR}
    v_mul_u32_u24 v{STO}, {BSTRIDE}, v{T+4}
    v_lshl_add_u32 v{STO}, v{T+5}, 4, v{STO}
    v_and_b32 v{T+4}, 63, v{T+4}
    v_bfe_u32 v{T+6}, v{T+4}, 1, 1
    v_and_or_b32 v{T+6}, v{T+4}, 8, v{T+6}
    v_bfe_u32 v{T+7}, v{T+4}, 1, 2
    s_cmp_lt_u32 s{WID}, 8
    s_cselect_b64 s[{X0+4}:{X0+5}], -1, 0
    s_mov_b32 s{X0+6}, {L_WV}
    s_cselect_b32 s{X0+6}, {L_WQ}, s{X0+6}
    v_cndmask_b32 v{T+6}, v{T+7}, v{T+6}, s[{X0+4}:{X0+5}]
    v_lshlrev_b32 v{T+5}, 1, v{T+5}
    v_xor_b32 v{T+5}, v{T+5}, v{T+6}
    v_lshlrev_b32 v{T+5}, 3, v{T+5}
    v_lshl_add_u32 v{T+5}, v{T+4}, 7, v{T+5}
    v_add_u32 v{WSA}, s{X0+6}, v{T+5}
    v_xor_b32 v{WSA+1}, 8, v{WSA}
    s_waitcnt lgkmcnt(0)
    s_barrier
    ; tags
    s_add_u32 s{TAG}, s{TAG}, 0x400000
    s_and_b32 s{TAG}, s{TAG}, 0xffc00000
    s_xor_b32 s{TAG+1}, s{TAG}, 0xaa800000
    s_xor_b32 s{TAG+2}, s{TAG}, 0x55400000
    s_xor_b32 s{TAG+3}, s{TAG}, 0xffc00000''')
    stamp(1)
    def arank(k):
        a(f'''
    v_lshlrev_b32_sdwa v{B4+k}, 2, v{ED+k} dst_sel:DWORD dst_unused:UNUSED_PAD src0_sel:DWORD src1_sel:BYTE_0
    ds_add_rtn_u32 v{PS+k}, v{B4+k}, v{FOUR} offset:{L_ACNT}''')
    def aentry(k):
        a(f'''
    v_lshrrev_b32 v{ED+k}, 8, v{ED+k}
    v_lshl_or_b32 v{ES+k}, v{ES+k}, 7, v{ED+k}
    v_mad_u32_u24 v{B4+k}, v{B4+k}, {ISTRIDE//4}, s{X0+4}''')
    def aput(k):
        a(f'''
    v_min_u32 v{PS+k}, {ISTRIDE-4}, v{PS+k}
    v_add_u32 v{PS+k}, v{PS+k}, v{B4+k}
    ds_write_b32 v{PS+k}, v{ES+k}''')
    a(f'    s_mov_b32 s{X0+4}, {L_IMG}')
    a(f'    s_waitcnt vmcnt({y+3})')
    stamp(2)
    for k in range(3):
        arank(k)
    a(f'    s_waitcnt vmcnt({y})')
    for k in range(3):
        aentry(k)
    for k in range(3):
        a('    s_waitcnt lgkmcnt(2)')
        aput(k)
    a(f'''
    s_mov_b64 exec, s[{M3}:{M3+1}]
    s_cbranch_execz A_no3b''')
    arank(3)
    aentry(3)
    a('    s_waitcnt lgkmcnt(0)')
    aput(3)
    a(f'''
A_no3b:
    s_mov_b64 exec, -1
    s_waitcnt vmcnt({y-1})
    ds_write_b64 v{WSA}, {vr(WD,2)}
    ds_write_b64 v{WSA+1}, {vr(WD+2,2)}
    s_lshl_b32 s{X0}, s{PRIME}, 7
    s_add_u32 s{X0}, s{X0}, {SEG_OFF}
    s_add_u32 s{X0+1}, s{X0}, {128*BSTRIDE}
    s_add_u32 s{X0+2}, s{SEGB}, 16384
    v_add_u32 v{T}, {128*ISTRIDE}, v{IMGR}
    s_waitcnt lgkmcnt(0)
    s_barrier''')
    stamp(3)
    a(f'''
    ds_read2_b32 {vr(40,2)}, v{IMGR} offset0:0 offset1:8
    ds_read2_b32 {vr(42,2)}, v{IMGR} offset0:16 offset1:24
    ds_read2_b32 {vr(44,2)}, v{T} offset0:0 offset1:8
    ds_read2_b32 {vr(46,2)}, v{T} offset0:16 offset1:24
    s_waitcnt lgkmcnt(2)''')
    for r in range(4):
        a(f'    v_or_b32 v{40+r}, s{TAG+r}, v{40+r}')
    sf = opt.get('st', ' sc1')
    lf = opt.get('ld', ' sc1')
    a(f'''
    buffer_store_dwordx4 {vr(40,4)}, v{STO}, s[{SWS}:{SWS+3}], s{X0} offen{sf}
    s_waitcnt lgkmcnt(0)''')
    for r in range(4):
        a(f'    v_or_b32 v{44+r}, s{TAG+r}, v{44+r}')
    a(f'''
    buffer_store_dwordx4 {vr(44,4)}, v{STO}, s[{SWS}:{SWS+3}], s{X0+1} offen{sf}''')
    stamp(4)
    a(f'''
    s_cmp_lg_u32 s{WID}, 15
    s_cbranch_scc1 K_no
    s_mov_b64 exec, 1
    v_mov_b32 v{T+1}, 1
    global_atomic_add v{ATK}, v{ZERO}, v{T+1}, s[16:17] sc0 sc1
    s_mov_b64 exec, -1
K_no:''')
    early = opt.get('early', 0)
    def poll_issue():
        a(f'''
    buffer_load_dwordx4 {vr(EN,4)}, v{T16}, s[{SWS}:{SWS+3}], s{SEGB} offen{lf}
    buffer_load_dwordx4 {vr(EN+4,4)}, v{T16}, s[{SWS}:{SWS+3}], s{X0+2} offen{lf}''')
    if early:
        poll_issue()
    a(f'''
    v_lshrrev_b32 v{T}, 4, v{LANE}
    v_bfe_u32 v{T+1}, v{LANE}, 2, 2
    v_lshl_add_u32 v{T+2}, v{T}, 3, v{T+1}
    v_bfe_u32 v{T+3}, v{T+2}, 1, 1
    v_and_or_b32 v{T+3}, v{T+2}, 8, v{T+3}
    v_and_b32 v{T+4}, 3, v{LANE}
    v_lshlrev_b32 v{T+4}, 1, v{T+4}
    v_xor_b32 v{T+3}, v{T+3}, v{T+4}
    v_lshlrev_b32 v{T+3}, 3, v{T+3}
    v_lshl_add_u32 v{T}, v{T+2}, 7, v{T+3}
    v_add_u32 v{T}, {L_WQ}, v{T}
    v_xor_b32 v{T+1}, 8, v{T}
    v_xor_b32 v{T+2}, 64, v{T}
    v_xor_b32 v{T+3}, 0x48, v{T}''')
    wreg = [24, 32, 72, 80]
    for blk in range(4):
        for ks in range(2):
            for h in range(2):
                a(f'    ds_read_b64_tr_b16 {vr(wreg[blk]+ks*4+h*2,2)}, v{T+blk} offset:{(32*ks+4*h)*128}')
        if blk == 1:
            a('    s_waitcnt lgkmcnt(0)')
    a(f'''
    v_and_b32 v{T+4}, 15, v{LANE}           ; i
    v_lshrrev_b32 v{T+5}, 3, v{LANE}
    v_and_b32 v{T+6}, 6, v{T+5}
    v_and_b32 v{T+7}, 7, v{LANE}
    v_xor_b32 v{T+6}, v{T+6}, v{T+7}
    v_lshlrev_b32 v{CHK}, 4, v{T+6}
    s_mul_i32 s{X0+4}, s{WID}, {GSTRIDE}
    s_add_u32 s{X0+4}, s{X0+4}, {L_LIST}
    v_lshl_add_u32 v{EA0}, v{T+5}, 4, s{X0+4}
    v_bfe_u32 v{T+6}, v{LANE}, 3, 2
    v_lshl_add_u32 v{T+6}, v{T+7}, 2, v{T+6}
    v_lshl_add_u32 v{MAD0}, v{T+6}, 2, s{X0+4}
    v_lshrrev_b32 v{T+1}, 4, v{LANE}        ; g
    v_and_b32 v{T+6}, 6, v{T+4}
    v_xor_b32 v{T+6}, v{T+6}, v{T+1}
    v_lshlrev_b32 v{T+6}, 4, v{T+6}
    v_lshl_add_u32 v{T+6}, v{T+4}, 7, v{T+6}
    v_add_u32 v{RA0}, s{RING}, v{T+6}
    v_xor_b32 v{RA1}, 64, v{RA0}
    v_lshrrev_b32 v{T+6}, 2, v{LANE}        ; row = 4g+r
    v_and_b32 v{T+7}, 6, v{T+6}
    v_bfe_u32 v{T+5}, v{LANE}, 1, 1
    v_xor_b32 v{T+7}, v{T+7}, v{T+5}
    v_lshlrev_b32 v{T+7}, 4, v{T+7}
    v_lshl_add_u32 v{T+7}, v{T+6}, 7, v{T+7}
    v_and_b32 v{T+5}, 1, v{LANE}
    v_lshl_add_u32 v{T+7}, v{T+5}, 3, v{T+7}
    v_add_u32 v{RT}, s{RING}, v{T+7}
    v_xor_b32 v{RT+1}, 32, v{RT}
    v_xor_b32 v{RT+2}, 64, v{RT}
    v_xor_b32 v{RT+3}, 0x60, v{RT}
    v_bfe_u32 v{T+5}, v{T+6}, 1, 2
    v_and_b32 v{T+7}, 3, v{LANE}
    v_lshl_or_b32 v{T+5}, v{T+7}, 2, v{T+5}
    v_lshlrev_b32 v{T+5}, 3, v{T+5}
    v_lshl_add_u32 v{WVA}, v{T+6}, 7, v{T+5}
    s_waitcnt vmcnt({2 + (2 if early else 0)}) lgkmcnt(0)''')
    for blk in range(4):
        a(f'    v_mfma_f32_16x16x32_bf16 {vr(QLO+4*blk,4)}, {vr(wreg[blk],4)}, {vr(XN,4)}, 0')
    for blk in range(4):
        a(f'    v_mfma_f32_16x16x32_bf16 {vr(QLO+4*blk,4)}, {vr(wreg[blk]+4,4)}, {vr(XN+4,4)}, {vr(QLO+4*blk,4)}')
    if not early:
        poll_issue()
    if pf2:
        prefetch(pf1, pf2)
    a(f'    s_mov_b32 s{X0+4}, 0x{f32bits(-1.4426950408889634/8):08x}')
    a(f'''
    v_mov_b32 v{MA+1}, 0x00003f80
    v_mov_b32 v{MA+2}, 0
    v_mov_b32 v{MA+3}, 0
    v_mov_b32 v{MB}, 0
    v_mov_b32 v{MB+1}, 0
    v_mov_b32 v{MB+2}, 0
    v_mov_b32 v{MB+3}, 0
    v_and_b32 v{T+5}, 7, v{LANE}
    v_cvt_f32_u32 v{T+5}, v{T+5}            ; j'
    v_mov_b32 v{T+6}, 0x71800000            ; BIG = 2^100
    v_mul_f32 v{T+7}, v{T+5}, v{T+6}
    v_mul_f32 v{T+5}, v{T+5}, v{T+7}
    v_mul_f32 v{T+7}, -2.0, v{T+7}
    s_mov_b32 exec_lo, 0xff0000ff
    s_mov_b32 exec_hi, 0
    v_cvt_pk_bf16_f32 v{MB}, v{T+6}, v{T+7}
    v_cvt_pk_bf16_f32 v{MB+1}, v{T+5}, 0
    s_mov_b64 exec, -1''')
    for r in range(16):
        a(f'    v_mul_f32 v{QLO+r}, s{X0+4}, v{QLO+r}')
    for r in range(8):
        a(f'    v_cvt_pk_bf16_f32 v{T+r}, v{QLO+2*r}, v{QLO+2*r+1}')
    for r in range(8):
        a(f'    v_cndmask_b32 v{QLO+r}, 0, v{T+r}, s[{LOM}:{LOM+1}]')
        a(f'    v_cndmask_b32 v{QHI+r}, v{T+r}, 0, s[{LOM}:{LOM+1}]')
    for r in range(16):
        a(f'    v_mov_b32 v{ACC+r}, 0')
    stamp(5)
    S0, S1 = X0+4, X0+6
    a(f'''
    s_mov_b32 s{POLLN}, 0
    s_mov_b32 s{X0+8}, 0x400000
    s_mov_b64 s[{S0}:{S0+1}], -1
    s_mov_b64 s[{S1}:{S1+1}], -1
    s_waitcnt vmcnt({1 if pf2 else 0})
P_loop:''')
    for h, sm in ((0, S0), (1, S1)):
        a(f'    s_mov_b64 exec, s[{sm}:{sm+1}]')
        for r in range(4):
            a(f'    v_xor_b32 v{EN+4*h+r}, s{TAG+r}, v{EN+4*h+r}')
        a(f'''
    v_or3_b32 v{T}, v{EN+4*h}, v{EN+4*h+1}, v{EN+4*h+2}
    v_or_b32 v{T}, v{T}, v{EN+4*h+3}
    v_cmp_le_u32 s[{sm}:{sm+1}], s{X0+8}, v{T}''')
    a(f'''
    s_or_b64 exec, s[{S0}:{S0+1}], s[{S1}:{S1+1}]
    s_cbranch_execz P_done
    s_add_u32 s{POLLN}, s{POLLN}, 1
    s_cmp_gt_u32 s{POLLN}, {opt.get('pollmax', 2000)}
    s_cbranch_scc1 P_giveup
    s_mov_b64 exec, s[{S0}:{S0+1}]
    s_cbranch_execz P_n0
    buffer_load_dwordx4 {vr(EN,4)}, v{T16}, s[{SWS}:{SWS+3}], s{SEGB} offen{lf}
P_n0:
    s_mov_b64 exec, s[{S1}:{S1+1}]
    s_cbranch_execz P_n1
    buffer_load_dwordx4 {vr(EN+4,4)}, v{T16}, s[{SWS}:{SWS+3}], s{X0+2} offen{lf}
P_n1:
    s_waitcnt vmcnt(0)
    s_branch P_loop
P_done:
    s_mov_b64 exec, -1''')
    if st:
        a(f'    v_writelane_b32 v123, s{POLLN}, 15')
    stamp(6)
    if pf3:
        prefetch(max(pf1, pf2), pf3)
    a(f'''
    v_cmp_ne_u32 s[{VM+6}:{VM+7}], s{SEMPTY}, v{EN+3}
    v_cmp_ne_u32 s[{VM+14}:{VM+15}], s{SEMPTY}, v{EN+7}
    s_or_b64 s[{S0}:{S0+1}], s[{VM+6}:{VM+7}], s[{VM+14}:{VM+15}]
    s_cbranch_scc1 R_rare
R_fast:''')
    def brank(r):
        m = VM + 2*r
        a(f'''
    v_cmp_ne_u32 s[{m}:{m+1}], s{SEMPTY}, v{EN+r}
    v_and_b32 v{G4+r}, 15, v{EN+r}
    v_lshlrev_b32 v{G4+r}, 2, v{G4+r}
    s_mov_b64 exec, s[{m}:{m+1}]
    ds_add_rtn_u32 v{RK+r}, v{G4+r}, v{FOUR} offset:{L_BCNT}
    s_mov_b64 exec, -1''')
    def bput(r):
        m = VM + 2*r
        a(f'''
    s_mov_b64 exec, s[{m}:{m+1}]
    ds_write_b32 v{RK+r}, v{EN+r}''')
    order = [0, 4, 1, 5, 2, 6]
    for r in order:
        brank(r)
    for i, r in enumerate(order):
        a(f'    s_waitcnt lgkmcnt(5)')
        bput(r)
    a(f'''
    s_mov_b64 exec, -1
    v_and_b32 v{T}, 31, v{LANE}
    v_lshlrev_b32 v{T}, 2, v{T}
    v_mov_b32 v{EA}, v{EA0}
    v_mov_b32 v{MAD}, v{MAD0}
    v_and_b32 v{T+2}, 15, v{LANE}
    v_mul_u32_u24 v{T+2}, {GSTRIDE}, v{T+2}
    v_add_u32 v{T+2}, {L_LIST}, v{T+2}
    s_waitcnt lgkmcnt(0)
    s_barrier''')
    stamp(7)
    a(f'''
B_counts:
    ds_read_b32 v{T+1}, v{T} offset:{L_BCNT}
    ds_read_b128 {vr(EE,4)}, v{EA}
    ds_read_b128 {vr(T+4,4)}, v{EA} offset:128
    ds_read_b32 v{M0R}, v{MAD}
    s_waitcnt lgkmcnt(3)
    v_sub_u32 v{T+3}, v{T+1}, v{T+2}
    s_mov_b64 exec, 0x1ffffff
    v_cmp_lt_u32 vcc, {GSTRIDE}, v{T+3}
    v_cmp_ne_u32 s[{X0}:{X0+1}], 0, v{T+1}
    s_mov_b64 exec, -1
    v_readlane_b32 s{NT}, v{T+3}, s{WID}
    s_and_b32 s{X0+2}, vcc_lo, 0xffff
    s_and_b32 s{X0}, s{X0}, 0x1ff0000
    s_or_b32 s{X0+3}, s{X0+2}, s{X0}
    s_or_b32 s{X0+3}, s{X0+3}, s{MODE}
    s_cbranch_scc1 C_slowcnt
B_cntok:
    s_add_u32 s{NT}, s{NT}, 127
    s_lshr_b32 s{NT}, s{NT}, 7              ; tiles
    s_cbranch_scc0 B_loopdone
    s_setprio 3
    s_waitcnt lgkmcnt(0)''')
    gf = opt.get('gather', '')
    def dma(ereg, slot):
        for q in range(4):
            if q == 0:
                a(f'    s_mov_b32 m0, s{RING}' if slot == 0 else f'    s_add_u32 m0, s{RING}, 4096')
            else:
                a('    s_add_u32 m0, m0, 1024')
            a(f'    v_and_or_b32 v{ereg+q}, v{ereg+q}, s{AMASK}, v{CHK}')
            a(f'    buffer_load_dwordx4 v{ereg+q}, s[{SX}:{SX+3}], 0 offen{gf} lds')
    dma(EE, 0)
    a(f'''
    s_cmp_lt_u32 s{NT}, 2
    s_cbranch_scc1 B_one''')
    dma(T+4, 1)
    a(f'''
B_one:
    ds_read_b128 {vr(EE,4)}, v{EA} offset:256
    v_and_b32 v{M0R}, 0x70, v{M0R}
    s_mov_b32 s{TT}, 1                      ; t+1''')
    stamp(8)
    a('B_loop:')
    pk = opt.get('pk', 0)
    def body(slot):
        so = slot * 4096
        mcur, mnext = (M0R, M1R) if slot == 0 else (M1R, M0R)
        eo = slot * 128
        th = (5, 3, 1)
        if opt.get('prio', 1) and slot == 0:
            a(f'''
    s_sub_u32 s{X0}, s{NT}, s{TT}
    s_cmp_ge_u32 s{X0}, 6
    s_cbranch_scc1 B_p{slot}
    s_setprio 2
    s_cmp_ge_u32 s{X0}, 4
    s_cbranch_scc1 B_p{slot}
    s_setprio 1
    s_cmp_ge_u32 s{X0}, 2
    s_cbranch_scc1 B_p{slot}
    s_setprio 0
B_p{slot}:''')
        a(f'''
    ds_read_b32 v{MA}, v{mcur} offset:{L_LUT}
    ds_read_b32 v{mnext}, v{MAD} offset:{eo+128}
    s_cmp_lt_u32 s{TT}, s{NT}
    s_cbranch_scc1 B_w4_{slot}
    s_waitcnt vmcnt(0)
B_w4_{slot}:
    s_waitcnt vmcnt(4)
    ds_read_b128 {vr(XA,4)}, v{RA0} offset:{so}
    ds_read_b128 {vr(XA+4,4)}, v{RA1} offset:{so}
    ds_read_b128 {vr(XA+8,4)}, v{RA0} offset:{so+2048}
    ds_read_b128 {vr(XA+12,4)}, v{RA1} offset:{so+2048}''')
        for fb in range(4):
            a(f'    ds_read_b64_tr_b16 {vr(XT+4*fb,2)}, v{RT+fb} offset:{so}')
            a(f'    ds_read_b64_tr_b16 {vr(XT+4*fb+2,2)}, v{RT+fb} offset:{so+2048}')
        a(f'''
    s_add_u32 s{TT}, s{TT}, 1               ; t+2
    s_waitcnt lgkmcnt(12)
    v_mfma_f32_16x16x32_bf16 {vr(S,4)}, {vr(MA,4)}, {vr(MB,4)}, 0
    v_and_b32 v{mnext}, 0x70, v{mnext}
    s_waitcnt lgkmcnt(11)
    v_mfma_f32_16x16x32_bf16 {vr(S,4)}, {vr(XA,4)}, {vr(QLO,4)}, {vr(S,4)}
    s_waitcnt lgkmcnt(10)
    v_mfma_f32_16x16x32_bf16 {vr(S,4)}, {vr(XA+4,4)}, {vr(QLO+4,4)}, {vr(S,4)}
    s_waitcnt lgkmcnt(9)
    v_mfma_f32_16x16x32_bf16 {vr(S,4)}, {vr(XA+8,4)}, {vr(QHI,4)}, {vr(S,4)}
    s_waitcnt lgkmcnt(8)
    v_mfma_f32_16x16x32_bf16 {vr(S,4)}, {vr(XA+12,4)}, {vr(QHI+4,4)}, {vr(S,4)}
    s_waitcnt lgkmcnt(0)
    s_cmp_lt_u32 s{TT}, s{NT}
    s_cbranch_scc0 B_skip_{slot}''')
        dma(EE, slot)
        a(f'''
    ds_read_b128 {vr(EE,4)}, v{EA} offset:{eo+384}
B_cont_{slot}:''')
        for r in range(4):
            a(f'    v_exp_f32 v{S+r}, v{S+r}')
        if slot == 1:
            a(f'    v_add_u32 v{EA}, 256, v{EA}')
            a(f'    v_add_u32 v{MAD}, 256, v{MAD}')
        if pk:
            if slot == 0:
                a('    s_nop 0')
            a(f'    v_pk_add_f32 {vr(S,2)}, {vr(S,2)}, 1.0 op_sel_hi:[1,0]')
            a(f'    v_pk_add_f32 {vr(S+2,2)}, {vr(S+2,2)}, 1.0 op_sel_hi:[1,0]')
        else:
            for r in range(4):
                a(f'    v_add_f32 v{S+r}, 1.0, v{S+r}')
        for r in range(4):
            a(f'    v_rcp_f32 v{S+r}, v{S+r}')
        a(f'''
    v_cvt_pk_bf16_f32 v{PP}, v{S}, v{S+1}
    s_cmp_gt_u32 s{TT}, s{NT}
    v_cvt_pk_bf16_f32 v{PP+1}, v{S+2}, v{S+3}
    s_nop 0
    v_mov_b32_dpp v{PP+2}, v{PP} row_ror:8 row_mask:0xf bank_mask:0xf
    v_mov_b32_dpp v{PP+3}, v{PP+1} row_ror:8 row_mask:0xf bank_mask:0xf
    s_nop 1''')
        for fb in range(4):
            a(f'    v_mfma_f32_16x16x32_bf16 {vr(ACC+4*fb,4)}, {vr(XT+4*fb,4)}, {vr(PP,4)}, {vr(ACC+4*fb,4)}')
        a('    s_cbranch_scc1 B_loopdone' if slot == 0 else '    s_cbranch_scc0 B_loop')
    body(0)
    body(1)
    a(f'''
B_loopdone:
    s_cmp_lg_u32 s{MODE}, 0
    s_cbranch_scc1 C_next
B_epi:''')
    stamp(9)
    a(f'''
    v_xor_b32 v{T+1}, 8, v{WVA}
    v_xor_b32 v{T+2}, 16, v{WVA}
    v_xor_b32 v{T+3}, 24, v{WVA}''')
    for blk in range(4):
        ad = WVA if blk == 0 else T+blk
        for ks in range(2):
            for h in range(2):
                a(f'    ds_read_b64_tr_b16 {vr(XA+blk*8+ks*4+h*2,2)}, v{ad} offset:{L_WV+(32*ks+16*h)*128}')
        if blk == 2:
            a('    s_waitcnt lgkmcnt(8)')
    for r in range(8):
        a(f'    v_cvt_pk_bf16_f32 v{S+r}, v{ACC+2*r}, v{ACC+2*r+1}')
    for blk in range(4):
        a(f'    s_waitcnt lgkmcnt({12-4*blk if blk else 8})' if blk < 2 else f'    s_waitcnt lgkmcnt({12-4*blk})')
        if blk == 0:
            a('    s_nop 0')
        a(f'    v_mfma_f32_16x16x32_bf16 {vr(QLO+4*blk,4)}, {vr(XA+blk*8,4)}, {vr(S,4)}, 0')
        a(f'    v_mfma_f32_16x16x32_bf16 {vr(QLO+4*blk,4)}, {vr(XA+blk*8+4,4)}, {vr(S+4,4)}, {vr(QLO+4*blk,4)}')
    a(f'''
    s_cmp_lg_u32 s{WID}, 15
    s_cbranch_scc1 K_no2
    s_waitcnt vmcnt(0)
    v_readfirstlane_b32 s{X0}, v{ATK}
    s_cmp_lg_u32 s{X0}, {NWG-1}
    s_cbranch_scc1 K_no2
    s_mov_b64 exec, 1
    v_mov_b32 v{T}, s{TAG}
    global_store_dword v{ZERO}, v{T}, s[18:19]
    s_mov_b64 exec, -1
K_no2:
    s_nop 4''')
    for r in range(8):
        a(f'    v_cvt_pk_bf16_f32 v{XA+r}, v{QLO+2*r}, v{QLO+2*r+1}')
    of = opt.get('out', '')
    a(f'''
    s_mov_b64 exec, s[{LOM}:{LOM+1}]
    buffer_store_dwordx4 {vr(XA,4)}, v{OUTOFF}, s[{SOUT}:{SOUT+3}], 0 offen{of}
    buffer_store_dwordx4 {vr(XA+4,4)}, v{OUTOFF}, s[{SOUT}:{SOUT+3}], 0 offen offset:16{of}''')
    if st:
        a('    s_mov_b64 exec, -1')
        stamp(10)
        a('    s_waitcnt vmcnt(0)')
        stamp(11)
        a(f'''
    s_add_u32 s{X0}, s18, {STAMP_OFF}
    s_addc_u32 s{X0+1}, s19, 0
    s_lshl_b32 s{X0+2}, s2, 4
    s_add_u32 s{X0+2}, s{X0+2}, s{WID}
    s_lshl_b32 s{X0+2}, s{X0+2}, 6
    v_lshl_add_u32 v{T}, v{LANE}, 2, s{X0+2}
    s_mov_b64 exec, 0xffff
    global_store_dword v{T}, v123, s[{X0}:{X0+1}]''')
    a(f'''
L_end:
    s_endpgm
B_skip_0:
    s_nop 7
    s_branch B_cont_0
B_skip_1:
    s_nop 7
    s_branch B_cont_1''')
    def drop_lines(h, sm, tag):
        t0, t1 = X0+8, X0+10
        a(f'''
    s_wqm_b64 s[{sm}:{sm+1}], s[{sm}:{sm+1}]
    s_lshr_b64 s[{t0}:{t0+1}], s[{sm}:{sm+1}], 4
    s_and_b32 s{t0}, s{t0}, 0x0f0f0f0f
    s_and_b32 s{t0+1}, s{t0+1}, 0x0f0f0f0f
    s_lshl_b64 s[{t1}:{t1+1}], s[{sm}:{sm+1}], 4
    s_and_b32 s{t1}, s{t1}, 0xf0f0f0f0
    s_and_b32 s{t1+1}, s{t1+1}, 0xf0f0f0f0
    s_or_b64 s[{sm}:{sm+1}], s[{sm}:{sm+1}], s[{t0}:{t0+1}]
    s_or_b64 exec, s[{sm}:{sm+1}], s[{t1}:{t1+1}]''')
        for r in range(4):
            a(f'    v_mov_b32 v{EN+4*h+r}, {EMPTY}')
        a(f'''
    v_lshrrev_b32 v{T}, 3, v0
    v_lshrrev_b32 v{T+1}, 5, v{T}
    v_lshlrev_b32 v{T+1}, 2, v{T+1}
    v_lshlrev_b32 v{T}, v{T}, 1
    ds_or_b32 v{T+1}, v{T} offset:{L_RESC + 16*h}
    s_mov_b64 exec, -1''')
    a('P_giveup:')
    a('    s_mov_b64 exec, -1')
    drop_lines(0, S0, 'g0')
    drop_lines(1, S1, 'g1')
    a('    s_branch P_done')
    a(f'''
R_rare:
    s_and_b32 s{S0}, s{VM+6}, 0x80808080
    s_and_b32 s{S0+1}, s{VM+7}, 0x80808080
    s_and_b32 s{S1}, s{VM+14}, 0x80808080
    s_and_b32 s{S1+1}, s{VM+15}, 0x80808080''')
    drop_lines(0, S0, 'r0')
    drop_lines(1, S1, 'r1')
    brank(3)
    brank(7)
    a('    s_waitcnt lgkmcnt(0)')
    bput(3)
    bput(7)
    a(f'''
    s_mov_b64 exec, -1
    s_branch R_fast
C_slowcnt:
    s_cmp_lg_u32 s{MODE}, 0
    s_cbranch_scc1 C_careful''')
    for k in range(8):
        a(f'    v_readlane_b32 s{RESC+k}, v{T+1}, {16+k}')
    a(f'''
    s_mov_b32 s{MODE}, 2
    s_cmp_lg_u32 s{X0+2}, 0
    s_cbranch_scc1 C_next
    s_mov_b32 s{MODE}, 1
    s_branch B_cntok
C_careful:
    s_min_u32 s{NT}, s{NT}, {GSTRIDE}
    s_bitcmp1_b32 s{X0}, 24
    s_cselect_b32 s{MODE}, 2, 1
    s_branch B_cntok
C_next:
    s_setprio 0
    s_waitcnt vmcnt(0) lgkmcnt(0)
    s_barrier
    s_cmp_eq_u32 s{MODE}, 2
    s_cbranch_scc1 C_round
    s_mov_b32 s{X0}, -1''')
    for k in range(7, -1, -1):
        a(f'''
    s_ff1_i32_b32 s{X0+1}, s{RESC+k}
    s_add_u32 s{X0+1}, s{X0+1}, {32*k}
    s_cmp_lg_u32 s{RESC+k}, 0
    s_cselect_b32 s{X0}, s{X0+1}, s{X0}''')
    a(f'''
    s_cmp_eq_u32 s{X0}, -1
    s_cbranch_scc1 B_epi
    s_lshr_b32 s{X0+1}, s{X0}, 5
    s_lshl_b32 s{X0+2}, 1, s{X0}''')
    for k in range(8):
        a(f'''
    s_andn2_b32 s{X0+3}, s{RESC+k}, s{X0+2}
    s_cmp_eq_u32 s{X0+1}, {k}
    s_cselect_b32 s{RESC+k}, s{X0+3}, s{RESC+k}''')
    a(f'''
    s_and_b32 s{X0+2}, s{X0}, 31
    s_lshl_b32 s{X0+2}, s{X0+2}, 3
    s_or_b32 s{X0}, s{X0+2}, s{X0+1}
    s_mul_i32 s{X0}, s{X0}, {CH*4}''')
    for k in range(4):
        a(f'''
    buffer_load_dword v{ED+k}, v{T4}, s[{SDST}:{SDST+3}], s{X0} offen
    buffer_load_dword v{ES+k}, v{T4}, s[{SSRC}:{SSRC+3}], s{X0} offen
    s_add_u32 s{X0}, s{X0}, 4096''')
    for r in range(4, 8):
        a(f'    v_mov_b32 v{EN+r}, {EMPTY}')
    a(f'    v_mov_b32 v{T+1}, {EMPTY}')
    a('    s_waitcnt vmcnt(0)')
    for k in range(4):
        a(f'''
    v_and_b32 v{T}, 255, v{ED+k}
    v_cmp_eq_u32 vcc, s2, v{T}
    v_lshrrev_b32 v{ED+k}, 8, v{ED+k}
    v_lshl_or_b32 v{ES+k}, v{ES+k}, 7, v{ED+k}''')
        if k == 3:
            a(f'    s_and_b64 vcc, vcc, s[{M3}:{M3+1}]')
        a(f'    v_cndmask_b32 v{EN+k}, v{T+1}, v{ES+k}, vcc')
    a(f'''
C_round:
    v_mov_b32 v{T+4}, {EMPTY}
    v_mov_b32 v{T+5}, {EMPTY}
    v_mov_b32 v{T+6}, {EMPTY}
    v_mov_b32 v{T+7}, {EMPTY}
    ds_write_b128 v{T16}, {vr(T+4,4)} offset:{L_LIST}
    s_cmp_ge_u32 s{WID}, 6
    s_cbranch_scc1 C_i1
    ds_write_b128 v{T16}, {vr(T+4,4)} offset:{L_LIST+16384}
C_i1:
    v_and_b32 v{T+2}, 15, v{LANE}
    v_mul_u32_u24 v{T+2}, {GSTRIDE}, v{T+2}
    v_add_u32 v{T+2}, {L_LIST}, v{T+2}
    v_and_b32 v{T}, 31, v{LANE}
    v_lshlrev_b32 v{T}, 2, v{T}
    s_cmp_lg_u32 s{WID}, 12
    s_cbranch_scc1 C_i2
    s_mov_b64 exec, 0xffff
    ds_write_b32 v{T}, v{T+2} offset:{L_BCNT}
    ds_write_b32 v{ZERO}, v{ZERO} offset:{L_PEND}
    s_mov_b64 exec, -1
C_i2:
    s_waitcnt lgkmcnt(0)
    s_barrier
    s_mov_b32 s{X0+4}, {GSTRIDE//4}
    s_mov_b32 s{X0+5}, {L_LIST+GSTRIDE}''')
    for r in range(8):
        brank(r)
        m = VM + 2*r
        a(f'''
    v_mul_u32_u24 v{T+3}, s{X0+4}, v{G4+r}
    v_add_u32 v{T+3}, s{X0+5}, v{T+3}
    s_mov_b64 exec, s[{m}:{m+1}]
    s_waitcnt lgkmcnt(0)
    v_cmp_lt_u32 vcc, v{RK+r}, v{T+3}
    s_and_saveexec_b64 s[{X0+6}:{X0+7}], vcc
    ds_write_b32 v{RK+r}, v{EN+r}
    v_mov_b32 v{EN+r}, {EMPTY}
    s_andn2_b64 exec, s[{X0+6}:{X0+7}], exec
    ds_write_b32 v{ZERO}, v{FOUR} offset:{L_PEND}
    s_mov_b64 exec, -1''')
    a(f'''
    v_mov_b32 v{EA}, v{EA0}
    v_mov_b32 v{MAD}, v{MAD0}
    s_waitcnt lgkmcnt(0)
    s_barrier
    s_branch B_counts
.section .rodata,"a"
.p2align 6
.amdhsa_kernel {KNAME}
  .amdhsa_next_free_vgpr 128
  .amdhsa_next_free_sgpr 102
  .amdhsa_accum_offset 128
  .amdhsa_group_segment_fixed_size 0
  .amdhsa_kernarg_size 64
  .amdhsa_user_sgpr_count 2
  .amdhsa_user_sgpr_kernarg_segment_ptr 1
  .amdhsa_system_sgpr_workgroup_id_x 1
.end_amdhsa_kernel''')
    return a.text()

if __name__ == '__main__':
    out = sys.argv[1]
    opt = {}
    for kv in sys.argv[2:]:
        k, v = kv.split('=')
        try:
            v = int(v)
        except ValueError:
            v = '' if v == 'none' else ' ' + v.replace('+', ' ')
        opt[k] = v
    open(out, 'w').write(build(opt))
```

```python
import sys, struct

N, E, D = 25000, 800000, 64
NWG = 256
CH = E // NWG
BSTRIDE = 257 * 128
SEG_OFF = 4096
WS_USED = SEG_OFF + 256 * BSTRIDE
X_BYTES = N * 128
EMPTY = 0x003FFFFF
KNAME = 'standalone__kernel_systems_refs_featgraph__graph_kernel'

L_ACNT = 0
L_BCNT = 1024
L_RESC = 1088
L_PEND = 1120
L_LUT = 1152
L_WV = 2048
L_LIST = 10240
GSTRIDE = 1408
L_RING = 32768
L_WQ = 98304
ISTRIDE = 160
L_IMG = 163840 - 256 * ISTRIDE
LDS = 163840
STAMP_OFF = 0x1000000

def f32bits(x):
    return struct.unpack('<I', struct.pack('<f', x))[0]

class Asm:
    def __init__(self):
        self.lines = []
    def __call__(self, s):
        for ln in s.strip('\n').split('\n'):
            if ln.strip():
                self.lines.append(ln)
    def text(self):
        return '\n'.join(self.lines) + '\n'

def vr(lo, n):
    return f'v[{lo}:{lo+n-1}]'

def srd(a, d, lo, nbytes):
    a(f'    s_mov_b32 s{d}, s{lo}')
    a(f'    s_mov_b32 s{d+1}, s{lo+1}')
    a(f'    s_mov_b32 s{d+2}, {nbytes}')
    a(f'    s_mov_b32 s{d+3}, 0x00020000')

LANE, T4, T16, FOUR, ZERO, OUTOFF, WVA = 1, 2, 3, 4, 5, 6, 7
QLO, QHI, ACC, XA, XT, S, PP, MA, MB, EE = 8, 16, 24, 40, 56, 72, 76, 80, 84, 88
M0R, M1R, RA0, RA1, RT, EA, MAD, CHK, EA0, MAD0 = 92, 93, 94, 95, 96, 100, 101, 102, 103, 120
T = 104
EN = 112
PFD = 121
ATK = 122
ED, ES, B4, PS = 40, 44, 48, 52
WD, XN = 56, 60
IMGR, STO, WSA = 68, 69, 70
G4, RK = 40, 48

SX, SSRC, SDST, SW, SOUT, SWS = 20, 24, 28, 32, 36, 40
WID, SEGB, AMASK, RING, NT, TT = 44, 45, 46, 47, 48, 49
TAG = 50
SEMPTY, MODE, LOM = 54, 55, 56
M3 = 58
RESC = 60
VM = 68
X0 = 84
POLLN = 96
PRIME = 97

def gen_red(a, opt):
    a('.globl red_kernel\n.p2align 8\n.type red_kernel,@function\nred_kernel:')
    a(f'''
    s_cmp_lg_u32 s2, 0
    s_cbranch_scc1 R_end
    s_load_dwordx4 s[4:7], s[0:1], 48
    v_lshlrev_b32 v1, 2, v0
    s_waitcnt lgkmcnt(0)
    s_add_u32 s8, s6, {STAMP_OFF}
    s_addc_u32 s9, s7, 0
    v_add_u32 v20, 16, v0
    v_and_b32 v20, 63, v20
    v_lshlrev_b32 v20, 2, v20
    v_add_u32 v21, 32, v0
    v_and_b32 v21, 63, v21
    v_lshlrev_b32 v21, 2, v21
    v_mov_b32 v2, -1
    v_mov_b32 v3, 0
    s_mov_b32 s10, 0
R_l:''')
    for u in range(8):
        a(f'    global_load_dword v{8+u}, v1, s[8:9] offset:{256*u}')
    a('    s_waitcnt vmcnt(0)')
    for u in range(8):
        a(f'    v_min_u32 v2, v2, v{8+u}')
        a(f'    v_max_u32 v3, v3, v{8+u}')
    a('''
    v_add_u32 v1, 2048, v1
    s_add_u32 s10, s10, 1
    s_cmp_lt_u32 s10, 128
    s_cbranch_scc1 R_l''')
    for idx in (20, 21):
        a(f'''
    ds_bpermute_b32 v8, v{idx}, v2
    ds_bpermute_b32 v9, v{idx}, v3
    s_waitcnt lgkmcnt(0)
    v_min_u32 v2, v2, v8
    v_max_u32 v3, v3, v9''')
    src = 2 if opt.get('r_min') else 3
    a(f'''
    s_nop 1
    v_readlane_b32 s12, v2, 0
    s_nop 1
    v_subrev_u32 v10, s12, v{src}
    v_lshlrev_b32 v1, 2, v0
    s_mov_b64 exec, 0xffff
    global_store_dword v1, v10, s[4:5]''')
    if 'r_sel' in opt:
        a(f'''
    v_readlane_b32 s14, v10, {opt['r_sel']}
    s_memrealtime s[16:17]
    s_mul_i32 s14, s14, 10
    s_min_u32 s14, s14, 100000
    s_waitcnt lgkmcnt(0)
R_spin:
    s_memrealtime s[18:19]
    s_waitcnt lgkmcnt(0)
    s_sub_u32 s18, s18, s16
    s_cmp_lt_u32 s18, s14
    s_cbranch_scc1 R_spin''')
    a('''
R_end:
    s_endpgm''')

def build(opt):
    a = Asm()
    st = opt.get('stamps')
    nstamp = [0]
    def stamp(k):
        if st:
            a(f'    s_memrealtime s[98:99]')
            a('    s_waitcnt lgkmcnt(0)')
            a(f'    v_writelane_b32 v123, s98, {k}')
    lst = opt.get('list', 0)
    launch = (f'; @launch kernel={KNAME} grid=({NWG},1,1) block=(1024,1,1) lds={LDS}' if lst else
              f'; @launch grid=({NWG},1,1) block=(1024,1,1) lds={LDS}')
    if opt.get('red'):
        launch += '\n; @launch kernel=red_kernel grid=(1,1,1) block=(64,1,1) lds=0'
    a(f'''; FeatGraph (SDDMM sigmoid gate + SpMM) in one launch, one workgroup per CU.
{launch}
.amdgcn_target "amdgcn-amd-amdhsa--gfx950"
.text
.globl {KNAME}
.p2align 8
.type {KNAME},@function
{KNAME}:
    s_cmp_ge_u32 s2, {NWG}
    s_cbranch_scc1 L_end''')
    if st:
        a('    v_mov_b32 v123, 0')
    stamp(0)
    a(f'''
    s_load_dwordx16 s[4:19], s[0:1], 0
    v_lshlrev_b32 v{T4}, 2, v0
    v_lshrrev_b32 v{T}, 6, v0
    v_lshlrev_b32 v{T16}, 4, v0
    v_readfirstlane_b32 s{WID}, v{T}
    v_and_b32 v{LANE}, 63, v0
    v_cmp_gt_u32 s[{M3}:{M3+1}], {CH-3072}, v0
    s_mul_i32 s{X0}, s2, {CH*4}
    s_add_u32 s{X0+1}, s{X0}, 4096
    s_add_u32 s{X0+2}, s{X0}, 8192
    s_add_u32 s{X0+3}, s{X0}, 12288
    s_mov_b32 s{SSRC+2}, {E*4}
    s_mov_b32 s{SSRC+3}, 0x00020000
    s_mov_b32 s{SDST+2}, {E*4}
    s_mov_b32 s{SDST+3}, 0x00020000
    s_waitcnt lgkmcnt(0)
    s_load_dword s{TAG}, s[18:19], 0
    s_mov_b32 s{SSRC}, s6
    s_mov_b32 s{SSRC+1}, s7
    s_mov_b32 s{SDST}, s8
    s_mov_b32 s{SDST+1}, s9
    s_mov_b64 exec, s[{M3}:{M3+1}]
    s_cbranch_execz A_no3a
    buffer_load_dword v{ED+3}, v{T4}, s[{SDST}:{SDST+3}], s{X0+3} offen
    buffer_load_dword v{ES+3}, v{T4}, s[{SSRC}:{SSRC+3}], s{X0+3} offen
A_no3a:
    s_mov_b64 exec, -1''')
    for k in range(3):
        a(f'    buffer_load_dword v{ED+k}, v{T4}, s[{SDST}:{SDST+3}], s{X0+k} offen')
    for k in range(3):
        a(f'    buffer_load_dword v{ES+k}, v{T4}, s[{SSRC}:{SSRC+3}], s{X0+k} offen')
    srd(a, SX, 4, X_BYTES)
    a(f'''
    s_cmp_lt_u32 s{WID}, 8
    s_cselect_b32 s{SW}, s10, s12
    s_cselect_b32 s{SW+1}, s11, s13
    s_mov_b32 s{SW+2}, 8192
    s_mov_b32 s{SW+3}, 0x00020000
    v_and_b32 v{T}, 7, v0
    v_lshlrev_b32 v{T}, 19, v{T}
    s_lshl_b32 s{X0+4}, s{WID}, 15
    s_lshl_b32 s{X0+5}, s2, 7
    s_add_u32 s{X0+4}, s{X0+4}, s{X0+5}
    v_add_u32 v{T}, s{X0+4}, v{T}
    v_lshrrev_b32 v{T+1}, 4, v{LANE}        ; g
    v_lshl_add_u32 v{T+2}, v{T+1}, 4, v{T}
    v_lshl_add_u32 v{OUTOFF}, v{T+1}, 5, v{T}
    v_and_b32 v{T+3}, 0x1ff0, v{T16}
    buffer_load_dwordx4 {vr(WD,4)}, v{T+3}, s[{SW}:{SW+3}], 0 offen
    buffer_load_dwordx4 {vr(XN,4)}, v{T+2}, s[{SX}:{SX+3}], 0 offen
    buffer_load_dwordx4 {vr(XN+4,4)}, v{T+2}, s[{SX}:{SX+3}], 0 offen offset:64''')
    pf1 = opt.get('pf1', 0)
    pf2 = opt.get('pf2', 0)
    pf3 = opt.get('pf3', 0)
    def prefetch(lo, hi):
        m = ((1 << hi) - 1) ^ ((1 << lo) - 1)
        a(f'''
    s_lshr_b32 s{X0+6}, s2, 3
    s_lshl_b32 s{X0+6}, s{X0+6}, 4
    s_add_u32 s{X0+6}, s{X0+6}, s{WID}
    s_mul_i32 s{X0+6}, s{X0+6}, {49*128}
    v_lshlrev_b32 v{PFD}, 7, v{LANE}
    s_mov_b32 exec_lo, 0x{m & 0xffffffff:x}
    s_mov_b32 exec_hi, 0x{m >> 32:x}
    buffer_load_dword v{PFD}, v{PFD}, s[{SX}:{SX+3}], s{X0+6} offen
    s_mov_b64 exec, -1''')
    y = 3
    if pf1:
        prefetch(0, pf1)
        y += 1
    a(f'''
    v_mov_b32 v{T+4}, {EMPTY}
    v_mov_b32 v{T+5}, {EMPTY}
    v_mov_b32 v{T+6}, {EMPTY}
    v_mov_b32 v{T+7}, {EMPTY}
    v_add_u32 v{T}, {L_IMG}, v{T16}
    ds_write_b128 v{T}, {vr(T+4,4)}
    ds_write_b128 v{T}, {vr(T+4,4)} offset:16384
    ds_write_b128 v{T16}, {vr(T+4,4)} offset:{L_LIST}
    v_mov_b32 v{ZERO}, 0
    v_mov_b32 v{FOUR}, 4
    s_cmp_ge_u32 s{WID}, 8
    s_cbranch_scc1 I_hi
    ds_write_b128 v{T}, {vr(T+4,4)} offset:32768
    s_cmp_ge_u32 s{WID}, 6
    s_cbranch_scc1 I_done
    ds_write_b128 v{T16}, {vr(T+4,4)} offset:{L_LIST+16384}
    s_branch I_done
I_hi:
    s_cmp_ge_u32 s{WID}, 12
    s_cbranch_scc1 I_w12
    v_and_b32 v{T+2}, 0x3fc, v{T4}
    ds_write_b32 v{T+2}, v{ZERO} offset:{L_ACNT}
    s_branch I_done
I_w12:
    s_cmp_lg_u32 s{WID}, 12
    s_cbranch_scc1 I_done
    v_mul_u32_u24 v{T+2}, {GSTRIDE}, v{LANE}
    v_add_u32 v{T+2}, {L_LIST}, v{T+2}
    v_cmp_gt_u32 vcc, 16, v{LANE}
    v_lshlrev_b32 v{T+3}, 2, v{LANE}
    s_mov_b32 exec_hi, 0
    v_cndmask_b32 v{T+2}, 0, v{T+2}, vcc
    ds_write_b32 v{T+3}, v{T+2} offset:{L_BCNT}
    s_mov_b64 exec, 0xff
    v_cvt_f32_u32 v{T+2}, v{LANE}
    v_mul_f32 v{T+3}, v{T+2}, v{T+2}
    v_cvt_pk_bf16_f32 v{T+2}, v{T+3}, v{T+2}
    v_lshlrev_b32 v{T+3}, 4, v{LANE}
    ds_write_b32 v{T+3}, v{T+2} offset:{L_LUT}
    s_mov_b64 exec, -1
I_done:''')
    srd(a, SOUT, 14, X_BYTES)
    srd(a, SWS, 18, WS_USED)
    a(f'''
    s_lshr_b32 s{PRIME}, s2, 3
    s_and_b32 s{X0+4}, s2, 7
    s_lshl_b32 s{X0+4}, s{X0+4}, 5
    s_or_b32 s{PRIME}, s{PRIME}, s{X0+4}
    s_mul_i32 s{SEGB}, s2, {BSTRIDE}
    s_add_u32 s{SEGB}, s{SEGB}, {SEG_OFF}
    s_mov_b32 s{AMASK}, 0x003fff80
    s_lshl_b32 s{RING}, s{WID}, 13
    s_add_u32 s{RING}, s{RING}, {L_RING}
    s_mov_b32 s{SEMPTY}, {EMPTY}
    s_mov_b32 s{MODE}, 0
    s_mov_b32 s{LOM}, 0x00ff00ff
    s_mov_b32 s{LOM+1}, 0x00ff00ff
    v_lshrrev_b32 v{T+4}, 3, v0
    v_and_b32 v{T+5}, 7, v0
    v_mul_u32_u24 v{IMGR}, {ISTRIDE}, v{T+4}
    v_lshl_add_u32 v{IMGR}, v{T+5}, 2, v{IMGR}
    v_add_u32 v{IMGR}, {L_IMG}, v{IMGR}
    v_mul_u32_u24 v{STO}, {BSTRIDE}, v{T+4}
    v_lshl_add_u32 v{STO}, v{T+5}, 4, v{STO}
    v_and_b32 v{T+4}, 63, v{T+4}
    v_bfe_u32 v{T+6}, v{T+4}, 1, 1
    v_and_or_b32 v{T+6}, v{T+4}, 8, v{T+6}
    v_bfe_u32 v{T+7}, v{T+4}, 1, 2
    s_cmp_lt_u32 s{WID}, 8
    s_cselect_b64 s[{X0+4}:{X0+5}], -1, 0
    s_mov_b32 s{X0+6}, {L_WV}
    s_cselect_b32 s{X0+6}, {L_WQ}, s{X0+6}
    v_cndmask_b32 v{T+6}, v{T+7}, v{T+6}, s[{X0+4}:{X0+5}]
    v_lshlrev_b32 v{T+5}, 1, v{T+5}
    v_xor_b32 v{T+5}, v{T+5}, v{T+6}
    v_lshlrev_b32 v{T+5}, 3, v{T+5}
    v_lshl_add_u32 v{T+5}, v{T+4}, 7, v{T+5}
    v_add_u32 v{WSA}, s{X0+6}, v{T+5}
    v_xor_b32 v{WSA+1}, 8, v{WSA}
    s_waitcnt lgkmcnt(0)
    s_barrier
    ; tags
    s_add_u32 s{TAG}, s{TAG}, 0x400000
    s_and_b32 s{TAG}, s{TAG}, 0xffc00000
    s_xor_b32 s{TAG+1}, s{TAG}, 0xaa800000
    s_xor_b32 s{TAG+2}, s{TAG}, 0x55400000
    s_xor_b32 s{TAG+3}, s{TAG}, 0xffc00000''')
    stamp(1)
    def arank(k):
        a(f'''
    v_lshlrev_b32_sdwa v{B4+k}, 2, v{ED+k} dst_sel:DWORD dst_unused:UNUSED_PAD src0_sel:DWORD src1_sel:BYTE_0
    ds_add_rtn_u32 v{PS+k}, v{B4+k}, v{FOUR} offset:{L_ACNT}''')
    def aentry(k):
        a(f'''
    v_lshrrev_b32 v{ED+k}, 8, v{ED+k}
    v_lshl_or_b32 v{ES+k}, v{ES+k}, 7, v{ED+k}
    v_mad_u32_u24 v{B4+k}, v{B4+k}, {ISTRIDE//4}, s{X0+4}''')
    def aput(k):
        a(f'''
    v_min_u32 v{PS+k}, {ISTRIDE-4}, v{PS+k}
    v_add_u32 v{PS+k}, v{PS+k}, v{B4+k}
    ds_write_b32 v{PS+k}, v{ES+k}''')
    a(f'    s_mov_b32 s{X0+4}, {L_IMG}')
    a(f'    s_waitcnt vmcnt({y+3})')
    stamp(2)
    for k in range(3):
        arank(k)
    a(f'    s_waitcnt vmcnt({y})')
    for k in range(3):
        aentry(k)
    for k in range(3):
        a('    s_waitcnt lgkmcnt(2)')
        aput(k)
    a(f'''
    s_mov_b64 exec, s[{M3}:{M3+1}]
    s_cbranch_execz A_no3b''')
    arank(3)
    aentry(3)
    a('    s_waitcnt lgkmcnt(0)')
    aput(3)
    a(f'''
A_no3b:
    s_mov_b64 exec, -1
    s_waitcnt vmcnt({y-1})
    ds_write_b64 v{WSA}, {vr(WD,2)}
    ds_write_b64 v{WSA+1}, {vr(WD+2,2)}
    s_lshl_b32 s{X0}, s{PRIME}, 7
    s_add_u32 s{X0}, s{X0}, {SEG_OFF}
    s_add_u32 s{X0+1}, s{X0}, {128*BSTRIDE}
    s_add_u32 s{X0+2}, s{SEGB}, 16384
    v_add_u32 v{T}, {128*ISTRIDE}, v{IMGR}
    s_waitcnt lgkmcnt(0)
    s_barrier''')
    stamp(3)
    a(f'''
    ds_read2_b32 {vr(40,2)}, v{IMGR} offset0:0 offset1:8
    ds_read2_b32 {vr(42,2)}, v{IMGR} offset0:16 offset1:24
    ds_read2_b32 {vr(44,2)}, v{T} offset0:0 offset1:8
    ds_read2_b32 {vr(46,2)}, v{T} offset0:16 offset1:24
    s_waitcnt lgkmcnt(2)''')
    for r in range(4):
        a(f'    v_or_b32 v{40+r}, s{TAG+r}, v{40+r}')
    sf = opt.get('st', ' sc1')
    lf = opt.get('ld', ' sc1')
    a(f'''
    buffer_store_dwordx4 {vr(40,4)}, v{STO}, s[{SWS}:{SWS+3}], s{X0} offen{sf}
    s_waitcnt lgkmcnt(0)''')
    for r in range(4):
        a(f'    v_or_b32 v{44+r}, s{TAG+r}, v{44+r}')
    a(f'''
    buffer_store_dwordx4 {vr(44,4)}, v{STO}, s[{SWS}:{SWS+3}], s{X0+1} offen{sf}''')
    stamp(4)
    a(f'''
    s_cmp_lg_u32 s{WID}, 15
    s_cbranch_scc1 K_no
    s_mov_b64 exec, 1
    v_mov_b32 v{T+1}, 1
    global_atomic_add v{ATK}, v{ZERO}, v{T+1}, s[16:17] sc0 sc1
    s_mov_b64 exec, -1
K_no:''')
    early = opt.get('early', 0)
    def poll_issue():
        a(f'''
    buffer_load_dwordx4 {vr(EN,4)}, v{T16}, s[{SWS}:{SWS+3}], s{SEGB} offen{lf}
    buffer_load_dwordx4 {vr(EN+4,4)}, v{T16}, s[{SWS}:{SWS+3}], s{X0+2} offen{lf}''')
    if early:
        poll_issue()
    a(f'''
    v_lshrrev_b32 v{T}, 4, v{LANE}
    v_bfe_u32 v{T+1}, v{LANE}, 2, 2
    v_lshl_add_u32 v{T+2}, v{T}, 3, v{T+1}
    v_bfe_u32 v{T+3}, v{T+2}, 1, 1
    v_and_or_b32 v{T+3}, v{T+2}, 8, v{T+3}
    v_and_b32 v{T+4}, 3, v{LANE}
    v_lshlrev_b32 v{T+4}, 1, v{T+4}
    v_xor_b32 v{T+3}, v{T+3}, v{T+4}
    v_lshlrev_b32 v{T+3}, 3, v{T+3}
    v_lshl_add_u32 v{T}, v{T+2}, 7, v{T+3}
    v_add_u32 v{T}, {L_WQ}, v{T}
    v_xor_b32 v{T+1}, 8, v{T}
    v_xor_b32 v{T+2}, 64, v{T}
    v_xor_b32 v{T+3}, 0x48, v{T}''')
    wreg = [24, 32, 72, 80]
    for blk in range(4):
        for ks in range(2):
            for h in range(2):
                a(f'    ds_read_b64_tr_b16 {vr(wreg[blk]+ks*4+h*2,2)}, v{T+blk} offset:{(32*ks+4*h)*128}')
        if blk == 1:
            a('    s_waitcnt lgkmcnt(0)')
    a(f'''
    v_and_b32 v{T+4}, 15, v{LANE}           ; i
    v_lshrrev_b32 v{T+5}, 3, v{LANE}
    v_and_b32 v{T+6}, 6, v{T+5}
    v_and_b32 v{T+7}, 7, v{LANE}
    v_xor_b32 v{T+6}, v{T+6}, v{T+7}
    v_lshlrev_b32 v{CHK}, 4, v{T+6}
    s_mul_i32 s{X0+4}, s{WID}, {GSTRIDE}
    s_add_u32 s{X0+4}, s{X0+4}, {L_LIST}
    v_lshl_add_u32 v{EA0}, v{T+5}, 4, s{X0+4}
    v_bfe_u32 v{T+6}, v{LANE}, 3, 2
    v_lshl_add_u32 v{T+6}, v{T+7}, 2, v{T+6}
    v_lshl_add_u32 v{MAD0}, v{T+6}, 2, s{X0+4}
    v_lshrrev_b32 v{T+1}, 4, v{LANE}        ; g
    v_and_b32 v{T+6}, 6, v{T+4}
    v_xor_b32 v{T+6}, v{T+6}, v{T+1}
    v_lshlrev_b32 v{T+6}, 4, v{T+6}
    v_lshl_add_u32 v{T+6}, v{T+4}, 7, v{T+6}
    v_add_u32 v{RA0}, s{RING}, v{T+6}
    v_xor_b32 v{RA1}, 64, v{RA0}
    v_lshrrev_b32 v{T+6}, 2, v{LANE}        ; row = 4g+r
    v_and_b32 v{T+7}, 6, v{T+6}
    v_bfe_u32 v{T+5}, v{LANE}, 1, 1
    v_xor_b32 v{T+7}, v{T+7}, v{T+5}
    v_lshlrev_b32 v{T+7}, 4, v{T+7}
    v_lshl_add_u32 v{T+7}, v{T+6}, 7, v{T+7}
    v_and_b32 v{T+5}, 1, v{LANE}
    v_lshl_add_u32 v{T+7}, v{T+5}, 3, v{T+7}
    v_add_u32 v{RT}, s{RING}, v{T+7}
    v_xor_b32 v{RT+1}, 32, v{RT}
    v_xor_b32 v{RT+2}, 64, v{RT}
    v_xor_b32 v{RT+3}, 0x60, v{RT}
    v_bfe_u32 v{T+5}, v{T+6}, 1, 2
    v_and_b32 v{T+7}, 3, v{LANE}
    v_lshl_or_b32 v{T+5}, v{T+7}, 2, v{T+5}
    v_lshlrev_b32 v{T+5}, 3, v{T+5}
    v_lshl_add_u32 v{WVA}, v{T+6}, 7, v{T+5}
    s_waitcnt vmcnt({2 + (2 if early else 0)}) lgkmcnt(0)''')
    for blk in range(4):
        a(f'    v_mfma_f32_16x16x32_bf16 {vr(QLO+4*blk,4)}, {vr(wreg[blk],4)}, {vr(XN,4)}, 0')
    for blk in range(4):
        a(f'    v_mfma_f32_16x16x32_bf16 {vr(QLO+4*blk,4)}, {vr(wreg[blk]+4,4)}, {vr(XN+4,4)}, {vr(QLO+4*blk,4)}')
    if not early:
        poll_issue()
    if pf2:
        prefetch(pf1, pf2)
    a(f'    s_mov_b32 s{X0+4}, 0x{f32bits(-1.4426950408889634/8):08x}')
    a(f'''
    v_mov_b32 v{MA+1}, 0x00003f80
    v_mov_b32 v{MA+2}, 0
    v_mov_b32 v{MA+3}, 0
    v_mov_b32 v{MB}, 0
    v_mov_b32 v{MB+1}, 0
    v_mov_b32 v{MB+2}, 0
    v_mov_b32 v{MB+3}, 0
    v_and_b32 v{T+5}, 7, v{LANE}
    v_cvt_f32_u32 v{T+5}, v{T+5}            ; j'
    v_mov_b32 v{T+6}, 0x71800000            ; BIG = 2^100
    v_mul_f32 v{T+7}, v{T+5}, v{T+6}
    v_mul_f32 v{T+5}, v{T+5}, v{T+7}
    v_mul_f32 v{T+7}, -2.0, v{T+7}
    s_mov_b32 exec_lo, 0xff0000ff
    s_mov_b32 exec_hi, 0
    v_cvt_pk_bf16_f32 v{MB}, v{T+6}, v{T+7}
    v_cvt_pk_bf16_f32 v{MB+1}, v{T+5}, 0
    s_mov_b64 exec, -1''')
    for r in range(16):
        a(f'    v_mul_f32 v{QLO+r}, s{X0+4}, v{QLO+r}')
    for r in range(8):
        a(f'    v_cvt_pk_bf16_f32 v{T+r}, v{QLO+2*r}, v{QLO+2*r+1}')
    for r in range(8):
        a(f'    v_cndmask_b32 v{QLO+r}, 0, v{T+r}, s[{LOM}:{LOM+1}]')
        a(f'    v_cndmask_b32 v{QHI+r}, v{T+r}, 0, s[{LOM}:{LOM+1}]')
    for r in range(16):
        a(f'    v_mov_b32 v{ACC+r}, 0')
    stamp(5)
    S0, S1 = X0+4, X0+6
    a(f'''
    s_mov_b32 s{POLLN}, 0
    s_mov_b32 s{X0+8}, 0x400000
    s_mov_b64 s[{S0}:{S0+1}], -1
    s_mov_b64 s[{S1}:{S1+1}], -1
    s_waitcnt vmcnt({1 if pf2 else 0})
P_loop:''')
    for h, sm in ((0, S0), (1, S1)):
        a(f'    s_mov_b64 exec, s[{sm}:{sm+1}]')
        for r in range(4):
            a(f'    v_xor_b32 v{EN+4*h+r}, s{TAG+r}, v{EN+4*h+r}')
        a(f'''
    v_or3_b32 v{T}, v{EN+4*h}, v{EN+4*h+1}, v{EN+4*h+2}
    v_or_b32 v{T}, v{T}, v{EN+4*h+3}
    v_cmp_le_u32 s[{sm}:{sm+1}], s{X0+8}, v{T}''')
    a(f'''
    s_or_b64 exec, s[{S0}:{S0+1}], s[{S1}:{S1+1}]
    s_cbranch_execz P_done
    s_add_u32 s{POLLN}, s{POLLN}, 1
    s_cmp_gt_u32 s{POLLN}, {opt.get('pollmax', 2000)}
    s_cbranch_scc1 P_giveup
    s_mov_b64 exec, s[{S0}:{S0+1}]
    s_cbranch_execz P_n0
    buffer_load_dwordx4 {vr(EN,4)}, v{T16}, s[{SWS}:{SWS+3}], s{SEGB} offen{lf}
P_n0:
    s_mov_b64 exec, s[{S1}:{S1+1}]
    s_cbranch_execz P_n1
    buffer_load_dwordx4 {vr(EN+4,4)}, v{T16}, s[{SWS}:{SWS+3}], s{X0+2} offen{lf}
P_n1:
    s_waitcnt vmcnt(0)
    s_branch P_loop
P_done:
    s_mov_b64 exec, -1''')
    if st:
        a(f'    v_writelane_b32 v123, s{POLLN}, 15')
    stamp(6)
    if pf3:
        prefetch(max(pf1, pf2), pf3)
    a(f'''
    v_cmp_ne_u32 s[{VM+6}:{VM+7}], s{SEMPTY}, v{EN+3}
    v_cmp_ne_u32 s[{VM+14}:{VM+15}], s{SEMPTY}, v{EN+7}
    s_or_b64 s[{S0}:{S0+1}], s[{VM+6}:{VM+7}], s[{VM+14}:{VM+15}]
    s_cbranch_scc1 R_rare
R_fast:''')
    def brank(r):
        m = VM + 2*r
        a(f'''
    v_cmp_ne_u32 s[{m}:{m+1}], s{SEMPTY}, v{EN+r}
    v_and_b32 v{G4+r}, 15, v{EN+r}
    v_lshlrev_b32 v{G4+r}, 2, v{G4+r}
    s_mov_b64 exec, s[{m}:{m+1}]
    ds_add_rtn_u32 v{RK+r}, v{G4+r}, v{FOUR} offset:{L_BCNT}
    s_mov_b64 exec, -1''')
    def bput(r):
        m = VM + 2*r
        a(f'''
    s_mov_b64 exec, s[{m}:{m+1}]
    ds_write_b32 v{RK+r}, v{EN+r}''')
    order = [0, 4, 1, 5, 2, 6]
    for r in order:
        brank(r)
    for i, r in enumerate(order):
        a(f'    s_waitcnt lgkmcnt(5)')
        bput(r)
    a(f'''
    s_mov_b64 exec, -1
    v_and_b32 v{T}, 31, v{LANE}
    v_lshlrev_b32 v{T}, 2, v{T}
    v_mov_b32 v{EA}, v{EA0}
    v_mov_b32 v{MAD}, v{MAD0}
    v_and_b32 v{T+2}, 15, v{LANE}
    v_mul_u32_u24 v{T+2}, {GSTRIDE}, v{T+2}
    v_add_u32 v{T+2}, {L_LIST}, v{T+2}
    s_waitcnt lgkmcnt(0)
    s_barrier''')
    stamp(7)
    a(f'''
B_counts:
    ds_read_b32 v{T+1}, v{T} offset:{L_BCNT}
    ds_read_b128 {vr(EE,4)}, v{EA}
    ds_read_b128 {vr(T+4,4)}, v{EA} offset:128
    ds_read_b32 v{M0R}, v{MAD}
    s_waitcnt lgkmcnt(3)
    v_sub_u32 v{T+3}, v{T+1}, v{T+2}
    s_mov_b64 exec, 0x1ffffff
    v_cmp_lt_u32 vcc, {GSTRIDE}, v{T+3}
    v_cmp_ne_u32 s[{X0}:{X0+1}], 0, v{T+1}
    s_mov_b64 exec, -1
    v_readlane_b32 s{NT}, v{T+3}, s{WID}
    s_and_b32 s{X0+2}, vcc_lo, 0xffff
    s_and_b32 s{X0}, s{X0}, 0x1ff0000
    s_or_b32 s{X0+3}, s{X0+2}, s{X0}
    s_or_b32 s{X0+3}, s{X0+3}, s{MODE}
    s_cbranch_scc1 C_slowcnt
B_cntok:
    s_add_u32 s{NT}, s{NT}, 127
    s_lshr_b32 s{NT}, s{NT}, 7              ; tiles
    s_cbranch_scc0 B_loopdone
    s_setprio 3
    s_waitcnt lgkmcnt(0)''')
    gf = opt.get('gather', '')
    def dma(ereg, slot):
        for q in range(4):
            if q == 0:
                a(f'    s_mov_b32 m0, s{RING}' if slot == 0 else f'    s_add_u32 m0, s{RING}, 4096')
            else:
                a('    s_add_u32 m0, m0, 1024')
            a(f'    v_and_or_b32 v{ereg+q}, v{ereg+q}, s{AMASK}, v{CHK}')
            a(f'    buffer_load_dwordx4 v{ereg+q}, s[{SX}:{SX+3}], 0 offen{gf} lds')
    dma(EE, 0)
    a(f'''
    s_cmp_lt_u32 s{NT}, 2
    s_cbranch_scc1 B_one''')
    dma(T+4, 1)
    a(f'''
B_one:
    ds_read_b128 {vr(EE,4)}, v{EA} offset:256
    v_and_b32 v{M0R}, 0x70, v{M0R}
    s_mov_b32 s{TT}, 1                      ; t+1''')
    stamp(8)
    a('B_loop:')
    pk = opt.get('pk', 0)
    def body(slot):
        so = slot * 4096
        mcur, mnext = (M0R, M1R) if slot == 0 else (M1R, M0R)
        eo = slot * 128
        th = (5, 3, 1)
        if opt.get('prio', 1) and slot == 0:
            a(f'''
    s_sub_u32 s{X0}, s{NT}, s{TT}
    s_cmp_ge_u32 s{X0}, 6
    s_cbranch_scc1 B_p{slot}
    s_setprio 2
    s_cmp_ge_u32 s{X0}, 4
    s_cbranch_scc1 B_p{slot}
    s_setprio 1
    s_cmp_ge_u32 s{X0}, 2
    s_cbranch_scc1 B_p{slot}
    s_setprio 0
B_p{slot}:''')
        a(f'''
    ds_read_b32 v{MA}, v{mcur} offset:{L_LUT}
    ds_read_b32 v{mnext}, v{MAD} offset:{eo+128}
    s_cmp_lt_u32 s{TT}, s{NT}
    s_cbranch_scc1 B_w4_{slot}
    s_waitcnt vmcnt(0)
B_w4_{slot}:
    s_waitcnt vmcnt(4)
    ds_read_b128 {vr(XA,4)}, v{RA0} offset:{so}
    ds_read_b128 {vr(XA+4,4)}, v{RA1} offset:{so}
    ds_read_b128 {vr(XA+8,4)}, v{RA0} offset:{so+2048}
    ds_read_b128 {vr(XA+12,4)}, v{RA1} offset:{so+2048}''')
        for fb in range(4):
            a(f'    ds_read_b64_tr_b16 {vr(XT+4*fb,2)}, v{RT+fb} offset:{so}')
            a(f'    ds_read_b64_tr_b16 {vr(XT+4*fb+2,2)}, v{RT+fb} offset:{so+2048}')
        a(f'''
    s_add_u32 s{TT}, s{TT}, 1               ; t+2
    s_waitcnt lgkmcnt(12)
    v_mfma_f32_16x16x32_bf16 {vr(S,4)}, {vr(MA,4)}, {vr(MB,4)}, 0
    v_and_b32 v{mnext}, 0x70, v{mnext}
    s_waitcnt lgkmcnt(11)
    v_mfma_f32_16x16x32_bf16 {vr(S,4)}, {vr(XA,4)}, {vr(QLO,4)}, {vr(S,4)}
    s_waitcnt lgkmcnt(10)
    v_mfma_f32_16x16x32_bf16 {vr(S,4)}, {vr(XA+4,4)}, {vr(QLO+4,4)}, {vr(S,4)}
    s_waitcnt lgkmcnt(9)
    v_mfma_f32_16x16x32_bf16 {vr(S,4)}, {vr(XA+8,4)}, {vr(QHI,4)}, {vr(S,4)}
    s_waitcnt lgkmcnt(8)
    v_mfma_f32_16x16x32_bf16 {vr(S,4)}, {vr(XA+12,4)}, {vr(QHI+4,4)}, {vr(S,4)}
    s_waitcnt lgkmcnt(0)
    s_cmp_lt_u32 s{TT}, s{NT}
    s_cbranch_scc0 B_skip_{slot}''')
        dma(EE, slot)
        a(f'''
    ds_read_b128 {vr(EE,4)}, v{EA} offset:{eo+384}
B_cont_{slot}:''')
        for r in range(4):
            a(f'    v_exp_f32 v{S+r}, v{S+r}')
        if slot == 1:
            a(f'    v_add_u32 v{EA}, 256, v{EA}')
            a(f'    v_add_u32 v{MAD}, 256, v{MAD}')
        if pk:
            if slot == 0:
                a('    s_nop 0')
            a(f'    v_pk_add_f32 {vr(S,2)}, {vr(S,2)}, 1.0 op_sel_hi:[1,0]')
            a(f'    v_pk_add_f32 {vr(S+2,2)}, {vr(S+2,2)}, 1.0 op_sel_hi:[1,0]')
        else:
            for r in range(4):
                a(f'    v_add_f32 v{S+r}, 1.0, v{S+r}')
        for r in range(4):
            a(f'    v_rcp_f32 v{S+r}, v{S+r}')
        a(f'''
    v_cvt_pk_bf16_f32 v{PP}, v{S}, v{S+1}
    s_cmp_gt_u32 s{TT}, s{NT}
    v_cvt_pk_bf16_f32 v{PP+1}, v{S+2}, v{S+3}
    s_nop 0
    v_mov_b32_dpp v{PP+2}, v{PP} row_ror:8 row_mask:0xf bank_mask:0xf
    v_mov_b32_dpp v{PP+3}, v{PP+1} row_ror:8 row_mask:0xf bank_mask:0xf
    s_nop 1''')
        for fb in range(4):
            a(f'    v_mfma_f32_16x16x32_bf16 {vr(ACC+4*fb,4)}, {vr(XT+4*fb,4)}, {vr(PP,4)}, {vr(ACC+4*fb,4)}')
        a('    s_cbranch_scc1 B_loopdone' if slot == 0 else '    s_cbranch_scc0 B_loop')
    body(0)
    body(1)
    a(f'''
B_loopdone:
    s_cmp_lg_u32 s{MODE}, 0
    s_cbranch_scc1 C_next
B_epi:''')
    stamp(9)
    a(f'''
    v_xor_b32 v{T+1}, 8, v{WVA}
    v_xor_b32 v{T+2}, 16, v{WVA}
    v_xor_b32 v{T+3}, 24, v{WVA}''')
    for blk in range(4):
        ad = WVA if blk == 0 else T+blk
        for ks in range(2):
            for h in range(2):
                a(f'    ds_read_b64_tr_b16 {vr(XA+blk*8+ks*4+h*2,2)}, v{ad} offset:{L_WV+(32*ks+16*h)*128}')
        if blk == 2:
            a('    s_waitcnt lgkmcnt(8)')
    for r in range(8):
        a(f'    v_cvt_pk_bf16_f32 v{S+r}, v{ACC+2*r}, v{ACC+2*r+1}')
    for blk in range(4):
        a(f'    s_waitcnt lgkmcnt({12-4*blk if blk else 8})' if blk < 2 else f'    s_waitcnt lgkmcnt({12-4*blk})')
        if blk == 0:
            a('    s_nop 0')
        a(f'    v_mfma_f32_16x16x32_bf16 {vr(QLO+4*blk,4)}, {vr(XA+blk*8,4)}, {vr(S,4)}, 0')
        a(f'    v_mfma_f32_16x16x32_bf16 {vr(QLO+4*blk,4)}, {vr(XA+blk*8+4,4)}, {vr(S+4,4)}, {vr(QLO+4*blk,4)}')
    a(f'''
    s_cmp_lg_u32 s{WID}, 15
    s_cbranch_scc1 K_no2
    s_waitcnt vmcnt(0)
    v_readfirstlane_b32 s{X0}, v{ATK}
    s_cmp_lg_u32 s{X0}, {NWG-1}
    s_cbranch_scc1 K_no2
    s_mov_b64 exec, 1
    v_mov_b32 v{T}, s{TAG}
    global_store_dword v{ZERO}, v{T}, s[18:19]
    s_mov_b64 exec, -1
K_no2:
    s_nop 4''')
    for r in range(8):
        a(f'    v_cvt_pk_bf16_f32 v{XA+r}, v{QLO+2*r}, v{QLO+2*r+1}')
    of = opt.get('out', '')
    a(f'''
    s_mov_b64 exec, s[{LOM}:{LOM+1}]
    buffer_store_dwordx4 {vr(XA,4)}, v{OUTOFF}, s[{SOUT}:{SOUT+3}], 0 offen{of}
    buffer_store_dwordx4 {vr(XA+4,4)}, v{OUTOFF}, s[{SOUT}:{SOUT+3}], 0 offen offset:16{of}''')
    if st:
        a('    s_mov_b64 exec, -1')
        stamp(10)
        a('    s_waitcnt vmcnt(0)')
        stamp(11)
        a(f'''
    s_add_u32 s{X0}, s18, {STAMP_OFF}
    s_addc_u32 s{X0+1}, s19, 0
    s_lshl_b32 s{X0+2}, s2, 4
    s_add_u32 s{X0+2}, s{X0+2}, s{WID}
    s_lshl_b32 s{X0+2}, s{X0+2}, 6
    v_lshl_add_u32 v{T}, v{LANE}, 2, s{X0+2}
    s_mov_b64 exec, 0xffff
    global_store_dword v{T}, v123, s[{X0}:{X0+1}]''')
    a(f'''
L_end:
    s_endpgm
B_skip_0:
    s_nop 7
    s_branch B_cont_0
B_skip_1:
    s_nop 7
    s_branch B_cont_1''')
    def drop_lines(h, sm, tag):
        t0, t1 = X0+8, X0+10
        a(f'''
    s_wqm_b64 s[{sm}:{sm+1}], s[{sm}:{sm+1}]
    s_lshr_b64 s[{t0}:{t0+1}], s[{sm}:{sm+1}], 4
    s_and_b32 s{t0}, s{t0}, 0x0f0f0f0f
    s_and_b32 s{t0+1}, s{t0+1}, 0x0f0f0f0f
    s_lshl_b64 s[{t1}:{t1+1}], s[{sm}:{sm+1}], 4
    s_and_b32 s{t1}, s{t1}, 0xf0f0f0f0
    s_and_b32 s{t1+1}, s{t1+1}, 0xf0f0f0f0
    s_or_b64 s[{sm}:{sm+1}], s[{sm}:{sm+1}], s[{t0}:{t0+1}]
    s_or_b64 exec, s[{sm}:{sm+1}], s[{t1}:{t1+1}]''')
        for r in range(4):
            a(f'    v_mov_b32 v{EN+4*h+r}, {EMPTY}')
        a(f'''
    v_lshrrev_b32 v{T}, 3, v0
    v_lshrrev_b32 v{T+1}, 5, v{T}
    v_lshlrev_b32 v{T+1}, 2, v{T+1}
    v_lshlrev_b32 v{T}, v{T}, 1
    ds_or_b32 v{T+1}, v{T} offset:{L_RESC + 16*h}
    s_mov_b64 exec, -1''')
    a('P_giveup:')
    a('    s_mov_b64 exec, -1')
    drop_lines(0, S0, 'g0')
    drop_lines(1, S1, 'g1')
    a('    s_branch P_done')
    a(f'''
R_rare:
    s_and_b32 s{S0}, s{VM+6}, 0x80808080
    s_and_b32 s{S0+1}, s{VM+7}, 0x80808080
    s_and_b32 s{S1}, s{VM+14}, 0x80808080
    s_and_b32 s{S1+1}, s{VM+15}, 0x80808080''')
    drop_lines(0, S0, 'r0')
    drop_lines(1, S1, 'r1')
    brank(3)
    brank(7)
    a('    s_waitcnt lgkmcnt(0)')
    bput(3)
    bput(7)
    a(f'''
    s_mov_b64 exec, -1
    s_branch R_fast
C_slowcnt:
    s_cmp_lg_u32 s{MODE}, 0
    s_cbranch_scc1 C_careful''')
    for k in range(8):
        a(f'    v_readlane_b32 s{RESC+k}, v{T+1}, {16+k}')
    a(f'''
    s_mov_b32 s{MODE}, 2
    s_cmp_lg_u32 s{X0+2}, 0
    s_cbranch_scc1 C_next
    s_mov_b32 s{MODE}, 1
    s_branch B_cntok
C_careful:
    s_min_u32 s{NT}, s{NT}, {GSTRIDE}
    s_bitcmp1_b32 s{X0}, 24
    s_cselect_b32 s{MODE}, 2, 1
    s_branch B_cntok
C_next:
    s_setprio 0
    s_waitcnt vmcnt(0) lgkmcnt(0)
    s_barrier
    s_cmp_eq_u32 s{MODE}, 2
    s_cbranch_scc1 C_round
    s_mov_b32 s{X0}, -1''')
    for k in range(7, -1, -1):
        a(f'''
    s_ff1_i32_b32 s{X0+1}, s{RESC+k}
    s_add_u32 s{X0+1}, s{X0+1}, {32*k}
    s_cmp_lg_u32 s{RESC+k}, 0
    s_cselect_b32 s{X0}, s{X0+1}, s{X0}''')
    a(f'''
    s_cmp_eq_u32 s{X0}, -1
    s_cbranch_scc1 B_epi
    s_lshr_b32 s{X0+1}, s{X0}, 5
    s_lshl_b32 s{X0+2}, 1, s{X0}''')
    for k in range(8):
        a(f'''
    s_andn2_b32 s{X0+3}, s{RESC+k}, s{X0+2}
    s_cmp_eq_u32 s{X0+1}, {k}
    s_cselect_b32 s{RESC+k}, s{X0+3}, s{RESC+k}''')
    a(f'''
    s_and_b32 s{X0+2}, s{X0}, 31
    s_lshl_b32 s{X0+2}, s{X0+2}, 3
    s_or_b32 s{X0}, s{X0+2}, s{X0+1}
    s_mul_i32 s{X0}, s{X0}, {CH*4}''')
    for k in range(4):
        a(f'''
    buffer_load_dword v{ED+k}, v{T4}, s[{SDST}:{SDST+3}], s{X0} offen
    buffer_load_dword v{ES+k}, v{T4}, s[{SSRC}:{SSRC+3}], s{X0} offen
    s_add_u32 s{X0}, s{X0}, 4096''')
    for r in range(4, 8):
        a(f'    v_mov_b32 v{EN+r}, {EMPTY}')
    a(f'    v_mov_b32 v{T+1}, {EMPTY}')
    a('    s_waitcnt vmcnt(0)')
    for k in range(4):
        a(f'''
    v_and_b32 v{T}, 255, v{ED+k}
    v_cmp_eq_u32 vcc, s2, v{T}
    v_lshrrev_b32 v{ED+k}, 8, v{ED+k}
    v_lshl_or_b32 v{ES+k}, v{ES+k}, 7, v{ED+k}''')
        if k == 3:
            a(f'    s_and_b64 vcc, vcc, s[{M3}:{M3+1}]')
        a(f'    v_cndmask_b32 v{EN+k}, v{T+1}, v{ES+k}, vcc')
    a(f'''
C_round:
    v_mov_b32 v{T+4}, {EMPTY}
    v_mov_b32 v{T+5}, {EMPTY}
    v_mov_b32 v{T+6}, {EMPTY}
    v_mov_b32 v{T+7}, {EMPTY}
    ds_write_b128 v{T16}, {vr(T+4,4)} offset:{L_LIST}
    s_cmp_ge_u32 s{WID}, 6
    s_cbranch_scc1 C_i1
    ds_write_b128 v{T16}, {vr(T+4,4)} offset:{L_LIST+16384}
C_i1:
    v_and_b32 v{T+2}, 15, v{LANE}
    v_mul_u32_u24 v{T+2}, {GSTRIDE}, v{T+2}
    v_add_u32 v{T+2}, {L_LIST}, v{T+2}
    v_and_b32 v{T}, 31, v{LANE}
    v_lshlrev_b32 v{T}, 2, v{T}
    s_cmp_lg_u32 s{WID}, 12
    s_cbranch_scc1 C_i2
    s_mov_b64 exec, 0xffff
    ds_write_b32 v{T}, v{T+2} offset:{L_BCNT}
    ds_write_b32 v{ZERO}, v{ZERO} offset:{L_PEND}
    s_mov_b64 exec, -1
C_i2:
    s_waitcnt lgkmcnt(0)
    s_barrier
    s_mov_b32 s{X0+4}, {GSTRIDE//4}
    s_mov_b32 s{X0+5}, {L_LIST+GSTRIDE}''')
    for r in range(8):
        brank(r)
        m = VM + 2*r
        a(f'''
    v_mul_u32_u24 v{T+3}, s{X0+4}, v{G4+r}
    v_add_u32 v{T+3}, s{X0+5}, v{T+3}
    s_mov_b64 exec, s[{m}:{m+1}]
    s_waitcnt lgkmcnt(0)
    v_cmp_lt_u32 vcc, v{RK+r}, v{T+3}
    s_and_saveexec_b64 s[{X0+6}:{X0+7}], vcc
    ds_write_b32 v{RK+r}, v{EN+r}
    v_mov_b32 v{EN+r}, {EMPTY}
    s_andn2_b64 exec, s[{X0+6}:{X0+7}], exec
    ds_write_b32 v{ZERO}, v{FOUR} offset:{L_PEND}
    s_mov_b64 exec, -1''')
    a(f'''
    v_mov_b32 v{EA}, v{EA0}
    v_mov_b32 v{MAD}, v{MAD0}
    s_waitcnt lgkmcnt(0)
    s_barrier
    s_branch B_counts''')
    if opt.get('red'):
        gen_red(a, opt)
    a(f'''
.section .rodata,"a"
.p2align 6
.amdhsa_kernel {KNAME}
  .amdhsa_next_free_vgpr 128
  .amdhsa_next_free_sgpr 102
  .amdhsa_accum_offset 128
  .amdhsa_group_segment_fixed_size 0
  .amdhsa_kernarg_size 64
  .amdhsa_user_sgpr_count 2
  .amdhsa_user_sgpr_kernarg_segment_ptr 1
  .amdhsa_system_sgpr_workgroup_id_x 1
.end_amdhsa_kernel''')
    if opt.get('red'):
        a('''
.p2align 6
.amdhsa_kernel red_kernel
  .amdhsa_next_free_vgpr 32
  .amdhsa_next_free_sgpr 48
  .amdhsa_accum_offset 32
  .amdhsa_group_segment_fixed_size 0
  .amdhsa_kernarg_size 64
  .amdhsa_user_sgpr_count 2
  .amdhsa_user_sgpr_kernarg_segment_ptr 1
  .amdhsa_system_sgpr_workgroup_id_x 1
.end_amdhsa_kernel''')
    return a.text()

if __name__ == '__main__':
    out = sys.argv[1]
    opt = {}
    for kv in sys.argv[2:]:
        k, v = kv.split('=')
        try:
            v = int(v)
        except ValueError:
            v = '' if v == 'none' else ' ' + v.replace('+', ' ')
        opt[k] = v
    open(out, 'w').write(build(opt))
```

```python
import sys, struct

N, E, D = 25000, 800000, 64
NWG = 256
CH = E // NWG
BSTRIDE = 257 * 128
SEG_OFF = 4096
WS_USED = SEG_OFF + 256 * BSTRIDE
X_BYTES = N * 128
EMPTY = 0x003FFFFF
KNAME = 'standalone__kernel_systems_refs_featgraph__graph_kernel'

L_ACNT = 0
L_BCNT = 1024
L_RESC = 1088
L_PEND = 1120
L_LUT = 1152
L_WV = 2048
L_LIST = 10240
GSTRIDE = 1408
L_RING = 32768
L_WQ = 98304
ISTRIDE = 160
L_IMG = 163840 - 256 * ISTRIDE
LDS = 163840
STAMP_OFF = 0x1000000

def f32bits(x):
    return struct.unpack('<I', struct.pack('<f', x))[0]

class Asm:
    def __init__(self):
        self.lines = []
    def __call__(self, s):
        for ln in s.strip('\n').split('\n'):
            if ln.strip():
                self.lines.append(ln)
    def text(self):
        return '\n'.join(self.lines) + '\n'

def vr(lo, n):
    return f'v[{lo}:{lo+n-1}]'

def srd(a, d, lo, nbytes):
    a(f'    s_mov_b32 s{d}, s{lo}')
    a(f'    s_mov_b32 s{d+1}, s{lo+1}')
    a(f'    s_mov_b32 s{d+2}, {nbytes}')
    a(f'    s_mov_b32 s{d+3}, 0x00020000')

LANE, T4, T16, FOUR, ZERO, OUTOFF, WVA = 1, 2, 3, 4, 5, 6, 7
QLO, QHI, ACC, XA, XT, S, PP, MA, MB, EE = 8, 16, 24, 40, 56, 72, 76, 80, 84, 88
M0R, M1R, RA0, RA1, RT, EA, MAD, CHK, EA0, MAD0 = 92, 93, 94, 95, 96, 100, 101, 102, 103, 120
T = 104
EN = 112
PFD = 121
ATK = 122
ED, ES, B4, PS = 40, 44, 48, 52
WD, XN = 56, 60
IMGR, STO, WSA = 68, 69, 70
G4, RK = 40, 48

SX, SSRC, SDST, SW, SOUT, SWS = 20, 24, 28, 32, 36, 40
WID, SEGB, AMASK, RING, NT, TT = 44, 45, 46, 47, 48, 49
TAG = 50
SEMPTY, MODE, LOM = 54, 55, 56
M3 = 58
RESC = 60
VM = 68
X0 = 84
POLLN = 96
PRIME = 97

def gen_red(a, opt):
    a('.globl red_kernel\n.p2align 8\n.type red_kernel,@function\nred_kernel:')
    a(f'''
    s_cmp_lg_u32 s2, 0
    s_cbranch_scc1 R_end
    s_load_dwordx4 s[4:7], s[0:1], 48
    v_lshlrev_b32 v1, 2, v0
    s_waitcnt lgkmcnt(0)
    s_add_u32 s8, s6, {STAMP_OFF}
    s_addc_u32 s9, s7, 0
    v_add_u32 v20, 16, v0
    v_and_b32 v20, 63, v20
    v_lshlrev_b32 v20, 2, v20
    v_add_u32 v21, 32, v0
    v_and_b32 v21, 63, v21
    v_lshlrev_b32 v21, 2, v21
    v_mov_b32 v2, -1
    v_mov_b32 v3, 0
    s_mov_b32 s10, 0
R_l:''')
    for u in range(8):
        a(f'    global_load_dword v{8+u}, v1, s[8:9] offset:{256*u}')
    a('    s_waitcnt vmcnt(0)')
    for u in range(8):
        a(f'    v_min_u32 v2, v2, v{8+u}')
        a(f'    v_max_u32 v3, v3, v{8+u}')
    a('''
    v_add_u32 v1, 2048, v1
    s_add_u32 s10, s10, 1
    s_cmp_lt_u32 s10, 128
    s_cbranch_scc1 R_l''')
    for idx in (20, 21):
        a(f'''
    ds_bpermute_b32 v8, v{idx}, v2
    ds_bpermute_b32 v9, v{idx}, v3
    s_waitcnt lgkmcnt(0)
    v_min_u32 v2, v2, v8
    v_max_u32 v3, v3, v9''')
    src = 2 if opt.get('r_min') else 3
    a(f'''
    s_nop 1
    v_readlane_b32 s12, v2, 0
    s_nop 1
    v_subrev_u32 v10, s12, v{src}
    v_lshlrev_b32 v1, 2, v0
    s_mov_b64 exec, 0xffff
    global_store_dword v1, v10, s[4:5]''')
    if 'r_sel' in opt:
        a(f'''
    v_readlane_b32 s14, v10, {opt['r_sel']}
    s_memrealtime s[16:17]
    s_mul_i32 s14, s14, 10
    s_min_u32 s14, s14, 100000
    s_waitcnt lgkmcnt(0)
R_spin:
    s_memrealtime s[18:19]
    s_waitcnt lgkmcnt(0)
    s_sub_u32 s18, s18, s16
    s_cmp_lt_u32 s18, s14
    s_cbranch_scc1 R_spin''')
    a('''
R_end:
    s_endpgm''')

def build(opt):
    a = Asm()
    st = opt.get('stamps')
    nstamp = [0]
    def stamp(k):
        if st:
            a(f'    s_memrealtime s[98:99]')
            a('    s_waitcnt lgkmcnt(0)')
            a(f'    v_writelane_b32 v123, s98, {k}')
    lst = opt.get('list', 0)
    launch = (f'; @launch kernel={KNAME} grid=({NWG},1,1) block=(1024,1,1) lds={LDS}' if lst else
              f'; @launch grid=({NWG},1,1) block=(1024,1,1) lds={LDS}')
    nopl = '; @launch kernel=nop_kernel grid=(256,1,1) block=(64,1,1) lds=0'
    if opt.get('pre'):
        launch = nopl + '\n' + launch
    if opt.get('twice'):
        launch = launch + '\n' + launch
    if opt.get('post'):
        launch = launch + '\n' + nopl
    if opt.get('red'):
        launch += '\n; @launch kernel=red_kernel grid=(1,1,1) block=(64,1,1) lds=0'
    a(f'''; FeatGraph (SDDMM sigmoid gate + SpMM) in one launch, one workgroup per CU.
{launch}
.amdgcn_target "amdgcn-amd-amdhsa--gfx950"
.text
.globl {KNAME}
.p2align 8
.type {KNAME},@function
{KNAME}:
    s_cmp_ge_u32 s2, {NWG}
    s_cbranch_scc1 L_end''')
    if st:
        a('    v_mov_b32 v123, 0')
    stamp(0)
    a(f'''
    s_load_dwordx16 s[4:19], s[0:1], 0
    v_lshlrev_b32 v{T4}, 2, v0
    v_lshrrev_b32 v{T}, 6, v0
    v_lshlrev_b32 v{T16}, 4, v0
    v_readfirstlane_b32 s{WID}, v{T}
    v_and_b32 v{LANE}, 63, v0
    v_cmp_gt_u32 s[{M3}:{M3+1}], {CH-3072}, v0
    s_mul_i32 s{X0}, s2, {CH*4}
    s_add_u32 s{X0+1}, s{X0}, 4096
    s_add_u32 s{X0+2}, s{X0}, 8192
    s_add_u32 s{X0+3}, s{X0}, 12288
    s_mov_b32 s{SSRC+2}, {E*4}
    s_mov_b32 s{SSRC+3}, 0x00020000
    s_mov_b32 s{SDST+2}, {E*4}
    s_mov_b32 s{SDST+3}, 0x00020000
    s_waitcnt lgkmcnt(0)
    s_load_dword s{TAG}, s[18:19], 0
    s_mov_b32 s{SSRC}, s6
    s_mov_b32 s{SSRC+1}, s7
    s_mov_b32 s{SDST}, s8
    s_mov_b32 s{SDST+1}, s9
    s_mov_b64 exec, s[{M3}:{M3+1}]
    s_cbranch_execz A_no3a
    buffer_load_dword v{ED+3}, v{T4}, s[{SDST}:{SDST+3}], s{X0+3} offen
    buffer_load_dword v{ES+3}, v{T4}, s[{SSRC}:{SSRC+3}], s{X0+3} offen
A_no3a:
    s_mov_b64 exec, -1''')
    for k in range(3):
        a(f'    buffer_load_dword v{ED+k}, v{T4}, s[{SDST}:{SDST+3}], s{X0+k} offen')
    for k in range(3):
        a(f'    buffer_load_dword v{ES+k}, v{T4}, s[{SSRC}:{SSRC+3}], s{X0+k} offen')
    srd(a, SX, 4, X_BYTES)
    a(f'''
    s_cmp_lt_u32 s{WID}, 8
    s_cselect_b32 s{SW}, s10, s12
    s_cselect_b32 s{SW+1}, s11, s13
    s_mov_b32 s{SW+2}, 8192
    s_mov_b32 s{SW+3}, 0x00020000
    v_and_b32 v{T}, 7, v0
    v_lshlrev_b32 v{T}, 19, v{T}
    s_lshl_b32 s{X0+4}, s{WID}, 15
    s_lshl_b32 s{X0+5}, s2, 7
    s_add_u32 s{X0+4}, s{X0+4}, s{X0+5}
    v_add_u32 v{T}, s{X0+4}, v{T}
    v_lshrrev_b32 v{T+1}, 4, v{LANE}        ; g
    v_lshl_add_u32 v{T+2}, v{T+1}, 4, v{T}
    v_lshl_add_u32 v{OUTOFF}, v{T+1}, 5, v{T}
    v_and_b32 v{T+3}, 0x1ff0, v{T16}
    buffer_load_dwordx4 {vr(WD,4)}, v{T+3}, s[{SW}:{SW+3}], 0 offen
    buffer_load_dwordx4 {vr(XN,4)}, v{T+2}, s[{SX}:{SX+3}], 0 offen
    buffer_load_dwordx4 {vr(XN+4,4)}, v{T+2}, s[{SX}:{SX+3}], 0 offen offset:64''')
    pf1 = opt.get('pf1', 0)
    pf2 = opt.get('pf2', 0)
    pf3 = opt.get('pf3', 0)
    def prefetch(lo, hi):
        m = ((1 << hi) - 1) ^ ((1 << lo) - 1)
        a(f'''
    s_lshr_b32 s{X0+6}, s2, 3
    s_lshl_b32 s{X0+6}, s{X0+6}, 4
    s_add_u32 s{X0+6}, s{X0+6}, s{WID}
    s_mul_i32 s{X0+6}, s{X0+6}, {49*128}
    v_lshlrev_b32 v{PFD}, 7, v{LANE}
    s_mov_b32 exec_lo, 0x{m & 0xffffffff:x}
    s_mov_b32 exec_hi, 0x{m >> 32:x}
    buffer_load_dword v{PFD}, v{PFD}, s[{SX}:{SX+3}], s{X0+6} offen
    s_mov_b64 exec, -1''')
    y = 3
    if pf1:
        prefetch(0, pf1)
        y += 1
    a(f'''
    v_mov_b32 v{T+4}, {EMPTY}
    v_mov_b32 v{T+5}, {EMPTY}
    v_mov_b32 v{T+6}, {EMPTY}
    v_mov_b32 v{T+7}, {EMPTY}
    v_add_u32 v{T}, {L_IMG}, v{T16}
    ds_write_b128 v{T}, {vr(T+4,4)}
    ds_write_b128 v{T}, {vr(T+4,4)} offset:16384
    ds_write_b128 v{T16}, {vr(T+4,4)} offset:{L_LIST}
    v_mov_b32 v{ZERO}, 0
    v_mov_b32 v{FOUR}, 4
    s_cmp_ge_u32 s{WID}, 8
    s_cbranch_scc1 I_hi
    ds_write_b128 v{T}, {vr(T+4,4)} offset:32768
    s_cmp_ge_u32 s{WID}, 6
    s_cbranch_scc1 I_done
    ds_write_b128 v{T16}, {vr(T+4,4)} offset:{L_LIST+16384}
    s_branch I_done
I_hi:
    s_cmp_ge_u32 s{WID}, 12
    s_cbranch_scc1 I_w12
    v_and_b32 v{T+2}, 0x3fc, v{T4}
    ds_write_b32 v{T+2}, v{ZERO} offset:{L_ACNT}
    s_branch I_done
I_w12:
    s_cmp_lg_u32 s{WID}, 12
    s_cbranch_scc1 I_done
    v_mul_u32_u24 v{T+2}, {GSTRIDE}, v{LANE}
    v_add_u32 v{T+2}, {L_LIST}, v{T+2}
    v_cmp_gt_u32 vcc, 16, v{LANE}
    v_lshlrev_b32 v{T+3}, 2, v{LANE}
    s_mov_b32 exec_hi, 0
    v_cndmask_b32 v{T+2}, 0, v{T+2}, vcc
    ds_write_b32 v{T+3}, v{T+2} offset:{L_BCNT}
    s_mov_b64 exec, 0xff
    v_cvt_f32_u32 v{T+2}, v{LANE}
    v_mul_f32 v{T+3}, v{T+2}, v{T+2}
    v_cvt_pk_bf16_f32 v{T+2}, v{T+3}, v{T+2}
    v_lshlrev_b32 v{T+3}, 4, v{LANE}
    ds_write_b32 v{T+3}, v{T+2} offset:{L_LUT}
    s_mov_b64 exec, -1
I_done:''')
    srd(a, SOUT, 14, X_BYTES)
    srd(a, SWS, 18, WS_USED)
    a(f'''
    s_lshr_b32 s{PRIME}, s2, 3
    s_and_b32 s{X0+4}, s2, 7
    s_lshl_b32 s{X0+4}, s{X0+4}, 5
    s_or_b32 s{PRIME}, s{PRIME}, s{X0+4}
    s_mul_i32 s{SEGB}, s2, {BSTRIDE}
    s_add_u32 s{SEGB}, s{SEGB}, {SEG_OFF}
    s_mov_b32 s{AMASK}, 0x003fff80
    s_lshl_b32 s{RING}, s{WID}, 13
    s_add_u32 s{RING}, s{RING}, {L_RING}
    s_mov_b32 s{SEMPTY}, {EMPTY}
    s_mov_b32 s{MODE}, 0
    s_mov_b32 s{LOM}, 0x00ff00ff
    s_mov_b32 s{LOM+1}, 0x00ff00ff
    v_lshrrev_b32 v{T+4}, 3, v0
    v_and_b32 v{T+5}, 7, v0
    v_mul_u32_u24 v{IMGR}, {ISTRIDE}, v{T+4}
    v_lshl_add_u32 v{IMGR}, v{T+5}, 2, v{IMGR}
    v_add_u32 v{IMGR}, {L_IMG}, v{IMGR}
    v_mul_u32_u24 v{STO}, {BSTRIDE}, v{T+4}
    v_lshl_add_u32 v{STO}, v{T+5}, 4, v{STO}
    v_and_b32 v{T+4}, 63, v{T+4}
    v_bfe_u32 v{T+6}, v{T+4}, 1, 1
    v_and_or_b32 v{T+6}, v{T+4}, 8, v{T+6}
    v_bfe_u32 v{T+7}, v{T+4}, 1, 2
    s_cmp_lt_u32 s{WID}, 8
    s_cselect_b64 s[{X0+4}:{X0+5}], -1, 0
    s_mov_b32 s{X0+6}, {L_WV}
    s_cselect_b32 s{X0+6}, {L_WQ}, s{X0+6}
    v_cndmask_b32 v{T+6}, v{T+7}, v{T+6}, s[{X0+4}:{X0+5}]
    v_lshlrev_b32 v{T+5}, 1, v{T+5}
    v_xor_b32 v{T+5}, v{T+5}, v{T+6}
    v_lshlrev_b32 v{T+5}, 3, v{T+5}
    v_lshl_add_u32 v{T+5}, v{T+4}, 7, v{T+5}
    v_add_u32 v{WSA}, s{X0+6}, v{T+5}
    v_xor_b32 v{WSA+1}, 8, v{WSA}
    s_waitcnt lgkmcnt(0)
    s_barrier
    ; tags
    s_add_u32 s{TAG}, s{TAG}, 0x400000
    s_and_b32 s{TAG}, s{TAG}, 0xffc00000
    s_xor_b32 s{TAG+1}, s{TAG}, 0xaa800000
    s_xor_b32 s{TAG+2}, s{TAG}, 0x55400000
    s_xor_b32 s{TAG+3}, s{TAG}, 0xffc00000''')
    stamp(1)
    def arank(k):
        a(f'''
    v_lshlrev_b32_sdwa v{B4+k}, 2, v{ED+k} dst_sel:DWORD dst_unused:UNUSED_PAD src0_sel:DWORD src1_sel:BYTE_0
    ds_add_rtn_u32 v{PS+k}, v{B4+k}, v{FOUR} offset:{L_ACNT}''')
    def aentry(k):
        a(f'''
    v_lshrrev_b32 v{ED+k}, 8, v{ED+k}
    v_lshl_or_b32 v{ES+k}, v{ES+k}, 7, v{ED+k}
    v_mad_u32_u24 v{B4+k}, v{B4+k}, {ISTRIDE//4}, s{X0+4}''')
    def aput(k):
        a(f'''
    v_min_u32 v{PS+k}, {ISTRIDE-4}, v{PS+k}
    v_add_u32 v{PS+k}, v{PS+k}, v{B4+k}
    ds_write_b32 v{PS+k}, v{ES+k}''')
    a(f'    s_mov_b32 s{X0+4}, {L_IMG}')
    a(f'    s_waitcnt vmcnt({y+3})')
    stamp(2)
    for k in range(3):
        arank(k)
    a(f'    s_waitcnt vmcnt({y})')
    for k in range(3):
        aentry(k)
    for k in range(3):
        a('    s_waitcnt lgkmcnt(2)')
        aput(k)
    a(f'''
    s_mov_b64 exec, s[{M3}:{M3+1}]
    s_cbranch_execz A_no3b''')
    arank(3)
    aentry(3)
    a('    s_waitcnt lgkmcnt(0)')
    aput(3)
    a(f'''
A_no3b:
    s_mov_b64 exec, -1
    s_waitcnt vmcnt({y-1})
    ds_write_b64 v{WSA}, {vr(WD,2)}
    ds_write_b64 v{WSA+1}, {vr(WD+2,2)}
    s_lshl_b32 s{X0}, s{PRIME}, 7
    s_add_u32 s{X0}, s{X0}, {SEG_OFF}
    s_add_u32 s{X0+1}, s{X0}, {128*BSTRIDE}
    s_add_u32 s{X0+2}, s{SEGB}, 16384
    v_add_u32 v{T}, {128*ISTRIDE}, v{IMGR}
    s_waitcnt lgkmcnt(0)
    s_barrier''')
    stamp(3)
    a(f'''
    ds_read2_b32 {vr(40,2)}, v{IMGR} offset0:0 offset1:8
    ds_read2_b32 {vr(42,2)}, v{IMGR} offset0:16 offset1:24
    ds_read2_b32 {vr(44,2)}, v{T} offset0:0 offset1:8
    ds_read2_b32 {vr(46,2)}, v{T} offset0:16 offset1:24
    s_waitcnt lgkmcnt(2)''')
    for r in range(4):
        a(f'    v_or_b32 v{40+r}, s{TAG+r}, v{40+r}')
    sf = opt.get('st', ' sc1')
    lf = opt.get('ld', ' sc1')
    a(f'''
    buffer_store_dwordx4 {vr(40,4)}, v{STO}, s[{SWS}:{SWS+3}], s{X0} offen{sf}
    s_waitcnt lgkmcnt(0)''')
    for r in range(4):
        a(f'    v_or_b32 v{44+r}, s{TAG+r}, v{44+r}')
    a(f'''
    buffer_store_dwordx4 {vr(44,4)}, v{STO}, s[{SWS}:{SWS+3}], s{X0+1} offen{sf}''')
    stamp(4)
    a(f'''
    s_cmp_lg_u32 s{WID}, 15
    s_cbranch_scc1 K_no
    s_mov_b64 exec, 1
    v_mov_b32 v{T+1}, 1
    global_atomic_add v{ATK}, v{ZERO}, v{T+1}, s[16:17] sc0 sc1
    s_mov_b64 exec, -1
K_no:''')
    early = opt.get('early', 0)
    def poll_issue():
        a(f'''
    buffer_load_dwordx4 {vr(EN,4)}, v{T16}, s[{SWS}:{SWS+3}], s{SEGB} offen{lf}
    buffer_load_dwordx4 {vr(EN+4,4)}, v{T16}, s[{SWS}:{SWS+3}], s{X0+2} offen{lf}''')
    if early:
        poll_issue()
    a(f'''
    v_lshrrev_b32 v{T}, 4, v{LANE}
    v_bfe_u32 v{T+1}, v{LANE}, 2, 2
    v_lshl_add_u32 v{T+2}, v{T}, 3, v{T+1}
    v_bfe_u32 v{T+3}, v{T+2}, 1, 1
    v_and_or_b32 v{T+3}, v{T+2}, 8, v{T+3}
    v_and_b32 v{T+4}, 3, v{LANE}
    v_lshlrev_b32 v{T+4}, 1, v{T+4}
    v_xor_b32 v{T+3}, v{T+3}, v{T+4}
    v_lshlrev_b32 v{T+3}, 3, v{T+3}
    v_lshl_add_u32 v{T}, v{T+2}, 7, v{T+3}
    v_add_u32 v{T}, {L_WQ}, v{T}
    v_xor_b32 v{T+1}, 8, v{T}
    v_xor_b32 v{T+2}, 64, v{T}
    v_xor_b32 v{T+3}, 0x48, v{T}''')
    wreg = [24, 32, 72, 80]
    for blk in range(4):
        for ks in range(2):
            for h in range(2):
                a(f'    ds_read_b64_tr_b16 {vr(wreg[blk]+ks*4+h*2,2)}, v{T+blk} offset:{(32*ks+4*h)*128}')
        if blk == 1:
            a('    s_waitcnt lgkmcnt(0)')
    a(f'''
    v_and_b32 v{T+4}, 15, v{LANE}           ; i
    v_lshrrev_b32 v{T+5}, 3, v{LANE}
    v_and_b32 v{T+6}, 6, v{T+5}
    v_and_b32 v{T+7}, 7, v{LANE}
    v_xor_b32 v{T+6}, v{T+6}, v{T+7}
    v_lshlrev_b32 v{CHK}, 4, v{T+6}
    s_mul_i32 s{X0+4}, s{WID}, {GSTRIDE}
    s_add_u32 s{X0+4}, s{X0+4}, {L_LIST}
    v_lshl_add_u32 v{EA0}, v{T+5}, 4, s{X0+4}
    v_bfe_u32 v{T+6}, v{LANE}, 3, 2
    v_lshl_add_u32 v{T+6}, v{T+7}, 2, v{T+6}
    v_lshl_add_u32 v{MAD0}, v{T+6}, 2, s{X0+4}
    v_lshrrev_b32 v{T+1}, 4, v{LANE}        ; g
    v_and_b32 v{T+6}, 6, v{T+4}
    v_xor_b32 v{T+6}, v{T+6}, v{T+1}
    v_lshlrev_b32 v{T+6}, 4, v{T+6}
    v_lshl_add_u32 v{T+6}, v{T+4}, 7, v{T+6}
    v_add_u32 v{RA0}, s{RING}, v{T+6}
    v_xor_b32 v{RA1}, 64, v{RA0}
    v_lshrrev_b32 v{T+6}, 2, v{LANE}        ; row = 4g+r
    v_and_b32 v{T+7}, 6, v{T+6}
    v_bfe_u32 v{T+5}, v{LANE}, 1, 1
    v_xor_b32 v{T+7}, v{T+7}, v{T+5}
    v_lshlrev_b32 v{T+7}, 4, v{T+7}
    v_lshl_add_u32 v{T+7}, v{T+6}, 7, v{T+7}
    v_and_b32 v{T+5}, 1, v{LANE}
    v_lshl_add_u32 v{T+7}, v{T+5}, 3, v{T+7}
    v_add_u32 v{RT}, s{RING}, v{T+7}
    v_xor_b32 v{RT+1}, 32, v{RT}
    v_xor_b32 v{RT+2}, 64, v{RT}
    v_xor_b32 v{RT+3}, 0x60, v{RT}
    v_bfe_u32 v{T+5}, v{T+6}, 1, 2
    v_and_b32 v{T+7}, 3, v{LANE}
    v_lshl_or_b32 v{T+5}, v{T+7}, 2, v{T+5}
    v_lshlrev_b32 v{T+5}, 3, v{T+5}
    v_lshl_add_u32 v{WVA}, v{T+6}, 7, v{T+5}
    s_waitcnt vmcnt({2 + (2 if early else 0)}) lgkmcnt(0)''')
    for blk in range(4):
        a(f'    v_mfma_f32_16x16x32_bf16 {vr(QLO+4*blk,4)}, {vr(wreg[blk],4)}, {vr(XN,4)}, 0')
    for blk in range(4):
        a(f'    v_mfma_f32_16x16x32_bf16 {vr(QLO+4*blk,4)}, {vr(wreg[blk]+4,4)}, {vr(XN+4,4)}, {vr(QLO+4*blk,4)}')
    if not early:
        poll_issue()
    if pf2:
        prefetch(pf1, pf2)
    a(f'    s_mov_b32 s{X0+4}, 0x{f32bits(-1.4426950408889634/8):08x}')
    a(f'''
    v_mov_b32 v{MA+1}, 0x00003f80
    v_mov_b32 v{MA+2}, 0
    v_mov_b32 v{MA+3}, 0
    v_mov_b32 v{MB}, 0
    v_mov_b32 v{MB+1}, 0
    v_mov_b32 v{MB+2}, 0
    v_mov_b32 v{MB+3}, 0
    v_and_b32 v{T+5}, 7, v{LANE}
    v_cvt_f32_u32 v{T+5}, v{T+5}            ; j'
    v_mov_b32 v{T+6}, 0x71800000            ; BIG = 2^100
    v_mul_f32 v{T+7}, v{T+5}, v{T+6}
    v_mul_f32 v{T+5}, v{T+5}, v{T+7}
    v_mul_f32 v{T+7}, -2.0, v{T+7}
    s_mov_b32 exec_lo, 0xff0000ff
    s_mov_b32 exec_hi, 0
    v_cvt_pk_bf16_f32 v{MB}, v{T+6}, v{T+7}
    v_cvt_pk_bf16_f32 v{MB+1}, v{T+5}, 0
    s_mov_b64 exec, -1''')
    for r in range(16):
        a(f'    v_mul_f32 v{QLO+r}, s{X0+4}, v{QLO+r}')
    for r in range(8):
        a(f'    v_cvt_pk_bf16_f32 v{T+r}, v{QLO+2*r}, v{QLO+2*r+1}')
    for r in range(8):
        a(f'    v_cndmask_b32 v{QLO+r}, 0, v{T+r}, s[{LOM}:{LOM+1}]')
        a(f'    v_cndmask_b32 v{QHI+r}, v{T+r}, 0, s[{LOM}:{LOM+1}]')
    for r in range(16):
        a(f'    v_mov_b32 v{ACC+r}, 0')
    stamp(5)
    S0, S1 = X0+4, X0+6
    a(f'''
    s_mov_b32 s{POLLN}, 0
    s_mov_b32 s{X0+8}, 0x400000
    s_mov_b64 s[{S0}:{S0+1}], -1
    s_mov_b64 s[{S1}:{S1+1}], -1
    s_waitcnt vmcnt({1 if pf2 else 0})
P_loop:''')
    for h, sm in ((0, S0), (1, S1)):
        a(f'    s_mov_b64 exec, s[{sm}:{sm+1}]')
        for r in range(4):
            a(f'    v_xor_b32 v{EN+4*h+r}, s{TAG+r}, v{EN+4*h+r}')
        a(f'''
    v_or3_b32 v{T}, v{EN+4*h}, v{EN+4*h+1}, v{EN+4*h+2}
    v_or_b32 v{T}, v{T}, v{EN+4*h+3}
    v_cmp_le_u32 s[{sm}:{sm+1}], s{X0+8}, v{T}''')
    a(f'''
    s_or_b64 exec, s[{S0}:{S0+1}], s[{S1}:{S1+1}]
    s_cbranch_execz P_done
    s_add_u32 s{POLLN}, s{POLLN}, 1
    s_cmp_gt_u32 s{POLLN}, {opt.get('pollmax', 2000)}
    s_cbranch_scc1 P_giveup
    s_mov_b64 exec, s[{S0}:{S0+1}]
    s_cbranch_execz P_n0
    buffer_load_dwordx4 {vr(EN,4)}, v{T16}, s[{SWS}:{SWS+3}], s{SEGB} offen{lf}
P_n0:
    s_mov_b64 exec, s[{S1}:{S1+1}]
    s_cbranch_execz P_n1
    buffer_load_dwordx4 {vr(EN+4,4)}, v{T16}, s[{SWS}:{SWS+3}], s{X0+2} offen{lf}
P_n1:
    s_waitcnt vmcnt(0)
    s_branch P_loop
P_done:
    s_mov_b64 exec, -1''')
    if st:
        a(f'    v_writelane_b32 v123, s{POLLN}, 15')
    stamp(6)
    if pf3:
        prefetch(max(pf1, pf2), pf3)
    a(f'''
    v_cmp_ne_u32 s[{VM+6}:{VM+7}], s{SEMPTY}, v{EN+3}
    v_cmp_ne_u32 s[{VM+14}:{VM+15}], s{SEMPTY}, v{EN+7}
    s_or_b64 s[{S0}:{S0+1}], s[{VM+6}:{VM+7}], s[{VM+14}:{VM+15}]
    s_cbranch_scc1 R_rare
R_fast:''')
    def brank(r):
        m = VM + 2*r
        a(f'''
    v_cmp_ne_u32 s[{m}:{m+1}], s{SEMPTY}, v{EN+r}
    v_and_b32 v{G4+r}, 15, v{EN+r}
    v_lshlrev_b32 v{G4+r}, 2, v{G4+r}
    s_mov_b64 exec, s[{m}:{m+1}]
    ds_add_rtn_u32 v{RK+r}, v{G4+r}, v{FOUR} offset:{L_BCNT}
    s_mov_b64 exec, -1''')
    def bput(r):
        m = VM + 2*r
        a(f'''
    s_mov_b64 exec, s[{m}:{m+1}]
    ds_write_b32 v{RK+r}, v{EN+r}''')
    order = [0, 4, 1, 5, 2, 6]
    for r in order:
        brank(r)
    for i, r in enumerate(order):
        a(f'    s_waitcnt lgkmcnt(5)')
        bput(r)
    a(f'''
    s_mov_b64 exec, -1
    v_and_b32 v{T}, 31, v{LANE}
    v_lshlrev_b32 v{T}, 2, v{T}
    v_mov_b32 v{EA}, v{EA0}
    v_mov_b32 v{MAD}, v{MAD0}
    v_and_b32 v{T+2}, 15, v{LANE}
    v_mul_u32_u24 v{T+2}, {GSTRIDE}, v{T+2}
    v_add_u32 v{T+2}, {L_LIST}, v{T+2}
    s_waitcnt lgkmcnt(0)
    s_barrier''')
    stamp(7)
    a(f'''
B_counts:
    ds_read_b32 v{T+1}, v{T} offset:{L_BCNT}
    ds_read_b128 {vr(EE,4)}, v{EA}
    ds_read_b128 {vr(T+4,4)}, v{EA} offset:128
    ds_read_b32 v{M0R}, v{MAD}
    s_waitcnt lgkmcnt(3)
    v_sub_u32 v{T+3}, v{T+1}, v{T+2}
    s_mov_b64 exec, 0x1ffffff
    v_cmp_lt_u32 vcc, {GSTRIDE}, v{T+3}
    v_cmp_ne_u32 s[{X0}:{X0+1}], 0, v{T+1}
    s_mov_b64 exec, -1
    v_readlane_b32 s{NT}, v{T+3}, s{WID}
    s_and_b32 s{X0+2}, vcc_lo, 0xffff
    s_and_b32 s{X0}, s{X0}, 0x1ff0000
    s_or_b32 s{X0+3}, s{X0+2}, s{X0}
    s_or_b32 s{X0+3}, s{X0+3}, s{MODE}
    s_cbranch_scc1 C_slowcnt
B_cntok:
    s_add_u32 s{NT}, s{NT}, 127
    s_lshr_b32 s{NT}, s{NT}, 7              ; tiles
    s_cbranch_scc0 B_loopdone
    s_setprio 3
    s_waitcnt lgkmcnt(0)''')
    gf = opt.get('gather', '')
    def dma(ereg, slot):
        for q in range(4):
            if q == 0:
                a(f'    s_mov_b32 m0, s{RING}' if slot == 0 else f'    s_add_u32 m0, s{RING}, 4096')
            else:
                a('    s_add_u32 m0, m0, 1024')
            a(f'    v_and_or_b32 v{ereg+q}, v{ereg+q}, s{AMASK}, v{CHK}')
            a(f'    buffer_load_dwordx4 v{ereg+q}, s[{SX}:{SX+3}], 0 offen{gf} lds')
    dma(EE, 0)
    a(f'''
    s_cmp_lt_u32 s{NT}, 2
    s_cbranch_scc1 B_one''')
    dma(T+4, 1)
    a(f'''
B_one:
    ds_read_b128 {vr(EE,4)}, v{EA} offset:256
    v_and_b32 v{M0R}, 0x70, v{M0R}
    s_mov_b32 s{TT}, 1                      ; t+1''')
    stamp(8)
    a('B_loop:')
    pk = opt.get('pk', 0)
    def body(slot):
        so = slot * 4096
        mcur, mnext = (M0R, M1R) if slot == 0 else (M1R, M0R)
        eo = slot * 128
        th = (5, 3, 1)
        if opt.get('prio', 1) and slot == 0:
            a(f'''
    s_sub_u32 s{X0}, s{NT}, s{TT}
    s_cmp_ge_u32 s{X0}, 6
    s_cbranch_scc1 B_p{slot}
    s_setprio 2
    s_cmp_ge_u32 s{X0}, 4
    s_cbranch_scc1 B_p{slot}
    s_setprio 1
    s_cmp_ge_u32 s{X0}, 2
    s_cbranch_scc1 B_p{slot}
    s_setprio 0
B_p{slot}:''')
        a(f'''
    ds_read_b32 v{MA}, v{mcur} offset:{L_LUT}
    ds_read_b32 v{mnext}, v{MAD} offset:{eo+128}
    s_cmp_lt_u32 s{TT}, s{NT}
    s_cbranch_scc1 B_w4_{slot}
    s_waitcnt vmcnt(0)
B_w4_{slot}:
    s_waitcnt vmcnt(4)
    ds_read_b128 {vr(XA,4)}, v{RA0} offset:{so}
    ds_read_b128 {vr(XA+4,4)}, v{RA1} offset:{so}
    ds_read_b128 {vr(XA+8,4)}, v{RA0} offset:{so+2048}
    ds_read_b128 {vr(XA+12,4)}, v{RA1} offset:{so+2048}''')
        for fb in range(4):
            a(f'    ds_read_b64_tr_b16 {vr(XT+4*fb,2)}, v{RT+fb} offset:{so}')
            a(f'    ds_read_b64_tr_b16 {vr(XT+4*fb+2,2)}, v{RT+fb} offset:{so+2048}')
        a(f'''
    s_add_u32 s{TT}, s{TT}, 1               ; t+2
    s_waitcnt lgkmcnt(12)
    v_mfma_f32_16x16x32_bf16 {vr(S,4)}, {vr(MA,4)}, {vr(MB,4)}, 0
    v_and_b32 v{mnext}, 0x70, v{mnext}
    s_waitcnt lgkmcnt(11)
    v_mfma_f32_16x16x32_bf16 {vr(S,4)}, {vr(XA,4)}, {vr(QLO,4)}, {vr(S,4)}
    s_waitcnt lgkmcnt(10)
    v_mfma_f32_16x16x32_bf16 {vr(S,4)}, {vr(XA+4,4)}, {vr(QLO+4,4)}, {vr(S,4)}
    s_waitcnt lgkmcnt(9)
    v_mfma_f32_16x16x32_bf16 {vr(S,4)}, {vr(XA+8,4)}, {vr(QHI,4)}, {vr(S,4)}
    s_waitcnt lgkmcnt(8)
    v_mfma_f32_16x16x32_bf16 {vr(S,4)}, {vr(XA+12,4)}, {vr(QHI+4,4)}, {vr(S,4)}
    s_waitcnt lgkmcnt(0)
    s_cmp_lt_u32 s{TT}, s{NT}
    s_cbranch_scc0 B_skip_{slot}''')
        dma(EE, slot)
        a(f'''
    ds_read_b128 {vr(EE,4)}, v{EA} offset:{eo+384}
B_cont_{slot}:''')
        for r in range(4):
            a(f'    v_exp_f32 v{S+r}, v{S+r}')
        if slot == 1:
            a(f'    v_add_u32 v{EA}, 256, v{EA}')
            a(f'    v_add_u32 v{MAD}, 256, v{MAD}')
        if pk:
            if slot == 0:
                a('    s_nop 0')
            a(f'    v_pk_add_f32 {vr(S,2)}, {vr(S,2)}, 1.0 op_sel_hi:[1,0]')
            a(f'    v_pk_add_f32 {vr(S+2,2)}, {vr(S+2,2)}, 1.0 op_sel_hi:[1,0]')
        else:
            for r in range(4):
                a(f'    v_add_f32 v{S+r}, 1.0, v{S+r}')
        for r in range(4):
            a(f'    v_rcp_f32 v{S+r}, v{S+r}')
        a(f'''
    v_cvt_pk_bf16_f32 v{PP}, v{S}, v{S+1}
    s_cmp_gt_u32 s{TT}, s{NT}
    v_cvt_pk_bf16_f32 v{PP+1}, v{S+2}, v{S+3}
    s_nop 0
    v_mov_b32_dpp v{PP+2}, v{PP} row_ror:8 row_mask:0xf bank_mask:0xf
    v_mov_b32_dpp v{PP+3}, v{PP+1} row_ror:8 row_mask:0xf bank_mask:0xf
    s_nop 1''')
        for fb in range(4):
            a(f'    v_mfma_f32_16x16x32_bf16 {vr(ACC+4*fb,4)}, {vr(XT+4*fb,4)}, {vr(PP,4)}, {vr(ACC+4*fb,4)}')
        a('    s_cbranch_scc1 B_loopdone' if slot == 0 else '    s_cbranch_scc0 B_loop')
    body(0)
    body(1)
    a(f'''
B_loopdone:
    s_cmp_lg_u32 s{MODE}, 0
    s_cbranch_scc1 C_next
B_epi:''')
    stamp(9)
    a(f'''
    v_xor_b32 v{T+1}, 8, v{WVA}
    v_xor_b32 v{T+2}, 16, v{WVA}
    v_xor_b32 v{T+3}, 24, v{WVA}''')
    for blk in range(4):
        ad = WVA if blk == 0 else T+blk
        for ks in range(2):
            for h in range(2):
                a(f'    ds_read_b64_tr_b16 {vr(XA+blk*8+ks*4+h*2,2)}, v{ad} offset:{L_WV+(32*ks+16*h)*128}')
        if blk == 2:
            a('    s_waitcnt lgkmcnt(8)')
    for r in range(8):
        a(f'    v_cvt_pk_bf16_f32 v{S+r}, v{ACC+2*r}, v{ACC+2*r+1}')
    for blk in range(4):
        a(f'    s_waitcnt lgkmcnt({12-4*blk if blk else 8})' if blk < 2 else f'    s_waitcnt lgkmcnt({12-4*blk})')
        if blk == 0:
            a('    s_nop 0')
        a(f'    v_mfma_f32_16x16x32_bf16 {vr(QLO+4*blk,4)}, {vr(XA+blk*8,4)}, {vr(S,4)}, 0')
        a(f'    v_mfma_f32_16x16x32_bf16 {vr(QLO+4*blk,4)}, {vr(XA+blk*8+4,4)}, {vr(S+4,4)}, {vr(QLO+4*blk,4)}')
    a(f'''
    s_cmp_lg_u32 s{WID}, 15
    s_cbranch_scc1 K_no2
    s_waitcnt vmcnt(0)
    v_readfirstlane_b32 s{X0}, v{ATK}
    s_cmp_lg_u32 s{X0}, {NWG-1}
    s_cbranch_scc1 K_no2
    s_mov_b64 exec, 1
    v_mov_b32 v{T}, s{TAG}
    global_store_dword v{ZERO}, v{T}, s[18:19]
    s_mov_b64 exec, -1
K_no2:
    s_nop 4''')
    for r in range(8):
        a(f'    v_cvt_pk_bf16_f32 v{XA+r}, v{QLO+2*r}, v{QLO+2*r+1}')
    of = opt.get('out', '')
    a(f'''
    s_mov_b64 exec, s[{LOM}:{LOM+1}]
    buffer_store_dwordx4 {vr(XA,4)}, v{OUTOFF}, s[{SOUT}:{SOUT+3}], 0 offen{of}
    buffer_store_dwordx4 {vr(XA+4,4)}, v{OUTOFF}, s[{SOUT}:{SOUT+3}], 0 offen offset:16{of}''')
    if st:
        a('    s_mov_b64 exec, -1')
        stamp(10)
        a('    s_waitcnt vmcnt(0)')
        stamp(11)
        a(f'''
    s_add_u32 s{X0}, s18, {STAMP_OFF}
    s_addc_u32 s{X0+1}, s19, 0
    s_lshl_b32 s{X0+2}, s2, 4
    s_add_u32 s{X0+2}, s{X0+2}, s{WID}
    s_lshl_b32 s{X0+2}, s{X0+2}, 6
    v_lshl_add_u32 v{T}, v{LANE}, 2, s{X0+2}
    s_mov_b64 exec, 0xffff
    global_store_dword v{T}, v123, s[{X0}:{X0+1}]''')
    a(f'''
L_end:
    s_endpgm
B_skip_0:
    s_nop 7
    s_branch B_cont_0
B_skip_1:
    s_nop 7
    s_branch B_cont_1''')
    def drop_lines(h, sm, tag):
        t0, t1 = X0+8, X0+10
        a(f'''
    s_wqm_b64 s[{sm}:{sm+1}], s[{sm}:{sm+1}]
    s_lshr_b64 s[{t0}:{t0+1}], s[{sm}:{sm+1}], 4
    s_and_b32 s{t0}, s{t0}, 0x0f0f0f0f
    s_and_b32 s{t0+1}, s{t0+1}, 0x0f0f0f0f
    s_lshl_b64 s[{t1}:{t1+1}], s[{sm}:{sm+1}], 4
    s_and_b32 s{t1}, s{t1}, 0xf0f0f0f0
    s_and_b32 s{t1+1}, s{t1+1}, 0xf0f0f0f0
    s_or_b64 s[{sm}:{sm+1}], s[{sm}:{sm+1}], s[{t0}:{t0+1}]
    s_or_b64 exec, s[{sm}:{sm+1}], s[{t1}:{t1+1}]''')
        for r in range(4):
            a(f'    v_mov_b32 v{EN+4*h+r}, {EMPTY}')
        a(f'''
    v_lshrrev_b32 v{T}, 3, v0
    v_lshrrev_b32 v{T+1}, 5, v{T}
    v_lshlrev_b32 v{T+1}, 2, v{T+1}
    v_lshlrev_b32 v{T}, v{T}, 1
    ds_or_b32 v{T+1}, v{T} offset:{L_RESC + 16*h}
    s_mov_b64 exec, -1''')
    a('P_giveup:')
    a('    s_mov_b64 exec, -1')
    drop_lines(0, S0, 'g0')
    drop_lines(1, S1, 'g1')
    a('    s_branch P_done')
    a(f'''
R_rare:
    s_and_b32 s{S0}, s{VM+6}, 0x80808080
    s_and_b32 s{S0+1}, s{VM+7}, 0x80808080
    s_and_b32 s{S1}, s{VM+14}, 0x80808080
    s_and_b32 s{S1+1}, s{VM+15}, 0x80808080''')
    drop_lines(0, S0, 'r0')
    drop_lines(1, S1, 'r1')
    brank(3)
    brank(7)
    a('    s_waitcnt lgkmcnt(0)')
    bput(3)
    bput(7)
    a(f'''
    s_mov_b64 exec, -1
    s_branch R_fast
C_slowcnt:
    s_cmp_lg_u32 s{MODE}, 0
    s_cbranch_scc1 C_careful''')
    for k in range(8):
        a(f'    v_readlane_b32 s{RESC+k}, v{T+1}, {16+k}')
    a(f'''
    s_mov_b32 s{MODE}, 2
    s_cmp_lg_u32 s{X0+2}, 0
    s_cbranch_scc1 C_next
    s_mov_b32 s{MODE}, 1
    s_branch B_cntok
C_careful:
    s_min_u32 s{NT}, s{NT}, {GSTRIDE}
    s_bitcmp1_b32 s{X0}, 24
    s_cselect_b32 s{MODE}, 2, 1
    s_branch B_cntok
C_next:
    s_setprio 0
    s_waitcnt vmcnt(0) lgkmcnt(0)
    s_barrier
    s_cmp_eq_u32 s{MODE}, 2
    s_cbranch_scc1 C_round
    s_mov_b32 s{X0}, -1''')
    for k in range(7, -1, -1):
        a(f'''
    s_ff1_i32_b32 s{X0+1}, s{RESC+k}
    s_add_u32 s{X0+1}, s{X0+1}, {32*k}
    s_cmp_lg_u32 s{RESC+k}, 0
    s_cselect_b32 s{X0}, s{X0+1}, s{X0}''')
    a(f'''
    s_cmp_eq_u32 s{X0}, -1
    s_cbranch_scc1 B_epi
    s_lshr_b32 s{X0+1}, s{X0}, 5
    s_lshl_b32 s{X0+2}, 1, s{X0}''')
    for k in range(8):
        a(f'''
    s_andn2_b32 s{X0+3}, s{RESC+k}, s{X0+2}
    s_cmp_eq_u32 s{X0+1}, {k}
    s_cselect_b32 s{RESC+k}, s{X0+3}, s{RESC+k}''')
    a(f'''
    s_and_b32 s{X0+2}, s{X0}, 31
    s_lshl_b32 s{X0+2}, s{X0+2}, 3
    s_or_b32 s{X0}, s{X0+2}, s{X0+1}
    s_mul_i32 s{X0}, s{X0}, {CH*4}''')
    for k in range(4):
        a(f'''
    buffer_load_dword v{ED+k}, v{T4}, s[{SDST}:{SDST+3}], s{X0} offen
    buffer_load_dword v{ES+k}, v{T4}, s[{SSRC}:{SSRC+3}], s{X0} offen
    s_add_u32 s{X0}, s{X0}, 4096''')
    for r in range(4, 8):
        a(f'    v_mov_b32 v{EN+r}, {EMPTY}')
    a(f'    v_mov_b32 v{T+1}, {EMPTY}')
    a('    s_waitcnt vmcnt(0)')
    for k in range(4):
        a(f'''
    v_and_b32 v{T}, 255, v{ED+k}
    v_cmp_eq_u32 vcc, s2, v{T}
    v_lshrrev_b32 v{ED+k}, 8, v{ED+k}
    v_lshl_or_b32 v{ES+k}, v{ES+k}, 7, v{ED+k}''')
        if k == 3:
            a(f'    s_and_b64 vcc, vcc, s[{M3}:{M3+1}]')
        a(f'    v_cndmask_b32 v{EN+k}, v{T+1}, v{ES+k}, vcc')
    a(f'''
C_round:
    v_mov_b32 v{T+4}, {EMPTY}
    v_mov_b32 v{T+5}, {EMPTY}
    v_mov_b32 v{T+6}, {EMPTY}
    v_mov_b32 v{T+7}, {EMPTY}
    ds_write_b128 v{T16}, {vr(T+4,4)} offset:{L_LIST}
    s_cmp_ge_u32 s{WID}, 6
    s_cbranch_scc1 C_i1
    ds_write_b128 v{T16}, {vr(T+4,4)} offset:{L_LIST+16384}
C_i1:
    v_and_b32 v{T+2}, 15, v{LANE}
    v_mul_u32_u24 v{T+2}, {GSTRIDE}, v{T+2}
    v_add_u32 v{T+2}, {L_LIST}, v{T+2}
    v_and_b32 v{T}, 31, v{LANE}
    v_lshlrev_b32 v{T}, 2, v{T}
    s_cmp_lg_u32 s{WID}, 12
    s_cbranch_scc1 C_i2
    s_mov_b64 exec, 0xffff
    ds_write_b32 v{T}, v{T+2} offset:{L_BCNT}
    ds_write_b32 v{ZERO}, v{ZERO} offset:{L_PEND}
    s_mov_b64 exec, -1
C_i2:
    s_waitcnt lgkmcnt(0)
    s_barrier
    s_mov_b32 s{X0+4}, {GSTRIDE//4}
    s_mov_b32 s{X0+5}, {L_LIST+GSTRIDE}''')
    for r in range(8):
        brank(r)
        m = VM + 2*r
        a(f'''
    v_mul_u32_u24 v{T+3}, s{X0+4}, v{G4+r}
    v_add_u32 v{T+3}, s{X0+5}, v{T+3}
    s_mov_b64 exec, s[{m}:{m+1}]
    s_waitcnt lgkmcnt(0)
    v_cmp_lt_u32 vcc, v{RK+r}, v{T+3}
    s_and_saveexec_b64 s[{X0+6}:{X0+7}], vcc
    ds_write_b32 v{RK+r}, v{EN+r}
    v_mov_b32 v{EN+r}, {EMPTY}
    s_andn2_b64 exec, s[{X0+6}:{X0+7}], exec
    ds_write_b32 v{ZERO}, v{FOUR} offset:{L_PEND}
    s_mov_b64 exec, -1''')
    a(f'''
    v_mov_b32 v{EA}, v{EA0}
    v_mov_b32 v{MAD}, v{MAD0}
    s_waitcnt lgkmcnt(0)
    s_barrier
    s_branch B_counts''')
    if opt.get('red'):
        gen_red(a, opt)
    if opt.get('pre') or opt.get('post'):
        a('.globl nop_kernel\n.p2align 8\n.type nop_kernel,@function\nnop_kernel:\n    s_endpgm')
    a(f'''
.section .rodata,"a"
.p2align 6
.amdhsa_kernel {KNAME}
  .amdhsa_next_free_vgpr 128
  .amdhsa_next_free_sgpr 102
  .amdhsa_accum_offset 128
  .amdhsa_group_segment_fixed_size 0
  .amdhsa_kernarg_size 64
  .amdhsa_user_sgpr_count 2
  .amdhsa_user_sgpr_kernarg_segment_ptr 1
  .amdhsa_system_sgpr_workgroup_id_x 1
.end_amdhsa_kernel''')
    if opt.get('pre') or opt.get('post'):
        a('''
.p2align 6
.amdhsa_kernel nop_kernel
  .amdhsa_next_free_vgpr 8
  .amdhsa_next_free_sgpr 16
  .amdhsa_accum_offset 8
  .amdhsa_group_segment_fixed_size 0
  .amdhsa_kernarg_size 64
  .amdhsa_user_sgpr_count 2
  .amdhsa_user_sgpr_kernarg_segment_ptr 1
  .amdhsa_system_sgpr_workgroup_id_x 1
.end_amdhsa_kernel''')
    if opt.get('red'):
        a('''
.p2align 6
.amdhsa_kernel red_kernel
  .amdhsa_next_free_vgpr 32
  .amdhsa_next_free_sgpr 48
  .amdhsa_accum_offset 32
  .amdhsa_group_segment_fixed_size 0
  .amdhsa_kernarg_size 64
  .amdhsa_user_sgpr_count 2
  .amdhsa_user_sgpr_kernarg_segment_ptr 1
  .amdhsa_system_sgpr_workgroup_id_x 1
.end_amdhsa_kernel''')
    return a.text()

if __name__ == '__main__':
    out = sys.argv[1]
    opt = {}
    for kv in sys.argv[2:]:
        k, v = kv.split('=')
        try:
            v = int(v)
        except ValueError:
            v = '' if v == 'none' else ' ' + v.replace('+', ' ')
        opt[k] = v
    open(out, 'w').write(build(opt))
```

```python
import sys, struct

N, E, D = 25000, 800000, 64
NWG = 256
CH = E // NWG
HSTRIDE = 16384 + 128
SEG_OFF = 4096
H1_OFF = 256 * HSTRIDE
WS_USED = SEG_OFF + 2 * H1_OFF
FULLM = 0x003FFFFE
X_BYTES = N * 128
EMPTY = 0x003FFFFF
KNAME = 'standalone__kernel_systems_refs_featgraph__graph_kernel'

L_ACNT = 0
L_BCNT = 1024
L_RESC = 1088
L_PEND = 1120
L_LUT = 1152
L_WV = 2048
L_LIST = 10240
GSTRIDE = 1408
L_RING = 32768
L_WQ = 98304
ISTRIDE = 144
L_IMG = 163840 - 256 * ISTRIDE
LDS = 163840
STAMP_OFF = 0x1000000

def f32bits(x):
    return struct.unpack('<I', struct.pack('<f', x))[0]

class Asm:
    def __init__(self):
        self.lines = []
    def __call__(self, s):
        for ln in s.strip('\n').split('\n'):
            if ln.strip():
                self.lines.append(ln)
    def text(self):
        return '\n'.join(self.lines) + '\n'

def vr(lo, n):
    return f'v[{lo}:{lo+n-1}]'

def srd(a, d, lo, nbytes):
    a(f'    s_mov_b32 s{d}, s{lo}')
    a(f'    s_mov_b32 s{d+1}, s{lo+1}')
    a(f'    s_mov_b32 s{d+2}, {nbytes}')
    a(f'    s_mov_b32 s{d+3}, 0x00020000')

LANE, T4, T16, FOUR, ZERO, OUTOFF, WVA = 1, 2, 3, 4, 5, 6, 7
QLO, QHI, ACC, XA, XT, S, PP, MA, MB, EE = 8, 16, 24, 40, 56, 72, 76, 80, 84, 88
M0R, M1R, RA0, RA1, RT, EA, MAD, CHK, EA0, MAD0 = 92, 93, 94, 95, 96, 100, 101, 102, 103, 120
T = 104
EN = 112
PFD = 121
ATK = 122
ED, ES, B4, PS = 40, 44, 48, 52
WD, XN = 56, 60
IMGR, STO, WSA = 68, 69, 70
G4, RK = 40, 48

SX, SSRC, SDST, SW, SOUT, SWS = 20, 24, 28, 32, 36, 40
WID, SEGB, AMASK, RING, NT, TT = 44, 45, 46, 47, 48, 49
TAG = 50
SEMPTY, MODE, LOM = 54, 55, 56
M3 = 58
RESC = 60
VM = 68
X0 = 84
POLLN = 96
PRIME = 97
GAVE = 3
EPOCH = 34
L_GAVE = 1124

def gen_red(a, opt):
    a('.globl red_kernel\n.p2align 8\n.type red_kernel,@function\nred_kernel:')
    a(f'''
    s_cmp_lg_u32 s2, 0
    s_cbranch_scc1 R_end
    s_load_dwordx4 s[4:7], s[0:1], 48
    v_lshlrev_b32 v1, 2, v0
    s_waitcnt lgkmcnt(0)
    s_add_u32 s8, s6, {STAMP_OFF}
    s_addc_u32 s9, s7, 0
    v_add_u32 v20, 16, v0
    v_and_b32 v20, 63, v20
    v_lshlrev_b32 v20, 2, v20
    v_add_u32 v21, 32, v0
    v_and_b32 v21, 63, v21
    v_lshlrev_b32 v21, 2, v21
    v_mov_b32 v2, -1
    v_mov_b32 v3, 0
    s_mov_b32 s10, 0
R_l:''')
    for u in range(8):
        a(f'    global_load_dword v{8+u}, v1, s[8:9] offset:{256*u}')
    a('    s_waitcnt vmcnt(0)')
    for u in range(8):
        a(f'    v_min_u32 v2, v2, v{8+u}')
        a(f'    v_max_u32 v3, v3, v{8+u}')
    a('''
    v_add_u32 v1, 2048, v1
    s_add_u32 s10, s10, 1
    s_cmp_lt_u32 s10, 128
    s_cbranch_scc1 R_l''')
    for idx in (20, 21):
        a(f'''
    ds_bpermute_b32 v8, v{idx}, v2
    ds_bpermute_b32 v9, v{idx}, v3
    s_waitcnt lgkmcnt(0)
    v_min_u32 v2, v2, v8
    v_max_u32 v3, v3, v9''')
    src = 2 if opt.get('r_min') else 3
    a(f'''
    s_nop 1
    v_readlane_b32 s12, v2, 0
    s_nop 1
    v_subrev_u32 v10, s12, v{src}
    v_lshlrev_b32 v1, 2, v0
    s_mov_b64 exec, 0xffff
    global_store_dword v1, v10, s[4:5]''')
    if 'r_sel' in opt:
        a(f'''
    v_readlane_b32 s14, v10, {opt['r_sel']}
    s_memrealtime s[16:17]
    s_mul_i32 s14, s14, 10
    s_min_u32 s14, s14, 100000
    s_waitcnt lgkmcnt(0)
R_spin:
    s_memrealtime s[18:19]
    s_waitcnt lgkmcnt(0)
    s_sub_u32 s18, s18, s16
    s_cmp_lt_u32 s18, s14
    s_cbranch_scc1 R_spin''')
    a('''
R_end:
    s_endpgm''')

def build(opt):
    a = Asm()
    st = opt.get('stamps')
    nstamp = [0]
    def stamp(k):
        if st:
            ck = {0: 14, 7: 12, 9: 13}.get(k)
            if ck:
                a('    s_memtime s[100:101]')
            a(f'    s_memrealtime s[98:99]')
            a('    s_waitcnt lgkmcnt(0)')
            a(f'    v_writelane_b32 v123, s98, {k}')
            if ck:
                a(f'    v_writelane_b32 v123, s100, {ck}')
    lst = opt.get('list', 0)
    launch = (f'; @launch kernel={KNAME} grid=({NWG},1,1) block=(1024,1,1) lds={LDS}' if lst else
              f'; @launch grid=({NWG},1,1) block=(1024,1,1) lds={LDS}')
    nopl = '; @launch kernel=nop_kernel grid=(256,1,1) block=(64,1,1) lds=0'
    if opt.get('pre'):
        launch = nopl + '\n' + launch
    if opt.get('twice'):
        launch = launch + '\n' + launch
    if opt.get('post'):
        launch = launch + '\n' + nopl
    if opt.get('red'):
        launch += '\n; @launch kernel=red_kernel grid=(1,1,1) block=(64,1,1) lds=0'
    a(f'''; FeatGraph (SDDMM sigmoid gate + SpMM) in one launch, one workgroup per CU.
{launch}
.amdgcn_target "amdgcn-amd-amdhsa--gfx950"
.text
.globl {KNAME}
.p2align 8
.type {KNAME},@function
{KNAME}:
    s_cmp_ge_u32 s2, {NWG}
    s_cbranch_scc1 L_end''')
    if st:
        a('    v_mov_b32 v123, 0')
    stamp(0)
    EPV = 125
    a(f"""
    s_load_dwordx16 s[4:19], s[0:1], 0
    s_mul_i32 s{X0}, s2, {CH*4}
    v_lshlrev_b32 v{T4}, 2, v0
    v_lshrrev_b32 v{T+4}, 6, v0
    v_add_u32 v{T}, s{X0}, v{T4}
    v_readfirstlane_b32 s{WID}, v{T+4}
    v_add_u32 v{T+1}, 4096, v{T}
    v_add_u32 v{T+2}, 8192, v{T}
    v_add_u32 v{T+3}, 12288, v{T}
    v_cmp_gt_u32 s[{M3}:{M3+1}], {CH-3072}, v0
    v_lshlrev_b32 v{T16}, 4, v0
    v_mov_b32 v{ZERO}, 0
    v_mov_b32 v{T+4}, {EMPTY}
    v_mov_b32 v{T+5}, {EMPTY}
    v_mov_b32 v{T+6}, {EMPTY}
    v_mov_b32 v{T+7}, {EMPTY}
    s_mov_b64 exec, s[{M3}:{M3+1}]
    s_waitcnt lgkmcnt(0)
    s_cbranch_execz A_no3a
    global_load_dword v{ED+3}, v{T+3}, s[8:9]
    global_load_dword v{ES+3}, v{T+3}, s[6:7]
A_no3a:
    s_mov_b64 exec, -1""")
    for k in range(3):
        a(f'    global_load_dword v{ED+k}, v{T+k}, s[8:9]')
    for k in range(3):
        a(f'    global_load_dword v{ES+k}, v{T+k}, s[6:7]')
    a(f"""
    v_add_u32 v{T}, {L_IMG}, v{T16}
    ds_write_b128 v{T}, {vr(T+4,4)}
    ds_write_b128 v{T}, {vr(T+4,4)} offset:16384
    s_cmp_ge_u32 s{WID}, 4
    s_cbranch_scc1 I_a
    ds_write_b128 v{T}, {vr(T+4,4)} offset:32768
    ds_write_b32 v{T4}, v{ZERO} offset:{L_ACNT}
I_a:
    global_load_dword v{EPV}, v{ZERO}, s[18:19]
    v_and_b32 v{LANE}, 63, v0
    v_mov_b32 v{FOUR}, 4""")
    srd(a, SX, 4, X_BYTES)
    a(f"""
    s_cmp_lt_u32 s{WID}, 8
    s_cselect_b32 s{SW}, s10, s12
    s_cselect_b32 s{SW+1}, s11, s13
    v_and_b32 v{T+3}, 0x1ff0, v{T16}
    s_waitcnt lgkmcnt(0)
    s_barrier
    global_load_dwordx4 {vr(WD,4)}, v{T+3}, s[{SW}:{SW+1}]
    v_and_b32 v{T}, 7, v0
    v_lshlrev_b32 v{T}, 19, v{T}
    s_lshl_b32 s{X0+4}, s{WID}, 15
    s_lshl_b32 s{X0+5}, s2, 7
    s_add_u32 s{X0+4}, s{X0+4}, s{X0+5}
    v_add_u32 v{T}, s{X0+4}, v{T}
    v_lshrrev_b32 v{T+1}, 4, v{LANE}        ; g
    v_lshl_add_u32 v{T+2}, v{T+1}, 4, v{T}
    v_lshl_add_u32 v{OUTOFF}, v{T+1}, 5, v{T}
    buffer_load_dwordx4 {vr(XN,4)}, v{T+2}, s[{SX}:{SX+3}], 0 offen
    buffer_load_dwordx4 {vr(XN+4,4)}, v{T+2}, s[{SX}:{SX+3}], 0 offen offset:64""")
    pf1 = opt.get('pf1', 0)
    pf2 = opt.get('pf2', 0)
    pf3 = opt.get('pf3', 0)
    def prefetch(lo, hi):
        m = ((1 << hi) - 1) ^ ((1 << lo) - 1)
        a(f"""
    s_lshr_b32 s{X0+11}, s2, 3
    s_lshl_b32 s{X0+11}, s{X0+11}, 4
    s_add_u32 s{X0+11}, s{X0+11}, s{WID}
    s_mul_i32 s{X0+11}, s{X0+11}, {49*128}
    v_lshlrev_b32 v{PFD}, 7, v{LANE}
    s_mov_b32 exec_lo, 0x{m & 0xffffffff:x}
    s_mov_b32 exec_hi, 0x{m >> 32:x}
    buffer_load_dword v{PFD}, v{PFD}, s[{SX}:{SX+3}], s{X0+11} offen
    s_mov_b64 exec, -1""")
    y = 4
    if pf1:
        prefetch(0, pf1)
        y += 1
    stamp(1)
    a(f"""
    ds_write_b128 v{T16}, {vr(T+4,4)} offset:{L_LIST}
    s_cmp_ge_u32 s{WID}, 6
    s_cbranch_scc1 I_b
    ds_write_b128 v{T16}, {vr(T+4,4)} offset:{L_LIST+16384}
I_b:
    s_cmp_lg_u32 s{WID}, 12
    s_cbranch_scc1 I_done
    v_mul_u32_u24 v{T+2}, {GSTRIDE}, v{LANE}
    v_add_u32 v{T+2}, {L_LIST}, v{T+2}
    v_cmp_gt_u32 vcc, 16, v{LANE}
    v_lshlrev_b32 v{T+3}, 2, v{LANE}
    s_mov_b32 exec_hi, 0
    v_cndmask_b32 v{T+2}, 0, v{T+2}, vcc
    ds_write_b32 v{T+3}, v{T+2} offset:{L_BCNT}
    s_mov_b64 exec, 0xff
    v_cvt_f32_u32 v{T+2}, v{LANE}
    v_mul_f32 v{T+3}, v{T+2}, v{T+2}
    v_cvt_pk_bf16_f32 v{T+2}, v{T+3}, v{T+2}
    v_lshlrev_b32 v{T+3}, 4, v{LANE}
    ds_write_b32 v{T+3}, v{T+2} offset:{L_LUT}
    s_mov_b64 exec, -1
I_done:""")
    srd(a, SWS, 18, WS_USED)
    a(f"""
    s_lshr_b32 s{PRIME}, s2, 3
    s_and_b32 s{X0+4}, s2, 7
    s_lshl_b32 s{X0+4}, s{X0+4}, 5
    s_or_b32 s{PRIME}, s{PRIME}, s{X0+4}
    s_lshl_b32 s{X0}, s{PRIME}, 6
    s_add_u32 s{X0}, s{X0}, {SEG_OFF}
    s_add_u32 s{X0+1}, s{X0}, {H1_OFF}
    s_mov_b32 s{SEMPTY}, {EMPTY}
    s_mov_b32 s{X0+4}, {L_IMG}
    v_lshrrev_b32 v{T}, 2, v0
    v_and_b32 v{T+1}, 3, v0
    v_mul_u32_u24 v{IMGR}, {ISTRIDE}, v{T}
    v_lshl_add_u32 v{IMGR}, v{T+1}, 2, v{IMGR}
    v_add_u32 v{IMGR}, {L_IMG}, v{IMGR}
    v_mul_u32_u24 v{STO}, {HSTRIDE}, v{T}
    v_lshl_add_u32 v{STO}, v{T+1}, 4, v{STO}
    v_bfe_u32 v{T}, v0, 3, 6
    v_and_b32 v{T+1}, 7, v0
    v_bfe_u32 v{T+2}, v{T}, 1, 1
    v_and_or_b32 v{T+2}, v{T}, 8, v{T+2}
    v_bfe_u32 v{T+3}, v{T}, 1, 2
    s_cmp_lt_u32 s{WID}, 8
    s_cselect_b64 s[{X0+6}:{X0+7}], -1, 0
    s_mov_b32 s{X0+5}, {L_WV}
    s_cselect_b32 s{X0+5}, {L_WQ}, s{X0+5}
    v_cndmask_b32 v{T+2}, v{T+3}, v{T+2}, s[{X0+6}:{X0+7}]
    v_lshlrev_b32 v{T+1}, 1, v{T+1}
    v_xor_b32 v{T+1}, v{T+1}, v{T+2}
    v_lshlrev_b32 v{T+1}, 3, v{T+1}
    v_lshl_add_u32 v{T+1}, v{T}, 7, v{T+1}
    v_add_u32 v{WSA}, s{X0+5}, v{T+1}
    v_xor_b32 v{WSA+1}, 8, v{WSA}""")
    def arank(k):
        a(f"""
    v_lshlrev_b32_sdwa v{B4+k}, 2, v{ED+k} dst_sel:DWORD dst_unused:UNUSED_PAD src0_sel:DWORD src1_sel:BYTE_0
    ds_add_rtn_u32 v{PS+k}, v{B4+k}, v{FOUR} offset:{L_ACNT}""")
    def aentry(k):
        a(f"""
    v_lshrrev_b32 v{ED+k}, 8, v{ED+k}
    v_lshl_or_b32 v{ES+k}, v{ES+k}, 7, v{ED+k}
    v_mad_u32_u24 v{B4+k}, v{B4+k}, {ISTRIDE//4}, s{X0+4}""")
    def aput(k):
        a(f"""
    v_min_u32 v{PS+k}, {ISTRIDE-4}, v{PS+k}
    v_add_u32 v{PS+k}, v{PS+k}, v{B4+k}
    ds_write_b32 v{PS+k}, v{ES+k}""")
    a(f'    s_waitcnt vmcnt({y+3})')
    stamp(2)
    for k in range(3):
        arank(k)
    pfa = opt.get('pfa', 0)
    if pfa:
        prefetch(pf1, pfa)
        y += 1
        pf1 = pfa
    a(f'    s_waitcnt vmcnt({y})')
    for k in range(3):
        aentry(k)
    for k in range(3):
        a('    s_waitcnt lgkmcnt(2)')
        aput(k)
    a(f"""
    s_mov_b64 exec, s[{M3}:{M3+1}]
    s_cbranch_execz A_no3b""")
    arank(3)
    aentry(3)
    a('    s_waitcnt lgkmcnt(0)')
    aput(3)
    a(f"""
A_no3b:
    s_mov_b64 exec, -1
    s_waitcnt vmcnt({y-2})
    v_readfirstlane_b32 s{EPOCH}, v{EPV}
    ds_write_b64 v{WSA}, {vr(WD,2)}
    ds_write_b64 v{WSA+1}, {vr(WD+2,2)}
    s_add_u32 s{EPOCH}, s{EPOCH}, 1
    s_lshl_b32 s{TAG}, s{EPOCH}, 22
    s_lshl_b32 s{TAG+1}, s{EPOCH}, 12
    s_and_b32 s{TAG+1}, s{TAG+1}, 0xffc00000
    s_lshl_b32 s{TAG+2}, s{EPOCH}, 2
    s_and_b32 s{TAG+2}, s{TAG+2}, 0xffc00000
    s_xor_b32 s{TAG+3}, s{TAG}, 0xffc00000
    s_mov_b32 s{X0+8}, 0x88888888
    s_mov_b32 s{X0+9}, 0x88888888
    s_waitcnt lgkmcnt(0)
    s_barrier""")
    stamp(3)
    sf = opt.get('st', ' sc1')
    lf = opt.get('ld', ' sc1')
    a(f"""
    ds_read2_b32 {vr(46,2)}, v{IMGR} offset0:24 offset1:28
    ds_read2_b32 {vr(40,2)}, v{IMGR} offset0:0 offset1:4
    ds_read2_b32 {vr(42,2)}, v{IMGR} offset0:8 offset1:12
    ds_read2_b32 {vr(44,2)}, v{IMGR} offset0:16 offset1:20
    s_waitcnt lgkmcnt(3)
    v_cmp_ne_u32 vcc, s{SEMPTY}, v47
    s_and_b64 s[{X0+6}:{X0+7}], vcc, s[{X0+8}:{X0+9}]
    s_waitcnt lgkmcnt(1)
    s_cbranch_scc1 A_full
A_pub:
    v_cmp_ne_u32 vcc, s{SEMPTY}, v43""")
    for r in range(4):
        a(f'    v_or_b32 v{40+r}, s{TAG+r}, v{40+r}')
    a(f"""
    buffer_store_dwordx4 {vr(40,4)}, v{STO}, s[{SWS}:{SWS+3}], s{X0} offen{sf}
    s_and_b64 s[{X0+6}:{X0+7}], vcc, s[{X0+8}:{X0+9}]
    s_wqm_b64 exec, s[{X0+6}:{X0+7}]
    s_waitcnt vmcnt({y-3}) lgkmcnt(0)
    s_cbranch_execz A_noh1""")
    for r in range(4):
        a(f'    v_or_b32 v{44+r}, s{TAG+r}, v{44+r}')
    a(f"""
    buffer_store_dwordx4 {vr(44,4)}, v{STO}, s[{SWS}:{SWS+3}], s{X0+1} offen{sf}
A_noh1:
    s_mov_b64 exec, -1""")
    pfb = opt.get('pfb', 0)
    if pfb:
        prefetch(pf1, pfb)
        pf1 = pfb
    stamp(4)
    srd(a, SOUT, 14, X_BYTES)
    srd(a, SSRC, 6, E*4)
    srd(a, SDST, 8, E*4)
    a(f"""
    s_mul_i32 s{SEGB}, s2, {HSTRIDE}
    s_add_u32 s{SEGB}, s{SEGB}, {SEG_OFF}
    s_add_u32 s{X0+2}, s{SEGB}, {H1_OFF}
    s_mov_b32 s{AMASK}, 0x003fff80
    s_lshl_b32 s{RING}, s{WID}, 13
    s_add_u32 s{RING}, s{RING}, {L_RING}
    s_mov_b32 s{MODE}, 0
    s_mov_b32 s{GAVE}, 0
    s_mov_b32 s{LOM}, 0x00ff00ff
    s_mov_b32 s{LOM+1}, 0x00ff00ff""")
    early = 0
    def poll_issue():
        a(f'    buffer_load_dwordx4 {vr(EN,4)}, v{T16}, s[{SWS}:{SWS+3}], s{SEGB} offen{lf}')
    a(f'''
    v_lshrrev_b32 v{T}, 4, v{LANE}
    v_bfe_u32 v{T+1}, v{LANE}, 2, 2
    v_lshl_add_u32 v{T+2}, v{T}, 3, v{T+1}
    v_bfe_u32 v{T+3}, v{T+2}, 1, 1
    v_and_or_b32 v{T+3}, v{T+2}, 8, v{T+3}
    v_and_b32 v{T+4}, 3, v{LANE}
    v_lshlrev_b32 v{T+4}, 1, v{T+4}
    v_xor_b32 v{T+3}, v{T+3}, v{T+4}
    v_lshlrev_b32 v{T+3}, 3, v{T+3}
    v_lshl_add_u32 v{T}, v{T+2}, 7, v{T+3}
    v_add_u32 v{T}, {L_WQ}, v{T}
    v_xor_b32 v{T+1}, 8, v{T}
    v_xor_b32 v{T+2}, 64, v{T}
    v_xor_b32 v{T+3}, 0x48, v{T}''')
    wreg = [24, 32, 72, 80]
    for blk in range(4):
        for ks in range(2):
            for h in range(2):
                a(f'    ds_read_b64_tr_b16 {vr(wreg[blk]+ks*4+h*2,2)}, v{T+blk} offset:{(32*ks+4*h)*128}')
        if blk == 1:
            a('    s_waitcnt lgkmcnt(0)')
    a(f'''
    v_and_b32 v{T+4}, 15, v{LANE}           ; i
    v_lshrrev_b32 v{T+5}, 3, v{LANE}
    v_and_b32 v{T+6}, 6, v{T+5}
    v_and_b32 v{T+7}, 7, v{LANE}
    v_xor_b32 v{T+6}, v{T+6}, v{T+7}
    v_lshlrev_b32 v{CHK}, 4, v{T+6}
    s_mul_i32 s{X0+4}, s{WID}, {GSTRIDE}
    s_add_u32 s{X0+4}, s{X0+4}, {L_LIST}
    v_lshl_add_u32 v{EA0}, v{T+5}, 4, s{X0+4}
    v_bfe_u32 v{T+6}, v{LANE}, 3, 2
    v_lshl_add_u32 v{T+6}, v{T+7}, 2, v{T+6}
    v_lshl_add_u32 v{MAD0}, v{T+6}, 2, s{X0+4}
    v_lshrrev_b32 v{T+1}, 4, v{LANE}        ; g
    v_and_b32 v{T+6}, 6, v{T+4}
    v_xor_b32 v{T+6}, v{T+6}, v{T+1}
    v_lshlrev_b32 v{T+6}, 4, v{T+6}
    v_lshl_add_u32 v{T+6}, v{T+4}, 7, v{T+6}
    v_add_u32 v{RA0}, s{RING}, v{T+6}
    v_xor_b32 v{RA1}, 64, v{RA0}
    v_lshrrev_b32 v{T+6}, 2, v{LANE}        ; row = 4g+r
    v_and_b32 v{T+7}, 6, v{T+6}
    v_bfe_u32 v{T+5}, v{LANE}, 1, 1
    v_xor_b32 v{T+7}, v{T+7}, v{T+5}
    v_lshlrev_b32 v{T+7}, 4, v{T+7}
    v_lshl_add_u32 v{T+7}, v{T+6}, 7, v{T+7}
    v_and_b32 v{T+5}, 1, v{LANE}
    v_lshl_add_u32 v{T+7}, v{T+5}, 3, v{T+7}
    v_add_u32 v{RT}, s{RING}, v{T+7}
    v_xor_b32 v{RT+1}, 32, v{RT}
    v_xor_b32 v{RT+2}, 64, v{RT}
    v_xor_b32 v{RT+3}, 0x60, v{RT}
    v_bfe_u32 v{T+5}, v{T+6}, 1, 2
    v_and_b32 v{T+7}, 3, v{LANE}
    v_lshl_or_b32 v{T+5}, v{T+7}, 2, v{T+5}
    v_lshlrev_b32 v{T+5}, 3, v{T+5}
    v_lshl_add_u32 v{WVA}, v{T+6}, 7, v{T+5}
    s_waitcnt lgkmcnt(0)''')
    for blk in range(4):
        a(f'    v_mfma_f32_16x16x32_bf16 {vr(QLO+4*blk,4)}, {vr(wreg[blk],4)}, {vr(XN,4)}, 0')
    for blk in range(4):
        a(f'    v_mfma_f32_16x16x32_bf16 {vr(QLO+4*blk,4)}, {vr(wreg[blk]+4,4)}, {vr(XN+4,4)}, {vr(QLO+4*blk,4)}')
    late = opt.get('late', 0)
    if not early and not late:
        poll_issue()
    if pf2:
        prefetch(pf1, pf2)
    a(f'    s_mov_b32 s{X0+4}, 0x{f32bits(-1.4426950408889634/8):08x}')
    a(f'''
    v_mov_b32 v{MA+1}, 0x00003f80
    v_mov_b32 v{MA+2}, 0
    v_mov_b32 v{MA+3}, 0
    v_mov_b32 v{MB}, 0
    v_mov_b32 v{MB+1}, 0
    v_mov_b32 v{MB+2}, 0
    v_mov_b32 v{MB+3}, 0
    v_and_b32 v{T+5}, 7, v{LANE}
    v_cvt_f32_u32 v{T+5}, v{T+5}            ; j'
    v_mov_b32 v{T+6}, 0x71800000            ; BIG = 2^100
    v_mul_f32 v{T+7}, v{T+5}, v{T+6}
    v_mul_f32 v{T+5}, v{T+5}, v{T+7}
    v_mul_f32 v{T+7}, -2.0, v{T+7}
    s_mov_b32 exec_lo, 0xff0000ff
    s_mov_b32 exec_hi, 0
    v_cvt_pk_bf16_f32 v{MB}, v{T+6}, v{T+7}
    v_cvt_pk_bf16_f32 v{MB+1}, v{T+5}, 0
    s_mov_b64 exec, -1''')
    for r in range(16):
        a(f'    v_mul_f32 v{QLO+r}, s{X0+4}, v{QLO+r}')
    for r in range(8):
        a(f'    v_cvt_pk_bf16_f32 v{T+r}, v{QLO+2*r}, v{QLO+2*r+1}')
    for r in range(8):
        a(f'    v_cndmask_b32 v{QLO+r}, 0, v{T+r}, s[{LOM}:{LOM+1}]')
        a(f'    v_cndmask_b32 v{QHI+r}, v{T+r}, 0, s[{LOM}:{LOM+1}]')
    for r in range(16):
        a(f'    v_mov_b32 v{ACC+r}, 0')
    if late:
        if late == 2:
            a('    s_waitcnt vmcnt(0)')
        poll_issue()
    stamp(5)
    S0, S1 = X0+4, X0+6
    def check(h, sm):
        for r in range(4):
            a(f'    v_xor_b32 v{EN+4*h+r}, s{TAG+r}, v{EN+4*h+r}')
        a(f"""
    v_or3_b32 v{T}, v{EN+4*h}, v{EN+4*h+1}, v{EN+4*h+2}
    v_or_b32 v{T}, v{T}, v{EN+4*h+3}
    v_cmp_le_u32 s[{sm}:{sm+1}], s{X0+10}, v{T}""")
    a(f"""
    s_mov_b32 s{POLLN}, 0
    s_mov_b32 s{X0+10}, 0x400000
    s_mov_b32 s{X0+3}, {FULLM}""")
    for r in range(4, 8):
        a(f'    v_mov_b32 v{EN+r}, {EMPTY}')
    a(f"""
    s_waitcnt vmcnt({1 if pf2 and not late else 0})
P_loop:""")
    check(0, S0)
    a(f"""
    s_mov_b64 exec, s[{S0}:{S0+1}]
    s_cbranch_execz P_done
    s_add_u32 s{POLLN}, s{POLLN}, 1
    s_cmp_gt_u32 s{POLLN}, {opt.get('pollmax', 2000)}
    s_cbranch_scc1 P_giveup
    buffer_load_dwordx4 {vr(EN,4)}, v{T16}, s[{SWS}:{SWS+3}], s{SEGB} offen{lf}
    s_waitcnt vmcnt(0)
    s_branch P_loop
P_done:
    s_mov_b64 exec, -1
    v_cmp_ne_u32 s[{VM+6}:{VM+7}], s{SEMPTY}, v{EN+3}
    v_cmp_eq_u32 vcc, s{X0+3}, v{EN}
    s_and_b64 s[{S1}:{S1+1}], s[{VM+6}:{VM+7}], s[{X0+8}:{X0+9}]
    s_wqm_b64 s[{S1}:{S1+1}], s[{S1}:{S1+1}]
    s_mov_b64 exec, s[{S1}:{S1+1}]
    s_cbranch_execz P_noh1
    buffer_load_dwordx4 {vr(EN+4,4)}, v{T16}, s[{SWS}:{SWS+3}], s{X0+2} offen{lf}
P_noh1:
    s_mov_b64 exec, -1
    s_cbranch_vccnz R_rare
R_fast:""")
    if st:
        a(f'    v_writelane_b32 v123, s{POLLN}, 15')
    stamp(6)
    def brank(r, skip=None):
        m = VM + 2*r
        a(f"""
    v_cmp_ne_u32 s[{m}:{m+1}], s{SEMPTY}, v{EN+r}
    v_and_b32 v{G4+r}, 15, v{EN+r}
    v_lshlrev_b32 v{G4+r}, 2, v{G4+r}
    s_mov_b64 exec, s[{m}:{m+1}]""")
        if skip:
            a(f'    s_cbranch_execz {skip}')
        a(f"""
    ds_add_rtn_u32 v{RK+r}, v{G4+r}, v{FOUR} offset:{L_BCNT}
    s_mov_b64 exec, -1""")
    def bput(r):
        m = VM + 2*r
        a(f"""
    s_mov_b64 exec, s[{m}:{m+1}]
    ds_write_b32 v{RK+r}, v{EN+r}""")
    for r in range(4):
        brank(r)
    for r in range(4):
        a(f'    s_waitcnt lgkmcnt(3)')
        bput(r)
    if pf3:
        a('    s_mov_b64 exec, -1')
        prefetch(max(pf1, pf2), pf3)
    a(f"""
    s_mov_b64 exec, s[{S1}:{S1+1}]
    s_cbranch_execz H_done
    s_mov_b32 s{POLLN}, 0
    s_waitcnt vmcnt({1 if pf3 else 0})
H_loop:""")
    check(1, S1)
    a(f"""
    s_mov_b64 exec, s[{S1}:{S1+1}]
    s_cbranch_execz H_got
    s_add_u32 s{POLLN}, s{POLLN}, 1
    s_cmp_gt_u32 s{POLLN}, 1000000
    s_cbranch_scc1 H_lost
    buffer_load_dwordx4 {vr(EN+4,4)}, v{T16}, s[{SWS}:{SWS+3}], s{X0+2} offen{lf}
    s_waitcnt vmcnt(0)
    s_branch H_loop
H_got:
    s_mov_b64 exec, -1""")
    for r in range(4, 8):
        brank(r, 'H_done')
        a('    s_waitcnt lgkmcnt(0)')
        bput(r)
        a('    s_mov_b64 exec, -1')
    a('H_done:')
    a(f'''
    s_mov_b64 exec, -1
    v_and_b32 v{T}, 31, v{LANE}
    v_lshlrev_b32 v{T}, 2, v{T}
    v_mov_b32 v{EA}, v{EA0}
    v_mov_b32 v{MAD}, v{MAD0}
    v_and_b32 v{T+2}, 15, v{LANE}
    v_mul_u32_u24 v{T+2}, {GSTRIDE}, v{T+2}
    v_add_u32 v{T+2}, {L_LIST}, v{T+2}
    s_waitcnt lgkmcnt(0)
    s_barrier''')
    stamp(7)
    a(f'''
B_counts:
    ds_read_b32 v{T+1}, v{T} offset:{L_BCNT}
    ds_read_b128 {vr(EE,4)}, v{EA}
    ds_read_b128 {vr(T+4,4)}, v{EA} offset:128
    ds_read_b32 v{M0R}, v{MAD}
    s_waitcnt lgkmcnt(3)
    v_sub_u32 v{T+3}, v{T+1}, v{T+2}
    s_mov_b64 exec, 0x1ffffff
    v_cmp_lt_u32 vcc, {GSTRIDE}, v{T+3}
    v_cmp_ne_u32 s[{X0}:{X0+1}], 0, v{T+1}
    s_mov_b64 exec, -1
    v_readlane_b32 s{NT}, v{T+3}, s{WID}
    s_and_b32 s{X0+2}, vcc_lo, 0xffff
    s_and_b32 s{X0}, s{X0}, 0x1ff0000
    s_or_b32 s{X0+3}, s{X0+2}, s{X0}
    s_or_b32 s{X0+3}, s{X0+3}, s{MODE}
    s_cbranch_scc1 C_slowcnt
B_cntok:
    s_add_u32 s{NT}, s{NT}, 127
    s_lshr_b32 s{NT}, s{NT}, 7              ; tiles
    s_cbranch_scc0 B_loopdone
    {f's_mov_b32 s{NT}, ' + str(opt['bench']) if opt.get('bench') else ''}
    s_setprio 3
    s_waitcnt lgkmcnt(0)''')
    gf = opt.get('gather', '')
    def dma(ereg, slot):
        for q in range(4):
            if q == 0:
                a(f'    s_mov_b32 m0, s{RING}' if slot == 0 else f'    s_add_u32 m0, s{RING}, 4096')
            else:
                a('    s_add_u32 m0, m0, 1024')
            a(f'    v_and_or_b32 v{ereg+q}, v{ereg+q}, s{AMASK}, v{CHK}')
            a(f'    buffer_load_dwordx4 v{ereg+q}, s[{SX}:{SX+3}], 0 offen{gf} lds')
    dma(EE, 0)
    a(f'''
    s_cmp_lt_u32 s{NT}, 2
    s_cbranch_scc1 B_one''')
    dma(T+4, 1)
    a(f'''
B_one:
    ds_read_b128 {vr(EE,4)}, v{EA} offset:256
    v_and_b32 v{M0R}, 0x70, v{M0R}
    s_mov_b32 s{TT}, 1                      ; t+1''')
    stamp(8)
    if opt.get('prof'):
        a('''
    s_memtime s[98:99]
    s_mov_b32 s60, 0
    s_mov_b32 s61, 0
    s_mov_b32 s62, 0
    s_mov_b32 s63, 0
    s_waitcnt lgkmcnt(0)
    s_mov_b32 s64, s98''')
    a('B_loop:')
    pk = opt.get('pk', 0)
    def prof(k):
        if opt.get('prof'):
            a(f'''
    s_memtime s[98:99]
    s_waitcnt lgkmcnt(0)
    s_sub_u32 s65, s98, s64
    s_add_u32 s{60+k}, s{60+k}, s65
    s_mov_b32 s64, s98''')
    def body(slot):
        so = slot * 4096
        mcur, mnext = (M0R, M1R) if slot == 0 else (M1R, M0R)
        eo = slot * 128
        th = (5, 3, 1)
        if opt.get('prio', 1) and slot == 0:
            a(f'''
    s_sub_u32 s{X0}, s{NT}, s{TT}
    s_cmp_ge_u32 s{X0}, 6
    s_cbranch_scc1 B_p{slot}
    s_setprio 2
    s_cmp_ge_u32 s{X0}, 4
    s_cbranch_scc1 B_p{slot}
    s_setprio 1
    s_cmp_ge_u32 s{X0}, 2
    s_cbranch_scc1 B_p{slot}
    s_setprio 0
B_p{slot}:''')
        prof(3)
        a(f'''
    ds_read_b32 v{MA}, v{mcur} offset:{L_LUT}
    ds_read_b32 v{mnext}, v{MAD} offset:{eo+128}
    s_cmp_lt_u32 s{TT}, s{NT}
    s_cbranch_scc1 B_w4_{slot}
    s_waitcnt vmcnt(0)
B_w4_{slot}:
    s_waitcnt vmcnt(4)''')
        prof(0)
        a(f'''
    ds_read_b128 {vr(XA,4)}, v{RA0} offset:{so}
    ds_read_b128 {vr(XA+4,4)}, v{RA1} offset:{so}
    ds_read_b128 {vr(XA+8,4)}, v{RA0} offset:{so+2048}
    ds_read_b128 {vr(XA+12,4)}, v{RA1} offset:{so+2048}''')
        for fb in range(4):
            a(f'    ds_read_b64_tr_b16 {vr(XT+4*fb,2)}, v{RT+fb} offset:{so}')
            a(f'    ds_read_b64_tr_b16 {vr(XT+4*fb+2,2)}, v{RT+fb} offset:{so+2048}')
        a(f'''
    s_add_u32 s{TT}, s{TT}, 1               ; t+2
    s_waitcnt lgkmcnt(12)
    v_mfma_f32_16x16x32_bf16 {vr(S,4)}, {vr(MA,4)}, {vr(MB,4)}, 0
    v_and_b32 v{mnext}, 0x70, v{mnext}
    s_waitcnt lgkmcnt(11)
    v_mfma_f32_16x16x32_bf16 {vr(S,4)}, {vr(XA,4)}, {vr(QLO,4)}, {vr(S,4)}
    s_waitcnt lgkmcnt(10)
    v_mfma_f32_16x16x32_bf16 {vr(S,4)}, {vr(XA+4,4)}, {vr(QLO+4,4)}, {vr(S,4)}
    s_waitcnt lgkmcnt(9)
    v_mfma_f32_16x16x32_bf16 {vr(S,4)}, {vr(XA+8,4)}, {vr(QHI,4)}, {vr(S,4)}
    s_waitcnt lgkmcnt(8)
    v_mfma_f32_16x16x32_bf16 {vr(S,4)}, {vr(XA+12,4)}, {vr(QHI+4,4)}, {vr(S,4)}
    s_waitcnt lgkmcnt(0)''')
        prof(1)
        a(f'''
    s_cmp_lt_u32 s{TT}, s{NT}
    s_cbranch_scc0 B_skip_{slot}''')
        dma(EE, slot)
        prof(2)
        a(f'''
    ds_read_b128 {vr(EE,4)}, v{EA} offset:{eo+384}
B_cont_{slot}:''')
        for r in range(4):
            a(f'    v_exp_f32 v{S+r}, v{S+r}')
        if slot == 1:
            a(f'    v_add_u32 v{EA}, 256, v{EA}')
            a(f'    v_add_u32 v{MAD}, 256, v{MAD}')
        if pk:
            if slot == 0:
                a('    s_nop 0')
            a(f'    v_pk_add_f32 {vr(S,2)}, {vr(S,2)}, 1.0 op_sel_hi:[1,0]')
            a(f'    v_pk_add_f32 {vr(S+2,2)}, {vr(S+2,2)}, 1.0 op_sel_hi:[1,0]')
        else:
            for r in range(4):
                a(f'    v_add_f32 v{S+r}, 1.0, v{S+r}')
        for r in range(4):
            a(f'    v_rcp_f32 v{S+r}, v{S+r}')
        a(f'''
    v_cvt_pk_bf16_f32 v{PP}, v{S}, v{S+1}
    s_cmp_gt_u32 s{TT}, s{NT}
    v_cvt_pk_bf16_f32 v{PP+1}, v{S+2}, v{S+3}
    s_nop 0
    v_mov_b32_dpp v{PP+2}, v{PP} row_ror:8 row_mask:0xf bank_mask:0xf
    v_mov_b32_dpp v{PP+3}, v{PP+1} row_ror:8 row_mask:0xf bank_mask:0xf
    s_nop 1''')
        for fb in range(4):
            a(f'    v_mfma_f32_16x16x32_bf16 {vr(ACC+4*fb,4)}, {vr(XT+4*fb,4)}, {vr(PP,4)}, {vr(ACC+4*fb,4)}')
        a('    s_cbranch_scc1 B_loopdone' if slot == 0 else '    s_cbranch_scc0 B_loop')
    n0 = len(a.lines)
    body(0)
    body(1)
    drop = []
    if opt.get('bench'): drop += [f'v_add_u32 v{EA}, 256', f'v_add_u32 v{MAD}, 256']
    if opt.get('x_nodma'): drop += ['buffer_load']
    if opt.get('x_nords'): drop += ['ds_read_b128 v[4', 'ds_read_b128 v[5', 'ds_read_b64_tr']
    if opt.get('x_nomfma'): drop += ['v_mfma']
    if opt.get('x_novalu'): drop += ['v_exp', 'v_rcp', 'v_add_f32', 'v_cvt', 'v_mov_b32_dpp', 'v_pk_add']
    a.lines[n0:] = [l for l in a.lines[n0:] if not any(l.strip().startswith(d) for d in drop)]
    a(f'''
B_loopdone:
    s_cmp_lg_u32 s{MODE}, 0
    s_cbranch_scc1 C_next
B_epi:''')
    stamp(9)
    if opt.get('prof'):
        for k in range(4):
            a(f'    v_writelane_b32 v123, s{60+k}, {1+k}')
        a(f'    v_writelane_b32 v123, s{NT}, 5')
    a(f'''
    v_xor_b32 v{T+1}, 8, v{WVA}
    v_xor_b32 v{T+2}, 16, v{WVA}
    v_xor_b32 v{T+3}, 24, v{WVA}''')
    for blk in range(4):
        ad = WVA if blk == 0 else T+blk
        for ks in range(2):
            for h in range(2):
                a(f'    ds_read_b64_tr_b16 {vr(XA+blk*8+ks*4+h*2,2)}, v{ad} offset:{L_WV+(32*ks+16*h)*128}')
        if blk == 2:
            a('    s_waitcnt lgkmcnt(8)')
    for r in range(8):
        a(f'    v_cvt_pk_bf16_f32 v{S+r}, v{ACC+2*r}, v{ACC+2*r+1}')
    for blk in range(4):
        a(f'    s_waitcnt lgkmcnt({12-4*blk if blk else 8})' if blk < 2 else f'    s_waitcnt lgkmcnt({12-4*blk})')
        if blk == 0:
            a('    s_nop 0')
        a(f'    v_mfma_f32_16x16x32_bf16 {vr(QLO+4*blk,4)}, {vr(XA+blk*8,4)}, {vr(S,4)}, 0')
        a(f'    v_mfma_f32_16x16x32_bf16 {vr(QLO+4*blk,4)}, {vr(XA+blk*8+4,4)}, {vr(S+4,4)}, {vr(QLO+4*blk,4)}')
    a(f'''
    s_cmp_lg_u32 s{WID}, 15
    s_cbranch_scc1 K_no2
    s_mov_b64 exec, 1
    s_cmp_lg_u32 s{GAVE}, 0
    s_cbranch_scc1 K_ticket
K_adv:
    v_mov_b32 v{T}, s{EPOCH}
    global_store_dword v{ZERO}, v{T}, s[18:19]
K_skip:
    s_mov_b64 exec, -1
K_no2:
    s_nop 4''')
    for r in range(8):
        a(f'    v_cvt_pk_bf16_f32 v{XA+r}, v{QLO+2*r}, v{QLO+2*r+1}')
    of = opt.get('out', '')
    a(f'''
    s_mov_b64 exec, s[{LOM}:{LOM+1}]
    buffer_store_dwordx4 {vr(XA,4)}, v{OUTOFF}, s[{SOUT}:{SOUT+3}], 0 offen{of}
    buffer_store_dwordx4 {vr(XA+4,4)}, v{OUTOFF}, s[{SOUT}:{SOUT+3}], 0 offen offset:16{of}''')
    if st:
        a('    s_mov_b64 exec, -1')
        stamp(10)
        a('    s_waitcnt vmcnt(0)')
        stamp(11)
        a(f'''
    s_add_u32 s{X0}, s18, {STAMP_OFF}
    s_addc_u32 s{X0+1}, s19, 0
    s_lshl_b32 s{X0+2}, s2, 4
    s_add_u32 s{X0+2}, s{X0+2}, s{WID}
    s_lshl_b32 s{X0+2}, s{X0+2}, 6
    v_lshl_add_u32 v{T}, v{LANE}, 2, s{X0+2}
    s_mov_b64 exec, 0xffff
    global_store_dword v{T}, v123, s[{X0}:{X0+1}]''')
    a(f'''
L_end:
    s_endpgm
K_ticket:
    v_mov_b32 v{T+1}, 1
    global_atomic_add v{ATK}, v{ZERO}, v{T+1}, s[16:17] sc0 sc1
    s_waitcnt vmcnt(0)
    v_readfirstlane_b32 s{X0}, v{ATK}
    s_cmp_eq_u32 s{X0}, {NWG-1}
    s_cbranch_scc1 K_adv
    s_branch K_skip
B_skip_0:
    s_nop 7
    s_branch B_cont_0
B_skip_1:
    s_nop 7
    s_branch B_cont_1''')
    def drop_lines():
        for r in range(4):
            a(f'    v_mov_b32 v{EN+r}, {EMPTY}')
        a(f"""
    v_lshrrev_b32 v{T}, 2, v0
    v_lshrrev_b32 v{T+1}, 5, v{T}
    v_lshlrev_b32 v{T+1}, 2, v{T+1}
    v_lshlrev_b32 v{T}, v{T}, 1
    ds_or_b32 v{T+1}, v{T} offset:{L_RESC}
    s_mov_b64 exec, -1""")
    a(f"""
A_full:
    s_wqm_b64 exec, s[{X0+6}:{X0+7}]
    v_mov_b32 v40, {FULLM}
    v_mov_b32 v41, {EMPTY}
    v_mov_b32 v42, {EMPTY}
    v_mov_b32 v43, {EMPTY}
    s_mov_b64 exec, -1
    s_branch A_pub
P_giveup:
    ds_write_b32 v{ZERO}, v{FOUR} offset:{L_GAVE}
    s_wqm_b64 exec, exec""")
    drop_lines()
    a(f"""
    s_branch P_done
H_lost:""")
    for r in range(4, 8):
        a(f'    v_mov_b32 v{EN+r}, {EMPTY}')
    a(f"""
    s_branch H_got
R_rare:
    s_mov_b64 exec, vcc""")
    drop_lines()
    a(f"""
    s_branch R_fast
C_slowcnt:
    s_cmp_lg_u32 s{MODE}, 0
    s_cbranch_scc1 C_careful""")
    for k in range(8):
        a(f'    v_readlane_b32 s{RESC+k}, v{T+1}, {16+k}')
    a(f'''
    v_readlane_b32 s{GAVE}, v{T+1}, 25
    s_mov_b32 s{MODE}, 2
    s_cmp_lg_u32 s{X0+2}, 0
    s_cbranch_scc1 C_next
    s_mov_b32 s{MODE}, 1
    s_branch B_cntok
C_careful:
    s_min_u32 s{NT}, s{NT}, {GSTRIDE}
    s_bitcmp1_b32 s{X0}, 24
    s_cselect_b32 s{MODE}, 2, 1
    s_branch B_cntok
C_next:
    s_setprio 0
    s_waitcnt vmcnt(0) lgkmcnt(0)
    s_barrier
    s_cmp_eq_u32 s{MODE}, 2
    s_cbranch_scc1 C_round
    s_mov_b32 s{X0}, -1''')
    for k in range(7, -1, -1):
        a(f'''
    s_ff1_i32_b32 s{X0+1}, s{RESC+k}
    s_add_u32 s{X0+1}, s{X0+1}, {32*k}
    s_cmp_lg_u32 s{RESC+k}, 0
    s_cselect_b32 s{X0}, s{X0+1}, s{X0}''')
    a(f'''
    s_cmp_eq_u32 s{X0}, -1
    s_cbranch_scc1 B_epi
    s_lshr_b32 s{X0+1}, s{X0}, 5
    s_lshl_b32 s{X0+2}, 1, s{X0}''')
    for k in range(8):
        a(f'''
    s_andn2_b32 s{X0+3}, s{RESC+k}, s{X0+2}
    s_cmp_eq_u32 s{X0+1}, {k}
    s_cselect_b32 s{RESC+k}, s{X0+3}, s{RESC+k}''')
    a(f'''
    s_and_b32 s{X0+2}, s{X0}, 31
    s_lshl_b32 s{X0+2}, s{X0+2}, 3
    s_or_b32 s{X0}, s{X0+2}, s{X0+1}
    s_mul_i32 s{X0}, s{X0}, {CH*4}''')
    for k in range(4):
        a(f'''
    buffer_load_dword v{ED+k}, v{T4}, s[{SDST}:{SDST+3}], s{X0} offen
    buffer_load_dword v{ES+k}, v{T4}, s[{SSRC}:{SSRC+3}], s{X0} offen
    s_add_u32 s{X0}, s{X0}, 4096''')
    for r in range(4, 8):
        a(f'    v_mov_b32 v{EN+r}, {EMPTY}')
    a(f'    v_mov_b32 v{T+1}, {EMPTY}')
    a('    s_waitcnt vmcnt(0)')
    for k in range(4):
        a(f'''
    v_and_b32 v{T}, 255, v{ED+k}
    v_cmp_eq_u32 vcc, s2, v{T}
    v_lshrrev_b32 v{ED+k}, 8, v{ED+k}
    v_lshl_or_b32 v{ES+k}, v{ES+k}, 7, v{ED+k}''')
        if k == 3:
            a(f'    s_and_b64 vcc, vcc, s[{M3}:{M3+1}]')
        a(f'    v_cndmask_b32 v{EN+k}, v{T+1}, v{ES+k}, vcc')
    a(f'''
C_round:
    v_mov_b32 v{T+4}, {EMPTY}
    v_mov_b32 v{T+5}, {EMPTY}
    v_mov_b32 v{T+6}, {EMPTY}
    v_mov_b32 v{T+7}, {EMPTY}
    ds_write_b128 v{T16}, {vr(T+4,4)} offset:{L_LIST}
    s_cmp_ge_u32 s{WID}, 6
    s_cbranch_scc1 C_i1
    ds_write_b128 v{T16}, {vr(T+4,4)} offset:{L_LIST+16384}
C_i1:
    v_and_b32 v{T+2}, 15, v{LANE}
    v_mul_u32_u24 v{T+2}, {GSTRIDE}, v{T+2}
    v_add_u32 v{T+2}, {L_LIST}, v{T+2}
    v_and_b32 v{T}, 31, v{LANE}
    v_lshlrev_b32 v{T}, 2, v{T}
    s_cmp_lg_u32 s{WID}, 12
    s_cbranch_scc1 C_i2
    s_mov_b64 exec, 0xffff
    ds_write_b32 v{T}, v{T+2} offset:{L_BCNT}
    ds_write_b32 v{ZERO}, v{ZERO} offset:{L_PEND}
    s_mov_b64 exec, -1
C_i2:
    s_waitcnt lgkmcnt(0)
    s_barrier
    s_mov_b32 s{X0+4}, {GSTRIDE//4}
    s_mov_b32 s{X0+5}, {L_LIST+GSTRIDE}''')
    for r in range(8):
        brank(r)
        m = VM + 2*r
        a(f'''
    v_mul_u32_u24 v{T+3}, s{X0+4}, v{G4+r}
    v_add_u32 v{T+3}, s{X0+5}, v{T+3}
    s_mov_b64 exec, s[{m}:{m+1}]
    s_waitcnt lgkmcnt(0)
    v_cmp_lt_u32 vcc, v{RK+r}, v{T+3}
    s_and_saveexec_b64 s[{X0+6}:{X0+7}], vcc
    ds_write_b32 v{RK+r}, v{EN+r}
    v_mov_b32 v{EN+r}, {EMPTY}
    s_andn2_b64 exec, s[{X0+6}:{X0+7}], exec
    ds_write_b32 v{ZERO}, v{FOUR} offset:{L_PEND}
    s_mov_b64 exec, -1''')
    a(f'''
    v_mov_b32 v{EA}, v{EA0}
    v_mov_b32 v{MAD}, v{MAD0}
    s_waitcnt lgkmcnt(0)
    s_barrier
    s_branch B_counts''')
    if opt.get('red'):
        gen_red(a, opt)
    if opt.get('pre') or opt.get('post'):
        a('.globl nop_kernel\n.p2align 8\n.type nop_kernel,@function\nnop_kernel:\n    s_endpgm')
    a(f'''
.section .rodata,"a"
.p2align 6
.amdhsa_kernel {KNAME}
  .amdhsa_next_free_vgpr 128
  .amdhsa_next_free_sgpr 102
  .amdhsa_accum_offset 128
  .amdhsa_group_segment_fixed_size 0
  .amdhsa_kernarg_size 64
  .amdhsa_user_sgpr_count 2
  .amdhsa_user_sgpr_kernarg_segment_ptr 1
  .amdhsa_system_sgpr_workgroup_id_x 1
.end_amdhsa_kernel''')
    if opt.get('pre') or opt.get('post'):
        a('''
.p2align 6
.amdhsa_kernel nop_kernel
  .amdhsa_next_free_vgpr 8
  .amdhsa_next_free_sgpr 16
  .amdhsa_accum_offset 8
  .amdhsa_group_segment_fixed_size 0
  .amdhsa_kernarg_size 64
  .amdhsa_user_sgpr_count 2
  .amdhsa_user_sgpr_kernarg_segment_ptr 1
  .amdhsa_system_sgpr_workgroup_id_x 1
.end_amdhsa_kernel''')
    if opt.get('red'):
        a('''
.p2align 6
.amdhsa_kernel red_kernel
  .amdhsa_next_free_vgpr 32
  .amdhsa_next_free_sgpr 48
  .amdhsa_accum_offset 32
  .amdhsa_group_segment_fixed_size 0
  .amdhsa_kernarg_size 64
  .amdhsa_user_sgpr_count 2
  .amdhsa_user_sgpr_kernarg_segment_ptr 1
  .amdhsa_system_sgpr_workgroup_id_x 1
.end_amdhsa_kernel''')
    return a.text()

if __name__ == '__main__':
    out = sys.argv[1]
    opt = {}
    for kv in sys.argv[2:]:
        k, v = kv.split('=')
        try:
            v = int(v)
        except ValueError:
            v = '' if v == 'none' else ' ' + v.replace('+', ' ')
        opt[k] = v
    open(out, 'w').write(build(opt))
```

```python
import sys, struct
from gen3 import gen_red

N, E, D = 25000, 800000, 64
NWG = 256
CH = E // NWG
HSTRIDE = 16384 + 128
SEG_OFF = 4096
H1_OFF = 256 * HSTRIDE
WS_USED = SEG_OFF + 2 * H1_OFF
X_BYTES = N * 128
EMPTY = 0x003FFFFF
FULLM = 0x003FFFFE
KNAME = 'standalone__kernel_systems_refs_featgraph__graph_kernel'

L_ACNT = 0
L_BCNT = 1024
L_RESC = 1088
L_PEND = 1120
L_GAVE = 1124
L_LUT = 1152
L_WV = 2048
L_LIST = 10240
GSTRIDE = 1408
L_RING = 32768
L_XN = 65536
L_WQ = 98304
ISTRIDE = 144
L_IMG = 163840 - 256 * ISTRIDE
LDS = 163840
STAMP_OFF = 0x1000000

def f32bits(x):
    return struct.unpack('<I', struct.pack('<f', x))[0]

class Asm:
    def __init__(self):
        self.lines = []
    def __call__(self, s):
        for ln in s.strip('\n').split('\n'):
            if ln.strip():
                self.lines.append(ln)
    def text(self):
        return '\n'.join(self.lines) + '\n'

def vr(lo, n):
    return f'v[{lo}:{lo+n-1}]'
def sp(lo):
    return f's[{lo}:{lo+1}]'
def sq(lo):
    return f's[{lo}:{lo+3}]'

def srd(a, d, lo, nbytes):
    a(f'    s_mov_b32 s{d}, s{lo}')
    a(f'    s_mov_b32 s{d+1}, s{lo+1}')
    a(f'    s_mov_b32 s{d+2}, {nbytes}')
    a(f'    s_mov_b32 s{d+3}, 0x00020000')

LANE, T4, T16, FOUR, ZERO, ROWOFF, WVA = 1, 2, 3, 4, 5, 6, 7
QLO, QHI, ACC, XA, XT, S, PP, MA, MB, EE = 8, 16, 24, 40, 56, 72, 76, 80, 84, 88
M0R, M1R, RA0, RA1, RT, EA, MAD, CHK, EA0 = 92, 93, 94, 95, 96, 100, 101, 102, 103
T = 104
EN = 112
MAD0, PFD, ATK, STV, CNTA, EPV, LBASE = 120, 121, 122, 123, 124, 125, 126
ED, ES, B4, PS = 40, 44, 48, 52
WD, XN = 56, 60
IMGR, STO, WSA = 68, 69, 70
G4, RK = 40, 48

GAVE = 3
SX, SSRC, SDST, SW, EPOCH, ISSUED, SOUT, SWS = 20, 24, 28, 32, 34, 35, 36, 40
WID, SEGB, AMASK, RING, NT, TT = 44, 45, 46, 47, 48, 49
TAG = 50
SEMPTY, MODE, LOM, M3 = 54, 55, 56, 58
RESC = 60
FR, N1 = 60, 62
VM = 68
X0 = 84
H1SO, KFULL, S0, S1, K88, KTHR, PFT, POLLN, PRIME = 86, 87, 88, 90, 92, 94, 95, 96, 97

def build(opt):
    a = Asm()
    st = opt.get('stamps')
    def stamp(k):
        if st:
            ck = {0: 14, 7: 12, 9: 13}.get(k)
            if ck:
                a('    s_memtime s[100:101]')
            a('    s_memrealtime s[98:99]')
            a('    s_waitcnt lgkmcnt(0)')
            a(f'    v_writelane_b32 v{STV}, s98, {k}')
            if ck:
                a(f'    v_writelane_b32 v{STV}, s100, {ck}')
    launch = (f'; @launch kernel={KNAME} grid=({NWG},1,1) block=(1024,1,1) lds={LDS}' if opt.get('list') else
              f'; @launch grid=({NWG},1,1) block=(1024,1,1) lds={LDS}')
    if opt.get('red'):
        launch += '\n; @launch kernel=red_kernel grid=(1,1,1) block=(64,1,1) lds=0'
    sf = opt.get('st', ' sc1')
    lf = opt.get('ld', ' sc1')
    gf = opt.get('gather', '')
    of = opt.get('out', '')
    a(f'''; FeatGraph (SDDMM sigmoid gate + SpMM) in one launch, one workgroup per CU.
{launch}
.amdgcn_target "amdgcn-amd-amdhsa--gfx950"
.text
.globl {KNAME}
.p2align 8
.type {KNAME},@function
{KNAME}:
    s_cmp_ge_u32 s2, {NWG}
    s_cbranch_scc1 L_end''')
    if st:
        a(f'    v_mov_b32 v{STV}, 0')
    stamp(0)
    a('    s_load_dwordx16 s[4:19], s[0:1], 0')
    if opt.get('cpf'):
        a(f'''
    s_getpc_b64 {sp(S0)}
I_pc:
    v_lshlrev_b32 v{PFD}, 7, v0
    v_cmp_gt_u32 vcc, A_full-I_pc, v{PFD}
    s_and_saveexec_b64 {sp(S1)}, vcc
    s_cbranch_execz I_c
    global_load_dword v{PFD}, v{PFD}, {sp(S0)}
I_c:
    s_mov_b64 exec, -1''')
    a(f'''
    s_mul_i32 s{X0}, s2, {CH*4}
    v_lshlrev_b32 v{T4}, 2, v0
    v_lshrrev_b32 v{T+4}, 6, v0
    v_add_u32 v{T}, s{X0}, v{T4}
    v_readfirstlane_b32 s{WID}, v{T+4}
    v_add_u32 v{T+1}, 4096, v{T}
    v_add_u32 v{T+2}, 8192, v{T}
    v_add_u32 v{T+3}, 12288, v{T}
    v_cmp_gt_u32 {sp(M3)}, {CH-3072}, v0
    v_lshlrev_b32 v{T16}, 4, v0
    v_mov_b32 v{ZERO}, 0
    v_mov_b32 v{T+4}, {EMPTY}
    v_mov_b32 v{T+5}, {EMPTY}
    v_mov_b32 v{T+6}, {EMPTY}
    v_mov_b32 v{T+7}, {EMPTY}
    s_mov_b64 exec, {sp(M3)}
    s_waitcnt lgkmcnt(0)
    s_cbranch_execz A_no3a
    global_load_dword v{ED+3}, v{T+3}, s[8:9]
    global_load_dword v{ES+3}, v{T+3}, s[6:7]
A_no3a:
    s_mov_b64 exec, -1''')
    for k in range(3):
        a(f'    global_load_dword v{ED+k}, v{T+k}, s[8:9]')
    for k in range(3):
        a(f'    global_load_dword v{ES+k}, v{T+k}, s[6:7]')
    a(f'''
    v_add_u32 v{T}, {L_IMG}, v{T16}
    ds_write_b128 v{T}, {vr(T+4,4)}
    ds_write_b128 v{T}, {vr(T+4,4)} offset:16384
    s_cmp_ge_u32 s{WID}, 4
    s_cbranch_scc1 I_a
    ds_write_b128 v{T}, {vr(T+4,4)} offset:32768
    ds_write_b32 v{T4}, v{ZERO} offset:{L_ACNT}
I_a:
    global_load_dword v{EPV}, v{ZERO}, s[18:19]
    v_and_b32 v{LANE}, 63, v0
    v_mov_b32 v{FOUR}, 4''')
    srd(a, SX, 4, X_BYTES)
    a(f'''
    s_cmp_lt_u32 s{WID}, 8
    s_cselect_b32 s{SW}, s10, s12
    s_cselect_b32 s{SW+1}, s11, s13
    v_and_b32 v{T+3}, 0x1ff0, v{T16}
    v_lshrrev_b32 v{T}, 3, v{LANE}
    v_and_b32 v{T+1}, 7, v{LANE}
    v_xor_b32 v{T+1}, v{T+1}, v{T}
    v_lshlrev_b32 v{T+1}, 4, v{T+1}
    v_lshlrev_b32 v{T}, 19, v{T}
    s_lshl_b32 s{X0}, s{WID}, 15
    s_lshl_b32 s{X0+1}, s2, 7
    s_add_u32 s{X0}, s{X0}, s{X0+1}
    v_add3_u32 v{ROWOFF}, v{T}, v{T+1}, s{X0}
    s_lshl_b32 s{X0}, s{WID}, 10
    s_add_u32 m0, s{X0}, {L_XN}
    s_waitcnt lgkmcnt(0)
    s_barrier
    global_load_dwordx4 {vr(WD,4)}, v{T+3}, {sp(SW)}
    buffer_load_dwordx4 v{ROWOFF}, {sq(SX)}, 0 offen lds''')
    pfpos = [0]
    def prefetch(n):
        lo, hi = pfpos[0], pfpos[0] + n
        pfpos[0] = hi
        m = ((1 << hi) - 1) ^ ((1 << lo) - 1)
        a(f'''
    s_lshr_b32 s{PFT}, s2, 3
    s_lshl_b32 s{PFT}, s{PFT}, 4
    s_add_u32 s{PFT}, s{PFT}, s{WID}
    s_mul_i32 s{PFT}, s{PFT}, {49*128}
    v_lshlrev_b32 v{PFD}, 7, v{LANE}
    s_mov_b32 exec_lo, 0x{m & 0xffffffff:x}
    s_mov_b32 exec_hi, 0x{m >> 32:x}
    buffer_load_dword v{PFD}, v{PFD}, {sq(SX)}, s{PFT} offen
    s_mov_b64 exec, -1''')
    p = 0
    if opt.get('pf1'):
        prefetch(opt['pf1'])
        p = 1
    y = 3 + p
    stamp(1)
    a(f'''
    ds_write_b128 v{T16}, {vr(T+4,4)} offset:{L_LIST}
    s_cmp_ge_u32 s{WID}, 6
    s_cbranch_scc1 I_b
    ds_write_b128 v{T16}, {vr(T+4,4)} offset:{L_LIST+16384}
I_b:
    v_and_b32 v{LBASE}, 15, v{LANE}
    v_mul_u32_u24 v{LBASE}, {GSTRIDE}, v{LBASE}
    v_add_u32 v{LBASE}, {L_LIST}, v{LBASE}
    v_and_b32 v{CNTA}, 0x7c, v{T4}
    s_cmp_lg_u32 s{WID}, 12
    s_cbranch_scc1 I_done
    v_cmp_gt_u32 vcc, 16, v{LANE}
    s_mov_b32 exec_hi, 0
    s_nop 0
    v_cndmask_b32 v{T+2}, 0, v{LBASE}, vcc
    ds_write_b32 v{CNTA}, v{T+2} offset:{L_BCNT}
    s_mov_b64 exec, 0xff
    v_cvt_f32_u32 v{T+2}, v{LANE}
    v_mul_f32 v{T+3}, v{T+2}, v{T+2}
    v_cvt_pk_bf16_f32 v{T+2}, v{T+3}, v{T+2}
    v_lshlrev_b32 v{T+3}, 4, v{LANE}
    ds_write_b32 v{T+3}, v{T+2} offset:{L_LUT}
    s_mov_b64 exec, -1
I_done:''')
    srd(a, SWS, 18, WS_USED)
    a(f'''
    s_lshr_b32 s{PRIME}, s2, 3
    s_and_b32 s{X0}, s2, 7
    s_lshl_b32 s{X0}, s{X0}, 5
    s_or_b32 s{PRIME}, s{PRIME}, s{X0}
    s_lshl_b32 s{X0}, s{PRIME}, 6
    s_add_u32 s{X0}, s{X0}, {SEG_OFF}
    s_add_u32 s{X0+1}, s{X0}, {H1_OFF}
    s_mul_i32 s{SEGB}, s2, {HSTRIDE}
    s_add_u32 s{SEGB}, s{SEGB}, {SEG_OFF}
    s_mov_b32 s{SEMPTY}, {EMPTY}
    s_mov_b32 s{KTHR}, {L_IMG}
    s_mov_b32 s{K88}, 0x88888888
    s_mov_b32 s{K88+1}, 0x88888888
    v_lshrrev_b32 v{T}, 2, v0
    v_and_b32 v{T+1}, 3, v0
    v_mul_u32_u24 v{IMGR}, {ISTRIDE}, v{T}
    v_lshl_add_u32 v{IMGR}, v{T+1}, 2, v{IMGR}
    v_add_u32 v{IMGR}, {L_IMG}, v{IMGR}
    v_mul_u32_u24 v{STO}, {HSTRIDE}, v{T}
    v_lshl_add_u32 v{STO}, v{T+1}, 4, v{STO}
    v_bfe_u32 v{T}, v0, 3, 6
    v_and_b32 v{T+1}, 7, v0
    v_bfe_u32 v{T+2}, v{T}, 1, 1
    v_and_or_b32 v{T+2}, v{T}, 8, v{T+2}
    v_bfe_u32 v{T+3}, v{T}, 1, 2
    s_cmp_lt_u32 s{WID}, 8
    s_cselect_b64 {sp(S0)}, -1, 0
    s_mov_b32 s{S1}, {L_WV}
    s_cselect_b32 s{S1}, {L_WQ}, s{S1}
    v_cndmask_b32 v{T+2}, v{T+3}, v{T+2}, {sp(S0)}
    v_lshlrev_b32 v{T+1}, 1, v{T+1}
    v_xor_b32 v{T+1}, v{T+1}, v{T+2}
    v_lshlrev_b32 v{T+1}, 3, v{T+1}
    v_lshl_add_u32 v{T+1}, v{T}, 7, v{T+1}
    v_add_u32 v{WSA}, s{S1}, v{T+1}
    v_xor_b32 v{WSA+1}, 8, v{WSA}
    v_bfrev_b32 v{T+4}, -2''')
    def arank(k):
        a(f'''
    v_lshlrev_b32_sdwa v{B4+k}, 2, v{ED+k} dst_sel:DWORD dst_unused:UNUSED_PAD src0_sel:DWORD src1_sel:BYTE_0
    ds_add_rtn_u32 v{PS+k}, v{B4+k}, v{FOUR} offset:{L_ACNT}''')
    def aentry(k):
        a(f'''
    v_lshrrev_b32 v{ED+k}, 8, v{ED+k}
    v_lshl_or_b32 v{ES+k}, v{ES+k}, 7, v{ED+k}
    v_mad_u32_u24 v{B4+k}, v{B4+k}, {ISTRIDE//4}, s{KTHR}''')
    def aput(k):
        a(f'''
    v_min_u32 v{PS+k}, {ISTRIDE-4}, v{PS+k}
    v_add_u32 v{PS+k}, v{PS+k}, v{B4+k}
    ds_write_b32 v{PS+k}, v{ES+k}''')
    a(f'    s_waitcnt vmcnt({y+3})')
    stamp(2)
    for k in range(3):
        arank(k)
    a(f'    s_waitcnt vmcnt({y})')
    for k in range(3):
        aentry(k)
    for k in range(3):
        a('    s_waitcnt lgkmcnt(2)')
        aput(k)
    a(f'''
    s_mov_b64 exec, {sp(M3)}
    s_cbranch_execz A_no3b''')
    arank(3)
    aentry(3)
    a('    s_waitcnt lgkmcnt(0)')
    aput(3)
    a(f'''
A_no3b:
    s_mov_b64 exec, -1
    s_waitcnt vmcnt({y-2})
    v_readfirstlane_b32 s{EPOCH}, v{EPV}
    ds_write_b64 v{WSA}, {vr(WD,2)}
    ds_write_b64 v{WSA+1}, {vr(WD+2,2)}
    s_add_u32 s{EPOCH}, s{EPOCH}, 1
    s_lshl_b32 s{TAG}, s{EPOCH}, 22
    s_lshl_b32 s{TAG+1}, s{EPOCH}, 12
    s_and_b32 s{TAG+1}, s{TAG+1}, 0xffc00000
    s_lshl_b32 s{TAG+2}, s{EPOCH}, 2
    s_and_b32 s{TAG+2}, s{TAG+2}, 0xffc00000
    s_xor_b32 s{TAG+3}, s{TAG}, 0xffc00000
    s_waitcnt lgkmcnt(0)
    s_barrier''')
    stamp(3)
    a(f'''
    ds_read2_b32 {vr(46,2)}, v{IMGR} offset0:24 offset1:28
    ds_read2_b32 {vr(40,2)}, v{IMGR} offset0:0 offset1:4
    ds_read2_b32 {vr(42,2)}, v{IMGR} offset0:8 offset1:12
    ds_read2_b32 {vr(44,2)}, v{IMGR} offset0:16 offset1:20
    s_waitcnt lgkmcnt(3)
    v_cmp_ne_u32 vcc, s{SEMPTY}, v47
    s_and_b64 {sp(S0)}, vcc, {sp(K88)}
    s_waitcnt lgkmcnt(1)
    s_cbranch_scc1 A_full
A_pub:
    v_cmp_ne_u32 vcc, s{SEMPTY}, v43''')
    for r in range(4):
        a(f'    v_or_b32 v{40+r}, s{TAG+r}, v{40+r}')
    a(f'''
    buffer_store_dwordx4 {vr(40,4)}, v{STO}, {sq(SWS)}, s{X0} offen{sf}
    s_and_b64 {sp(S0)}, vcc, {sp(K88)}
    s_wqm_b64 vcc, {sp(S0)}
    s_waitcnt lgkmcnt(0)''')
    for r in range(4):
        a(f'    v_or_b32 v{44+r}, s{TAG+r}, v{44+r}')
    a(f'''
    v_cndmask_b32 v{STO}, v{T+4}, v{STO}, vcc
    buffer_store_dwordx4 {vr(44,4)}, v{STO}, {sq(SWS)}, s{X0+1} offen{sf}''')
    if opt.get('pfb'):
        prefetch(opt['pfb'])
        p += 1
    stamp(4)
    ppos = opt.get('ppos', 1)
    def poll_issue():
        a(f'    buffer_load_dwordx4 {vr(EN,4)}, v{T16}, {sq(SWS)}, s{SEGB} offen{lf}')
    if ppos == 0:
        poll_issue()
    a(f'''
    v_lshrrev_b32 v{T+5}, 4, v{LANE}        ; g
    v_bfe_u32 v{T+1}, v{LANE}, 2, 2
    v_lshl_add_u32 v{T+2}, v{T+5}, 3, v{T+1}
    v_bfe_u32 v{T+3}, v{T+2}, 1, 1
    v_and_or_b32 v{T+3}, v{T+2}, 8, v{T+3}
    v_and_b32 v{T+4}, 3, v{LANE}
    v_lshlrev_b32 v{T+4}, 1, v{T+4}
    v_xor_b32 v{T+3}, v{T+3}, v{T+4}
    v_lshlrev_b32 v{T+3}, 3, v{T+3}
    v_lshl_add_u32 v{T}, v{T+2}, 7, v{T+3}
    v_add_u32 v{T}, {L_WQ}, v{T}
    v_xor_b32 v{T+1}, 8, v{T}
    v_xor_b32 v{T+2}, 64, v{T}
    v_xor_b32 v{T+3}, 0x48, v{T}
    v_and_b32 v{T+7}, 7, v{LANE}
    v_xor_b32 v{T+4}, v{T+5}, v{T+7}
    v_lshlrev_b32 v{T+4}, 4, v{T+4}
    v_lshl_add_u32 v{T+4}, v{T+7}, 7, v{T+4}
    s_lshl_b32 s{X0}, s{WID}, 10
    s_add_u32 s{X0}, s{X0}, {L_XN}
    v_add_u32 v{T+4}, s{X0}, v{T+4}
    v_xor_b32 v{T+6}, 64, v{T+4}''')
    wreg = [24, 32, 72, 80]
    for blk in range(4):
        for ks in range(2):
            for h in range(2):
                a(f'    ds_read_b64_tr_b16 {vr(wreg[blk]+ks*4+h*2,2)}, v{T+blk} offset:{(32*ks+4*h)*128}')
        if blk == 2:
            a('    s_waitcnt lgkmcnt(4)')
    a(f'''
    s_waitcnt vmcnt({p + 2 + (1 if ppos == 0 else 0)})
    ds_read_b128 {vr(XN,4)}, v{T+4}
    ds_read_b128 {vr(XN+4,4)}, v{T+6}''')
    srd(a, SOUT, 14, X_BYTES)
    srd(a, SSRC, 6, E*4)
    srd(a, SDST, 8, E*4)
    a(f'''
    s_add_u32 s{H1SO}, s{SEGB}, {H1_OFF}
    s_mov_b32 s{AMASK}, 0x003fff80
    s_lshl_b32 s{RING}, s{WID}, 13
    s_add_u32 s{RING}, s{RING}, {L_RING}
    s_mov_b32 s{MODE}, 0
    s_mov_b32 s{GAVE}, 0
    s_mov_b32 s{LOM}, 0x00ff00ff
    s_mov_b32 s{LOM+1}, 0x00ff00ff
    v_and_b32 v{T+4}, 15, v{LANE}           ; i
    v_lshrrev_b32 v{T}, 3, v{LANE}
    v_and_b32 v{T+6}, 6, v{T}
    v_xor_b32 v{T+6}, v{T+6}, v{T+7}
    v_lshlrev_b32 v{CHK}, 4, v{T+6}
    s_mul_i32 s{X0}, s{WID}, {GSTRIDE}
    s_add_u32 s{X0}, s{X0}, {L_LIST}
    v_lshl_add_u32 v{EA0}, v{T}, 4, s{X0}
    v_bfe_u32 v{T+6}, v{LANE}, 3, 2
    v_lshl_add_u32 v{T+6}, v{T+7}, 2, v{T+6}
    v_lshl_add_u32 v{MAD0}, v{T+6}, 2, s{X0}
    v_and_b32 v{T+6}, 6, v{T+4}
    v_xor_b32 v{T+6}, v{T+6}, v{T+5}
    v_lshlrev_b32 v{T+6}, 4, v{T+6}
    v_lshl_add_u32 v{T+6}, v{T+4}, 7, v{T+6}
    v_add_u32 v{RA0}, s{RING}, v{T+6}
    v_xor_b32 v{RA1}, 64, v{RA0}
    s_waitcnt lgkmcnt(0)''')
    for blk in range(4):
        a(f'    v_mfma_f32_16x16x32_bf16 {vr(QLO+4*blk,4)}, {vr(wreg[blk],4)}, {vr(XN,4)}, 0')
    for blk in range(4):
        a(f'    v_mfma_f32_16x16x32_bf16 {vr(QLO+4*blk,4)}, {vr(wreg[blk]+4,4)}, {vr(XN+4,4)}, {vr(QLO+4*blk,4)}')
    if ppos == 1:
        poll_issue()
    a(f'''
    v_lshrrev_b32 v{T+6}, 2, v{LANE}        ; row = 4g+r
    v_and_b32 v{T+4}, 6, v{T+6}
    v_bfe_u32 v{T+5}, v{LANE}, 1, 1
    v_xor_b32 v{T+4}, v{T+4}, v{T+5}
    v_lshlrev_b32 v{T+4}, 4, v{T+4}
    v_lshl_add_u32 v{T+4}, v{T+6}, 7, v{T+4}
    v_and_b32 v{T+5}, 1, v{LANE}
    v_lshl_add_u32 v{T+4}, v{T+5}, 3, v{T+4}
    v_add_u32 v{RT}, s{RING}, v{T+4}
    v_xor_b32 v{RT+1}, 32, v{RT}
    v_xor_b32 v{RT+2}, 64, v{RT}
    v_xor_b32 v{RT+3}, 0x60, v{RT}
    v_bfe_u32 v{T+5}, v{T+6}, 1, 2
    v_and_b32 v{T+4}, 3, v{LANE}
    v_lshl_or_b32 v{T+5}, v{T+4}, 2, v{T+5}
    v_lshlrev_b32 v{T+5}, 3, v{T+5}
    v_lshl_add_u32 v{WVA}, v{T+6}, 7, v{T+5}
    s_mov_b32 s{X0}, 0x{f32bits(-1.4426950408889634/8):08x}
    v_mov_b32 v{MA+1}, 0x00003f80
    v_mov_b32 v{MA+2}, 0
    v_mov_b32 v{MA+3}, 0
    v_mov_b32 v{MB}, 0
    v_mov_b32 v{MB+1}, 0
    v_mov_b32 v{MB+2}, 0
    v_mov_b32 v{MB+3}, 0
    v_cvt_f32_u32 v{T+5}, v{T+7}            ; j' = l&7
    v_mov_b32 v{T+6}, 0x71800000            ; BIG = 2^100
    v_mul_f32 v{T+7}, v{T+5}, v{T+6}
    v_mul_f32 v{T+5}, v{T+5}, v{T+7}
    v_mul_f32 v{T+7}, -2.0, v{T+7}
    s_mov_b32 exec_lo, 0xff0000ff
    s_mov_b32 exec_hi, 0
    v_cvt_pk_bf16_f32 v{MB}, v{T+6}, v{T+7}
    v_cvt_pk_bf16_f32 v{MB+1}, v{T+5}, 0
    s_mov_b64 exec, -1''')
    for r in range(16):
        a(f'    v_mul_f32 v{QLO+r}, s{X0}, v{QLO+r}')
    for r in range(8):
        a(f'    v_cvt_pk_bf16_f32 v{T+r}, v{QLO+2*r}, v{QLO+2*r+1}')
    for r in range(8):
        a(f'    v_cndmask_b32 v{QLO+r}, 0, v{T+r}, {sp(LOM)}')
        a(f'    v_cndmask_b32 v{QHI+r}, v{T+r}, 0, {sp(LOM)}')
    for r in range(16):
        a(f'    v_mov_b32 v{ACC+r}, 0')
    if ppos == 2:
        poll_issue()
    for r in range(4, 8):
        a(f'    v_mov_b32 v{EN+r}, {EMPTY}')
    a(f'''
    s_mov_b32 s{POLLN}, 0
    s_mov_b32 s{KTHR}, 0x400000
    s_mov_b32 s{KFULL}, {FULLM}
    s_mov_b64 {sp(S0)}, -1
    s_mov_b64 {sp(S1)}, 0''')
    stamp(5)
    def check(h, dst):
        for r in range(4):
            a(f'    v_xor_b32 v{EN+4*h+r}, s{TAG+r}, v{EN+4*h+r}')
        a(f'''
    v_or3_b32 v{T}, v{EN+4*h}, v{EN+4*h+1}, v{EN+4*h+2}
    v_or_b32 v{T}, v{T}, v{EN+4*h+3}
    v_cmp_le_u32 {dst}, s{KTHR}, v{T}''')
    def brank(r, base, skip=None):
        m = VM + 2*r
        a(f'''
    v_cmp_ne_u32 {sp(m)}, s{SEMPTY}, v{EN+r}
    v_and_b32 v{G4+r}, 15, v{EN+r}
    v_lshlrev_b32 v{G4+r}, 2, v{G4+r}
    s_mov_b64 exec, {sp(m)}''')
        if skip:
            a(f'    s_cbranch_execz {skip}')
        a(f'''
    ds_add_rtn_u32 v{RK+r}, v{G4+r}, v{FOUR} offset:{L_BCNT}
    s_mov_b64 exec, {base}''')
    def bput(r):
        a(f'''
    s_mov_b64 exec, {sp(VM+2*r)}
    ds_write_b32 v{RK+r}, v{EN+r}''')
    rare = []
    def absorb0(tag):
        check(0, 'vcc')
        a(f'''
    s_wqm_b64 vcc, vcc
    s_andn2_b64 {sp(FR)}, {sp(S0)}, vcc
    s_mov_b64 {sp(S0)}, vcc
    s_mov_b64 exec, vcc
    s_cbranch_execz Z_nr{tag}
    s_add_u32 s{POLLN}, s{POLLN}, 1
    s_cmp_gt_u32 s{POLLN}, {opt.get('pollmax', 2000)}
    s_cbranch_scc1 Z_give{tag}
    buffer_load_dwordx4 {vr(EN,4)}, v{T16}, {sq(SWS)}, s{SEGB} offen{lf}
Z_nr{tag}:
    s_mov_b64 exec, {sp(FR)}
    s_cbranch_execz Z_done{tag}
    v_cmp_ne_u32 {sp(N1)}, s{SEMPTY}, v{EN+3}
    v_cmp_eq_u32 vcc, s{KFULL}, v{EN}
    s_and_b64 {sp(N1)}, {sp(N1)}, {sp(K88)}
    s_wqm_b64 exec, {sp(N1)}
    s_cbranch_execz Z_nh{tag}
    s_or_b64 {sp(S1)}, {sp(S1)}, exec
    buffer_load_dwordx4 {vr(EN+4,4)}, v{T16}, {sq(SWS)}, s{H1SO} offen{lf}
Z_nh{tag}:
    s_cbranch_vccnz Z_full{tag}
Z_rank{tag}:
    s_mov_b64 exec, {sp(FR)}''')
        for r in range(4):
            brank(r, sp(FR))
        for r in range(4):
            a('    s_waitcnt lgkmcnt(3)')
            bput(r)
        a(f'Z_done{tag}:')
        rare.append(tag)
    def absorb1():
        check(1, 'vcc')
        a(f'''
    s_andn2_b64 {sp(FR)}, {sp(S1)}, vcc
    s_mov_b64 {sp(S1)}, vcc
    s_mov_b64 exec, vcc
    s_cbranch_execz Y_nr
    s_add_u32 s{POLLN}, s{POLLN}, 1
    s_cmp_gt_u32 s{POLLN}, 1000000
    s_cbranch_scc1 Y_lost
    buffer_load_dwordx4 {vr(EN+4,4)}, v{T16}, {sq(SWS)}, s{H1SO} offen{lf}
Y_nr:
    s_mov_b64 exec, {sp(FR)}''')
        for r in range(4, 8):
            brank(r, sp(FR), 'Y_done')
            a('    s_waitcnt lgkmcnt(0)')
            bput(r)
            a(f'    s_mov_b64 exec, {sp(FR)}')
        a('Y_done:')
    def dma(ereg, slot):
        for q in range(4):
            if q == 0:
                a(f'    s_mov_b32 m0, s{RING}' if slot == 0 else f'    s_add_u32 m0, s{RING}, 4096')
            else:
                a('    s_add_u32 m0, m0, 1024')
            a(f'    v_and_or_b32 v{ereg+q}, v{ereg+q}, s{AMASK}, v{CHK}')
            a(f'    buffer_load_dwordx4 v{ereg+q}, {sq(SX)}, 0 offen{gf} lds')
    a(f"""
    v_mov_b32 v{EA}, v{EA0}
    v_mov_b32 v{MAD}, v{MAD0}
    s_waitcnt vmcnt(0)""")
    stamp(6)
    a(f"""
    s_branch G_first
G_late:
    s_waitcnt vmcnt(0)
    s_mov_b64 exec, {sp(S1)}
    s_cbranch_execz Y_done""")
    absorb1()
    a(f"""
    s_mov_b64 exec, {sp(S0)}
    s_cbranch_execz Z_donea
G_first:""")
    absorb0('a')
    a(f"""
    s_or_b64 exec, {sp(S0)}, {sp(S1)}
    s_cbranch_execnz G_late
    s_mov_b64 exec, -1
    s_waitcnt lgkmcnt(0)
    s_barrier""")
    if st:
        a(f'    v_writelane_b32 v{STV}, s{POLLN}, 15')
    stamp(7)
    a(f"""
B_counts:
    ds_read_b32 v{T+1}, v{CNTA} offset:{L_BCNT}
    ds_read_b128 {vr(EE,4)}, v{EA}
    ds_read_b128 {vr(T+4,4)}, v{EA} offset:128
    ds_read_b32 v{M0R}, v{MAD}
    s_setprio 3
    s_waitcnt lgkmcnt(3)
    v_sub_u32 v{T+3}, v{T+1}, v{LBASE}
    v_cmp_ne_u32 {sp(X0)}, 0, v{T+1}
    v_cmp_lt_u32 vcc, {GSTRIDE}, v{T+3}
    v_readlane_b32 s{NT}, v{T+3}, s{WID}
    s_and_b32 s{X0}, s{X0}, 0x1ff0000
    s_and_b32 s{X0+1}, vcc_lo, 0xffff
    s_or_b32 s{TT}, s{X0+1}, s{X0}
    s_or_b32 s{TT}, s{TT}, s{MODE}
    s_cbranch_scc1 C_slowcnt
B_cntok:
    s_add_u32 s{NT}, s{NT}, 127
    s_lshr_b32 s{NT}, s{NT}, 7              ; tiles
    s_cbranch_scc0 B_loopdone
    {f's_mov_b32 s{NT}, ' + str(opt['bench']) if opt.get('bench') else ''}
    s_waitcnt lgkmcnt(0)""")
    dma(EE, 0)
    a(f"""
    s_cmp_lt_u32 s{NT}, 2
    s_cbranch_scc1 B_one""")
    dma(T+4, 1)
    a(f"""
B_one:
    ds_read_b128 {vr(EE,4)}, v{EA} offset:256
    v_and_b32 v{M0R}, 0x70, v{M0R}
    s_mov_b32 s{TT}, 1                      ; t+1""")
    stamp(8)
    a('B_loop:')
    pk = opt.get('pk', 0)
    th = opt.get('th', 642)
    th = (th // 100, th // 10 % 10, th % 10)
    def body(slot):
        so = slot * 4096
        mcur, mnext = (M0R, M1R) if slot == 0 else (M1R, M0R)
        eo = slot * 128
        if opt.get('prio', 1) and (slot == 0 or opt.get('prio') == 2):
            a(f'''
    s_sub_u32 s{X0}, s{NT}, s{TT}
    s_cmp_ge_u32 s{X0}, {th[0]}
    s_cbranch_scc1 B_p{slot}
    s_setprio 2
    s_cmp_ge_u32 s{X0}, {th[1]}
    s_cbranch_scc1 B_p{slot}
    s_setprio 1
    s_cmp_ge_u32 s{X0}, {th[2]}
    s_cbranch_scc1 B_p{slot}
    s_setprio 0
B_p{slot}:''')
        a(f'''
    ds_read_b32 v{MA}, v{mcur} offset:{L_LUT}
    ds_read_b32 v{mnext}, v{MAD} offset:{eo+128}
    s_cmp_lt_u32 s{TT}, s{NT}
    s_cbranch_scc1 B_w4_{slot}
    s_waitcnt vmcnt(0)
B_w4_{slot}:
    s_waitcnt vmcnt(4)
    ds_read_b128 {vr(XA,4)}, v{RA0} offset:{so}
    ds_read_b128 {vr(XA+4,4)}, v{RA1} offset:{so}
    ds_read_b128 {vr(XA+8,4)}, v{RA0} offset:{so+2048}
    ds_read_b128 {vr(XA+12,4)}, v{RA1} offset:{so+2048}''')
        for fb in range(4):
            a(f'    ds_read_b64_tr_b16 {vr(XT+4*fb,2)}, v{RT+fb} offset:{so}')
            a(f'    ds_read_b64_tr_b16 {vr(XT+4*fb+2,2)}, v{RT+fb} offset:{so+2048}')
        a(f'''
    s_add_u32 s{TT}, s{TT}, 1               ; t+2
    s_waitcnt lgkmcnt(12)
    v_mfma_f32_16x16x32_bf16 {vr(S,4)}, {vr(MA,4)}, {vr(MB,4)}, 0
    v_and_b32 v{mnext}, 0x70, v{mnext}
    s_waitcnt lgkmcnt(11)
    v_mfma_f32_16x16x32_bf16 {vr(S,4)}, {vr(XA,4)}, {vr(QLO,4)}, {vr(S,4)}
    s_waitcnt lgkmcnt(10)
    v_mfma_f32_16x16x32_bf16 {vr(S,4)}, {vr(XA+4,4)}, {vr(QLO+4,4)}, {vr(S,4)}
    s_waitcnt lgkmcnt(9)
    v_mfma_f32_16x16x32_bf16 {vr(S,4)}, {vr(XA+8,4)}, {vr(QHI,4)}, {vr(S,4)}
    s_waitcnt lgkmcnt(8)
    v_mfma_f32_16x16x32_bf16 {vr(S,4)}, {vr(XA+12,4)}, {vr(QHI+4,4)}, {vr(S,4)}
    s_waitcnt lgkmcnt(0)
    s_cmp_lt_u32 s{TT}, s{NT}
    s_cbranch_scc0 B_skip_{slot}''')
        dma(EE, slot)
        a(f'''
    ds_read_b128 {vr(EE,4)}, v{EA} offset:{eo+384}
B_cont_{slot}:''')
        for r in range(4):
            a(f'    v_exp_f32 v{S+r}, v{S+r}')
        if slot == 1:
            a(f'    v_add_u32 v{EA}, 256, v{EA}')
            a(f'    v_add_u32 v{MAD}, 256, v{MAD}')
        if pk:
            a(f'    v_pk_add_f32 {vr(S,2)}, {vr(S,2)}, 1.0 op_sel_hi:[1,0]')
            a(f'    v_pk_add_f32 {vr(S+2,2)}, {vr(S+2,2)}, 1.0 op_sel_hi:[1,0]')
        else:
            for r in range(4):
                a(f'    v_add_f32 v{S+r}, 1.0, v{S+r}')
        for r in range(4):
            a(f'    v_rcp_f32 v{S+r}, v{S+r}')
        a(f'''
    v_cvt_pk_bf16_f32 v{PP}, v{S}, v{S+1}
    s_cmp_gt_u32 s{TT}, s{NT}
    v_cvt_pk_bf16_f32 v{PP+1}, v{S+2}, v{S+3}
    s_nop 0
    v_mov_b32_dpp v{PP+2}, v{PP} row_ror:8 row_mask:0xf bank_mask:0xf
    v_mov_b32_dpp v{PP+3}, v{PP+1} row_ror:8 row_mask:0xf bank_mask:0xf
    s_nop 1''')
        for fb in range(4):
            a(f'    v_mfma_f32_16x16x32_bf16 {vr(ACC+4*fb,4)}, {vr(XT+4*fb,4)}, {vr(PP,4)}, {vr(ACC+4*fb,4)}')
        a('    s_cbranch_scc1 B_loopdone' if slot == 0 else '    s_cbranch_scc0 B_loop')
    n0 = len(a.lines)
    body(0)
    body(1)
    drop = []
    if opt.get('bench'): drop += [f'v_add_u32 v{EA}, 256', f'v_add_u32 v{MAD}, 256']
    a.lines[n0:] = [l for l in a.lines[n0:] if not any(l.strip().startswith(d) for d in drop)]
    a(f'''
B_loopdone:
    s_cmp_lg_u32 s{MODE}, 0
    s_cbranch_scc1 C_next
B_epi:''')
    stamp(9)
    a(f'''
    v_xor_b32 v{T+1}, 8, v{WVA}
    v_xor_b32 v{T+2}, 16, v{WVA}
    v_xor_b32 v{T+3}, 24, v{WVA}''')
    for blk in range(4):
        ad = WVA if blk == 0 else T+blk
        for ks in range(2):
            for h in range(2):
                a(f'    ds_read_b64_tr_b16 {vr(XA+blk*8+ks*4+h*2,2)}, v{ad} offset:{L_WV+(32*ks+16*h)*128}')
        if blk == 2:
            a('    s_waitcnt lgkmcnt(8)')
    for r in range(8):
        a(f'    v_cvt_pk_bf16_f32 v{S+r}, v{ACC+2*r}, v{ACC+2*r+1}')
    epi = opt.get('epi', 1)
    if epi:
        a(f'''
    v_and_b32 v{T+4}, 7, v{LANE}
    v_lshrrev_b32 v{T+5}, 3, v{LANE}
    v_and_b32 v{T+5}, 6, v{T+5}             ; 2g
    v_xor_b32 v{T+5}, v{T+5}, v{T+4}
    v_lshlrev_b32 v{T+5}, 4, v{T+5}
    v_lshl_add_u32 v{T+4}, v{T+4}, 7, v{T+5}
    v_add_u32 v{T+4}, s{RING}, v{T+4}
    v_xor_b32 v{T+6}, 16, v{T+4}
    v_lshl_add_u32 v{T+5}, v{LANE}, 4, s{RING}''')
    else:
        a(f'''
    v_and_b32 v{T+4}, 7, v{LANE}
    v_lshlrev_b32 v{T+4}, 19, v{T+4}
    v_lshrrev_b32 v{T+5}, 4, v{LANE}
    v_lshl_add_u32 v{T+4}, v{T+5}, 5, v{T+4}
    s_lshl_b32 s{X0}, s{WID}, 15
    s_lshl_b32 s{X0+1}, s2, 7
    s_add_u32 s{PFT}, s{X0}, s{X0+1}''')
    for blk in range(4):
        a(f'    s_waitcnt lgkmcnt({min(8, 12-4*blk)})')
        a(f'    v_mfma_f32_16x16x32_bf16 {vr(QLO+4*blk,4)}, {vr(XA+blk*8,4)}, {vr(S,4)}, 0')
        a(f'    v_mfma_f32_16x16x32_bf16 {vr(QLO+4*blk,4)}, {vr(XA+blk*8+4,4)}, {vr(S+4,4)}, {vr(QLO+4*blk,4)}')
    a(f'''
    s_cmp_lg_u32 s{WID}, 15
    s_cbranch_scc1 K_no2
    s_mov_b64 exec, 1
    s_cmp_lg_u32 s{GAVE}, 0
    s_cbranch_scc1 K_ticket
K_adv:
    v_mov_b32 v{T}, s{EPOCH}
    global_store_dword v{ZERO}, v{T}, s[18:19]
K_skip:
    s_mov_b64 exec, -1
K_no2:
    s_nop 2''')
    for r in range(4):
        a(f'    v_cvt_pk_bf16_f32 v{XA+r}, v{QLO+2*r}, v{QLO+2*r+1}')
    a(f'    s_mov_b64 exec, {sp(LOM)}')
    if epi:
        a(f'    ds_write_b128 v{T+4}, {vr(XA,4)}')
    else:
        a(f'    buffer_store_dwordx4 {vr(XA,4)}, v{T+4}, {sq(SOUT)}, s{PFT} offen{of}')
    for r in range(4, 8):
        a(f'    v_cvt_pk_bf16_f32 v{XA+r}, v{QLO+2*r}, v{QLO+2*r+1}')
    if epi:
        a(f'''
    ds_write_b128 v{T+6}, {vr(XA+4,4)}
    s_mov_b64 exec, -1
    s_waitcnt lgkmcnt(0)
    ds_read_b128 {vr(XA+8,4)}, v{T+5}
    s_waitcnt lgkmcnt(0)
    buffer_store_dwordx4 {vr(XA+8,4)}, v{ROWOFF}, {sq(SOUT)}, 0 offen{of}''')
    else:
        a(f'''
    buffer_store_dwordx4 {vr(XA+4,4)}, v{T+4}, {sq(SOUT)}, s{PFT} offen offset:16{of}
    s_mov_b64 exec, -1''')
    if st:
        stamp(10)
        a('    s_waitcnt vmcnt(0)')
        stamp(11)
        a(f'''
    s_add_u32 s{X0}, s18, {STAMP_OFF}
    s_addc_u32 s{X0+1}, s19, 0
    s_lshl_b32 s{X0+2}, s2, 4
    s_add_u32 s{X0+2}, s{X0+2}, s{WID}
    s_lshl_b32 s{X0+2}, s{X0+2}, 6
    v_lshl_add_u32 v{T}, v{LANE}, 2, s{X0+2}
    s_mov_b64 exec, 0xffff
    global_store_dword v{T}, v{STV}, {sp(X0)}''')
    a(f'''
L_end:
    s_endpgm
B_skip_0:
    s_nop 7
    s_branch B_cont_0
B_skip_1:
    s_nop 7
    s_branch B_cont_1
K_ticket:
    v_mov_b32 v{T+1}, 1
    global_atomic_add v{ATK}, v{ZERO}, v{T+1}, s[16:17] sc0 sc1
    s_waitcnt vmcnt(0)
    v_readfirstlane_b32 s{X0}, v{ATK}
    s_cmp_eq_u32 s{X0}, {NWG-1}
    s_cbranch_scc1 K_adv
    s_branch K_skip
''')
    def drop_lines():
        for r in range(4):
            a(f'    v_mov_b32 v{EN+r}, {EMPTY}')
        a(f'''
    v_lshrrev_b32 v{T}, 2, v0
    v_lshrrev_b32 v{T+1}, 5, v{T}
    v_lshlrev_b32 v{T+1}, 2, v{T+1}
    v_lshlrev_b32 v{T}, v{T}, 1
    ds_or_b32 v{T+1}, v{T} offset:{L_RESC}''')
    a(f'''
A_full:
    s_wqm_b64 exec, {sp(S0)}
    v_mov_b32 v40, {FULLM}
    v_mov_b32 v41, {EMPTY}
    v_mov_b32 v42, {EMPTY}
    v_mov_b32 v43, {EMPTY}
    s_mov_b64 exec, -1
    s_branch A_pub''')
    for tag in rare:
        a(f'''
Z_give{tag}:
    ds_write_b32 v{ZERO}, v{FOUR} offset:{L_GAVE}''')
        drop_lines()
        a(f'''
    s_mov_b64 {sp(S0)}, 0
    s_mov_b32 s{POLLN}, 0
    s_branch Z_nr{tag}
Z_full{tag}:
    s_mov_b64 exec, vcc''')
        drop_lines()
        a(f'    s_branch Z_rank{tag}')
    a('Y_lost:')
    for r in range(4, 8):
        a(f'    v_mov_b32 v{EN+r}, {EMPTY}')
    a(f'''
    s_mov_b64 {sp(S1)}, 0
    s_branch Y_nr
C_slowcnt:
    s_cmp_lg_u32 s{MODE}, 0
    s_cbranch_scc1 C_careful''')
    for k in range(8):
        a(f'    v_readlane_b32 s{RESC+k}, v{T+1}, {16+k}')
    a(f'''
    v_readlane_b32 s{GAVE}, v{T+1}, 25
    s_mov_b32 s{MODE}, 2
    s_cmp_lg_u32 s{X0+1}, 0
    s_cbranch_scc1 C_next
    s_mov_b32 s{MODE}, 1
    s_branch B_cntok
C_careful:
    s_min_u32 s{NT}, s{NT}, {GSTRIDE}
    s_bitcmp1_b32 s{X0}, 24
    s_cselect_b32 s{MODE}, 2, 1
    s_branch B_cntok
C_next:
    s_setprio 0
    s_waitcnt vmcnt(0) lgkmcnt(0)
    s_barrier
    s_cmp_eq_u32 s{MODE}, 2
    s_cbranch_scc1 C_round
    s_mov_b32 s{X0}, -1''')
    for k in range(7, -1, -1):
        a(f'''
    s_ff1_i32_b32 s{X0+1}, s{RESC+k}
    s_add_u32 s{X0+1}, s{X0+1}, {32*k}
    s_cmp_lg_u32 s{RESC+k}, 0
    s_cselect_b32 s{X0}, s{X0+1}, s{X0}''')
    a(f'''
    s_cmp_eq_u32 s{X0}, -1
    s_cbranch_scc1 B_epi
    s_lshr_b32 s{X0+1}, s{X0}, 5
    s_lshl_b32 s{X0+2}, 1, s{X0}''')
    for k in range(8):
        a(f'''
    s_andn2_b32 s{X0+3}, s{RESC+k}, s{X0+2}
    s_cmp_eq_u32 s{X0+1}, {k}
    s_cselect_b32 s{RESC+k}, s{X0+3}, s{RESC+k}''')
    a(f'''
    s_and_b32 s{X0+2}, s{X0}, 31
    s_lshl_b32 s{X0+2}, s{X0+2}, 3
    s_or_b32 s{X0}, s{X0+2}, s{X0+1}
    s_mul_i32 s{X0}, s{X0}, {CH*4}''')
    for k in range(4):
        a(f'''
    buffer_load_dword v{ED+k}, v{T4}, {sq(SDST)}, s{X0} offen
    buffer_load_dword v{ES+k}, v{T4}, {sq(SSRC)}, s{X0} offen
    s_add_u32 s{X0}, s{X0}, 4096''')
    for r in range(4, 8):
        a(f'    v_mov_b32 v{EN+r}, {EMPTY}')
    a(f'    v_mov_b32 v{T+1}, {EMPTY}')
    a('    s_waitcnt vmcnt(0)')
    for k in range(4):
        a(f'''
    v_and_b32 v{T}, 255, v{ED+k}
    v_cmp_eq_u32 vcc, s2, v{T}
    v_lshrrev_b32 v{ED+k}, 8, v{ED+k}
    v_lshl_or_b32 v{ES+k}, v{ES+k}, 7, v{ED+k}''')
        if k == 3:
            a(f'    s_and_b64 vcc, vcc, {sp(M3)}')
        a(f'    v_cndmask_b32 v{EN+k}, v{T+1}, v{ES+k}, vcc')
    a(f'''
C_round:
    v_mov_b32 v{T+4}, {EMPTY}
    v_mov_b32 v{T+5}, {EMPTY}
    v_mov_b32 v{T+6}, {EMPTY}
    v_mov_b32 v{T+7}, {EMPTY}
    ds_write_b128 v{T16}, {vr(T+4,4)} offset:{L_LIST}
    s_cmp_ge_u32 s{WID}, 6
    s_cbranch_scc1 C_i1
    ds_write_b128 v{T16}, {vr(T+4,4)} offset:{L_LIST+16384}
C_i1:
    s_cmp_lg_u32 s{WID}, 12
    s_cbranch_scc1 C_i2
    s_mov_b64 exec, 0xffff
    ds_write_b32 v{CNTA}, v{LBASE} offset:{L_BCNT}
    ds_write_b32 v{ZERO}, v{ZERO} offset:{L_PEND}
    s_mov_b64 exec, -1
C_i2:
    s_waitcnt lgkmcnt(0)
    s_barrier
    s_mov_b32 s{X0+4}, {GSTRIDE//4}
    s_mov_b32 s{X0+5}, {L_LIST+GSTRIDE}''')
    for r in range(8):
        brank(r, '-1')
        a(f'''
    v_mul_u32_u24 v{T+3}, s{X0+4}, v{G4+r}
    v_add_u32 v{T+3}, s{X0+5}, v{T+3}
    s_mov_b64 exec, {sp(VM+2*r)}
    s_waitcnt lgkmcnt(0)
    v_cmp_lt_u32 vcc, v{RK+r}, v{T+3}
    s_and_saveexec_b64 {sp(X0+6)}, vcc
    ds_write_b32 v{RK+r}, v{EN+r}
    v_mov_b32 v{EN+r}, {EMPTY}
    s_andn2_b64 exec, {sp(X0+6)}, exec
    ds_write_b32 v{ZERO}, v{FOUR} offset:{L_PEND}
    s_mov_b64 exec, -1''')
    a(f'''
    v_mov_b32 v{EA}, v{EA0}
    v_mov_b32 v{MAD}, v{MAD0}
    s_waitcnt lgkmcnt(0)
    s_barrier
L_last:
    s_branch B_counts''')
    if opt.get('red'):
        gen_red(a, opt)
    def kd(name, vg, sg):
        a(f'''
.p2align 6
.amdhsa_kernel {name}
  .amdhsa_next_free_vgpr {vg}
  .amdhsa_next_free_sgpr {sg}
  .amdhsa_accum_offset {vg}
  .amdhsa_group_segment_fixed_size 0
  .amdhsa_kernarg_size 64
  .amdhsa_user_sgpr_count 2
  .amdhsa_user_sgpr_kernarg_segment_ptr 1
  .amdhsa_system_sgpr_workgroup_id_x 1
.end_amdhsa_kernel''')
    a('.section .rodata,"a"')
    kd(KNAME, 128, 102)
    if opt.get('red'):
        kd('red_kernel', 32, 48)
    return a.text()

if __name__ == '__main__':
    out = sys.argv[1]
    opt = {}
    for kv in sys.argv[2:]:
        k, v = kv.split('=')
        try:
            v = int(v)
        except ValueError:
            v = '' if v == 'none' else ' ' + v.replace('+', ' ')
        opt[k] = v
    open(out, 'w').write(build(opt))
```

```python
import sys, struct
from gen3 import gen_red

N, E, D = 25000, 800000, 64
NWG = 256
CH = E // NWG
HSTRIDE = 16384 + 128
SEG_OFF = 4096
H1_OFF = 256 * HSTRIDE
WS_USED = SEG_OFF + 2 * H1_OFF
X_BYTES = N * 128
EMPTY = 0x003FFFFF
FULLM = 0x003FFFFE
KNAME = 'standalone__kernel_systems_refs_featgraph__graph_kernel'

L_ACNT = 0
L_BCNT = 1024
L_RESC = 1088
L_PEND = 1120
L_GAVE = 1124
L_LUT = 1152
L_WV = 2048
L_LIST = 10240
GSTRIDE = 1408
L_RING = 32768
L_XN = 65536
L_WQ = 98304
ISTRIDE = 144
L_IMG = 163840 - 256 * ISTRIDE
LDS = 163840
STAMP_OFF = 0x1000000

def f32bits(x):
    return struct.unpack('<I', struct.pack('<f', x))[0]

class Asm:
    def __init__(self):
        self.lines = []
    def __call__(self, s):
        for ln in s.strip('\n').split('\n'):
            if ln.strip():
                self.lines.append(ln)
    def text(self):
        return '\n'.join(self.lines) + '\n'

def vr(lo, n):
    return f'v[{lo}:{lo+n-1}]'
def sp(lo):
    return f's[{lo}:{lo+1}]'
def sq(lo):
    return f's[{lo}:{lo+3}]'

def srd(a, d, lo, nbytes):
    a(f'    s_mov_b32 s{d}, s{lo}')
    a(f'    s_mov_b32 s{d+1}, s{lo+1}')
    a(f'    s_mov_b32 s{d+2}, {nbytes}')
    a(f'    s_mov_b32 s{d+3}, 0x00020000')

LANE, T4, T16, FOUR, ZERO, ROWOFF, WVA = 1, 2, 3, 4, 5, 6, 7
QLO, QHI, ACC, XA, XT, S, PP, MA, MB, EE = 8, 16, 24, 40, 56, 72, 76, 80, 84, 88
M0R, M1R, RA0, RA1, RT, EA, MAD, CHK, EA0 = 92, 93, 94, 95, 96, 100, 101, 102, 103
T = 104
EN = 112
MAD0, PFD, ATK, STV, CNTA, EPV, LBASE = 120, 121, 122, 123, 124, 125, 126
ED, ES, B4, PS = 40, 44, 48, 52
WD, XN = 56, 60
IMGR, STO, WSA = 68, 69, 70
G4, RK = 40, 48

GAVE = 3
SX, SSRC, SDST, SW, EPOCH, ISSUED, SOUT, SWS = 20, 24, 28, 32, 34, 35, 36, 40
WID, SEGB, AMASK, RING, NT, TT = 44, 45, 46, 47, 48, 49
TAG = 50
SEMPTY, MODE, LOM, M3 = 54, 55, 56, 58
RESC = 60
FR, N1 = 60, 62
VM = 68
X0 = 84
H1SO, KFULL, S0, S1, K88, KTHR, PFT, POLLN, PRIME = 86, 87, 88, 90, 92, 94, 95, 96, 97

def build(opt):
    a = Asm()
    st = opt.get('stamps')
    def stamp(k):
        if st:
            ck = {0: 14, 7: 12, 9: 13}.get(k)
            if ck:
                a('    s_memtime s[100:101]')
            a('    s_memrealtime s[98:99]')
            a('    s_waitcnt lgkmcnt(0)')
            a(f'    v_writelane_b32 v{STV}, s98, {k}')
            if ck:
                a(f'    v_writelane_b32 v{STV}, s100, {ck}')
    launch = (f'; @launch kernel={KNAME} grid=({NWG},1,1) block=(1024,1,1) lds={LDS}' if opt.get('list') else
              f'; @launch grid=({NWG},1,1) block=(1024,1,1) lds={LDS}')
    if opt.get('red'):
        launch += '\n; @launch kernel=red_kernel grid=(1,1,1) block=(64,1,1) lds=0'
    sf = opt.get('st', ' sc1')
    lf = opt.get('ld', ' sc1')
    gf = opt.get('gather', '')
    of = opt.get('out', '')
    a(f'''; FeatGraph (SDDMM sigmoid gate + SpMM) in one launch, one workgroup per CU.
{launch}
.amdgcn_target "amdgcn-amd-amdhsa--gfx950"
.text
.globl {KNAME}
.p2align 8
.type {KNAME},@function
{KNAME}:
    s_cmp_ge_u32 s2, {NWG}
    s_cbranch_scc1 L_end''')
    if st:
        a(f'    v_mov_b32 v{STV}, 0')
    stamp(0)
    a('    s_load_dwordx16 s[4:19], s[0:1], 0')
    if opt.get('cpf'):
        a(f'''
    s_getpc_b64 {sp(S0)}
I_pc:
    v_lshlrev_b32 v{PFD}, 7, v0
    v_cmp_gt_u32 vcc, A_full-I_pc, v{PFD}
    s_and_saveexec_b64 {sp(S1)}, vcc
    s_cbranch_execz I_c
    global_load_dword v{PFD}, v{PFD}, {sp(S0)}
I_c:
    s_mov_b64 exec, -1''')
    a(f'''
    s_mul_i32 s{X0}, s2, {CH*4}
    v_lshlrev_b32 v{T4}, 2, v0
    v_lshrrev_b32 v{T+4}, 6, v0
    v_add_u32 v{T}, s{X0}, v{T4}
    v_readfirstlane_b32 s{WID}, v{T+4}
    v_add_u32 v{T+1}, 4096, v{T}
    v_add_u32 v{T+2}, 8192, v{T}
    v_add_u32 v{T+3}, 12288, v{T}
    v_cmp_gt_u32 {sp(M3)}, {CH-3072}, v0
    v_lshlrev_b32 v{T16}, 4, v0
    v_mov_b32 v{ZERO}, 0
    v_mov_b32 v{T+4}, {EMPTY}
    v_mov_b32 v{T+5}, {EMPTY}
    v_mov_b32 v{T+6}, {EMPTY}
    v_mov_b32 v{T+7}, {EMPTY}
    s_mov_b64 exec, {sp(M3)}
    s_waitcnt lgkmcnt(0)
    s_cbranch_execz A_no3a
    global_load_dword v{ED+3}, v{T+3}, s[8:9]
    global_load_dword v{ES+3}, v{T+3}, s[6:7]
A_no3a:
    s_mov_b64 exec, -1''')
    for k in range(3):
        a(f'    global_load_dword v{ED+k}, v{T+k}, s[8:9]')
    for k in range(3):
        a(f'    global_load_dword v{ES+k}, v{T+k}, s[6:7]')
    a(f'''
    v_add_u32 v{T}, {L_IMG}, v{T16}
    ds_write_b128 v{T}, {vr(T+4,4)}
    ds_write_b128 v{T}, {vr(T+4,4)} offset:16384
    s_cmp_ge_u32 s{WID}, 4
    s_cbranch_scc1 I_a
    ds_write_b128 v{T}, {vr(T+4,4)} offset:32768
    ds_write_b32 v{T4}, v{ZERO} offset:{L_ACNT}
I_a:
    global_load_dword v{EPV}, v{ZERO}, s[18:19]
    v_and_b32 v{LANE}, 63, v0
    v_mov_b32 v{FOUR}, 4''')
    srd(a, SX, 4, X_BYTES)
    a(f'''
    s_cmp_lt_u32 s{WID}, 8
    s_cselect_b32 s{SW}, s10, s12
    s_cselect_b32 s{SW+1}, s11, s13
    v_and_b32 v{T+3}, 0x1ff0, v{T16}
    v_lshrrev_b32 v{T}, 3, v{LANE}
    v_and_b32 v{T+1}, 7, v{LANE}
    v_xor_b32 v{T+1}, v{T+1}, v{T}
    v_lshlrev_b32 v{T+1}, 4, v{T+1}
    v_lshlrev_b32 v{T}, 19, v{T}
    s_lshl_b32 s{X0}, s{WID}, 15
    s_lshl_b32 s{X0+1}, s2, 7
    s_add_u32 s{X0}, s{X0}, s{X0+1}
    v_add3_u32 v{ROWOFF}, v{T}, v{T+1}, s{X0}
    s_lshl_b32 s{X0}, s{WID}, 10
    s_add_u32 m0, s{X0}, {L_XN}
    s_waitcnt lgkmcnt(0)
    s_barrier
    global_load_dwordx4 {vr(WD,4)}, v{T+3}, {sp(SW)}
    buffer_load_dwordx4 v{ROWOFF}, {sq(SX)}, 0 offen lds''')
    pfpos = [0]
    def prefetch(n):
        lo, hi = pfpos[0], pfpos[0] + n
        pfpos[0] = hi
        m = ((1 << hi) - 1) ^ ((1 << lo) - 1)
        a(f'''
    s_lshr_b32 s{PFT}, s2, 3
    s_lshl_b32 s{PFT}, s{PFT}, 4
    s_add_u32 s{PFT}, s{PFT}, s{WID}
    s_mul_i32 s{PFT}, s{PFT}, {49*128}
    v_lshlrev_b32 v{PFD}, 7, v{LANE}
    s_mov_b32 exec_lo, 0x{m & 0xffffffff:x}
    s_mov_b32 exec_hi, 0x{m >> 32:x}
    buffer_load_dword v{PFD}, v{PFD}, {sq(SX)}, s{PFT} offen
    s_mov_b64 exec, -1''')
    p = 0
    if opt.get('pf1'):
        prefetch(opt['pf1'])
        p = 1
    y = 3 + p
    stamp(1)
    a(f'''
    ds_write_b128 v{T16}, {vr(T+4,4)} offset:{L_LIST}
    s_cmp_ge_u32 s{WID}, 6
    s_cbranch_scc1 I_b
    ds_write_b128 v{T16}, {vr(T+4,4)} offset:{L_LIST+16384}
I_b:
    v_and_b32 v{LBASE}, 15, v{LANE}
    v_mul_u32_u24 v{LBASE}, {GSTRIDE}, v{LBASE}
    v_add_u32 v{LBASE}, {L_LIST}, v{LBASE}
    v_and_b32 v{CNTA}, 0x7c, v{T4}
    s_cmp_lg_u32 s{WID}, 12
    s_cbranch_scc1 I_done
    v_cmp_gt_u32 vcc, 16, v{LANE}
    s_mov_b32 exec_hi, 0
    s_nop 0
    v_cndmask_b32 v{T+2}, 0, v{LBASE}, vcc
    ds_write_b32 v{CNTA}, v{T+2} offset:{L_BCNT}
    s_mov_b64 exec, 0xff
    v_cvt_f32_u32 v{T+2}, v{LANE}
    v_mul_f32 v{T+3}, v{T+2}, v{T+2}
    v_cvt_pk_bf16_f32 v{T+2}, v{T+3}, v{T+2}
    v_lshlrev_b32 v{T+3}, 4, v{LANE}
    ds_write_b32 v{T+3}, v{T+2} offset:{L_LUT}
    s_mov_b64 exec, -1
I_done:''')
    srd(a, SWS, 18, WS_USED)
    a(f'''
    s_lshr_b32 s{PRIME}, s2, 3
    s_and_b32 s{X0}, s2, 7
    s_lshl_b32 s{X0}, s{X0}, 5
    s_or_b32 s{PRIME}, s{PRIME}, s{X0}
    s_lshl_b32 s{X0}, s{PRIME}, 6
    s_add_u32 s{X0}, s{X0}, {SEG_OFF}
    s_add_u32 s{X0+1}, s{X0}, {H1_OFF}
    s_mul_i32 s{SEGB}, s2, {HSTRIDE}
    s_add_u32 s{SEGB}, s{SEGB}, {SEG_OFF}
    s_mov_b32 s{SEMPTY}, {EMPTY}
    s_mov_b32 s{KTHR}, {L_IMG}
    s_mov_b32 s{K88}, 0x88888888
    s_mov_b32 s{K88+1}, 0x88888888
    v_lshrrev_b32 v{T}, 2, v0
    v_and_b32 v{T+1}, 3, v0
    v_mul_u32_u24 v{IMGR}, {ISTRIDE}, v{T}
    v_lshl_add_u32 v{IMGR}, v{T+1}, 2, v{IMGR}
    v_add_u32 v{IMGR}, {L_IMG}, v{IMGR}
    v_mul_u32_u24 v{STO}, {HSTRIDE}, v{T}
    v_lshl_add_u32 v{STO}, v{T+1}, 4, v{STO}
    v_bfe_u32 v{T}, v0, 3, 6
    v_and_b32 v{T+1}, 7, v0
    v_bfe_u32 v{T+2}, v{T}, 1, 1
    v_and_or_b32 v{T+2}, v{T}, 8, v{T+2}
    v_bfe_u32 v{T+3}, v{T}, 1, 2
    s_cmp_lt_u32 s{WID}, 8
    s_cselect_b64 {sp(S0)}, -1, 0
    s_mov_b32 s{S1}, {L_WV}
    s_cselect_b32 s{S1}, {L_WQ}, s{S1}
    v_cndmask_b32 v{T+2}, v{T+3}, v{T+2}, {sp(S0)}
    v_lshlrev_b32 v{T+1}, 1, v{T+1}
    v_xor_b32 v{T+1}, v{T+1}, v{T+2}
    v_lshlrev_b32 v{T+1}, 3, v{T+1}
    v_lshl_add_u32 v{T+1}, v{T}, 7, v{T+1}
    v_add_u32 v{WSA}, s{S1}, v{T+1}
    v_xor_b32 v{WSA+1}, 8, v{WSA}
    v_bfrev_b32 v{T+4}, -2''')
    def arank(k):
        a(f'''
    v_lshlrev_b32_sdwa v{B4+k}, 2, v{ED+k} dst_sel:DWORD dst_unused:UNUSED_PAD src0_sel:DWORD src1_sel:BYTE_0
    ds_add_rtn_u32 v{PS+k}, v{B4+k}, v{FOUR} offset:{L_ACNT}''')
    def aentry(k):
        a(f'''
    v_lshrrev_b32 v{ED+k}, 8, v{ED+k}
    v_lshl_or_b32 v{ES+k}, v{ES+k}, 7, v{ED+k}
    v_mad_u32_u24 v{B4+k}, v{B4+k}, {ISTRIDE//4}, s{KTHR}''')
    def aput(k):
        a(f'''
    v_min_u32 v{PS+k}, {ISTRIDE-4}, v{PS+k}
    v_add_u32 v{PS+k}, v{PS+k}, v{B4+k}
    ds_write_b32 v{PS+k}, v{ES+k}''')
    a(f'    s_waitcnt vmcnt({y+3})')
    stamp(2)
    for k in range(3):
        arank(k)
    a(f'    s_waitcnt vmcnt({y})')
    for k in range(3):
        aentry(k)
    for k in range(3):
        a('    s_waitcnt lgkmcnt(2)')
        aput(k)
    a(f'''
    s_mov_b64 exec, {sp(M3)}
    s_cbranch_execz A_no3b''')
    arank(3)
    aentry(3)
    a('    s_waitcnt lgkmcnt(0)')
    aput(3)
    a(f'''
A_no3b:
    s_mov_b64 exec, -1
    s_waitcnt vmcnt({y-2})
    v_readfirstlane_b32 s{EPOCH}, v{EPV}
    ds_write_b64 v{WSA}, {vr(WD,2)}
    ds_write_b64 v{WSA+1}, {vr(WD+2,2)}
    s_add_u32 s{EPOCH}, s{EPOCH}, 1
    s_lshl_b32 s{TAG}, s{EPOCH}, 22
    s_lshl_b32 s{TAG+1}, s{EPOCH}, 12
    s_and_b32 s{TAG+1}, s{TAG+1}, 0xffc00000
    s_lshl_b32 s{TAG+2}, s{EPOCH}, 2
    s_and_b32 s{TAG+2}, s{TAG+2}, 0xffc00000
    s_xor_b32 s{TAG+3}, s{TAG}, 0xffc00000
    s_waitcnt lgkmcnt(0)
    s_barrier''')
    stamp(3)
    a(f'''
    ds_read2_b32 {vr(46,2)}, v{IMGR} offset0:24 offset1:28
    ds_read2_b32 {vr(40,2)}, v{IMGR} offset0:0 offset1:4
    ds_read2_b32 {vr(42,2)}, v{IMGR} offset0:8 offset1:12
    ds_read2_b32 {vr(44,2)}, v{IMGR} offset0:16 offset1:20
    s_waitcnt lgkmcnt(3)
    v_cmp_ne_u32 vcc, s{SEMPTY}, v47
    s_and_b64 {sp(S0)}, vcc, {sp(K88)}
    s_waitcnt lgkmcnt(1)
    s_cbranch_scc1 A_full
A_pub:
    v_cmp_ne_u32 vcc, s{SEMPTY}, v43''')
    for r in range(4):
        a(f'    v_or_b32 v{40+r}, s{TAG+r}, v{40+r}')
    a(f'''
    buffer_store_dwordx4 {vr(40,4)}, v{STO}, {sq(SWS)}, s{X0} offen{sf}
    s_and_b64 {sp(S0)}, vcc, {sp(K88)}
    s_wqm_b64 vcc, {sp(S0)}
    s_waitcnt lgkmcnt(0)''')
    for r in range(4):
        a(f'    v_or_b32 v{44+r}, s{TAG+r}, v{44+r}')
    a(f'''
    v_cndmask_b32 v{STO}, v{T+4}, v{STO}, vcc
    buffer_store_dwordx4 {vr(44,4)}, v{STO}, {sq(SWS)}, s{X0+1} offen{sf}''')
    if opt.get('pfb'):
        prefetch(opt['pfb'])
        p += 1
    stamp(4)
    ppos = opt.get('ppos', 1)
    def poll_issue():
        a(f'    buffer_load_dwordx4 {vr(EN,4)}, v{T16}, {sq(SWS)}, s{SEGB} offen{lf}')
    if ppos == 0:
        poll_issue()
    a(f'''
    v_lshrrev_b32 v{T+5}, 4, v{LANE}        ; g
    v_bfe_u32 v{T+1}, v{LANE}, 2, 2
    v_lshl_add_u32 v{T+2}, v{T+5}, 3, v{T+1}
    v_bfe_u32 v{T+3}, v{T+2}, 1, 1
    v_and_or_b32 v{T+3}, v{T+2}, 8, v{T+3}
    v_and_b32 v{T+4}, 3, v{LANE}
    v_lshlrev_b32 v{T+4}, 1, v{T+4}
    v_xor_b32 v{T+3}, v{T+3}, v{T+4}
    v_lshlrev_b32 v{T+3}, 3, v{T+3}
    v_lshl_add_u32 v{T}, v{T+2}, 7, v{T+3}
    v_add_u32 v{T}, {L_WQ}, v{T}
    v_xor_b32 v{T+1}, 8, v{T}
    v_xor_b32 v{T+2}, 64, v{T}
    v_xor_b32 v{T+3}, 0x48, v{T}
    v_and_b32 v{T+7}, 7, v{LANE}
    v_xor_b32 v{T+4}, v{T+5}, v{T+7}
    v_lshlrev_b32 v{T+4}, 4, v{T+4}
    v_lshl_add_u32 v{T+4}, v{T+7}, 7, v{T+4}
    s_lshl_b32 s{X0}, s{WID}, 10
    s_add_u32 s{X0}, s{X0}, {L_XN}
    v_add_u32 v{T+4}, s{X0}, v{T+4}
    v_xor_b32 v{T+6}, 64, v{T+4}''')
    wreg = [24, 32, 72, 80]
    for blk in range(4):
        for ks in range(2):
            for h in range(2):
                a(f'    ds_read_b64_tr_b16 {vr(wreg[blk]+ks*4+h*2,2)}, v{T+blk} offset:{(32*ks+4*h)*128}')
        if blk == 2:
            a('    s_waitcnt lgkmcnt(4)')
    a(f'''
    s_waitcnt vmcnt({p + 2 + (1 if ppos == 0 else 0)})
    ds_read_b128 {vr(XN,4)}, v{T+4}
    ds_read_b128 {vr(XN+4,4)}, v{T+6}''')
    srd(a, SOUT, 14, X_BYTES)
    srd(a, SSRC, 6, E*4)
    srd(a, SDST, 8, E*4)
    a(f'''
    s_add_u32 s{H1SO}, s{SEGB}, {H1_OFF}
    s_mov_b32 s{AMASK}, 0x003fff80
    s_lshl_b32 s{RING}, s{WID}, 13
    s_add_u32 s{RING}, s{RING}, {L_RING}
    s_mov_b32 s{MODE}, 0
    s_mov_b32 s{GAVE}, 0
    s_mov_b32 s{LOM}, 0x00ff00ff
    s_mov_b32 s{LOM+1}, 0x00ff00ff
    v_and_b32 v{T+4}, 15, v{LANE}           ; i
    v_lshrrev_b32 v{T}, 3, v{LANE}
    v_and_b32 v{T+6}, 6, v{T}
    v_xor_b32 v{T+6}, v{T+6}, v{T+7}
    v_lshlrev_b32 v{CHK}, 4, v{T+6}
    s_mul_i32 s{X0}, s{WID}, {GSTRIDE}
    s_add_u32 s{X0}, s{X0}, {L_LIST}
    v_lshl_add_u32 v{EA0}, v{T}, 4, s{X0}
    v_bfe_u32 v{T+6}, v{LANE}, 3, 2
    v_lshl_add_u32 v{T+6}, v{T+7}, 2, v{T+6}
    v_lshl_add_u32 v{MAD0}, v{T+6}, 2, s{X0}
    v_and_b32 v{T+6}, 6, v{T+4}
    v_xor_b32 v{T+6}, v{T+6}, v{T+5}
    v_lshlrev_b32 v{T+6}, 4, v{T+6}
    v_lshl_add_u32 v{T+6}, v{T+4}, 7, v{T+6}
    v_add_u32 v{RA0}, s{RING}, v{T+6}
    v_xor_b32 v{RA1}, 64, v{RA0}
    s_waitcnt lgkmcnt(0)''')
    for blk in range(4):
        a(f'    v_mfma_f32_16x16x32_bf16 {vr(QLO+4*blk,4)}, {vr(wreg[blk],4)}, {vr(XN,4)}, 0')
    for blk in range(4):
        a(f'    v_mfma_f32_16x16x32_bf16 {vr(QLO+4*blk,4)}, {vr(wreg[blk]+4,4)}, {vr(XN+4,4)}, {vr(QLO+4*blk,4)}')
    if ppos == 1:
        poll_issue()
    a(f'''
    v_lshrrev_b32 v{T+6}, 2, v{LANE}        ; row = 4g+r
    v_and_b32 v{T+4}, 6, v{T+6}
    v_bfe_u32 v{T+5}, v{LANE}, 1, 1
    v_xor_b32 v{T+4}, v{T+4}, v{T+5}
    v_lshlrev_b32 v{T+4}, 4, v{T+4}
    v_lshl_add_u32 v{T+4}, v{T+6}, 7, v{T+4}
    v_and_b32 v{T+5}, 1, v{LANE}
    v_lshl_add_u32 v{T+4}, v{T+5}, 3, v{T+4}
    v_add_u32 v{RT}, s{RING}, v{T+4}
    v_xor_b32 v{RT+1}, 32, v{RT}
    v_xor_b32 v{RT+2}, 64, v{RT}
    v_xor_b32 v{RT+3}, 0x60, v{RT}
    v_bfe_u32 v{T+5}, v{T+6}, 1, 2
    v_and_b32 v{T+4}, 3, v{LANE}
    v_lshl_or_b32 v{T+5}, v{T+4}, 2, v{T+5}
    v_lshlrev_b32 v{T+5}, 3, v{T+5}
    v_lshl_add_u32 v{WVA}, v{T+6}, 7, v{T+5}
    s_mov_b32 s{X0}, 0x{f32bits(-1.4426950408889634/8):08x}
    v_mov_b32 v{MA+1}, 0x00003f80
    v_mov_b32 v{MA+2}, 0
    v_mov_b32 v{MA+3}, 0
    v_mov_b32 v{MB}, 0
    v_mov_b32 v{MB+1}, 0
    v_mov_b32 v{MB+2}, 0
    v_mov_b32 v{MB+3}, 0
    v_cvt_f32_u32 v{T+5}, v{T+7}            ; j' = l&7
    v_mov_b32 v{T+6}, 0x71800000            ; BIG = 2^100
    v_mul_f32 v{T+7}, v{T+5}, v{T+6}
    v_mul_f32 v{T+5}, v{T+5}, v{T+7}
    v_mul_f32 v{T+7}, -2.0, v{T+7}
    s_mov_b32 exec_lo, 0xff0000ff
    s_mov_b32 exec_hi, 0
    v_cvt_pk_bf16_f32 v{MB}, v{T+6}, v{T+7}
    v_cvt_pk_bf16_f32 v{MB+1}, v{T+5}, 0
    s_mov_b64 exec, -1''')
    for r in range(16):
        a(f'    v_mul_f32 v{QLO+r}, s{X0}, v{QLO+r}')
    for r in range(8):
        a(f'    v_cvt_pk_bf16_f32 v{T+r}, v{QLO+2*r}, v{QLO+2*r+1}')
    for r in range(8):
        a(f'    v_cndmask_b32 v{QLO+r}, 0, v{T+r}, {sp(LOM)}')
        a(f'    v_cndmask_b32 v{QHI+r}, v{T+r}, 0, {sp(LOM)}')
    for r in range(16):
        a(f'    v_mov_b32 v{ACC+r}, 0')
    if ppos == 2:
        poll_issue()
    for r in range(4, 8):
        a(f'    v_mov_b32 v{EN+r}, {EMPTY}')
    a(f'''
    s_mov_b32 s{POLLN}, 0
    s_mov_b32 s{KTHR}, 0x400000
    s_mov_b32 s{KFULL}, {FULLM}
    s_mov_b64 {sp(S0)}, -1
    s_mov_b64 {sp(S1)}, 0''')
    stamp(5)
    def check(h, dst):
        for r in range(4):
            a(f'    v_xor_b32 v{EN+4*h+r}, s{TAG+r}, v{EN+4*h+r}')
        a(f'''
    v_or3_b32 v{T}, v{EN+4*h}, v{EN+4*h+1}, v{EN+4*h+2}
    v_or_b32 v{T}, v{T}, v{EN+4*h+3}
    v_cmp_le_u32 {dst}, s{KTHR}, v{T}''')
    def brank(r, base, skip=None):
        m = VM + 2*r
        a(f'''
    v_cmp_ne_u32 {sp(m)}, s{SEMPTY}, v{EN+r}
    v_and_b32 v{G4+r}, 15, v{EN+r}
    v_lshlrev_b32 v{G4+r}, 2, v{G4+r}
    s_mov_b64 exec, {sp(m)}''')
        if skip:
            a(f'    s_cbranch_execz {skip}')
        a(f'''
    ds_add_rtn_u32 v{RK+r}, v{G4+r}, v{FOUR} offset:{L_BCNT}
    s_mov_b64 exec, {base}''')
    def bput(r):
        a(f'''
    s_mov_b64 exec, {sp(VM+2*r)}
    ds_write_b32 v{RK+r}, v{EN+r}''')
    rare = []
    def absorb0(tag):
        check(0, 'vcc')
        a(f'''
    s_wqm_b64 vcc, vcc
    s_andn2_b64 {sp(FR)}, {sp(S0)}, vcc
    s_mov_b64 {sp(S0)}, vcc
    s_mov_b64 exec, vcc
    s_cbranch_execz Z_nr{tag}
    s_add_u32 s{POLLN}, s{POLLN}, 1
    s_cmp_gt_u32 s{POLLN}, {opt.get('pollmax', 2000)}
    s_cbranch_scc1 Z_give{tag}
    buffer_load_dwordx4 {vr(EN,4)}, v{T16}, {sq(SWS)}, s{SEGB} offen{lf}
Z_nr{tag}:
    s_mov_b64 exec, {sp(FR)}
    s_cbranch_execz Z_done{tag}
    v_cmp_ne_u32 {sp(N1)}, s{SEMPTY}, v{EN+3}
    v_cmp_eq_u32 vcc, s{KFULL}, v{EN}
    s_and_b64 {sp(N1)}, {sp(N1)}, {sp(K88)}
    s_wqm_b64 exec, {sp(N1)}
    s_cbranch_execz Z_nh{tag}
    s_or_b64 {sp(S1)}, {sp(S1)}, exec
    buffer_load_dwordx4 {vr(EN+4,4)}, v{T16}, {sq(SWS)}, s{H1SO} offen{lf}
Z_nh{tag}:
    s_cbranch_vccnz Z_full{tag}
Z_rank{tag}:
    s_mov_b64 exec, {sp(FR)}''')
        for r in range(4):
            brank(r, sp(FR))
        for r in range(4):
            a('    s_waitcnt lgkmcnt(3)')
            bput(r)
        a(f'Z_done{tag}:')
        rare.append(tag)
    def absorb1():
        check(1, 'vcc')
        a(f'''
    s_andn2_b64 {sp(FR)}, {sp(S1)}, vcc
    s_mov_b64 {sp(S1)}, vcc
    s_mov_b64 exec, vcc
    s_cbranch_execz Y_nr
    s_add_u32 s{POLLN}, s{POLLN}, 1
    s_cmp_gt_u32 s{POLLN}, 1000000
    s_cbranch_scc1 Y_lost
    buffer_load_dwordx4 {vr(EN+4,4)}, v{T16}, {sq(SWS)}, s{H1SO} offen{lf}
Y_nr:
    s_mov_b64 exec, {sp(FR)}''')
        for r in range(4, 8):
            brank(r, sp(FR), 'Y_done')
            a('    s_waitcnt lgkmcnt(0)')
            bput(r)
            a(f'    s_mov_b64 exec, {sp(FR)}')
        a('Y_done:')
    def dma(ereg, slot):
        for q in range(4):
            if q == 0:
                a(f'    s_mov_b32 m0, s{RING}' if slot == 0 else f'    s_add_u32 m0, s{RING}, 4096')
            else:
                a('    s_add_u32 m0, m0, 1024')
            a(f'    v_and_or_b32 v{ereg+q}, v{ereg+q}, s{AMASK}, v{CHK}')
            a(f'    buffer_load_dwordx4 v{ereg+q}, {sq(SX)}, 0 offen{gf} lds')
    a(f"""
    v_mov_b32 v{EA}, v{EA0}
    v_mov_b32 v{MAD}, v{MAD0}
    s_waitcnt vmcnt(0)""")
    stamp(6)
    a(f"""
    s_branch G_first
G_late:
    s_waitcnt vmcnt(0)
    s_mov_b64 exec, {sp(S1)}
    s_cbranch_execz Y_done""")
    absorb1()
    a(f"""
    s_mov_b64 exec, {sp(S0)}
    s_cbranch_execz Z_donea
G_first:""")
    absorb0('a')
    a(f"""
    s_or_b64 exec, {sp(S0)}, {sp(S1)}
    s_cbranch_execnz G_late
    s_mov_b64 exec, -1
    s_waitcnt lgkmcnt(0)
    s_barrier""")
    if st:
        a(f'    v_writelane_b32 v{STV}, s{POLLN}, 15')
    stamp(7)
    a(f"""
B_counts:
    ds_read_b32 v{T+1}, v{CNTA} offset:{L_BCNT}
    ds_read_b128 {vr(EE,4)}, v{EA}
    ds_read_b128 {vr(T+4,4)}, v{EA} offset:128
    ds_read_b32 v{M0R}, v{MAD}
    s_setprio 3
    s_waitcnt lgkmcnt(3)
    v_sub_u32 v{T+3}, v{T+1}, v{LBASE}
    v_cmp_ne_u32 {sp(X0)}, 0, v{T+1}
    v_cmp_lt_u32 vcc, {GSTRIDE}, v{T+3}
    v_readlane_b32 s{NT}, v{T+3}, s{WID}
    s_and_b32 s{X0}, s{X0}, 0x1ff0000
    s_and_b32 s{X0+1}, vcc_lo, 0xffff
    s_or_b32 s{TT}, s{X0+1}, s{X0}
    s_or_b32 s{TT}, s{TT}, s{MODE}
    s_cbranch_scc1 C_slowcnt
B_cntok:
    s_add_u32 s{NT}, s{NT}, 127
    s_lshr_b32 s{NT}, s{NT}, 7              ; tiles
    s_cbranch_scc0 B_loopdone
    {f's_mov_b32 s{NT}, ' + str(opt['bench']) if opt.get('bench') else ''}
    s_waitcnt lgkmcnt(0)""")
    dma(EE, 0)
    a(f"""
    s_cmp_lt_u32 s{NT}, 2
    s_cbranch_scc1 B_one""")
    dma(T+4, 1)
    a(f"""
B_one:
    ds_read_b128 {vr(EE,4)}, v{EA} offset:256
    v_and_b32 v{M0R}, 0x70, v{M0R}
    s_mov_b32 s{TT}, 1                      ; t+1""")
    stamp(8)
    a('B_loop:')
    pk = opt.get('pk', 0)
    th = opt.get('th', 642)
    th = (th // 100, th // 10 % 10, th % 10)
    def body(slot):
        so = slot * 4096
        mcur, mnext = (M0R, M1R) if slot == 0 else (M1R, M0R)
        eo = slot * 128
        if opt.get('prio', 1) and (slot == 0 or opt.get('prio') == 2):
            a(f'''
    s_sub_u32 s{X0}, s{NT}, s{TT}
    s_cmp_ge_u32 s{X0}, {th[0]}
    s_cbranch_scc1 B_p{slot}
    s_setprio 2
    s_cmp_ge_u32 s{X0}, {th[1]}
    s_cbranch_scc1 B_p{slot}
    s_setprio 1
    s_cmp_ge_u32 s{X0}, {th[2]}
    s_cbranch_scc1 B_p{slot}
    s_setprio 0
B_p{slot}:''')
        a(f'''
    ds_read_b32 v{MA}, v{mcur} offset:{L_LUT}
    ds_read_b32 v{mnext}, v{MAD} offset:{eo+128}
    s_cmp_lt_u32 s{TT}, s{NT}
    s_cbranch_scc1 B_w4_{slot}
    s_waitcnt vmcnt(0)
B_w4_{slot}:
    s_waitcnt vmcnt(4)
    ds_read_b128 {vr(XA,4)}, v{RA0} offset:{so}
    ds_read_b128 {vr(XA+4,4)}, v{RA1} offset:{so}
    ds_read_b128 {vr(XA+8,4)}, v{RA0} offset:{so+2048}
    ds_read_b128 {vr(XA+12,4)}, v{RA1} offset:{so+2048}''')
        for fb in range(4):
            a(f'    ds_read_b64_tr_b16 {vr(XT+4*fb,2)}, v{RT+fb} offset:{so}')
            a(f'    ds_read_b64_tr_b16 {vr(XT+4*fb+2,2)}, v{RT+fb} offset:{so+2048}')
        a(f'''
    s_add_u32 s{TT}, s{TT}, 1               ; t+2
    s_waitcnt lgkmcnt(12)
    v_mfma_f32_16x16x32_bf16 {vr(S,4)}, {vr(MA,4)}, {vr(MB,4)}, 0
    v_and_b32 v{mnext}, 0x70, v{mnext}
    s_waitcnt lgkmcnt(11)
    v_mfma_f32_16x16x32_bf16 {vr(S,4)}, {vr(XA,4)}, {vr(QLO,4)}, {vr(S,4)}
    s_waitcnt lgkmcnt(10)
    v_mfma_f32_16x16x32_bf16 {vr(S,4)}, {vr(XA+4,4)}, {vr(QLO+4,4)}, {vr(S,4)}
    s_waitcnt lgkmcnt(9)
    v_mfma_f32_16x16x32_bf16 {vr(S,4)}, {vr(XA+8,4)}, {vr(QHI,4)}, {vr(S,4)}
    s_waitcnt lgkmcnt(8)
    v_mfma_f32_16x16x32_bf16 {vr(S,4)}, {vr(XA+12,4)}, {vr(QHI+4,4)}, {vr(S,4)}
    s_waitcnt lgkmcnt(0)
    s_cmp_lt_u32 s{TT}, s{NT}
    s_cbranch_scc0 B_skip_{slot}''')
        dma(EE, slot)
        a(f'''
    ds_read_b128 {vr(EE,4)}, v{EA} offset:{eo+384}
B_cont_{slot}:''')
        for r in range(4):
            a(f'    v_exp_f32 v{S+r}, v{S+r}')
        if slot == 1:
            a(f'    v_add_u32 v{EA}, 256, v{EA}')
            a(f'    v_add_u32 v{MAD}, 256, v{MAD}')
        if pk:
            a(f'    v_pk_add_f32 {vr(S,2)}, {vr(S,2)}, 1.0 op_sel_hi:[1,0]')
            a(f'    v_pk_add_f32 {vr(S+2,2)}, {vr(S+2,2)}, 1.0 op_sel_hi:[1,0]')
        else:
            for r in range(4):
                a(f'    v_add_f32 v{S+r}, 1.0, v{S+r}')
        for r in range(4):
            a(f'    v_rcp_f32 v{S+r}, v{S+r}')
        a(f'''
    v_cvt_pk_bf16_f32 v{PP}, v{S}, v{S+1}
    s_cmp_gt_u32 s{TT}, s{NT}
    v_cvt_pk_bf16_f32 v{PP+1}, v{S+2}, v{S+3}
    s_nop 0
    v_mov_b32_dpp v{PP+2}, v{PP} row_ror:8 row_mask:0xf bank_mask:0xf
    v_mov_b32_dpp v{PP+3}, v{PP+1} row_ror:8 row_mask:0xf bank_mask:0xf
    s_nop 1''')
        for fb in range(4):
            a(f'    v_mfma_f32_16x16x32_bf16 {vr(ACC+4*fb,4)}, {vr(XT+4*fb,4)}, {vr(PP,4)}, {vr(ACC+4*fb,4)}')
        a('    s_cbranch_scc1 B_loopdone' if slot == 0 else '    s_cbranch_scc0 B_loop')
    n0 = len(a.lines)
    body(0)
    body(1)
    drop = []
    if opt.get('bench'): drop += [f'v_add_u32 v{EA}, 256', f'v_add_u32 v{MAD}, 256']
    a.lines[n0:] = [l for l in a.lines[n0:] if not any(l.strip().startswith(d) for d in drop)]
    a(f'''
B_loopdone:
    s_cmp_lg_u32 s{MODE}, 0
    s_cbranch_scc1 C_next
B_epi:''')
    stamp(9)
    a(f'''
    v_xor_b32 v{T+1}, 8, v{WVA}
    v_xor_b32 v{T+2}, 16, v{WVA}
    v_xor_b32 v{T+3}, 24, v{WVA}''')
    for blk in range(4):
        ad = WVA if blk == 0 else T+blk
        for ks in range(2):
            for h in range(2):
                a(f'    ds_read_b64_tr_b16 {vr(XA+blk*8+ks*4+h*2,2)}, v{ad} offset:{L_WV+(32*ks+16*h)*128}')
        if blk == 2:
            a('    s_waitcnt lgkmcnt(8)')
    for r in range(8):
        a(f'    v_cvt_pk_bf16_f32 v{S+r}, v{ACC+2*r}, v{ACC+2*r+1}')
    epi = opt.get('epi', 1)
    if epi:
        a(f'''
    v_and_b32 v{T+4}, 7, v{LANE}
    v_lshrrev_b32 v{T+5}, 3, v{LANE}
    v_and_b32 v{T+5}, 6, v{T+5}             ; 2g
    v_xor_b32 v{T+5}, v{T+5}, v{T+4}
    v_lshlrev_b32 v{T+5}, 4, v{T+5}
    v_lshl_add_u32 v{T+4}, v{T+4}, 7, v{T+5}
    v_add_u32 v{T+4}, s{RING}, v{T+4}
    v_xor_b32 v{T+6}, 16, v{T+4}
    v_lshl_add_u32 v{T+5}, v{LANE}, 4, s{RING}''')
    else:
        a(f'''
    v_and_b32 v{T+4}, 7, v{LANE}
    v_lshlrev_b32 v{T+4}, 19, v{T+4}
    v_lshrrev_b32 v{T+5}, 4, v{LANE}
    v_lshl_add_u32 v{T+4}, v{T+5}, 5, v{T+4}
    s_lshl_b32 s{X0}, s{WID}, 15
    s_lshl_b32 s{X0+1}, s2, 7
    s_add_u32 s{PFT}, s{X0}, s{X0+1}''')
    for blk in range(4):
        a(f'    s_waitcnt lgkmcnt({min(8, 12-4*blk)})')
        a(f'    v_mfma_f32_16x16x32_bf16 {vr(QLO+4*blk,4)}, {vr(XA+blk*8,4)}, {vr(S,4)}, 0')
        a(f'    v_mfma_f32_16x16x32_bf16 {vr(QLO+4*blk,4)}, {vr(XA+blk*8+4,4)}, {vr(S+4,4)}, {vr(QLO+4*blk,4)}')
    a(f'''
    s_cmp_lg_u32 s{WID}, 15
    s_cbranch_scc1 K_no2
    s_mov_b64 exec, 1
    s_cmp_lg_u32 s{GAVE}, 0
    s_cbranch_scc1 K_ticket
K_adv:
    v_mov_b32 v{T}, s{EPOCH}
    global_store_dword v{ZERO}, v{T}, s[18:19]
K_skip:
    s_mov_b64 exec, -1
K_no2:
    s_nop 2''')
    for r in range(4):
        a(f'    v_cvt_pk_bf16_f32 v{XA+r}, v{QLO+2*r}, v{QLO+2*r+1}')
    a(f'    s_mov_b64 exec, {sp(LOM)}')
    if epi:
        a(f'    ds_write_b128 v{T+4}, {vr(XA,4)}')
    else:
        a(f'    buffer_store_dwordx4 {vr(XA,4)}, v{T+4}, {sq(SOUT)}, s{PFT} offen{of}')
    for r in range(4, 8):
        a(f'    v_cvt_pk_bf16_f32 v{XA+r}, v{QLO+2*r}, v{QLO+2*r+1}')
    if epi:
        a(f'''
    ds_write_b128 v{T+6}, {vr(XA+4,4)}
    s_mov_b64 exec, -1
    s_waitcnt lgkmcnt(0)
    ds_read_b128 {vr(XA+8,4)}, v{T+5}
    s_waitcnt lgkmcnt(0)
    buffer_store_dwordx4 {vr(XA+8,4)}, v{ROWOFF}, {sq(SOUT)}, 0 offen{of}''')
    else:
        a(f'''
    buffer_store_dwordx4 {vr(XA+4,4)}, v{T+4}, {sq(SOUT)}, s{PFT} offen offset:16{of}
    s_mov_b64 exec, -1''')
    if st:
        stamp(10)
        a('    s_waitcnt vmcnt(0)')
        stamp(11)
        a(f'''
    s_add_u32 s{X0}, s18, {STAMP_OFF}
    s_addc_u32 s{X0+1}, s19, 0
    s_lshl_b32 s{X0+2}, s2, 4
    s_add_u32 s{X0+2}, s{X0+2}, s{WID}
    s_lshl_b32 s{X0+2}, s{X0+2}, 6
    v_lshl_add_u32 v{T}, v{LANE}, 2, s{X0+2}
    s_mov_b64 exec, 0xffff
    global_store_dword v{T}, v{STV}, {sp(X0)}''')
        if 'amp' in opt:
            a(f'''
    v_readlane_b32 s60, v{STV}, 0
    v_readlane_b32 s61, v{STV}, {opt['amp']}
    v_readlane_b32 s62, v{STV}, 11
    s_sub_u32 s61, s61, s60
    s_mul_i32 s61, s61, {opt.get('ampk', 2)}
    s_min_u32 s61, s61, 20000
D_spin:
    s_memrealtime s[98:99]
    s_waitcnt lgkmcnt(0)
    s_sub_u32 s98, s98, s62
    s_cmp_lt_u32 s98, s61
    s_cbranch_scc1 D_spin''')
    a(f'''
L_end:
    s_endpgm
B_skip_0:
    s_nop 7
    s_branch B_cont_0
B_skip_1:
    s_nop 7
    s_branch B_cont_1
K_ticket:
    v_mov_b32 v{T+1}, 1
    global_atomic_add v{ATK}, v{ZERO}, v{T+1}, s[16:17] sc0 sc1
    s_waitcnt vmcnt(0)
    v_readfirstlane_b32 s{X0}, v{ATK}
    s_cmp_eq_u32 s{X0}, {NWG-1}
    s_cbranch_scc1 K_adv
    s_branch K_skip
''')
    def drop_lines():
        for r in range(4):
            a(f'    v_mov_b32 v{EN+r}, {EMPTY}')
        a(f'''
    v_lshrrev_b32 v{T}, 2, v0
    v_lshrrev_b32 v{T+1}, 5, v{T}
    v_lshlrev_b32 v{T+1}, 2, v{T+1}
    v_lshlrev_b32 v{T}, v{T}, 1
    ds_or_b32 v{T+1}, v{T} offset:{L_RESC}''')
    a(f'''
A_full:
    s_wqm_b64 exec, {sp(S0)}
    v_mov_b32 v40, {FULLM}
    v_mov_b32 v41, {EMPTY}
    v_mov_b32 v42, {EMPTY}
    v_mov_b32 v43, {EMPTY}
    s_mov_b64 exec, -1
    s_branch A_pub''')
    for tag in rare:
        a(f'''
Z_give{tag}:
    ds_write_b32 v{ZERO}, v{FOUR} offset:{L_GAVE}''')
        drop_lines()
        a(f'''
    s_mov_b64 {sp(S0)}, 0
    s_mov_b32 s{POLLN}, 0
    s_branch Z_nr{tag}
Z_full{tag}:
    s_mov_b64 exec, vcc''')
        drop_lines()
        a(f'    s_branch Z_rank{tag}')
    a('Y_lost:')
    for r in range(4, 8):
        a(f'    v_mov_b32 v{EN+r}, {EMPTY}')
    a(f'''
    s_mov_b64 {sp(S1)}, 0
    s_branch Y_nr
C_slowcnt:
    s_cmp_lg_u32 s{MODE}, 0
    s_cbranch_scc1 C_careful''')
    for k in range(8):
        a(f'    v_readlane_b32 s{RESC+k}, v{T+1}, {16+k}')
    a(f'''
    v_readlane_b32 s{GAVE}, v{T+1}, 25
    s_mov_b32 s{MODE}, 2
    s_cmp_lg_u32 s{X0+1}, 0
    s_cbranch_scc1 C_next
    s_mov_b32 s{MODE}, 1
    s_branch B_cntok
C_careful:
    s_min_u32 s{NT}, s{NT}, {GSTRIDE}
    s_bitcmp1_b32 s{X0}, 24
    s_cselect_b32 s{MODE}, 2, 1
    s_branch B_cntok
C_next:
    s_setprio 0
    s_waitcnt vmcnt(0) lgkmcnt(0)
    s_barrier
    s_cmp_eq_u32 s{MODE}, 2
    s_cbranch_scc1 C_round
    s_mov_b32 s{X0}, -1''')
    for k in range(7, -1, -1):
        a(f'''
    s_ff1_i32_b32 s{X0+1}, s{RESC+k}
    s_add_u32 s{X0+1}, s{X0+1}, {32*k}
    s_cmp_lg_u32 s{RESC+k}, 0
    s_cselect_b32 s{X0}, s{X0+1}, s{X0}''')
    a(f'''
    s_cmp_eq_u32 s{X0}, -1
    s_cbranch_scc1 B_epi
    s_lshr_b32 s{X0+1}, s{X0}, 5
    s_lshl_b32 s{X0+2}, 1, s{X0}''')
    for k in range(8):
        a(f'''
    s_andn2_b32 s{X0+3}, s{RESC+k}, s{X0+2}
    s_cmp_eq_u32 s{X0+1}, {k}
    s_cselect_b32 s{RESC+k}, s{X0+3}, s{RESC+k}''')
    a(f'''
    s_and_b32 s{X0+2}, s{X0}, 31
    s_lshl_b32 s{X0+2}, s{X0+2}, 3
    s_or_b32 s{X0}, s{X0+2}, s{X0+1}
    s_mul_i32 s{X0}, s{X0}, {CH*4}''')
    for k in range(4):
        a(f'''
    buffer_load_dword v{ED+k}, v{T4}, {sq(SDST)}, s{X0} offen
    buffer_load_dword v{ES+k}, v{T4}, {sq(SSRC)}, s{X0} offen
    s_add_u32 s{X0}, s{X0}, 4096''')
    for r in range(4, 8):
        a(f'    v_mov_b32 v{EN+r}, {EMPTY}')
    a(f'    v_mov_b32 v{T+1}, {EMPTY}')
    a('    s_waitcnt vmcnt(0)')
    for k in range(4):
        a(f'''
    v_and_b32 v{T}, 255, v{ED+k}
    v_cmp_eq_u32 vcc, s2, v{T}
    v_lshrrev_b32 v{ED+k}, 8, v{ED+k}
    v_lshl_or_b32 v{ES+k}, v{ES+k}, 7, v{ED+k}''')
        if k == 3:
            a(f'    s_and_b64 vcc, vcc, {sp(M3)}')
        a(f'    v_cndmask_b32 v{EN+k}, v{T+1}, v{ES+k}, vcc')
    a(f'''
C_round:
    v_mov_b32 v{T+4}, {EMPTY}
    v_mov_b32 v{T+5}, {EMPTY}
    v_mov_b32 v{T+6}, {EMPTY}
    v_mov_b32 v{T+7}, {EMPTY}
    ds_write_b128 v{T16}, {vr(T+4,4)} offset:{L_LIST}
    s_cmp_ge_u32 s{WID}, 6
    s_cbranch_scc1 C_i1
    ds_write_b128 v{T16}, {vr(T+4,4)} offset:{L_LIST+16384}
C_i1:
    s_cmp_lg_u32 s{WID}, 12
    s_cbranch_scc1 C_i2
    s_mov_b64 exec, 0xffff
    ds_write_b32 v{CNTA}, v{LBASE} offset:{L_BCNT}
    ds_write_b32 v{ZERO}, v{ZERO} offset:{L_PEND}
    s_mov_b64 exec, -1
C_i2:
    s_waitcnt lgkmcnt(0)
    s_barrier
    s_mov_b32 s{X0+4}, {GSTRIDE//4}
    s_mov_b32 s{X0+5}, {L_LIST+GSTRIDE}''')
    for r in range(8):
        brank(r, '-1')
        a(f'''
    v_mul_u32_u24 v{T+3}, s{X0+4}, v{G4+r}
    v_add_u32 v{T+3}, s{X0+5}, v{T+3}
    s_mov_b64 exec, {sp(VM+2*r)}
    s_waitcnt lgkmcnt(0)
    v_cmp_lt_u32 vcc, v{RK+r}, v{T+3}
    s_and_saveexec_b64 {sp(X0+6)}, vcc
    ds_write_b32 v{RK+r}, v{EN+r}
    v_mov_b32 v{EN+r}, {EMPTY}
    s_andn2_b64 exec, {sp(X0+6)}, exec
    ds_write_b32 v{ZERO}, v{FOUR} offset:{L_PEND}
    s_mov_b64 exec, -1''')
    a(f'''
    v_mov_b32 v{EA}, v{EA0}
    v_mov_b32 v{MAD}, v{MAD0}
    s_waitcnt lgkmcnt(0)
    s_barrier
L_last:
    s_branch B_counts''')
    if opt.get('red'):
        gen_red(a, opt)
    def kd(name, vg, sg):
        a(f'''
.p2align 6
.amdhsa_kernel {name}
  .amdhsa_next_free_vgpr {vg}
  .amdhsa_next_free_sgpr {sg}
  .amdhsa_accum_offset {vg}
  .amdhsa_group_segment_fixed_size 0
  .amdhsa_kernarg_size 64
  .amdhsa_user_sgpr_count 2
  .amdhsa_user_sgpr_kernarg_segment_ptr 1
  .amdhsa_system_sgpr_workgroup_id_x 1
.end_amdhsa_kernel''')
    a('.section .rodata,"a"')
    kd(KNAME, 128, 102)
    if opt.get('red'):
        kd('red_kernel', 32, 48)
    return a.text()

if __name__ == '__main__':
    out = sys.argv[1]
    opt = {}
    for kv in sys.argv[2:]:
        k, v = kv.split('=')
        try:
            v = int(v)
        except ValueError:
            v = '' if v == 'none' else ' ' + v.replace('+', ' ')
        opt[k] = v
    open(out, 'w').write(build(opt))
```

```python
import sys, struct
from gen3 import gen_red

N, E, D = 25000, 800000, 64
NWG = 256
CH = E // NWG
HSTRIDE = 16384 + 128
SEG_OFF = 4096
H1_OFF = 256 * HSTRIDE
WS_USED = SEG_OFF + 2 * H1_OFF
X_BYTES = N * 128
EMPTY = 0x003FFFFF
FULLM = 0x003FFFFE
KNAME = 'standalone__kernel_systems_refs_featgraph__graph_kernel'

L_ACNT = 0
L_BCNT = 1024
L_RESC = 1088
L_PEND = 1120
L_GAVE = 1124
L_LUT = 1152
L_WV = 2048
L_LIST = 10240
GSTRIDE = 1408
L_RING = 32768
L_XN = 65536
L_WQ = 98304
ISTRIDE = 144
L_IMG = 163840 - 256 * ISTRIDE
LDS = 163840
STAMP_OFF = 0x1000000

def f32bits(x):
    return struct.unpack('<I', struct.pack('<f', x))[0]

class Asm:
    def __init__(self):
        self.lines = []
    def __call__(self, s):
        for ln in s.strip('\n').split('\n'):
            if ln.strip():
                self.lines.append(ln)
    def text(self):
        return '\n'.join(self.lines) + '\n'

def vr(lo, n):
    return f'v[{lo}:{lo+n-1}]'
def sp(lo):
    return f's[{lo}:{lo+1}]'
def sq(lo):
    return f's[{lo}:{lo+3}]'

def srd(a, d, lo, nbytes):
    a(f'    s_mov_b32 s{d}, s{lo}')
    a(f'    s_mov_b32 s{d+1}, s{lo+1}')
    a(f'    s_mov_b32 s{d+2}, {nbytes}')
    a(f'    s_mov_b32 s{d+3}, 0x00020000')

LANE, T4, T16, FOUR, ZERO, ROWOFF, WVA = 1, 2, 3, 4, 5, 6, 7
QLO, QHI, ACC, XA, XT, S, PP, MA, MB, EE = 8, 16, 24, 40, 56, 72, 76, 80, 84, 88
M0R, M1R, RA0, RA1, RT, EA, MAD, CHK, EA0 = 92, 93, 94, 95, 96, 100, 101, 102, 103
T = 104
EN = 112
MAD0, PFD, ATK, STV, CNTA, EPV, LBASE = 120, 121, 122, 123, 124, 125, 126
ED, ES, B4, PS = 40, 44, 48, 52
WD, XN = 56, 60
IMGR, STO, WSA = 68, 69, 70
G4, RK = 40, 48

GAVE = 3
SX, SSRC, SDST, SW, EPOCH, ISSUED, SOUT, SWS = 20, 24, 28, 32, 34, 35, 36, 40
WID, SEGB, AMASK, RING, NT, TT = 44, 45, 46, 47, 48, 49
TAG = 50
SEMPTY, MODE, LOM, M3 = 54, 55, 56, 58
RESC = 60
FR, N1 = 60, 62
VM = 68
X0 = 84
H1SO, KFULL, S0, S1, K88, KTHR, PFT, POLLN, PRIME = 86, 87, 88, 90, 92, 94, 95, 96, 97

def build(opt):
    a = Asm()
    st = opt.get('stamps')
    def stamp(k):
        if st:
            ck = {0: 14, 7: 12, 9: 13}.get(k)
            if ck:
                a('    s_memtime s[100:101]')
            a('    s_memrealtime s[98:99]')
            a('    s_waitcnt lgkmcnt(0)')
            a(f'    v_writelane_b32 v{STV}, s98, {k}')
            if ck:
                a(f'    v_writelane_b32 v{STV}, s100, {ck}')
    launch = (f'; @launch kernel={KNAME} grid=({NWG},1,1) block=(1024,1,1) lds={LDS}' if opt.get('list') else
              f'; @launch grid=({NWG},1,1) block=(1024,1,1) lds={LDS}')
    if opt.get('red'):
        launch += '\n; @launch kernel=red_kernel grid=(1,1,1) block=(64,1,1) lds=0'
    sf = opt.get('st', ' sc1')
    lf = opt.get('ld', ' sc1')
    gf = opt.get('gather', '')
    of = opt.get('out', '')
    a(f'''; FeatGraph (SDDMM sigmoid gate + SpMM) in one launch, one workgroup per CU.
{launch}
.amdgcn_target "amdgcn-amd-amdhsa--gfx950"
.text
.globl {KNAME}
.p2align 8
.type {KNAME},@function
{KNAME}:
    s_cmp_ge_u32 s2, {NWG}
    s_cbranch_scc1 L_end''')
    if st:
        a(f'    v_mov_b32 v{STV}, 0')
    stamp(0)
    a('    s_load_dwordx16 s[4:19], s[0:1], 0')
    if opt.get('cpf'):
        a(f'''
    s_getpc_b64 {sp(S0)}
I_pc:
    v_lshlrev_b32 v127, 7, v0
    v_cmp_gt_u32 vcc, A_full-I_pc, v127
    s_and_saveexec_b64 {sp(S1)}, vcc
    s_cbranch_execz I_c
    global_load_dword v127, v127, {sp(S0)}
I_c:
    s_mov_b64 exec, -1''')
    a(f'''
    s_mul_i32 s{X0}, s2, {CH*4}
    v_lshlrev_b32 v{T4}, 2, v0
    v_lshrrev_b32 v{T+4}, 6, v0
    v_add_u32 v{T}, s{X0}, v{T4}
    v_readfirstlane_b32 s{WID}, v{T+4}
    v_add_u32 v{T+1}, 4096, v{T}
    v_add_u32 v{T+2}, 8192, v{T}
    v_add_u32 v{T+3}, 12288, v{T}
    v_cmp_gt_u32 {sp(M3)}, {CH-3072}, v0
    v_lshlrev_b32 v{T16}, 4, v0
    v_mov_b32 v{ZERO}, 0
    v_mov_b32 v{T+4}, {EMPTY}
    v_mov_b32 v{T+5}, {EMPTY}
    v_mov_b32 v{T+6}, {EMPTY}
    v_mov_b32 v{T+7}, {EMPTY}
    s_mov_b64 exec, {sp(M3)}
    s_waitcnt lgkmcnt(0)
    s_cbranch_execz A_no3a
    global_load_dword v{ED+3}, v{T+3}, s[8:9]
    global_load_dword v{ES+3}, v{T+3}, s[6:7]
A_no3a:
    s_mov_b64 exec, -1''')
    for k in range(3):
        a(f'    global_load_dword v{ED+k}, v{T+k}, s[8:9]')
    for k in range(3):
        a(f'    global_load_dword v{ES+k}, v{T+k}, s[6:7]')
    a(f'''
    v_add_u32 v{T}, {L_IMG}, v{T16}
    ds_write_b128 v{T}, {vr(T+4,4)}
    ds_write_b128 v{T}, {vr(T+4,4)} offset:16384
    s_cmp_ge_u32 s{WID}, 4
    s_cbranch_scc1 I_a
    ds_write_b128 v{T}, {vr(T+4,4)} offset:32768
    ds_write_b32 v{T4}, v{ZERO} offset:{L_ACNT}
I_a:
    s_add_u32 s18, s18, {opt.get('wsoff', 0) << 20}
    s_addc_u32 s19, s19, 0
    global_load_dword v{EPV}, v{ZERO}, s[18:19]
    v_and_b32 v{LANE}, 63, v0
    v_mov_b32 v{FOUR}, 4''')
    srd(a, SX, 4, X_BYTES)
    a(f'''
    s_cmp_lt_u32 s{WID}, 8
    s_cselect_b32 s{SW}, s10, s12
    s_cselect_b32 s{SW+1}, s11, s13
    v_and_b32 v{T+3}, 0x1ff0, v{T16}
    v_lshrrev_b32 v{T}, 3, v{LANE}
    v_and_b32 v{T+1}, 7, v{LANE}
    v_xor_b32 v{T+1}, v{T+1}, v{T}
    v_lshlrev_b32 v{T+1}, 4, v{T+1}
    v_lshlrev_b32 v{T}, 19, v{T}
    s_lshl_b32 s{X0}, s{WID}, 15
    s_lshl_b32 s{X0+1}, s2, 7
    s_add_u32 s{X0}, s{X0}, s{X0+1}
    v_add3_u32 v{ROWOFF}, v{T}, v{T+1}, s{X0}
    s_lshl_b32 s{X0}, s{WID}, 10
    s_add_u32 m0, s{X0}, {L_XN}
    s_waitcnt lgkmcnt(0)
    s_barrier
    global_load_dwordx4 {vr(WD,4)}, v{T+3}, {sp(SW)}
    buffer_load_dwordx4 v{ROWOFF}, {sq(SX)}, 0 offen lds''')
    pfpos = [0]
    def prefetch(n):
        lo, hi = pfpos[0], pfpos[0] + n
        pfpos[0] = hi
        m = ((1 << hi) - 1) ^ ((1 << lo) - 1)
        a(f'''
    s_lshr_b32 s{PFT}, s2, 3
    s_lshl_b32 s{PFT}, s{PFT}, 4
    s_add_u32 s{PFT}, s{PFT}, s{WID}
    s_mul_i32 s{PFT}, s{PFT}, {49*128}
    v_lshlrev_b32 v{T}, 7, v{LANE}
    s_mov_b32 exec_lo, 0x{m & 0xffffffff:x}
    s_mov_b32 exec_hi, 0x{m >> 32:x}
    buffer_load_dword v{PFD}, v{T}, {sq(SX)}, s{PFT} offen
    s_mov_b64 exec, -1''')
    p = 0
    srd(a, SWS, 18, WS_USED)
    if opt.get('tlb'):
        a(f'''
    s_mul_i32 s{PFT}, s{WID}, 9
    v_add_u32 v{T}, s{PFT}, v{LANE}
    v_lshlrev_b32 v{T}, 16, v{T}
    s_mov_b64 exec, 0x1ff
    buffer_load_dword v{ATK}, v{T}, {sq(SWS)}, 0 offen
    s_mov_b64 exec, -1''')
        p += 1
    if opt.get('pf1'):
        prefetch(opt['pf1'])
        p += 1
    y = 3 + p
    stamp(1)
    a(f'''
    ds_write_b128 v{T16}, {vr(T+4,4)} offset:{L_LIST}
    s_cmp_ge_u32 s{WID}, 6
    s_cbranch_scc1 I_b
    ds_write_b128 v{T16}, {vr(T+4,4)} offset:{L_LIST+16384}
I_b:
    v_and_b32 v{LBASE}, 15, v{LANE}
    v_mul_u32_u24 v{LBASE}, {GSTRIDE}, v{LBASE}
    v_add_u32 v{LBASE}, {L_LIST}, v{LBASE}
    v_and_b32 v{CNTA}, 0x7c, v{T4}
    s_cmp_lg_u32 s{WID}, 12
    s_cbranch_scc1 I_done
    v_cmp_gt_u32 vcc, 16, v{LANE}
    s_mov_b32 exec_hi, 0
    s_nop 0
    v_cndmask_b32 v{T+2}, 0, v{LBASE}, vcc
    ds_write_b32 v{CNTA}, v{T+2} offset:{L_BCNT}
    s_mov_b64 exec, 0xff
    v_cvt_f32_u32 v{T+2}, v{LANE}
    v_mul_f32 v{T+3}, v{T+2}, v{T+2}
    v_cvt_pk_bf16_f32 v{T+2}, v{T+3}, v{T+2}
    v_lshlrev_b32 v{T+3}, 4, v{LANE}
    ds_write_b32 v{T+3}, v{T+2} offset:{L_LUT}
    s_mov_b64 exec, -1
I_done:''')
    a(f'''
    s_lshr_b32 s{PRIME}, s2, 3
    s_and_b32 s{X0}, s2, 7
    s_lshl_b32 s{X0}, s{X0}, 5
    s_or_b32 s{PRIME}, s{PRIME}, s{X0}
    s_lshl_b32 s{X0}, s{PRIME}, 6
    s_add_u32 s{X0}, s{X0}, {SEG_OFF}
    s_add_u32 s{X0+1}, s{X0}, {H1_OFF}
    s_mul_i32 s{SEGB}, s2, {HSTRIDE}
    s_add_u32 s{SEGB}, s{SEGB}, {SEG_OFF}
    s_mov_b32 s{SEMPTY}, {EMPTY}
    s_mov_b32 s{KTHR}, {L_IMG}
    s_mov_b32 s{K88}, 0x88888888
    s_mov_b32 s{K88+1}, 0x88888888
    v_lshrrev_b32 v{T}, 2, v0
    v_and_b32 v{T+1}, 3, v0
    v_mul_u32_u24 v{IMGR}, {ISTRIDE}, v{T}
    v_lshl_add_u32 v{IMGR}, v{T+1}, 2, v{IMGR}
    v_add_u32 v{IMGR}, {L_IMG}, v{IMGR}
    v_mul_u32_u24 v{STO}, {HSTRIDE}, v{T}
    v_lshl_add_u32 v{STO}, v{T+1}, 4, v{STO}
    v_bfe_u32 v{T}, v0, 3, 6
    v_and_b32 v{T+1}, 7, v0
    v_bfe_u32 v{T+2}, v{T}, 1, 1
    v_and_or_b32 v{T+2}, v{T}, 8, v{T+2}
    v_bfe_u32 v{T+3}, v{T}, 1, 2
    s_cmp_lt_u32 s{WID}, 8
    s_cselect_b64 {sp(S0)}, -1, 0
    s_mov_b32 s{S1}, {L_WV}
    s_cselect_b32 s{S1}, {L_WQ}, s{S1}
    v_cndmask_b32 v{T+2}, v{T+3}, v{T+2}, {sp(S0)}
    v_lshlrev_b32 v{T+1}, 1, v{T+1}
    v_xor_b32 v{T+1}, v{T+1}, v{T+2}
    v_lshlrev_b32 v{T+1}, 3, v{T+1}
    v_lshl_add_u32 v{T+1}, v{T}, 7, v{T+1}
    v_add_u32 v{WSA}, s{S1}, v{T+1}
    v_xor_b32 v{WSA+1}, 8, v{WSA}
    v_bfrev_b32 v{T+4}, -2''')
    def arank(k):
        a(f'''
    v_lshlrev_b32_sdwa v{B4+k}, 2, v{ED+k} dst_sel:DWORD dst_unused:UNUSED_PAD src0_sel:DWORD src1_sel:BYTE_0
    ds_add_rtn_u32 v{PS+k}, v{B4+k}, v{FOUR} offset:{L_ACNT}''')
    def aentry(k):
        a(f'''
    v_lshrrev_b32 v{ED+k}, 8, v{ED+k}
    v_lshl_or_b32 v{ES+k}, v{ES+k}, 7, v{ED+k}
    v_mad_u32_u24 v{B4+k}, v{B4+k}, {ISTRIDE//4}, s{KTHR}''')
    def aput(k):
        a(f'''
    v_min_u32 v{PS+k}, {ISTRIDE-4}, v{PS+k}
    v_add_u32 v{PS+k}, v{PS+k}, v{B4+k}
    ds_write_b32 v{PS+k}, v{ES+k}''')
    a(f'    s_waitcnt vmcnt({y+3})')
    stamp(2)
    for k in range(3):
        arank(k)
    a(f'    s_waitcnt vmcnt({y})')
    for k in range(3):
        aentry(k)
    for k in range(3):
        a('    s_waitcnt lgkmcnt(2)')
        aput(k)
    a(f'''
    s_mov_b64 exec, {sp(M3)}
    s_cbranch_execz A_no3b''')
    arank(3)
    aentry(3)
    a('    s_waitcnt lgkmcnt(0)')
    aput(3)
    a(f'''
A_no3b:
    s_mov_b64 exec, -1
    s_waitcnt vmcnt({y-2})
    v_readfirstlane_b32 s{EPOCH}, v{EPV}
    ds_write_b64 v{WSA}, {vr(WD,2)}
    ds_write_b64 v{WSA+1}, {vr(WD+2,2)}
    s_add_u32 s{EPOCH}, s{EPOCH}, 1
    s_lshl_b32 s{TAG}, s{EPOCH}, 22
    s_lshl_b32 s{TAG+1}, s{EPOCH}, 12
    s_and_b32 s{TAG+1}, s{TAG+1}, 0xffc00000
    s_lshl_b32 s{TAG+2}, s{EPOCH}, 2
    s_and_b32 s{TAG+2}, s{TAG+2}, 0xffc00000
    s_xor_b32 s{TAG+3}, s{TAG}, 0xffc00000
    s_waitcnt lgkmcnt(0)
    s_barrier''')
    stamp(3)
    a(f'''
    ds_read2_b32 {vr(46,2)}, v{IMGR} offset0:24 offset1:28
    ds_read2_b32 {vr(40,2)}, v{IMGR} offset0:0 offset1:4
    ds_read2_b32 {vr(42,2)}, v{IMGR} offset0:8 offset1:12
    ds_read2_b32 {vr(44,2)}, v{IMGR} offset0:16 offset1:20
    s_waitcnt lgkmcnt(3)
    v_cmp_ne_u32 vcc, s{SEMPTY}, v47
    s_and_b64 {sp(S0)}, vcc, {sp(K88)}
    s_waitcnt lgkmcnt(1)
    s_cbranch_scc1 A_full
A_pub:
    v_cmp_ne_u32 vcc, s{SEMPTY}, v43''')
    for r in range(4):
        a(f'    v_or_b32 v{40+r}, s{TAG+r}, v{40+r}')
    a(f'''
    buffer_store_dwordx4 {vr(40,4)}, v{STO}, {sq(SWS)}, s{X0} offen{sf}
    s_and_b64 {sp(S0)}, vcc, {sp(K88)}
    s_wqm_b64 vcc, {sp(S0)}
    s_waitcnt lgkmcnt(0)''')
    for r in range(4):
        a(f'    v_or_b32 v{44+r}, s{TAG+r}, v{44+r}')
    a(f'''
    v_cndmask_b32 v{STO}, v{T+4}, v{STO}, vcc
    buffer_store_dwordx4 {vr(44,4)}, v{STO}, {sq(SWS)}, s{X0+1} offen{sf}''')
    if opt.get('pfb'):
        prefetch(opt['pfb'])
        p += 1
    stamp(4)
    ppos = opt.get('ppos', 1)
    def poll_issue():
        a(f'    buffer_load_dwordx4 {vr(EN,4)}, v{T16}, {sq(SWS)}, s{SEGB} offen{lf}')
    if ppos == 0:
        poll_issue()
    a(f'''
    v_lshrrev_b32 v{T+5}, 4, v{LANE}        ; g
    v_bfe_u32 v{T+1}, v{LANE}, 2, 2
    v_lshl_add_u32 v{T+2}, v{T+5}, 3, v{T+1}
    v_bfe_u32 v{T+3}, v{T+2}, 1, 1
    v_and_or_b32 v{T+3}, v{T+2}, 8, v{T+3}
    v_and_b32 v{T+4}, 3, v{LANE}
    v_lshlrev_b32 v{T+4}, 1, v{T+4}
    v_xor_b32 v{T+3}, v{T+3}, v{T+4}
    v_lshlrev_b32 v{T+3}, 3, v{T+3}
    v_lshl_add_u32 v{T}, v{T+2}, 7, v{T+3}
    v_add_u32 v{T}, {L_WQ}, v{T}
    v_xor_b32 v{T+1}, 8, v{T}
    v_xor_b32 v{T+2}, 64, v{T}
    v_xor_b32 v{T+3}, 0x48, v{T}
    v_and_b32 v{T+7}, 7, v{LANE}
    v_xor_b32 v{T+4}, v{T+5}, v{T+7}
    v_lshlrev_b32 v{T+4}, 4, v{T+4}
    v_lshl_add_u32 v{T+4}, v{T+7}, 7, v{T+4}
    s_lshl_b32 s{X0}, s{WID}, 10
    s_add_u32 s{X0}, s{X0}, {L_XN}
    v_add_u32 v{T+4}, s{X0}, v{T+4}
    v_xor_b32 v{T+6}, 64, v{T+4}''')
    wreg = [24, 32, 72, 80]
    for blk in range(4):
        for ks in range(2):
            for h in range(2):
                a(f'    ds_read_b64_tr_b16 {vr(wreg[blk]+ks*4+h*2,2)}, v{T+blk} offset:{(32*ks+4*h)*128}')
        if blk == 2:
            a('    s_waitcnt lgkmcnt(4)')
    a(f'''
    s_waitcnt vmcnt({p + 2 + (1 if ppos == 0 else 0)})
    ds_read_b128 {vr(XN,4)}, v{T+4}
    ds_read_b128 {vr(XN+4,4)}, v{T+6}''')
    srd(a, SOUT, 14, X_BYTES)
    srd(a, SSRC, 6, E*4)
    srd(a, SDST, 8, E*4)
    a(f'''
    s_add_u32 s{H1SO}, s{SEGB}, {H1_OFF}
    s_mov_b32 s{AMASK}, 0x003fff80
    s_lshl_b32 s{RING}, s{WID}, 13
    s_add_u32 s{RING}, s{RING}, {L_RING}
    s_mov_b32 s{MODE}, 0
    s_mov_b32 s{GAVE}, 0
    s_mov_b32 s{LOM}, 0x00ff00ff
    s_mov_b32 s{LOM+1}, 0x00ff00ff
    v_and_b32 v{T+4}, 15, v{LANE}           ; i
    v_lshrrev_b32 v{T}, 3, v{LANE}
    v_and_b32 v{T+6}, 6, v{T}
    v_xor_b32 v{T+6}, v{T+6}, v{T+7}
    v_lshlrev_b32 v{CHK}, 4, v{T+6}
    s_mul_i32 s{X0}, s{WID}, {GSTRIDE}
    s_add_u32 s{X0}, s{X0}, {L_LIST}
    v_lshl_add_u32 v{EA0}, v{T}, 4, s{X0}
    v_bfe_u32 v{T+6}, v{LANE}, 3, 2
    v_lshl_add_u32 v{T+6}, v{T+7}, 2, v{T+6}
    v_lshl_add_u32 v{MAD0}, v{T+6}, 2, s{X0}
    v_and_b32 v{T+6}, 6, v{T+4}
    v_xor_b32 v{T+6}, v{T+6}, v{T+5}
    v_lshlrev_b32 v{T+6}, 4, v{T+6}
    v_lshl_add_u32 v{T+6}, v{T+4}, 7, v{T+6}
    v_add_u32 v{RA0}, s{RING}, v{T+6}
    v_xor_b32 v{RA1}, 64, v{RA0}
    s_waitcnt lgkmcnt(0)''')
    for blk in range(4):
        a(f'    v_mfma_f32_16x16x32_bf16 {vr(QLO+4*blk,4)}, {vr(wreg[blk],4)}, {vr(XN,4)}, 0')
    for blk in range(4):
        a(f'    v_mfma_f32_16x16x32_bf16 {vr(QLO+4*blk,4)}, {vr(wreg[blk]+4,4)}, {vr(XN+4,4)}, {vr(QLO+4*blk,4)}')
    if ppos == 1:
        poll_issue()
    a(f'''
    v_lshrrev_b32 v{T+6}, 2, v{LANE}        ; row = 4g+r
    v_and_b32 v{T+4}, 6, v{T+6}
    v_bfe_u32 v{T+5}, v{LANE}, 1, 1
    v_xor_b32 v{T+4}, v{T+4}, v{T+5}
    v_lshlrev_b32 v{T+4}, 4, v{T+4}
    v_lshl_add_u32 v{T+4}, v{T+6}, 7, v{T+4}
    v_and_b32 v{T+5}, 1, v{LANE}
    v_lshl_add_u32 v{T+4}, v{T+5}, 3, v{T+4}
    v_add_u32 v{RT}, s{RING}, v{T+4}
    v_xor_b32 v{RT+1}, 32, v{RT}
    v_xor_b32 v{RT+2}, 64, v{RT}
    v_xor_b32 v{RT+3}, 0x60, v{RT}
    v_bfe_u32 v{T+5}, v{T+6}, 1, 2
    v_and_b32 v{T+4}, 3, v{LANE}
    v_lshl_or_b32 v{T+5}, v{T+4}, 2, v{T+5}
    v_lshlrev_b32 v{T+5}, 3, v{T+5}
    v_lshl_add_u32 v{WVA}, v{T+6}, 7, v{T+5}
    s_mov_b32 s{X0}, 0x{f32bits(-1.4426950408889634/8):08x}
    v_mov_b32 v{MA+1}, 0x00003f80
    v_mov_b32 v{MA+2}, 0
    v_mov_b32 v{MA+3}, 0
    v_mov_b32 v{MB}, 0
    v_mov_b32 v{MB+1}, 0
    v_mov_b32 v{MB+2}, 0
    v_mov_b32 v{MB+3}, 0
    v_cvt_f32_u32 v{T+5}, v{T+7}            ; j' = l&7
    v_mov_b32 v{T+6}, 0x71800000            ; BIG = 2^100
    v_mul_f32 v{T+7}, v{T+5}, v{T+6}
    v_mul_f32 v{T+5}, v{T+5}, v{T+7}
    v_mul_f32 v{T+7}, -2.0, v{T+7}
    s_mov_b32 exec_lo, 0xff0000ff
    s_mov_b32 exec_hi, 0
    v_cvt_pk_bf16_f32 v{MB}, v{T+6}, v{T+7}
    v_cvt_pk_bf16_f32 v{MB+1}, v{T+5}, 0
    s_mov_b64 exec, -1''')
    for r in range(16):
        a(f'    v_mul_f32 v{QLO+r}, s{X0}, v{QLO+r}')
    for r in range(8):
        a(f'    v_cvt_pk_bf16_f32 v{T+r}, v{QLO+2*r}, v{QLO+2*r+1}')
    for r in range(8):
        a(f'    v_cndmask_b32 v{QLO+r}, 0, v{T+r}, {sp(LOM)}')
        a(f'    v_cndmask_b32 v{QHI+r}, v{T+r}, 0, {sp(LOM)}')
    for r in range(16):
        a(f'    v_mov_b32 v{ACC+r}, 0')
    if ppos == 2:
        poll_issue()
    for r in range(4, 8):
        a(f'    v_mov_b32 v{EN+r}, {EMPTY}')
    a(f'''
    s_mov_b32 s{POLLN}, 0
    s_mov_b32 s{KTHR}, 0x400000
    s_mov_b32 s{KFULL}, {FULLM}
    s_mov_b64 {sp(S0)}, -1
    s_mov_b64 {sp(S1)}, 0''')
    stamp(5)
    def check(h, dst):
        for r in range(4):
            a(f'    v_xor_b32 v{EN+4*h+r}, s{TAG+r}, v{EN+4*h+r}')
        a(f'''
    v_or3_b32 v{T}, v{EN+4*h}, v{EN+4*h+1}, v{EN+4*h+2}
    v_or_b32 v{T}, v{T}, v{EN+4*h+3}
    v_cmp_le_u32 {dst}, s{KTHR}, v{T}''')
    def brank(r, base, skip=None):
        m = VM + 2*r
        a(f'''
    v_cmp_ne_u32 {sp(m)}, s{SEMPTY}, v{EN+r}
    v_and_b32 v{G4+r}, 15, v{EN+r}
    v_lshlrev_b32 v{G4+r}, 2, v{G4+r}
    s_mov_b64 exec, {sp(m)}''')
        if skip:
            a(f'    s_cbranch_execz {skip}')
        a(f'''
    ds_add_rtn_u32 v{RK+r}, v{G4+r}, v{FOUR} offset:{L_BCNT}
    s_mov_b64 exec, {base}''')
    def bput(r):
        a(f'''
    s_mov_b64 exec, {sp(VM+2*r)}
    ds_write_b32 v{RK+r}, v{EN+r}''')
    rare = []
    def absorb0(tag):
        check(0, 'vcc')
        a(f'''
    s_wqm_b64 vcc, vcc
    s_andn2_b64 {sp(FR)}, {sp(S0)}, vcc
    s_mov_b64 {sp(S0)}, vcc
    s_mov_b64 exec, vcc
    s_cbranch_execz Z_nr{tag}
    s_add_u32 s{POLLN}, s{POLLN}, 1
    s_cmp_gt_u32 s{POLLN}, {opt.get('pollmax', 2000)}
    s_cbranch_scc1 Z_give{tag}
    buffer_load_dwordx4 {vr(EN,4)}, v{T16}, {sq(SWS)}, s{SEGB} offen{lf}
Z_nr{tag}:
    s_mov_b64 exec, {sp(FR)}
    s_cbranch_execz Z_done{tag}
    v_cmp_ne_u32 {sp(N1)}, s{SEMPTY}, v{EN+3}
    v_cmp_eq_u32 vcc, s{KFULL}, v{EN}
    s_and_b64 {sp(N1)}, {sp(N1)}, {sp(K88)}
    s_wqm_b64 exec, {sp(N1)}
    s_cbranch_execz Z_nh{tag}
    s_or_b64 {sp(S1)}, {sp(S1)}, exec
    buffer_load_dwordx4 {vr(EN+4,4)}, v{T16}, {sq(SWS)}, s{H1SO} offen{lf}
Z_nh{tag}:
    s_cbranch_vccnz Z_full{tag}
Z_rank{tag}:
    s_mov_b64 exec, {sp(FR)}''')
        for r in range(4):
            brank(r, sp(FR))
        for r in range(4):
            a('    s_waitcnt lgkmcnt(3)')
            bput(r)
        a(f'Z_done{tag}:')
        rare.append(tag)
    def absorb1():
        check(1, 'vcc')
        a(f'''
    s_andn2_b64 {sp(FR)}, {sp(S1)}, vcc
    s_mov_b64 {sp(S1)}, vcc
    s_mov_b64 exec, vcc
    s_cbranch_execz Y_nr
    s_add_u32 s{POLLN}, s{POLLN}, 1
    s_cmp_gt_u32 s{POLLN}, 1000000
    s_cbranch_scc1 Y_lost
    buffer_load_dwordx4 {vr(EN+4,4)}, v{T16}, {sq(SWS)}, s{H1SO} offen{lf}
Y_nr:
    s_mov_b64 exec, {sp(FR)}''')
        for r in range(4, 8):
            brank(r, sp(FR), 'Y_done')
            a('    s_waitcnt lgkmcnt(0)')
            bput(r)
            a(f'    s_mov_b64 exec, {sp(FR)}')
        a('Y_done:')
    def dma(ereg, slot):
        for q in range(4):
            if q == 0:
                a(f'    s_mov_b32 m0, s{RING}' if slot == 0 else f'    s_add_u32 m0, s{RING}, 4096')
            else:
                a('    s_add_u32 m0, m0, 1024')
            a(f'    v_and_or_b32 v{ereg+q}, v{ereg+q}, s{AMASK}, v{CHK}')
            a(f'    buffer_load_dwordx4 v{ereg+q}, {sq(SX)}, 0 offen{gf} lds')
    a(f"""
    v_mov_b32 v{EA}, v{EA0}
    v_mov_b32 v{MAD}, v{MAD0}
    s_waitcnt vmcnt(0)""")
    stamp(6)
    a(f"""
    s_branch G_first
G_late:
    s_waitcnt vmcnt(0)
    s_mov_b64 exec, {sp(S1)}
    s_cbranch_execz Y_done""")
    absorb1()
    a(f"""
    s_mov_b64 exec, {sp(S0)}
    s_cbranch_execz Z_donea
G_first:""")
    absorb0('a')
    a(f"""
    s_or_b64 exec, {sp(S0)}, {sp(S1)}
    s_cbranch_execnz G_late
    s_mov_b64 exec, -1
    s_waitcnt lgkmcnt(0)
    s_barrier""")
    if st:
        a(f'    v_writelane_b32 v{STV}, s{POLLN}, 15')
    stamp(7)
    a(f"""
B_counts:
    ds_read_b32 v{T+1}, v{CNTA} offset:{L_BCNT}
    ds_read_b128 {vr(EE,4)}, v{EA}
    ds_read_b128 {vr(T+4,4)}, v{EA} offset:128
    ds_read_b32 v{M0R}, v{MAD}
    s_setprio 3
    s_waitcnt lgkmcnt(3)
    v_sub_u32 v{T+3}, v{T+1}, v{LBASE}
    v_cmp_ne_u32 {sp(X0)}, 0, v{T+1}
    v_cmp_lt_u32 vcc, {GSTRIDE}, v{T+3}
    v_readlane_b32 s{NT}, v{T+3}, s{WID}
    s_and_b32 s{X0}, s{X0}, 0x1ff0000
    s_and_b32 s{X0+1}, vcc_lo, 0xffff
    s_or_b32 s{TT}, s{X0+1}, s{X0}
    s_or_b32 s{TT}, s{TT}, s{MODE}
    s_cbranch_scc1 C_slowcnt
B_cntok:
    s_add_u32 s{NT}, s{NT}, 127
    s_lshr_b32 s{NT}, s{NT}, 7              ; tiles
    s_cbranch_scc0 B_loopdone
    {f's_mov_b32 s{NT}, ' + str(opt['bench']) if opt.get('bench') else ''}
    s_waitcnt lgkmcnt(0)""")
    dma(EE, 0)
    a(f"""
    s_cmp_lt_u32 s{NT}, 2
    s_cbranch_scc1 B_one""")
    dma(T+4, 1)
    a(f"""
B_one:
    ds_read_b128 {vr(EE,4)}, v{EA} offset:256
    v_and_b32 v{M0R}, 0x70, v{M0R}
    s_mov_b32 s{TT}, 1                      ; t+1""")
    stamp(8)
    a('B_loop:')
    pk = opt.get('pk', 0)
    th = opt.get('th', 642)
    th = (th // 100, th // 10 % 10, th % 10)
    def body(slot):
        so = slot * 4096
        mcur, mnext = (M0R, M1R) if slot == 0 else (M1R, M0R)
        eo = slot * 128
        if opt.get('prio', 1) and (slot == 0 or opt.get('prio') == 2):
            a(f'''
    s_sub_u32 s{X0}, s{NT}, s{TT}
    s_cmp_ge_u32 s{X0}, {th[0]}
    s_cbranch_scc1 B_p{slot}
    s_setprio 2
    s_cmp_ge_u32 s{X0}, {th[1]}
    s_cbranch_scc1 B_p{slot}
    s_setprio 1
    s_cmp_ge_u32 s{X0}, {th[2]}
    s_cbranch_scc1 B_p{slot}
    s_setprio 0
B_p{slot}:''')
        a(f'''
    ds_read_b32 v{MA}, v{mcur} offset:{L_LUT}
    ds_read_b32 v{mnext}, v{MAD} offset:{eo+128}
    s_cmp_lt_u32 s{TT}, s{NT}
    s_cbranch_scc1 B_w4_{slot}
    s_waitcnt vmcnt(0)
B_w4_{slot}:
    s_waitcnt vmcnt(4)
    ds_read_b128 {vr(XA,4)}, v{RA0} offset:{so}
    ds_read_b128 {vr(XA+4,4)}, v{RA1} offset:{so}
    ds_read_b128 {vr(XA+8,4)}, v{RA0} offset:{so+2048}
    ds_read_b128 {vr(XA+12,4)}, v{RA1} offset:{so+2048}''')
        for fb in range(4):
            a(f'    ds_read_b64_tr_b16 {vr(XT+4*fb,2)}, v{RT+fb} offset:{so}')
            a(f'    ds_read_b64_tr_b16 {vr(XT+4*fb+2,2)}, v{RT+fb} offset:{so+2048}')
        a(f'''
    s_add_u32 s{TT}, s{TT}, 1               ; t+2
    s_waitcnt lgkmcnt(12)
    v_mfma_f32_16x16x32_bf16 {vr(S,4)}, {vr(MA,4)}, {vr(MB,4)}, 0
    v_and_b32 v{mnext}, 0x70, v{mnext}
    s_waitcnt lgkmcnt(11)
    v_mfma_f32_16x16x32_bf16 {vr(S,4)}, {vr(XA,4)}, {vr(QLO,4)}, {vr(S,4)}
    s_waitcnt lgkmcnt(10)
    v_mfma_f32_16x16x32_bf16 {vr(S,4)}, {vr(XA+4,4)}, {vr(QLO+4,4)}, {vr(S,4)}
    s_waitcnt lgkmcnt(9)
    v_mfma_f32_16x16x32_bf16 {vr(S,4)}, {vr(XA+8,4)}, {vr(QHI,4)}, {vr(S,4)}
    s_waitcnt lgkmcnt(8)
    v_mfma_f32_16x16x32_bf16 {vr(S,4)}, {vr(XA+12,4)}, {vr(QHI+4,4)}, {vr(S,4)}
    s_waitcnt lgkmcnt(0)
    s_cmp_lt_u32 s{TT}, s{NT}
    s_cbranch_scc0 B_skip_{slot}''')
        dma(EE, slot)
        a(f'''
    ds_read_b128 {vr(EE,4)}, v{EA} offset:{eo+384}
B_cont_{slot}:''')
        for r in range(4):
            a(f'    v_exp_f32 v{S+r}, v{S+r}')
        if slot == 1:
            a(f'    v_add_u32 v{EA}, 256, v{EA}')
            a(f'    v_add_u32 v{MAD}, 256, v{MAD}')
        if pk:
            a(f'    v_pk_add_f32 {vr(S,2)}, {vr(S,2)}, 1.0 op_sel_hi:[1,0]')
            a(f'    v_pk_add_f32 {vr(S+2,2)}, {vr(S+2,2)}, 1.0 op_sel_hi:[1,0]')
        else:
            for r in range(4):
                a(f'    v_add_f32 v{S+r}, 1.0, v{S+r}')
        for r in range(4):
            a(f'    v_rcp_f32 v{S+r}, v{S+r}')
        a(f'''
    v_cvt_pk_bf16_f32 v{PP}, v{S}, v{S+1}
    s_cmp_gt_u32 s{TT}, s{NT}
    v_cvt_pk_bf16_f32 v{PP+1}, v{S+2}, v{S+3}
    s_nop 0
    v_mov_b32_dpp v{PP+2}, v{PP} row_ror:8 row_mask:0xf bank_mask:0xf
    v_mov_b32_dpp v{PP+3}, v{PP+1} row_ror:8 row_mask:0xf bank_mask:0xf
    s_nop 1''')
        for fb in range(4):
            a(f'    v_mfma_f32_16x16x32_bf16 {vr(ACC+4*fb,4)}, {vr(XT+4*fb,4)}, {vr(PP,4)}, {vr(ACC+4*fb,4)}')
        a('    s_cbranch_scc1 B_loopdone' if slot == 0 else '    s_cbranch_scc0 B_loop')
    n0 = len(a.lines)
    body(0)
    body(1)
    drop = []
    if opt.get('bench'): drop += [f'v_add_u32 v{EA}, 256', f'v_add_u32 v{MAD}, 256']
    a.lines[n0:] = [l for l in a.lines[n0:] if not any(l.strip().startswith(d) for d in drop)]
    a(f'''
B_loopdone:
    s_cmp_lg_u32 s{MODE}, 0
    s_cbranch_scc1 C_next
B_epi:''')
    stamp(9)
    a(f'''
    v_xor_b32 v{T+1}, 8, v{WVA}
    v_xor_b32 v{T+2}, 16, v{WVA}
    v_xor_b32 v{T+3}, 24, v{WVA}''')
    for blk in range(4):
        ad = WVA if blk == 0 else T+blk
        for ks in range(2):
            for h in range(2):
                a(f'    ds_read_b64_tr_b16 {vr(XA+blk*8+ks*4+h*2,2)}, v{ad} offset:{L_WV+(32*ks+16*h)*128}')
        if blk == 2:
            a('    s_waitcnt lgkmcnt(8)')
    for r in range(8):
        a(f'    v_cvt_pk_bf16_f32 v{S+r}, v{ACC+2*r}, v{ACC+2*r+1}')
    epi = opt.get('epi', 1)
    if epi:
        a(f'''
    v_and_b32 v{T+4}, 7, v{LANE}
    v_lshrrev_b32 v{T+5}, 3, v{LANE}
    v_and_b32 v{T+5}, 6, v{T+5}             ; 2g
    v_xor_b32 v{T+5}, v{T+5}, v{T+4}
    v_lshlrev_b32 v{T+5}, 4, v{T+5}
    v_lshl_add_u32 v{T+4}, v{T+4}, 7, v{T+5}
    v_add_u32 v{T+4}, s{RING}, v{T+4}
    v_xor_b32 v{T+6}, 16, v{T+4}
    v_lshl_add_u32 v{T+5}, v{LANE}, 4, s{RING}''')
    else:
        a(f'''
    v_and_b32 v{T+4}, 7, v{LANE}
    v_lshlrev_b32 v{T+4}, 19, v{T+4}
    v_lshrrev_b32 v{T+5}, 4, v{LANE}
    v_lshl_add_u32 v{T+4}, v{T+5}, 5, v{T+4}
    s_lshl_b32 s{X0}, s{WID}, 15
    s_lshl_b32 s{X0+1}, s2, 7
    s_add_u32 s{PFT}, s{X0}, s{X0+1}''')
    for blk in range(4):
        a(f'    s_waitcnt lgkmcnt({min(8, 12-4*blk)})')
        a(f'    v_mfma_f32_16x16x32_bf16 {vr(QLO+4*blk,4)}, {vr(XA+blk*8,4)}, {vr(S,4)}, 0')
        a(f'    v_mfma_f32_16x16x32_bf16 {vr(QLO+4*blk,4)}, {vr(XA+blk*8+4,4)}, {vr(S+4,4)}, {vr(QLO+4*blk,4)}')
    a(f'''
    s_cmp_lg_u32 s{WID}, 15
    s_cbranch_scc1 K_no2
    s_mov_b64 exec, 1
    s_cmp_lg_u32 s{GAVE}, 0
    s_cbranch_scc1 K_ticket
K_adv:
    v_mov_b32 v{T}, s{EPOCH}
    global_store_dword v{ZERO}, v{T}, s[18:19]
K_skip:
    s_mov_b64 exec, -1
K_no2:
    s_nop 2''')
    for r in range(4):
        a(f'    v_cvt_pk_bf16_f32 v{XA+r}, v{QLO+2*r}, v{QLO+2*r+1}')
    a(f'    s_mov_b64 exec, {sp(LOM)}')
    if epi:
        a(f'    ds_write_b128 v{T+4}, {vr(XA,4)}')
    else:
        a(f'    buffer_store_dwordx4 {vr(XA,4)}, v{T+4}, {sq(SOUT)}, s{PFT} offen{of}')
    for r in range(4, 8):
        a(f'    v_cvt_pk_bf16_f32 v{XA+r}, v{QLO+2*r}, v{QLO+2*r+1}')
    if epi:
        a(f'''
    ds_write_b128 v{T+6}, {vr(XA+4,4)}
    s_mov_b64 exec, -1
    s_waitcnt lgkmcnt(0)
    ds_read_b128 {vr(XA+8,4)}, v{T+5}
    s_waitcnt lgkmcnt(0)
    buffer_store_dwordx4 {vr(XA+8,4)}, v{ROWOFF}, {sq(SOUT)}, 0 offen{of}''')
    else:
        a(f'''
    buffer_store_dwordx4 {vr(XA+4,4)}, v{T+4}, {sq(SOUT)}, s{PFT} offen offset:16{of}
    s_mov_b64 exec, -1''')
    if st:
        stamp(10)
        a('    s_waitcnt vmcnt(0)')
        stamp(11)
        a(f'''
    s_add_u32 s{X0}, s18, {STAMP_OFF}
    s_addc_u32 s{X0+1}, s19, 0
    s_lshl_b32 s{X0+2}, s2, 4
    s_add_u32 s{X0+2}, s{X0+2}, s{WID}
    s_lshl_b32 s{X0+2}, s{X0+2}, 6
    v_lshl_add_u32 v{T}, v{LANE}, 2, s{X0+2}
    s_mov_b64 exec, 0xffff
    global_store_dword v{T}, v{STV}, {sp(X0)}''')
        if 'amp' in opt:
            a(f'''
    v_readlane_b32 s60, v{STV}, 0
    v_readlane_b32 s61, v{STV}, {opt['amp']}
    v_readlane_b32 s62, v{STV}, 11
    s_sub_u32 s61, s61, s60
    s_mul_i32 s61, s61, {opt.get('ampk', 2)}
    s_min_u32 s61, s61, 20000
D_spin:
    s_memrealtime s[98:99]
    s_waitcnt lgkmcnt(0)
    s_sub_u32 s98, s98, s62
    s_cmp_lt_u32 s98, s61
    s_cbranch_scc1 D_spin''')
    a(f'''
L_end:
    s_endpgm
B_skip_0:
    s_nop 7
    s_branch B_cont_0
B_skip_1:
    s_nop 7
    s_branch B_cont_1
K_ticket:
    v_mov_b32 v{T+1}, 1
    global_atomic_add v{ATK}, v{ZERO}, v{T+1}, s[16:17] sc0 sc1
    s_waitcnt vmcnt(0)
    v_readfirstlane_b32 s{X0}, v{ATK}
    s_cmp_eq_u32 s{X0}, {NWG-1}
    s_cbranch_scc1 K_adv
    s_branch K_skip
''')
    def drop_lines():
        for r in range(4):
            a(f'    v_mov_b32 v{EN+r}, {EMPTY}')
        a(f'''
    v_lshrrev_b32 v{T}, 2, v0
    v_lshrrev_b32 v{T+1}, 5, v{T}
    v_lshlrev_b32 v{T+1}, 2, v{T+1}
    v_lshlrev_b32 v{T}, v{T}, 1
    ds_or_b32 v{T+1}, v{T} offset:{L_RESC}''')
    a(f'''
A_full:
    s_wqm_b64 exec, {sp(S0)}
    v_mov_b32 v40, {FULLM}
    v_mov_b32 v41, {EMPTY}
    v_mov_b32 v42, {EMPTY}
    v_mov_b32 v43, {EMPTY}
    s_mov_b64 exec, -1
    s_branch A_pub''')
    for tag in rare:
        a(f'''
Z_give{tag}:
    ds_write_b32 v{ZERO}, v{FOUR} offset:{L_GAVE}''')
        drop_lines()
        a(f'''
    s_mov_b64 {sp(S0)}, 0
    s_mov_b32 s{POLLN}, 0
    s_branch Z_nr{tag}
Z_full{tag}:
    s_mov_b64 exec, vcc''')
        drop_lines()
        a(f'    s_branch Z_rank{tag}')
    a('Y_lost:')
    for r in range(4, 8):
        a(f'    v_mov_b32 v{EN+r}, {EMPTY}')
    a(f'''
    s_mov_b64 {sp(S1)}, 0
    s_branch Y_nr
C_slowcnt:
    s_cmp_lg_u32 s{MODE}, 0
    s_cbranch_scc1 C_careful''')
    for k in range(8):
        a(f'    v_readlane_b32 s{RESC+k}, v{T+1}, {16+k}')
    a(f'''
    v_readlane_b32 s{GAVE}, v{T+1}, 25
    s_mov_b32 s{MODE}, 2
    s_cmp_lg_u32 s{X0+1}, 0
    s_cbranch_scc1 C_next
    s_mov_b32 s{MODE}, 1
    s_branch B_cntok
C_careful:
    s_min_u32 s{NT}, s{NT}, {GSTRIDE}
    s_bitcmp1_b32 s{X0}, 24
    s_cselect_b32 s{MODE}, 2, 1
    s_branch B_cntok
C_next:
    s_setprio 0
    s_waitcnt vmcnt(0) lgkmcnt(0)
    s_barrier
    s_cmp_eq_u32 s{MODE}, 2
    s_cbranch_scc1 C_round
    s_mov_b32 s{X0}, -1''')
    for k in range(7, -1, -1):
        a(f'''
    s_ff1_i32_b32 s{X0+1}, s{RESC+k}
    s_add_u32 s{X0+1}, s{X0+1}, {32*k}
    s_cmp_lg_u32 s{RESC+k}, 0
    s_cselect_b32 s{X0}, s{X0+1}, s{X0}''')
    a(f'''
    s_cmp_eq_u32 s{X0}, -1
    s_cbranch_scc1 B_epi
    s_lshr_b32 s{X0+1}, s{X0}, 5
    s_lshl_b32 s{X0+2}, 1, s{X0}''')
    for k in range(8):
        a(f'''
    s_andn2_b32 s{X0+3}, s{RESC+k}, s{X0+2}
    s_cmp_eq_u32 s{X0+1}, {k}
    s_cselect_b32 s{RESC+k}, s{X0+3}, s{RESC+k}''')
    a(f'''
    s_and_b32 s{X0+2}, s{X0}, 31
    s_lshl_b32 s{X0+2}, s{X0+2}, 3
    s_or_b32 s{X0}, s{X0+2}, s{X0+1}
    s_mul_i32 s{X0}, s{X0}, {CH*4}''')
    for k in range(4):
        a(f'''
    buffer_load_dword v{ED+k}, v{T4}, {sq(SDST)}, s{X0} offen
    buffer_load_dword v{ES+k}, v{T4}, {sq(SSRC)}, s{X0} offen
    s_add_u32 s{X0}, s{X0}, 4096''')
    for r in range(4, 8):
        a(f'    v_mov_b32 v{EN+r}, {EMPTY}')
    a(f'    v_mov_b32 v{T+1}, {EMPTY}')
    a('    s_waitcnt vmcnt(0)')
    for k in range(4):
        a(f'''
    v_and_b32 v{T}, 255, v{ED+k}
    v_cmp_eq_u32 vcc, s2, v{T}
    v_lshrrev_b32 v{ED+k}, 8, v{ED+k}
    v_lshl_or_b32 v{ES+k}, v{ES+k}, 7, v{ED+k}''')
        if k == 3:
            a(f'    s_and_b64 vcc, vcc, {sp(M3)}')
        a(f'    v_cndmask_b32 v{EN+k}, v{T+1}, v{ES+k}, vcc')
    a(f'''
C_round:
    v_mov_b32 v{T+4}, {EMPTY}
    v_mov_b32 v{T+5}, {EMPTY}
    v_mov_b32 v{T+6}, {EMPTY}
    v_mov_b32 v{T+7}, {EMPTY}
    ds_write_b128 v{T16}, {vr(T+4,4)} offset:{L_LIST}
    s_cmp_ge_u32 s{WID}, 6
    s_cbranch_scc1 C_i1
    ds_write_b128 v{T16}, {vr(T+4,4)} offset:{L_LIST+16384}
C_i1:
    s_cmp_lg_u32 s{WID}, 12
    s_cbranch_scc1 C_i2
    s_mov_b64 exec, 0xffff
    ds_write_b32 v{CNTA}, v{LBASE} offset:{L_BCNT}
    ds_write_b32 v{ZERO}, v{ZERO} offset:{L_PEND}
    s_mov_b64 exec, -1
C_i2:
    s_waitcnt lgkmcnt(0)
    s_barrier
    s_mov_b32 s{X0+4}, {GSTRIDE//4}
    s_mov_b32 s{X0+5}, {L_LIST+GSTRIDE}''')
    for r in range(8):
        brank(r, '-1')
        a(f'''
    v_mul_u32_u24 v{T+3}, s{X0+4}, v{G4+r}
    v_add_u32 v{T+3}, s{X0+5}, v{T+3}
    s_mov_b64 exec, {sp(VM+2*r)}
    s_waitcnt lgkmcnt(0)
    v_cmp_lt_u32 vcc, v{RK+r}, v{T+3}
    s_and_saveexec_b64 {sp(X0+6)}, vcc
    ds_write_b32 v{RK+r}, v{EN+r}
    v_mov_b32 v{EN+r}, {EMPTY}
    s_andn2_b64 exec, {sp(X0+6)}, exec
    ds_write_b32 v{ZERO}, v{FOUR} offset:{L_PEND}
    s_mov_b64 exec, -1''')
    a(f'''
    v_mov_b32 v{EA}, v{EA0}
    v_mov_b32 v{MAD}, v{MAD0}
    s_waitcnt lgkmcnt(0)
    s_barrier
L_last:
    s_branch B_counts''')
    if opt.get('red'):
        gen_red(a, opt)
    def kd(name, vg, sg):
        a(f'''
.p2align 6
.amdhsa_kernel {name}
  .amdhsa_next_free_vgpr {vg}
  .amdhsa_next_free_sgpr {sg}
  .amdhsa_accum_offset {vg}
  .amdhsa_group_segment_fixed_size 0
  .amdhsa_kernarg_size 64
  .amdhsa_user_sgpr_count 2
  .amdhsa_user_sgpr_kernarg_segment_ptr 1
  .amdhsa_system_sgpr_workgroup_id_x 1
.end_amdhsa_kernel''')
    a('.section .rodata,"a"')
    kd(KNAME, 128, 102)
    if opt.get('red'):
        kd('red_kernel', 32, 48)
    return a.text()

if __name__ == '__main__':
    out = sys.argv[1]
    opt = {}
    for kv in sys.argv[2:]:
        k, v = kv.split('=')
        try:
            v = int(v)
        except ValueError:
            v = '' if v == 'none' else ' ' + v.replace('+', ' ')
        opt[k] = v
    open(out, 'w').write(build(opt))
```

```python
import sys, struct
from gen3 import gen_red

N, E, D = 25000, 800000, 64
NWG = 256
CH = E // NWG
HSTRIDE = 16384 + 128
SEG_OFF = 4096
H1_OFF = 256 * HSTRIDE
WS_USED = SEG_OFF + 3 * H1_OFF
X_BYTES = N * 128
EMPTY = 0x003FFFFF
FULLM = 0x003FFFFE
KNAME = 'standalone__kernel_systems_refs_featgraph__graph_kernel'

L_ACNT = 0
L_BCNT = 1024
L_RESC = 1088
L_PEND = 1120
L_GAVE = 1124
L_DONE = 1128
L_LUT = 1152
L_WV = 2048
L_LIST = 10240
GSTRIDE = 1408
L_RING = 32768
L_XN = 65536
L_WQ = 98304
ISTRIDE = 144
L_IMG = 163840 - 256 * ISTRIDE
LDS = 163840
STAMP_OFF = 0x1000000

def f32bits(x):
    return struct.unpack('<I', struct.pack('<f', x))[0]

class Asm:
    def __init__(self):
        self.lines = []
    def __call__(self, s):
        for ln in s.strip('\n').split('\n'):
            if ln.strip():
                self.lines.append(ln)
    def text(self):
        return '\n'.join(self.lines) + '\n'

def vr(lo, n):
    return f'v[{lo}:{lo+n-1}]'
def sp(lo):
    return f's[{lo}:{lo+1}]'
def sq(lo):
    return f's[{lo}:{lo+3}]'

def srd(a, d, lo, nbytes):
    a(f'    s_mov_b32 s{d}, s{lo}')
    a(f'    s_mov_b32 s{d+1}, s{lo+1}')
    a(f'    s_mov_b32 s{d+2}, {nbytes}')
    a(f'    s_mov_b32 s{d+3}, 0x00020000')

LANE, T4, T16, FOUR, ZERO, ROWOFF, WVA = 1, 2, 3, 4, 5, 6, 7
QLO, QHI, ACC, XA, XT, S, PP, MA, MB, EE = 8, 16, 24, 40, 56, 72, 76, 80, 84, 88
M0R, M1R, RA0, RA1, RT, EA, MAD, CHK, EA0 = 92, 93, 94, 95, 96, 100, 101, 102, 103
T = 104
EN = 112
MAD0, PFD, ATK, STV, CNTA, EPV, LBASE = 120, 121, 122, 123, 124, 125, 126
ED, ES, B4, PS = 40, 44, 48, 52
WD, XN = 56, 60
IMGR, STO, WSA = 68, 69, 70
G4, RK = 40, 48

GAVE = 3
SX, SSRC, SDST, SW, EPOCH, ISSUED, SOUT, SWS = 20, 24, 28, 32, 34, 35, 36, 40
WID, SEGB, AMASK, RING, NT, TT = 44, 45, 46, 47, 48, 49
TAG = 50
SEMPTY, MODE, LOM, M3 = 54, 55, 56, 58
RESC = 60
FR, N1 = 60, 62
VM = 68
X0 = 84
H1SO, KFULL, S0, S1, K88, KTHR, PFT, POLLN, PRIME = 86, 87, 88, 90, 92, 94, 95, 96, 97
NTI, RET = 32, 33
OWNP, LINK = 97, 10

def build(opt):
    a = Asm()
    st = opt.get('stamps')
    def stamp(k):
        if st:
            ck = {0: 14, 7: 12, 9: 13}.get(k)
            if ck:
                a('    s_memtime s[100:101]')
            a('    s_memrealtime s[98:99]')
            a('    s_waitcnt lgkmcnt(0)')
            a(f'    v_writelane_b32 v{STV}, s98, {k}')
            if ck:
                a(f'    v_writelane_b32 v{STV}, s100, {ck}')
    launch = (f'; @launch kernel={KNAME} grid=({NWG},1,1) block=(1024,1,1) lds={LDS}' if opt.get('list') else
              f'; @launch grid=({NWG},1,1) block=(1024,1,1) lds={LDS}')
    if opt.get('red'):
        launch += '\n; @launch kernel=red_kernel grid=(1,1,1) block=(64,1,1) lds=0'
    sf = opt.get('st', ' sc1')
    lf = opt.get('ld', ' sc1')
    gf = opt.get('gather', '')
    of = opt.get('out', '')
    a(f'''; FeatGraph (SDDMM sigmoid gate + SpMM) in one launch, one workgroup per CU.
{launch}
.amdgcn_target "amdgcn-amd-amdhsa--gfx950"
.text
.globl {KNAME}
.p2align 8
.type {KNAME},@function
{KNAME}:
    s_cmp_ge_u32 s2, {NWG}
    s_cbranch_scc1 L_end''')
    if st:
        a(f'    v_mov_b32 v{STV}, 0')
        a(f'    v_mov_b32 v{ATK}, 0')
    stamp(0)
    a('    s_load_dwordx16 s[4:19], s[0:1], 0')
    if opt.get('cpf'):
        a(f'''
    s_getpc_b64 {sp(S0)}
I_pc:
    v_lshlrev_b32 v127, 7, v0
    v_cmp_gt_u32 vcc, A_full-I_pc, v127
    s_and_saveexec_b64 {sp(S1)}, vcc
    s_cbranch_execz I_c
    global_load_dword v127, v127, {sp(S0)}
I_c:
    s_mov_b64 exec, -1''')
    a(f'''
    s_mul_i32 s{X0}, s2, {CH*4}
    v_lshlrev_b32 v{T4}, 2, v0
    v_lshrrev_b32 v{T+4}, 6, v0
    v_add_u32 v{T}, s{X0}, v{T4}
    v_readfirstlane_b32 s{WID}, v{T+4}
    v_add_u32 v{T+1}, 4096, v{T}
    v_add_u32 v{T+2}, 8192, v{T}
    v_add_u32 v{T+3}, 12288, v{T}
    v_cmp_gt_u32 {sp(M3)}, {CH-3072}, v0
    v_lshlrev_b32 v{T16}, 4, v0
    v_mov_b32 v{ZERO}, 0
    v_mov_b32 v{T+4}, {EMPTY}
    v_mov_b32 v{T+5}, {EMPTY}
    v_mov_b32 v{T+6}, {EMPTY}
    v_mov_b32 v{T+7}, {EMPTY}
    s_waitcnt lgkmcnt(0)
    {f'global_load_dword v{EPV}, v{ZERO}, s[18:19]      ; epoch word' if opt.get('epf') else ''}
    s_mov_b64 exec, {sp(M3)}
    s_cbranch_execz A_no3a
    global_load_dword v{ED+3}, v{T+3}, s[8:9]
    global_load_dword v{ES+3}, v{T+3}, s[6:7]
A_no3a:
    s_mov_b64 exec, -1''')
    for k in range(3):
        a(f'    global_load_dword v{ED+k}, v{T+k}, s[8:9]')
    for k in range(3):
        a(f'    global_load_dword v{ES+k}, v{T+k}, s[6:7]')
    a(f'''
    v_add_u32 v{T}, {L_IMG}, v{T16}
    ds_write_b128 v{T}, {vr(T+4,4)}
    ds_write_b128 v{T}, {vr(T+4,4)} offset:16384
    s_cmp_ge_u32 s{WID}, 4
    s_cbranch_scc1 I_a
    ds_write_b128 v{T}, {vr(T+4,4)} offset:32768
    ds_write_b32 v{T4}, v{ZERO} offset:{L_ACNT}
I_a:
    {f'global_load_dword v{EPV}, v{ZERO}, s[18:19]      ; epoch word' if not opt.get('epf') else ''}
    v_and_b32 v{LANE}, 63, v0
    v_mov_b32 v{FOUR}, 4''')
    srd(a, SX, 4, X_BYTES)
    a(f'''
    s_cmp_lt_u32 s{WID}, 8
    s_cselect_b32 s{SW}, s10, s12
    s_cselect_b32 s{SW+1}, s11, s13
    v_and_b32 v{T+3}, 0x1ff0, v{T16}
    v_lshrrev_b32 v{T}, 3, v{LANE}
    v_and_b32 v{T+1}, 7, v{LANE}
    v_xor_b32 v{T+1}, v{T+1}, v{T}
    v_lshlrev_b32 v{T+1}, 4, v{T+1}
    v_lshlrev_b32 v{T}, 19, v{T}
    s_lshl_b32 s{X0}, s{WID}, 15
    s_lshl_b32 s{X0+1}, s2, 7
    s_add_u32 s{X0}, s{X0}, s{X0+1}
    v_add3_u32 v{ROWOFF}, v{T}, v{T+1}, s{X0}
    s_lshl_b32 s{X0}, s{WID}, 10
    s_add_u32 m0, s{X0}, {L_XN}
    s_waitcnt lgkmcnt(0)
    s_barrier
    global_load_dwordx4 {vr(WD,4)}, v{T+3}, {sp(SW)}
    buffer_load_dwordx4 v{ROWOFF}, {sq(SX)}, 0 offen lds''')
    pfpos = [0]
    def prefetch(n):
        lo, hi = pfpos[0], pfpos[0] + n
        pfpos[0] = hi
        m = ((1 << hi) - 1) ^ ((1 << lo) - 1)
        a(f'''
    s_lshr_b32 s{PFT}, s2, 3
    s_lshl_b32 s{PFT}, s{PFT}, 4
    s_add_u32 s{PFT}, s{PFT}, s{WID}
    s_mul_i32 s{PFT}, s{PFT}, {49*128}
    v_lshlrev_b32 v{T}, 7, v{LANE}
    s_mov_b32 exec_lo, 0x{m & 0xffffffff:x}
    s_mov_b32 exec_hi, 0x{m >> 32:x}
    buffer_load_dword v{PFD}, v{T}, {sq(SX)}, s{PFT} offen
    s_mov_b64 exec, -1''')
    p = 0
    srd(a, SWS, 18, WS_USED)
    if opt.get('tlb'):
        a(f'''
    s_mul_i32 s{PFT}, s{WID}, 9
    v_add_u32 v{T}, s{PFT}, v{LANE}
    v_lshlrev_b32 v{T}, 16, v{T}
    s_mov_b64 exec, 0x1ff
    buffer_load_dword v{ATK}, v{T}, {sq(SWS)}, 0 offen
    s_mov_b64 exec, -1''')
        p += 1
    if opt.get('pf1'):
        prefetch(opt['pf1'])
        p += 1
    y = (2 if opt.get('epf') else 3) + p
    wdec = 1
    stamp(1)
    a(f'''
    ds_write_b128 v{T16}, {vr(T+4,4)} offset:{L_LIST}
    s_cmp_ge_u32 s{WID}, 6
    s_cbranch_scc1 I_b
    ds_write_b128 v{T16}, {vr(T+4,4)} offset:{L_LIST+16384}
I_b:
    v_and_b32 v{LBASE}, 15, v{LANE}
    v_mul_u32_u24 v{LBASE}, {GSTRIDE}, v{LBASE}
    v_add_u32 v{LBASE}, {L_LIST}, v{LBASE}
    v_and_b32 v{CNTA}, 0x7c, v{T4}
    s_cmp_lg_u32 s{WID}, 12
    s_cbranch_scc1 I_done
    v_cmp_gt_u32 vcc, 16, v{LANE}
    s_mov_b32 exec_hi, 0
    s_nop 0
    v_cndmask_b32 v{T+2}, 0, v{LBASE}, vcc
    ds_write_b32 v{CNTA}, v{T+2} offset:{L_BCNT}
    s_mov_b64 exec, 0xff
    v_cvt_f32_u32 v{T+2}, v{LANE}
    v_mul_f32 v{T+3}, v{T+2}, v{T+2}
    v_cvt_pk_bf16_f32 v{T+2}, v{T+3}, v{T+2}
    v_lshlrev_b32 v{T+3}, 4, v{LANE}
    ds_write_b32 v{T+3}, v{T+2} offset:{L_LUT}
    s_mov_b64 exec, -1
I_done:''')
    a(f'''
    s_lshr_b32 s{PRIME}, s2, 3
    s_and_b32 s{X0}, s2, 7
    s_lshl_b32 s{X0}, s{X0}, 5
    s_or_b32 s{PRIME}, s{PRIME}, s{X0}
    s_lshl_b32 s{X0}, s{PRIME}, 6
    s_add_u32 s{X0}, s{X0}, {SEG_OFF}
    s_add_u32 s{X0+1}, s{X0}, {H1_OFF}
    {f's_lshl_b32 s{X0+1}, s{PRIME}, 7' if opt.get('h1f') else ''}
    {f's_add_u32 s{X0+1}, s{X0+1}, {SEG_OFF+H1_OFF}' if opt.get('h1f') else ''}
    s_mul_i32 s{SEGB}, s2, {HSTRIDE}
    s_add_u32 s{SEGB}, s{SEGB}, {SEG_OFF}
    s_mov_b32 s{SEMPTY}, {EMPTY}
    s_mov_b32 s{KTHR}, {L_IMG}
    s_mov_b32 s{K88}, 0x88888888
    s_mov_b32 s{K88+1}, 0x88888888
    v_lshrrev_b32 v{T}, 2, v0
    v_and_b32 v{T+1}, 3, v0
    v_mul_u32_u24 v{IMGR}, {ISTRIDE}, v{T}
    v_lshl_add_u32 v{IMGR}, v{T+1}, 2, v{IMGR}
    v_add_u32 v{IMGR}, {L_IMG}, v{IMGR}
    v_mul_u32_u24 v{STO}, {HSTRIDE}, v{T}
    v_lshl_add_u32 v{STO}, v{T+1}, 4, v{STO}
    v_bfe_u32 v{T}, v0, 3, 6
    v_and_b32 v{T+1}, 7, v0
    v_bfe_u32 v{T+2}, v{T}, 1, 1
    v_and_or_b32 v{T+2}, v{T}, 8, v{T+2}
    v_bfe_u32 v{T+3}, v{T}, 1, 2
    s_cmp_lt_u32 s{WID}, 8
    s_cselect_b64 {sp(S0)}, -1, 0
    s_mov_b32 s{S1}, {L_WV}
    s_cselect_b32 s{S1}, {L_WQ}, s{S1}
    v_cndmask_b32 v{T+2}, v{T+3}, v{T+2}, {sp(S0)}
    v_lshlrev_b32 v{T+1}, 1, v{T+1}
    v_xor_b32 v{T+1}, v{T+1}, v{T+2}
    v_lshlrev_b32 v{T+1}, 3, v{T+1}
    v_lshl_add_u32 v{T+1}, v{T}, 7, v{T+1}
    v_add_u32 v{WSA}, s{S1}, v{T+1}
    v_xor_b32 v{WSA+1}, 8, v{WSA}
    v_bfrev_b32 v{T+4}, -2''')
    def arank(k):
        a(f'''
    v_lshlrev_b32_sdwa v{B4+k}, 2, v{ED+k} dst_sel:DWORD dst_unused:UNUSED_PAD src0_sel:DWORD src1_sel:BYTE_0
    ds_add_rtn_u32 v{PS+k}, v{B4+k}, v{FOUR} offset:{L_ACNT}''')
    def aentry(k):
        a(f'''
    v_lshrrev_b32 v{ED+k}, 8, v{ED+k}
    v_lshl_or_b32 v{ES+k}, v{ES+k}, 7, v{ED+k}
    v_mad_u32_u24 v{B4+k}, v{B4+k}, {ISTRIDE//4}, s{KTHR}''')
    def aput(k):
        a(f'''
    v_min_u32 v{PS+k}, {ISTRIDE-4}, v{PS+k}
    v_add_u32 v{PS+k}, v{PS+k}, v{B4+k}
    ds_write_b32 v{PS+k}, v{ES+k}''')
    a(f'    s_waitcnt vmcnt({y+3})')
    stamp(2)
    for k in range(3):
        arank(k)
    a(f'    s_waitcnt vmcnt({y})')
    for k in range(3):
        aentry(k)
    for k in range(3):
        a('    s_waitcnt lgkmcnt(2)')
        aput(k)
    a(f'''
    s_mov_b64 exec, {sp(M3)}
    s_cbranch_execz A_no3b''')
    arank(3)
    aentry(3)
    a('    s_waitcnt lgkmcnt(0)')
    aput(3)
    a(f'''
A_no3b:
    s_mov_b64 exec, -1
    s_waitcnt vmcnt({p + (2 if wdec else 1)})
    v_readfirstlane_b32 s{EPOCH}, v{EPV}
    {f'ds_write_b64 v{WSA}, {vr(WD,2)}' if not wdec else ''}
    {f'ds_write_b64 v{WSA+1}, {vr(WD+2,2)}' if not wdec else ''}
    s_add_u32 s{EPOCH}, s{EPOCH}, 1
    s_lshl_b32 s{TAG}, s{EPOCH}, 22
    s_lshl_b32 s{TAG+1}, s{EPOCH}, 12
    s_and_b32 s{TAG+1}, s{TAG+1}, 0xffc00000
    s_lshl_b32 s{TAG+2}, s{EPOCH}, 2
    s_and_b32 s{TAG+2}, s{TAG+2}, 0xffc00000
    s_xor_b32 s{TAG+3}, s{TAG}, 0xffc00000
    s_waitcnt lgkmcnt(0)
    s_barrier''')
    stamp(3)
    a(f'''
    ds_read2_b32 {vr(46,2)}, v{IMGR} offset0:24 offset1:28
    ds_read2_b32 {vr(40,2)}, v{IMGR} offset0:0 offset1:4
    ds_read2_b32 {vr(42,2)}, v{IMGR} offset0:8 offset1:12
    ds_read2_b32 {vr(44,2)}, v{IMGR} offset0:16 offset1:20
    s_waitcnt lgkmcnt(3)
    v_cmp_ne_u32 vcc, s{SEMPTY}, v47
    s_and_b64 {sp(S0)}, vcc, {sp(K88)}
    s_waitcnt lgkmcnt(1)
    s_cbranch_scc1 A_full
A_pub:
    v_cmp_ne_u32 vcc, s{SEMPTY}, v43''')
    for r in range(4):
        a(f'    v_or_b32 v{40+r}, s{TAG+r}, v{40+r}')
    a(f'''
    buffer_store_dwordx4 {vr(40,4)}, v{STO}, {sq(SWS)}, s{X0} offen{sf}
    s_and_b64 {sp(S0)}, vcc, {sp(K88)}
    s_wqm_b64 vcc, {sp(S0)}
    s_waitcnt lgkmcnt(0)''')
    for r in range(4):
        a(f'    v_or_b32 v{44+r}, s{TAG+r}, v{44+r}')
    a(f'''
''')
    h1f = opt.get('h1f', 0)
    if h1f:
        a(f'''
    v_and_b32 v{T+5}, 0x30, v{T16}
    v_lshlrev_b32 v{STO}, 1, v{STO}
    v_sub_u32 v{STO}, v{STO}, v{T+5}''')
    a(f'''
    v_cndmask_b32 v{STO}, v{T+4}, v{STO}, vcc
    buffer_store_dwordx4 {vr(44,4)}, v{STO}, {sq(SWS)}, s{X0+1} offen{sf}''')
    if h1f == 2:
        a(f'    buffer_store_dwordx4 {vr(44,4)}, v{STO}, {sq(SWS)}, s{X0+1} offen offset:64{sf}')
        p += 1
    H1V = T16
    if h1f:
        H1V = PFD
        a(f'''
    v_lshlrev_b32 v{PFD}, 1, v{T16}
    v_sub_u32 v{PFD}, v{PFD}, v{T+5}''')
    if opt.get('pfb'):
        prefetch(opt['pfb'])
        p += 1
    stamp(4)
    if wdec:
        a(f'''
    s_waitcnt vmcnt({p + 3})
    ds_write_b64 v{WSA}, {vr(WD,2)}
    ds_write_b64 v{WSA+1}, {vr(WD+2,2)}''')
    WQA, XNA = 88, 92
    a(f"""
    v_lshrrev_b32 v{T+5}, 4, v{LANE}        ; g
    v_bfe_u32 v{T+1}, v{LANE}, 2, 2
    v_lshl_add_u32 v{T+2}, v{T+5}, 3, v{T+1}
    v_bfe_u32 v{T+3}, v{T+2}, 1, 1
    v_and_or_b32 v{T+3}, v{T+2}, 8, v{T+3}
    v_and_b32 v{T+4}, 3, v{LANE}            ; c
    v_lshlrev_b32 v{T+6}, 1, v{T+4}
    v_xor_b32 v{T+3}, v{T+3}, v{T+6}
    v_lshlrev_b32 v{T+3}, 3, v{T+3}
    v_lshl_add_u32 v{T}, v{T+2}, 7, v{T+3}
    v_add_u32 v{WQA}, {L_WQ}, v{T}
    v_xor_b32 v{WQA+1}, 8, v{WQA}
    v_xor_b32 v{WQA+2}, 64, v{WQA}
    v_xor_b32 v{WQA+3}, 0x48, v{WQA}
    v_and_b32 v{T+7}, 7, v{LANE}
    v_xor_b32 v{T}, v{T+5}, v{T+7}
    v_lshlrev_b32 v{T}, 4, v{T}
    v_lshl_add_u32 v{T}, v{T+7}, 7, v{T}
    s_lshl_b32 s{X0}, s{WID}, 10
    s_add_u32 s{X0}, s{X0}, {L_XN}
    v_add_u32 v{XNA}, s{X0}, v{T}
    v_xor_b32 v{XNA+1}, 64, v{XNA}""")
    srd(a, SOUT, 14, X_BYTES)
    srd(a, SSRC, 6, E*4)
    srd(a, SDST, 8, E*4)
    a(f"""
    s_add_u32 s{H1SO}, s{SEGB}, {H1_OFF}
    {f's_mul_i32 s{H1SO}, s2, {2*HSTRIDE}' if h1f else ''}
    {f's_add_u32 s{H1SO}, s{H1SO}, {SEG_OFF+H1_OFF}' if h1f else ''}
    s_mov_b32 s{AMASK}, 0x003fff80
    s_lshl_b32 s{RING}, s{WID}, 13
    s_add_u32 s{RING}, s{RING}, {L_RING}
    s_mov_b32 s{MODE}, 0
    s_mov_b32 s{GAVE}, 0
    s_mov_b32 s{LOM}, 0x00ff00ff
    s_mov_b32 s{LOM+1}, 0x00ff00ff
    v_and_b32 v{T+1}, 15, v{LANE}           ; i
    v_lshrrev_b32 v{T}, 3, v{LANE}
    v_and_b32 v{T+6}, 6, v{T}
    v_xor_b32 v{T+6}, v{T+6}, v{T+7}
    v_lshlrev_b32 v{CHK}, 4, v{T+6}
    s_mul_i32 s{X0}, s{WID}, {GSTRIDE}
    s_add_u32 s{X0}, s{X0}, {L_LIST}
    v_lshl_add_u32 v{EA0}, v{T}, 4, s{X0}
    v_bfe_u32 v{T+6}, v{LANE}, 3, 2
    v_lshl_add_u32 v{T+6}, v{T+7}, 2, v{T+6}
    v_lshl_add_u32 v{MAD0}, v{T+6}, 2, s{X0}
    v_and_b32 v{T+6}, 6, v{T+1}
    v_xor_b32 v{T+6}, v{T+6}, v{T+5}
    v_lshlrev_b32 v{T+6}, 4, v{T+6}
    v_lshl_add_u32 v{T+6}, v{T+1}, 7, v{T+6}
    v_add_u32 v{RA0}, s{RING}, v{T+6}
    v_xor_b32 v{RA1}, 64, v{RA0}
    v_lshrrev_b32 v{T+6}, 2, v{LANE}        ; row = 4g+r
    v_and_b32 v{T+1}, 6, v{T+6}
    v_bfe_u32 v{T+5}, v{LANE}, 1, 1
    v_xor_b32 v{T+1}, v{T+1}, v{T+5}
    v_lshlrev_b32 v{T+1}, 4, v{T+1}
    v_lshl_add_u32 v{T+1}, v{T+6}, 7, v{T+1}
    v_and_b32 v{T+5}, 1, v{LANE}
    v_lshl_add_u32 v{T+1}, v{T+5}, 3, v{T+1}
    v_add_u32 v{RT}, s{RING}, v{T+1}
    v_xor_b32 v{RT+1}, 32, v{RT}
    v_xor_b32 v{RT+2}, 64, v{RT}
    v_xor_b32 v{RT+3}, 0x60, v{RT}
    v_bfe_u32 v{T+5}, v{T+6}, 1, 2
    v_lshl_or_b32 v{T+5}, v{T+4}, 2, v{T+5}
    v_lshlrev_b32 v{T+5}, 3, v{T+5}
    v_lshl_add_u32 v{WVA}, v{T+6}, 7, v{T+5}
    v_mov_b32 v{MA+1}, 0x00003f80
    v_mov_b32 v{MA+2}, 0
    v_mov_b32 v{MA+3}, 0
    v_mov_b32 v{MB}, 0
    v_mov_b32 v{MB+1}, 0
    v_mov_b32 v{MB+2}, 0
    v_mov_b32 v{MB+3}, 0
    v_cvt_f32_u32 v{T+5}, v{T+7}            ; j' = l&7
    v_mov_b32 v{T+6}, 0x71800000            ; BIG = 2^100
    v_mul_f32 v{T+7}, v{T+5}, v{T+6}
    v_mul_f32 v{T+5}, v{T+5}, v{T+7}
    v_mul_f32 v{T+7}, -2.0, v{T+7}
    s_mov_b32 exec_lo, 0xff0000ff
    s_mov_b32 exec_hi, 0
    v_cvt_pk_bf16_f32 v{MB}, v{T+6}, v{T+7}
    v_cvt_pk_bf16_f32 v{MB+1}, v{T+5}, 0
    s_mov_b64 exec, -1""")
    for r in range(16):
        a(f'    v_mov_b32 v{ACC+r}, 0')
    for r in range(8):
        a(f'    v_mov_b32 v{QLO+r}, 0')
    for r in range(4, 8):
        a(f'    v_mov_b32 v{EN+r}, {EMPTY}')
    a(f"""
    s_mov_b32 s{POLLN}, 0
    s_mov_b32 s{KTHR}, 0x400000
    s_mov_b32 s{KFULL}, {FULLM}
    s_mov_b64 {sp(S0)}, -1
    s_mov_b64 {sp(S1)}, 0
    s_mov_b32 s{X0}, 0x{f32bits(-1.4426950408889634/8):08x}
    s_mov_b32 s{X0+1}, s{X0}
    s_waitcnt vmcnt(0) lgkmcnt(0)
    s_barrier
    buffer_load_dwordx4 {vr(EN,4)}, v{T16}, {sq(SWS)}, s{SEGB} offen{lf}
    s_mov_b64 exec, {sp(LOM)}
    ds_read_b128 {vr(QLO,4)}, v{XNA}
    ds_read_b128 {vr(QLO+4,4)}, v{XNA+1}
    s_mov_b64 exec, -1""")
    dreg = [QHI, QHI+4, S, S+4]
    for blk in range(4):
        for ks in range(2):
            for h in range(2):
                a(f'    ds_read_b64_tr_b16 {vr(XA+blk*8+ks*4+h*2,2)}, v{WQA+blk} offset:{(32*ks+4*h)*128}')
        if blk == 2:
            a('    s_waitcnt lgkmcnt(8)')
    for blk in range(4):
        a(f'    s_waitcnt lgkmcnt({min(8, 12-4*blk) if blk else 12})')
        a(f'    v_mfma_f32_16x16x32_bf16 {vr(dreg[blk],4)}, {vr(XA+blk*8,4)}, {vr(QLO,4)}, 0')
        a(f'    v_mfma_f32_16x16x32_bf16 {vr(dreg[blk],4)}, {vr(XA+blk*8+4,4)}, {vr(QLO+4,4)}, {vr(dreg[blk],4)}')
    def qfinish():
        a('    s_nop 3')
        for blk in range(4):
            a(f'    v_pk_mul_f32 {vr(dreg[blk],2)}, {vr(dreg[blk],2)}, {sp(X0)}')
            a(f'    v_pk_mul_f32 {vr(dreg[blk]+2,2)}, {vr(dreg[blk]+2,2)}, {sp(X0)}')
        for blk in range(4):
            a(f'    v_cvt_pk_bf16_f32 v{QLO+2*blk}, v{dreg[blk]}, v{dreg[blk]+1}')
            a(f'    v_cvt_pk_bf16_f32 v{QLO+2*blk+1}, v{dreg[blk]+2}, v{dreg[blk]+3}')
        for r in range(8):
            a(f'    v_mov_b32_dpp v{QHI+r}, v{QLO+r} row_ror:8 row_mask:0xf bank_mask:0xf')
    qfinish()
    stamp(5)
    def check(h, dst):
        for r in range(4):
            a(f'    v_xor_b32 v{EN+4*h+r}, s{TAG+r}, v{EN+4*h+r}')
        a(f'''
    v_or3_b32 v{T}, v{EN+4*h}, v{EN+4*h+1}, v{EN+4*h+2}
    v_or_b32 v{T}, v{T}, v{EN+4*h+3}
    v_cmp_le_u32 {dst}, s{KTHR}, v{T}''')
    def brank(r, base, skip=None):
        m = VM + 2*r
        a(f'''
    v_cmp_ne_u32 {sp(m)}, s{SEMPTY}, v{EN+r}
    v_and_b32 v{G4+r}, 15, v{EN+r}
    v_lshlrev_b32 v{G4+r}, 2, v{G4+r}
    s_mov_b64 exec, {sp(m)}''')
        if skip:
            a(f'    s_cbranch_execz {skip}')
        a(f'''
    ds_add_rtn_u32 v{RK+r}, v{G4+r}, v{FOUR} offset:{L_BCNT}
    s_mov_b64 exec, {base}''')
    def bput(r):
        a(f'''
    s_mov_b64 exec, {sp(VM+2*r)}
    ds_write_b32 v{RK+r}, v{EN+r}''')
    rare = []
    def absorb0(tag):
        check(0, 'vcc')
        a(f'''
    s_wqm_b64 vcc, vcc
    s_andn2_b64 {sp(FR)}, {sp(S0)}, vcc
    s_mov_b64 {sp(S0)}, vcc
    s_mov_b64 exec, vcc
    s_cbranch_execz Z_nr{tag}
    s_add_u32 s{POLLN}, s{POLLN}, 1
    s_cmp_gt_u32 s{POLLN}, {opt.get('pollmax', 2000)}
    s_cbranch_scc1 Z_give{tag}
    buffer_load_dwordx4 {vr(EN,4)}, v{T16}, {sq(SWS)}, s{SEGB} offen{lf}
Z_nr{tag}:
    s_mov_b64 exec, {sp(FR)}
    s_cbranch_execz Z_done{tag}
    v_cmp_ne_u32 {sp(N1)}, s{SEMPTY}, v{EN+3}
    v_cmp_eq_u32 vcc, s{KFULL}, v{EN}
    s_and_b64 {sp(N1)}, {sp(N1)}, {sp(K88)}
    s_wqm_b64 exec, {sp(N1)}
    {'s_mov_b64 exec, 0' if opt.get('x_noh1') else ''}
    s_cbranch_execz Z_nh{tag}
    s_or_b64 {sp(S1)}, {sp(S1)}, exec
    buffer_load_dwordx4 {vr(EN+4,4)}, v{H1V}, {sq(SWS)}, s{H1SO} offen{lf}
Z_nh{tag}:
    s_cbranch_vccnz Z_full{tag}
Z_rank{tag}:
    s_mov_b64 exec, {sp(FR)}''')
        for r in range(4):
            brank(r, sp(FR))
        for r in range(4):
            a('    s_waitcnt lgkmcnt(3)')
            bput(r)
        a(f'Z_done{tag}:')
        rare.append(tag)
    def absorb1():
        check(1, 'vcc')
        a(f'''
    s_andn2_b64 {sp(FR)}, {sp(S1)}, vcc
    s_mov_b64 {sp(S1)}, vcc
    s_mov_b64 exec, vcc
    s_cbranch_execz Y_nr
    s_add_u32 s{POLLN}, s{POLLN}, 1
    s_cmp_gt_u32 s{POLLN}, 1000000
    s_cbranch_scc1 Y_lost
    buffer_load_dwordx4 {vr(EN+4,4)}, v{H1V}, {sq(SWS)}, s{H1SO} offen{lf}
Y_nr:
    s_mov_b64 exec, {sp(FR)}''')
        for r in range(4, 8):
            brank(r, sp(FR), 'Y_done')
            a('    s_waitcnt lgkmcnt(0)')
            bput(r)
            a(f'    s_mov_b64 exec, {sp(FR)}')
        a('Y_done:')
    def dma(ereg, slot):
        for q in range(4):
            if q == 0:
                a(f'    s_mov_b32 m0, s{RING}' if slot == 0 else f'    s_add_u32 m0, s{RING}, 4096')
            else:
                a('    s_add_u32 m0, m0, 1024')
            a(f'    v_and_or_b32 v{ereg+q}, v{ereg+q}, s{AMASK}, v{CHK}')
            a(f'    buffer_load_dwordx4 v{ereg+q}, {sq(SX)}, 0 offen{gf} lds')
    def complete(reg, no):
        a(f"""
    v_max3_u32 v{T}, v{reg}, v{reg+1}, v{reg+2}
    v_max_u32 v{T}, v{T}, v{reg+3}
    v_cmp_eq_u32 vcc, s{SEMPTY}, v{T}
    s_cbranch_vccnz {no}""")
    a(f"""
    s_mov_b32 s{ISSUED}, 0
    v_mov_b32 v{EA}, v{EA0}
    v_mov_b32 v{MAD}, v{MAD0}
    s_waitcnt vmcnt(0)""")
    stamp(6)
    a('    s_setprio 3')
    absorb0('a')
    a(f"""
    s_or_b64 exec, {sp(S0)}, {sp(S1)}
    s_cselect_b32 s{OWNP}, 1, 0
    s_cbranch_execnz G_pend
    s_mov_b64 exec, 1
    ds_add_u32 v{ZERO}, v{FOUR} offset:{L_DONE}
G_pend:
    s_mov_b64 exec, -1
    s_waitcnt lgkmcnt(0)
    s_barrier""")
    stamp(7)
    if opt.get('hw', 16) < 16:
        a(f"""
    s_cmp_lt_u32 s{WID}, {opt['hw']}
    s_cbranch_scc1 G_more
    s_cmp_eq_u32 s{OWNP}, 0
    s_cbranch_scc1 G_more
    s_waitcnt vmcnt(0)
    s_call_b64 {sp(LINK)}, L_late""")
    a(f"""
G_more:
    ds_read_b32 v{T+1}, v{ZERO} offset:{L_DONE}
    ds_read_b128 {vr(EE,4)}, v{EA0}
    ds_read_b128 {vr(T+4,4)}, v{EA0} offset:128
    s_cmp_eq_u32 s{ISSUED}, 1
    s_waitcnt lgkmcnt(0)
    s_cbranch_scc1 G_m1""")
    complete(EE, 'G_short')
    dma(EE, 0)
    a(f"""
    s_mov_b32 s{ISSUED}, 1
G_m1:""")
    complete(T+4, 'G_short')
    dma(T+4, 1)
    a(f"""
    s_mov_b32 s{ISSUED}, 2
    s_setprio {opt.get('p0', 2)}
G_go:
    s_mov_b32 s{NT}, {opt.get('pb', 4)}
    s_mov_b32 s{NTI}, 0
B_go:
    ds_read_b32 v{M0R}, v{MAD}
    ds_read_b128 {vr(EE,4)}, v{EA} offset:256
    s_mov_b32 s{TT}, 1                      ; t+1
    s_waitcnt lgkmcnt(1)
    v_and_b32 v{M0R}, 0x70, v{M0R}""")
    stamp(8)
    a('B_loop:')
    pk = opt.get('pk', 0)
    th = opt.get('th', 242)
    th = (th // 100, th // 10 % 10, th % 10)
    def body(slot):
        so = slot * 4096
        mcur, mnext = (M0R, M1R) if slot == 0 else (M1R, M0R)
        eo = slot * 128
        pm = opt.get('prio', 1)
        if pm == 1 and slot == 0:
            a(f"""
    s_cmp_lt_u32 s{TT}, {th[0]}
    s_cbranch_scc1 B_p{slot}
    s_setprio 1
    s_cmp_lt_u32 s{TT}, 4
    s_cbranch_scc1 B_p{slot}
    s_sub_u32 s{X0}, s{NT}, s{TT}
    s_cmp_ge_u32 s{X0}, {th[2]}
    s_cbranch_scc1 B_p{slot}
    s_setprio 0
B_p{slot}:""")
        if pm == 3 and slot == 0:
            a(f"""
    s_cmp_lt_u32 s{TT}, {th[0]}
    s_cbranch_scc1 B_p{slot}
    s_setprio 1
    s_cmp_lt_u32 s{TT}, {th[1]}
    s_cbranch_scc1 B_p{slot}
    s_setprio 0
B_p{slot}:""")
        if pm == 2:
            a(f"""
    s_cmp_lt_u32 s{TT}, 4
    s_cbranch_scc1 B_q{slot}
    s_sub_u32 s{X0}, s{NT}, s{TT}
    s_setprio 3
    s_cmp_ge_u32 s{X0}, 3
    s_cbranch_scc1 B_p{slot}
    s_setprio 2
    s_cmp_ge_u32 s{X0}, 2
    s_cbranch_scc1 B_p{slot}
B_q{slot}:
    s_setprio 1
B_p{slot}:""")
        a(f'''
    ds_read_b32 v{MA}, v{mcur} offset:{L_LUT}
    ds_read_b32 v{mnext}, v{MAD} offset:{eo+128}
    s_cmp_lt_u32 s{TT}, s{NT}
    s_cbranch_scc1 B_w4_{slot}
    s_waitcnt vmcnt(0)
B_w4_{slot}:
    s_cmp_lg_u32 s{OWNP}, 0
    s_waitcnt vmcnt(4)
    s_cbranch_scc0 B_rd_{slot}
    s_call_b64 {sp(LINK)}, L_late
B_rd_{slot}:''')
        if opt.get('tprof'):
            a(f'''
    s_memrealtime s[98:99]
    s_min_u32 s100, s{TT}, 10
    s_waitcnt lgkmcnt(0)
    s_mov_b32 m0, s100
    v_writelane_b32 v{ATK}, s98, m0''')
        a(f'''
    ds_read_b128 {vr(XA,4)}, v{RA0} offset:{so}
    ds_read_b128 {vr(XA+4,4)}, v{RA1} offset:{so}
    ds_read_b128 {vr(XA+8,4)}, v{RA0} offset:{so+2048}
    ds_read_b128 {vr(XA+12,4)}, v{RA1} offset:{so+2048}''')
        for fb in range(4):
            a(f'    ds_read_b64_tr_b16 {vr(XT+4*fb,2)}, v{RT+fb} offset:{so}')
            a(f'    ds_read_b64_tr_b16 {vr(XT+4*fb+2,2)}, v{RT+fb} offset:{so+2048}')
        a(f'''
    s_add_u32 s{TT}, s{TT}, 1               ; t+2
    s_waitcnt lgkmcnt(12)
    v_mfma_f32_16x16x32_bf16 {vr(S,4)}, {vr(MA,4)}, {vr(MB,4)}, 0
    v_and_b32 v{mnext}, 0x70, v{mnext}
    s_waitcnt lgkmcnt(11)
    v_mfma_f32_16x16x32_bf16 {vr(S,4)}, {vr(XA,4)}, {vr(QLO,4)}, {vr(S,4)}
    s_waitcnt lgkmcnt(10)
    v_mfma_f32_16x16x32_bf16 {vr(S,4)}, {vr(XA+4,4)}, {vr(QLO+4,4)}, {vr(S,4)}
    s_waitcnt lgkmcnt(9)
    v_mfma_f32_16x16x32_bf16 {vr(S,4)}, {vr(XA+8,4)}, {vr(QHI,4)}, {vr(S,4)}
    s_waitcnt lgkmcnt(8)
    v_mfma_f32_16x16x32_bf16 {vr(S,4)}, {vr(XA+12,4)}, {vr(QHI+4,4)}, {vr(S,4)}
    s_waitcnt lgkmcnt(0)
    s_cmp_lt_u32 s{TT}, s{NTI}
    s_cbranch_scc0 B_skip_{slot}
B_dma_{slot}:''')
        dma(EE, slot)
        a(f'''
    ds_read_b128 {vr(EE,4)}, v{EA} offset:{eo+384}
B_cont_{slot}:''')
        for r in range(4):
            a(f'    v_exp_f32 v{S+r}, v{S+r}')
        if slot == 1:
            a(f'    v_add_u32 v{EA}, 256, v{EA}')
            a(f'    v_add_u32 v{MAD}, 256, v{MAD}')
        if pk:
            a(f'    v_pk_add_f32 {vr(S,2)}, {vr(S,2)}, 1.0 op_sel_hi:[1,0]')
            a(f'    v_pk_add_f32 {vr(S+2,2)}, {vr(S+2,2)}, 1.0 op_sel_hi:[1,0]')
        else:
            for r in range(4):
                a(f'    v_add_f32 v{S+r}, 1.0, v{S+r}')
        for r in range(4):
            a(f'    v_rcp_f32 v{S+r}, v{S+r}')
        a(f'''
    v_cvt_pk_bf16_f32 v{PP}, v{S}, v{S+1}
    s_cmp_gt_u32 s{TT}, s{NT}
    v_cvt_pk_bf16_f32 v{PP+1}, v{S+2}, v{S+3}
    s_nop 0
    v_mov_b32_dpp v{PP+2}, v{PP} row_ror:8 row_mask:0xf bank_mask:0xf
    v_mov_b32_dpp v{PP+3}, v{PP+1} row_ror:8 row_mask:0xf bank_mask:0xf
    s_nop 1''')
        for fb in range(4):
            a(f'    v_mfma_f32_16x16x32_bf16 {vr(ACC+4*fb,4)}, {vr(XT+4*fb,4)}, {vr(PP,4)}, {vr(ACC+4*fb,4)}')
        a('    s_cbranch_scc1 B_loopdone' if slot == 0 else '    s_cbranch_scc0 B_loop')
    n0 = len(a.lines)
    body(0)
    body(1)
    drop = []
    if opt.get('x_nords'): drop += ['ds_read_b128 v[4', 'ds_read_b128 v[5', 'ds_read_b64_tr']
    if opt.get('x_nomfma'): drop += ['v_mfma']
    if opt.get('x_novalu'): drop += ['v_exp', 'v_rcp', 'v_add_f32', 'v_cvt', 'v_mov_b32_dpp', 'v_pk_add']
    if opt.get('bench'): drop += [f'v_add_u32 v{EA}, 256', f'v_add_u32 v{MAD}, 256']
    a.lines[n0:] = [l for l in a.lines[n0:] if not any(l.strip().startswith(d) for d in drop)]
    a(f'''
B_loopdone:
    s_cmp_lg_u32 s{MODE}, 0
    s_cbranch_scc1 C_next
B_epi:''')
    stamp(9)
    a(f'''
    v_xor_b32 v{T+1}, 8, v{WVA}
    v_xor_b32 v{T+2}, 16, v{WVA}
    v_xor_b32 v{T+3}, 24, v{WVA}''')
    for blk in range(4):
        ad = WVA if blk == 0 else T+blk
        for ks in range(2):
            for h in range(2):
                a(f'    ds_read_b64_tr_b16 {vr(XA+blk*8+ks*4+h*2,2)}, v{ad} offset:{L_WV+(32*ks+16*h)*128}')
        if blk == 2:
            a('    s_waitcnt lgkmcnt(8)')
    for r in range(8):
        a(f'    v_cvt_pk_bf16_f32 v{S+r}, v{ACC+2*r}, v{ACC+2*r+1}')
    epi = opt.get('epi', 1)
    if epi:
        a(f'''
    v_and_b32 v{T+4}, 7, v{LANE}
    v_lshrrev_b32 v{T+5}, 3, v{LANE}
    v_and_b32 v{T+5}, 6, v{T+5}             ; 2g
    v_xor_b32 v{T+5}, v{T+5}, v{T+4}
    v_lshlrev_b32 v{T+5}, 4, v{T+5}
    v_lshl_add_u32 v{T+4}, v{T+4}, 7, v{T+5}
    v_add_u32 v{T+4}, s{RING}, v{T+4}
    v_xor_b32 v{T+6}, 16, v{T+4}
    v_lshl_add_u32 v{T+5}, v{LANE}, 4, s{RING}''')
    else:
        a(f'''
    v_and_b32 v{T+4}, 7, v{LANE}
    v_lshlrev_b32 v{T+4}, 19, v{T+4}
    v_lshrrev_b32 v{T+5}, 4, v{LANE}
    v_lshl_add_u32 v{T+4}, v{T+5}, 5, v{T+4}
    s_lshl_b32 s{X0}, s{WID}, 15
    s_lshl_b32 s{X0+1}, s2, 7
    s_add_u32 s{PFT}, s{X0}, s{X0+1}''')
    for blk in range(4):
        a(f'    s_waitcnt lgkmcnt({min(8, 12-4*blk)})')
        a(f'    v_mfma_f32_16x16x32_bf16 {vr(QLO+4*blk,4)}, {vr(XA+blk*8,4)}, {vr(S,4)}, 0')
        a(f'    v_mfma_f32_16x16x32_bf16 {vr(QLO+4*blk,4)}, {vr(XA+blk*8+4,4)}, {vr(S+4,4)}, {vr(QLO+4*blk,4)}')
    a(f'''
    s_cmp_lg_u32 s{WID}, 15
    s_cbranch_scc1 K_no2
    s_mov_b64 exec, 1
    s_cmp_lg_u32 s{GAVE}, 0
    s_cbranch_scc1 K_ticket
K_adv:
    v_mov_b32 v{T}, s{EPOCH}
    global_store_dword v{ZERO}, v{T}, s[18:19]
K_skip:
    s_mov_b64 exec, -1
K_no2:
    s_nop 2''')
    for r in range(4):
        a(f'    v_cvt_pk_bf16_f32 v{XA+r}, v{QLO+2*r}, v{QLO+2*r+1}')
    a(f'    s_mov_b64 exec, {sp(LOM)}')
    if epi:
        a(f'    ds_write_b128 v{T+4}, {vr(XA,4)}')
    else:
        a(f'    buffer_store_dwordx4 {vr(XA,4)}, v{T+4}, {sq(SOUT)}, s{PFT} offen{of}')
    for r in range(4, 8):
        a(f'    v_cvt_pk_bf16_f32 v{XA+r}, v{QLO+2*r}, v{QLO+2*r+1}')
    if epi:
        a(f'''
    ds_write_b128 v{T+6}, {vr(XA+4,4)}
    s_mov_b64 exec, -1
    s_waitcnt lgkmcnt(0)
    ds_read_b128 {vr(XA+8,4)}, v{T+5}
    s_waitcnt lgkmcnt(0)
    buffer_store_dwordx4 {vr(XA+8,4)}, v{ROWOFF}, {sq(SOUT)}, 0 offen{of}''')
    else:
        a(f'''
    buffer_store_dwordx4 {vr(XA+4,4)}, v{T+4}, {sq(SOUT)}, s{PFT} offen offset:16{of}
    s_mov_b64 exec, -1''')
    if st:
        stamp(10)
        a('    s_waitcnt vmcnt(0)')
        stamp(11)
        if opt.get('tprof'):
            a(f'''
    s_mov_b64 exec, 0x7fe
    v_mov_b32 v{STV}, v{ATK}
    s_mov_b64 exec, -1''')
        a(f'''
    s_add_u32 s{X0}, s18, {STAMP_OFF}
    s_addc_u32 s{X0+1}, s19, 0
    s_lshl_b32 s{X0+2}, s2, 4
    s_add_u32 s{X0+2}, s{X0+2}, s{WID}
    s_lshl_b32 s{X0+2}, s{X0+2}, 6
    v_lshl_add_u32 v{T}, v{LANE}, 2, s{X0+2}
    s_mov_b64 exec, 0xffff
    global_store_dword v{T}, v{STV}, {sp(X0)}''')
        if 'amp' in opt:
            a(f'''
    v_readlane_b32 s60, v{STV}, 0
    v_readlane_b32 s61, v{STV}, {opt['amp']}
    v_readlane_b32 s62, v{STV}, 11
    s_sub_u32 s61, s61, s60
    s_mul_i32 s61, s61, {opt.get('ampk', 2)}
    s_min_u32 s61, s61, 20000
D_spin:
    s_memrealtime s[98:99]
    s_waitcnt lgkmcnt(0)
    s_sub_u32 s98, s98, s62
    s_cmp_lt_u32 s98, s61
    s_cbranch_scc1 D_spin''')
    a(f'''
L_end:
    s_endpgm
''')
    for slot in range(2):
        a(f'''
B_skip_{slot}:
    s_cmp_lg_u32 s{NTI}, 0
    s_cbranch_scc1 B_idle_{slot}
    s_mov_b32 s{RET}, {slot}
    s_cmp_ge_u32 s{TT}, {opt.get('pb', 4)}
    s_cbranch_scc1 F_final''')
        complete(EE, f'B_again_{slot}')
        a(f'''
    s_branch B_dma_{slot}
B_again_{slot}:
    ds_read_b128 {vr(EE,4)}, v{EA} offset:{slot*128+256}
    s_waitcnt lgkmcnt(0)''')
        complete(EE, 'F_final')
        a(f'''
    s_branch B_dma_{slot}
F_ret_{slot}:
    ds_read_b128 {vr(EE,4)}, v{EA} offset:{slot*128+256}
    s_waitcnt lgkmcnt(0)
    s_cmp_lt_u32 s{TT}, s{NT}
    s_cbranch_scc1 B_dma_{slot}
B_idle_{slot}:
    s_nop 7
    s_branch B_cont_{slot}''')
    a(f"""
L_late:
    s_mov_b64 exec, {sp(S1)}
    s_cbranch_execz Y_done""")
    absorb1()
    a(f"""
    s_mov_b64 exec, {sp(S0)}
    s_cbranch_execz Z_doneb""")
    absorb0('b')
    a(f"""
    s_or_b64 exec, {sp(S0)}, {sp(S1)}
    s_cbranch_execnz L_ret
    s_mov_b32 s{OWNP}, 0
    s_mov_b64 exec, 1
    ds_add_u32 v{ZERO}, v{FOUR} offset:{L_DONE}""")
    if st:
        a(f'    v_writelane_b32 v{STV}, s{POLLN}, 15')
        a('    s_memrealtime s[98:99]')
        a('    s_waitcnt lgkmcnt(0)')
        a(f'    v_writelane_b32 v{STV}, s98, 7')
    a(f"""
L_ret:
    s_mov_b64 exec, -1
    s_waitcnt lgkmcnt(0)
    s_setpc_b64 {sp(LINK)}
G_short:
    v_readfirstlane_b32 s{X0}, v{T+1}
    s_cmp_eq_u32 s{OWNP}, 0
    s_cbranch_scc1 G_s2
    s_waitcnt vmcnt(0)
    s_call_b64 {sp(LINK)}, L_late
    s_branch G_more
G_s2:
    s_sleep 1
    s_cmp_lt_u32 s{X0}, 64
    s_cbranch_scc1 G_more""")
    a(f'''
B_counts:
    s_mov_b32 s{RET}, 2
F_final:
    s_cmp_eq_u32 s{OWNP}, 0
    s_cbranch_scc1 F_spin
    s_waitcnt vmcnt(0)
    s_call_b64 {sp(LINK)}, L_late
    s_branch F_final
F_spin:
    ds_read_b32 v{T+1}, v{CNTA} offset:{L_BCNT}
    s_waitcnt lgkmcnt(0)
    v_readlane_b32 s{X0}, v{T+1}, 26
    v_sub_u32 v{T+3}, v{T+1}, v{LBASE}
    s_cmp_lt_u32 s{X0}, 64
    s_cbranch_scc1 F_spin
    v_cmp_ne_u32 {sp(X0)}, 0, v{T+1}
    v_cmp_lt_u32 vcc, {GSTRIDE}, v{T+3}
    v_readlane_b32 s{NT}, v{T+3}, s{WID}
    s_and_b32 s{X0}, s{X0}, 0x1ff0000
    s_and_b32 s{X0+1}, vcc_lo, 0xffff
    s_or_b32 s{NTI}, s{X0+1}, s{X0}
    s_or_b32 s{NTI}, s{NTI}, s{MODE}
    s_cbranch_scc1 C_slowcnt
B_cntok:
    s_add_u32 s{NT}, s{NT}, 127
    s_lshr_b32 s{NT}, s{NT}, 7              ; tiles
    s_mov_b32 s{NTI}, s{NT}
    s_cbranch_scc0 B_loopdone
    s_cmp_eq_u32 s{RET}, 0
    s_cbranch_scc1 F_ret_0
    s_cmp_eq_u32 s{RET}, 1
    s_cbranch_scc1 F_ret_1
    s_branch B_first
K_ticket:
    v_mov_b32 v{T+1}, 1
    global_atomic_add v{ATK}, v{ZERO}, v{T+1}, s[16:17] sc0 sc1
    s_waitcnt vmcnt(0)
    v_readfirstlane_b32 s{X0}, v{ATK}
    s_cmp_eq_u32 s{X0}, {NWG-1}
    s_cbranch_scc1 K_adv
    s_branch K_skip
B_first:
    ds_read_b128 {vr(XA,4)}, v{EA}
    ds_read_b128 {vr(XA+4,4)}, v{EA} offset:128
    s_waitcnt lgkmcnt(0)
    s_cmp_eq_u32 s{ISSUED}, 1
    s_cbranch_scc1 B_f1''')
    dma(XA, 0)
    a(f'''
B_f1:
    s_cmp_lt_u32 s{NT}, 2
    s_cbranch_scc1 B_go''')
    dma(XA+4, 1)
    a('    s_branch B_go')
    def drop_lines():
        for r in range(4):
            a(f'    v_mov_b32 v{EN+r}, {EMPTY}')
        a(f'''
    v_lshrrev_b32 v{T}, 2, v0
    v_lshrrev_b32 v{T+1}, 5, v{T}
    v_lshlrev_b32 v{T+1}, 2, v{T+1}
    v_lshlrev_b32 v{T}, v{T}, 1
    ds_or_b32 v{T+1}, v{T} offset:{L_RESC}''')
    a(f'''
A_full:
    s_wqm_b64 exec, {sp(S0)}
    v_mov_b32 v40, {FULLM}
    v_mov_b32 v41, {EMPTY}
    v_mov_b32 v42, {EMPTY}
    v_mov_b32 v43, {EMPTY}
    s_mov_b64 exec, -1
    s_branch A_pub''')
    for tag in rare:
        a(f'''
Z_give{tag}:
    ds_write_b32 v{ZERO}, v{FOUR} offset:{L_GAVE}''')
        drop_lines()
        a(f'''
    s_mov_b64 {sp(S0)}, 0
    s_mov_b32 s{POLLN}, 0
    s_branch Z_nr{tag}
Z_full{tag}:
    s_mov_b64 exec, vcc''')
        drop_lines()
        a(f'    s_branch Z_rank{tag}')
    a('Y_lost:')
    for r in range(4, 8):
        a(f'    v_mov_b32 v{EN+r}, {EMPTY}')
    a(f'''
    s_mov_b64 {sp(S1)}, 0
    s_branch Y_nr
C_slowcnt:
    s_cmp_lg_u32 s{MODE}, 0
    s_cbranch_scc1 C_careful''')
    for k in range(8):
        a(f'    v_readlane_b32 s{RESC+k}, v{T+1}, {16+k}')
    a(f'''
    v_readlane_b32 s{GAVE}, v{T+1}, 25
    s_mov_b32 s{MODE}, 2
    s_cmp_lg_u32 s{X0+1}, 0
    s_cbranch_scc1 C_redo
    s_mov_b32 s{MODE}, 1
    s_branch B_cntok
C_redo:
    ; a list ran over its neighbour: forget what was accumulated and redo all entries carefully''')
    for r in range(16):
        a(f'    v_mov_b32 v{ACC+r}, 0')
    a(f'''
    s_branch C_next
C_careful:
    s_min_u32 s{NT}, s{NT}, {GSTRIDE}
    s_bitcmp1_b32 s{X0}, 24
    s_cselect_b32 s{MODE}, 2, 1
    s_branch B_cntok
C_next:
    s_setprio 0
    s_mov_b32 s{ISSUED}, 0
    s_waitcnt vmcnt(0) lgkmcnt(0)
    s_barrier
    s_cmp_eq_u32 s{MODE}, 2
    s_cbranch_scc1 C_round
    s_mov_b32 s{X0}, -1''')
    for k in range(7, -1, -1):
        a(f'''
    s_ff1_i32_b32 s{X0+1}, s{RESC+k}
    s_add_u32 s{X0+1}, s{X0+1}, {32*k}
    s_cmp_lg_u32 s{RESC+k}, 0
    s_cselect_b32 s{X0}, s{X0+1}, s{X0}''')
    a(f'''
    s_cmp_eq_u32 s{X0}, -1
    s_cbranch_scc1 B_epi
    s_lshr_b32 s{X0+1}, s{X0}, 5
    s_lshl_b32 s{X0+2}, 1, s{X0}''')
    for k in range(8):
        a(f'''
    s_andn2_b32 s{X0+3}, s{RESC+k}, s{X0+2}
    s_cmp_eq_u32 s{X0+1}, {k}
    s_cselect_b32 s{RESC+k}, s{X0+3}, s{RESC+k}''')
    a(f'''
    s_and_b32 s{X0+2}, s{X0}, 31
    s_lshl_b32 s{X0+2}, s{X0+2}, 3
    s_or_b32 s{X0}, s{X0+2}, s{X0+1}
    s_mul_i32 s{X0}, s{X0}, {CH*4}''')
    for k in range(4):
        a(f'''
    buffer_load_dword v{ED+k}, v{T4}, {sq(SDST)}, s{X0} offen
    buffer_load_dword v{ES+k}, v{T4}, {sq(SSRC)}, s{X0} offen
    s_add_u32 s{X0}, s{X0}, 4096''')
    for r in range(4, 8):
        a(f'    v_mov_b32 v{EN+r}, {EMPTY}')
    a(f'    v_mov_b32 v{T+1}, {EMPTY}')
    a('    s_waitcnt vmcnt(0)')
    for k in range(4):
        a(f'''
    v_and_b32 v{T}, 255, v{ED+k}
    v_cmp_eq_u32 vcc, s2, v{T}
    v_lshrrev_b32 v{ED+k}, 8, v{ED+k}
    v_lshl_or_b32 v{ES+k}, v{ES+k}, 7, v{ED+k}''')
        if k == 3:
            a(f'    s_and_b64 vcc, vcc, {sp(M3)}')
        a(f'    v_cndmask_b32 v{EN+k}, v{T+1}, v{ES+k}, vcc')
    a(f'''
C_round:
    v_mov_b32 v{T+4}, {EMPTY}
    v_mov_b32 v{T+5}, {EMPTY}
    v_mov_b32 v{T+6}, {EMPTY}
    v_mov_b32 v{T+7}, {EMPTY}
    ds_write_b128 v{T16}, {vr(T+4,4)} offset:{L_LIST}
    s_cmp_ge_u32 s{WID}, 6
    s_cbranch_scc1 C_i1
    ds_write_b128 v{T16}, {vr(T+4,4)} offset:{L_LIST+16384}
C_i1:
    s_cmp_lg_u32 s{WID}, 12
    s_cbranch_scc1 C_i2
    s_mov_b64 exec, 0xffff
    ds_write_b32 v{CNTA}, v{LBASE} offset:{L_BCNT}
    ds_write_b32 v{ZERO}, v{ZERO} offset:{L_PEND}
    s_mov_b64 exec, -1
C_i2:
    s_waitcnt lgkmcnt(0)
    s_barrier
    s_mov_b32 s{X0+4}, {GSTRIDE//4}
    s_mov_b32 s{X0+5}, {L_LIST+GSTRIDE}''')
    for r in range(8):
        brank(r, '-1')
        a(f'''
    v_mul_u32_u24 v{T+3}, s{X0+4}, v{G4+r}
    v_add_u32 v{T+3}, s{X0+5}, v{T+3}
    s_mov_b64 exec, {sp(VM+2*r)}
    s_waitcnt lgkmcnt(0)
    v_cmp_lt_u32 vcc, v{RK+r}, v{T+3}
    s_and_saveexec_b64 {sp(X0+6)}, vcc
    ds_write_b32 v{RK+r}, v{EN+r}
    v_mov_b32 v{EN+r}, {EMPTY}
    s_andn2_b64 exec, {sp(X0+6)}, exec
    ds_write_b32 v{ZERO}, v{FOUR} offset:{L_PEND}
    s_mov_b64 exec, -1''')
    a(f'''
    v_mov_b32 v{EA}, v{EA0}
    v_mov_b32 v{MAD}, v{MAD0}
    s_waitcnt lgkmcnt(0)
    s_barrier
L_last:
    s_branch B_counts''')
    if opt.get('red'):
        gen_red(a, opt)
    def kd(name, vg, sg):
        a(f'''
.p2align 6
.amdhsa_kernel {name}
  .amdhsa_next_free_vgpr {vg}
  .amdhsa_next_free_sgpr {sg}
  .amdhsa_accum_offset {vg}
  .amdhsa_group_segment_fixed_size 0
  .amdhsa_kernarg_size 64
  .amdhsa_user_sgpr_count 2
  .amdhsa_user_sgpr_kernarg_segment_ptr 1
  .amdhsa_system_sgpr_workgroup_id_x 1
.end_amdhsa_kernel''')
    a('.section .rodata,"a"')
    kd(KNAME, 128, 102)
    if opt.get('red'):
        kd('red_kernel', 32, 48)
    return a.text()

if __name__ == '__main__':
    out = sys.argv[1]
    opt = {}
    for kv in sys.argv[2:]:
        k, v = kv.split('=')
        try:
            v = int(v)
        except ValueError:
            v = '' if v == 'none' else ' ' + v.replace('+', ' ')
        opt[k] = v
    open(out, 'w').write(build(opt))
```

```python
import sys, struct
from gen3 import gen_red

N, E, D = 25000, 800000, 64
NWG = 256
CH = E // NWG
HSTRIDE = 16384 + 128
SEG_OFF = 4096
H1_OFF = 256 * HSTRIDE
WS_USED = SEG_OFF + 3 * H1_OFF
X_BYTES = N * 128
EMPTY = 0x003FFFFF
FULLM = 0x003FFFFE
KNAME = 'standalone__kernel_systems_refs_featgraph__graph_kernel'

L_ACNT = 0
L_BCNT = 1024
L_RESC = 1088
L_PEND = 1120
L_GAVE = 1124
L_DONE = 1128
L_LUT = 1152
L_WV = 2048
L_LIST = 10240
GSTRIDE = 1408
L_RING = 32768
L_XN = 65536
L_WQ = 98304
ISTRIDE = 144
L_IMG = 163840 - 256 * ISTRIDE
LDS = 163840
STAMP_OFF = 0x1000000

def f32bits(x):
    return struct.unpack('<I', struct.pack('<f', x))[0]

class Asm:
    def __init__(self):
        self.lines = []
    def __call__(self, s):
        for ln in s.strip('\n').split('\n'):
            if ln.strip():
                self.lines.append(ln)
    def text(self):
        return '\n'.join(self.lines) + '\n'

def vr(lo, n):
    return f'v[{lo}:{lo+n-1}]'
def sp(lo):
    return f's[{lo}:{lo+1}]'
def sq(lo):
    return f's[{lo}:{lo+3}]'

def srd(a, d, lo, nbytes):
    a(f'    s_mov_b32 s{d}, s{lo}')
    a(f'    s_mov_b32 s{d+1}, s{lo+1}')
    a(f'    s_mov_b32 s{d+2}, {nbytes}')
    a(f'    s_mov_b32 s{d+3}, 0x00020000')

LANE, T4, T16, FOUR, ZERO, ROWOFF, WVA = 1, 2, 3, 4, 5, 6, 7
QLO, QHI, ACC, XA, XT, S, PP, MA, MB, EE = 8, 16, 24, 40, 56, 72, 76, 80, 84, 88
M0R, M1R, RA0, RA1, RT, EA, MAD, CHK, EA0 = 92, 93, 94, 95, 96, 100, 101, 102, 103
T = 104
EN = 112
MAD0, PFD, ATK, STV, CNTA, EPV, LBASE = 120, 121, 122, 123, 124, 125, 126
ED, ES, B4, PS = 40, 44, 48, 52
WD, XN = 56, 60
IMGR, STO, WSA = 68, 69, 70
G4, RK = 40, 48

GAVE = 3
SX, SSRC, SDST, SW, EPOCH, ISSUED, SOUT, SWS = 20, 24, 28, 32, 34, 35, 36, 40
WID, SEGB, AMASK, RING, NT, TT = 44, 45, 46, 47, 48, 49
TAG = 50
SEMPTY, MODE, LOM, M3 = 54, 55, 56, 58
RESC = 60
FR, N1 = 60, 62
VM = 68
X0 = 84
H1SO, KFULL, S0, S1, K88, KTHR, PFT, POLLN, PRIME = 86, 87, 88, 90, 92, 94, 95, 96, 97
NTI, RET = 32, 33
OWNP, LINK = 97, 10

def build(opt):
    a = Asm()
    st = opt.get('stamps')
    def stamp(k):
        if st:
            ck = {0: 14, 7: 12, 9: 13}.get(k)
            if ck:
                a('    s_memtime s[100:101]')
            a('    s_memrealtime s[98:99]')
            a('    s_waitcnt lgkmcnt(0)')
            a(f'    v_writelane_b32 v{STV}, s98, {k}')
            if ck:
                a(f'    v_writelane_b32 v{STV}, s100, {ck}')
    launch = (f'; @launch kernel={KNAME} grid=({NWG},1,1) block=(1024,1,1) lds={LDS}' if opt.get('list') else
              f'; @launch grid=({NWG},1,1) block=(1024,1,1) lds={LDS}')
    if opt.get('red'):
        launch += '\n; @launch kernel=red_kernel grid=(1,1,1) block=(64,1,1) lds=0'
    sf = opt.get('st', ' sc1')
    lf = opt.get('ld', ' sc1')
    gf = opt.get('gather', '')
    of = opt.get('out', '')
    a(f'''; FeatGraph (SDDMM sigmoid gate + SpMM) in one launch, one workgroup per CU.
{launch}
.amdgcn_target "amdgcn-amd-amdhsa--gfx950"
.text
.globl {KNAME}
.p2align 8
.type {KNAME},@function
{KNAME}:
    s_cmp_ge_u32 s2, {NWG}
    s_cbranch_scc1 L_end''')
    if st:
        a(f'    v_mov_b32 v{STV}, 0')
        a(f'    v_mov_b32 v{ATK}, 0')
    stamp(0)
    a('    s_load_dwordx16 s[4:19], s[0:1], 0')
    if opt.get('cpf'):
        a(f'''
    s_getpc_b64 {sp(S0)}
I_pc:
    v_lshlrev_b32 v127, 7, v0
    v_cmp_gt_u32 vcc, A_full-I_pc, v127
    s_and_saveexec_b64 {sp(S1)}, vcc
    s_cbranch_execz I_c
    global_load_dword v127, v127, {sp(S0)}
I_c:
    s_mov_b64 exec, -1''')
    a(f'''
    s_mul_i32 s{X0}, s2, {CH*4}
    v_lshlrev_b32 v{T4}, 2, v0
    v_lshrrev_b32 v{T+4}, 6, v0
    v_add_u32 v{T}, s{X0}, v{T4}
    v_readfirstlane_b32 s{WID}, v{T+4}
    v_add_u32 v{T+1}, 4096, v{T}
    v_add_u32 v{T+2}, 8192, v{T}
    v_add_u32 v{T+3}, 12288, v{T}
    v_cmp_gt_u32 {sp(M3)}, {CH-3072}, v0
    v_lshlrev_b32 v{T16}, 4, v0
    v_mov_b32 v{ZERO}, 0
    v_mov_b32 v{T+4}, {EMPTY}
    v_mov_b32 v{T+5}, {EMPTY}
    v_mov_b32 v{T+6}, {EMPTY}
    v_mov_b32 v{T+7}, {EMPTY}
    s_waitcnt lgkmcnt(0)
    {f'global_load_dword v{EPV}, v{ZERO}, s[18:19]      ; epoch word' if opt.get('epf') else ''}
    s_mov_b64 exec, {sp(M3)}
    s_cbranch_execz A_no3a
    global_load_dword v{ED+3}, v{T+3}, s[8:9]
    global_load_dword v{ES+3}, v{T+3}, s[6:7]
A_no3a:
    s_mov_b64 exec, -1''')
    for k in range(3):
        a(f'    global_load_dword v{ED+k}, v{T+k}, s[8:9]')
    for k in range(3):
        a(f'    global_load_dword v{ES+k}, v{T+k}, s[6:7]')
    a(f'''
    v_add_u32 v{T}, {L_IMG}, v{T16}
    ds_write_b128 v{T}, {vr(T+4,4)}
    ds_write_b128 v{T}, {vr(T+4,4)} offset:16384
    s_cmp_ge_u32 s{WID}, 4
    s_cbranch_scc1 I_a
    ds_write_b128 v{T}, {vr(T+4,4)} offset:32768
    ds_write_b32 v{T4}, v{ZERO} offset:{L_ACNT}
I_a:
    {f'global_load_dword v{EPV}, v{ZERO}, s[18:19]      ; epoch word' if not opt.get('epf') else ''}
    v_and_b32 v{LANE}, 63, v0
    v_mov_b32 v{FOUR}, 4''')
    srd(a, SX, 4, X_BYTES)
    a(f'''
    s_cmp_lt_u32 s{WID}, 8
    s_cselect_b32 s{SW}, s10, s12
    s_cselect_b32 s{SW+1}, s11, s13
    v_and_b32 v{T+3}, 0x1ff0, v{T16}
    v_lshrrev_b32 v{T}, 3, v{LANE}
    v_and_b32 v{T+1}, 7, v{LANE}
    v_xor_b32 v{T+1}, v{T+1}, v{T}
    v_lshlrev_b32 v{T+1}, 4, v{T+1}
    v_lshlrev_b32 v{T}, 19, v{T}
    s_lshl_b32 s{X0}, s{WID}, 15
    s_lshl_b32 s{X0+1}, s2, 7
    s_add_u32 s{X0}, s{X0}, s{X0+1}
    v_add3_u32 v{ROWOFF}, v{T}, v{T+1}, s{X0}
    s_lshl_b32 s{X0}, s{WID}, 10
    s_add_u32 m0, s{X0}, {L_XN}
    s_waitcnt lgkmcnt(0)
    s_barrier''')
    xw = opt.get('xw', 0)
    def wload():
        a(f'    v_and_b32 v{T+3}, 0x1ff0, v{T16}')
        a(f'    global_load_dwordx4 {vr(WD,4)}, v{T+3}, {sp(SW)}')
    def xload():
        a(f'    buffer_load_dwordx4 v{ROWOFF}, {sq(SX)}, 0 offen lds')
    if xw in (0, 2):
        wload()
    if xw == 0:
        xload()
    pfpos = [0]
    def prefetch(n):
        lo, hi = pfpos[0], pfpos[0] + n
        pfpos[0] = hi
        m = ((1 << hi) - 1) ^ ((1 << lo) - 1)
        a(f'''
    s_lshr_b32 s{PFT}, s2, 3
    s_lshl_b32 s{PFT}, s{PFT}, 4
    s_add_u32 s{PFT}, s{PFT}, s{WID}
    s_mul_i32 s{PFT}, s{PFT}, {49*128}
    v_lshlrev_b32 v{T}, 7, v{LANE}
    s_mov_b32 exec_lo, 0x{m & 0xffffffff:x}
    s_mov_b32 exec_hi, 0x{m >> 32:x}
    buffer_load_dword v{ATK}, v{T}, {sq(SX)}, s{PFT} offen
    s_mov_b64 exec, -1''')
    p = 0
    srd(a, SWS, 18, WS_USED)
    if opt.get('tlb'):
        a(f'''
    s_mul_i32 s{PFT}, s{WID}, 9
    v_add_u32 v{T}, s{PFT}, v{LANE}
    v_lshlrev_b32 v{T}, 16, v{T}
    s_mov_b64 exec, 0x1ff
    buffer_load_dword v{ATK}, v{T}, {sq(SWS)}, 0 offen
    s_mov_b64 exec, -1''')
        p += 1
    if opt.get('pf1'):
        prefetch(opt['pf1'])
        p += 1
    nw = {0: 2, 1: 0, 2: 1, 3: 0}[xw]
    y = (0 if opt.get('epf') else 1) + nw + p
    wdec = 1
    stamp(1)
    a(f'''
    ds_write_b128 v{T16}, {vr(T+4,4)} offset:{L_LIST}
    s_cmp_ge_u32 s{WID}, 6
    s_cbranch_scc1 I_b
    ds_write_b128 v{T16}, {vr(T+4,4)} offset:{L_LIST+16384}
I_b:
    v_and_b32 v{LBASE}, 15, v{LANE}
    v_mul_u32_u24 v{LBASE}, {GSTRIDE}, v{LBASE}
    v_add_u32 v{LBASE}, {L_LIST}, v{LBASE}
    v_and_b32 v{CNTA}, 0x7c, v{T4}
    s_cmp_lg_u32 s{WID}, 12
    s_cbranch_scc1 I_done
    v_cmp_gt_u32 vcc, 16, v{LANE}
    s_mov_b32 exec_hi, 0
    s_nop 0
    v_cndmask_b32 v{T+2}, 0, v{LBASE}, vcc
    ds_write_b32 v{CNTA}, v{T+2} offset:{L_BCNT}
    s_mov_b64 exec, 0xff
    v_cvt_f32_u32 v{T+2}, v{LANE}
    v_mul_f32 v{T+3}, v{T+2}, v{T+2}
    v_cvt_pk_bf16_f32 v{T+2}, v{T+3}, v{T+2}
    v_lshlrev_b32 v{T+3}, 4, v{LANE}
    ds_write_b32 v{T+3}, v{T+2} offset:{L_LUT}
    s_mov_b64 exec, -1
I_done:''')
    a(f'''
    s_lshr_b32 s{PRIME}, s2, 3
    s_and_b32 s{X0}, s2, 7
    s_lshl_b32 s{X0}, s{X0}, 5
    s_or_b32 s{PRIME}, s{PRIME}, s{X0}
''')
    pair = opt.get('pair', 0)
    if not pair:
        a(f'''
    s_lshl_b32 s{X0}, s{PRIME}, 6
    s_add_u32 s{X0}, s{X0}, {SEG_OFF}
    s_add_u32 s{X0+1}, s{X0}, {H1_OFF}
    s_mul_i32 s{SEGB}, s2, {HSTRIDE}
    s_add_u32 s{SEGB}, s{SEGB}, {SEG_OFF}
    v_lshrrev_b32 v{T}, 2, v0
    v_and_b32 v{T+1}, 3, v0
    v_mul_u32_u24 v{IMGR}, {ISTRIDE}, v{T}
    v_lshl_add_u32 v{IMGR}, v{T+1}, 2, v{IMGR}
    v_add_u32 v{IMGR}, {L_IMG}, v{IMGR}
    v_mul_u32_u24 v{STO}, {HSTRIDE}, v{T}
    v_lshl_add_u32 v{STO}, v{T+1}, 4, v{STO}''')
    else:
        sh = {1: 0, 8: 3}[pair]
        a(f'''
    s_lshl_b32 s{X0}, s{PRIME}, 7
    s_add_u32 s{X0}, s{X0}, {SEG_OFF}
    s_add_u32 s{X0+1}, s{X0}, {H1_OFF}
    s_lshr_b32 s{SEGB}, s2, {sh+1}
    s_lshl_b32 s{SEGB}, s{SEGB}, {sh}
    s_and_b32 s{S0}, s2, {(1 << sh) - 1}
    s_or_b32 s{SEGB}, s{SEGB}, s{S0}        ; u
    s_mul_i32 s{SEGB}, s{SEGB}, {2*HSTRIDE}
    s_bfe_u32 s{S0}, s2, {(1 << 16) | sh}
    s_lshl_b32 s{S0}, s{S0}, 6
    s_add_u32 s{SEGB}, s{SEGB}, s{S0}
    s_add_u32 s{SEGB}, s{SEGB}, {SEG_OFF}
    v_lshrrev_b32 v{T}, 3, v0               ; u
    v_and_b32 v{T+1}, 0x70, v{T16}
    v_mul_u32_u24 v{STO}, {2*HSTRIDE}, v{T}
    v_add_u32 v{STO}, v{STO}, v{T+1}
    v_lshrrev_b32 v{T+2}, {sh}, v{T}
    v_lshlrev_b32 v{T+2}, {sh+1}, v{T+2}
    v_and_or_b32 v{T+2}, v{T}, {(1 << sh) - 1}, v{T+2}
    v_bfe_u32 v{T+3}, v0, 2, 1
    v_lshl_or_b32 v{T+2}, v{T+3}, {sh}, v{T+2}       ; bucket
    v_and_b32 v{T+1}, 3, v0
    v_mul_u32_u24 v{IMGR}, {ISTRIDE}, v{T+2}
    v_lshl_add_u32 v{IMGR}, v{T+1}, 2, v{IMGR}
    v_add_u32 v{IMGR}, {L_IMG}, v{IMGR}
    v_and_b32 v{T+1}, 0x30, v{T16}
    v_lshlrev_b32 v{PFD}, 1, v{T16}
    v_sub_u32 v{PFD}, v{PFD}, v{T+1}        ; (t>>2)*128 + (t&3)*16''')
    LDV = PFD if pair else T16
    a(f'''
    s_mov_b32 s{SEMPTY}, {EMPTY}
    s_mov_b32 s{KTHR}, {L_IMG}
    s_mov_b32 s{K88}, 0x88888888
    s_mov_b32 s{K88+1}, 0x88888888
    v_bfe_u32 v{T}, v0, 3, 6
    v_and_b32 v{T+1}, 7, v0
    v_bfe_u32 v{T+2}, v{T}, 1, 1
    v_and_or_b32 v{T+2}, v{T}, 8, v{T+2}
    v_bfe_u32 v{T+3}, v{T}, 1, 2
    s_cmp_lt_u32 s{WID}, 8
    s_cselect_b64 {sp(S0)}, -1, 0
    s_mov_b32 s{S1}, {L_WV}
    s_cselect_b32 s{S1}, {L_WQ}, s{S1}
    v_cndmask_b32 v{T+2}, v{T+3}, v{T+2}, {sp(S0)}
    v_lshlrev_b32 v{T+1}, 1, v{T+1}
    v_xor_b32 v{T+1}, v{T+1}, v{T+2}
    v_lshlrev_b32 v{T+1}, 3, v{T+1}
    v_lshl_add_u32 v{T+1}, v{T}, 7, v{T+1}
    v_add_u32 v{WSA}, s{S1}, v{T+1}
    v_xor_b32 v{WSA+1}, 8, v{WSA}
    v_bfrev_b32 v{T+4}, -2''')
    def arank(k):
        a(f'''
    v_lshlrev_b32_sdwa v{B4+k}, 2, v{ED+k} dst_sel:DWORD dst_unused:UNUSED_PAD src0_sel:DWORD src1_sel:BYTE_0
    ds_add_rtn_u32 v{PS+k}, v{B4+k}, v{FOUR} offset:{L_ACNT}''')
    def aentry(k):
        a(f'''
    v_lshrrev_b32 v{ED+k}, 8, v{ED+k}
    v_lshl_or_b32 v{ES+k}, v{ES+k}, 7, v{ED+k}
    v_mad_u32_u24 v{B4+k}, v{B4+k}, {ISTRIDE//4}, s{KTHR}''')
    def aput(k):
        a(f'''
    v_min_u32 v{PS+k}, {ISTRIDE-4}, v{PS+k}
    v_add_u32 v{PS+k}, v{PS+k}, v{B4+k}
    ds_write_b32 v{PS+k}, v{ES+k}''')
    a(f'    s_waitcnt vmcnt({y+3})')
    stamp(2)
    for k in range(3):
        arank(k)
    a(f'    s_waitcnt vmcnt({y})')
    for k in range(3):
        aentry(k)
    for k in range(3):
        a('    s_waitcnt lgkmcnt(2)')
        aput(k)
    a(f'''
    s_mov_b64 exec, {sp(M3)}
    s_cbranch_execz A_no3b''')
    arank(3)
    aentry(3)
    a('    s_waitcnt lgkmcnt(0)')
    aput(3)
    a(f'''
A_no3b:
    s_mov_b64 exec, -1
    s_waitcnt vmcnt({p + nw})
    v_readfirstlane_b32 s{EPOCH}, v{EPV}''')
    if xw == 3:
        wload()
        xload()
    if opt.get('pfr'):
        prefetch(opt['pfr'])
        p += 1
    a(f'''
    {f'ds_write_b64 v{WSA}, {vr(WD,2)}' if not wdec else ''}
    {f'ds_write_b64 v{WSA+1}, {vr(WD+2,2)}' if not wdec else ''}
    s_add_u32 s{EPOCH}, s{EPOCH}, 1
    s_lshl_b32 s{TAG}, s{EPOCH}, 22
    s_lshl_b32 s{TAG+1}, s{EPOCH}, 12
    s_and_b32 s{TAG+1}, s{TAG+1}, 0xffc00000
    s_lshl_b32 s{TAG+2}, s{EPOCH}, 2
    s_and_b32 s{TAG+2}, s{TAG+2}, 0xffc00000
    s_xor_b32 s{TAG+3}, s{TAG}, 0xffc00000
    s_waitcnt lgkmcnt(0)
    s_barrier''')
    stamp(3)
    a(f'''
    ds_read2_b32 {vr(46,2)}, v{IMGR} offset0:24 offset1:28
    ds_read2_b32 {vr(40,2)}, v{IMGR} offset0:0 offset1:4
    ds_read2_b32 {vr(42,2)}, v{IMGR} offset0:8 offset1:12
    ds_read2_b32 {vr(44,2)}, v{IMGR} offset0:16 offset1:20
    s_waitcnt lgkmcnt(3)
    v_cmp_ne_u32 vcc, s{SEMPTY}, v47
    s_and_b64 {sp(S0)}, vcc, {sp(K88)}
    s_waitcnt lgkmcnt(1)
    s_cbranch_scc1 A_full
A_pub:
    v_cmp_ne_u32 vcc, s{SEMPTY}, v43''')
    for r in range(4):
        a(f'    v_or_b32 v{40+r}, s{TAG+r}, v{40+r}')
    a(f'''
    buffer_store_dwordx4 {vr(40,4)}, v{STO}, {sq(SWS)}, s{X0} offen{sf}
    s_and_b64 {sp(S0)}, vcc, {sp(K88)}
    s_wqm_b64 vcc, {sp(S0)}
    s_waitcnt lgkmcnt(0)''')
    for r in range(4):
        a(f'    v_or_b32 v{44+r}, s{TAG+r}, v{44+r}')
    a(f'''
''')
    h1f = opt.get('h1f', 0)
    if h1f:
        a(f'''
    v_and_b32 v{T+5}, 0x30, v{T16}
    v_lshlrev_b32 v{STO}, 1, v{STO}
    v_sub_u32 v{STO}, v{STO}, v{T+5}''')
    a(f'''
    v_cndmask_b32 v{STO}, v{T+4}, v{STO}, vcc
    buffer_store_dwordx4 {vr(44,4)}, v{STO}, {sq(SWS)}, s{X0+1} offen{sf}''')
    if h1f == 2:
        a(f'    buffer_store_dwordx4 {vr(44,4)}, v{STO}, {sq(SWS)}, s{X0+1} offen offset:64{sf}')
        p += 1
    H1V = LDV
    if h1f:
        H1V = PFD
        a(f'''
    v_lshlrev_b32 v{PFD}, 1, v{T16}
    v_sub_u32 v{PFD}, v{PFD}, v{T+5}''')
    if opt.get('pfb'):
        prefetch(opt['pfb'])
        p += 1
    stamp(4)
    if xw == 1:
        wload()
    if xw in (1, 2):
        xload()
    def wstage(n):
        a(f'''
    s_waitcnt vmcnt({n})
    ds_write_b64 v{WSA}, {vr(WD,2)}
    ds_write_b64 v{WSA+1}, {vr(WD+2,2)}''')
    if xw in (0, 2):
        wstage(p + 3)
    WQA, XNA = 88, 92
    a(f"""
    v_lshrrev_b32 v{T+5}, 4, v{LANE}        ; g
    v_bfe_u32 v{T+1}, v{LANE}, 2, 2
    v_lshl_add_u32 v{T+2}, v{T+5}, 3, v{T+1}
    v_bfe_u32 v{T+3}, v{T+2}, 1, 1
    v_and_or_b32 v{T+3}, v{T+2}, 8, v{T+3}
    v_and_b32 v{T+4}, 3, v{LANE}            ; c
    v_lshlrev_b32 v{T+6}, 1, v{T+4}
    v_xor_b32 v{T+3}, v{T+3}, v{T+6}
    v_lshlrev_b32 v{T+3}, 3, v{T+3}
    v_lshl_add_u32 v{T}, v{T+2}, 7, v{T+3}
    v_add_u32 v{WQA}, {L_WQ}, v{T}
    v_xor_b32 v{WQA+1}, 8, v{WQA}
    v_xor_b32 v{WQA+2}, 64, v{WQA}
    v_xor_b32 v{WQA+3}, 0x48, v{WQA}
    v_and_b32 v{T+7}, 7, v{LANE}
    v_xor_b32 v{T}, v{T+5}, v{T+7}
    v_lshlrev_b32 v{T}, 4, v{T}
    v_lshl_add_u32 v{T}, v{T+7}, 7, v{T}
    s_lshl_b32 s{X0}, s{WID}, 10
    s_add_u32 s{X0}, s{X0}, {L_XN}
    v_add_u32 v{XNA}, s{X0}, v{T}
    v_xor_b32 v{XNA+1}, 64, v{XNA}""")
    srd(a, SOUT, 14, X_BYTES)
    srd(a, SSRC, 6, E*4)
    srd(a, SDST, 8, E*4)
    a(f"""
    s_add_u32 s{H1SO}, s{SEGB}, {H1_OFF}
    {f's_mul_i32 s{H1SO}, s2, {2*HSTRIDE}' if h1f else ''}
    {f's_add_u32 s{H1SO}, s{H1SO}, {SEG_OFF+H1_OFF}' if h1f else ''}
    s_mov_b32 s{AMASK}, 0x003fff80
    s_lshl_b32 s{RING}, s{WID}, 13
    s_add_u32 s{RING}, s{RING}, {L_RING}
    s_mov_b32 s{MODE}, 0
    s_mov_b32 s{GAVE}, 0
    s_mov_b32 s{LOM}, 0x00ff00ff
    s_mov_b32 s{LOM+1}, 0x00ff00ff
    v_and_b32 v{T+1}, 15, v{LANE}           ; i
    v_lshrrev_b32 v{T}, 3, v{LANE}
    v_and_b32 v{T+6}, 6, v{T}
    v_xor_b32 v{T+6}, v{T+6}, v{T+7}
    v_lshlrev_b32 v{CHK}, 4, v{T+6}
    s_mul_i32 s{X0}, s{WID}, {GSTRIDE}
    s_add_u32 s{X0}, s{X0}, {L_LIST}
    v_lshl_add_u32 v{EA0}, v{T}, 4, s{X0}
    v_bfe_u32 v{T+6}, v{LANE}, 3, 2
    v_lshl_add_u32 v{T+6}, v{T+7}, 2, v{T+6}
    v_lshl_add_u32 v{MAD0}, v{T+6}, 2, s{X0}
    v_and_b32 v{T+6}, 6, v{T+1}
    v_xor_b32 v{T+6}, v{T+6}, v{T+5}
    v_lshlrev_b32 v{T+6}, 4, v{T+6}
    v_lshl_add_u32 v{T+6}, v{T+1}, 7, v{T+6}
    v_add_u32 v{RA0}, s{RING}, v{T+6}
    v_xor_b32 v{RA1}, 64, v{RA0}
    v_lshrrev_b32 v{T+6}, 2, v{LANE}        ; row = 4g+r
    v_and_b32 v{T+1}, 6, v{T+6}
    v_bfe_u32 v{T+5}, v{LANE}, 1, 1
    v_xor_b32 v{T+1}, v{T+1}, v{T+5}
    v_lshlrev_b32 v{T+1}, 4, v{T+1}
    v_lshl_add_u32 v{T+1}, v{T+6}, 7, v{T+1}
    v_and_b32 v{T+5}, 1, v{LANE}
    v_lshl_add_u32 v{T+1}, v{T+5}, 3, v{T+1}
    v_add_u32 v{RT}, s{RING}, v{T+1}
    v_xor_b32 v{RT+1}, 32, v{RT}
    v_xor_b32 v{RT+2}, 64, v{RT}
    v_xor_b32 v{RT+3}, 0x60, v{RT}
    v_bfe_u32 v{T+5}, v{T+6}, 1, 2
    v_lshl_or_b32 v{T+5}, v{T+4}, 2, v{T+5}
    v_lshlrev_b32 v{T+5}, 3, v{T+5}
    v_lshl_add_u32 v{WVA}, v{T+6}, 7, v{T+5}
    v_lshrrev_b32 v{T+5}, 3, v{LANE}
    v_and_b32 v{T+5}, 6, v{T+5}
    v_xor_b32 v{T+5}, v{T+5}, v{T+7}
    v_lshlrev_b32 v{T+5}, 4, v{T+5}
    v_lshl_add_u32 v{T+5}, v{T+7}, 7, v{T+5}
    v_add_u32 v{EPV}, s{RING}, v{T+5}
    v_mov_b32 v{MA+1}, 0x00003f80
    v_mov_b32 v{MA+2}, 0
    v_mov_b32 v{MA+3}, 0
    v_mov_b32 v{MB}, 0
    v_mov_b32 v{MB+1}, 0
    v_mov_b32 v{MB+2}, 0
    v_mov_b32 v{MB+3}, 0
    v_cvt_f32_u32 v{T+5}, v{T+7}            ; j' = l&7
    v_mov_b32 v{T+6}, 0x71800000            ; BIG = 2^100
    v_mul_f32 v{T+7}, v{T+5}, v{T+6}
    v_mul_f32 v{T+5}, v{T+5}, v{T+7}
    v_mul_f32 v{T+7}, -2.0, v{T+7}
    s_mov_b32 exec_lo, 0xff0000ff
    s_mov_b32 exec_hi, 0
    v_cvt_pk_bf16_f32 v{MB}, v{T+6}, v{T+7}
    v_cvt_pk_bf16_f32 v{MB+1}, v{T+5}, 0
    s_mov_b64 exec, -1""")
    for r in range(16):
        a(f'    v_mov_b32 v{ACC+r}, 0')
    for r in range(8):
        a(f'    v_mov_b32 v{QLO+r}, 0')
    for r in range(4, 8):
        a(f'    v_mov_b32 v{EN+r}, {EMPTY}')
    a(f"""
    s_mov_b32 s{POLLN}, 0
    s_mov_b32 s{KTHR}, 0x400000
    s_mov_b32 s{KFULL}, {FULLM}
    s_mov_b64 {sp(S0)}, -1
    s_mov_b64 {sp(S1)}, 0
""")
    if xw in (1, 3):
        wstage(1 if xw == 1 else 3)
    a(f"""
    s_waitcnt vmcnt(0) lgkmcnt(0)
    s_barrier
    buffer_load_dwordx4 {vr(EN,4)}, v{LDV}, {sq(SWS)}, s{SEGB} offen{lf}
    s_mov_b64 exec, {sp(LOM)}
    ds_read_b128 {vr(QLO,4)}, v{XNA}
    ds_read_b128 {vr(QLO+4,4)}, v{XNA+1}
    s_mov_b64 exec, -1""")
    dreg = [QHI, QHI+4, S, S+4]
    for blk in range(4):
        for ks in range(2):
            for h in range(2):
                a(f'    ds_read_b64_tr_b16 {vr(XA+blk*8+ks*4+h*2,2)}, v{WQA+blk} offset:{(32*ks+4*h)*128}')
        if blk == 2:
            a('    s_waitcnt lgkmcnt(8)')
    for blk in range(4):
        a(f'    s_waitcnt lgkmcnt({min(8, 12-4*blk) if blk else 12})')
        a(f'    v_mfma_f32_16x16x32_bf16 {vr(dreg[blk],4)}, {vr(XA+blk*8,4)}, {vr(QLO,4)}, 0')
        a(f'    v_mfma_f32_16x16x32_bf16 {vr(dreg[blk],4)}, {vr(XA+blk*8+4,4)}, {vr(QLO+4,4)}, {vr(dreg[blk],4)}')
    def qfinish():
        a(f'    s_mov_b32 s{X0}, 0x{f32bits(-1.4426950408889634/8):08x}')
        a(f'    s_mov_b32 s{X0+1}, s{X0}')
        a('    s_nop 1')
        for blk in range(4):
            a(f'    v_pk_mul_f32 {vr(dreg[blk],2)}, {vr(dreg[blk],2)}, {sp(X0)}')
            a(f'    v_pk_mul_f32 {vr(dreg[blk]+2,2)}, {vr(dreg[blk]+2,2)}, {sp(X0)}')
        for blk in range(4):
            a(f'    v_cvt_pk_bf16_f32 v{QLO+2*blk}, v{dreg[blk]}, v{dreg[blk]+1}')
            a(f'    v_cvt_pk_bf16_f32 v{QLO+2*blk+1}, v{dreg[blk]+2}, v{dreg[blk]+3}')
        for r in range(8):
            a(f'    v_mov_b32_dpp v{QHI+r}, v{QLO+r} row_ror:8 row_mask:0xf bank_mask:0xf')
    qdef = opt.get('qdef', 0)
    if not qdef:
        qfinish()
    stamp(5)
    def check(h, dst):
        for r in range(4):
            a(f'    v_xor_b32 v{EN+4*h+r}, s{TAG+r}, v{EN+4*h+r}')
        a(f'''
    v_or3_b32 v{T}, v{EN+4*h}, v{EN+4*h+1}, v{EN+4*h+2}
    v_or_b32 v{T}, v{T}, v{EN+4*h+3}
    v_cmp_le_u32 {dst}, s{KTHR}, v{T}''')
    def brank(r, base, skip=None):
        m = VM + 2*r
        a(f'''
    v_cmp_ne_u32 {sp(m)}, s{SEMPTY}, v{EN+r}
    v_and_b32 v{G4+r}, 15, v{EN+r}
    v_lshlrev_b32 v{G4+r}, 2, v{G4+r}
    s_mov_b64 exec, {sp(m)}''')
        if skip:
            a(f'    s_cbranch_execz {skip}')
        a(f'''
    ds_add_rtn_u32 v{RK+r}, v{G4+r}, v{FOUR} offset:{L_BCNT}
    s_mov_b64 exec, {base}''')
    def bput(r):
        a(f'''
    s_mov_b64 exec, {sp(VM+2*r)}
    ds_write_b32 v{RK+r}, v{EN+r}''')
    rare = []
    def rankwords(ws):
        for r in ws:
            brank(r, sp(FR))
        for r in ws:
            a(f'    s_waitcnt lgkmcnt({len(ws)-1})')
            bput(r)
    def sort_rest():
        a(f'''
    v_min3_u32 v{T}, v{EN+1}, v{EN+2}, v{EN+3}
    v_med3_u32 v{T+1}, v{EN+1}, v{EN+2}, v{EN+3}
    v_max3_u32 v{EN+3}, v{EN+1}, v{EN+2}, v{EN+3}
    v_mov_b32 v{EN+1}, v{T}
    v_mov_b32 v{EN+2}, v{T+1}''')
    band = opt.get('band', 0)
    B1 = 64
    sw = opt.get('sw', 4)
    def absorb0(tag, nw=4):
        check(0, 'vcc')
        a(f'''
    s_wqm_b64 vcc, vcc
    s_andn2_b64 {sp(FR)}, {sp(S0)}, vcc
    s_mov_b64 {sp(S0)}, vcc
    s_mov_b64 exec, vcc
    s_cbranch_execz Z_nr{tag}
    s_add_u32 s{POLLN}, s{POLLN}, 1
    s_cmp_gt_u32 s{POLLN}, {opt.get('pollmax', 2000)}
    s_cbranch_scc1 Z_give{tag}
    buffer_load_dwordx4 {vr(EN,4)}, v{LDV}, {sq(SWS)}, s{SEGB} offen{lf}
Z_nr{tag}:
    s_mov_b64 exec, {sp(FR)}
    s_cbranch_execz Z_done{tag}
    v_cmp_ne_u32 {sp(N1)}, s{SEMPTY}, v{EN+3}
    v_cmp_eq_u32 vcc, s{KFULL}, v{EN}
    s_and_b64 {sp(N1)}, {sp(N1)}, {sp(K88)}
    s_wqm_b64 exec, {sp(N1)}
    {'s_mov_b64 exec, 0' if opt.get('x_noh1') else ''}
    s_cbranch_execz Z_nh{tag}
    s_or_b64 {sp(S1)}, {sp(S1)}, exec
    buffer_load_dwordx4 {vr(EN+4,4)}, v{H1V}, {sq(SWS)}, s{H1SO} offen{lf}
Z_nh{tag}:
    s_cbranch_vccnz Z_full{tag}
Z_rank{tag}:
    s_mov_b64 exec, {sp(FR)}''')
        if opt.get('srt') and tag == 'a':
            a(f'''
    v_min_u32 v{T}, v{EN}, v{EN+1}
    v_max_u32 v{EN+1}, v{EN}, v{EN+1}
    v_min_u32 v{T+1}, v{EN+2}, v{EN+3}
    v_max_u32 v{EN+3}, v{EN+2}, v{EN+3}
    v_min_u32 v{EN}, v{T}, v{T+1}
    v_max_u32 v{EN+2}, v{T}, v{T+1}''')
            if opt['srt'] == 2 and nw > 1:
                sort_rest()
        if band and tag == 'a':
            sort_rest()
            a(f'    s_mov_b32 s{X0}, {band << 7}')
            for r in range(2):
                a(f'''
    v_cmp_gt_u32 {sp(B1+2*r)}, s{X0}, v{EN+r}
    v_and_b32 v{G4+r}, 15, v{EN+r}
    v_lshlrev_b32 v{G4+r}, 2, v{G4+r}
    s_mov_b64 exec, {sp(B1+2*r)}
    ds_add_rtn_u32 v{RK+r}, v{G4+r}, v{FOUR} offset:{L_BCNT}
    s_mov_b64 exec, {sp(FR)}''')
            for r in range(2):
                a(f'''
    s_waitcnt lgkmcnt(1)
    s_mov_b64 exec, {sp(B1+2*r)}
    ds_write_b32 v{RK+r}, v{EN+r}''')
        else:
            rankwords(list(range(nw)))
        a(f'Z_done{tag}:')
        rare.append(tag)
    def absorb1():
        check(1, 'vcc')
        a(f'''
    s_andn2_b64 {sp(FR)}, {sp(S1)}, vcc
    s_mov_b64 {sp(S1)}, vcc
    s_mov_b64 exec, vcc
    s_cbranch_execz Y_nr
    s_add_u32 s{POLLN}, s{POLLN}, 1
    s_cmp_gt_u32 s{POLLN}, 1000000
    s_cbranch_scc1 Y_lost
    buffer_load_dwordx4 {vr(EN+4,4)}, v{H1V}, {sq(SWS)}, s{H1SO} offen{lf}
Y_nr:
    s_mov_b64 exec, {sp(FR)}''')
        for r in range(4, 8):
            brank(r, sp(FR), 'Y_done')
            a('    s_waitcnt lgkmcnt(0)')
            bput(r)
            a(f'    s_mov_b64 exec, {sp(FR)}')
        a('Y_done:')
    def dma(ereg, slot):
        for q in range(4):
            if q == 0:
                a(f'    s_mov_b32 m0, s{RING}' if slot == 0 else f'    s_add_u32 m0, s{RING}, 4096')
            else:
                a('    s_add_u32 m0, m0, 1024')
            a(f'    v_and_or_b32 v{ereg+q}, v{ereg+q}, s{AMASK}, v{CHK}')
            a(f'    buffer_load_dwordx4 v{ereg+q}, {sq(SX)}, 0 offen{gf} lds')
    def complete(reg, no):
        a(f"""
    v_max3_u32 v{T}, v{reg}, v{reg+1}, v{reg+2}
    v_max_u32 v{T}, v{T}, v{reg+3}
    v_cmp_eq_u32 vcc, s{SEMPTY}, v{T}
    s_cbranch_vccnz {no}""")
    a(f"""
    s_mov_b32 s{ISSUED}, 0
    v_mov_b32 v{EA}, v{EA0}
    v_mov_b32 v{MAD}, v{MAD0}
    s_waitcnt vmcnt(0)""")
    stamp(6)
    a('    s_setprio 3')
    absorb0('a', sw)
    settle = f"""
    s_or_b64 exec, {sp(S0)}, {sp(S1)}
    s_cselect_b32 s{OWNP}, 1, 0
    s_cbranch_execnz G_pend
    s_mov_b64 exec, 1
    ds_add_u32 v{ZERO}, v{FOUR} offset:{L_DONE}
G_pend:
    s_mov_b64 exec, -1
    s_waitcnt lgkmcnt(0)"""
    if sw == 4:
        a(settle)
    else:
        a(f"""
    s_mov_b32 s{OWNP}, 2
    s_mov_b64 exec, -1
    s_waitcnt lgkmcnt(0)""")
    a('    s_barrier')
    stamp(7)
    if opt.get('hw', 16) < 16:
        a(f"""
    s_cmp_lt_u32 s{WID}, {opt['hw']}
    s_cbranch_scc1 G_more""")
        if sw < 4:
            a(f'    s_call_b64 {sp(LINK)}, L_s2')
        if opt.get('hw2', 0):
            a(f"""
    s_cmp_lt_u32 s{WID}, {opt['hw2']}
    s_cbranch_scc1 G_more""")
        a(f"""
    s_cmp_eq_u32 s{OWNP}, 0
    s_cbranch_scc1 G_more
    s_waitcnt vmcnt(0)
    s_call_b64 {sp(LINK)}, L_late""")
    a(f"""
G_more:
    ds_read_b32 v{T+1}, v{ZERO} offset:{L_DONE}
    ds_read_b128 {vr(EE,4)}, v{EA0}
    ds_read_b128 {vr(T+4,4)}, v{EA0} offset:128
    s_cmp_eq_u32 s{ISSUED}, 1
    s_waitcnt lgkmcnt(0)
    s_cbranch_scc1 G_m1""")
    complete(EE, 'G_short')
    dma(EE, 0)
    a(f"""
    s_mov_b32 s{ISSUED}, 1
G_m1:""")
    complete(T+4, 'G_short')
    dma(T+4, 1)
    a(f"""
    s_mov_b32 s{ISSUED}, 2""")
    if sw < 4:
        a(f"""
    s_cmp_lg_u32 s{OWNP}, 2
    s_cbranch_scc1 G_go
    s_call_b64 {sp(LINK)}, L_s2""")
    a(f"""
G_go:
    s_setprio {opt.get('p0', 2)}""")
    if qdef:
        qfinish()
    a(f"""
    s_mov_b32 s{NT}, {opt.get('pb', 4)}
    s_mov_b32 s{NTI}, 0
B_go:
    ds_read_b32 v{M0R}, v{MAD}
    ds_read_b128 {vr(EE,4)}, v{EA} offset:256
    s_mov_b32 s{TT}, 1                      ; t+1
    s_waitcnt lgkmcnt(1)
    v_and_b32 v{M0R}, 0x70, v{M0R}""")
    stamp(8)
    a('B_loop:')
    pk = opt.get('pk', 0)
    th = opt.get('th', 242)
    th = (th // 100, th // 10 % 10, th % 10)
    def body(slot):
        so = slot * 4096
        mcur, mnext = (M0R, M1R) if slot == 0 else (M1R, M0R)
        eo = slot * 128
        pm = opt.get('prio', 1)
        if pm == 1 and slot == 0:
            a(f"""
    s_cmp_lt_u32 s{TT}, {th[0]}
    s_cbranch_scc1 B_p{slot}
    s_setprio 1
    s_cmp_lt_u32 s{TT}, 4
    s_cbranch_scc1 B_p{slot}
    s_sub_u32 s{X0}, s{NT}, s{TT}
    s_cmp_ge_u32 s{X0}, {th[2]}
    s_cbranch_scc1 B_p{slot}
    s_setprio 0
B_p{slot}:""")
        if pm == 3 and slot == 0:
            a(f"""
    s_cmp_lt_u32 s{TT}, {th[0]}
    s_cbranch_scc1 B_p{slot}
    s_setprio 1
    s_cmp_lt_u32 s{TT}, {th[1]}
    s_cbranch_scc1 B_p{slot}
    s_setprio 0
B_p{slot}:""")
        if pm == 4:
            a(f"""
    s_cmp_eq_u32 s{NTI}, 0
    s_cbranch_scc1 B_p{slot}
    s_sub_u32 s{X0}, s{NT}, s{TT}
    s_setprio 2
    s_cmp_ge_u32 s{X0}, {th[1]}
    s_cbranch_scc1 B_p{slot}
    s_setprio 1
    s_cmp_ge_u32 s{X0}, {th[2]}
    s_cbranch_scc1 B_p{slot}
    s_setprio 0
B_p{slot}:""")
        if pm == 2:
            a(f"""
    s_cmp_lt_u32 s{TT}, 4
    s_cbranch_scc1 B_q{slot}
    s_sub_u32 s{X0}, s{NT}, s{TT}
    s_setprio 3
    s_cmp_ge_u32 s{X0}, 3
    s_cbranch_scc1 B_p{slot}
    s_setprio 2
    s_cmp_ge_u32 s{X0}, 2
    s_cbranch_scc1 B_p{slot}
B_q{slot}:
    s_setprio 1
B_p{slot}:""")
        a(f'''
    ds_read_b32 v{MA}, v{mcur} offset:{L_LUT}
    ds_read_b32 v{mnext}, v{MAD} offset:{eo+128}
    s_cmp_lt_u32 s{TT}, s{NT}
    s_cbranch_scc1 B_w4_{slot}
    s_waitcnt vmcnt(0)
B_w4_{slot}:
    s_cmp_lg_u32 s{OWNP}, 0
    s_waitcnt vmcnt(4)
    s_cbranch_scc0 B_rd_{slot}
    s_call_b64 {sp(LINK)}, L_late
B_rd_{slot}:''')
        if opt.get('tprof'):
            a(f'''
    s_memrealtime s[98:99]
    s_min_u32 s100, s{TT}, 10
    s_waitcnt lgkmcnt(0)
    s_mov_b32 m0, s100
    v_writelane_b32 v{ATK}, s98, m0''')
        a(f'''
    ds_read_b128 {vr(XA,4)}, v{RA0} offset:{so}
    ds_read_b128 {vr(XA+4,4)}, v{RA1} offset:{so}
    ds_read_b128 {vr(XA+8,4)}, v{RA0} offset:{so+2048}
    ds_read_b128 {vr(XA+12,4)}, v{RA1} offset:{so+2048}''')
        for fb in range(4):
            a(f'    ds_read_b64_tr_b16 {vr(XT+4*fb,2)}, v{RT+fb} offset:{so}')
            a(f'    ds_read_b64_tr_b16 {vr(XT+4*fb+2,2)}, v{RT+fb} offset:{so+2048}')
        a(f'''
    s_add_u32 s{TT}, s{TT}, 1               ; t+2
    s_waitcnt lgkmcnt(12)
    {f'v_mfma_f32_16x16x16_bf16 {vr(S,4)}, {vr(MA,2)}, {vr(MB,2)}, 0' if opt.get('m16') else f'v_mfma_f32_16x16x32_bf16 {vr(S,4)}, {vr(MA,4)}, {vr(MB,4)}, 0'}
    v_and_b32 v{mnext}, 0x70, v{mnext}
    s_waitcnt lgkmcnt(11)
    v_mfma_f32_16x16x32_bf16 {vr(S,4)}, {vr(XA,4)}, {vr(QLO,4)}, {vr(S,4)}
    s_waitcnt lgkmcnt(10)
    v_mfma_f32_16x16x32_bf16 {vr(S,4)}, {vr(XA+4,4)}, {vr(QLO+4,4)}, {vr(S,4)}
    s_waitcnt lgkmcnt(9)
    v_mfma_f32_16x16x32_bf16 {vr(S,4)}, {vr(XA+8,4)}, {vr(QHI,4)}, {vr(S,4)}
    s_waitcnt lgkmcnt(8)
    v_mfma_f32_16x16x32_bf16 {vr(S,4)}, {vr(XA+12,4)}, {vr(QHI+4,4)}, {vr(S,4)}
    s_waitcnt lgkmcnt(0)
    s_cmp_lt_u32 s{TT}, s{NTI}
    s_cbranch_scc0 B_skip_{slot}
B_dma_{slot}:''')
        dma(EE, slot)
        a(f'''
    ds_read_b128 {vr(EE,4)}, v{EA} offset:{eo+384}
B_cont_{slot}:''')
        for r in range(4):
            a(f'    v_exp_f32 v{S+r}, v{S+r}')
        if slot == 1:
            a(f'    v_add_u32 v{EA}, 256, v{EA}')
            a(f'    v_add_u32 v{MAD}, 256, v{MAD}')
        if pk:
            a(f'    v_pk_add_f32 {vr(S,2)}, {vr(S,2)}, 1.0 op_sel_hi:[1,0]')
            a(f'    v_pk_add_f32 {vr(S+2,2)}, {vr(S+2,2)}, 1.0 op_sel_hi:[1,0]')
        else:
            for r in range(4):
                a(f'    v_add_f32 v{S+r}, 1.0, v{S+r}')
        for r in range(4):
            a(f'    v_rcp_f32 v{S+r}, v{S+r}')
        a(f'''
    v_cvt_pk_bf16_f32 v{PP}, v{S}, v{S+1}
    s_cmp_gt_u32 s{TT}, s{NT}
    v_cvt_pk_bf16_f32 v{PP+1}, v{S+2}, v{S+3}
    s_nop 0
    v_mov_b32_dpp v{PP+2}, v{PP} row_ror:8 row_mask:0xf bank_mask:0xf
    v_mov_b32_dpp v{PP+3}, v{PP+1} row_ror:8 row_mask:0xf bank_mask:0xf
    s_nop 1''')
        for fb in range(4):
            a(f'    v_mfma_f32_16x16x32_bf16 {vr(ACC+4*fb,4)}, {vr(XT+4*fb,4)}, {vr(PP,4)}, {vr(ACC+4*fb,4)}')
        a('    s_cbranch_scc1 B_loopdone' if slot == 0 else '    s_cbranch_scc0 B_loop')
    n0 = len(a.lines)
    body(0)
    body(1)
    drop = []
    if opt.get('x_nords'): drop += ['ds_read_b128 v[4', 'ds_read_b128 v[5', 'ds_read_b64_tr']
    if opt.get('x_nomfma'): drop += ['v_mfma']
    if opt.get('x_novalu'): drop += ['v_exp', 'v_rcp', 'v_add_f32', 'v_cvt', 'v_mov_b32_dpp', 'v_pk_add']
    if opt.get('bench'): drop += [f'v_add_u32 v{EA}, 256', f'v_add_u32 v{MAD}, 256']
    a.lines[n0:] = [l for l in a.lines[n0:] if not any(l.strip().startswith(d) for d in drop)]
    a(f'''
B_loopdone:
    s_cmp_lg_u32 s{MODE}, 0
    s_cbranch_scc1 C_next
B_epi:''')
    if opt.get('epi3'):
        a('    s_setprio 3')
    stamp(9)
    epi = opt.get('epi', 1)
    wve = opt.get('wve', 0)
    wv = [XA, XA+8, QLO, QHI]
    DO = XT
    def wvread(blks):
        for blk in blks:
            ad = WVA if blk == 0 else T+blk
            for ks in range(2):
                for h in range(2):
                    a(f'    ds_read_b64_tr_b16 {vr(wv[blk]+ks*4+h*2,2)}, v{ad} offset:{L_WV+(32*ks+16*h)*128}')
    def wvfirst():
        a(f"""
    v_xor_b32 v{T+1}, 8, v{WVA}
    v_xor_b32 v{T+2}, 16, v{WVA}
    v_xor_b32 v{T+3}, 24, v{WVA}""")
        wvread([0, 1, 2])
    if wve:
        a(f"""
    s_cmp_lg_u32 s{ISSUED}, 3
    s_cbranch_scc0 E_have""")
    wvfirst()
    a('E_have:')
    a('    s_waitcnt lgkmcnt(8)')
    wvread([3])
    if epi:
        a(f"""
    v_xor_b32 v{T+6}, 16, v{EPV}
    v_lshl_add_u32 v{T+5}, v{LANE}, 4, s{RING}""")
    else:
        a(f"""
    v_and_b32 v{T+4}, 7, v{LANE}
    v_lshlrev_b32 v{T+4}, 19, v{T+4}
    v_lshrrev_b32 v{T+5}, 4, v{LANE}
    v_lshl_add_u32 v{T+4}, v{T+5}, 5, v{T+4}
    s_lshl_b32 s{X0}, s{WID}, 15
    s_lshl_b32 s{X0+1}, s2, 7
    s_add_u32 s{PFT}, s{X0}, s{X0+1}""")
    for r in range(8):
        a(f'    v_cvt_pk_bf16_f32 v{S+r}, v{ACC+2*r}, v{ACC+2*r+1}')
    a('    s_nop 0')
    for blk in range(4):
        a(f'    s_waitcnt lgkmcnt({min(8, 12-4*blk)})')
        a(f'    v_mfma_f32_16x16x32_bf16 {vr(DO+4*blk,4)}, {vr(wv[blk],4)}, {vr(S,4)}, 0')
        a(f'    v_mfma_f32_16x16x32_bf16 {vr(DO+4*blk,4)}, {vr(wv[blk]+4,4)}, {vr(S+4,4)}, {vr(DO+4*blk,4)}')
    a(f'''
    s_cmp_lg_u32 s{WID}, 15
    s_cbranch_scc1 K_no2
    s_mov_b64 exec, 1
    s_cmp_lg_u32 s{GAVE}, 0
    s_cbranch_scc1 K_ticket
K_adv:
    v_mov_b32 v{T}, s{EPOCH}
    global_store_dword v{ZERO}, v{T}, s[18:19]
K_skip:
    s_mov_b64 exec, -1
K_no2:
    s_nop 2''')
    for r in range(4):
        a(f'    v_cvt_pk_bf16_f32 v{XA+r}, v{DO+2*r}, v{DO+2*r+1}')
    a(f'    s_mov_b64 exec, {sp(LOM)}')
    if epi:
        a(f'    ds_write_b128 v{EPV}, {vr(XA,4)}')
    else:
        a(f'    buffer_store_dwordx4 {vr(XA,4)}, v{T+4}, {sq(SOUT)}, s{PFT} offen{of}')
    for r in range(4, 8):
        a(f'    v_cvt_pk_bf16_f32 v{XA+r}, v{DO+2*r}, v{DO+2*r+1}')
    if epi:
        a(f'''
    ds_write_b128 v{T+6}, {vr(XA+4,4)}
    s_mov_b64 exec, -1
    ds_read_b128 {vr(XA+8,4)}, v{T+5}
    s_waitcnt lgkmcnt(0)
    buffer_store_dwordx4 {vr(XA+8,4)}, v{ROWOFF}, {sq(SOUT)}, 0 offen{of}''')
    else:
        a(f'''
    buffer_store_dwordx4 {vr(XA+4,4)}, v{T+4}, {sq(SOUT)}, s{PFT} offen offset:16{of}
    s_mov_b64 exec, -1''')
    if st:
        stamp(10)
        a('    s_waitcnt vmcnt(0)')
        stamp(11)
        if opt.get('tprof'):
            a(f'''
    s_mov_b64 exec, 0x7fe
    v_mov_b32 v{STV}, v{ATK}
    s_mov_b64 exec, -1''')
        a(f'''
    s_add_u32 s{X0}, s18, {STAMP_OFF}
    s_addc_u32 s{X0+1}, s19, 0
    s_lshl_b32 s{X0+2}, s2, 4
    s_add_u32 s{X0+2}, s{X0+2}, s{WID}
    s_lshl_b32 s{X0+2}, s{X0+2}, 6
    v_lshl_add_u32 v{T}, v{LANE}, 2, s{X0+2}
    s_mov_b64 exec, 0xffff
    global_store_dword v{T}, v{STV}, {sp(X0)}''')
        if 'amp' in opt:
            a(f'''
    v_readlane_b32 s60, v{STV}, 0
    v_readlane_b32 s61, v{STV}, {opt['amp']}
    v_readlane_b32 s62, v{STV}, 11
    s_sub_u32 s61, s61, s60
    s_mul_i32 s61, s61, {opt.get('ampk', 2)}
    s_min_u32 s61, s61, 20000
D_spin:
    s_memrealtime s[98:99]
    s_waitcnt lgkmcnt(0)
    s_sub_u32 s98, s98, s62
    s_cmp_lt_u32 s98, s61
    s_cbranch_scc1 D_spin''')
    a(f'''
L_end:
    s_endpgm
''')
    for slot in range(2):
        a(f'''
B_skip_{slot}:
    s_cmp_lg_u32 s{NTI}, 0
    s_cbranch_scc1 B_idle_{slot}
    s_mov_b32 s{RET}, {slot}
    s_cmp_ge_u32 s{TT}, {opt.get('pb', 4)}
    s_cbranch_scc1 F_final''')
        complete(EE, f'B_again_{slot}')
        a(f'''
    s_branch B_dma_{slot}
B_again_{slot}:
    ds_read_b128 {vr(EE,4)}, v{EA} offset:{slot*128+256}
    s_waitcnt lgkmcnt(0)''')
        complete(EE, 'F_final')
        a(f'''
    s_branch B_dma_{slot}
F_ret_{slot}:
    ds_read_b128 {vr(EE,4)}, v{EA} offset:{slot*128+256}
    s_waitcnt lgkmcnt(0)
    s_cmp_lt_u32 s{TT}, s{NT}
    s_cbranch_scc1 B_dma_{slot}
B_idle_{slot}:''')
        if wve:
            a(f'''
    s_cmp_le_u32 s{TT}, s{NT}
    s_cbranch_scc1 B_id2_{slot}
    s_cmp_lg_u32 s{MODE}, 0
    s_cbranch_scc1 B_id2_{slot}
    s_mov_b32 s{ISSUED}, 3''')
            wvfirst()
            a(f'    s_branch B_cont_{slot}')
            a(f'B_id2_{slot}:')
        a(f'''
    s_nop 7
    s_branch B_cont_{slot}''')
    a(f"""
L_late:
    s_mov_b64 exec, {sp(S1)}
    s_cbranch_execz Y_done""")
    absorb1()
    a(f"""
    s_mov_b64 exec, {sp(S0)}
    s_cbranch_execz Z_doneb""")
    absorb0('b')
    a(f"""
    s_or_b64 exec, {sp(S0)}, {sp(S1)}
    s_cbranch_execnz L_ret
    s_mov_b32 s{OWNP}, 0
    s_mov_b64 exec, 1
    ds_add_u32 v{ZERO}, v{FOUR} offset:{L_DONE}""")
    if st:
        a(f'    v_writelane_b32 v{STV}, s{POLLN}, 15')
        a('    s_memrealtime s[98:99]')
        a('    s_waitcnt lgkmcnt(0)')
        a(f'    v_writelane_b32 v{STV}, s98, 7')
    a(f"""
L_ret:
    s_mov_b64 exec, -1
    s_waitcnt lgkmcnt(0)
    s_setpc_b64 {sp(LINK)}
G_short:
    v_readfirstlane_b32 s{X0}, v{T+1}
    s_cmp_eq_u32 s{OWNP}, 0
    s_cbranch_scc1 G_s2""")
    if sw < 4:
        a(f"""
    s_cmp_lg_u32 s{OWNP}, 2
    s_cbranch_scc1 G_s1
    s_call_b64 {sp(LINK)}, L_s2
    s_branch G_more
L_s2:
    s_mov_b64 exec, {sp(FR)}""")
        if opt.get('srt') == 2 and sw == 1:
            sort_rest()
        if band:
            for r in range(2):
                a(f'''
    v_cmp_ne_u32 {sp(VM+2*r)}, s{SEMPTY}, v{EN+r}
    s_andn2_b64 {sp(VM+2*r)}, {sp(VM+2*r)}, {sp(B1+2*r)}
    s_mov_b64 exec, {sp(VM+2*r)}
    ds_add_rtn_u32 v{RK+r}, v{G4+r}, v{FOUR} offset:{L_BCNT}
    s_mov_b64 exec, {sp(FR)}''')
            brank(2, sp(FR))
            brank(3, sp(FR))
            for r in range(4):
                a('    s_waitcnt lgkmcnt(3)')
                bput(r)
        else:
            rankwords(list(range(sw, 4)))
        a(settle)
        a(f'    s_setpc_b64 {sp(LINK)}')
        a('G_s1:')
    a(f"""
    s_waitcnt vmcnt(0)
    s_call_b64 {sp(LINK)}, L_late
    s_branch G_more
G_s2:
    s_sleep 1
    s_cmp_lt_u32 s{X0}, 64
    s_cbranch_scc1 G_more""")
    if qdef:
        qfinish()
    a(f'''
B_counts:
    s_mov_b32 s{RET}, 2
F_final:
    s_cmp_eq_u32 s{OWNP}, 0
    s_cbranch_scc1 F_spin
    s_waitcnt vmcnt(0)
    s_call_b64 {sp(LINK)}, L_late
    s_branch F_final
F_spin:
    ds_read_b32 v{T+1}, v{CNTA} offset:{L_BCNT}
    s_waitcnt lgkmcnt(0)
    v_readlane_b32 s{X0}, v{T+1}, 26
    v_sub_u32 v{T+3}, v{T+1}, v{LBASE}
    s_cmp_lt_u32 s{X0}, 64
    s_cbranch_scc1 F_spin
    v_cmp_ne_u32 {sp(X0)}, 0, v{T+1}
    v_cmp_lt_u32 vcc, {GSTRIDE}, v{T+3}
    v_readlane_b32 s{NT}, v{T+3}, s{WID}
    s_and_b32 s{X0}, s{X0}, 0x1ff0000
    s_and_b32 s{X0+1}, vcc_lo, 0xffff
    s_or_b32 s{NTI}, s{X0+1}, s{X0}
    s_or_b32 s{NTI}, s{NTI}, s{MODE}
    s_cbranch_scc1 C_slowcnt
B_cntok:
    s_add_u32 s{NT}, s{NT}, 127
    s_lshr_b32 s{NT}, s{NT}, 7              ; tiles
    s_mov_b32 s{NTI}, s{NT}
    s_cbranch_scc0 B_loopdone
    s_cmp_eq_u32 s{RET}, 0
    s_cbranch_scc1 F_ret_0
    s_cmp_eq_u32 s{RET}, 1
    s_cbranch_scc1 F_ret_1
    s_branch B_first
K_ticket:
    v_mov_b32 v{T+1}, 1
    global_atomic_add v{ATK}, v{ZERO}, v{T+1}, s[16:17] sc0 sc1
    s_waitcnt vmcnt(0)
    v_readfirstlane_b32 s{X0}, v{ATK}
    s_cmp_eq_u32 s{X0}, {NWG-1}
    s_cbranch_scc1 K_adv
    s_branch K_skip
B_first:
    ds_read_b128 {vr(XA,4)}, v{EA}
    ds_read_b128 {vr(XA+4,4)}, v{EA} offset:128
    s_waitcnt lgkmcnt(0)
    s_cmp_eq_u32 s{ISSUED}, 1
    s_cbranch_scc1 B_f1''')
    dma(XA, 0)
    a(f'''
B_f1:
    s_cmp_lt_u32 s{NT}, 2
    s_cbranch_scc1 B_go''')
    dma(XA+4, 1)
    a('    s_branch B_go')
    def drop_lines():
        for r in range(4):
            a(f'    v_mov_b32 v{EN+r}, {EMPTY}')
        a(f'''
    v_lshrrev_b32 v{T}, 2, v0
    v_lshrrev_b32 v{T+1}, 5, v{T}
    v_lshlrev_b32 v{T+1}, 2, v{T+1}
    v_lshlrev_b32 v{T}, v{T}, 1
    ds_or_b32 v{T+1}, v{T} offset:{L_RESC}''')
    a(f'''
A_full:
    s_wqm_b64 exec, {sp(S0)}
    v_mov_b32 v40, {FULLM}
    v_mov_b32 v41, {EMPTY}
    v_mov_b32 v42, {EMPTY}
    v_mov_b32 v43, {EMPTY}
    s_mov_b64 exec, -1
    s_branch A_pub''')
    for tag in rare:
        a(f'''
Z_give{tag}:
    ds_write_b32 v{ZERO}, v{FOUR} offset:{L_GAVE}''')
        drop_lines()
        a(f'''
    s_mov_b64 {sp(S0)}, 0
    s_mov_b32 s{POLLN}, 0
    s_branch Z_nr{tag}
Z_full{tag}:
    s_mov_b64 exec, vcc''')
        drop_lines()
        a(f'    s_branch Z_rank{tag}')
    a('Y_lost:')
    for r in range(4, 8):
        a(f'    v_mov_b32 v{EN+r}, {EMPTY}')
    a(f'''
    s_mov_b64 {sp(S1)}, 0
    s_branch Y_nr
C_slowcnt:
    s_cmp_lg_u32 s{MODE}, 0
    s_cbranch_scc1 C_careful''')
    for k in range(8):
        a(f'    v_readlane_b32 s{RESC+k}, v{T+1}, {16+k}')
    a(f'''
    v_readlane_b32 s{GAVE}, v{T+1}, 25
    s_mov_b32 s{MODE}, 2
    s_cmp_lg_u32 s{X0+1}, 0
    s_cbranch_scc1 C_redo
    s_mov_b32 s{MODE}, 1
    s_branch B_cntok
C_redo:
    ; a list ran over its neighbour: forget what was accumulated and redo all entries carefully''')
    for r in range(16):
        a(f'    v_mov_b32 v{ACC+r}, 0')
    a(f'''
    s_branch C_next
C_careful:
    s_min_u32 s{NT}, s{NT}, {GSTRIDE}
    s_bitcmp1_b32 s{X0}, 24
    s_cselect_b32 s{MODE}, 2, 1
    s_branch B_cntok
C_next:
    s_setprio 0
    s_mov_b32 s{ISSUED}, 0
    s_waitcnt vmcnt(0) lgkmcnt(0)
    s_barrier
    s_cmp_eq_u32 s{MODE}, 2
    s_cbranch_scc1 C_round
    s_mov_b32 s{X0}, -1''')
    for k in range(7, -1, -1):
        a(f'''
    s_ff1_i32_b32 s{X0+1}, s{RESC+k}
    s_add_u32 s{X0+1}, s{X0+1}, {32*k}
    s_cmp_lg_u32 s{RESC+k}, 0
    s_cselect_b32 s{X0}, s{X0+1}, s{X0}''')
    a(f'''
    s_cmp_eq_u32 s{X0}, -1
    s_cbranch_scc1 B_epi
    s_lshr_b32 s{X0+1}, s{X0}, 5
    s_lshl_b32 s{X0+2}, 1, s{X0}''')
    for k in range(8):
        a(f'''
    s_andn2_b32 s{X0+3}, s{RESC+k}, s{X0+2}
    s_cmp_eq_u32 s{X0+1}, {k}
    s_cselect_b32 s{RESC+k}, s{X0+3}, s{RESC+k}''')
    a(f'''
    s_and_b32 s{X0+2}, s{X0}, 31
    s_lshl_b32 s{X0+2}, s{X0+2}, 3
    s_or_b32 s{X0}, s{X0+2}, s{X0+1}
    s_mul_i32 s{X0}, s{X0}, {CH*4}''')
    for k in range(4):
        a(f'''
    buffer_load_dword v{ED+k}, v{T4}, {sq(SDST)}, s{X0} offen
    buffer_load_dword v{ES+k}, v{T4}, {sq(SSRC)}, s{X0} offen
    s_add_u32 s{X0}, s{X0}, 4096''')
    for r in range(4, 8):
        a(f'    v_mov_b32 v{EN+r}, {EMPTY}')
    a(f'    v_mov_b32 v{T+1}, {EMPTY}')
    a('    s_waitcnt vmcnt(0)')
    for k in range(4):
        a(f'''
    v_and_b32 v{T}, 255, v{ED+k}
    v_cmp_eq_u32 vcc, s2, v{T}
    v_lshrrev_b32 v{ED+k}, 8, v{ED+k}
    v_lshl_or_b32 v{ES+k}, v{ES+k}, 7, v{ED+k}''')
        if k == 3:
            a(f'    s_and_b64 vcc, vcc, {sp(M3)}')
        a(f'    v_cndmask_b32 v{EN+k}, v{T+1}, v{ES+k}, vcc')
    a(f'''
C_round:
    v_mov_b32 v{T+4}, {EMPTY}
    v_mov_b32 v{T+5}, {EMPTY}
    v_mov_b32 v{T+6}, {EMPTY}
    v_mov_b32 v{T+7}, {EMPTY}
    ds_write_b128 v{T16}, {vr(T+4,4)} offset:{L_LIST}
    s_cmp_ge_u32 s{WID}, 6
    s_cbranch_scc1 C_i1
    ds_write_b128 v{T16}, {vr(T+4,4)} offset:{L_LIST+16384}
C_i1:
    s_cmp_lg_u32 s{WID}, 12
    s_cbranch_scc1 C_i2
    s_mov_b64 exec, 0xffff
    ds_write_b32 v{CNTA}, v{LBASE} offset:{L_BCNT}
    ds_write_b32 v{ZERO}, v{ZERO} offset:{L_PEND}
    s_mov_b64 exec, -1
C_i2:
    s_waitcnt lgkmcnt(0)
    s_barrier
    s_mov_b32 s{X0+4}, {GSTRIDE//4}
    s_mov_b32 s{X0+5}, {L_LIST+GSTRIDE}''')
    for r in range(8):
        brank(r, '-1')
        a(f'''
    v_mul_u32_u24 v{T+3}, s{X0+4}, v{G4+r}
    v_add_u32 v{T+3}, s{X0+5}, v{T+3}
    s_mov_b64 exec, {sp(VM+2*r)}
    s_waitcnt lgkmcnt(0)
    v_cmp_lt_u32 vcc, v{RK+r}, v{T+3}
    s_and_saveexec_b64 {sp(X0+6)}, vcc
    ds_write_b32 v{RK+r}, v{EN+r}
    v_mov_b32 v{EN+r}, {EMPTY}
    s_andn2_b64 exec, {sp(X0+6)}, exec
    ds_write_b32 v{ZERO}, v{FOUR} offset:{L_PEND}
    s_mov_b64 exec, -1''')
    a(f'''
    v_mov_b32 v{EA}, v{EA0}
    v_mov_b32 v{MAD}, v{MAD0}
    s_waitcnt lgkmcnt(0)
    s_barrier
L_last:
    s_branch B_counts''')
    if opt.get('red'):
        gen_red(a, opt)
    def kd(name, vg, sg):
        a(f'''
.p2align 6
.amdhsa_kernel {name}
  .amdhsa_next_free_vgpr {vg}
  .amdhsa_next_free_sgpr {sg}
  .amdhsa_accum_offset {vg}
  .amdhsa_group_segment_fixed_size 0
  .amdhsa_kernarg_size 64
  .amdhsa_user_sgpr_count 2
  .amdhsa_user_sgpr_kernarg_segment_ptr 1
  .amdhsa_system_sgpr_workgroup_id_x 1
.end_amdhsa_kernel''')
    a('.section .rodata,"a"')
    kd(KNAME, 128, 102)
    if opt.get('red'):
        kd('red_kernel', 32, 48)
    return a.text()

if __name__ == '__main__':
    out = sys.argv[1]
    opt = {}
    for kv in sys.argv[2:]:
        k, v = kv.split('=')
        try:
            v = int(v)
        except ValueError:
            v = '' if v == 'none' else ' ' + v.replace('+', ' ')
        opt[k] = v
    open(out, 'w').write(build(opt))
```

```python
import sys, struct
from gen3 import gen_red

N, E, D = 25000, 800000, 64
NWG = 256
CH = E // NWG
HSTRIDE = 16384 + 128
SEG_OFF = 4096
H1_OFF = 256 * HSTRIDE
WS_USED = SEG_OFF + 3 * H1_OFF
X_BYTES = N * 128
EMPTY = 0x003FFFFF
FULLM = 0x003FFFFE
KNAME = 'standalone__kernel_systems_refs_featgraph__graph_kernel'

L_ACNT = 0
L_BCNT = 1024
L_RESC = 1088
L_PEND = 1120
L_GAVE = 1124
L_DONE = 1128
L_LUT = 1152
L_WV = 2048
L_LIST = 10240
GSTRIDE = 1408
L_RING = 32768
L_XN = 65536
L_WQ = 98304
ISTRIDE = 144
L_IMG = 163840 - 256 * ISTRIDE
LDS = 163840
STAMP_OFF = 0x1000000

def f32bits(x):
    return struct.unpack('<I', struct.pack('<f', x))[0]

class Asm:
    def __init__(self):
        self.lines = []
    def __call__(self, s):
        for ln in s.strip('\n').split('\n'):
            if ln.strip():
                self.lines.append(ln)
    def text(self):
        return '\n'.join(self.lines) + '\n'

def vr(lo, n):
    return f'v[{lo}:{lo+n-1}]'
def sp(lo):
    return f's[{lo}:{lo+1}]'
def sq(lo):
    return f's[{lo}:{lo+3}]'

def srd(a, d, lo, nbytes):
    a(f'    s_mov_b32 s{d}, s{lo}')
    a(f'    s_mov_b32 s{d+1}, s{lo+1}')
    a(f'    s_mov_b32 s{d+2}, {nbytes}')
    a(f'    s_mov_b32 s{d+3}, 0x00020000')

LANE, T4, T16, FOUR, ZERO, ROWOFF, WVA = 1, 2, 3, 4, 5, 6, 7
QLO, QHI, ACC, XA, XT, S, PP, MA, MB, EE = 8, 16, 24, 40, 56, 72, 76, 80, 84, 88
M0R, M1R, RA0, RA1, RT, EA, MAD, CHK, EA0 = 92, 93, 94, 95, 96, 100, 101, 102, 103
T = 104
EN = 112
MAD0, PFD, ATK, STV, CNTA, EPV, LBASE = 120, 121, 122, 123, 124, 125, 126
ED, ES, B4, PS = 40, 44, 48, 52
WD, XN = 56, 60
IMGR, STO, WSA = 68, 69, 70
G4, RK = 40, 48

GAVE = 3
SX, SSRC, SDST, SW, EPOCH, ISSUED, SOUT, SWS = 20, 24, 28, 32, 34, 35, 36, 40
WID, SEGB, AMASK, RING, NT, TT = 44, 45, 46, 47, 48, 49
TAG = 50
SEMPTY, MODE, LOM, M3 = 54, 55, 56, 58
RESC = 60
FR, N1 = 60, 62
VM = 68
X0 = 84
H1SO, KFULL, S0, S1, K88, KTHR, PFT, POLLN, PRIME = 86, 87, 88, 90, 92, 94, 95, 96, 97
NTI, RET = 32, 33
OWNP, LINK = 97, 10

def build(opt):
    a = Asm()
    st = opt.get('stamps')
    def stamp(k):
        if st:
            ck = {0: 14, 7: 12, 9: 13}.get(k)
            if ck:
                a('    s_memtime s[100:101]')
            a('    s_memrealtime s[98:99]')
            a('    s_waitcnt lgkmcnt(0)')
            a(f'    v_writelane_b32 v{STV}, s98, {k}')
            if ck:
                a(f'    v_writelane_b32 v{STV}, s100, {ck}')
    launch = (f'; @launch kernel={KNAME} grid=({NWG},1,1) block=(1024,1,1) lds={LDS}' if opt.get('list') else
              f'; @launch grid=({NWG},1,1) block=(1024,1,1) lds={LDS}')
    if opt.get('red'):
        launch += '\n; @launch kernel=red_kernel grid=(1,1,1) block=(64,1,1) lds=0'
    sf = opt.get('st', ' sc1')
    lf = opt.get('ld', ' sc1')
    gf = opt.get('gather', '')
    of = opt.get('out', '')
    a(f'''; FeatGraph (SDDMM sigmoid gate + SpMM) in one launch, one workgroup per CU.
{launch}
.amdgcn_target "amdgcn-amd-amdhsa--gfx950"
.text
.globl {KNAME}
.p2align 8
.type {KNAME},@function
{KNAME}:
    s_cmp_ge_u32 s2, {NWG}
    s_cbranch_scc1 L_end''')
    if st:
        a(f'    v_mov_b32 v{STV}, 0')
        a(f'    v_mov_b32 v{ATK}, 0')
    stamp(0)
    a('    s_load_dwordx16 s[4:19], s[0:1], 0')
    a(f'''
    s_and_b32 s{X0}, s2, 7
    s_lshl_b32 s{X0}, s{X0}, 5
    s_lshr_b32 s2, s2, 3
    s_or_b32 s2, s2, s{X0}''')
    if opt.get('cpf'):
        a(f'''
    s_getpc_b64 {sp(S0)}
I_pc:
    v_lshlrev_b32 v127, 7, v0
    v_cmp_gt_u32 vcc, A_full-I_pc, v127
    s_and_saveexec_b64 {sp(S1)}, vcc
    s_cbranch_execz I_c
    global_load_dword v127, v127, {sp(S0)}
I_c:
    s_mov_b64 exec, -1''')
    a(f'''
    s_mul_i32 s{X0}, s2, {CH*4}
    v_lshlrev_b32 v{T4}, 2, v0
    v_lshrrev_b32 v{T+4}, 6, v0
    v_add_u32 v{T}, s{X0}, v{T4}
    v_readfirstlane_b32 s{WID}, v{T+4}
    v_add_u32 v{T+1}, 4096, v{T}
    v_add_u32 v{T+2}, 8192, v{T}
    v_add_u32 v{T+3}, 12288, v{T}
    v_cmp_gt_u32 {sp(M3)}, {CH-3072}, v0
    v_lshlrev_b32 v{T16}, 4, v0
    v_mov_b32 v{ZERO}, 0
    v_mov_b32 v{T+4}, {EMPTY}
    v_mov_b32 v{T+5}, {EMPTY}
    v_mov_b32 v{T+6}, {EMPTY}
    v_mov_b32 v{T+7}, {EMPTY}
    s_waitcnt lgkmcnt(0)
    {f'global_load_dword v{EPV}, v{ZERO}, s[18:19]      ; epoch word' if opt.get('epf') else ''}
    s_mov_b64 exec, {sp(M3)}
    s_cbranch_execz A_no3a
    global_load_dword v{ED+3}, v{T+3}, s[8:9]
    global_load_dword v{ES+3}, v{T+3}, s[6:7]
A_no3a:
    s_mov_b64 exec, -1''')
    for k in range(3):
        a(f'    global_load_dword v{ED+k}, v{T+k}, s[8:9]')
    for k in range(3):
        a(f'    global_load_dword v{ES+k}, v{T+k}, s[6:7]')
    a(f'''
    v_add_u32 v{T}, {L_IMG}, v{T16}
    ds_write_b128 v{T}, {vr(T+4,4)}
    ds_write_b128 v{T}, {vr(T+4,4)} offset:16384
    s_cmp_ge_u32 s{WID}, 4
    s_cbranch_scc1 I_a
    ds_write_b128 v{T}, {vr(T+4,4)} offset:32768
    ds_write_b32 v{T4}, v{ZERO} offset:{L_ACNT}
I_a:
    {f'global_load_dword v{EPV}, v{ZERO}, s[18:19]      ; epoch word' if not opt.get('epf') else ''}
    v_and_b32 v{LANE}, 63, v0
    v_mov_b32 v{FOUR}, 4''')
    srd(a, SX, 4, X_BYTES)
    a(f'''
    s_cmp_lt_u32 s{WID}, 8
    s_cselect_b32 s{SW}, s10, s12
    s_cselect_b32 s{SW+1}, s11, s13
    v_and_b32 v{T+3}, 0x1ff0, v{T16}
    v_lshrrev_b32 v{T}, 3, v{LANE}
    v_and_b32 v{T+1}, 7, v{LANE}
    v_xor_b32 v{T+1}, v{T+1}, v{T}
    v_lshlrev_b32 v{T+1}, 4, v{T+1}
    v_lshlrev_b32 v{T}, 19, v{T}
    s_lshl_b32 s{X0}, s{WID}, 15
    s_lshl_b32 s{X0+1}, s2, 7
    s_add_u32 s{X0}, s{X0}, s{X0+1}
    v_add3_u32 v{ROWOFF}, v{T}, v{T+1}, s{X0}
    s_lshl_b32 s{X0}, s{WID}, 10
    s_add_u32 m0, s{X0}, {L_XN}
    s_waitcnt lgkmcnt(0)
    s_barrier''')
    xw = opt.get('xw', 0)
    def wload():
        a(f'    v_and_b32 v{T+3}, 0x1ff0, v{T16}')
        a(f'    global_load_dwordx4 {vr(WD,4)}, v{T+3}, {sp(SW)}')
    def xload():
        a(f'    buffer_load_dwordx4 v{ROWOFF}, {sq(SX)}, 0 offen lds')
    if xw in (0, 2):
        wload()
    if xw == 0:
        xload()
    pfpos = [0]
    def prefetch(n):
        lo, hi = pfpos[0], pfpos[0] + n
        pfpos[0] = hi
        m = ((1 << hi) - 1) ^ ((1 << lo) - 1)
        a(f'''
    s_lshr_b32 s{PFT}, s2, 3
    s_lshl_b32 s{PFT}, s{PFT}, 4
    s_add_u32 s{PFT}, s{PFT}, s{WID}
    s_mul_i32 s{PFT}, s{PFT}, {49*128}
    v_lshlrev_b32 v{T}, 7, v{LANE}
    s_mov_b32 exec_lo, 0x{m & 0xffffffff:x}
    s_mov_b32 exec_hi, 0x{m >> 32:x}
    buffer_load_dword v{ATK}, v{T}, {sq(SX)}, s{PFT} offen
    s_mov_b64 exec, -1''')
    p = 0
    srd(a, SWS, 18, WS_USED)
    if opt.get('tlb'):
        a(f'''
    s_mul_i32 s{PFT}, s{WID}, 9
    v_add_u32 v{T}, s{PFT}, v{LANE}
    v_lshlrev_b32 v{T}, 16, v{T}
    s_mov_b64 exec, 0x1ff
    buffer_load_dword v{ATK}, v{T}, {sq(SWS)}, 0 offen
    s_mov_b64 exec, -1''')
        p += 1
    if opt.get('pf1'):
        prefetch(opt['pf1'])
        p += 1
    nw = {0: 2, 1: 0, 2: 1, 3: 0}[xw]
    y = (0 if opt.get('epf') else 1) + nw + p
    wdec = 1
    stamp(1)
    a(f'''
    ds_write_b128 v{T16}, {vr(T+4,4)} offset:{L_LIST}
    s_cmp_ge_u32 s{WID}, 6
    s_cbranch_scc1 I_b
    ds_write_b128 v{T16}, {vr(T+4,4)} offset:{L_LIST+16384}
I_b:
    v_and_b32 v{LBASE}, 15, v{LANE}
    v_mul_u32_u24 v{LBASE}, {GSTRIDE}, v{LBASE}
    v_add_u32 v{LBASE}, {L_LIST}, v{LBASE}
    v_and_b32 v{CNTA}, 0x7c, v{T4}
    s_cmp_lg_u32 s{WID}, 12
    s_cbranch_scc1 I_done
    v_cmp_gt_u32 vcc, 16, v{LANE}
    s_mov_b32 exec_hi, 0
    s_nop 0
    v_cndmask_b32 v{T+2}, 0, v{LBASE}, vcc
    ds_write_b32 v{CNTA}, v{T+2} offset:{L_BCNT}
    s_mov_b64 exec, 0xff
    v_cvt_f32_u32 v{T+2}, v{LANE}
    v_mul_f32 v{T+3}, v{T+2}, v{T+2}
    v_cvt_pk_bf16_f32 v{T+2}, v{T+3}, v{T+2}
    v_lshlrev_b32 v{T+3}, 4, v{LANE}
    ds_write_b32 v{T+3}, v{T+2} offset:{L_LUT}
    s_mov_b64 exec, -1
I_done:''')
    a(f'''
''')
    G = opt.get('grp', 2)
    lg = G.bit_length() - 1
    BLK = G * HSTRIDE
    a(f'''
    s_lshl_b32 s{X0}, s2, {6+lg}
    s_add_u32 s{X0}, s{X0}, {SEG_OFF}
    s_add_u32 s{X0+1}, s{X0}, {H1_OFF}
    s_lshr_b32 s{SEGB}, s2, {lg}
    s_mul_i32 s{SEGB}, s{SEGB}, {BLK}
    s_and_b32 s{S0}, s2, {G-1}
    s_lshl_b32 s{S0}, s{S0}, 6
    s_add_u32 s{SEGB}, s{SEGB}, s{S0}
    s_add_u32 s{SEGB}, s{SEGB}, {SEG_OFF}
    v_lshrrev_b32 v{T}, 2, v0
    v_and_b32 v{T+1}, 3, v0
    v_mul_u32_u24 v{IMGR}, {ISTRIDE}, v{T}
    v_lshl_add_u32 v{IMGR}, v{T+1}, 2, v{IMGR}
    v_add_u32 v{IMGR}, {L_IMG}, v{IMGR}
    v_lshrrev_b32 v{T+2}, {2+lg}, v0
    v_mul_u32_u24 v{STO}, {BLK}, v{T+2}
    v_and_b32 v{T+2}, {64*G-1}, v{T16}
    v_add_u32 v{STO}, v{STO}, v{T+2}
    v_lshlrev_b32 v{T+1}, 4, v{T+1}
    v_lshl_add_u32 v{PFD}, v{T}, {6+lg}, v{T+1}''')
    pair = 1
    LDV = PFD if pair else T16
    a(f'''
    s_mov_b32 s{SEMPTY}, {EMPTY}
    s_mov_b32 s{KTHR}, {L_IMG}
    s_mov_b32 s{K88}, 0x88888888
    s_mov_b32 s{K88+1}, 0x88888888
    v_bfe_u32 v{T}, v0, 3, 6
    v_and_b32 v{T+1}, 7, v0
    v_bfe_u32 v{T+2}, v{T}, 1, 1
    v_and_or_b32 v{T+2}, v{T}, 8, v{T+2}
    v_bfe_u32 v{T+3}, v{T}, 1, 2
    s_cmp_lt_u32 s{WID}, 8
    s_cselect_b64 {sp(S0)}, -1, 0
    s_mov_b32 s{S1}, {L_WV}
    s_cselect_b32 s{S1}, {L_WQ}, s{S1}
    v_cndmask_b32 v{T+2}, v{T+3}, v{T+2}, {sp(S0)}
    v_lshlrev_b32 v{T+1}, 1, v{T+1}
    v_xor_b32 v{T+1}, v{T+1}, v{T+2}
    v_lshlrev_b32 v{T+1}, 3, v{T+1}
    v_lshl_add_u32 v{T+1}, v{T}, 7, v{T+1}
    v_add_u32 v{WSA}, s{S1}, v{T+1}
    v_xor_b32 v{WSA+1}, 8, v{WSA}
    v_bfrev_b32 v{T+4}, -2''')
    def arank(k):
        a(f'''
    v_lshlrev_b32_sdwa v{B4+k}, 2, v{ED+k} dst_sel:DWORD dst_unused:UNUSED_PAD src0_sel:DWORD src1_sel:BYTE_0
    ds_add_rtn_u32 v{PS+k}, v{B4+k}, v{FOUR} offset:{L_ACNT}''')
    def aentry(k):
        a(f'''
    v_lshrrev_b32 v{ED+k}, 8, v{ED+k}
    v_lshl_or_b32 v{ES+k}, v{ES+k}, 7, v{ED+k}
    v_mad_u32_u24 v{B4+k}, v{B4+k}, {ISTRIDE//4}, s{KTHR}''')
    def aput(k):
        a(f'''
    v_min_u32 v{PS+k}, {ISTRIDE-4}, v{PS+k}
    v_add_u32 v{PS+k}, v{PS+k}, v{B4+k}
    ds_write_b32 v{PS+k}, v{ES+k}''')
    a(f'    s_waitcnt vmcnt({y+3})')
    stamp(2)
    for k in range(3):
        arank(k)
    a(f'    s_waitcnt vmcnt({y})')
    for k in range(3):
        aentry(k)
    for k in range(3):
        a('    s_waitcnt lgkmcnt(2)')
        aput(k)
    a(f'''
    s_mov_b64 exec, {sp(M3)}
    s_cbranch_execz A_no3b''')
    arank(3)
    aentry(3)
    a('    s_waitcnt lgkmcnt(0)')
    aput(3)
    a(f'''
A_no3b:
    s_mov_b64 exec, -1
    s_waitcnt vmcnt({p + nw})
    v_readfirstlane_b32 s{EPOCH}, v{EPV}''')
    if xw == 3:
        wload()
        xload()
    if opt.get('pfr'):
        prefetch(opt['pfr'])
        p += 1
    a(f'''
    {f'ds_write_b64 v{WSA}, {vr(WD,2)}' if not wdec else ''}
    {f'ds_write_b64 v{WSA+1}, {vr(WD+2,2)}' if not wdec else ''}
    s_add_u32 s{EPOCH}, s{EPOCH}, 1
    s_lshl_b32 s{TAG}, s{EPOCH}, 22
    s_lshl_b32 s{TAG+1}, s{EPOCH}, 12
    s_and_b32 s{TAG+1}, s{TAG+1}, 0xffc00000
    s_lshl_b32 s{TAG+2}, s{EPOCH}, 2
    s_and_b32 s{TAG+2}, s{TAG+2}, 0xffc00000
    s_xor_b32 s{TAG+3}, s{TAG}, 0xffc00000
    s_waitcnt lgkmcnt(0)
    s_barrier''')
    stamp(3)
    a(f'''
    ds_read2_b32 {vr(46,2)}, v{IMGR} offset0:24 offset1:28
    ds_read2_b32 {vr(40,2)}, v{IMGR} offset0:0 offset1:4
    ds_read2_b32 {vr(42,2)}, v{IMGR} offset0:8 offset1:12
    ds_read2_b32 {vr(44,2)}, v{IMGR} offset0:16 offset1:20
    s_waitcnt lgkmcnt(3)
    v_cmp_ne_u32 vcc, s{SEMPTY}, v47
    s_and_b64 {sp(S0)}, vcc, {sp(K88)}
    s_waitcnt lgkmcnt(1)
    s_cbranch_scc1 A_full
A_pub:
    v_cmp_ne_u32 vcc, s{SEMPTY}, v43''')
    for r in range(4):
        a(f'    v_or_b32 v{40+r}, s{TAG+r}, v{40+r}')
    a(f'''
    buffer_store_dwordx4 {vr(40,4)}, v{STO}, {sq(SWS)}, s{X0} offen{sf}
    s_and_b64 {sp(S0)}, vcc, {sp(K88)}''')
    if opt.get('h1o'):
        a(f'''
    s_lshr_b64 {sp(S1)}, {sp(S0)}, 4
    s_or_b64 {sp(S0)}, {sp(S0)}, {sp(S1)}
    s_and_b32 s{S0}, s{S0}, 0x08080808
    s_and_b32 s{S0+1}, s{S0+1}, 0x08080808
    s_lshl_b64 {sp(S1)}, {sp(S0)}, 4
    s_or_b64 {sp(S0)}, {sp(S0)}, {sp(S1)}''')
    a(f'''
    s_wqm_b64 vcc, {sp(S0)}
    s_waitcnt lgkmcnt(0)''')
    for r in range(4):
        a(f'    v_or_b32 v{44+r}, s{TAG+r}, v{44+r}')
    a(f'''
''')
    h1f = opt.get('h1f', 0)
    if h1f:
        a(f'''
    v_and_b32 v{T+5}, 0x30, v{T16}
    v_lshlrev_b32 v{STO}, 1, v{STO}
    v_sub_u32 v{STO}, v{STO}, v{T+5}''')
    a(f'''
    v_cndmask_b32 v{STO}, v{T+4}, v{STO}, vcc
    buffer_store_dwordx4 {vr(44,4)}, v{STO}, {sq(SWS)}, s{X0+1} offen{sf}''')
    if h1f == 2:
        a(f'    buffer_store_dwordx4 {vr(44,4)}, v{STO}, {sq(SWS)}, s{X0+1} offen offset:64{sf}')
        p += 1
    H1V = LDV
    if h1f:
        H1V = PFD
        a(f'''
    v_lshlrev_b32 v{PFD}, 1, v{T16}
    v_sub_u32 v{PFD}, v{PFD}, v{T+5}''')
    if opt.get('pfb'):
        prefetch(opt['pfb'])
        p += 1
    stamp(4)
    if xw == 1:
        wload()
    if xw in (1, 2):
        xload()
    def wstage(n):
        a(f'''
    s_waitcnt vmcnt({n})
    ds_write_b64 v{WSA}, {vr(WD,2)}
    ds_write_b64 v{WSA+1}, {vr(WD+2,2)}''')
    if xw in (0, 2):
        wstage(p + 3)
    WQA, XNA = 88, 92
    a(f"""
    v_lshrrev_b32 v{T+5}, 4, v{LANE}        ; g
    v_bfe_u32 v{T+1}, v{LANE}, 2, 2
    v_lshl_add_u32 v{T+2}, v{T+5}, 3, v{T+1}
    v_bfe_u32 v{T+3}, v{T+2}, 1, 1
    v_and_or_b32 v{T+3}, v{T+2}, 8, v{T+3}
    v_and_b32 v{T+4}, 3, v{LANE}            ; c
    v_lshlrev_b32 v{T+6}, 1, v{T+4}
    v_xor_b32 v{T+3}, v{T+3}, v{T+6}
    v_lshlrev_b32 v{T+3}, 3, v{T+3}
    v_lshl_add_u32 v{T}, v{T+2}, 7, v{T+3}
    v_add_u32 v{WQA}, {L_WQ}, v{T}
    v_xor_b32 v{WQA+1}, 8, v{WQA}
    v_xor_b32 v{WQA+2}, 64, v{WQA}
    v_xor_b32 v{WQA+3}, 0x48, v{WQA}
    v_and_b32 v{T+7}, 7, v{LANE}
    v_xor_b32 v{T}, v{T+5}, v{T+7}
    v_lshlrev_b32 v{T}, 4, v{T}
    v_lshl_add_u32 v{T}, v{T+7}, 7, v{T}
    s_lshl_b32 s{X0}, s{WID}, 10
    s_add_u32 s{X0}, s{X0}, {L_XN}
    v_add_u32 v{XNA}, s{X0}, v{T}
    v_xor_b32 v{XNA+1}, 64, v{XNA}""")
    srd(a, SOUT, 14, X_BYTES)
    srd(a, SSRC, 6, E*4)
    srd(a, SDST, 8, E*4)
    a(f"""
    s_add_u32 s{H1SO}, s{SEGB}, {H1_OFF}
    {f's_mul_i32 s{H1SO}, s2, {2*HSTRIDE}' if h1f else ''}
    {f's_add_u32 s{H1SO}, s{H1SO}, {SEG_OFF+H1_OFF}' if h1f else ''}
    s_mov_b32 s{AMASK}, 0x003fff80
    s_lshl_b32 s{RING}, s{WID}, 13
    s_add_u32 s{RING}, s{RING}, {L_RING}
    s_mov_b32 s{MODE}, 0
    s_mov_b32 s{GAVE}, 0
    s_mov_b32 s{LOM}, 0x00ff00ff
    s_mov_b32 s{LOM+1}, 0x00ff00ff
    v_and_b32 v{T+1}, 15, v{LANE}           ; i
    v_lshrrev_b32 v{T}, 3, v{LANE}
    v_and_b32 v{T+6}, 6, v{T}
    v_xor_b32 v{T+6}, v{T+6}, v{T+7}
    v_lshlrev_b32 v{CHK}, 4, v{T+6}
    s_mul_i32 s{X0}, s{WID}, {GSTRIDE}
    s_add_u32 s{X0}, s{X0}, {L_LIST}
    v_lshl_add_u32 v{EA0}, v{T}, 4, s{X0}
    v_bfe_u32 v{T+6}, v{LANE}, 3, 2
    v_lshl_add_u32 v{T+6}, v{T+7}, 2, v{T+6}
    v_lshl_add_u32 v{MAD0}, v{T+6}, 2, s{X0}
    v_and_b32 v{T+6}, 6, v{T+1}
    v_xor_b32 v{T+6}, v{T+6}, v{T+5}
    v_lshlrev_b32 v{T+6}, 4, v{T+6}
    v_lshl_add_u32 v{T+6}, v{T+1}, 7, v{T+6}
    v_add_u32 v{RA0}, s{RING}, v{T+6}
    v_xor_b32 v{RA1}, 64, v{RA0}
    v_lshrrev_b32 v{T+6}, 2, v{LANE}        ; row = 4g+r
    v_and_b32 v{T+1}, 6, v{T+6}
    v_bfe_u32 v{T+5}, v{LANE}, 1, 1
    v_xor_b32 v{T+1}, v{T+1}, v{T+5}
    v_lshlrev_b32 v{T+1}, 4, v{T+1}
    v_lshl_add_u32 v{T+1}, v{T+6}, 7, v{T+1}
    v_and_b32 v{T+5}, 1, v{LANE}
    v_lshl_add_u32 v{T+1}, v{T+5}, 3, v{T+1}
    v_add_u32 v{RT}, s{RING}, v{T+1}
    v_xor_b32 v{RT+1}, 32, v{RT}
    v_xor_b32 v{RT+2}, 64, v{RT}
    v_xor_b32 v{RT+3}, 0x60, v{RT}
    v_bfe_u32 v{T+5}, v{T+6}, 1, 2
    v_lshl_or_b32 v{T+5}, v{T+4}, 2, v{T+5}
    v_lshlrev_b32 v{T+5}, 3, v{T+5}
    v_lshl_add_u32 v{WVA}, v{T+6}, 7, v{T+5}
    v_lshrrev_b32 v{T+5}, 3, v{LANE}
    v_and_b32 v{T+5}, 6, v{T+5}
    v_xor_b32 v{T+5}, v{T+5}, v{T+7}
    v_lshlrev_b32 v{T+5}, 4, v{T+5}
    v_lshl_add_u32 v{T+5}, v{T+7}, 7, v{T+5}
    v_add_u32 v{EPV}, s{RING}, v{T+5}
    v_mov_b32 v{MA+1}, 0x00003f80
    v_mov_b32 v{MA+2}, 0
    v_mov_b32 v{MA+3}, 0
    v_mov_b32 v{MB}, 0
    v_mov_b32 v{MB+1}, 0
    v_mov_b32 v{MB+2}, 0
    v_mov_b32 v{MB+3}, 0
    v_cvt_f32_u32 v{T+5}, v{T+7}            ; j' = l&7
    v_mov_b32 v{T+6}, 0x71800000            ; BIG = 2^100
    v_mul_f32 v{T+7}, v{T+5}, v{T+6}
    v_mul_f32 v{T+5}, v{T+5}, v{T+7}
    v_mul_f32 v{T+7}, -2.0, v{T+7}
    s_mov_b32 exec_lo, 0xff0000ff
    s_mov_b32 exec_hi, 0
    v_cvt_pk_bf16_f32 v{MB}, v{T+6}, v{T+7}
    v_cvt_pk_bf16_f32 v{MB+1}, v{T+5}, 0
    s_mov_b64 exec, -1""")
    for r in range(16):
        a(f'    v_mov_b32 v{ACC+r}, 0')
    for r in range(8):
        a(f'    v_mov_b32 v{QLO+r}, 0')
    for r in range(4, 8):
        a(f'    v_mov_b32 v{EN+r}, {EMPTY}')
    a(f"""
    s_mov_b32 s{POLLN}, 0
    s_mov_b32 s{KTHR}, 0x400000
    s_mov_b32 s{KFULL}, {FULLM}
    s_mov_b64 {sp(S0)}, -1
    s_mov_b64 {sp(S1)}, 0
""")
    if xw in (1, 3):
        wstage(1 if xw == 1 else 3)
    a(f"""
    s_waitcnt vmcnt(0) lgkmcnt(0)
    s_barrier
    buffer_load_dwordx4 {vr(EN,4)}, v{LDV}, {sq(SWS)}, s{SEGB} offen{lf}
    s_mov_b64 exec, {sp(LOM)}
    ds_read_b128 {vr(QLO,4)}, v{XNA}
    ds_read_b128 {vr(QLO+4,4)}, v{XNA+1}
    s_mov_b64 exec, -1""")
    dreg = [QHI, QHI+4, S, S+4]
    for blk in range(4):
        for ks in range(2):
            for h in range(2):
                a(f'    ds_read_b64_tr_b16 {vr(XA+blk*8+ks*4+h*2,2)}, v{WQA+blk} offset:{(32*ks+4*h)*128}')
        if blk == 2:
            a('    s_waitcnt lgkmcnt(8)')
    for blk in range(4):
        a(f'    s_waitcnt lgkmcnt({min(8, 12-4*blk) if blk else 12})')
        a(f'    v_mfma_f32_16x16x32_bf16 {vr(dreg[blk],4)}, {vr(XA+blk*8,4)}, {vr(QLO,4)}, 0')
        a(f'    v_mfma_f32_16x16x32_bf16 {vr(dreg[blk],4)}, {vr(XA+blk*8+4,4)}, {vr(QLO+4,4)}, {vr(dreg[blk],4)}')
    def qfinish():
        a(f'    s_mov_b32 s{X0}, 0x{f32bits(-1.4426950408889634/8):08x}')
        a(f'    s_mov_b32 s{X0+1}, s{X0}')
        a('    s_nop 1')
        for blk in range(4):
            a(f'    v_pk_mul_f32 {vr(dreg[blk],2)}, {vr(dreg[blk],2)}, {sp(X0)}')
            a(f'    v_pk_mul_f32 {vr(dreg[blk]+2,2)}, {vr(dreg[blk]+2,2)}, {sp(X0)}')
        for blk in range(4):
            a(f'    v_cvt_pk_bf16_f32 v{QLO+2*blk}, v{dreg[blk]}, v{dreg[blk]+1}')
            a(f'    v_cvt_pk_bf16_f32 v{QLO+2*blk+1}, v{dreg[blk]+2}, v{dreg[blk]+3}')
        for r in range(8):
            a(f'    v_mov_b32_dpp v{QHI+r}, v{QLO+r} row_ror:8 row_mask:0xf bank_mask:0xf')
    qdef = opt.get('qdef', 0)
    if not qdef:
        qfinish()
    stamp(5)
    def check(h, dst):
        for r in range(4):
            a(f'    v_xor_b32 v{EN+4*h+r}, s{TAG+r}, v{EN+4*h+r}')
        a(f'''
    v_or3_b32 v{T}, v{EN+4*h}, v{EN+4*h+1}, v{EN+4*h+2}
    v_or_b32 v{T}, v{T}, v{EN+4*h+3}
    v_cmp_le_u32 {dst}, s{KTHR}, v{T}''')
    def brank(r, base, skip=None):
        m = VM + 2*r
        a(f'''
    v_cmp_ne_u32 {sp(m)}, s{SEMPTY}, v{EN+r}
    v_and_b32 v{G4+r}, 15, v{EN+r}
    v_lshlrev_b32 v{G4+r}, 2, v{G4+r}
    s_mov_b64 exec, {sp(m)}''')
        if skip:
            a(f'    s_cbranch_execz {skip}')
        a(f'''
    ds_add_rtn_u32 v{RK+r}, v{G4+r}, v{FOUR} offset:{L_BCNT}
    s_mov_b64 exec, {base}''')
    def bput(r):
        a(f'''
    s_mov_b64 exec, {sp(VM+2*r)}
    ds_write_b32 v{RK+r}, v{EN+r}''')
    rare = []
    def rankwords(ws):
        for r in ws:
            brank(r, sp(FR))
        for r in ws:
            a(f'    s_waitcnt lgkmcnt({len(ws)-1})')
            bput(r)
    def sort_rest():
        a(f'''
    v_min3_u32 v{T}, v{EN+1}, v{EN+2}, v{EN+3}
    v_med3_u32 v{T+1}, v{EN+1}, v{EN+2}, v{EN+3}
    v_max3_u32 v{EN+3}, v{EN+1}, v{EN+2}, v{EN+3}
    v_mov_b32 v{EN+1}, v{T}
    v_mov_b32 v{EN+2}, v{T+1}''')
    band = opt.get('band', 0)
    B1 = 64
    sw = opt.get('sw', 4)
    def absorb0(tag, nw=4):
        check(0, 'vcc')
        a(f'''
    s_wqm_b64 vcc, vcc
    s_andn2_b64 {sp(FR)}, {sp(S0)}, vcc
    s_mov_b64 {sp(S0)}, vcc
    s_mov_b64 exec, vcc
    s_cbranch_execz Z_nr{tag}
    s_add_u32 s{POLLN}, s{POLLN}, 1
    s_cmp_gt_u32 s{POLLN}, {opt.get('pollmax', 2000)}
    s_cbranch_scc1 Z_give{tag}
    buffer_load_dwordx4 {vr(EN,4)}, v{LDV}, {sq(SWS)}, s{SEGB} offen{lf}
Z_nr{tag}:
    s_mov_b64 exec, {sp(FR)}
    s_cbranch_execz Z_done{tag}
    v_cmp_ne_u32 {sp(N1)}, s{SEMPTY}, v{EN+3}
    v_cmp_eq_u32 vcc, s{KFULL}, v{EN}
    s_and_b64 {sp(N1)}, {sp(N1)}, {sp(K88)}
    s_wqm_b64 exec, {sp(N1)}
    {'s_mov_b64 exec, 0' if opt.get('x_noh1') else ''}
    s_cbranch_execz Z_nh{tag}
    s_or_b64 {sp(S1)}, {sp(S1)}, exec
    buffer_load_dwordx4 {vr(EN+4,4)}, v{H1V}, {sq(SWS)}, s{H1SO} offen{lf}
Z_nh{tag}:
    s_cbranch_vccnz Z_full{tag}
Z_rank{tag}:
    s_mov_b64 exec, {sp(FR)}''')
        if opt.get('srt') and tag == 'a':
            a(f'''
    v_min_u32 v{T}, v{EN}, v{EN+1}
    v_max_u32 v{EN+1}, v{EN}, v{EN+1}
    v_min_u32 v{T+1}, v{EN+2}, v{EN+3}
    v_max_u32 v{EN+3}, v{EN+2}, v{EN+3}
    v_min_u32 v{EN}, v{T}, v{T+1}
    v_max_u32 v{EN+2}, v{T}, v{T+1}''')
            if opt['srt'] == 2 and nw > 1:
                sort_rest()
        if band and tag == 'a':
            sort_rest()
            a(f'    s_mov_b32 s{X0}, {band << 7}')
            for r in range(2):
                a(f'''
    v_cmp_gt_u32 {sp(B1+2*r)}, s{X0}, v{EN+r}
    v_and_b32 v{G4+r}, 15, v{EN+r}
    v_lshlrev_b32 v{G4+r}, 2, v{G4+r}
    s_mov_b64 exec, {sp(B1+2*r)}
    ds_add_rtn_u32 v{RK+r}, v{G4+r}, v{FOUR} offset:{L_BCNT}
    s_mov_b64 exec, {sp(FR)}''')
            for r in range(2):
                a(f'''
    s_waitcnt lgkmcnt(1)
    s_mov_b64 exec, {sp(B1+2*r)}
    ds_write_b32 v{RK+r}, v{EN+r}''')
        else:
            rankwords(list(range(nw)))
        a(f'Z_done{tag}:')
        rare.append(tag)
    def absorb1():
        check(1, 'vcc')
        a(f'''
    s_andn2_b64 {sp(FR)}, {sp(S1)}, vcc
    s_mov_b64 {sp(S1)}, vcc
    s_mov_b64 exec, vcc
    s_cbranch_execz Y_nr
    s_add_u32 s{POLLN}, s{POLLN}, 1
    s_cmp_gt_u32 s{POLLN}, 1000000
    s_cbranch_scc1 Y_lost
    buffer_load_dwordx4 {vr(EN+4,4)}, v{H1V}, {sq(SWS)}, s{H1SO} offen{lf}
Y_nr:
    s_mov_b64 exec, {sp(FR)}''')
        for r in range(4, 8):
            brank(r, sp(FR), 'Y_done')
            a('    s_waitcnt lgkmcnt(0)')
            bput(r)
            a(f'    s_mov_b64 exec, {sp(FR)}')
        a('Y_done:')
    def dma(ereg, slot):
        for q in range(4):
            if q == 0:
                a(f'    s_mov_b32 m0, s{RING}' if slot == 0 else f'    s_add_u32 m0, s{RING}, 4096')
            else:
                a('    s_add_u32 m0, m0, 1024')
            a(f'    v_and_or_b32 v{ereg+q}, v{ereg+q}, s{AMASK}, v{CHK}')
            a(f'    buffer_load_dwordx4 v{ereg+q}, {sq(SX)}, 0 offen{gf} lds')
    def complete(reg, no):
        a(f"""
    v_max3_u32 v{T}, v{reg}, v{reg+1}, v{reg+2}
    v_max_u32 v{T}, v{T}, v{reg+3}
    v_cmp_eq_u32 vcc, s{SEMPTY}, v{T}
    s_cbranch_vccnz {no}""")
    a(f"""
    s_mov_b32 s{ISSUED}, 0
    v_mov_b32 v{EA}, v{EA0}
    v_mov_b32 v{MAD}, v{MAD0}
    s_waitcnt vmcnt(0)""")
    stamp(6)
    a('    s_setprio 3')
    absorb0('a', sw)
    settle = f"""
    s_or_b64 exec, {sp(S0)}, {sp(S1)}
    s_cselect_b32 s{OWNP}, 1, 0
    s_cbranch_execnz G_pend
    s_mov_b64 exec, 1
    ds_add_u32 v{ZERO}, v{FOUR} offset:{L_DONE}
G_pend:
    s_mov_b64 exec, -1
    s_waitcnt lgkmcnt(0)"""
    if sw == 4:
        a(settle)
    else:
        a(f"""
    s_mov_b32 s{OWNP}, 2
    s_mov_b64 exec, -1
    s_waitcnt lgkmcnt(0)""")
    a('    s_barrier')
    stamp(7)
    if opt.get('hw', 16) < 16:
        a(f"""
    s_cmp_lt_u32 s{WID}, {opt['hw']}
    s_cbranch_scc1 G_more""")
        if sw < 4:
            a(f'    s_call_b64 {sp(LINK)}, L_s2')
        if opt.get('hw2', 0):
            a(f"""
    s_cmp_lt_u32 s{WID}, {opt['hw2']}
    s_cbranch_scc1 G_more""")
        a(f"""
    s_cmp_eq_u32 s{OWNP}, 0
    s_cbranch_scc1 G_more
    s_waitcnt vmcnt(0)
    s_call_b64 {sp(LINK)}, L_late""")
    a(f"""
G_more:
    ds_read_b32 v{T+1}, v{ZERO} offset:{L_DONE}
    ds_read_b128 {vr(EE,4)}, v{EA0}
    ds_read_b128 {vr(T+4,4)}, v{EA0} offset:128
    s_cmp_eq_u32 s{ISSUED}, 1
    s_waitcnt lgkmcnt(0)
    s_cbranch_scc1 G_m1""")
    complete(EE, 'G_short')
    dma(EE, 0)
    a(f"""
    s_mov_b32 s{ISSUED}, 1
G_m1:""")
    complete(T+4, 'G_short')
    dma(T+4, 1)
    a(f"""
    s_mov_b32 s{ISSUED}, 2""")
    if sw < 4:
        a(f"""
    s_cmp_lg_u32 s{OWNP}, 2
    s_cbranch_scc1 G_go
    s_call_b64 {sp(LINK)}, L_s2""")
    a(f"""
G_go:
    s_setprio {opt.get('p0', 2)}""")
    if qdef:
        qfinish()
    a(f"""
    s_mov_b32 s{NT}, {opt.get('pb', 4)}
    s_mov_b32 s{NTI}, 0
B_go:
    ds_read_b32 v{M0R}, v{MAD}
    ds_read_b128 {vr(EE,4)}, v{EA} offset:256
    s_mov_b32 s{TT}, 1                      ; t+1
    s_waitcnt lgkmcnt(1)
    v_and_b32 v{M0R}, 0x70, v{M0R}""")
    stamp(8)
    a('B_loop:')
    pk = opt.get('pk', 0)
    th = opt.get('th', 242)
    th = (th // 100, th // 10 % 10, th % 10)
    def body(slot):
        so = slot * 4096
        mcur, mnext = (M0R, M1R) if slot == 0 else (M1R, M0R)
        eo = slot * 128
        pm = opt.get('prio', 1)
        if pm == 1 and slot == 0:
            a(f"""
    s_cmp_lt_u32 s{TT}, {th[0]}
    s_cbranch_scc1 B_p{slot}
    s_setprio 1
    s_cmp_lt_u32 s{TT}, 4
    s_cbranch_scc1 B_p{slot}
    s_sub_u32 s{X0}, s{NT}, s{TT}
    s_cmp_ge_u32 s{X0}, {th[2]}
    s_cbranch_scc1 B_p{slot}
    s_setprio 0
B_p{slot}:""")
        if pm == 3 and slot == 0:
            a(f"""
    s_cmp_lt_u32 s{TT}, {th[0]}
    s_cbranch_scc1 B_p{slot}
    s_setprio 1
    s_cmp_lt_u32 s{TT}, {th[1]}
    s_cbranch_scc1 B_p{slot}
    s_setprio 0
B_p{slot}:""")
        if pm == 4:
            a(f"""
    s_cmp_eq_u32 s{NTI}, 0
    s_cbranch_scc1 B_p{slot}
    s_sub_u32 s{X0}, s{NT}, s{TT}
    s_setprio 2
    s_cmp_ge_u32 s{X0}, {th[1]}
    s_cbranch_scc1 B_p{slot}
    s_setprio 1
    s_cmp_ge_u32 s{X0}, {th[2]}
    s_cbranch_scc1 B_p{slot}
    s_setprio 0
B_p{slot}:""")
        if pm == 2:
            a(f"""
    s_cmp_lt_u32 s{TT}, 4
    s_cbranch_scc1 B_q{slot}
    s_sub_u32 s{X0}, s{NT}, s{TT}
    s_setprio 3
    s_cmp_ge_u32 s{X0}, 3
    s_cbranch_scc1 B_p{slot}
    s_setprio 2
    s_cmp_ge_u32 s{X0}, 2
    s_cbranch_scc1 B_p{slot}
B_q{slot}:
    s_setprio 1
B_p{slot}:""")
        a(f'''
    ds_read_b32 v{MA}, v{mcur} offset:{L_LUT}
    ds_read_b32 v{mnext}, v{MAD} offset:{eo+128}
    s_cmp_lt_u32 s{TT}, s{NT}
    s_cbranch_scc1 B_w4_{slot}
    s_waitcnt vmcnt(0)
B_w4_{slot}:
    s_cmp_lg_u32 s{OWNP}, 0
    s_waitcnt vmcnt(4)
    s_cbranch_scc0 B_rd_{slot}
    s_call_b64 {sp(LINK)}, L_late
B_rd_{slot}:''')
        if opt.get('tprof'):
            a(f'''
    s_memrealtime s[98:99]
    s_min_u32 s100, s{TT}, 10
    s_waitcnt lgkmcnt(0)
    s_mov_b32 m0, s100
    v_writelane_b32 v{ATK}, s98, m0''')
        a(f'''
    ds_read_b128 {vr(XA,4)}, v{RA0} offset:{so}
    ds_read_b128 {vr(XA+4,4)}, v{RA1} offset:{so}
    ds_read_b128 {vr(XA+8,4)}, v{RA0} offset:{so+2048}
    ds_read_b128 {vr(XA+12,4)}, v{RA1} offset:{so+2048}''')
        for fb in range(4):
            a(f'    ds_read_b64_tr_b16 {vr(XT+4*fb,2)}, v{RT+fb} offset:{so}')
            a(f'    ds_read_b64_tr_b16 {vr(XT+4*fb+2,2)}, v{RT+fb} offset:{so+2048}')
        a(f'''
    s_add_u32 s{TT}, s{TT}, 1               ; t+2
    s_waitcnt lgkmcnt(12)
    {f'v_mfma_f32_16x16x16_bf16 {vr(S,4)}, {vr(MA,2)}, {vr(MB,2)}, 0' if opt.get('m16') else f'v_mfma_f32_16x16x32_bf16 {vr(S,4)}, {vr(MA,4)}, {vr(MB,4)}, 0'}
    v_and_b32 v{mnext}, 0x70, v{mnext}
    s_waitcnt lgkmcnt(11)
    v_mfma_f32_16x16x32_bf16 {vr(S,4)}, {vr(XA,4)}, {vr(QLO,4)}, {vr(S,4)}
    s_waitcnt lgkmcnt(10)
    v_mfma_f32_16x16x32_bf16 {vr(S,4)}, {vr(XA+4,4)}, {vr(QLO+4,4)}, {vr(S,4)}
    s_waitcnt lgkmcnt(9)
    v_mfma_f32_16x16x32_bf16 {vr(S,4)}, {vr(XA+8,4)}, {vr(QHI,4)}, {vr(S,4)}
    s_waitcnt lgkmcnt(8)
    v_mfma_f32_16x16x32_bf16 {vr(S,4)}, {vr(XA+12,4)}, {vr(QHI+4,4)}, {vr(S,4)}
    s_waitcnt lgkmcnt(0)
    s_cmp_lt_u32 s{TT}, s{NTI}
    s_cbranch_scc0 B_skip_{slot}
B_dma_{slot}:''')
        dma(EE, slot)
        a(f'''
    ds_read_b128 {vr(EE,4)}, v{EA} offset:{eo+384}
B_cont_{slot}:''')
        for r in range(4):
            a(f'    v_exp_f32 v{S+r}, v{S+r}')
        if slot == 1:
            a(f'    v_add_u32 v{EA}, 256, v{EA}')
            a(f'    v_add_u32 v{MAD}, 256, v{MAD}')
        if pk:
            a(f'    v_pk_add_f32 {vr(S,2)}, {vr(S,2)}, 1.0 op_sel_hi:[1,0]')
            a(f'    v_pk_add_f32 {vr(S+2,2)}, {vr(S+2,2)}, 1.0 op_sel_hi:[1,0]')
        else:
            for r in range(4):
                a(f'    v_add_f32 v{S+r}, 1.0, v{S+r}')
        for r in range(4):
            a(f'    v_rcp_f32 v{S+r}, v{S+r}')
        a(f'''
    v_cvt_pk_bf16_f32 v{PP}, v{S}, v{S+1}
    s_cmp_gt_u32 s{TT}, s{NT}
    v_cvt_pk_bf16_f32 v{PP+1}, v{S+2}, v{S+3}
    s_nop 0
    v_mov_b32_dpp v{PP+2}, v{PP} row_ror:8 row_mask:0xf bank_mask:0xf
    v_mov_b32_dpp v{PP+3}, v{PP+1} row_ror:8 row_mask:0xf bank_mask:0xf
    s_nop 1''')
        for fb in range(4):
            a(f'    v_mfma_f32_16x16x32_bf16 {vr(ACC+4*fb,4)}, {vr(XT+4*fb,4)}, {vr(PP,4)}, {vr(ACC+4*fb,4)}')
        a('    s_cbranch_scc1 B_loopdone' if slot == 0 else '    s_cbranch_scc0 B_loop')
    n0 = len(a.lines)
    body(0)
    body(1)
    drop = []
    if opt.get('x_nords'): drop += ['ds_read_b128 v[4', 'ds_read_b128 v[5', 'ds_read_b64_tr']
    if opt.get('x_nomfma'): drop += ['v_mfma']
    if opt.get('x_novalu'): drop += ['v_exp', 'v_rcp', 'v_add_f32', 'v_cvt', 'v_mov_b32_dpp', 'v_pk_add']
    if opt.get('bench'): drop += [f'v_add_u32 v{EA}, 256', f'v_add_u32 v{MAD}, 256']
    a.lines[n0:] = [l for l in a.lines[n0:] if not any(l.strip().startswith(d) for d in drop)]
    a(f'''
B_loopdone:
    s_cmp_lg_u32 s{MODE}, 0
    s_cbranch_scc1 C_next
B_epi:''')
    if opt.get('epi3'):
        a('    s_setprio 3')
    stamp(9)
    epi = opt.get('epi', 1)
    wve = opt.get('wve', 0)
    wv = [XA, XA+8, QLO, QHI]
    DO = XT
    def wvread(blks):
        for blk in blks:
            ad = WVA if blk == 0 else T+blk
            for ks in range(2):
                for h in range(2):
                    a(f'    ds_read_b64_tr_b16 {vr(wv[blk]+ks*4+h*2,2)}, v{ad} offset:{L_WV+(32*ks+16*h)*128}')
    def wvfirst():
        a(f"""
    v_xor_b32 v{T+1}, 8, v{WVA}
    v_xor_b32 v{T+2}, 16, v{WVA}
    v_xor_b32 v{T+3}, 24, v{WVA}""")
        wvread([0, 1, 2])
    if wve:
        a(f"""
    s_cmp_lg_u32 s{ISSUED}, 3
    s_cbranch_scc0 E_have""")
    wvfirst()
    a('E_have:')
    a('    s_waitcnt lgkmcnt(8)')
    wvread([3])
    if epi:
        a(f"""
    v_xor_b32 v{T+6}, 16, v{EPV}
    v_lshl_add_u32 v{T+5}, v{LANE}, 4, s{RING}""")
    else:
        a(f"""
    v_and_b32 v{T+4}, 7, v{LANE}
    v_lshlrev_b32 v{T+4}, 19, v{T+4}
    v_lshrrev_b32 v{T+5}, 4, v{LANE}
    v_lshl_add_u32 v{T+4}, v{T+5}, 5, v{T+4}
    s_lshl_b32 s{X0}, s{WID}, 15
    s_lshl_b32 s{X0+1}, s2, 7
    s_add_u32 s{PFT}, s{X0}, s{X0+1}""")
    for r in range(8):
        a(f'    v_cvt_pk_bf16_f32 v{S+r}, v{ACC+2*r}, v{ACC+2*r+1}')
    a('    s_nop 0')
    for blk in range(4):
        a(f'    s_waitcnt lgkmcnt({min(8, 12-4*blk)})')
        a(f'    v_mfma_f32_16x16x32_bf16 {vr(DO+4*blk,4)}, {vr(wv[blk],4)}, {vr(S,4)}, 0')
        a(f'    v_mfma_f32_16x16x32_bf16 {vr(DO+4*blk,4)}, {vr(wv[blk]+4,4)}, {vr(S+4,4)}, {vr(DO+4*blk,4)}')
    a(f'''
    s_cmp_lg_u32 s{WID}, 15
    s_cbranch_scc1 K_no2
    s_mov_b64 exec, 1
    s_cmp_lg_u32 s{GAVE}, 0
    s_cbranch_scc1 K_ticket
K_adv:
    v_mov_b32 v{T}, s{EPOCH}
    global_store_dword v{ZERO}, v{T}, s[18:19]
K_skip:
    s_mov_b64 exec, -1
K_no2:
    s_nop 2''')
    for r in range(4):
        a(f'    v_cvt_pk_bf16_f32 v{XA+r}, v{DO+2*r}, v{DO+2*r+1}')
    a(f'    s_mov_b64 exec, {sp(LOM)}')
    if epi:
        a(f'    ds_write_b128 v{EPV}, {vr(XA,4)}')
    else:
        a(f'    buffer_store_dwordx4 {vr(XA,4)}, v{T+4}, {sq(SOUT)}, s{PFT} offen{of}')
    for r in range(4, 8):
        a(f'    v_cvt_pk_bf16_f32 v{XA+r}, v{DO+2*r}, v{DO+2*r+1}')
    if epi:
        a(f'''
    ds_write_b128 v{T+6}, {vr(XA+4,4)}
    s_mov_b64 exec, -1
    ds_read_b128 {vr(XA+8,4)}, v{T+5}
    s_waitcnt lgkmcnt(0)
    buffer_store_dwordx4 {vr(XA+8,4)}, v{ROWOFF}, {sq(SOUT)}, 0 offen{of}''')
    else:
        a(f'''
    buffer_store_dwordx4 {vr(XA+4,4)}, v{T+4}, {sq(SOUT)}, s{PFT} offen offset:16{of}
    s_mov_b64 exec, -1''')
    if st:
        stamp(10)
        a('    s_waitcnt vmcnt(0)')
        stamp(11)
        if opt.get('tprof'):
            a(f'''
    s_mov_b64 exec, 0x7fe
    v_mov_b32 v{STV}, v{ATK}
    s_mov_b64 exec, -1''')
        a(f'''
    s_add_u32 s{X0}, s18, {STAMP_OFF}
    s_addc_u32 s{X0+1}, s19, 0
    s_lshl_b32 s{X0+2}, s2, 4
    s_add_u32 s{X0+2}, s{X0+2}, s{WID}
    s_lshl_b32 s{X0+2}, s{X0+2}, 6
    v_lshl_add_u32 v{T}, v{LANE}, 2, s{X0+2}
    s_mov_b64 exec, 0xffff
    global_store_dword v{T}, v{STV}, {sp(X0)}''')
        if 'amp' in opt:
            a(f'''
    v_readlane_b32 s60, v{STV}, 0
    v_readlane_b32 s61, v{STV}, {opt['amp']}
    v_readlane_b32 s62, v{STV}, 11
    s_sub_u32 s61, s61, s60
    s_mul_i32 s61, s61, {opt.get('ampk', 2)}
    s_min_u32 s61, s61, 20000
D_spin:
    s_memrealtime s[98:99]
    s_waitcnt lgkmcnt(0)
    s_sub_u32 s98, s98, s62
    s_cmp_lt_u32 s98, s61
    s_cbranch_scc1 D_spin''')
    a(f'''
L_end:
    s_endpgm
''')
    for slot in range(2):
        a(f'''
B_skip_{slot}:
    s_cmp_lg_u32 s{NTI}, 0
    s_cbranch_scc1 B_idle_{slot}
    s_mov_b32 s{RET}, {slot}
    s_cmp_ge_u32 s{TT}, {opt.get('pb', 4)}
    s_cbranch_scc1 F_final''')
        complete(EE, f'B_again_{slot}')
        a(f'''
    s_branch B_dma_{slot}
B_again_{slot}:
    ds_read_b128 {vr(EE,4)}, v{EA} offset:{slot*128+256}
    s_waitcnt lgkmcnt(0)''')
        complete(EE, 'F_final')
        a(f'''
    s_branch B_dma_{slot}
F_ret_{slot}:
    ds_read_b128 {vr(EE,4)}, v{EA} offset:{slot*128+256}
    s_waitcnt lgkmcnt(0)
    s_cmp_lt_u32 s{TT}, s{NT}
    s_cbranch_scc1 B_dma_{slot}
B_idle_{slot}:''')
        if wve:
            a(f'''
    s_cmp_le_u32 s{TT}, s{NT}
    s_cbranch_scc1 B_id2_{slot}
    s_cmp_lg_u32 s{MODE}, 0
    s_cbranch_scc1 B_id2_{slot}
    s_mov_b32 s{ISSUED}, 3''')
            wvfirst()
            a(f'    s_branch B_cont_{slot}')
            a(f'B_id2_{slot}:')
        a(f'''
    s_nop 7
    s_branch B_cont_{slot}''')
    a(f"""
L_late:
    s_mov_b64 exec, {sp(S1)}
    s_cbranch_execz Y_done""")
    absorb1()
    a(f"""
    s_mov_b64 exec, {sp(S0)}
    s_cbranch_execz Z_doneb""")
    absorb0('b')
    a(f"""
    s_or_b64 exec, {sp(S0)}, {sp(S1)}
    s_cbranch_execnz L_ret
    s_mov_b32 s{OWNP}, 0
    s_mov_b64 exec, 1
    ds_add_u32 v{ZERO}, v{FOUR} offset:{L_DONE}""")
    if st:
        a(f'    v_writelane_b32 v{STV}, s{POLLN}, 15')
        a('    s_memrealtime s[98:99]')
        a('    s_waitcnt lgkmcnt(0)')
        a(f'    v_writelane_b32 v{STV}, s98, 7')
    a(f"""
L_ret:
    s_mov_b64 exec, -1
    s_waitcnt lgkmcnt(0)
    s_setpc_b64 {sp(LINK)}
G_short:
    v_readfirstlane_b32 s{X0}, v{T+1}
    s_cmp_eq_u32 s{OWNP}, 0
    s_cbranch_scc1 G_s2""")
    if sw < 4:
        a(f"""
    s_cmp_lg_u32 s{OWNP}, 2
    s_cbranch_scc1 G_s1
    s_call_b64 {sp(LINK)}, L_s2
    s_branch G_more
L_s2:
    s_mov_b64 exec, {sp(FR)}""")
        if opt.get('srt') == 2 and sw == 1:
            sort_rest()
        if band:
            for r in range(2):
                a(f'''
    v_cmp_ne_u32 {sp(VM+2*r)}, s{SEMPTY}, v{EN+r}
    s_andn2_b64 {sp(VM+2*r)}, {sp(VM+2*r)}, {sp(B1+2*r)}
    s_mov_b64 exec, {sp(VM+2*r)}
    ds_add_rtn_u32 v{RK+r}, v{G4+r}, v{FOUR} offset:{L_BCNT}
    s_mov_b64 exec, {sp(FR)}''')
            brank(2, sp(FR))
            brank(3, sp(FR))
            for r in range(4):
                a('    s_waitcnt lgkmcnt(3)')
                bput(r)
        else:
            rankwords(list(range(sw, 4)))
        a(settle)
        a(f'    s_setpc_b64 {sp(LINK)}')
        a('G_s1:')
    a(f"""
    s_waitcnt vmcnt(0)
    s_call_b64 {sp(LINK)}, L_late
    s_branch G_more
G_s2:
    s_sleep 1
    s_cmp_lt_u32 s{X0}, 64
    s_cbranch_scc1 G_more""")
    if qdef:
        qfinish()
    a(f'''
B_counts:
    s_mov_b32 s{RET}, 2
F_final:
    s_cmp_eq_u32 s{OWNP}, 0
    s_cbranch_scc1 F_spin
    s_waitcnt vmcnt(0)
    s_call_b64 {sp(LINK)}, L_late
    s_branch F_final
F_spin:
    ds_read_b32 v{T+1}, v{CNTA} offset:{L_BCNT}
    s_waitcnt lgkmcnt(0)
    v_readlane_b32 s{X0}, v{T+1}, 26
    v_sub_u32 v{T+3}, v{T+1}, v{LBASE}
    s_cmp_lt_u32 s{X0}, 64
    s_cbranch_scc1 F_spin
    v_cmp_ne_u32 {sp(X0)}, 0, v{T+1}
    v_cmp_lt_u32 vcc, {GSTRIDE}, v{T+3}
    v_readlane_b32 s{NT}, v{T+3}, s{WID}
    s_and_b32 s{X0}, s{X0}, 0x1ff0000
    s_and_b32 s{X0+1}, vcc_lo, 0xffff
    s_or_b32 s{NTI}, s{X0+1}, s{X0}
    s_or_b32 s{NTI}, s{NTI}, s{MODE}
    s_cbranch_scc1 C_slowcnt
B_cntok:
    s_add_u32 s{NT}, s{NT}, 127
    s_lshr_b32 s{NT}, s{NT}, 7              ; tiles
    s_mov_b32 s{NTI}, s{NT}
    s_cbranch_scc0 B_loopdone
    s_cmp_eq_u32 s{RET}, 0
    s_cbranch_scc1 F_ret_0
    s_cmp_eq_u32 s{RET}, 1
    s_cbranch_scc1 F_ret_1
    s_branch B_first
K_ticket:
    v_mov_b32 v{T+1}, 1
    global_atomic_add v{ATK}, v{ZERO}, v{T+1}, s[16:17] sc0 sc1
    s_waitcnt vmcnt(0)
    v_readfirstlane_b32 s{X0}, v{ATK}
    s_cmp_eq_u32 s{X0}, {NWG-1}
    s_cbranch_scc1 K_adv
    s_branch K_skip
B_first:
    ds_read_b128 {vr(XA,4)}, v{EA}
    ds_read_b128 {vr(XA+4,4)}, v{EA} offset:128
    s_waitcnt lgkmcnt(0)
    s_cmp_eq_u32 s{ISSUED}, 1
    s_cbranch_scc1 B_f1''')
    dma(XA, 0)
    a(f'''
B_f1:
    s_cmp_lt_u32 s{NT}, 2
    s_cbranch_scc1 B_go''')
    dma(XA+4, 1)
    a('    s_branch B_go')
    def drop_lines():
        for r in range(4):
            a(f'    v_mov_b32 v{EN+r}, {EMPTY}')
        a(f'''
    v_lshrrev_b32 v{T}, 2, v0
    v_lshrrev_b32 v{T+1}, 5, v{T}
    v_lshlrev_b32 v{T+1}, 2, v{T+1}
    v_lshlrev_b32 v{T}, v{T}, 1
    ds_or_b32 v{T+1}, v{T} offset:{L_RESC}''')
    a(f'''
A_full:
    s_wqm_b64 exec, {sp(S0)}
    v_mov_b32 v40, {FULLM}
    v_mov_b32 v41, {EMPTY}
    v_mov_b32 v42, {EMPTY}
    v_mov_b32 v43, {EMPTY}
    s_mov_b64 exec, -1
    s_branch A_pub''')
    for tag in rare:
        a(f'''
Z_give{tag}:
    ds_write_b32 v{ZERO}, v{FOUR} offset:{L_GAVE}''')
        drop_lines()
        a(f'''
    s_mov_b64 {sp(S0)}, 0
    s_mov_b32 s{POLLN}, 0
    s_branch Z_nr{tag}
Z_full{tag}:
    s_mov_b64 exec, vcc''')
        drop_lines()
        a(f'    s_branch Z_rank{tag}')
    a('Y_lost:')
    for r in range(4, 8):
        a(f'    v_mov_b32 v{EN+r}, {EMPTY}')
    a(f'''
    s_mov_b64 {sp(S1)}, 0
    s_branch Y_nr
C_slowcnt:
    s_cmp_lg_u32 s{MODE}, 0
    s_cbranch_scc1 C_careful''')
    for k in range(8):
        a(f'    v_readlane_b32 s{RESC+k}, v{T+1}, {16+k}')
    a(f'''
    v_readlane_b32 s{GAVE}, v{T+1}, 25
    s_mov_b32 s{MODE}, 2
    s_cmp_lg_u32 s{X0+1}, 0
    s_cbranch_scc1 C_redo
    s_mov_b32 s{MODE}, 1
    s_branch B_cntok
C_redo:
    ; a list ran over its neighbour: forget what was accumulated and redo all entries carefully''')
    for r in range(16):
        a(f'    v_mov_b32 v{ACC+r}, 0')
    a(f'''
    s_branch C_next
C_careful:
    s_min_u32 s{NT}, s{NT}, {GSTRIDE}
    s_bitcmp1_b32 s{X0}, 24
    s_cselect_b32 s{MODE}, 2, 1
    s_branch B_cntok
C_next:
    s_setprio 0
    s_mov_b32 s{ISSUED}, 0
    s_waitcnt vmcnt(0) lgkmcnt(0)
    s_barrier
    s_cmp_eq_u32 s{MODE}, 2
    s_cbranch_scc1 C_round
    s_mov_b32 s{X0}, -1''')
    for k in range(7, -1, -1):
        a(f'''
    s_ff1_i32_b32 s{X0+1}, s{RESC+k}
    s_add_u32 s{X0+1}, s{X0+1}, {32*k}
    s_cmp_lg_u32 s{RESC+k}, 0
    s_cselect_b32 s{X0}, s{X0+1}, s{X0}''')
    a(f'''
    s_cmp_eq_u32 s{X0}, -1
    s_cbranch_scc1 B_epi
    s_lshr_b32 s{X0+1}, s{X0}, 5
    s_lshl_b32 s{X0+2}, 1, s{X0}''')
    for k in range(8):
        a(f'''
    s_andn2_b32 s{X0+3}, s{RESC+k}, s{X0+2}
    s_cmp_eq_u32 s{X0+1}, {k}
    s_cselect_b32 s{RESC+k}, s{X0+3}, s{RESC+k}''')
    a(f'''
    s_mul_i32 s{X0}, s{X0}, {CH*4}''')
    for k in range(4):
        a(f'''
    buffer_load_dword v{ED+k}, v{T4}, {sq(SDST)}, s{X0} offen
    buffer_load_dword v{ES+k}, v{T4}, {sq(SSRC)}, s{X0} offen
    s_add_u32 s{X0}, s{X0}, 4096''')
    for r in range(4, 8):
        a(f'    v_mov_b32 v{EN+r}, {EMPTY}')
    a(f'    v_mov_b32 v{T+1}, {EMPTY}')
    a('    s_waitcnt vmcnt(0)')
    for k in range(4):
        a(f'''
    v_and_b32 v{T}, 255, v{ED+k}
    v_cmp_eq_u32 vcc, s2, v{T}
    v_lshrrev_b32 v{ED+k}, 8, v{ED+k}
    v_lshl_or_b32 v{ES+k}, v{ES+k}, 7, v{ED+k}''')
        if k == 3:
            a(f'    s_and_b64 vcc, vcc, {sp(M3)}')
        a(f'    v_cndmask_b32 v{EN+k}, v{T+1}, v{ES+k}, vcc')
    a(f'''
C_round:
    v_mov_b32 v{T+4}, {EMPTY}
    v_mov_b32 v{T+5}, {EMPTY}
    v_mov_b32 v{T+6}, {EMPTY}
    v_mov_b32 v{T+7}, {EMPTY}
    ds_write_b128 v{T16}, {vr(T+4,4)} offset:{L_LIST}
    s_cmp_ge_u32 s{WID}, 6
    s_cbranch_scc1 C_i1
    ds_write_b128 v{T16}, {vr(T+4,4)} offset:{L_LIST+16384}
C_i1:
    s_cmp_lg_u32 s{WID}, 12
    s_cbranch_scc1 C_i2
    s_mov_b64 exec, 0xffff
    ds_write_b32 v{CNTA}, v{LBASE} offset:{L_BCNT}
    ds_write_b32 v{ZERO}, v{ZERO} offset:{L_PEND}
    s_mov_b64 exec, -1
C_i2:
    s_waitcnt lgkmcnt(0)
    s_barrier
    s_mov_b32 s{X0+4}, {GSTRIDE//4}
    s_mov_b32 s{X0+5}, {L_LIST+GSTRIDE}''')
    for r in range(8):
        brank(r, '-1')
        a(f'''
    v_mul_u32_u24 v{T+3}, s{X0+4}, v{G4+r}
    v_add_u32 v{T+3}, s{X0+5}, v{T+3}
    s_mov_b64 exec, {sp(VM+2*r)}
    s_waitcnt lgkmcnt(0)
    v_cmp_lt_u32 vcc, v{RK+r}, v{T+3}
    s_and_saveexec_b64 {sp(X0+6)}, vcc
    ds_write_b32 v{RK+r}, v{EN+r}
    v_mov_b32 v{EN+r}, {EMPTY}
    s_andn2_b64 exec, {sp(X0+6)}, exec
    ds_write_b32 v{ZERO}, v{FOUR} offset:{L_PEND}
    s_mov_b64 exec, -1''')
    a(f'''
    v_mov_b32 v{EA}, v{EA0}
    v_mov_b32 v{MAD}, v{MAD0}
    s_waitcnt lgkmcnt(0)
    s_barrier
L_last:
    s_branch B_counts''')
    if opt.get('red'):
        gen_red(a, opt)
    def kd(name, vg, sg):
        a(f'''
.p2align 6
.amdhsa_kernel {name}
  .amdhsa_next_free_vgpr {vg}
  .amdhsa_next_free_sgpr {sg}
  .amdhsa_accum_offset {vg}
  .amdhsa_group_segment_fixed_size 0
  .amdhsa_kernarg_size 64
  .amdhsa_user_sgpr_count 2
  .amdhsa_user_sgpr_kernarg_segment_ptr 1
  .amdhsa_system_sgpr_workgroup_id_x 1
.end_amdhsa_kernel''')
    a('.section .rodata,"a"')
    kd(KNAME, 128, 102)
    if opt.get('red'):
        kd('red_kernel', 32, 48)
    return a.text()

if __name__ == '__main__':
    out = sys.argv[1]
    opt = {}
    for kv in sys.argv[2:]:
        k, v = kv.split('=')
        try:
            v = int(v)
        except ValueError:
            v = '' if v == 'none' else ' ' + v.replace('+', ' ')
        opt[k] = v
    open(out, 'w').write(build(opt))
```

```python
import sys, struct
from gen3 import gen_red

N, E, D = 25000, 800000, 64
NWG = 256
CH = E // NWG
HSTRIDE = 16384 + 128
SEG_OFF = 4096
H1_OFF = 256 * HSTRIDE
WS_USED = SEG_OFF + 2 * H1_OFF
X_BYTES = N * 128
EMPTY = 0x003FFFFF
FULLM = 0x003FFFFE
KNAME = 'standalone__kernel_systems_refs_featgraph__graph_kernel'

L_ACNT = 0
L_BCNT = 1024
L_RESC = 1088
L_PEND = 1120
L_GAVE = 1124
L_DONE = 1128
L_LUT = 1152
L_WV = 2048
L_LIST = 10240
GSTRIDE = 1408
L_RING = 32768
L_XN = 65536
L_WQ = 98304
ISTRIDE = 144
L_IMG = 163840 - 256 * ISTRIDE
LDS = 163840
STAMP_OFF = 0x1000000

def f32bits(x):
    return struct.unpack('<I', struct.pack('<f', x))[0]

class Asm:
    def __init__(self):
        self.lines = []
    def __call__(self, s):
        for ln in s.strip('\n').split('\n'):
            if ln.strip():
                self.lines.append(ln)
    def text(self):
        return '\n'.join(self.lines) + '\n'

def vr(lo, n):
    return f'v[{lo}:{lo+n-1}]'
def sp(lo):
    return f's[{lo}:{lo+1}]'
def sq(lo):
    return f's[{lo}:{lo+3}]'

def srd(a, d, lo, nbytes):
    a(f'    s_mov_b32 s{d}, s{lo}')
    a(f'    s_mov_b32 s{d+1}, s{lo+1}')
    a(f'    s_mov_b32 s{d+2}, {nbytes}')
    a(f'    s_mov_b32 s{d+3}, 0x00020000')

LANE, T4, T16, FOUR, ZERO, ROWOFF, WVA = 1, 2, 3, 4, 5, 6, 7
QLO, QHI, ACC, XA, XT, S, PP, MA, MB, EE = 8, 16, 24, 40, 56, 72, 76, 80, 84, 88
M0R, M1R, RA0, RA1, RT, EA, MAD, CHK, EA0 = 92, 93, 94, 95, 96, 100, 101, 102, 103
T = 104
EN = 112
MAD0, PFD, ATK, STV, CNTA, EPV, LBASE = 120, 121, 122, 123, 124, 125, 126
ED, ES, B4, PS = 40, 44, 48, 52
WD, XN = 56, 60
IMGR, STO, WSA = 68, 69, 70
G4, RK = 40, 48

GAVE = 3
SX, SSRC, SDST, SW, EPOCH, ISSUED, SOUT, SWS = 20, 24, 28, 32, 34, 35, 36, 40
WID, SEGB, AMASK, RING, NT, TT = 44, 45, 46, 47, 48, 49
TAG = 50
SEMPTY, MODE, LOM, M3 = 54, 55, 56, 58
RESC = 60
FR, N1 = 60, 62
VM = 68
X0 = 84
H1SO, KFULL, S0, S1, K88, KTHR, PFT, POLLN, PRIME = 86, 87, 88, 90, 92, 94, 95, 96, 97
NTI, RET = 32, 33
OWNP, LINK = 97, 10

def build(opt):
    a = Asm()
    st = opt.get('stamps')
    def stamp(k):
        if st:
            ck = {0: 14, 7: 12, 9: 13}.get(k)
            if ck:
                a('    s_memtime s[100:101]')
            a('    s_memrealtime s[98:99]')
            a('    s_waitcnt lgkmcnt(0)')
            a(f'    v_writelane_b32 v{STV}, s98, {k}')
            if ck:
                a(f'    v_writelane_b32 v{STV}, s100, {ck}')
    launch = (f'; @launch kernel={KNAME} grid=({NWG},1,1) block=(1024,1,1) lds={LDS}' if opt.get('list') else
              f'; @launch grid=({NWG},1,1) block=(1024,1,1) lds={LDS}')
    if opt.get('red'):
        launch += '\n; @launch kernel=red_kernel grid=(1,1,1) block=(64,1,1) lds=0'
    sf = opt.get('st', ' sc1')
    lf = opt.get('ld', ' sc1')
    gf = opt.get('gather', '')
    of = opt.get('out', '')
    a(f'''; FeatGraph (SDDMM sigmoid gate + SpMM) in one launch, one workgroup per CU.
{launch}
.amdgcn_target "amdgcn-amd-amdhsa--gfx950"
.text
.globl {KNAME}
.p2align 8
.type {KNAME},@function
{KNAME}:
    s_cmp_ge_u32 s2, {NWG}
    s_cbranch_scc1 L_end''')
    if st:
        a(f'    v_mov_b32 v{STV}, 0')
        a(f'    v_mov_b32 v{ATK}, 0')
    stamp(0)
    a('    s_load_dwordx16 s[4:19], s[0:1], 0')
    a(f'''
    s_and_b32 s{X0}, s2, 7
    s_lshl_b32 s{X0}, s{X0}, 5
    s_lshr_b32 s2, s2, 3
    s_or_b32 s2, s2, s{X0}''')
    if opt.get('cpf'):
        a(f'''
    s_getpc_b64 {sp(S0)}
I_pc:
    v_lshlrev_b32 v127, 7, v0
    v_cmp_gt_u32 vcc, A_full-I_pc, v127
    s_and_saveexec_b64 {sp(S1)}, vcc
    s_cbranch_execz I_c
    global_load_dword v127, v127, {sp(S0)}
I_c:
    s_mov_b64 exec, -1''')
    a(f'''
    s_mul_i32 s{X0}, s2, {CH*4}
    v_lshlrev_b32 v{T4}, 2, v0
    v_lshrrev_b32 v{T+4}, 6, v0
    v_add_u32 v{T}, s{X0}, v{T4}
    v_readfirstlane_b32 s{WID}, v{T+4}
    v_add_u32 v{T+1}, 4096, v{T}
    v_add_u32 v{T+2}, 8192, v{T}
    v_add_u32 v{T+3}, 12288, v{T}
    v_cmp_gt_u32 {sp(M3)}, {CH-3072}, v0
    v_lshlrev_b32 v{T16}, 4, v0
    v_mov_b32 v{ZERO}, 0
    v_mov_b32 v{T+4}, {EMPTY}
    v_mov_b32 v{T+5}, {EMPTY}
    v_mov_b32 v{T+6}, {EMPTY}
    v_mov_b32 v{T+7}, {EMPTY}
    s_waitcnt lgkmcnt(0)
    {f'global_load_dword v{EPV}, v{ZERO}, s[18:19]      ; epoch word' if opt.get('epf') else ''}
    s_mov_b64 exec, {sp(M3)}
    s_cbranch_execz A_no3a
    global_load_dword v{ED+3}, v{T+3}, s[8:9]
    global_load_dword v{ES+3}, v{T+3}, s[6:7]
A_no3a:
    s_mov_b64 exec, -1''')
    for k in range(3):
        a(f'    global_load_dword v{ED+k}, v{T+k}, s[8:9]')
    for k in range(3):
        a(f'    global_load_dword v{ES+k}, v{T+k}, s[6:7]')
    a(f'''
    v_add_u32 v{T}, {L_IMG}, v{T16}
    ds_write_b128 v{T}, {vr(T+4,4)}
    ds_write_b128 v{T}, {vr(T+4,4)} offset:16384
    s_cmp_ge_u32 s{WID}, 4
    s_cbranch_scc1 I_a
    ds_write_b128 v{T}, {vr(T+4,4)} offset:32768
    ds_write_b32 v{T4}, v{ZERO} offset:{L_ACNT}
I_a:
    {f'global_load_dword v{EPV}, v{ZERO}, s[18:19]      ; epoch word' if not opt.get('epf') else ''}
    v_and_b32 v{LANE}, 63, v0
    v_mov_b32 v{FOUR}, 4''')
    srd(a, SX, 4, X_BYTES)
    a(f'''
    s_cmp_lt_u32 s{WID}, 8
    s_cselect_b32 s{SW}, s10, s12
    s_cselect_b32 s{SW+1}, s11, s13
    v_and_b32 v{T+3}, 0x1ff0, v{T16}
    v_lshrrev_b32 v{T}, 3, v{LANE}
    v_and_b32 v{T+1}, 7, v{LANE}
    v_xor_b32 v{T+1}, v{T+1}, v{T}
    v_lshlrev_b32 v{T+1}, 4, v{T+1}
    v_lshlrev_b32 v{T}, 19, v{T}
    s_lshl_b32 s{X0}, s{WID}, 15
    s_lshl_b32 s{X0+1}, s2, 7
    s_add_u32 s{X0}, s{X0}, s{X0+1}
    v_add3_u32 v{ROWOFF}, v{T}, v{T+1}, s{X0}
    s_lshl_b32 s{X0}, s{WID}, 10
    s_add_u32 m0, s{X0}, {L_XN}
    s_waitcnt lgkmcnt(0)
    s_barrier''')
    xw = opt.get('xw', 0)
    def wload():
        a(f'    v_and_b32 v{T+3}, 0x1ff0, v{T16}')
        a(f'    global_load_dwordx4 {vr(WD,4)}, v{T+3}, {sp(SW)}')
    def xload():
        a(f'    buffer_load_dwordx4 v{ROWOFF}, {sq(SX)}, 0 offen lds')
    if xw in (0, 2):
        wload()
    if xw == 0:
        xload()
    pfpos = [0]
    def prefetch(n):
        lo, hi = pfpos[0], pfpos[0] + n
        pfpos[0] = hi
        m = ((1 << hi) - 1) ^ ((1 << lo) - 1)
        a(f'''
    s_lshr_b32 s{PFT}, s2, 3
    s_lshl_b32 s{PFT}, s{PFT}, 4
    s_add_u32 s{PFT}, s{PFT}, s{WID}
    s_mul_i32 s{PFT}, s{PFT}, {49*128}
    v_lshlrev_b32 v{T}, 7, v{LANE}
    s_mov_b32 exec_lo, 0x{m & 0xffffffff:x}
    s_mov_b32 exec_hi, 0x{m >> 32:x}
    buffer_load_dword v{ATK}, v{T}, {sq(SX)}, s{PFT} offen
    s_mov_b64 exec, -1''')
    p = 0
    srd(a, SWS, 18, WS_USED)
    if opt.get('tlb'):
        sh = opt['tlb']
        n1 = -(-(SEG_OFF + 2*H1_OFF) // (16 << sh))
        n2 = -(-X_BYTES // (16 << sh))
        srd(a, SOUT, 14, X_BYTES)
        a(f'''
    s_mul_i32 s{PFT}, s{WID}, {n1}
    v_add_u32 v{T}, s{PFT}, v{LANE}
    v_lshlrev_b32 v{T}, {sh}, v{T}
    s_mul_i32 s{PFT}, s{WID}, {n2}
    v_add_u32 v{T+1}, s{PFT}, v{LANE}
    v_lshlrev_b32 v{T+1}, {sh}, v{T+1}
    s_mov_b64 exec, {(1 << n1) - 1}
    buffer_load_dword v{ATK}, v{T}, {sq(SWS)}, 0 offen
    s_mov_b64 exec, {(1 << n2) - 1}
    buffer_load_dword v{ATK}, v{T+1}, {sq(SOUT)}, 0 offen
    s_mov_b64 exec, -1''')
        p += 2
    if opt.get('pf1'):
        prefetch(opt['pf1'])
        p += 1
    nw = {0: 2, 1: 0, 2: 1, 3: 0}[xw]
    y = (0 if opt.get('epf') else 1) + nw + p
    wdec = 1
    stamp(1)
    a(f'''
    ds_write_b128 v{T16}, {vr(T+4,4)} offset:{L_LIST}
    s_cmp_ge_u32 s{WID}, 6
    s_cbranch_scc1 I_b
    ds_write_b128 v{T16}, {vr(T+4,4)} offset:{L_LIST+16384}
I_b:
    v_and_b32 v{LBASE}, 15, v{LANE}
    v_mul_u32_u24 v{LBASE}, {GSTRIDE}, v{LBASE}
    v_add_u32 v{LBASE}, {L_LIST}, v{LBASE}
    v_and_b32 v{CNTA}, 0x7c, v{T4}
    s_cmp_lg_u32 s{WID}, 12
    s_cbranch_scc1 I_done
    v_cmp_gt_u32 vcc, 16, v{LANE}
    s_mov_b32 exec_hi, 0
    s_nop 0
    v_cndmask_b32 v{T+2}, 0, v{LBASE}, vcc
    ds_write_b32 v{CNTA}, v{T+2} offset:{L_BCNT}
    s_mov_b64 exec, 0xff
    v_cvt_f32_u32 v{T+2}, v{LANE}
    v_mul_f32 v{T+3}, v{T+2}, v{T+2}
    v_cvt_pk_bf16_f32 v{T+2}, v{T+3}, v{T+2}
    v_lshlrev_b32 v{T+3}, 4, v{LANE}
    ds_write_b32 v{T+3}, v{T+2} offset:{L_LUT}
    s_mov_b64 exec, -1
I_done:''')
    a(f'''
''')
    G = opt.get('grp', 2)
    lg = G.bit_length() - 1
    BLK = G * HSTRIDE
    a(f'''
    s_lshl_b32 s{X0}, s2, {6+lg}
    s_add_u32 s{X0}, s{X0}, {SEG_OFF}
    s_add_u32 s{X0+1}, s{X0}, {H1_OFF}
    s_lshr_b32 s{SEGB}, s2, {lg}
    s_mul_i32 s{SEGB}, s{SEGB}, {BLK}
    s_and_b32 s{S0}, s2, {G-1}
    s_lshl_b32 s{S0}, s{S0}, 6
    s_add_u32 s{SEGB}, s{SEGB}, s{S0}
    s_add_u32 s{SEGB}, s{SEGB}, {SEG_OFF}
    v_lshrrev_b32 v{T}, 2, v0
    v_and_b32 v{T+1}, 3, v0
    v_mul_u32_u24 v{IMGR}, {ISTRIDE}, v{T}
    v_lshl_add_u32 v{IMGR}, v{T+1}, 2, v{IMGR}
    v_add_u32 v{IMGR}, {L_IMG}, v{IMGR}
    v_lshrrev_b32 v{T+2}, {2+lg}, v0
    v_mul_u32_u24 v{STO}, {BLK}, v{T+2}
    v_and_b32 v{T+2}, {64*G-1}, v{T16}
    v_add_u32 v{STO}, v{STO}, v{T+2}
    v_lshlrev_b32 v{T+1}, 4, v{T+1}
    v_lshl_add_u32 v{PFD}, v{T}, {6+lg}, v{T+1}''')
    pair = 1
    LDV = PFD if pair else T16
    a(f'''
    s_mov_b32 s{SEMPTY}, {EMPTY}
    s_mov_b32 s{KTHR}, {L_IMG}
    s_mov_b32 s{K88}, 0x88888888
    s_mov_b32 s{K88+1}, 0x88888888
    v_bfe_u32 v{T}, v0, 3, 6
    v_and_b32 v{T+1}, 7, v0
    v_bfe_u32 v{T+2}, v{T}, 1, 1
    v_and_or_b32 v{T+2}, v{T}, 8, v{T+2}
    v_bfe_u32 v{T+3}, v{T}, 1, 2
    s_cmp_lt_u32 s{WID}, 8
    s_cselect_b64 {sp(S0)}, -1, 0
    s_mov_b32 s{S1}, {L_WV}
    s_cselect_b32 s{S1}, {L_WQ}, s{S1}
    v_cndmask_b32 v{T+2}, v{T+3}, v{T+2}, {sp(S0)}
    v_lshlrev_b32 v{T+1}, 1, v{T+1}
    v_xor_b32 v{T+1}, v{T+1}, v{T+2}
    v_lshlrev_b32 v{T+1}, 3, v{T+1}
    v_lshl_add_u32 v{T+1}, v{T}, 7, v{T+1}
    v_add_u32 v{WSA}, s{S1}, v{T+1}
    v_xor_b32 v{WSA+1}, 8, v{WSA}
    v_bfrev_b32 v{T+4}, -2''')
    def arank(k):
        a(f'''
    v_lshlrev_b32_sdwa v{B4+k}, 2, v{ED+k} dst_sel:DWORD dst_unused:UNUSED_PAD src0_sel:DWORD src1_sel:BYTE_0
    ds_add_rtn_u32 v{PS+k}, v{B4+k}, v{FOUR} offset:{L_ACNT}''')
    def aentry(k):
        a(f'''
    v_lshrrev_b32 v{ED+k}, 8, v{ED+k}
    v_lshl_or_b32 v{ES+k}, v{ES+k}, 7, v{ED+k}
    v_mad_u32_u24 v{B4+k}, v{B4+k}, {ISTRIDE//4}, s{KTHR}''')
    def aput(k):
        a(f'''
    v_min_u32 v{PS+k}, {ISTRIDE-4}, v{PS+k}
    v_add_u32 v{PS+k}, v{PS+k}, v{B4+k}
    ds_write_b32 v{PS+k}, v{ES+k}''')
    a(f'    s_waitcnt vmcnt({y+3})')
    stamp(2)
    for k in range(3):
        arank(k)
    a(f'    s_waitcnt vmcnt({y})')
    for k in range(3):
        aentry(k)
    for k in range(3):
        a('    s_waitcnt lgkmcnt(2)')
        aput(k)
    a(f'''
    s_mov_b64 exec, {sp(M3)}
    s_cbranch_execz A_no3b''')
    arank(3)
    aentry(3)
    a('    s_waitcnt lgkmcnt(0)')
    aput(3)
    a(f'''
A_no3b:
    s_mov_b64 exec, -1
    s_waitcnt vmcnt({p + nw})
    v_readfirstlane_b32 s{EPOCH}, v{EPV}''')
    if xw == 3:
        wload()
        xload()
    if opt.get('pfr'):
        prefetch(opt['pfr'])
        p += 1
    a(f'''
    {f'ds_write_b64 v{WSA}, {vr(WD,2)}' if not wdec else ''}
    {f'ds_write_b64 v{WSA+1}, {vr(WD+2,2)}' if not wdec else ''}
    s_add_u32 s{EPOCH}, s{EPOCH}, 1
    s_lshl_b32 s{TAG}, s{EPOCH}, 22
    s_lshl_b32 s{TAG+1}, s{EPOCH}, 12
    s_and_b32 s{TAG+1}, s{TAG+1}, 0xffc00000
    s_lshl_b32 s{TAG+2}, s{EPOCH}, 2
    s_and_b32 s{TAG+2}, s{TAG+2}, 0xffc00000
    s_xor_b32 s{TAG+3}, s{TAG}, 0xffc00000
    s_waitcnt lgkmcnt(0)
    s_barrier''')
    stamp(3)
    a(f'''
    ds_read2_b32 {vr(46,2)}, v{IMGR} offset0:24 offset1:28
    ds_read2_b32 {vr(40,2)}, v{IMGR} offset0:0 offset1:4
    ds_read2_b32 {vr(42,2)}, v{IMGR} offset0:8 offset1:12
    ds_read2_b32 {vr(44,2)}, v{IMGR} offset0:16 offset1:20
    s_waitcnt lgkmcnt(3)
    v_cmp_ne_u32 vcc, s{SEMPTY}, v47
    s_and_b64 {sp(S0)}, vcc, {sp(K88)}
    s_waitcnt lgkmcnt(1)
    s_cbranch_scc1 A_full
A_pub:
    v_cmp_ne_u32 vcc, s{SEMPTY}, v43''')
    for r in range(4):
        a(f'    v_or_b32 v{40+r}, s{TAG+r}, v{40+r}')
    a(f'''
    buffer_store_dwordx4 {vr(40,4)}, v{STO}, {sq(SWS)}, s{X0} offen{sf}
    s_and_b64 {sp(S0)}, vcc, {sp(K88)}''')
    if opt.get('h1o'):
        a(f'''
    s_lshr_b64 {sp(S1)}, {sp(S0)}, 4
    s_or_b64 {sp(S0)}, {sp(S0)}, {sp(S1)}
    s_and_b32 s{S0}, s{S0}, 0x08080808
    s_and_b32 s{S0+1}, s{S0+1}, 0x08080808
    s_lshl_b64 {sp(S1)}, {sp(S0)}, 4
    s_or_b64 {sp(S0)}, {sp(S0)}, {sp(S1)}''')
    a(f'''
    s_wqm_b64 vcc, {sp(S0)}
    s_waitcnt lgkmcnt(0)''')
    for r in range(4):
        a(f'    v_or_b32 v{44+r}, s{TAG+r}, v{44+r}')
    a(f'''
''')
    h1f = opt.get('h1f', 0)
    if h1f:
        a(f'''
    v_and_b32 v{T+5}, 0x30, v{T16}
    v_lshlrev_b32 v{STO}, 1, v{STO}
    v_sub_u32 v{STO}, v{STO}, v{T+5}''')
    a(f'''
    v_cndmask_b32 v{STO}, v{T+4}, v{STO}, vcc
    buffer_store_dwordx4 {vr(44,4)}, v{STO}, {sq(SWS)}, s{X0+1} offen{sf}''')
    if h1f == 2:
        a(f'    buffer_store_dwordx4 {vr(44,4)}, v{STO}, {sq(SWS)}, s{X0+1} offen offset:64{sf}')
        p += 1
    H1V = LDV
    if h1f:
        H1V = PFD
        a(f'''
    v_lshlrev_b32 v{PFD}, 1, v{T16}
    v_sub_u32 v{PFD}, v{PFD}, v{T+5}''')
    if opt.get('pfb'):
        prefetch(opt['pfb'])
        p += 1
    stamp(4)
    if xw == 1:
        wload()
    if xw in (1, 2):
        xload()
    def wstage(n):
        a(f'''
    s_waitcnt vmcnt({n})
    ds_write_b64 v{WSA}, {vr(WD,2)}
    ds_write_b64 v{WSA+1}, {vr(WD+2,2)}''')
    if xw in (0, 2):
        wstage(p + 3)
    WQA, XNA = 88, 92
    a(f"""
    v_lshrrev_b32 v{T+5}, 4, v{LANE}        ; g
    v_bfe_u32 v{T+1}, v{LANE}, 2, 2
    v_lshl_add_u32 v{T+2}, v{T+5}, 3, v{T+1}
    v_bfe_u32 v{T+3}, v{T+2}, 1, 1
    v_and_or_b32 v{T+3}, v{T+2}, 8, v{T+3}
    v_and_b32 v{T+4}, 3, v{LANE}            ; c
    v_lshlrev_b32 v{T+6}, 1, v{T+4}
    v_xor_b32 v{T+3}, v{T+3}, v{T+6}
    v_lshlrev_b32 v{T+3}, 3, v{T+3}
    v_lshl_add_u32 v{T}, v{T+2}, 7, v{T+3}
    v_add_u32 v{WQA}, {L_WQ}, v{T}
    v_xor_b32 v{WQA+1}, 8, v{WQA}
    v_xor_b32 v{WQA+2}, 64, v{WQA}
    v_xor_b32 v{WQA+3}, 0x48, v{WQA}
    v_and_b32 v{T+7}, 7, v{LANE}
    v_xor_b32 v{T}, v{T+5}, v{T+7}
    v_lshlrev_b32 v{T}, 4, v{T}
    v_lshl_add_u32 v{T}, v{T+7}, 7, v{T}
    s_lshl_b32 s{X0}, s{WID}, 10
    s_add_u32 s{X0}, s{X0}, {L_XN}
    v_add_u32 v{XNA}, s{X0}, v{T}
    v_xor_b32 v{XNA+1}, 64, v{XNA}""")
    srd(a, SOUT, 14, X_BYTES)
    srd(a, SSRC, 6, E*4)
    srd(a, SDST, 8, E*4)
    a(f"""
    s_add_u32 s{H1SO}, s{SEGB}, {H1_OFF}
    {f's_mul_i32 s{H1SO}, s2, {2*HSTRIDE}' if h1f else ''}
    {f's_add_u32 s{H1SO}, s{H1SO}, {SEG_OFF+H1_OFF}' if h1f else ''}
    s_mov_b32 s{AMASK}, 0x003fff80
    s_lshl_b32 s{RING}, s{WID}, 13
    s_add_u32 s{RING}, s{RING}, {L_RING}
    s_mov_b32 s{MODE}, 0
    s_mov_b32 s{GAVE}, 0
    s_mov_b32 s{LOM}, 0x00ff00ff
    s_mov_b32 s{LOM+1}, 0x00ff00ff
    v_and_b32 v{T+1}, 15, v{LANE}           ; i
    v_lshrrev_b32 v{T}, 3, v{LANE}
    v_and_b32 v{T+6}, 6, v{T}
    v_xor_b32 v{T+6}, v{T+6}, v{T+7}
    v_lshlrev_b32 v{CHK}, 4, v{T+6}
    s_mul_i32 s{X0}, s{WID}, {GSTRIDE}
    s_add_u32 s{X0}, s{X0}, {L_LIST}
    v_lshl_add_u32 v{EA0}, v{T}, 4, s{X0}
    v_bfe_u32 v{T+6}, v{LANE}, 3, 2
    v_lshl_add_u32 v{T+6}, v{T+7}, 2, v{T+6}
    v_lshl_add_u32 v{MAD0}, v{T+6}, 2, s{X0}
    v_and_b32 v{T+6}, 6, v{T+1}
    v_xor_b32 v{T+6}, v{T+6}, v{T+5}
    v_lshlrev_b32 v{T+6}, 4, v{T+6}
    v_lshl_add_u32 v{T+6}, v{T+1}, 7, v{T+6}
    v_add_u32 v{RA0}, s{RING}, v{T+6}
    v_xor_b32 v{RA1}, 64, v{RA0}
    v_lshrrev_b32 v{T+6}, 2, v{LANE}        ; row = 4g+r
    v_and_b32 v{T+1}, 6, v{T+6}
    v_bfe_u32 v{T+5}, v{LANE}, 1, 1
    v_xor_b32 v{T+1}, v{T+1}, v{T+5}
    v_lshlrev_b32 v{T+1}, 4, v{T+1}
    v_lshl_add_u32 v{T+1}, v{T+6}, 7, v{T+1}
    v_and_b32 v{T+5}, 1, v{LANE}
    v_lshl_add_u32 v{T+1}, v{T+5}, 3, v{T+1}
    v_add_u32 v{RT}, s{RING}, v{T+1}
    v_xor_b32 v{RT+1}, 32, v{RT}
    v_xor_b32 v{RT+2}, 64, v{RT}
    v_xor_b32 v{RT+3}, 0x60, v{RT}
    v_bfe_u32 v{T+5}, v{T+6}, 1, 2
    v_lshl_or_b32 v{T+5}, v{T+4}, 2, v{T+5}
    v_lshlrev_b32 v{T+5}, 3, v{T+5}
    v_lshl_add_u32 v{WVA}, v{T+6}, 7, v{T+5}
    v_lshrrev_b32 v{T+5}, 3, v{LANE}
    v_and_b32 v{T+5}, 6, v{T+5}
    v_xor_b32 v{T+5}, v{T+5}, v{T+7}
    v_lshlrev_b32 v{T+5}, 4, v{T+5}
    v_lshl_add_u32 v{T+5}, v{T+7}, 7, v{T+5}
    v_add_u32 v{EPV}, s{RING}, v{T+5}
    v_mov_b32 v{MA+1}, 0x00003f80
    v_mov_b32 v{MA+2}, 0
    v_mov_b32 v{MA+3}, 0
    v_mov_b32 v{MB}, 0
    v_mov_b32 v{MB+1}, 0
    v_mov_b32 v{MB+2}, 0
    v_mov_b32 v{MB+3}, 0
    v_cvt_f32_u32 v{T+5}, v{T+7}            ; j' = l&7
    v_mov_b32 v{T+6}, 0x71800000            ; BIG = 2^100
    v_mul_f32 v{T+7}, v{T+5}, v{T+6}
    v_mul_f32 v{T+5}, v{T+5}, v{T+7}
    v_mul_f32 v{T+7}, -2.0, v{T+7}
    s_mov_b32 exec_lo, 0xff0000ff
    s_mov_b32 exec_hi, 0
    v_cvt_pk_bf16_f32 v{MB}, v{T+6}, v{T+7}
    v_cvt_pk_bf16_f32 v{MB+1}, v{T+5}, 0
    s_mov_b64 exec, -1""")
    for r in range(16):
        a(f'    v_mov_b32 v{ACC+r}, 0')
    for r in range(8):
        a(f'    v_mov_b32 v{QLO+r}, 0')
    for r in range(4, 8):
        a(f'    v_mov_b32 v{EN+r}, {EMPTY}')
    a(f"""
    s_mov_b32 s{POLLN}, 0
    s_mov_b32 s{KTHR}, 0x400000
    s_mov_b32 s{KFULL}, {FULLM}
    s_mov_b64 {sp(S0)}, -1
    s_mov_b64 {sp(S1)}, 0
""")
    if xw in (1, 3):
        wstage(1 if xw == 1 else 3)
    a(f"""
    s_waitcnt vmcnt(0) lgkmcnt(0)
    s_barrier
    buffer_load_dwordx4 {vr(EN,4)}, v{LDV}, {sq(SWS)}, s{SEGB} offen{lf}
    s_mov_b64 exec, {sp(LOM)}
    ds_read_b128 {vr(QLO,4)}, v{XNA}
    ds_read_b128 {vr(QLO+4,4)}, v{XNA+1}
    s_mov_b64 exec, -1""")
    dreg = [QHI, QHI+4, S, S+4]
    for blk in range(4):
        for ks in range(2):
            for h in range(2):
                a(f'    ds_read_b64_tr_b16 {vr(XA+blk*8+ks*4+h*2,2)}, v{WQA+blk} offset:{(32*ks+4*h)*128}')
        if blk == 2:
            a('    s_waitcnt lgkmcnt(8)')
    for blk in range(4):
        a(f'    s_waitcnt lgkmcnt({min(8, 12-4*blk) if blk else 12})')
        a(f'    v_mfma_f32_16x16x32_bf16 {vr(dreg[blk],4)}, {vr(XA+blk*8,4)}, {vr(QLO,4)}, 0')
        a(f'    v_mfma_f32_16x16x32_bf16 {vr(dreg[blk],4)}, {vr(XA+blk*8+4,4)}, {vr(QLO+4,4)}, {vr(dreg[blk],4)}')
    def qfinish():
        a(f'    s_mov_b32 s{X0}, 0x{f32bits(-1.4426950408889634/8):08x}')
        a(f'    s_mov_b32 s{X0+1}, s{X0}')
        a('    s_nop 1')
        for blk in range(4):
            a(f'    v_pk_mul_f32 {vr(dreg[blk],2)}, {vr(dreg[blk],2)}, {sp(X0)}')
            a(f'    v_pk_mul_f32 {vr(dreg[blk]+2,2)}, {vr(dreg[blk]+2,2)}, {sp(X0)}')
        for blk in range(4):
            a(f'    v_cvt_pk_bf16_f32 v{QLO+2*blk}, v{dreg[blk]}, v{dreg[blk]+1}')
            a(f'    v_cvt_pk_bf16_f32 v{QLO+2*blk+1}, v{dreg[blk]+2}, v{dreg[blk]+3}')
        for r in range(8):
            a(f'    v_mov_b32_dpp v{QHI+r}, v{QLO+r} row_ror:8 row_mask:0xf bank_mask:0xf')
    qdef = opt.get('qdef', 0)
    if not qdef:
        qfinish()
    stamp(5)
    def check(h, dst):
        for r in range(4):
            a(f'    v_xor_b32 v{EN+4*h+r}, s{TAG+r}, v{EN+4*h+r}')
        a(f'''
    v_or3_b32 v{T}, v{EN+4*h}, v{EN+4*h+1}, v{EN+4*h+2}
    v_or_b32 v{T}, v{T}, v{EN+4*h+3}
    v_cmp_le_u32 {dst}, s{KTHR}, v{T}''')
    def brank(r, base, skip=None):
        m = VM + 2*r
        a(f'''
    v_cmp_ne_u32 {sp(m)}, s{SEMPTY}, v{EN+r}
    v_and_b32 v{G4+r}, 15, v{EN+r}
    v_lshlrev_b32 v{G4+r}, 2, v{G4+r}
    s_mov_b64 exec, {sp(m)}''')
        if skip:
            a(f'    s_cbranch_execz {skip}')
        a(f'''
    ds_add_rtn_u32 v{RK+r}, v{G4+r}, v{FOUR} offset:{L_BCNT}
    s_mov_b64 exec, {base}''')
    def bput(r):
        a(f'''
    s_mov_b64 exec, {sp(VM+2*r)}
    ds_write_b32 v{RK+r}, v{EN+r}''')
    rare = []
    def rankwords(ws):
        for r in ws:
            brank(r, sp(FR))
        for r in ws:
            a(f'    s_waitcnt lgkmcnt({len(ws)-1})')
            bput(r)
    def sort_rest():
        a(f'''
    v_min3_u32 v{T}, v{EN+1}, v{EN+2}, v{EN+3}
    v_med3_u32 v{T+1}, v{EN+1}, v{EN+2}, v{EN+3}
    v_max3_u32 v{EN+3}, v{EN+1}, v{EN+2}, v{EN+3}
    v_mov_b32 v{EN+1}, v{T}
    v_mov_b32 v{EN+2}, v{T+1}''')
    band = opt.get('band', 0)
    B1 = 64
    sw = opt.get('sw', 4)
    def absorb0(tag, nw=4):
        check(0, 'vcc')
        a(f'''
    s_wqm_b64 vcc, vcc
    s_andn2_b64 {sp(FR)}, {sp(S0)}, vcc
    s_mov_b64 {sp(S0)}, vcc
    s_mov_b64 exec, vcc
    s_cbranch_execz Z_nr{tag}
    s_add_u32 s{POLLN}, s{POLLN}, 1
    s_cmp_gt_u32 s{POLLN}, {opt.get('pollmax', 2000)}
    s_cbranch_scc1 Z_give{tag}
    buffer_load_dwordx4 {vr(EN,4)}, v{LDV}, {sq(SWS)}, s{SEGB} offen{lf}
Z_nr{tag}:
    s_mov_b64 exec, {sp(FR)}
    s_cbranch_execz Z_done{tag}
    v_cmp_ne_u32 {sp(N1)}, s{SEMPTY}, v{EN+3}
    v_cmp_eq_u32 vcc, s{KFULL}, v{EN}
    s_and_b64 {sp(N1)}, {sp(N1)}, {sp(K88)}
    s_wqm_b64 exec, {sp(N1)}
    {'s_mov_b64 exec, 0' if opt.get('x_noh1') else ''}
    s_cbranch_execz Z_nh{tag}
    s_or_b64 {sp(S1)}, {sp(S1)}, exec
    buffer_load_dwordx4 {vr(EN+4,4)}, v{H1V}, {sq(SWS)}, s{H1SO} offen{lf}
Z_nh{tag}:
    s_cbranch_vccnz Z_full{tag}
Z_rank{tag}:
    s_mov_b64 exec, {sp(FR)}''')
        if opt.get('srt') and tag == 'a':
            a(f'''
    v_min_u32 v{T}, v{EN}, v{EN+1}
    v_max_u32 v{EN+1}, v{EN}, v{EN+1}
    v_min_u32 v{T+1}, v{EN+2}, v{EN+3}
    v_max_u32 v{EN+3}, v{EN+2}, v{EN+3}
    v_min_u32 v{EN}, v{T}, v{T+1}
    v_max_u32 v{EN+2}, v{T}, v{T+1}''')
            if opt['srt'] == 2 and nw > 1:
                sort_rest()
        if band and tag == 'a':
            sort_rest()
            a(f'    s_mov_b32 s{X0}, {band << 7}')
            for r in range(2):
                a(f'''
    v_cmp_gt_u32 {sp(B1+2*r)}, s{X0}, v{EN+r}
    v_and_b32 v{G4+r}, 15, v{EN+r}
    v_lshlrev_b32 v{G4+r}, 2, v{G4+r}
    s_mov_b64 exec, {sp(B1+2*r)}
    ds_add_rtn_u32 v{RK+r}, v{G4+r}, v{FOUR} offset:{L_BCNT}
    s_mov_b64 exec, {sp(FR)}''')
            for r in range(2):
                a(f'''
    s_waitcnt lgkmcnt(1)
    s_mov_b64 exec, {sp(B1+2*r)}
    ds_write_b32 v{RK+r}, v{EN+r}''')
        else:
            rankwords(list(range(nw)))
        a(f'Z_done{tag}:')
        rare.append(tag)
    def absorb1():
        check(1, 'vcc')
        a(f'''
    s_andn2_b64 {sp(FR)}, {sp(S1)}, vcc
    s_mov_b64 {sp(S1)}, vcc
    s_mov_b64 exec, vcc
    s_cbranch_execz Y_nr
    s_add_u32 s{POLLN}, s{POLLN}, 1
    s_cmp_gt_u32 s{POLLN}, 1000000
    s_cbranch_scc1 Y_lost
    buffer_load_dwordx4 {vr(EN+4,4)}, v{H1V}, {sq(SWS)}, s{H1SO} offen{lf}
Y_nr:
    s_mov_b64 exec, {sp(FR)}''')
        for r in range(4, 8):
            brank(r, sp(FR), 'Y_done')
            a('    s_waitcnt lgkmcnt(0)')
            bput(r)
            a(f'    s_mov_b64 exec, {sp(FR)}')
        a('Y_done:')
    def dma(ereg, slot):
        for q in range(4):
            if q == 0:
                a(f'    s_mov_b32 m0, s{RING}' if slot == 0 else f'    s_add_u32 m0, s{RING}, 4096')
            else:
                a('    s_add_u32 m0, m0, 1024')
            a(f'    v_and_or_b32 v{ereg+q}, v{ereg+q}, s{AMASK}, v{CHK}')
            a(f'    buffer_load_dwordx4 v{ereg+q}, {sq(SX)}, 0 offen{gf} lds')
    def complete(reg, no):
        a(f"""
    v_max3_u32 v{T}, v{reg}, v{reg+1}, v{reg+2}
    v_max_u32 v{T}, v{T}, v{reg+3}
    v_cmp_eq_u32 vcc, s{SEMPTY}, v{T}
    s_cbranch_vccnz {no}""")
    a(f"""
    s_mov_b32 s{ISSUED}, 0
    v_mov_b32 v{EA}, v{EA0}
    v_mov_b32 v{MAD}, v{MAD0}
    s_waitcnt vmcnt(0)""")
    stamp(6)
    a('    s_setprio 3')
    absorb0('a', sw)
    settle = f"""
    s_or_b64 exec, {sp(S0)}, {sp(S1)}
    s_cselect_b32 s{OWNP}, 1, 0
    s_cbranch_execnz G_pend
    s_mov_b64 exec, 1
    ds_add_u32 v{ZERO}, v{FOUR} offset:{L_DONE}
G_pend:
    s_mov_b64 exec, -1
    s_waitcnt lgkmcnt(0)"""
    if sw == 4:
        a(settle)
    else:
        a(f"""
    s_mov_b32 s{OWNP}, 2
    s_mov_b64 exec, -1
    s_waitcnt lgkmcnt(0)""")
    a('    s_barrier')
    stamp(7)
    if opt.get('hw', 16) < 16:
        a(f"""
    s_cmp_lt_u32 s{WID}, {opt['hw']}
    s_cbranch_scc1 G_more""")
        if sw < 4:
            a(f'    s_call_b64 {sp(LINK)}, L_s2')
        if opt.get('hw2', 0):
            a(f"""
    s_cmp_lt_u32 s{WID}, {opt['hw2']}
    s_cbranch_scc1 G_more""")
        a(f"""
    s_cmp_eq_u32 s{OWNP}, 0
    s_cbranch_scc1 G_more
    s_waitcnt vmcnt(0)
    s_call_b64 {sp(LINK)}, L_late""")
    a(f"""
G_more:
    ds_read_b32 v{T+1}, v{ZERO} offset:{L_DONE}
    ds_read_b128 {vr(EE,4)}, v{EA0}
    ds_read_b128 {vr(T+4,4)}, v{EA0} offset:128
    s_cmp_eq_u32 s{ISSUED}, 1
    s_waitcnt lgkmcnt(0)
    s_cbranch_scc1 G_m1""")
    complete(EE, 'G_short')
    dma(EE, 0)
    a(f"""
    s_mov_b32 s{ISSUED}, 1
G_m1:""")
    complete(T+4, 'G_short')
    dma(T+4, 1)
    a(f"""
    s_mov_b32 s{ISSUED}, 2""")
    if sw < 4:
        a(f"""
    s_cmp_lg_u32 s{OWNP}, 2
    s_cbranch_scc1 G_go
    s_call_b64 {sp(LINK)}, L_s2""")
    a(f"""
G_go:
    s_setprio {opt.get('p0', 2)}""")
    if qdef:
        qfinish()
    a(f"""
    s_mov_b32 s{NT}, {opt.get('pb', 4)}
    s_mov_b32 s{NTI}, 0
B_go:
    ds_read_b32 v{M0R}, v{MAD}
    ds_read_b128 {vr(EE,4)}, v{EA} offset:256
    s_mov_b32 s{TT}, 1                      ; t+1
    s_waitcnt lgkmcnt(1)
    v_and_b32 v{M0R}, 0x70, v{M0R}""")
    stamp(8)
    a('B_loop:')
    pk = opt.get('pk', 0)
    th = opt.get('th', 242)
    th = (th // 100, th // 10 % 10, th % 10)
    def body(slot):
        so = slot * 4096
        mcur, mnext = (M0R, M1R) if slot == 0 else (M1R, M0R)
        eo = slot * 128
        pm = opt.get('prio', 1)
        if pm == 1 and slot == 0:
            a(f"""
    s_cmp_lt_u32 s{TT}, {th[0]}
    s_cbranch_scc1 B_p{slot}
    s_setprio 1
    s_cmp_lt_u32 s{TT}, 4
    s_cbranch_scc1 B_p{slot}
    s_sub_u32 s{X0}, s{NT}, s{TT}
    s_cmp_ge_u32 s{X0}, {th[2]}
    s_cbranch_scc1 B_p{slot}
    s_setprio 0
B_p{slot}:""")
        if pm == 3 and slot == 0:
            a(f"""
    s_cmp_lt_u32 s{TT}, {th[0]}
    s_cbranch_scc1 B_p{slot}
    s_setprio 1
    s_cmp_lt_u32 s{TT}, {th[1]}
    s_cbranch_scc1 B_p{slot}
    s_setprio 0
B_p{slot}:""")
        if pm == 4:
            a(f"""
    s_cmp_eq_u32 s{NTI}, 0
    s_cbranch_scc1 B_p{slot}
    s_sub_u32 s{X0}, s{NT}, s{TT}
    s_setprio 2
    s_cmp_ge_u32 s{X0}, {th[1]}
    s_cbranch_scc1 B_p{slot}
    s_setprio 1
    s_cmp_ge_u32 s{X0}, {th[2]}
    s_cbranch_scc1 B_p{slot}
    s_setprio 0
B_p{slot}:""")
        if pm == 2:
            a(f"""
    s_cmp_lt_u32 s{TT}, 4
    s_cbranch_scc1 B_q{slot}
    s_sub_u32 s{X0}, s{NT}, s{TT}
    s_setprio 3
    s_cmp_ge_u32 s{X0}, 3
    s_cbranch_scc1 B_p{slot}
    s_setprio 2
    s_cmp_ge_u32 s{X0}, 2
    s_cbranch_scc1 B_p{slot}
B_q{slot}:
    s_setprio 1
B_p{slot}:""")
        a(f'''
    ds_read_b32 v{MA}, v{mcur} offset:{L_LUT}
    ds_read_b32 v{mnext}, v{MAD} offset:{eo+128}
    s_cmp_lt_u32 s{TT}, s{NT}
    s_cbranch_scc1 B_w4_{slot}
    s_waitcnt vmcnt(0)
B_w4_{slot}:
    s_cmp_lg_u32 s{OWNP}, 0
    s_waitcnt vmcnt(4)
    s_cbranch_scc0 B_rd_{slot}
    s_call_b64 {sp(LINK)}, L_late
B_rd_{slot}:''')
        if opt.get('tprof'):
            a(f'''
    s_memrealtime s[98:99]
    s_min_u32 s100, s{TT}, 10
    s_waitcnt lgkmcnt(0)
    s_mov_b32 m0, s100
    v_writelane_b32 v{ATK}, s98, m0''')
        a(f'''
    ds_read_b128 {vr(XA,4)}, v{RA0} offset:{so}
    ds_read_b128 {vr(XA+4,4)}, v{RA1} offset:{so}
    ds_read_b128 {vr(XA+8,4)}, v{RA0} offset:{so+2048}
    ds_read_b128 {vr(XA+12,4)}, v{RA1} offset:{so+2048}''')
        for fb in range(4):
            a(f'    ds_read_b64_tr_b16 {vr(XT+4*fb,2)}, v{RT+fb} offset:{so}')
            a(f'    ds_read_b64_tr_b16 {vr(XT+4*fb+2,2)}, v{RT+fb} offset:{so+2048}')
        a(f'''
    s_add_u32 s{TT}, s{TT}, 1               ; t+2
    s_waitcnt lgkmcnt(12)
    {f'v_mfma_f32_16x16x16_bf16 {vr(S,4)}, {vr(MA,2)}, {vr(MB,2)}, 0' if opt.get('m16') else f'v_mfma_f32_16x16x32_bf16 {vr(S,4)}, {vr(MA,4)}, {vr(MB,4)}, 0'}
    v_and_b32 v{mnext}, 0x70, v{mnext}
    s_waitcnt lgkmcnt(11)
    v_mfma_f32_16x16x32_bf16 {vr(S,4)}, {vr(XA,4)}, {vr(QLO,4)}, {vr(S,4)}
    s_waitcnt lgkmcnt(10)
    v_mfma_f32_16x16x32_bf16 {vr(S,4)}, {vr(XA+4,4)}, {vr(QLO+4,4)}, {vr(S,4)}
    s_waitcnt lgkmcnt(9)
    v_mfma_f32_16x16x32_bf16 {vr(S,4)}, {vr(XA+8,4)}, {vr(QHI,4)}, {vr(S,4)}
    s_waitcnt lgkmcnt(8)
    v_mfma_f32_16x16x32_bf16 {vr(S,4)}, {vr(XA+12,4)}, {vr(QHI+4,4)}, {vr(S,4)}
    s_waitcnt lgkmcnt(0)
    s_cmp_lt_u32 s{TT}, s{NTI}
    s_cbranch_scc0 B_skip_{slot}
B_dma_{slot}:''')
        dma(EE, slot)
        a(f'''
    ds_read_b128 {vr(EE,4)}, v{EA} offset:{eo+384}
B_cont_{slot}:''')
        for r in range(4):
            a(f'    v_exp_f32 v{S+r}, v{S+r}')
        if slot == 1:
            a(f'    v_add_u32 v{EA}, 256, v{EA}')
            a(f'    v_add_u32 v{MAD}, 256, v{MAD}')
        if pk:
            a(f'    v_pk_add_f32 {vr(S,2)}, {vr(S,2)}, 1.0 op_sel_hi:[1,0]')
            a(f'    v_pk_add_f32 {vr(S+2,2)}, {vr(S+2,2)}, 1.0 op_sel_hi:[1,0]')
        else:
            for r in range(4):
                a(f'    v_add_f32 v{S+r}, 1.0, v{S+r}')
        for r in range(4):
            a(f'    v_rcp_f32 v{S+r}, v{S+r}')
        a(f'''
    v_cvt_pk_bf16_f32 v{PP}, v{S}, v{S+1}
    s_cmp_gt_u32 s{TT}, s{NT}
    v_cvt_pk_bf16_f32 v{PP+1}, v{S+2}, v{S+3}
    s_nop 0
    v_mov_b32_dpp v{PP+2}, v{PP} row_ror:8 row_mask:0xf bank_mask:0xf
    v_mov_b32_dpp v{PP+3}, v{PP+1} row_ror:8 row_mask:0xf bank_mask:0xf
    s_nop 1''')
        for fb in range(4):
            a(f'    v_mfma_f32_16x16x32_bf16 {vr(ACC+4*fb,4)}, {vr(XT+4*fb,4)}, {vr(PP,4)}, {vr(ACC+4*fb,4)}')
        a('    s_cbranch_scc1 B_loopdone' if slot == 0 else '    s_cbranch_scc0 B_loop')
    n0 = len(a.lines)
    body(0)
    body(1)
    drop = []
    if opt.get('x_nords'): drop += ['ds_read_b128 v[4', 'ds_read_b128 v[5', 'ds_read_b64_tr']
    if opt.get('x_nomfma'): drop += ['v_mfma']
    if opt.get('x_novalu'): drop += ['v_exp', 'v_rcp', 'v_add_f32', 'v_cvt', 'v_mov_b32_dpp', 'v_pk_add']
    if opt.get('bench'): drop += [f'v_add_u32 v{EA}, 256', f'v_add_u32 v{MAD}, 256']
    a.lines[n0:] = [l for l in a.lines[n0:] if not any(l.strip().startswith(d) for d in drop)]
    a(f'''
B_loopdone:
    s_cmp_lg_u32 s{MODE}, 0
    s_cbranch_scc1 C_next
B_epi:''')
    if opt.get('epi3'):
        a('    s_setprio 3')
    stamp(9)
    epi = opt.get('epi', 1)
    wve = opt.get('wve', 0)
    wv = [XA, XA+8, QLO, QHI]
    DO = XT
    def wvread(blks):
        for blk in blks:
            ad = WVA if blk == 0 else T+blk
            for ks in range(2):
                for h in range(2):
                    a(f'    ds_read_b64_tr_b16 {vr(wv[blk]+ks*4+h*2,2)}, v{ad} offset:{L_WV+(32*ks+16*h)*128}')
    def wvfirst():
        a(f"""
    v_xor_b32 v{T+1}, 8, v{WVA}
    v_xor_b32 v{T+2}, 16, v{WVA}
    v_xor_b32 v{T+3}, 24, v{WVA}""")
        wvread([0, 1, 2])
    if wve:
        a(f"""
    s_cmp_lg_u32 s{ISSUED}, 3
    s_cbranch_scc0 E_have""")
    wvfirst()
    a('E_have:')
    a('    s_waitcnt lgkmcnt(8)')
    wvread([3])
    if epi:
        a(f"""
    v_xor_b32 v{T+6}, 16, v{EPV}
    v_lshl_add_u32 v{T+5}, v{LANE}, 4, s{RING}""")
    else:
        a(f"""
    v_and_b32 v{T+4}, 7, v{LANE}
    v_lshlrev_b32 v{T+4}, 19, v{T+4}
    v_lshrrev_b32 v{T+5}, 4, v{LANE}
    v_lshl_add_u32 v{T+4}, v{T+5}, 5, v{T+4}
    s_lshl_b32 s{X0}, s{WID}, 15
    s_lshl_b32 s{X0+1}, s2, 7
    s_add_u32 s{PFT}, s{X0}, s{X0+1}""")
    for r in range(8):
        a(f'    v_cvt_pk_bf16_f32 v{S+r}, v{ACC+2*r}, v{ACC+2*r+1}')
    a('    s_nop 0')
    for blk in range(4):
        a(f'    s_waitcnt lgkmcnt({min(8, 12-4*blk)})')
        a(f'    v_mfma_f32_16x16x32_bf16 {vr(DO+4*blk,4)}, {vr(wv[blk],4)}, {vr(S,4)}, 0')
        a(f'    v_mfma_f32_16x16x32_bf16 {vr(DO+4*blk,4)}, {vr(wv[blk]+4,4)}, {vr(S+4,4)}, {vr(DO+4*blk,4)}')
    a(f'''
    s_cmp_lg_u32 s{WID}, 15
    s_cbranch_scc1 K_no2
    s_mov_b64 exec, 1
    s_cmp_lg_u32 s{GAVE}, 0
    s_cbranch_scc1 K_ticket
K_adv:
    v_mov_b32 v{T}, s{EPOCH}
    global_store_dword v{ZERO}, v{T}, s[18:19]
K_skip:
    s_mov_b64 exec, -1
K_no2:
    s_nop 2''')
    for r in range(4):
        a(f'    v_cvt_pk_bf16_f32 v{XA+r}, v{DO+2*r}, v{DO+2*r+1}')
    a(f'    s_mov_b64 exec, {sp(LOM)}')
    if epi:
        a(f'    ds_write_b128 v{EPV}, {vr(XA,4)}')
    else:
        a(f'    buffer_store_dwordx4 {vr(XA,4)}, v{T+4}, {sq(SOUT)}, s{PFT} offen{of}')
    for r in range(4, 8):
        a(f'    v_cvt_pk_bf16_f32 v{XA+r}, v{DO+2*r}, v{DO+2*r+1}')
    if epi:
        a(f'''
    ds_write_b128 v{T+6}, {vr(XA+4,4)}
    s_mov_b64 exec, -1
    ds_read_b128 {vr(XA+8,4)}, v{T+5}
    s_waitcnt lgkmcnt(0)
    buffer_store_dwordx4 {vr(XA+8,4)}, v{ROWOFF}, {sq(SOUT)}, 0 offen{of}''')
    else:
        a(f'''
    buffer_store_dwordx4 {vr(XA+4,4)}, v{T+4}, {sq(SOUT)}, s{PFT} offen offset:16{of}
    s_mov_b64 exec, -1''')
    if st:
        stamp(10)
        a('    s_waitcnt vmcnt(0)')
        stamp(11)
        if opt.get('tprof'):
            a(f'''
    s_mov_b64 exec, 0x7fe
    v_mov_b32 v{STV}, v{ATK}
    s_mov_b64 exec, -1''')
        a(f'''
    s_add_u32 s{X0}, s18, {STAMP_OFF}
    s_addc_u32 s{X0+1}, s19, 0
    s_lshl_b32 s{X0+2}, s2, 4
    s_add_u32 s{X0+2}, s{X0+2}, s{WID}
    s_lshl_b32 s{X0+2}, s{X0+2}, 6
    v_lshl_add_u32 v{T}, v{LANE}, 2, s{X0+2}
    s_mov_b64 exec, 0xffff
    global_store_dword v{T}, v{STV}, {sp(X0)}''')
        if 'amp' in opt:
            a(f'''
    v_readlane_b32 s60, v{STV}, 0
    v_readlane_b32 s61, v{STV}, {opt['amp']}
    v_readlane_b32 s62, v{STV}, 11
    s_sub_u32 s61, s61, s60
    s_mul_i32 s61, s61, {opt.get('ampk', 2)}
    s_min_u32 s61, s61, 20000
D_spin:
    s_memrealtime s[98:99]
    s_waitcnt lgkmcnt(0)
    s_sub_u32 s98, s98, s62
    s_cmp_lt_u32 s98, s61
    s_cbranch_scc1 D_spin''')
    a(f'''
L_end:
    s_endpgm
''')
    for slot in range(2):
        a(f'''
B_skip_{slot}:
    s_cmp_lg_u32 s{NTI}, 0
    s_cbranch_scc1 B_idle_{slot}
    s_mov_b32 s{RET}, {slot}
    s_cmp_ge_u32 s{TT}, {opt.get('pb', 4)}
    s_cbranch_scc1 F_final''')
        complete(EE, f'B_again_{slot}')
        a(f'''
    s_branch B_dma_{slot}
B_again_{slot}:
    ds_read_b128 {vr(EE,4)}, v{EA} offset:{slot*128+256}
    s_waitcnt lgkmcnt(0)''')
        complete(EE, 'F_final')
        a(f'''
    s_branch B_dma_{slot}
F_ret_{slot}:
    ds_read_b128 {vr(EE,4)}, v{EA} offset:{slot*128+256}
    s_waitcnt lgkmcnt(0)
    s_cmp_lt_u32 s{TT}, s{NT}
    s_cbranch_scc1 B_dma_{slot}
B_idle_{slot}:''')
        if wve:
            a(f'''
    s_cmp_le_u32 s{TT}, s{NT}
    s_cbranch_scc1 B_id2_{slot}
    s_cmp_lg_u32 s{MODE}, 0
    s_cbranch_scc1 B_id2_{slot}
    s_mov_b32 s{ISSUED}, 3''')
            wvfirst()
            a(f'    s_branch B_cont_{slot}')
            a(f'B_id2_{slot}:')
        a(f'''
    s_nop 7
    s_branch B_cont_{slot}''')
    a(f"""
L_late:
    s_mov_b64 exec, {sp(S1)}
    s_cbranch_execz Y_done""")
    absorb1()
    a(f"""
    s_mov_b64 exec, {sp(S0)}
    s_cbranch_execz Z_doneb""")
    absorb0('b')
    a(f"""
    s_or_b64 exec, {sp(S0)}, {sp(S1)}
    s_cbranch_execnz L_ret
    s_mov_b32 s{OWNP}, 0
    s_mov_b64 exec, 1
    ds_add_u32 v{ZERO}, v{FOUR} offset:{L_DONE}""")
    if st:
        a(f'    v_writelane_b32 v{STV}, s{POLLN}, 15')
        a('    s_memrealtime s[98:99]')
        a('    s_waitcnt lgkmcnt(0)')
        a(f'    v_writelane_b32 v{STV}, s98, 7')
    a(f"""
L_ret:
    s_mov_b64 exec, -1
    s_waitcnt lgkmcnt(0)
    s_setpc_b64 {sp(LINK)}
G_short:
    v_readfirstlane_b32 s{X0}, v{T+1}
    s_cmp_eq_u32 s{OWNP}, 0
    s_cbranch_scc1 G_s2""")
    if sw < 4:
        a(f"""
    s_cmp_lg_u32 s{OWNP}, 2
    s_cbranch_scc1 G_s1
    s_call_b64 {sp(LINK)}, L_s2
    s_branch G_more
L_s2:
    s_mov_b64 exec, {sp(FR)}""")
        if opt.get('srt') == 2 and sw == 1:
            sort_rest()
        if band:
            for r in range(2):
                a(f'''
    v_cmp_ne_u32 {sp(VM+2*r)}, s{SEMPTY}, v{EN+r}
    s_andn2_b64 {sp(VM+2*r)}, {sp(VM+2*r)}, {sp(B1+2*r)}
    s_mov_b64 exec, {sp(VM+2*r)}
    ds_add_rtn_u32 v{RK+r}, v{G4+r}, v{FOUR} offset:{L_BCNT}
    s_mov_b64 exec, {sp(FR)}''')
            brank(2, sp(FR))
            brank(3, sp(FR))
            for r in range(4):
                a('    s_waitcnt lgkmcnt(3)')
                bput(r)
        else:
            rankwords(list(range(sw, 4)))
        a(settle)
        a(f'    s_setpc_b64 {sp(LINK)}')
        a('G_s1:')
    a(f"""
    s_waitcnt vmcnt(0)
    s_call_b64 {sp(LINK)}, L_late
    s_branch G_more
G_s2:
    s_sleep 1
    s_cmp_lt_u32 s{X0}, 64
    s_cbranch_scc1 G_more""")
    if qdef:
        qfinish()
    a(f'''
B_counts:
    s_mov_b32 s{RET}, 2
F_final:
    s_cmp_eq_u32 s{OWNP}, 0
    s_cbranch_scc1 F_spin
    s_waitcnt vmcnt(0)
    s_call_b64 {sp(LINK)}, L_late
    s_branch F_final
F_spin:
    ds_read_b32 v{T+1}, v{CNTA} offset:{L_BCNT}
    s_waitcnt lgkmcnt(0)
    v_readlane_b32 s{X0}, v{T+1}, 26
    v_sub_u32 v{T+3}, v{T+1}, v{LBASE}
    s_cmp_lt_u32 s{X0}, 64
    s_cbranch_scc1 F_spin
    v_cmp_ne_u32 {sp(X0)}, 0, v{T+1}
    v_cmp_lt_u32 vcc, {GSTRIDE}, v{T+3}
    v_readlane_b32 s{NT}, v{T+3}, s{WID}
    s_and_b32 s{X0}, s{X0}, 0x1ff0000
    s_and_b32 s{X0+1}, vcc_lo, 0xffff
    s_or_b32 s{NTI}, s{X0+1}, s{X0}
    s_or_b32 s{NTI}, s{NTI}, s{MODE}
    s_cbranch_scc1 C_slowcnt
B_cntok:
    s_add_u32 s{NT}, s{NT}, 127
    s_lshr_b32 s{NT}, s{NT}, 7              ; tiles
    s_mov_b32 s{NTI}, s{NT}
    s_cbranch_scc0 B_loopdone
    s_cmp_eq_u32 s{RET}, 0
    s_cbranch_scc1 F_ret_0
    s_cmp_eq_u32 s{RET}, 1
    s_cbranch_scc1 F_ret_1
    s_branch B_first
K_ticket:
    v_mov_b32 v{T+1}, 1
    global_atomic_add v{ATK}, v{ZERO}, v{T+1}, s[16:17] sc0 sc1
    s_waitcnt vmcnt(0)
    v_readfirstlane_b32 s{X0}, v{ATK}
    s_cmp_eq_u32 s{X0}, {NWG-1}
    s_cbranch_scc1 K_adv
    s_branch K_skip
B_first:
    ds_read_b128 {vr(XA,4)}, v{EA}
    ds_read_b128 {vr(XA+4,4)}, v{EA} offset:128
    s_waitcnt lgkmcnt(0)
    s_cmp_eq_u32 s{ISSUED}, 1
    s_cbranch_scc1 B_f1''')
    dma(XA, 0)
    a(f'''
B_f1:
    s_cmp_lt_u32 s{NT}, 2
    s_cbranch_scc1 B_go''')
    dma(XA+4, 1)
    a('    s_branch B_go')
    def drop_lines():
        for r in range(4):
            a(f'    v_mov_b32 v{EN+r}, {EMPTY}')
        a(f'''
    v_lshrrev_b32 v{T}, 2, v0
    v_lshrrev_b32 v{T+1}, 5, v{T}
    v_lshlrev_b32 v{T+1}, 2, v{T+1}
    v_lshlrev_b32 v{T}, v{T}, 1
    ds_or_b32 v{T+1}, v{T} offset:{L_RESC}''')
    a(f'''
A_full:
    s_wqm_b64 exec, {sp(S0)}
    v_mov_b32 v40, {FULLM}
    v_mov_b32 v41, {EMPTY}
    v_mov_b32 v42, {EMPTY}
    v_mov_b32 v43, {EMPTY}
    s_mov_b64 exec, -1
    s_branch A_pub''')
    for tag in rare:
        a(f'''
Z_give{tag}:
    ds_write_b32 v{ZERO}, v{FOUR} offset:{L_GAVE}''')
        drop_lines()
        a(f'''
    s_mov_b64 {sp(S0)}, 0
    s_mov_b32 s{POLLN}, 0
    s_branch Z_nr{tag}
Z_full{tag}:
    s_mov_b64 exec, vcc''')
        drop_lines()
        a(f'    s_branch Z_rank{tag}')
    a('Y_lost:')
    for r in range(4, 8):
        a(f'    v_mov_b32 v{EN+r}, {EMPTY}')
    a(f'''
    s_mov_b64 {sp(S1)}, 0
    s_branch Y_nr
C_slowcnt:
    s_cmp_lg_u32 s{MODE}, 0
    s_cbranch_scc1 C_careful''')
    for k in range(8):
        a(f'    v_readlane_b32 s{RESC+k}, v{T+1}, {16+k}')
    a(f'''
    v_readlane_b32 s{GAVE}, v{T+1}, 25
    s_mov_b32 s{MODE}, 2
    s_cmp_lg_u32 s{X0+1}, 0
    s_cbranch_scc1 C_redo
    s_mov_b32 s{MODE}, 1
    s_branch B_cntok
C_redo:
    ; a list ran over its neighbour: forget what was accumulated and redo all entries carefully''')
    for r in range(16):
        a(f'    v_mov_b32 v{ACC+r}, 0')
    a(f'''
    s_branch C_next
C_careful:
    s_min_u32 s{NT}, s{NT}, {GSTRIDE}
    s_bitcmp1_b32 s{X0}, 24
    s_cselect_b32 s{MODE}, 2, 1
    s_branch B_cntok
C_next:
    s_setprio 0
    s_mov_b32 s{ISSUED}, 0
    s_waitcnt vmcnt(0) lgkmcnt(0)
    s_barrier
    s_cmp_eq_u32 s{MODE}, 2
    s_cbranch_scc1 C_round
    s_mov_b32 s{X0}, -1''')
    for k in range(7, -1, -1):
        a(f'''
    s_ff1_i32_b32 s{X0+1}, s{RESC+k}
    s_add_u32 s{X0+1}, s{X0+1}, {32*k}
    s_cmp_lg_u32 s{RESC+k}, 0
    s_cselect_b32 s{X0}, s{X0+1}, s{X0}''')
    a(f'''
    s_cmp_eq_u32 s{X0}, -1
    s_cbranch_scc1 B_epi
    s_lshr_b32 s{X0+1}, s{X0}, 5
    s_lshl_b32 s{X0+2}, 1, s{X0}''')
    for k in range(8):
        a(f'''
    s_andn2_b32 s{X0+3}, s{RESC+k}, s{X0+2}
    s_cmp_eq_u32 s{X0+1}, {k}
    s_cselect_b32 s{RESC+k}, s{X0+3}, s{RESC+k}''')
    a(f'''
    s_mul_i32 s{X0}, s{X0}, {CH*4}''')
    for k in range(4):
        a(f'''
    buffer_load_dword v{ED+k}, v{T4}, {sq(SDST)}, s{X0} offen
    buffer_load_dword v{ES+k}, v{T4}, {sq(SSRC)}, s{X0} offen
    s_add_u32 s{X0}, s{X0}, 4096''')
    for r in range(4, 8):
        a(f'    v_mov_b32 v{EN+r}, {EMPTY}')
    a(f'    v_mov_b32 v{T+1}, {EMPTY}')
    a('    s_waitcnt vmcnt(0)')
    for k in range(4):
        a(f'''
    v_and_b32 v{T}, 255, v{ED+k}
    v_cmp_eq_u32 vcc, s2, v{T}
    v_lshrrev_b32 v{ED+k}, 8, v{ED+k}
    v_lshl_or_b32 v{ES+k}, v{ES+k}, 7, v{ED+k}''')
        if k == 3:
            a(f'    s_and_b64 vcc, vcc, {sp(M3)}')
        a(f'    v_cndmask_b32 v{EN+k}, v{T+1}, v{ES+k}, vcc')
    a(f'''
C_round:
    v_mov_b32 v{T+4}, {EMPTY}
    v_mov_b32 v{T+5}, {EMPTY}
    v_mov_b32 v{T+6}, {EMPTY}
    v_mov_b32 v{T+7}, {EMPTY}
    ds_write_b128 v{T16}, {vr(T+4,4)} offset:{L_LIST}
    s_cmp_ge_u32 s{WID}, 6
    s_cbranch_scc1 C_i1
    ds_write_b128 v{T16}, {vr(T+4,4)} offset:{L_LIST+16384}
C_i1:
    s_cmp_lg_u32 s{WID}, 12
    s_cbranch_scc1 C_i2
    s_mov_b64 exec, 0xffff
    ds_write_b32 v{CNTA}, v{LBASE} offset:{L_BCNT}
    ds_write_b32 v{ZERO}, v{ZERO} offset:{L_PEND}
    s_mov_b64 exec, -1
C_i2:
    s_waitcnt lgkmcnt(0)
    s_barrier
    s_mov_b32 s{X0+4}, {GSTRIDE//4}
    s_mov_b32 s{X0+5}, {L_LIST+GSTRIDE}''')
    for r in range(8):
        brank(r, '-1')
        a(f'''
    v_mul_u32_u24 v{T+3}, s{X0+4}, v{G4+r}
    v_add_u32 v{T+3}, s{X0+5}, v{T+3}
    s_mov_b64 exec, {sp(VM+2*r)}
    s_waitcnt lgkmcnt(0)
    v_cmp_lt_u32 vcc, v{RK+r}, v{T+3}
    s_and_saveexec_b64 {sp(X0+6)}, vcc
    ds_write_b32 v{RK+r}, v{EN+r}
    v_mov_b32 v{EN+r}, {EMPTY}
    s_andn2_b64 exec, {sp(X0+6)}, exec
    ds_write_b32 v{ZERO}, v{FOUR} offset:{L_PEND}
    s_mov_b64 exec, -1''')
    a(f'''
    v_mov_b32 v{EA}, v{EA0}
    v_mov_b32 v{MAD}, v{MAD0}
    s_waitcnt lgkmcnt(0)
    s_barrier
L_last:
    s_branch B_counts''')
    if opt.get('red'):
        gen_red(a, opt)
    def kd(name, vg, sg):
        a(f'''
.p2align 6
.amdhsa_kernel {name}
  .amdhsa_next_free_vgpr {vg}
  .amdhsa_next_free_sgpr {sg}
  .amdhsa_accum_offset {vg}
  .amdhsa_group_segment_fixed_size 0
  .amdhsa_kernarg_size 64
  .amdhsa_user_sgpr_count 2
  .amdhsa_user_sgpr_kernarg_segment_ptr 1
  .amdhsa_system_sgpr_workgroup_id_x 1
.end_amdhsa_kernel''')
    a('.section .rodata,"a"')
    kd(KNAME, 128, 102)
    if opt.get('red'):
        kd('red_kernel', 32, 48)
    return a.text()

if __name__ == '__main__':
    out = sys.argv[1]
    opt = {}
    for kv in sys.argv[2:]:
        k, v = kv.split('=')
        try:
            v = int(v)
        except ValueError:
            v = '' if v == 'none' else ' ' + v.replace('+', ' ')
        opt[k] = v
    open(out, 'w').write(build(opt))
```

```python
import sys, struct
from gen3 import gen_red

N, E, D = 25000, 800000, 64
NWG = 256
CH = E // NWG
HSTRIDE = 16384 + 128
SEG_OFF = 4096
H1_OFF = 256 * HSTRIDE
WS_USED = SEG_OFF + 2 * H1_OFF
X_BYTES = N * 128
EMPTY = 0x003FFFFF
FULLM = 0x003FFFFE
KNAME = 'standalone__kernel_systems_refs_featgraph__graph_kernel'

L_ACNT = 0
L_BCNT = 1024
L_RESC = 1088
L_PEND = 1120
L_GAVE = 1124
L_DONE = 1128
L_LUT = 1152
L_WV = 2048
L_LIST = 10240
GSTRIDE = 1408
L_RING = 32768
L_XN = 65536
L_WQ = 98304
ISTRIDE = 144
L_IMG = 163840 - 256 * ISTRIDE
LDS = 163840
STAMP_OFF = 0x1000000

def f32bits(x):
    return struct.unpack('<I', struct.pack('<f', x))[0]

class Asm:
    def __init__(self):
        self.lines = []
    def __call__(self, s):
        for ln in s.strip('\n').split('\n'):
            if ln.strip():
                self.lines.append(ln)
    def text(self):
        return '\n'.join(self.lines) + '\n'

def vr(lo, n):
    return f'v[{lo}:{lo+n-1}]'
def sp(lo):
    return f's[{lo}:{lo+1}]'
def sq(lo):
    return f's[{lo}:{lo+3}]'

def srd(a, d, lo, nbytes):
    a(f'    s_mov_b32 s{d}, s{lo}')
    a(f'    s_mov_b32 s{d+1}, s{lo+1}')
    a(f'    s_mov_b32 s{d+2}, {nbytes}')
    a(f'    s_mov_b32 s{d+3}, 0x00020000')

LANE, T4, T16, FOUR, ZERO, ROWOFF, WVA = 1, 2, 3, 4, 5, 6, 7
QLO, QHI, ACC, XA, XT, S, PP, MA, MB, EE = 8, 16, 24, 40, 56, 72, 76, 80, 84, 88
M0R, M1R, RA0, RA1, RT, EA, MAD, CHK, EA0 = 92, 93, 94, 95, 96, 100, 101, 102, 103
T = 104
EN = 112
MAD0, PFD, ATK, STV, CNTA, EPV, LBASE = 120, 121, 122, 123, 124, 125, 126
ED, ES, B4, PS = 40, 44, 48, 52
WD, XN = 56, 60
IMGR, STO, WSA = 68, 69, 70
G4, RK = 40, 48

GAVE = 3
SX, SSRC, SDST, SW, EPOCH, ISSUED, SOUT, SWS = 20, 24, 28, 32, 34, 35, 36, 40
WID, SEGB, AMASK, RING, NT, TT = 44, 45, 46, 47, 48, 49
TAG = 50
SEMPTY, MODE, LOM, M3 = 54, 55, 56, 58
RESC = 60
FR, N1 = 60, 62
VM = 68
X0 = 84
H1SO, KFULL, S0, S1, K88, KTHR, PFT, POLLN, PRIME = 86, 87, 88, 90, 92, 94, 95, 96, 97
NTI, RET = 32, 33
OWNP, LINK = 97, 10

def build(opt):
    a = Asm()
    st = opt.get('stamps')
    def stamp(k):
        if st:
            ck = {0: 14, 7: 12, 9: 13}.get(k)
            if ck:
                a('    s_memtime s[100:101]')
            a('    s_memrealtime s[98:99]')
            a('    s_waitcnt lgkmcnt(0)')
            a(f'    v_writelane_b32 v{STV}, s98, {k}')
            if ck:
                a(f'    v_writelane_b32 v{STV}, s100, {ck}')
    launch = (f'; @launch kernel={KNAME} grid=({NWG},1,1) block=(1024,1,1) lds={LDS}' if opt.get('list') else
              f'; @launch grid=({NWG},1,1) block=(1024,1,1) lds={LDS}')
    if opt.get('red'):
        launch += '\n; @launch kernel=red_kernel grid=(1,1,1) block=(64,1,1) lds=0'
    sf = opt.get('st', ' sc1')
    lf = opt.get('ld', ' sc1')
    gf = opt.get('gather', '')
    of = opt.get('out', '')
    a(f'''; FeatGraph (SDDMM sigmoid gate + SpMM) in one launch, one workgroup per CU.
{launch}
.amdgcn_target "amdgcn-amd-amdhsa--gfx950"
.text
.globl {KNAME}
.p2align 8
.type {KNAME},@function
{KNAME}:
    s_cmp_ge_u32 s2, {NWG}
    s_cbranch_scc1 L_end''')
    if st:
        a(f'    v_mov_b32 v{STV}, 0')
        a(f'    v_mov_b32 v{ATK}, 0')
    stamp(0)
    a('    s_load_dwordx16 s[4:19], s[0:1], 0')
    a(f'''
    s_and_b32 s{X0}, s2, 7
    s_lshl_b32 s{X0}, s{X0}, 5
    s_lshr_b32 s2, s2, 3
    s_or_b32 s2, s2, s{X0}''')
    if opt.get('cpf'):
        a(f'''
    s_getpc_b64 {sp(S0)}
I_pc:
    v_lshlrev_b32 v127, 7, v0
    v_cmp_gt_u32 vcc, A_full-I_pc, v127
    s_and_saveexec_b64 {sp(S1)}, vcc
    s_cbranch_execz I_c
    global_load_dword v127, v127, {sp(S0)}
I_c:
    s_mov_b64 exec, -1''')
    a(f'''
    s_mul_i32 s{X0}, s2, {CH*4}
    v_lshlrev_b32 v{T4}, 2, v0
    v_lshrrev_b32 v{T+4}, 6, v0
    v_add_u32 v{T}, s{X0}, v{T4}
    v_readfirstlane_b32 s{WID}, v{T+4}
    v_add_u32 v{T+1}, 4096, v{T}
    v_add_u32 v{T+2}, 8192, v{T}
    v_add_u32 v{T+3}, 12288, v{T}
    v_cmp_gt_u32 {sp(M3)}, {CH-3072}, v0
    v_lshlrev_b32 v{T16}, 4, v0
    v_mov_b32 v{ZERO}, 0
    v_mov_b32 v{T+4}, {EMPTY}
    v_mov_b32 v{T+5}, {EMPTY}
    v_mov_b32 v{T+6}, {EMPTY}
    v_mov_b32 v{T+7}, {EMPTY}
    s_waitcnt lgkmcnt(0)
    {f'global_load_dword v{EPV}, v{ZERO}, s[18:19]      ; epoch word' if opt.get('epf') else ''}
    s_mov_b64 exec, {sp(M3)}
    s_cbranch_execz A_no3a
    global_load_dword v{ED+3}, v{T+3}, s[8:9]
    global_load_dword v{ES+3}, v{T+3}, s[6:7]
A_no3a:
    s_mov_b64 exec, -1''')
    for k in range(3):
        a(f'    global_load_dword v{ED+k}, v{T+k}, s[8:9]')
    for k in range(3):
        a(f'    global_load_dword v{ES+k}, v{T+k}, s[6:7]')
    a(f'''
    v_add_u32 v{T}, {L_IMG}, v{T16}
    ds_write_b128 v{T}, {vr(T+4,4)}
    ds_write_b128 v{T}, {vr(T+4,4)} offset:16384
    s_cmp_ge_u32 s{WID}, 4
    s_cbranch_scc1 I_a
    ds_write_b128 v{T}, {vr(T+4,4)} offset:32768
    ds_write_b32 v{T4}, v{ZERO} offset:{L_ACNT}
I_a:
    {f'global_load_dword v{EPV}, v{ZERO}, s[18:19]      ; epoch word' if not opt.get('epf') else ''}
    v_and_b32 v{LANE}, 63, v0
    v_mov_b32 v{FOUR}, 4''')
    srd(a, SX, 4, X_BYTES)
    a(f'''
    s_cmp_lt_u32 s{WID}, 8
    s_cselect_b32 s{SW}, s10, s12
    s_cselect_b32 s{SW+1}, s11, s13
    v_and_b32 v{T+3}, 0x1ff0, v{T16}
    v_lshrrev_b32 v{T}, 3, v{LANE}
    v_and_b32 v{T+1}, 7, v{LANE}
    v_xor_b32 v{T+1}, v{T+1}, v{T}
    v_lshlrev_b32 v{T+1}, 4, v{T+1}
''')
    skew = opt.get('skew', 0)
    if skew:
        a(f'''
    v_lshl_add_u32 v{T}, v{T}, 4, s{WID}    ; local
    v_sub_u32 v{T+2}, s2, v{T}
    v_and_b32 v{T+2}, 255, v{T+2}
    v_lshl_or_b32 v{T}, v{T}, 8, v{T+2}     ; node
    v_lshl_add_u32 v{ROWOFF}, v{T}, 7, v{T+1}''')
    else:
        a(f'''
    v_lshlrev_b32 v{T}, 19, v{T}
    s_lshl_b32 s{X0}, s{WID}, 15
    s_lshl_b32 s{X0+1}, s2, 7
    s_add_u32 s{X0}, s{X0}, s{X0+1}
    v_add3_u32 v{ROWOFF}, v{T}, v{T+1}, s{X0}''')
    a(f'''
    s_lshl_b32 s{X0}, s{WID}, 10
    s_add_u32 m0, s{X0}, {L_XN}
    s_waitcnt lgkmcnt(0)
    s_barrier''')
    xw = opt.get('xw', 0)
    def wload():
        a(f'    v_and_b32 v{T+3}, 0x1ff0, v{T16}')
        a(f'    global_load_dwordx4 {vr(WD,4)}, v{T+3}, {sp(SW)}')
    def xload():
        a(f'    buffer_load_dwordx4 v{ROWOFF}, {sq(SX)}, 0 offen lds')
    if xw in (0, 2):
        wload()
    if xw == 0:
        xload()
    pfpos = [0]
    def prefetch(n):
        lo, hi = pfpos[0], pfpos[0] + n
        pfpos[0] = hi
        m = ((1 << hi) - 1) ^ ((1 << lo) - 1)
        a(f'''
    s_lshr_b32 s{PFT}, s2, 3
    s_lshl_b32 s{PFT}, s{PFT}, 4
    s_add_u32 s{PFT}, s{PFT}, s{WID}
    s_mul_i32 s{PFT}, s{PFT}, {49*128}
    v_lshlrev_b32 v{T}, 7, v{LANE}
    s_mov_b32 exec_lo, 0x{m & 0xffffffff:x}
    s_mov_b32 exec_hi, 0x{m >> 32:x}
    buffer_load_dword v{ATK}, v{T}, {sq(SX)}, s{PFT} offen
    s_mov_b64 exec, -1''')
    p = 0
    srd(a, SWS, 18, WS_USED)
    if opt.get('tlb'):
        sh = opt['tlb']
        n1 = -(-(SEG_OFF + 2*H1_OFF) // (16 << sh))
        n2 = -(-X_BYTES // (16 << sh))
        srd(a, SOUT, 14, X_BYTES)
        a(f'''
    s_mul_i32 s{PFT}, s{WID}, {n1}
    v_add_u32 v{T}, s{PFT}, v{LANE}
    v_lshlrev_b32 v{T}, {sh}, v{T}
    s_mul_i32 s{PFT}, s{WID}, {n2}
    v_add_u32 v{T+1}, s{PFT}, v{LANE}
    v_lshlrev_b32 v{T+1}, {sh}, v{T+1}
    s_mov_b64 exec, {(1 << n1) - 1}
    buffer_load_dword v{ATK}, v{T}, {sq(SWS)}, 0 offen
    s_mov_b64 exec, {(1 << n2) - 1}
    buffer_load_dword v{ATK}, v{T+1}, {sq(SOUT)}, 0 offen
    s_mov_b64 exec, -1''')
        p += 2
    if opt.get('pf1'):
        prefetch(opt['pf1'])
        p += 1
    nw = {0: 2, 1: 0, 2: 1, 3: 0}[xw]
    y = (0 if opt.get('epf') else 1) + nw + p
    wdec = 1
    stamp(1)
    a(f'''
    ds_write_b128 v{T16}, {vr(T+4,4)} offset:{L_LIST}
    s_cmp_ge_u32 s{WID}, 6
    s_cbranch_scc1 I_b
    ds_write_b128 v{T16}, {vr(T+4,4)} offset:{L_LIST+16384}
I_b:
    v_and_b32 v{LBASE}, 15, v{LANE}
    v_mul_u32_u24 v{LBASE}, {GSTRIDE}, v{LBASE}
    v_add_u32 v{LBASE}, {L_LIST}, v{LBASE}
    v_and_b32 v{CNTA}, 0x7c, v{T4}
    s_cmp_lg_u32 s{WID}, 12
    s_cbranch_scc1 I_done
    v_cmp_gt_u32 vcc, 16, v{LANE}
    s_mov_b32 exec_hi, 0
    s_nop 0
    v_cndmask_b32 v{T+2}, 0, v{LBASE}, vcc
    ds_write_b32 v{CNTA}, v{T+2} offset:{L_BCNT}
    s_mov_b64 exec, 0xff
    v_cvt_f32_u32 v{T+2}, v{LANE}
    v_mul_f32 v{T+3}, v{T+2}, v{T+2}
    v_cvt_pk_bf16_f32 v{T+2}, v{T+3}, v{T+2}
    v_lshlrev_b32 v{T+3}, 4, v{LANE}
    ds_write_b32 v{T+3}, v{T+2} offset:{L_LUT}
    s_mov_b64 exec, -1
I_done:''')
    a(f'''
''')
    G = opt.get('grp', 2)
    lg = G.bit_length() - 1
    BLK = G * HSTRIDE
    a(f'''
    s_lshl_b32 s{X0}, s2, {6+lg}
    s_add_u32 s{X0}, s{X0}, {SEG_OFF}
    s_add_u32 s{X0+1}, s{X0}, {H1_OFF}
    s_lshr_b32 s{SEGB}, s2, {lg}
    s_mul_i32 s{SEGB}, s{SEGB}, {BLK}
    s_and_b32 s{S0}, s2, {G-1}
    s_lshl_b32 s{S0}, s{S0}, 6
    s_add_u32 s{SEGB}, s{SEGB}, s{S0}
    s_add_u32 s{SEGB}, s{SEGB}, {SEG_OFF}
    v_lshrrev_b32 v{T}, 2, v0
    v_and_b32 v{T+1}, 3, v0
    v_mul_u32_u24 v{IMGR}, {ISTRIDE}, v{T}
    v_lshl_add_u32 v{IMGR}, v{T+1}, 2, v{IMGR}
    v_add_u32 v{IMGR}, {L_IMG}, v{IMGR}
    v_lshrrev_b32 v{T+2}, {2+lg}, v0
    v_mul_u32_u24 v{STO}, {BLK}, v{T+2}
    v_and_b32 v{T+2}, {64*G-1}, v{T16}
    v_add_u32 v{STO}, v{STO}, v{T+2}
    v_lshlrev_b32 v{T+1}, 4, v{T+1}
    v_lshl_add_u32 v{PFD}, v{T}, {6+lg}, v{T+1}''')
    pair = 1
    LDV = PFD if pair else T16
    a(f'''
    s_mov_b32 s{SEMPTY}, {EMPTY}
    s_mov_b32 s{KTHR}, {L_IMG}
    s_mov_b32 s{K88}, 0x88888888
    s_mov_b32 s{K88+1}, 0x88888888
    v_bfe_u32 v{T}, v0, 3, 6
    v_and_b32 v{T+1}, 7, v0
    v_bfe_u32 v{T+2}, v{T}, 1, 1
    v_and_or_b32 v{T+2}, v{T}, 8, v{T+2}
    v_bfe_u32 v{T+3}, v{T}, 1, 2
    s_cmp_lt_u32 s{WID}, 8
    s_cselect_b64 {sp(S0)}, -1, 0
    s_mov_b32 s{S1}, {L_WV}
    s_cselect_b32 s{S1}, {L_WQ}, s{S1}
    v_cndmask_b32 v{T+2}, v{T+3}, v{T+2}, {sp(S0)}
    v_lshlrev_b32 v{T+1}, 1, v{T+1}
    v_xor_b32 v{T+1}, v{T+1}, v{T+2}
    v_lshlrev_b32 v{T+1}, 3, v{T+1}
    v_lshl_add_u32 v{T+1}, v{T}, 7, v{T+1}
    v_add_u32 v{WSA}, s{S1}, v{T+1}
    v_xor_b32 v{WSA+1}, 8, v{WSA}
    v_bfrev_b32 v{T+4}, -2''')
    def arank(k):
        if skew:
            a(f'''
    v_add_u32_sdwa v{B4+k}, v{ED+k}, v{ED+k} dst_sel:DWORD dst_unused:UNUSED_PAD src0_sel:BYTE_0 src1_sel:BYTE_1''')
        a(f'''
    v_lshlrev_b32_sdwa v{B4+k}, 2, v{B4+k if skew else ED+k} dst_sel:DWORD dst_unused:UNUSED_PAD src0_sel:DWORD src1_sel:BYTE_0
    ds_add_rtn_u32 v{PS+k}, v{B4+k}, v{FOUR} offset:{L_ACNT}''')
    def aentry(k):
        a(f'''
    v_lshrrev_b32 v{ED+k}, 8, v{ED+k}
    v_lshl_or_b32 v{ES+k}, v{ES+k}, 7, v{ED+k}
    v_mad_u32_u24 v{B4+k}, v{B4+k}, {ISTRIDE//4}, s{KTHR}''')
    def aput(k):
        a(f'''
    v_min_u32 v{PS+k}, {ISTRIDE-4}, v{PS+k}
    v_add_u32 v{PS+k}, v{PS+k}, v{B4+k}
    ds_write_b32 v{PS+k}, v{ES+k}''')
    a(f'    s_waitcnt vmcnt({y+3})')
    stamp(2)
    for k in range(3):
        arank(k)
    a(f'    s_waitcnt vmcnt({y})')
    for k in range(3):
        aentry(k)
    for k in range(3):
        a('    s_waitcnt lgkmcnt(2)')
        aput(k)
    a(f'''
    s_mov_b64 exec, {sp(M3)}
    s_cbranch_execz A_no3b''')
    arank(3)
    aentry(3)
    a('    s_waitcnt lgkmcnt(0)')
    aput(3)
    a(f'''
A_no3b:
    s_mov_b64 exec, -1
    s_waitcnt vmcnt({p + nw})
    v_readfirstlane_b32 s{EPOCH}, v{EPV}''')
    if xw == 3:
        wload()
        xload()
    if opt.get('pfr'):
        prefetch(opt['pfr'])
        p += 1
    a(f'''
    {f'ds_write_b64 v{WSA}, {vr(WD,2)}' if not wdec else ''}
    {f'ds_write_b64 v{WSA+1}, {vr(WD+2,2)}' if not wdec else ''}
    s_add_u32 s{EPOCH}, s{EPOCH}, 1
    s_lshl_b32 s{TAG}, s{EPOCH}, 22
    s_lshl_b32 s{TAG+1}, s{EPOCH}, 12
    s_and_b32 s{TAG+1}, s{TAG+1}, 0xffc00000
    s_lshl_b32 s{TAG+2}, s{EPOCH}, 2
    s_and_b32 s{TAG+2}, s{TAG+2}, 0xffc00000
    s_xor_b32 s{TAG+3}, s{TAG}, 0xffc00000
    s_waitcnt lgkmcnt(0)
    s_barrier''')
    stamp(3)
    a(f'''
    ds_read2_b32 {vr(46,2)}, v{IMGR} offset0:24 offset1:28
    ds_read2_b32 {vr(40,2)}, v{IMGR} offset0:0 offset1:4
    ds_read2_b32 {vr(42,2)}, v{IMGR} offset0:8 offset1:12
    ds_read2_b32 {vr(44,2)}, v{IMGR} offset0:16 offset1:20
    s_waitcnt lgkmcnt(3)
    v_cmp_ne_u32 vcc, s{SEMPTY}, v47
    s_and_b64 {sp(S0)}, vcc, {sp(K88)}
    s_waitcnt lgkmcnt(1)
    s_cbranch_scc1 A_full
A_pub:
    v_cmp_ne_u32 vcc, s{SEMPTY}, v43''')
    for r in range(4):
        a(f'    v_or_b32 v{40+r}, s{TAG+r}, v{40+r}')
    a(f'''
    buffer_store_dwordx4 {vr(40,4)}, v{STO}, {sq(SWS)}, s{X0} offen{sf}
    s_and_b64 {sp(S0)}, vcc, {sp(K88)}''')
    if opt.get('h1o'):
        a(f'''
    s_lshr_b64 {sp(S1)}, {sp(S0)}, 4
    s_or_b64 {sp(S0)}, {sp(S0)}, {sp(S1)}
    s_and_b32 s{S0}, s{S0}, 0x08080808
    s_and_b32 s{S0+1}, s{S0+1}, 0x08080808
    s_lshl_b64 {sp(S1)}, {sp(S0)}, 4
    s_or_b64 {sp(S0)}, {sp(S0)}, {sp(S1)}''')
    a(f'''
    s_wqm_b64 vcc, {sp(S0)}
    s_waitcnt lgkmcnt(0)''')
    for r in range(4):
        a(f'    v_or_b32 v{44+r}, s{TAG+r}, v{44+r}')
    a(f'''
''')
    h1f = opt.get('h1f', 0)
    if h1f:
        a(f'''
    v_and_b32 v{T+5}, 0x30, v{T16}
    v_lshlrev_b32 v{STO}, 1, v{STO}
    v_sub_u32 v{STO}, v{STO}, v{T+5}''')
    a(f'''
    v_cndmask_b32 v{STO}, v{T+4}, v{STO}, vcc
    buffer_store_dwordx4 {vr(44,4)}, v{STO}, {sq(SWS)}, s{X0+1} offen{sf}''')
    if h1f == 2:
        a(f'    buffer_store_dwordx4 {vr(44,4)}, v{STO}, {sq(SWS)}, s{X0+1} offen offset:64{sf}')
        p += 1
    H1V = LDV
    if h1f:
        H1V = PFD
        a(f'''
    v_lshlrev_b32 v{PFD}, 1, v{T16}
    v_sub_u32 v{PFD}, v{PFD}, v{T+5}''')
    if opt.get('pfb'):
        prefetch(opt['pfb'])
        p += 1
    stamp(4)
    if xw == 1:
        wload()
    if xw in (1, 2):
        xload()
    def wstage(n):
        a(f'''
    s_waitcnt vmcnt({n})
    ds_write_b64 v{WSA}, {vr(WD,2)}
    ds_write_b64 v{WSA+1}, {vr(WD+2,2)}''')
    if xw in (0, 2):
        wstage(p + 3)
    WQA, XNA = 88, 92
    a(f"""
    v_lshrrev_b32 v{T+5}, 4, v{LANE}        ; g
    v_bfe_u32 v{T+1}, v{LANE}, 2, 2
    v_lshl_add_u32 v{T+2}, v{T+5}, 3, v{T+1}
    v_bfe_u32 v{T+3}, v{T+2}, 1, 1
    v_and_or_b32 v{T+3}, v{T+2}, 8, v{T+3}
    v_and_b32 v{T+4}, 3, v{LANE}            ; c
    v_lshlrev_b32 v{T+6}, 1, v{T+4}
    v_xor_b32 v{T+3}, v{T+3}, v{T+6}
    v_lshlrev_b32 v{T+3}, 3, v{T+3}
    v_lshl_add_u32 v{T}, v{T+2}, 7, v{T+3}
    v_add_u32 v{WQA}, {L_WQ}, v{T}
    v_xor_b32 v{WQA+1}, 8, v{WQA}
    v_xor_b32 v{WQA+2}, 64, v{WQA}
    v_xor_b32 v{WQA+3}, 0x48, v{WQA}
    v_and_b32 v{T+7}, 7, v{LANE}
    v_xor_b32 v{T}, v{T+5}, v{T+7}
    v_lshlrev_b32 v{T}, 4, v{T}
    v_lshl_add_u32 v{T}, v{T+7}, 7, v{T}
    s_lshl_b32 s{X0}, s{WID}, 10
    s_add_u32 s{X0}, s{X0}, {L_XN}
    v_add_u32 v{XNA}, s{X0}, v{T}
    v_xor_b32 v{XNA+1}, 64, v{XNA}""")
    srd(a, SOUT, 14, X_BYTES)
    srd(a, SSRC, 6, E*4)
    srd(a, SDST, 8, E*4)
    a(f"""
    s_add_u32 s{H1SO}, s{SEGB}, {H1_OFF}
    {f's_mul_i32 s{H1SO}, s2, {2*HSTRIDE}' if h1f else ''}
    {f's_add_u32 s{H1SO}, s{H1SO}, {SEG_OFF+H1_OFF}' if h1f else ''}
    s_mov_b32 s{AMASK}, 0x003fff80
    s_lshl_b32 s{RING}, s{WID}, 13
    s_add_u32 s{RING}, s{RING}, {L_RING}
    s_mov_b32 s{MODE}, 0
    s_mov_b32 s{GAVE}, 0
    s_mov_b32 s{LOM}, 0x00ff00ff
    s_mov_b32 s{LOM+1}, 0x00ff00ff
    v_and_b32 v{T+1}, 15, v{LANE}           ; i
    v_lshrrev_b32 v{T}, 3, v{LANE}
    v_and_b32 v{T+6}, 6, v{T}
    v_xor_b32 v{T+6}, v{T+6}, v{T+7}
    v_lshlrev_b32 v{CHK}, 4, v{T+6}
    s_mul_i32 s{X0}, s{WID}, {GSTRIDE}
    s_add_u32 s{X0}, s{X0}, {L_LIST}
    v_lshl_add_u32 v{EA0}, v{T}, 4, s{X0}
    v_bfe_u32 v{T+6}, v{LANE}, 3, 2
    v_lshl_add_u32 v{T+6}, v{T+7}, 2, v{T+6}
    v_lshl_add_u32 v{MAD0}, v{T+6}, 2, s{X0}
    v_and_b32 v{T+6}, 6, v{T+1}
    v_xor_b32 v{T+6}, v{T+6}, v{T+5}
    v_lshlrev_b32 v{T+6}, 4, v{T+6}
    v_lshl_add_u32 v{T+6}, v{T+1}, 7, v{T+6}
    v_add_u32 v{RA0}, s{RING}, v{T+6}
    v_xor_b32 v{RA1}, 64, v{RA0}
    v_lshrrev_b32 v{T+6}, 2, v{LANE}        ; row = 4g+r
    v_and_b32 v{T+1}, 6, v{T+6}
    v_bfe_u32 v{T+5}, v{LANE}, 1, 1
    v_xor_b32 v{T+1}, v{T+1}, v{T+5}
    v_lshlrev_b32 v{T+1}, 4, v{T+1}
    v_lshl_add_u32 v{T+1}, v{T+6}, 7, v{T+1}
    v_and_b32 v{T+5}, 1, v{LANE}
    v_lshl_add_u32 v{T+1}, v{T+5}, 3, v{T+1}
    v_add_u32 v{RT}, s{RING}, v{T+1}
    v_xor_b32 v{RT+1}, 32, v{RT}
    v_xor_b32 v{RT+2}, 64, v{RT}
    v_xor_b32 v{RT+3}, 0x60, v{RT}
    v_bfe_u32 v{T+5}, v{T+6}, 1, 2
    v_lshl_or_b32 v{T+5}, v{T+4}, 2, v{T+5}
    v_lshlrev_b32 v{T+5}, 3, v{T+5}
    v_lshl_add_u32 v{WVA}, v{T+6}, 7, v{T+5}
    v_lshrrev_b32 v{T+5}, 3, v{LANE}
    v_and_b32 v{T+5}, 6, v{T+5}
    v_xor_b32 v{T+5}, v{T+5}, v{T+7}
    v_lshlrev_b32 v{T+5}, 4, v{T+5}
    v_lshl_add_u32 v{T+5}, v{T+7}, 7, v{T+5}
    v_add_u32 v{EPV}, s{RING}, v{T+5}
    v_mov_b32 v{MA+1}, 0x00003f80
    v_mov_b32 v{MA+2}, 0
    v_mov_b32 v{MA+3}, 0
    v_mov_b32 v{MB}, 0
    v_mov_b32 v{MB+1}, 0
    v_mov_b32 v{MB+2}, 0
    v_mov_b32 v{MB+3}, 0
    v_cvt_f32_u32 v{T+5}, v{T+7}            ; j' = l&7
    v_mov_b32 v{T+6}, 0x71800000            ; BIG = 2^100
    v_mul_f32 v{T+7}, v{T+5}, v{T+6}
    v_mul_f32 v{T+5}, v{T+5}, v{T+7}
    v_mul_f32 v{T+7}, -2.0, v{T+7}
    s_mov_b32 exec_lo, 0xff0000ff
    s_mov_b32 exec_hi, 0
    v_cvt_pk_bf16_f32 v{MB}, v{T+6}, v{T+7}
    v_cvt_pk_bf16_f32 v{MB+1}, v{T+5}, 0
    s_mov_b64 exec, -1""")
    for r in range(16):
        a(f'    v_mov_b32 v{ACC+r}, 0')
    for r in range(8):
        a(f'    v_mov_b32 v{QLO+r}, 0')
    for r in range(4, 8):
        a(f'    v_mov_b32 v{EN+r}, {EMPTY}')
    a(f"""
    s_mov_b32 s{POLLN}, 0
    s_mov_b32 s{KTHR}, 0x400000
    s_mov_b32 s{KFULL}, {FULLM}
    s_mov_b64 {sp(S0)}, -1
    s_mov_b64 {sp(S1)}, 0
""")
    if xw in (1, 3):
        wstage(1 if xw == 1 else 3)
    a(f"""
    s_waitcnt vmcnt(0) lgkmcnt(0)
    s_barrier
    buffer_load_dwordx4 {vr(EN,4)}, v{LDV}, {sq(SWS)}, s{SEGB} offen{lf}
    s_mov_b64 exec, {sp(LOM)}
    ds_read_b128 {vr(QLO,4)}, v{XNA}
    ds_read_b128 {vr(QLO+4,4)}, v{XNA+1}
    s_mov_b64 exec, -1""")
    dreg = [QHI, QHI+4, S, S+4]
    for blk in range(4):
        for ks in range(2):
            for h in range(2):
                a(f'    ds_read_b64_tr_b16 {vr(XA+blk*8+ks*4+h*2,2)}, v{WQA+blk} offset:{(32*ks+4*h)*128}')
        if blk == 2:
            a('    s_waitcnt lgkmcnt(8)')
    for blk in range(4):
        a(f'    s_waitcnt lgkmcnt({min(8, 12-4*blk) if blk else 12})')
        a(f'    v_mfma_f32_16x16x32_bf16 {vr(dreg[blk],4)}, {vr(XA+blk*8,4)}, {vr(QLO,4)}, 0')
        a(f'    v_mfma_f32_16x16x32_bf16 {vr(dreg[blk],4)}, {vr(XA+blk*8+4,4)}, {vr(QLO+4,4)}, {vr(dreg[blk],4)}')
    def qfinish():
        a(f'    s_mov_b32 s{X0}, 0x{f32bits(-1.4426950408889634/8):08x}')
        a(f'    s_mov_b32 s{X0+1}, s{X0}')
        a('    s_nop 1')
        for blk in range(4):
            a(f'    v_pk_mul_f32 {vr(dreg[blk],2)}, {vr(dreg[blk],2)}, {sp(X0)}')
            a(f'    v_pk_mul_f32 {vr(dreg[blk]+2,2)}, {vr(dreg[blk]+2,2)}, {sp(X0)}')
        for blk in range(4):
            a(f'    v_cvt_pk_bf16_f32 v{QLO+2*blk}, v{dreg[blk]}, v{dreg[blk]+1}')
            a(f'    v_cvt_pk_bf16_f32 v{QLO+2*blk+1}, v{dreg[blk]+2}, v{dreg[blk]+3}')
        for r in range(8):
            a(f'    v_mov_b32_dpp v{QHI+r}, v{QLO+r} row_ror:8 row_mask:0xf bank_mask:0xf')
    qdef = opt.get('qdef', 0)
    if not qdef:
        qfinish()
    stamp(5)
    def check(h, dst):
        for r in range(4):
            a(f'    v_xor_b32 v{EN+4*h+r}, s{TAG+r}, v{EN+4*h+r}')
        a(f'''
    v_or3_b32 v{T}, v{EN+4*h}, v{EN+4*h+1}, v{EN+4*h+2}
    v_or_b32 v{T}, v{T}, v{EN+4*h+3}
    v_cmp_le_u32 {dst}, s{KTHR}, v{T}''')
    def brank(r, base, skip=None):
        m = VM + 2*r
        a(f'''
    v_cmp_ne_u32 {sp(m)}, s{SEMPTY}, v{EN+r}
    v_and_b32 v{G4+r}, 15, v{EN+r}
    v_lshlrev_b32 v{G4+r}, 2, v{G4+r}
    s_mov_b64 exec, {sp(m)}''')
        if skip:
            a(f'    s_cbranch_execz {skip}')
        a(f'''
    ds_add_rtn_u32 v{RK+r}, v{G4+r}, v{FOUR} offset:{L_BCNT}
    s_mov_b64 exec, {base}''')
    def bput(r):
        a(f'''
    s_mov_b64 exec, {sp(VM+2*r)}
    ds_write_b32 v{RK+r}, v{EN+r}''')
    rare = []
    def rankwords(ws):
        for r in ws:
            brank(r, sp(FR))
        for r in ws:
            a(f'    s_waitcnt lgkmcnt({len(ws)-1})')
            bput(r)
    def sort_rest():
        a(f'''
    v_min3_u32 v{T}, v{EN+1}, v{EN+2}, v{EN+3}
    v_med3_u32 v{T+1}, v{EN+1}, v{EN+2}, v{EN+3}
    v_max3_u32 v{EN+3}, v{EN+1}, v{EN+2}, v{EN+3}
    v_mov_b32 v{EN+1}, v{T}
    v_mov_b32 v{EN+2}, v{T+1}''')
    band = opt.get('band', 0)
    B1 = 64
    sw = opt.get('sw', 4)
    def absorb0(tag, nw=4):
        check(0, 'vcc')
        a(f'''
    s_wqm_b64 vcc, vcc
    s_andn2_b64 {sp(FR)}, {sp(S0)}, vcc
    s_mov_b64 {sp(S0)}, vcc
    s_mov_b64 exec, vcc
    s_cbranch_execz Z_nr{tag}
    s_add_u32 s{POLLN}, s{POLLN}, 1
    s_cmp_gt_u32 s{POLLN}, {opt.get('pollmax', 2000)}
    s_cbranch_scc1 Z_give{tag}
    buffer_load_dwordx4 {vr(EN,4)}, v{LDV}, {sq(SWS)}, s{SEGB} offen{lf}
Z_nr{tag}:
    s_mov_b64 exec, {sp(FR)}
    s_cbranch_execz Z_done{tag}
    v_cmp_ne_u32 {sp(N1)}, s{SEMPTY}, v{EN+3}
    v_cmp_eq_u32 vcc, s{KFULL}, v{EN}
    s_and_b64 {sp(N1)}, {sp(N1)}, {sp(K88)}
    s_wqm_b64 exec, {sp(N1)}
    {'s_mov_b64 exec, 0' if opt.get('x_noh1') else ''}
    s_cbranch_execz Z_nh{tag}
    s_or_b64 {sp(S1)}, {sp(S1)}, exec
    buffer_load_dwordx4 {vr(EN+4,4)}, v{H1V}, {sq(SWS)}, s{H1SO} offen{lf}
Z_nh{tag}:
    s_cbranch_vccnz Z_full{tag}
Z_rank{tag}:
    s_mov_b64 exec, {sp(FR)}''')
        if opt.get('srt') and tag == 'a':
            a(f'''
    v_min_u32 v{T}, v{EN}, v{EN+1}
    v_max_u32 v{EN+1}, v{EN}, v{EN+1}
    v_min_u32 v{T+1}, v{EN+2}, v{EN+3}
    v_max_u32 v{EN+3}, v{EN+2}, v{EN+3}
    v_min_u32 v{EN}, v{T}, v{T+1}
    v_max_u32 v{EN+2}, v{T}, v{T+1}''')
            if opt['srt'] == 2 and nw > 1:
                sort_rest()
        if band and tag == 'a':
            sort_rest()
            a(f'    s_mov_b32 s{X0}, {band << 7}')
            for r in range(2):
                a(f'''
    v_cmp_gt_u32 {sp(B1+2*r)}, s{X0}, v{EN+r}
    v_and_b32 v{G4+r}, 15, v{EN+r}
    v_lshlrev_b32 v{G4+r}, 2, v{G4+r}
    s_mov_b64 exec, {sp(B1+2*r)}
    ds_add_rtn_u32 v{RK+r}, v{G4+r}, v{FOUR} offset:{L_BCNT}
    s_mov_b64 exec, {sp(FR)}''')
            for r in range(2):
                a(f'''
    s_waitcnt lgkmcnt(1)
    s_mov_b64 exec, {sp(B1+2*r)}
    ds_write_b32 v{RK+r}, v{EN+r}''')
        else:
            rankwords(list(range(nw)))
        a(f'Z_done{tag}:')
        rare.append(tag)
    def absorb1():
        check(1, 'vcc')
        a(f'''
    s_andn2_b64 {sp(FR)}, {sp(S1)}, vcc
    s_mov_b64 {sp(S1)}, vcc
    s_mov_b64 exec, vcc
    s_cbranch_execz Y_nr
    s_add_u32 s{POLLN}, s{POLLN}, 1
    s_cmp_gt_u32 s{POLLN}, 1000000
    s_cbranch_scc1 Y_lost
    buffer_load_dwordx4 {vr(EN+4,4)}, v{H1V}, {sq(SWS)}, s{H1SO} offen{lf}
Y_nr:
    s_mov_b64 exec, {sp(FR)}''')
        for r in range(4, 8):
            brank(r, sp(FR), 'Y_done')
            a('    s_waitcnt lgkmcnt(0)')
            bput(r)
            a(f'    s_mov_b64 exec, {sp(FR)}')
        a('Y_done:')
    def dma(ereg, slot):
        for q in range(4):
            if q == 0:
                a(f'    s_mov_b32 m0, s{RING}' if slot == 0 else f'    s_add_u32 m0, s{RING}, 4096')
            else:
                a('    s_add_u32 m0, m0, 1024')
            a(f'    v_and_or_b32 v{ereg+q}, v{ereg+q}, s{AMASK}, v{CHK}')
            a(f'    buffer_load_dwordx4 v{ereg+q}, {sq(SX)}, 0 offen{gf} lds')
    def complete(reg, no):
        a(f"""
    v_max3_u32 v{T}, v{reg}, v{reg+1}, v{reg+2}
    v_max_u32 v{T}, v{T}, v{reg+3}
    v_cmp_eq_u32 vcc, s{SEMPTY}, v{T}
    s_cbranch_vccnz {no}""")
    a(f"""
    s_mov_b32 s{ISSUED}, 0
    v_mov_b32 v{EA}, v{EA0}
    v_mov_b32 v{MAD}, v{MAD0}
    s_waitcnt vmcnt(0)""")
    stamp(6)
    a('    s_setprio 3')
    absorb0('a', sw)
    settle = f"""
    s_or_b64 exec, {sp(S0)}, {sp(S1)}
    s_cselect_b32 s{OWNP}, 1, 0
    s_cbranch_execnz G_pend
    s_mov_b64 exec, 1
    ds_add_u32 v{ZERO}, v{FOUR} offset:{L_DONE}
G_pend:
    s_mov_b64 exec, -1
    s_waitcnt lgkmcnt(0)"""
    if sw == 4:
        a(settle)
    else:
        a(f"""
    s_mov_b32 s{OWNP}, 2
    s_mov_b64 exec, -1
    s_waitcnt lgkmcnt(0)""")
    a('    s_barrier')
    stamp(7)
    if opt.get('hw', 16) < 16:
        a(f"""
    s_cmp_lt_u32 s{WID}, {opt['hw']}
    s_cbranch_scc1 G_more""")
        if sw < 4:
            a(f'    s_call_b64 {sp(LINK)}, L_s2')
        if opt.get('hw2', 0):
            a(f"""
    s_cmp_lt_u32 s{WID}, {opt['hw2']}
    s_cbranch_scc1 G_more""")
        a(f"""
    s_cmp_eq_u32 s{OWNP}, 0
    s_cbranch_scc1 G_more
    s_waitcnt vmcnt(0)
    s_call_b64 {sp(LINK)}, L_late""")
    a(f"""
G_more:
    ds_read_b32 v{T+1}, v{ZERO} offset:{L_DONE}
    ds_read_b128 {vr(EE,4)}, v{EA0}
    ds_read_b128 {vr(T+4,4)}, v{EA0} offset:128
    s_cmp_eq_u32 s{ISSUED}, 1
    s_waitcnt lgkmcnt(0)
    s_cbranch_scc1 G_m1""")
    complete(EE, 'G_short')
    dma(EE, 0)
    a(f"""
    s_mov_b32 s{ISSUED}, 1
G_m1:""")
    complete(T+4, 'G_short')
    dma(T+4, 1)
    a(f"""
    s_mov_b32 s{ISSUED}, 2""")
    if sw < 4:
        a(f"""
    s_cmp_lg_u32 s{OWNP}, 2
    s_cbranch_scc1 G_go
    s_call_b64 {sp(LINK)}, L_s2""")
    a(f"""
G_go:
    s_setprio {opt.get('p0', 2)}""")
    if qdef:
        qfinish()
    a(f"""
    s_mov_b32 s{NT}, {opt.get('pb', 4)}
    s_mov_b32 s{NTI}, 0
B_go:
    ds_read_b32 v{M0R}, v{MAD}
    ds_read_b128 {vr(EE,4)}, v{EA} offset:256
    s_mov_b32 s{TT}, 1                      ; t+1
    s_waitcnt lgkmcnt(1)
    v_and_b32 v{M0R}, 0x70, v{M0R}""")
    stamp(8)
    a('B_loop:')
    pk = opt.get('pk', 0)
    th = opt.get('th', 242)
    th = (th // 100, th // 10 % 10, th % 10)
    def body(slot):
        so = slot * 4096
        mcur, mnext = (M0R, M1R) if slot == 0 else (M1R, M0R)
        eo = slot * 128
        pm = opt.get('prio', 1)
        if pm == 1 and slot == 0:
            a(f"""
    s_cmp_lt_u32 s{TT}, {th[0]}
    s_cbranch_scc1 B_p{slot}
    s_setprio 1
    s_cmp_lt_u32 s{TT}, 4
    s_cbranch_scc1 B_p{slot}
    s_sub_u32 s{X0}, s{NT}, s{TT}
    s_cmp_ge_u32 s{X0}, {th[2]}
    s_cbranch_scc1 B_p{slot}
    s_setprio 0
B_p{slot}:""")
        if pm == 3 and slot == 0:
            a(f"""
    s_cmp_lt_u32 s{TT}, {th[0]}
    s_cbranch_scc1 B_p{slot}
    s_setprio 1
    s_cmp_lt_u32 s{TT}, {th[1]}
    s_cbranch_scc1 B_p{slot}
    s_setprio 0
B_p{slot}:""")
        if pm == 4:
            a(f"""
    s_cmp_eq_u32 s{NTI}, 0
    s_cbranch_scc1 B_p{slot}
    s_sub_u32 s{X0}, s{NT}, s{TT}
    s_setprio 2
    s_cmp_ge_u32 s{X0}, {th[1]}
    s_cbranch_scc1 B_p{slot}
    s_setprio 1
    s_cmp_ge_u32 s{X0}, {th[2]}
    s_cbranch_scc1 B_p{slot}
    s_setprio 0
B_p{slot}:""")
        if pm == 2:
            a(f"""
    s_cmp_lt_u32 s{TT}, 4
    s_cbranch_scc1 B_q{slot}
    s_sub_u32 s{X0}, s{NT}, s{TT}
    s_setprio 3
    s_cmp_ge_u32 s{X0}, 3
    s_cbranch_scc1 B_p{slot}
    s_setprio 2
    s_cmp_ge_u32 s{X0}, 2
    s_cbranch_scc1 B_p{slot}
B_q{slot}:
    s_setprio 1
B_p{slot}:""")
        a(f'''
    ds_read_b32 v{MA}, v{mcur} offset:{L_LUT}
    ds_read_b32 v{mnext}, v{MAD} offset:{eo+128}
    s_cmp_lt_u32 s{TT}, s{NT}
    s_cbranch_scc1 B_w4_{slot}
    s_waitcnt vmcnt(0)
B_w4_{slot}:
    s_cmp_lg_u32 s{OWNP}, 0
    s_waitcnt vmcnt(4)
    s_cbranch_scc0 B_rd_{slot}
    s_call_b64 {sp(LINK)}, L_late
B_rd_{slot}:''')
        if opt.get('tprof'):
            a(f'''
    s_memrealtime s[98:99]
    s_min_u32 s100, s{TT}, 10
    s_waitcnt lgkmcnt(0)
    s_mov_b32 m0, s100
    v_writelane_b32 v{ATK}, s98, m0''')
        a(f'''
    ds_read_b128 {vr(XA,4)}, v{RA0} offset:{so}
    ds_read_b128 {vr(XA+4,4)}, v{RA1} offset:{so}
    ds_read_b128 {vr(XA+8,4)}, v{RA0} offset:{so+2048}
    ds_read_b128 {vr(XA+12,4)}, v{RA1} offset:{so+2048}''')
        for fb in range(4):
            a(f'    ds_read_b64_tr_b16 {vr(XT+4*fb,2)}, v{RT+fb} offset:{so}')
            a(f'    ds_read_b64_tr_b16 {vr(XT+4*fb+2,2)}, v{RT+fb} offset:{so+2048}')
        a(f'''
    s_add_u32 s{TT}, s{TT}, 1               ; t+2
    s_waitcnt lgkmcnt(12)
    {f'v_mfma_f32_16x16x16_bf16 {vr(S,4)}, {vr(MA,2)}, {vr(MB,2)}, 0' if opt.get('m16') else f'v_mfma_f32_16x16x32_bf16 {vr(S,4)}, {vr(MA,4)}, {vr(MB,4)}, 0'}
    v_and_b32 v{mnext}, 0x70, v{mnext}
    s_waitcnt lgkmcnt(11)
    v_mfma_f32_16x16x32_bf16 {vr(S,4)}, {vr(XA,4)}, {vr(QLO,4)}, {vr(S,4)}
    s_waitcnt lgkmcnt(10)
    v_mfma_f32_16x16x32_bf16 {vr(S,4)}, {vr(XA+4,4)}, {vr(QLO+4,4)}, {vr(S,4)}
    s_waitcnt lgkmcnt(9)
    v_mfma_f32_16x16x32_bf16 {vr(S,4)}, {vr(XA+8,4)}, {vr(QHI,4)}, {vr(S,4)}
    s_waitcnt lgkmcnt(8)
    v_mfma_f32_16x16x32_bf16 {vr(S,4)}, {vr(XA+12,4)}, {vr(QHI+4,4)}, {vr(S,4)}
    s_waitcnt lgkmcnt(0)
    s_cmp_lt_u32 s{TT}, s{NTI}
    s_cbranch_scc0 B_skip_{slot}
B_dma_{slot}:''')
        dma(EE, slot)
        a(f'''
    ds_read_b128 {vr(EE,4)}, v{EA} offset:{eo+384}
B_cont_{slot}:''')
        for r in range(4):
            a(f'    v_exp_f32 v{S+r}, v{S+r}')
        if slot == 1:
            a(f'    v_add_u32 v{EA}, 256, v{EA}')
            a(f'    v_add_u32 v{MAD}, 256, v{MAD}')
        if pk:
            a(f'    v_pk_add_f32 {vr(S,2)}, {vr(S,2)}, 1.0 op_sel_hi:[1,0]')
            a(f'    v_pk_add_f32 {vr(S+2,2)}, {vr(S+2,2)}, 1.0 op_sel_hi:[1,0]')
        else:
            for r in range(4):
                a(f'    v_add_f32 v{S+r}, 1.0, v{S+r}')
        for r in range(4):
            a(f'    v_rcp_f32 v{S+r}, v{S+r}')
        a(f'''
    v_cvt_pk_bf16_f32 v{PP}, v{S}, v{S+1}
    s_cmp_gt_u32 s{TT}, s{NT}
    v_cvt_pk_bf16_f32 v{PP+1}, v{S+2}, v{S+3}
    s_nop 0
    v_mov_b32_dpp v{PP+2}, v{PP} row_ror:8 row_mask:0xf bank_mask:0xf
    v_mov_b32_dpp v{PP+3}, v{PP+1} row_ror:8 row_mask:0xf bank_mask:0xf
    s_nop 1''')
        for fb in range(4):
            a(f'    v_mfma_f32_16x16x32_bf16 {vr(ACC+4*fb,4)}, {vr(XT+4*fb,4)}, {vr(PP,4)}, {vr(ACC+4*fb,4)}')
        a('    s_cbranch_scc1 B_loopdone' if slot == 0 else '    s_cbranch_scc0 B_loop')
    n0 = len(a.lines)
    body(0)
    body(1)
    drop = []
    if opt.get('x_nords'): drop += ['ds_read_b128 v[4', 'ds_read_b128 v[5', 'ds_read_b64_tr']
    if opt.get('x_nomfma'): drop += ['v_mfma']
    if opt.get('x_novalu'): drop += ['v_exp', 'v_rcp', 'v_add_f32', 'v_cvt', 'v_mov_b32_dpp', 'v_pk_add']
    if opt.get('bench'): drop += [f'v_add_u32 v{EA}, 256', f'v_add_u32 v{MAD}, 256']
    a.lines[n0:] = [l for l in a.lines[n0:] if not any(l.strip().startswith(d) for d in drop)]
    a(f'''
B_loopdone:
    s_cmp_lg_u32 s{MODE}, 0
    s_cbranch_scc1 C_next
B_epi:''')
    if opt.get('epi3'):
        a('    s_setprio 3')
    stamp(9)
    epi = opt.get('epi', 1)
    wve = opt.get('wve', 0)
    wv = [XA, XA+8, QLO, QHI]
    DO = XT
    def wvread(blks):
        for blk in blks:
            ad = WVA if blk == 0 else T+blk
            for ks in range(2):
                for h in range(2):
                    a(f'    ds_read_b64_tr_b16 {vr(wv[blk]+ks*4+h*2,2)}, v{ad} offset:{L_WV+(32*ks+16*h)*128}')
    def wvfirst():
        a(f"""
    v_xor_b32 v{T+1}, 8, v{WVA}
    v_xor_b32 v{T+2}, 16, v{WVA}
    v_xor_b32 v{T+3}, 24, v{WVA}""")
        wvread([0, 1, 2])
    if wve:
        a(f"""
    s_cmp_lg_u32 s{ISSUED}, 3
    s_cbranch_scc0 E_have""")
    wvfirst()
    a('E_have:')
    a('    s_waitcnt lgkmcnt(8)')
    wvread([3])
    if epi:
        a(f"""
    v_xor_b32 v{T+6}, 16, v{EPV}
    v_lshl_add_u32 v{T+5}, v{LANE}, 4, s{RING}""")
    else:
        a(f"""
    v_and_b32 v{T+4}, 7, v{LANE}
    v_lshlrev_b32 v{T+4}, 19, v{T+4}
    v_lshrrev_b32 v{T+5}, 4, v{LANE}
    v_lshl_add_u32 v{T+4}, v{T+5}, 5, v{T+4}
    s_lshl_b32 s{X0}, s{WID}, 15
    s_lshl_b32 s{X0+1}, s2, 7
    s_add_u32 s{PFT}, s{X0}, s{X0+1}""")
    for r in range(8):
        a(f'    v_cvt_pk_bf16_f32 v{S+r}, v{ACC+2*r}, v{ACC+2*r+1}')
    a('    s_nop 0')
    for blk in range(4):
        a(f'    s_waitcnt lgkmcnt({min(8, 12-4*blk)})')
        a(f'    v_mfma_f32_16x16x32_bf16 {vr(DO+4*blk,4)}, {vr(wv[blk],4)}, {vr(S,4)}, 0')
        a(f'    v_mfma_f32_16x16x32_bf16 {vr(DO+4*blk,4)}, {vr(wv[blk]+4,4)}, {vr(S+4,4)}, {vr(DO+4*blk,4)}')
    a(f'''
    s_cmp_lg_u32 s{WID}, 15
    s_cbranch_scc1 K_no2
    s_mov_b64 exec, 1
    s_cmp_lg_u32 s{GAVE}, 0
    s_cbranch_scc1 K_ticket
K_adv:
    v_mov_b32 v{T}, s{EPOCH}
    global_store_dword v{ZERO}, v{T}, s[18:19]
K_skip:
    s_mov_b64 exec, -1
K_no2:
    s_nop 2''')
    for r in range(4):
        a(f'    v_cvt_pk_bf16_f32 v{XA+r}, v{DO+2*r}, v{DO+2*r+1}')
    a(f'    s_mov_b64 exec, {sp(LOM)}')
    if epi:
        a(f'    ds_write_b128 v{EPV}, {vr(XA,4)}')
    else:
        a(f'    buffer_store_dwordx4 {vr(XA,4)}, v{T+4}, {sq(SOUT)}, s{PFT} offen{of}')
    for r in range(4, 8):
        a(f'    v_cvt_pk_bf16_f32 v{XA+r}, v{DO+2*r}, v{DO+2*r+1}')
    if epi:
        a(f'''
    ds_write_b128 v{T+6}, {vr(XA+4,4)}
    s_mov_b64 exec, -1
    ds_read_b128 {vr(XA+8,4)}, v{T+5}
    s_waitcnt lgkmcnt(0)
    buffer_store_dwordx4 {vr(XA+8,4)}, v{ROWOFF}, {sq(SOUT)}, 0 offen{of}''')
    else:
        a(f'''
    buffer_store_dwordx4 {vr(XA+4,4)}, v{T+4}, {sq(SOUT)}, s{PFT} offen offset:16{of}
    s_mov_b64 exec, -1''')
    if st:
        stamp(10)
        a('    s_waitcnt vmcnt(0)')
        stamp(11)
        if opt.get('tprof'):
            a(f'''
    s_mov_b64 exec, 0x7fe
    v_mov_b32 v{STV}, v{ATK}
    s_mov_b64 exec, -1''')
        a(f'''
    s_add_u32 s{X0}, s18, {STAMP_OFF}
    s_addc_u32 s{X0+1}, s19, 0
    s_lshl_b32 s{X0+2}, s2, 4
    s_add_u32 s{X0+2}, s{X0+2}, s{WID}
    s_lshl_b32 s{X0+2}, s{X0+2}, 6
    v_lshl_add_u32 v{T}, v{LANE}, 2, s{X0+2}
    s_mov_b64 exec, 0xffff
    global_store_dword v{T}, v{STV}, {sp(X0)}''')
        if 'amp' in opt:
            a(f'''
    v_readlane_b32 s60, v{STV}, 0
    v_readlane_b32 s61, v{STV}, {opt['amp']}
    v_readlane_b32 s62, v{STV}, 11
    s_sub_u32 s61, s61, s60
    s_mul_i32 s61, s61, {opt.get('ampk', 2)}
    s_min_u32 s61, s61, 20000
D_spin:
    s_memrealtime s[98:99]
    s_waitcnt lgkmcnt(0)
    s_sub_u32 s98, s98, s62
    s_cmp_lt_u32 s98, s61
    s_cbranch_scc1 D_spin''')
    a(f'''
L_end:
    s_endpgm
''')
    for slot in range(2):
        a(f'''
B_skip_{slot}:
    s_cmp_lg_u32 s{NTI}, 0
    s_cbranch_scc1 B_idle_{slot}
    s_mov_b32 s{RET}, {slot}
    s_cmp_ge_u32 s{TT}, {opt.get('pb', 4)}
    s_cbranch_scc1 F_final''')
        complete(EE, f'B_again_{slot}')
        a(f'''
    s_branch B_dma_{slot}
B_again_{slot}:
    ds_read_b128 {vr(EE,4)}, v{EA} offset:{slot*128+256}
    s_waitcnt lgkmcnt(0)''')
        complete(EE, 'F_final')
        a(f'''
    s_branch B_dma_{slot}
F_ret_{slot}:
    ds_read_b128 {vr(EE,4)}, v{EA} offset:{slot*128+256}
    s_waitcnt lgkmcnt(0)
    s_cmp_lt_u32 s{TT}, s{NT}
    s_cbranch_scc1 B_dma_{slot}
B_idle_{slot}:''')
        if wve:
            a(f'''
    s_cmp_le_u32 s{TT}, s{NT}
    s_cbranch_scc1 B_id2_{slot}
    s_cmp_lg_u32 s{MODE}, 0
    s_cbranch_scc1 B_id2_{slot}
    s_mov_b32 s{ISSUED}, 3''')
            wvfirst()
            a(f'    s_branch B_cont_{slot}')
            a(f'B_id2_{slot}:')
        a(f'''
    s_nop 7
    s_branch B_cont_{slot}''')
    a(f"""
L_late:
    s_mov_b64 exec, {sp(S1)}
    s_cbranch_execz Y_done""")
    absorb1()
    a(f"""
    s_mov_b64 exec, {sp(S0)}
    s_cbranch_execz Z_doneb""")
    absorb0('b')
    a(f"""
    s_or_b64 exec, {sp(S0)}, {sp(S1)}
    s_cbranch_execnz L_ret
    s_mov_b32 s{OWNP}, 0
    s_mov_b64 exec, 1
    ds_add_u32 v{ZERO}, v{FOUR} offset:{L_DONE}""")
    if st:
        a(f'    v_writelane_b32 v{STV}, s{POLLN}, 15')
        a('    s_memrealtime s[98:99]')
        a('    s_waitcnt lgkmcnt(0)')
        a(f'    v_writelane_b32 v{STV}, s98, 7')
    a(f"""
L_ret:
    s_mov_b64 exec, -1
    s_waitcnt lgkmcnt(0)
    s_setpc_b64 {sp(LINK)}
G_short:
    v_readfirstlane_b32 s{X0}, v{T+1}
    s_cmp_eq_u32 s{OWNP}, 0
    s_cbranch_scc1 G_s2""")
    if sw < 4:
        a(f"""
    s_cmp_lg_u32 s{OWNP}, 2
    s_cbranch_scc1 G_s1
    s_call_b64 {sp(LINK)}, L_s2
    s_branch G_more
L_s2:
    s_mov_b64 exec, {sp(FR)}""")
        if opt.get('srt') == 2 and sw == 1:
            sort_rest()
        if band:
            for r in range(2):
                a(f'''
    v_cmp_ne_u32 {sp(VM+2*r)}, s{SEMPTY}, v{EN+r}
    s_andn2_b64 {sp(VM+2*r)}, {sp(VM+2*r)}, {sp(B1+2*r)}
    s_mov_b64 exec, {sp(VM+2*r)}
    ds_add_rtn_u32 v{RK+r}, v{G4+r}, v{FOUR} offset:{L_BCNT}
    s_mov_b64 exec, {sp(FR)}''')
            brank(2, sp(FR))
            brank(3, sp(FR))
            for r in range(4):
                a('    s_waitcnt lgkmcnt(3)')
                bput(r)
        else:
            rankwords(list(range(sw, 4)))
        a(settle)
        a(f'    s_setpc_b64 {sp(LINK)}')
        a('G_s1:')
    a(f"""
    s_waitcnt vmcnt(0)
    s_call_b64 {sp(LINK)}, L_late
    s_branch G_more
G_s2:
    s_sleep 1
    s_cmp_lt_u32 s{X0}, 64
    s_cbranch_scc1 G_more""")
    if qdef:
        qfinish()
    a(f'''
B_counts:
    s_mov_b32 s{RET}, 2
F_final:
    s_cmp_eq_u32 s{OWNP}, 0
    s_cbranch_scc1 F_spin
    s_waitcnt vmcnt(0)
    s_call_b64 {sp(LINK)}, L_late
    s_branch F_final
F_spin:
    ds_read_b32 v{T+1}, v{CNTA} offset:{L_BCNT}
    s_waitcnt lgkmcnt(0)
    v_readlane_b32 s{X0}, v{T+1}, 26
    v_sub_u32 v{T+3}, v{T+1}, v{LBASE}
    s_cmp_lt_u32 s{X0}, 64
    s_cbranch_scc1 F_spin
    v_cmp_ne_u32 {sp(X0)}, 0, v{T+1}
    v_cmp_lt_u32 vcc, {GSTRIDE}, v{T+3}
    v_readlane_b32 s{NT}, v{T+3}, s{WID}
    s_and_b32 s{X0}, s{X0}, 0x1ff0000
    s_and_b32 s{X0+1}, vcc_lo, 0xffff
    s_or_b32 s{NTI}, s{X0+1}, s{X0}
    s_or_b32 s{NTI}, s{NTI}, s{MODE}
    s_cbranch_scc1 C_slowcnt
B_cntok:
    s_add_u32 s{NT}, s{NT}, 127
    s_lshr_b32 s{NT}, s{NT}, 7              ; tiles
    s_mov_b32 s{NTI}, s{NT}
    s_cbranch_scc0 B_loopdone
    s_cmp_eq_u32 s{RET}, 0
    s_cbranch_scc1 F_ret_0
    s_cmp_eq_u32 s{RET}, 1
    s_cbranch_scc1 F_ret_1
    s_branch B_first
K_ticket:
    v_mov_b32 v{T+1}, 1
    global_atomic_add v{ATK}, v{ZERO}, v{T+1}, s[16:17] sc0 sc1
    s_waitcnt vmcnt(0)
    v_readfirstlane_b32 s{X0}, v{ATK}
    s_cmp_eq_u32 s{X0}, {NWG-1}
    s_cbranch_scc1 K_adv
    s_branch K_skip
B_first:
    ds_read_b128 {vr(XA,4)}, v{EA}
    ds_read_b128 {vr(XA+4,4)}, v{EA} offset:128
    s_waitcnt lgkmcnt(0)
    s_cmp_eq_u32 s{ISSUED}, 1
    s_cbranch_scc1 B_f1''')
    dma(XA, 0)
    a(f'''
B_f1:
    s_cmp_lt_u32 s{NT}, 2
    s_cbranch_scc1 B_go''')
    dma(XA+4, 1)
    a('    s_branch B_go')
    def drop_lines():
        for r in range(4):
            a(f'    v_mov_b32 v{EN+r}, {EMPTY}')
        a(f'''
    v_lshrrev_b32 v{T}, 2, v0
    v_lshrrev_b32 v{T+1}, 5, v{T}
    v_lshlrev_b32 v{T+1}, 2, v{T+1}
    v_lshlrev_b32 v{T}, v{T}, 1
    ds_or_b32 v{T+1}, v{T} offset:{L_RESC}''')
    a(f'''
A_full:
    s_wqm_b64 exec, {sp(S0)}
    v_mov_b32 v40, {FULLM}
    v_mov_b32 v41, {EMPTY}
    v_mov_b32 v42, {EMPTY}
    v_mov_b32 v43, {EMPTY}
    s_mov_b64 exec, -1
    s_branch A_pub''')
    for tag in rare:
        a(f'''
Z_give{tag}:
    ds_write_b32 v{ZERO}, v{FOUR} offset:{L_GAVE}''')
        drop_lines()
        a(f'''
    s_mov_b64 {sp(S0)}, 0
    s_mov_b32 s{POLLN}, 0
    s_branch Z_nr{tag}
Z_full{tag}:
    s_mov_b64 exec, vcc''')
        drop_lines()
        a(f'    s_branch Z_rank{tag}')
    a('Y_lost:')
    for r in range(4, 8):
        a(f'    v_mov_b32 v{EN+r}, {EMPTY}')
    a(f'''
    s_mov_b64 {sp(S1)}, 0
    s_branch Y_nr
C_slowcnt:
    s_cmp_lg_u32 s{MODE}, 0
    s_cbranch_scc1 C_careful''')
    for k in range(8):
        a(f'    v_readlane_b32 s{RESC+k}, v{T+1}, {16+k}')
    a(f'''
    v_readlane_b32 s{GAVE}, v{T+1}, 25
    s_mov_b32 s{MODE}, 2
    s_cmp_lg_u32 s{X0+1}, 0
    s_cbranch_scc1 C_redo
    s_mov_b32 s{MODE}, 1
    s_branch B_cntok
C_redo:
    ; a list ran over its neighbour: forget what was accumulated and redo all entries carefully''')
    for r in range(16):
        a(f'    v_mov_b32 v{ACC+r}, 0')
    a(f'''
    s_branch C_next
C_careful:
    s_min_u32 s{NT}, s{NT}, {GSTRIDE}
    s_bitcmp1_b32 s{X0}, 24
    s_cselect_b32 s{MODE}, 2, 1
    s_branch B_cntok
C_next:
    s_setprio 0
    s_mov_b32 s{ISSUED}, 0
    s_waitcnt vmcnt(0) lgkmcnt(0)
    s_barrier
    s_cmp_eq_u32 s{MODE}, 2
    s_cbranch_scc1 C_round
    s_mov_b32 s{X0}, -1''')
    for k in range(7, -1, -1):
        a(f'''
    s_ff1_i32_b32 s{X0+1}, s{RESC+k}
    s_add_u32 s{X0+1}, s{X0+1}, {32*k}
    s_cmp_lg_u32 s{RESC+k}, 0
    s_cselect_b32 s{X0}, s{X0+1}, s{X0}''')
    a(f'''
    s_cmp_eq_u32 s{X0}, -1
    s_cbranch_scc1 B_epi
    s_lshr_b32 s{X0+1}, s{X0}, 5
    s_lshl_b32 s{X0+2}, 1, s{X0}''')
    for k in range(8):
        a(f'''
    s_andn2_b32 s{X0+3}, s{RESC+k}, s{X0+2}
    s_cmp_eq_u32 s{X0+1}, {k}
    s_cselect_b32 s{RESC+k}, s{X0+3}, s{RESC+k}''')
    a(f'''
    s_mul_i32 s{X0}, s{X0}, {CH*4}''')
    for k in range(4):
        a(f'''
    buffer_load_dword v{ED+k}, v{T4}, {sq(SDST)}, s{X0} offen
    buffer_load_dword v{ES+k}, v{T4}, {sq(SSRC)}, s{X0} offen
    s_add_u32 s{X0}, s{X0}, 4096''')
    for r in range(4, 8):
        a(f'    v_mov_b32 v{EN+r}, {EMPTY}')
    a(f'    v_mov_b32 v{T+1}, {EMPTY}')
    a('    s_waitcnt vmcnt(0)')
    for k in range(4):
        a(f'''
    {f'v_add_u32_sdwa v{T}, v{ED+k}, v{ED+k} dst_sel:DWORD dst_unused:UNUSED_PAD src0_sel:BYTE_0 src1_sel:BYTE_1' if skew else f'v_mov_b32 v{T}, v{ED+k}'}
    v_and_b32 v{T}, 255, v{T}
    v_cmp_eq_u32 vcc, s2, v{T}
    v_lshrrev_b32 v{ED+k}, 8, v{ED+k}
    v_lshl_or_b32 v{ES+k}, v{ES+k}, 7, v{ED+k}''')
        if k == 3:
            a(f'    s_and_b64 vcc, vcc, {sp(M3)}')
        a(f'    v_cndmask_b32 v{EN+k}, v{T+1}, v{ES+k}, vcc')
    a(f'''
C_round:
    v_mov_b32 v{T+4}, {EMPTY}
    v_mov_b32 v{T+5}, {EMPTY}
    v_mov_b32 v{T+6}, {EMPTY}
    v_mov_b32 v{T+7}, {EMPTY}
    ds_write_b128 v{T16}, {vr(T+4,4)} offset:{L_LIST}
    s_cmp_ge_u32 s{WID}, 6
    s_cbranch_scc1 C_i1
    ds_write_b128 v{T16}, {vr(T+4,4)} offset:{L_LIST+16384}
C_i1:
    s_cmp_lg_u32 s{WID}, 12
    s_cbranch_scc1 C_i2
    s_mov_b64 exec, 0xffff
    ds_write_b32 v{CNTA}, v{LBASE} offset:{L_BCNT}
    ds_write_b32 v{ZERO}, v{ZERO} offset:{L_PEND}
    s_mov_b64 exec, -1
C_i2:
    s_waitcnt lgkmcnt(0)
    s_barrier
    s_mov_b32 s{X0+4}, {GSTRIDE//4}
    s_mov_b32 s{X0+5}, {L_LIST+GSTRIDE}''')
    for r in range(8):
        brank(r, '-1')
        a(f'''
    v_mul_u32_u24 v{T+3}, s{X0+4}, v{G4+r}
    v_add_u32 v{T+3}, s{X0+5}, v{T+3}
    s_mov_b64 exec, {sp(VM+2*r)}
    s_waitcnt lgkmcnt(0)
    v_cmp_lt_u32 vcc, v{RK+r}, v{T+3}
    s_and_saveexec_b64 {sp(X0+6)}, vcc
    ds_write_b32 v{RK+r}, v{EN+r}
    v_mov_b32 v{EN+r}, {EMPTY}
    s_andn2_b64 exec, {sp(X0+6)}, exec
    ds_write_b32 v{ZERO}, v{FOUR} offset:{L_PEND}
    s_mov_b64 exec, -1''')
    a(f'''
    v_mov_b32 v{EA}, v{EA0}
    v_mov_b32 v{MAD}, v{MAD0}
    s_waitcnt lgkmcnt(0)
    s_barrier
L_last:
    s_branch B_counts''')
    if opt.get('red'):
        gen_red(a, opt)
    def kd(name, vg, sg):
        a(f'''
.p2align 6
.amdhsa_kernel {name}
  .amdhsa_next_free_vgpr {vg}
  .amdhsa_next_free_sgpr {sg}
  .amdhsa_accum_offset {vg}
  .amdhsa_group_segment_fixed_size 0
  .amdhsa_kernarg_size 64
  .amdhsa_user_sgpr_count 2
  .amdhsa_user_sgpr_kernarg_segment_ptr 1
  .amdhsa_system_sgpr_workgroup_id_x 1
.end_amdhsa_kernel''')
    a('.section .rodata,"a"')
    kd(KNAME, 128, 102)
    if opt.get('red'):
        kd('red_kernel', 32, 48)
    return a.text()

if __name__ == '__main__':
    out = sys.argv[1]
    opt = {}
    for kv in sys.argv[2:]:
        k, v = kv.split('=')
        try:
            v = int(v)
        except ValueError:
            v = '' if v == 'none' else ' ' + v.replace('+', ' ')
        opt[k] = v
    open(out, 'w').write(build(opt))
```

```python
import sys, struct
from gen3 import gen_red

N, E, D = 25000, 800000, 64
NWG = 256
CH = E // NWG
HSTRIDE = 16384 + 128
SEG_OFF = 4096
H1_OFF = 256 * HSTRIDE
WS_USED = SEG_OFF + 2 * H1_OFF
X_BYTES = N * 128
EMPTY = 0x003FFFFF
FULLM = 0x003FFFFE
KNAME = 'standalone__kernel_systems_refs_featgraph__graph_kernel'

L_ACNT = 0
L_BCNT = 1024
L_RESC = 1088
L_PEND = 1120
L_GAVE = 1124
L_DONE = 1128
L_LUT = 1152
L_WV = 2048
L_RING = 10240
L_LIST = L_RING + 131072
GSTRIDE = 1408
L_XN = L_RING + 32768
L_WQ = L_RING + 65536
ISTRIDE = 144
L_IMG = L_LIST - 256 * ISTRIDE
LDS = 163840
STAMP_OFF = 0x1000000

def f32bits(x):
    return struct.unpack('<I', struct.pack('<f', x))[0]

class Asm:
    def __init__(self):
        self.lines = []
    def __call__(self, s):
        for ln in s.strip('\n').split('\n'):
            if ln.strip():
                self.lines.append(ln)
    def text(self):
        return '\n'.join(self.lines) + '\n'

def vr(lo, n):
    return f'v[{lo}:{lo+n-1}]'
def sp(lo):
    return f's[{lo}:{lo+1}]'
def sq(lo):
    return f's[{lo}:{lo+3}]'

def srd(a, d, lo, nbytes):
    a(f'    s_mov_b32 s{d}, s{lo}')
    a(f'    s_mov_b32 s{d+1}, s{lo+1}')
    a(f'    s_mov_b32 s{d+2}, {nbytes}')
    a(f'    s_mov_b32 s{d+3}, 0x00020000')

LANE, T4, T16, FOUR, ZERO, ROWOFF, WVA = 1, 2, 3, 4, 5, 6, 7
QLO, QHI, ACC, XA, XT, S, PP, MA, MB, EE = 8, 16, 24, 40, 56, 72, 76, 80, 84, 88
M0R, M1R, RA0, RA1, RT, EA, MAD, CHK, EA0 = 92, 93, 94, 95, 96, 100, 101, 102, 103
T = 104
EN = 112
MAD0, PFD, ATK, STV, CNTA, EPV, LBASE = 120, 121, 122, 123, 124, 125, 126
ED, ES, B4, PS = 40, 44, 48, 52
WD, XN = 56, 60
IMGR, STO, WSA = 68, 69, 70
G4, RK = 40, 48

GAVE = 3
SX, SSRC, SDST, SW, EPOCH, ISSUED, SOUT, SWS = 20, 24, 28, 32, 34, 35, 36, 40
WID, SEGB, AMASK, RING, NT, TT = 44, 45, 46, 47, 48, 49
TAG = 50
SEMPTY, MODE, LOM, M3 = 54, 55, 56, 58
RESC = 60
FR, N1 = 60, 62
VM = 68
X0 = 84
H1SO, KFULL, S0, S1, K88, KTHR, PFT, POLLN, PRIME = 86, 87, 88, 90, 92, 94, 95, 96, 97
NTI, RET = 32, 33
OWNP, LINK = 97, 10

def build(opt):
    a = Asm()
    st = opt.get('stamps')
    def stamp(k):
        if st:
            ck = {0: 14, 7: 12, 9: 13}.get(k)
            if ck:
                a('    s_memtime s[100:101]')
            a('    s_memrealtime s[98:99]')
            a('    s_waitcnt lgkmcnt(0)')
            a(f'    v_writelane_b32 v{STV}, s98, {k}')
            if ck:
                a(f'    v_writelane_b32 v{STV}, s100, {ck}')
    launch = (f'; @launch kernel={KNAME} grid=({NWG},1,1) block=(1024,1,1) lds={LDS}' if opt.get('list') else
              f'; @launch grid=({NWG},1,1) block=(1024,1,1) lds={LDS}')
    if opt.get('red'):
        launch += '\n; @launch kernel=red_kernel grid=(1,1,1) block=(64,1,1) lds=0'
    sf = opt.get('st', ' sc1')
    lf = opt.get('ld', ' sc1')
    gf = opt.get('gather', '')
    of = opt.get('out', '')
    a(f'''; FeatGraph (SDDMM sigmoid gate + SpMM) in one launch, one workgroup per CU.
{launch}
.amdgcn_target "amdgcn-amd-amdhsa--gfx950"
.text
.globl {KNAME}
.p2align 8
.type {KNAME},@function
{KNAME}:
    s_cmp_ge_u32 s2, {NWG}
    s_cbranch_scc1 L_end''')
    if st:
        a(f'    v_mov_b32 v{STV}, 0')
        a(f'    v_mov_b32 v{ATK}, 0')
    stamp(0)
    a('    s_load_dwordx16 s[4:19], s[0:1], 0')
    a(f'''
    s_and_b32 s{X0}, s2, 7
    s_lshl_b32 s{X0}, s{X0}, 5
    s_lshr_b32 s2, s2, 3
    s_or_b32 s2, s2, s{X0}''')
    if opt.get('cpf'):
        a(f'''
    s_getpc_b64 {sp(S0)}
I_pc:
    v_lshlrev_b32 v127, 7, v0
    v_cmp_gt_u32 vcc, A_full-I_pc, v127
    s_and_saveexec_b64 {sp(S1)}, vcc
    s_cbranch_execz I_c
    global_load_dword v127, v127, {sp(S0)}
I_c:
    s_mov_b64 exec, -1''')
    a(f'''
    s_mul_i32 s{X0}, s2, {CH*4}
    v_lshlrev_b32 v{T4}, 2, v0
    v_lshrrev_b32 v{T+4}, 6, v0
    v_add_u32 v{T}, s{X0}, v{T4}
    v_readfirstlane_b32 s{WID}, v{T+4}
    v_add_u32 v{T+1}, 4096, v{T}
    v_add_u32 v{T+2}, 8192, v{T}
    v_add_u32 v{T+3}, 12288, v{T}
    v_cmp_gt_u32 {sp(M3)}, {CH-3072}, v0
    v_lshlrev_b32 v{T16}, 4, v0
    v_mov_b32 v{ZERO}, 0
    v_mov_b32 v{T+4}, {EMPTY}
    v_mov_b32 v{T+5}, {EMPTY}
    v_mov_b32 v{T+6}, {EMPTY}
    v_mov_b32 v{T+7}, {EMPTY}
    s_waitcnt lgkmcnt(0)
    {f'global_load_dword v{EPV}, v{ZERO}, s[18:19]      ; epoch word' if opt.get('epf') else ''}
    s_mov_b64 exec, {sp(M3)}
    s_cbranch_execz A_no3a
    global_load_dword v{ED+3}, v{T+3}, s[8:9]
    global_load_dword v{ES+3}, v{T+3}, s[6:7]
A_no3a:
    s_mov_b64 exec, -1''')
    for k in range(3):
        a(f'    global_load_dword v{ED+k}, v{T+k}, s[8:9]')
    for k in range(3):
        a(f'    global_load_dword v{ES+k}, v{T+k}, s[6:7]')
    skew = opt.get('skew', 0)
    xw = opt.get('xw', 0)
    xe = opt.get('xe', 0)
    cw = opt.get('cw', 0)
    assert opt.get('epf')
    def ldsfill():
        a(f"""
    v_add_u32 v{T}, {L_IMG}, v{T16}
    ds_write_b128 v{T}, {vr(T+4,4)}
    ds_write_b128 v{T}, {vr(T+4,4)} offset:16384
    s_cmp_ge_u32 s{WID}, 4
    s_cbranch_scc1 I_a
    ds_write_b128 v{T}, {vr(T+4,4)} offset:32768
    ds_write_b32 v{T4}, v{ZERO} offset:{L_ACNT}
I_a:""")
    def rowsetup():
        a(f"""
    v_and_b32 v{LANE}, 63, v0
    v_mov_b32 v{FOUR}, 4""")
        srd(a, SX, 4, X_BYTES)
        a(f"""
    s_cmp_lt_u32 s{WID}, 8
    s_cselect_b32 s{SW}, s10, s12
    s_cselect_b32 s{SW+1}, s11, s13
    v_lshrrev_b32 v{T}, 3, v{LANE}
    v_and_b32 v{T+1}, 7, v{LANE}
    v_xor_b32 v{T+1}, v{T+1}, v{T}
    v_lshlrev_b32 v{T+1}, 4, v{T+1}""")
        if skew:
            a(f"""
    v_lshl_add_u32 v{T}, v{T}, 4, s{WID}    ; local
    v_sub_u32 v{T+2}, s2, v{T}
    v_and_b32 v{T+2}, 255, v{T+2}
    v_lshl_or_b32 v{T}, v{T}, 8, v{T+2}     ; node
    v_lshl_add_u32 v{ROWOFF}, v{T}, 7, v{T+1}""")
        else:
            a(f"""
    v_lshlrev_b32 v{T}, 19, v{T}
    s_lshl_b32 s{X0}, s{WID}, 15
    s_lshl_b32 s{X0+1}, s2, 7
    s_add_u32 s{X0}, s{X0}, s{X0+1}
    v_add3_u32 v{ROWOFF}, v{T}, v{T+1}, s{X0}""")
        a(f"""
    s_lshl_b32 s{X0}, s{WID}, 10
    s_add_u32 m0, s{X0}, {L_XN}""")
    def wload():
        a(f'    v_and_b32 v{T+3}, 0x1ff0, v{T16}')
        a(f'    global_load_dwordx4 {vr(WD,4)}, v{T+3}, {sp(SW)}')
    def xload():
        a(f'    buffer_load_dwordx4 v{ROWOFF}, {sq(SX)}, 0 offen lds')
    def early():
        if xw in (0, 2, 4):
            wload()
        if xw == 0:
            xload()
        if cw == 1:
            a(f"""
    s_mul_i32 s{PFT}, s2, {98*128}
    s_mul_i32 s{X0}, s{WID}, {7*128}
    s_add_u32 s{PFT}, s{PFT}, s{X0}
    v_lshlrev_b32 v{T}, 7, v{LANE}
    s_cmp_lt_u32 s{WID}, 14
    s_cselect_b32 exec_lo, 0x7f, 1
    s_mov_b32 exec_hi, 0
    buffer_load_dword v{ATK}, v{T}, {sq(SX)}, s{PFT} offen
    s_mov_b64 exec, -1""")
    if xe:
        rowsetup()
        if xe == 2:
            a('    s_barrier')
        early()
        ldsfill()
    else:
        ldsfill()
        rowsetup()
    a("""
    s_waitcnt lgkmcnt(0)
    s_barrier""")
    if not xe:
        early()
    pfpos = [0]
    def prefetch(n):
        lo, hi = pfpos[0], pfpos[0] + n
        pfpos[0] = hi
        m = ((1 << hi) - 1) ^ ((1 << lo) - 1)
        a(f'''
    s_lshr_b32 s{PFT}, s2, 3
    s_lshl_b32 s{PFT}, s{PFT}, 4
    s_add_u32 s{PFT}, s{PFT}, s{WID}
    s_mul_i32 s{PFT}, s{PFT}, {49*128}
    v_lshlrev_b32 v{T}, 7, v{LANE}
    s_mov_b32 exec_lo, 0x{m & 0xffffffff:x}
    s_mov_b32 exec_hi, 0x{m >> 32:x}
    buffer_load_dword v{ATK}, v{T}, {sq(SX)}, s{PFT} offen
    s_mov_b64 exec, -1''')
    p = 1 if cw else 0
    srd(a, SWS, 18, WS_USED)
    if opt.get('tlb'):
        sh = opt['tlb']
        n1 = -(-(SEG_OFF + 2*H1_OFF) // (16 << sh))
        n2 = -(-X_BYTES // (16 << sh))
        srd(a, SOUT, 14, X_BYTES)
        a(f'''
    s_mul_i32 s{PFT}, s{WID}, {n1}
    v_add_u32 v{T}, s{PFT}, v{LANE}
    v_lshlrev_b32 v{T}, {sh}, v{T}
    s_mul_i32 s{PFT}, s{WID}, {n2}
    v_add_u32 v{T+1}, s{PFT}, v{LANE}
    v_lshlrev_b32 v{T+1}, {sh}, v{T+1}
    s_mov_b64 exec, {(1 << n1) - 1}
    buffer_load_dword v{ATK}, v{T}, {sq(SWS)}, 0 offen
    s_mov_b64 exec, {(1 << n2) - 1}
    buffer_load_dword v{ATK}, v{T+1}, {sq(SOUT)}, 0 offen
    s_mov_b64 exec, -1''')
        p += 2
    if opt.get('pf1'):
        prefetch(opt['pf1'])
        p += 1
    nw = {0: 2, 1: 0, 2: 1, 3: 0, 4: 1}[xw]
    y = (0 if opt.get('epf') else 1) + nw + p
    wdec = 1
    if opt.get('x_xnwait'):
        a('    s_waitcnt vmcnt(0)')
    stamp(1)
    a(f'''
    v_add_u32 v{T}, {L_LIST}, v{T16}
    ds_write_b128 v{T}, {vr(T+4,4)}
    s_cmp_ge_u32 s{WID}, 6
    s_cbranch_scc1 I_b
    ds_write_b128 v{T}, {vr(T+4,4)} offset:16384
I_b:
    v_and_b32 v{LBASE}, 15, v{LANE}
    v_mul_u32_u24 v{LBASE}, {GSTRIDE}, v{LBASE}
    v_add_u32 v{LBASE}, {L_LIST}, v{LBASE}
    v_and_b32 v{CNTA}, 0x7c, v{T4}
    s_cmp_lg_u32 s{WID}, 12
    s_cbranch_scc1 I_done
    v_cmp_gt_u32 vcc, 16, v{LANE}
    s_mov_b32 exec_hi, 0
    s_nop 0
    v_cndmask_b32 v{T+2}, 0, v{LBASE}, vcc
    ds_write_b32 v{CNTA}, v{T+2} offset:{L_BCNT}
    s_mov_b64 exec, 0xff
    v_cvt_f32_u32 v{T+2}, v{LANE}
    v_mul_f32 v{T+3}, v{T+2}, v{T+2}
    v_cvt_pk_bf16_f32 v{T+2}, v{T+3}, v{T+2}
    v_lshlrev_b32 v{T+3}, 4, v{LANE}
    ds_write_b32 v{T+3}, v{T+2} offset:{L_LUT}
    s_mov_b64 exec, -1
I_done:''')
    a(f'''
''')
    G = opt.get('grp', 2)
    lg = G.bit_length() - 1
    BLK = G * HSTRIDE
    a(f'''
    s_lshl_b32 s{X0}, s2, {6+lg}
    s_add_u32 s{X0}, s{X0}, {SEG_OFF}
    s_add_u32 s{X0+1}, s{X0}, {H1_OFF}
    s_lshr_b32 s{SEGB}, s2, {lg}
    s_mul_i32 s{SEGB}, s{SEGB}, {BLK}
    s_and_b32 s{S0}, s2, {G-1}
    s_lshl_b32 s{S0}, s{S0}, 6
    s_add_u32 s{SEGB}, s{SEGB}, s{S0}
    s_add_u32 s{SEGB}, s{SEGB}, {SEG_OFF}
    v_lshrrev_b32 v{T}, 2, v0
    v_and_b32 v{T+1}, 3, v0
    v_mul_u32_u24 v{IMGR}, {ISTRIDE}, v{T}
    v_lshl_add_u32 v{IMGR}, v{T+1}, 2, v{IMGR}
    v_add_u32 v{IMGR}, {L_IMG}, v{IMGR}
    v_lshrrev_b32 v{T+2}, {2+lg}, v0
    v_mul_u32_u24 v{STO}, {BLK}, v{T+2}
    v_and_b32 v{T+2}, {64*G-1}, v{T16}
    v_add_u32 v{STO}, v{STO}, v{T+2}
    v_lshlrev_b32 v{T+1}, 4, v{T+1}
    v_lshl_add_u32 v{PFD}, v{T}, {6+lg}, v{T+1}''')
    pair = 1
    LDV = PFD if pair else T16
    a(f'''
    s_mov_b32 s{SEMPTY}, {EMPTY}
    s_mov_b32 s{KTHR}, {L_IMG}
    s_mov_b32 s{K88}, 0x88888888
    s_mov_b32 s{K88+1}, 0x88888888
    v_bfe_u32 v{T}, v0, 3, 6
    v_and_b32 v{T+1}, 7, v0
    v_bfe_u32 v{T+2}, v{T}, 1, 1
    v_and_or_b32 v{T+2}, v{T}, 8, v{T+2}
    v_bfe_u32 v{T+3}, v{T}, 1, 2
    s_cmp_lt_u32 s{WID}, 8
    s_cselect_b64 {sp(S0)}, -1, 0
    s_mov_b32 s{S1}, {L_WV}
    s_cselect_b32 s{S1}, {L_WQ}, s{S1}
    s_bfe_u32 s{S1+1}, s{WID}, 0x20002
    s_cmp_eq_u32 s{S1+1}, 1
    s_cselect_b32 s{S1+1}, 4096, 0
    s_add_u32 s{S1}, s{S1}, s{S1+1}
    v_cndmask_b32 v{T+2}, v{T+3}, v{T+2}, {sp(S0)}
    v_lshlrev_b32 v{T+1}, 1, v{T+1}
    v_xor_b32 v{T+1}, v{T+1}, v{T+2}
    v_lshlrev_b32 v{T+1}, 3, v{T+1}
    v_lshl_add_u32 v{T+1}, v{T}, 7, v{T+1}
    v_add_u32 v{WSA}, s{S1}, v{T+1}
    v_xor_b32 v{WSA+1}, 8, v{WSA}''')
    xp = opt.get('xp', 0)
    a(f'''
    v_bfrev_b32 v{T+4}, -2''')
    def arank(k):
        if skew:
            a(f'''
    v_add_u32_sdwa v{B4+k}, v{ED+k}, v{ED+k} dst_sel:DWORD dst_unused:UNUSED_PAD src0_sel:BYTE_0 src1_sel:BYTE_1''')
        a(f'''
    v_lshlrev_b32_sdwa v{B4+k}, 2, v{B4+k if skew else ED+k} dst_sel:DWORD dst_unused:UNUSED_PAD src0_sel:DWORD src1_sel:BYTE_0
    ds_add_rtn_u32 v{PS+k}, v{B4+k}, v{FOUR} offset:{L_ACNT}''')
    def aentry(k):
        a(f'''
    v_lshrrev_b32 v{ED+k}, 8, v{ED+k}
    v_lshl_or_b32 v{ES+k}, v{ES+k}, 7, v{ED+k}
    v_mad_u32_u24 v{B4+k}, v{B4+k}, {ISTRIDE//4}, s{KTHR}''')
    def aput(k):
        a(f'''
    v_min_u32 v{PS+k}, {ISTRIDE-4}, v{PS+k}
    v_add_u32 v{PS+k}, v{PS+k}, v{B4+k}
    ds_write_b32 v{PS+k}, v{ES+k}''')
    a(f'    s_waitcnt vmcnt({y+3})')
    stamp(2)
    for k in range(3):
        arank(k)
    a(f'    s_waitcnt vmcnt({y})')
    for k in range(3):
        aentry(k)
    for k in range(3):
        a('    s_waitcnt lgkmcnt(2)')
        aput(k)
    a(f'''
    s_mov_b64 exec, {sp(M3)}
    s_cbranch_execz A_no3b''')
    arank(3)
    aentry(3)
    a('    s_waitcnt lgkmcnt(0)')
    aput(3)
    a(f'''
A_no3b:
    s_mov_b64 exec, -1
    s_waitcnt vmcnt({p + nw})
    v_readfirstlane_b32 s{EPOCH}, v{EPV}''')
    if xw == 3:
        wload()
        xload()
    if opt.get('pfr'):
        prefetch(opt['pfr'])
        p += 1
    a(f'''
    {f'ds_write_b64 v{WSA}, {vr(WD,2)}' if not wdec else ''}
    {f'ds_write_b64 v{WSA+1}, {vr(WD+2,2)}' if not wdec else ''}
    s_add_u32 s{EPOCH}, s{EPOCH}, 1
    s_lshl_b32 s{TAG}, s{EPOCH}, 22
    s_lshl_b32 s{TAG+1}, s{EPOCH}, 12
    s_and_b32 s{TAG+1}, s{TAG+1}, 0xffc00000
    s_lshl_b32 s{TAG+2}, s{EPOCH}, 2
    s_and_b32 s{TAG+2}, s{TAG+2}, 0xffc00000
    s_xor_b32 s{TAG+3}, s{TAG}, 0xffc00000
    s_waitcnt lgkmcnt(0)
    s_barrier''')
    stamp(3)
    a(f'''
    ds_read2_b32 {vr(46,2)}, v{IMGR} offset0:24 offset1:28
    ds_read2_b32 {vr(40,2)}, v{IMGR} offset0:0 offset1:4
    ds_read2_b32 {vr(42,2)}, v{IMGR} offset0:8 offset1:12
    ds_read2_b32 {vr(44,2)}, v{IMGR} offset0:16 offset1:20
    s_waitcnt lgkmcnt(3)
    v_cmp_ne_u32 vcc, s{SEMPTY}, v47
    s_and_b64 {sp(S0)}, vcc, {sp(K88)}
    s_waitcnt lgkmcnt(1)
    s_cbranch_scc1 A_full
A_pub:
    v_cmp_ne_u32 vcc, s{SEMPTY}, v43''')
    for r in range(4):
        a(f'    v_or_b32 v{40+r}, s{TAG+r}, v{40+r}')
    a(f'''
    buffer_store_dwordx4 {vr(40,4)}, v{STO}, {sq(SWS)}, s{X0} offen{sf}
    s_and_b64 {sp(S0)}, vcc, {sp(K88)}''')
    if opt.get('h1o'):
        a(f'''
    s_lshr_b64 {sp(S1)}, {sp(S0)}, 4
    s_or_b64 {sp(S0)}, {sp(S0)}, {sp(S1)}
    s_and_b32 s{S0}, s{S0}, 0x08080808
    s_and_b32 s{S0+1}, s{S0+1}, 0x08080808
    s_lshl_b64 {sp(S1)}, {sp(S0)}, 4
    s_or_b64 {sp(S0)}, {sp(S0)}, {sp(S1)}''')
    a(f'''
    s_wqm_b64 vcc, {sp(S0)}
    s_waitcnt lgkmcnt(0)''')
    for r in range(4):
        a(f'    v_or_b32 v{44+r}, s{TAG+r}, v{44+r}')
    a(f'''
''')
    h1f = opt.get('h1f', 0)
    if h1f:
        a(f'''
    v_and_b32 v{T+5}, 0x30, v{T16}
    v_lshlrev_b32 v{STO}, 1, v{STO}
    v_sub_u32 v{STO}, v{STO}, v{T+5}''')
    a(f'''
    v_cndmask_b32 v{STO}, v{T+4}, v{STO}, vcc
    buffer_store_dwordx4 {vr(44,4)}, v{STO}, {sq(SWS)}, s{X0+1} offen{sf}''')
    if h1f == 2:
        a(f'    buffer_store_dwordx4 {vr(44,4)}, v{STO}, {sq(SWS)}, s{X0+1} offen offset:64{sf}')
        p += 1
    H1V = LDV
    if h1f:
        H1V = PFD
        a(f'''
    v_lshlrev_b32 v{PFD}, 1, v{T16}
    v_sub_u32 v{PFD}, v{PFD}, v{T+5}''')
    if opt.get('pfb'):
        prefetch(opt['pfb'])
        p += 1
    stamp(4)
    if xw == 1:
        wload()
    if xw in (1, 2):
        xload()
    def wstage(n):
        a(f'''
    s_waitcnt vmcnt({n})
    ds_write_b64 v{WSA}, {vr(WD,2)}
    ds_write_b64 v{WSA+1}, {vr(WD+2,2)}''')
    if xw in (0, 2):
        wstage(p + 3)
    if xw == 4:
        wstage(p + 2)
    WQA, XNA = 88, 92
    a(f"""
    v_lshrrev_b32 v{T+5}, 4, v{LANE}        ; g
    v_bfe_u32 v{T+1}, v{LANE}, 2, 2
    v_lshl_add_u32 v{T+2}, v{T+5}, 3, v{T+1}
    v_bfe_u32 v{T+3}, v{T+2}, 1, 1
    v_and_or_b32 v{T+3}, v{T+2}, 8, v{T+3}
    v_and_b32 v{T+4}, 3, v{LANE}            ; c
    v_lshlrev_b32 v{T+6}, 1, v{T+4}
    v_xor_b32 v{T+3}, v{T+3}, v{T+6}
    v_lshlrev_b32 v{T+3}, 3, v{T+3}
    v_lshl_add_u32 v{T}, v{T+2}, 7, v{T+3}
    v_add_u32 v{WQA}, {L_WQ}, v{T}
    v_xor_b32 v{WQA+1}, 8, v{WQA}
    v_xor_b32 v{WQA+2}, 64, v{WQA}
    v_xor_b32 v{WQA+3}, 0x48, v{WQA}
    v_and_b32 v{T+7}, 7, v{LANE}
    v_xor_b32 v{T}, v{T+5}, v{T+7}
    v_lshlrev_b32 v{T}, 4, v{T}
    v_lshl_add_u32 v{T}, v{T+7}, 7, v{T}
    s_lshl_b32 s{X0}, s{WID}, {13 if xw == 4 else 10}
    s_add_u32 s{X0}, s{X0}, {L_RING + 7168 if xw == 4 else L_XN}
    v_add_u32 v{XNA}, s{X0}, v{T}
    v_xor_b32 v{XNA+1}, 64, v{XNA}""")
    srd(a, SOUT, 14, X_BYTES)
    srd(a, SSRC, 6, E*4)
    srd(a, SDST, 8, E*4)
    a(f"""
    s_add_u32 s{H1SO}, s{SEGB}, {H1_OFF}
    {f's_mul_i32 s{H1SO}, s2, {2*HSTRIDE}' if h1f else ''}
    {f's_add_u32 s{H1SO}, s{H1SO}, {SEG_OFF+H1_OFF}' if h1f else ''}
    s_mov_b32 s{AMASK}, 0x003fff80
    s_lshl_b32 s{RING}, s{WID}, 13
    s_add_u32 s{RING}, s{RING}, {L_RING}
    s_mov_b32 s{MODE}, 0
    s_mov_b32 s{GAVE}, 0
    s_mov_b32 s{LOM}, 0x00ff00ff
    s_mov_b32 s{LOM+1}, 0x00ff00ff
    v_and_b32 v{T+1}, 15, v{LANE}           ; i
    v_lshrrev_b32 v{T}, 3, v{LANE}
    v_and_b32 v{T+6}, 6, v{T}
    v_xor_b32 v{T+6}, v{T+6}, v{T+7}
    v_lshlrev_b32 v{CHK}, 4, v{T+6}
    s_mul_i32 s{X0}, s{WID}, {GSTRIDE}
    s_add_u32 s{X0}, s{X0}, {L_LIST}
    v_lshl_add_u32 v{EA0}, v{T}, 4, s{X0}
    v_bfe_u32 v{T+6}, v{LANE}, 3, 2
    v_lshl_add_u32 v{T+6}, v{T+7}, 2, v{T+6}
    v_lshl_add_u32 v{MAD0}, v{T+6}, 2, s{X0}
    v_and_b32 v{T+6}, 6, v{T+1}
    v_xor_b32 v{T+6}, v{T+6}, v{T+5}
    v_lshlrev_b32 v{T+6}, 4, v{T+6}
    v_lshl_add_u32 v{T+6}, v{T+1}, 7, v{T+6}
    v_add_u32 v{RA0}, s{RING}, v{T+6}
    v_xor_b32 v{RA1}, 64, v{RA0}
    v_lshrrev_b32 v{T+6}, 2, v{LANE}        ; row = 4g+r
    v_and_b32 v{T+1}, 6, v{T+6}
    v_bfe_u32 v{T+5}, v{LANE}, 1, 1
    v_xor_b32 v{T+1}, v{T+1}, v{T+5}
    v_lshlrev_b32 v{T+1}, 4, v{T+1}
    v_lshl_add_u32 v{T+1}, v{T+6}, 7, v{T+1}
    v_and_b32 v{T+5}, 1, v{LANE}
    v_lshl_add_u32 v{T+1}, v{T+5}, 3, v{T+1}
    v_add_u32 v{RT}, s{RING}, v{T+1}
    v_xor_b32 v{RT+1}, 32, v{RT}
    v_xor_b32 v{RT+2}, 64, v{RT}
    v_xor_b32 v{RT+3}, 0x60, v{RT}
    v_bfe_u32 v{T+5}, v{T+6}, 1, 2
    v_lshl_or_b32 v{T+5}, v{T+4}, 2, v{T+5}
    v_lshlrev_b32 v{T+5}, 3, v{T+5}
    v_lshl_add_u32 v{WVA}, v{T+6}, 7, v{T+5}
    v_lshrrev_b32 v{T+5}, 3, v{LANE}
    v_and_b32 v{T+5}, 6, v{T+5}
    v_xor_b32 v{T+5}, v{T+5}, v{T+7}
    v_lshlrev_b32 v{T+5}, 4, v{T+5}
    v_lshl_add_u32 v{T+5}, v{T+7}, 7, v{T+5}
    v_add_u32 v{EPV}, s{RING}, v{T+5}
    v_mov_b32 v{MA+1}, 0x00003f80
    v_mov_b32 v{MA+2}, 0
    v_mov_b32 v{MA+3}, 0
    v_mov_b32 v{MB}, 0
    v_mov_b32 v{MB+1}, 0
    v_mov_b32 v{MB+2}, 0
    v_mov_b32 v{MB+3}, 0
    v_cvt_f32_u32 v{T+5}, v{T+7}            ; j' = l&7
    v_mov_b32 v{T+6}, 0x71800000            ; BIG = 2^100
    v_mul_f32 v{T+7}, v{T+5}, v{T+6}
    v_mul_f32 v{T+5}, v{T+5}, v{T+7}
    v_mul_f32 v{T+7}, -2.0, v{T+7}
    s_mov_b32 exec_lo, 0xff0000ff
    s_mov_b32 exec_hi, 0
    v_cvt_pk_bf16_f32 v{MB}, v{T+6}, v{T+7}
    v_cvt_pk_bf16_f32 v{MB+1}, v{T+5}, 0
    s_mov_b64 exec, -1""")
    if xw != 4:
        for r in range(16):
            a(f'    v_mov_b32 v{ACC+r}, 0')
    for r in range(8):
        a(f'    v_mov_b32 v{QLO+r}, 0')
    for r in range(4, 8):
        a(f'    v_mov_b32 v{EN+r}, {EMPTY}')
    a(f"""
    s_mov_b32 s{POLLN}, 0
    s_mov_b32 s{KTHR}, 0x400000
    s_mov_b32 s{KFULL}, {FULLM}
    s_mov_b64 {sp(S0)}, -1
    s_mov_b64 {sp(S1)}, 0
""")
    if xw in (1, 3):
        wstage(1 if xw == 1 else 3)
    a(f"""
    s_waitcnt vmcnt(0) lgkmcnt(0)
    s_barrier
    buffer_load_dwordx4 {vr(EN,4)}, v{LDV}, {sq(SWS)}, s{SEGB} offen{lf}
    ; ---- Q' = (own rows @ w_q) * (-log2e/8) in B-operand layout; columns 8..15 zero""")
    def xnlate():
        a(f"""
    s_add_u32 m0, s{RING}, 7168
    s_nop 0
    buffer_load_dwordx4 v{ROWOFF}, {sq(SX)}, 0 offen lds""")
    if xp == 1:
        xnlate()
    dreg = [QHI, QHI+4, S, S+4]
    wq = [ACC, ACC+8, XT, XT+8] if xw == 4 else [XA, XA+8, XA+16, XA+24]
    def xnread():
        a(f"""
    s_mov_b64 exec, {sp(LOM)}
    ds_read_b128 {vr(QLO,4)}, v{XNA}
    ds_read_b128 {vr(QLO+4,4)}, v{XNA+1}
    s_mov_b64 exec, -1""")
    def qmfma(blk):
        a(f'    v_mfma_f32_16x16x32_bf16 {vr(dreg[blk],4)}, {vr(wq[blk],4)}, {vr(QLO,4)}, 0')
        a(f'    v_mfma_f32_16x16x32_bf16 {vr(dreg[blk],4)}, {vr(wq[blk]+4,4)}, {vr(QLO+4,4)}, {vr(dreg[blk],4)}')
    if xw != 4:
        xnread()
    for blk in range(4):
        for ks in range(2):
            for h in range(2):
                a(f'    ds_read_b64_tr_b16 {vr(wq[blk]+ks*4+h*2,2)}, v{WQA+blk} offset:{8192*ks + 512*h}')
        if blk == 2:
            a('    s_waitcnt lgkmcnt(8)')
    if xw != 4:
        for blk in range(4):
            a(f'    s_waitcnt lgkmcnt({min(8, 12-4*blk) if blk else 12})')
            qmfma(blk)
    def qlate():
        for blk in range(4):
            qmfma(blk)
        for r in range(16):
            a(f'    v_mov_b32 v{ACC+r}, 0')
    def qfinish():
        a(f'    s_mov_b32 s{X0}, 0x{f32bits(-1.4426950408889634/8):08x}')
        a(f'    s_mov_b32 s{X0+1}, s{X0}')
        a('    s_nop 1')
        for blk in range(4):
            a(f'    v_pk_mul_f32 {vr(dreg[blk],2)}, {vr(dreg[blk],2)}, {sp(X0)}')
            a(f'    v_pk_mul_f32 {vr(dreg[blk]+2,2)}, {vr(dreg[blk]+2,2)}, {sp(X0)}')
        for blk in range(4):
            a(f'    v_cvt_pk_bf16_f32 v{QLO+2*blk}, v{dreg[blk]}, v{dreg[blk]+1}')
            a(f'    v_cvt_pk_bf16_f32 v{QLO+2*blk+1}, v{dreg[blk]+2}, v{dreg[blk]+3}')
        for r in range(8):
            a(f'    v_mov_b32_dpp v{QHI+r}, v{QLO+r} row_ror:8 row_mask:0xf bank_mask:0xf')
    qdef = opt.get('qdef', 0)
    if not qdef:
        qfinish()
    stamp(5)
    def check(h, dst):
        for r in range(4):
            a(f'    v_xor_b32 v{EN+4*h+r}, s{TAG+r}, v{EN+4*h+r}')
        a(f'''
    v_or3_b32 v{T}, v{EN+4*h}, v{EN+4*h+1}, v{EN+4*h+2}
    v_or_b32 v{T}, v{T}, v{EN+4*h+3}
    v_cmp_le_u32 {dst}, s{KTHR}, v{T}''')
    def brank(r, base, skip=None):
        m = VM + 2*r
        a(f'''
    v_cmp_ne_u32 {sp(m)}, s{SEMPTY}, v{EN+r}
    v_and_b32 v{G4+r}, 15, v{EN+r}
    v_lshlrev_b32 v{G4+r}, 2, v{G4+r}
    s_mov_b64 exec, {sp(m)}''')
        if skip:
            a(f'    s_cbranch_execz {skip}')
        a(f'''
    ds_add_rtn_u32 v{RK+r}, v{G4+r}, v{FOUR} offset:{L_BCNT}
    s_mov_b64 exec, {base}''')
    def bput(r):
        a(f'''
    s_mov_b64 exec, {sp(VM+2*r)}
    ds_write_b32 v{RK+r}, v{EN+r}''')
    rare = []
    def rankwords(ws):
        for r in ws:
            brank(r, sp(FR))
        for r in ws:
            a(f'    s_waitcnt lgkmcnt({len(ws)-1})')
            bput(r)
    def sort_rest():
        a(f'''
    v_min3_u32 v{T}, v{EN+1}, v{EN+2}, v{EN+3}
    v_med3_u32 v{T+1}, v{EN+1}, v{EN+2}, v{EN+3}
    v_max3_u32 v{EN+3}, v{EN+1}, v{EN+2}, v{EN+3}
    v_mov_b32 v{EN+1}, v{T}
    v_mov_b32 v{EN+2}, v{T+1}''')
    band = opt.get('band', 0)
    B1 = 64
    sw = opt.get('sw', 4)
    def absorb0(tag, nw=4):
        check(0, 'vcc')
        a(f'''
    s_wqm_b64 vcc, vcc
    s_andn2_b64 {sp(FR)}, {sp(S0)}, vcc
    s_mov_b64 {sp(S0)}, vcc
    s_mov_b64 exec, vcc
    s_cbranch_execz Z_nr{tag}
    s_add_u32 s{POLLN}, s{POLLN}, 1
    s_cmp_gt_u32 s{POLLN}, {opt.get('pollmax', 2000)}
    s_cbranch_scc1 Z_give{tag}
    buffer_load_dwordx4 {vr(EN,4)}, v{LDV}, {sq(SWS)}, s{SEGB} offen{lf}
Z_nr{tag}:
    s_mov_b64 exec, {sp(FR)}
    s_cbranch_execz Z_done{tag}
    v_cmp_ne_u32 {sp(N1)}, s{SEMPTY}, v{EN+3}
    v_cmp_eq_u32 vcc, s{KFULL}, v{EN}
    s_and_b64 {sp(N1)}, {sp(N1)}, {sp(K88)}
    s_wqm_b64 exec, {sp(N1)}
    {'s_mov_b64 exec, 0' if opt.get('x_noh1') else ''}
    s_cbranch_execz Z_nh{tag}
    s_or_b64 {sp(S1)}, {sp(S1)}, exec
    buffer_load_dwordx4 {vr(EN+4,4)}, v{H1V}, {sq(SWS)}, s{H1SO} offen{lf}
Z_nh{tag}:
    s_cbranch_vccnz Z_full{tag}
Z_rank{tag}:
    s_mov_b64 exec, {sp(FR)}''')
        if opt.get('srt') and tag == 'a':
            a(f'''
    v_min_u32 v{T}, v{EN}, v{EN+1}
    v_max_u32 v{EN+1}, v{EN}, v{EN+1}
    v_min_u32 v{T+1}, v{EN+2}, v{EN+3}
    v_max_u32 v{EN+3}, v{EN+2}, v{EN+3}
    v_min_u32 v{EN}, v{T}, v{T+1}
    v_max_u32 v{EN+2}, v{T}, v{T+1}''')
            if opt['srt'] == 2 and nw > 1:
                sort_rest()
        if band and tag == 'a':
            sort_rest()
            a(f'    s_mov_b32 s{X0}, {band << 7}')
            for r in range(2):
                a(f'''
    v_cmp_gt_u32 {sp(B1+2*r)}, s{X0}, v{EN+r}
    v_and_b32 v{G4+r}, 15, v{EN+r}
    v_lshlrev_b32 v{G4+r}, 2, v{G4+r}
    s_mov_b64 exec, {sp(B1+2*r)}
    ds_add_rtn_u32 v{RK+r}, v{G4+r}, v{FOUR} offset:{L_BCNT}
    s_mov_b64 exec, {sp(FR)}''')
            for r in range(2):
                a(f'''
    s_waitcnt lgkmcnt(1)
    s_mov_b64 exec, {sp(B1+2*r)}
    ds_write_b32 v{RK+r}, v{EN+r}''')
        else:
            rankwords(list(range(nw)))
        a(f'Z_done{tag}:')
        rare.append(tag)
    def absorb1():
        check(1, 'vcc')
        a(f'''
    s_andn2_b64 {sp(FR)}, {sp(S1)}, vcc
    s_mov_b64 {sp(S1)}, vcc
    s_mov_b64 exec, vcc
    s_cbranch_execz Y_nr
    s_add_u32 s{POLLN}, s{POLLN}, 1
    s_cmp_gt_u32 s{POLLN}, 1000000
    s_cbranch_scc1 Y_lost
    buffer_load_dwordx4 {vr(EN+4,4)}, v{H1V}, {sq(SWS)}, s{H1SO} offen{lf}
Y_nr:
    s_mov_b64 exec, {sp(FR)}''')
        for r in range(4, 8):
            brank(r, sp(FR), 'Y_done')
            a('    s_waitcnt lgkmcnt(0)')
            bput(r)
            a(f'    s_mov_b64 exec, {sp(FR)}')
        a('Y_done:')
    def dma(ereg, slot, qs=range(4)):
        for q in qs:
            if q == 3 and len(qs) == 1:
                a(f'    s_add_u32 m0, s{RING}, {4096*slot + 3072}')
            elif q == 0:
                a(f'    s_mov_b32 m0, s{RING}' if slot == 0 else f'    s_add_u32 m0, s{RING}, 4096')
            else:
                a('    s_add_u32 m0, m0, 1024')
            a(f'    v_and_or_b32 v{ereg+q}, v{ereg+q}, s{AMASK}, v{CHK}')
            a(f'    buffer_load_dwordx4 v{ereg+q}, {sq(SX)}, 0 offen{gf} lds')
    def complete(reg, no):
        a(f"""
    v_max3_u32 v{T}, v{reg}, v{reg+1}, v{reg+2}
    v_max_u32 v{T}, v{T}, v{reg+3}
    v_cmp_eq_u32 vcc, s{SEMPTY}, v{T}
    s_cbranch_vccnz {no}""")
    a(f"""
    s_mov_b32 s{ISSUED}, 0
    v_mov_b32 v{EA}, v{EA0}
    v_mov_b32 v{MAD}, v{MAD0}
    s_waitcnt vmcnt({1 if xp == 1 else 0})""")
    stamp(6)
    a('    s_setprio 3')
    absorb0('a', sw)
    settle = f"""
    s_or_b64 exec, {sp(S0)}, {sp(S1)}
    s_cselect_b32 s{OWNP}, 1, 0
    s_cbranch_execnz G_pend
    s_mov_b64 exec, 1
    ds_add_u32 v{ZERO}, v{FOUR} offset:{L_DONE}
G_pend:
    s_mov_b64 exec, -1
    s_waitcnt lgkmcnt(0)"""
    if xp == 2:
        a('    s_mov_b64 exec, -1')
        xnlate()
    if sw == 4:
        a(settle)
    else:
        a(f"""
    s_mov_b32 s{OWNP}, 2
    s_mov_b64 exec, -1
    s_waitcnt lgkmcnt(0)""")
    a('    s_barrier')
    stamp(7)
    if xw == 4 and not xp:
        xnlate()
    if opt.get('hw', 16) < 16:
        a(f"""
    s_cmp_lt_u32 s{WID}, {opt['hw']}
    s_cbranch_scc1 G_more""")
        if sw < 4:
            a(f'    s_call_b64 {sp(LINK)}, L_s2')
        if opt.get('hw2', 0):
            a(f"""
    s_cmp_lt_u32 s{WID}, {opt['hw2']}
    s_cbranch_scc1 G_more""")
        a(f"""
    s_cmp_eq_u32 s{OWNP}, 0
    s_cbranch_scc1 G_more
    s_waitcnt vmcnt({1 if xw == 4 and xp != 1 else 0})
    s_call_b64 {sp(LINK)}, L_late""")
    a(f"""
G_more:
    ds_read_b32 v{T+1}, v{ZERO} offset:{L_DONE}
    ds_read_b128 {vr(EE,4)}, v{EA0}
    ds_read_b128 {vr(T+4,4)}, v{EA0} offset:128
    s_cmp_eq_u32 s{ISSUED}, 1
    s_waitcnt lgkmcnt(0)
    s_cbranch_scc1 G_m1""")
    complete(EE, 'G_short')
    dma(EE, 0)
    a(f"""
    s_mov_b32 s{ISSUED}, 1
G_m1:""")
    complete(T+4, 'G_short')
    dma(T+4, 1, range(3) if xw == 4 else range(4))
    a(f"""
    s_mov_b32 s{ISSUED}, 2""")
    if sw < 4:
        a(f"""
    s_cmp_lg_u32 s{OWNP}, 2
    s_cbranch_scc1 G_q
    s_call_b64 {sp(LINK)}, L_s2""")
    a('G_q:')
    if xw == 4:
        a('    s_waitcnt vmcnt(7)')
        xnread()
        a('    s_waitcnt lgkmcnt(0)')
        dma(T+4, 1, [3])
        qlate()
    a(f"""
G_go:
    s_setprio {opt.get('p0', 2)}""")
    if qdef:
        qfinish()
    a(f"""
    s_mov_b32 s{NT}, {opt.get('pb', 4)}
    s_mov_b32 s{NTI}, 0
B_go:
    ds_read_b32 v{M0R}, v{MAD}
    ds_read_b128 {vr(EE,4)}, v{EA} offset:256
    s_mov_b32 s{TT}, 1                      ; t+1
    s_waitcnt lgkmcnt(1)
    v_and_b32 v{M0R}, 0x70, v{M0R}""")
    stamp(8)
    a('B_loop:')
    pk = opt.get('pk', 0)
    th = opt.get('th', 242)
    th = (th // 100, th // 10 % 10, th % 10)
    def body(slot):
        so = slot * 4096
        mcur, mnext = (M0R, M1R) if slot == 0 else (M1R, M0R)
        eo = slot * 128
        pm = opt.get('prio', 1)
        if pm == 1 and slot == 0:
            a(f"""
    s_cmp_lt_u32 s{TT}, {th[0]}
    s_cbranch_scc1 B_p{slot}
    s_setprio 1
    s_cmp_lt_u32 s{TT}, 4
    s_cbranch_scc1 B_p{slot}
    s_sub_u32 s{X0}, s{NT}, s{TT}
    s_cmp_ge_u32 s{X0}, {th[2]}
    s_cbranch_scc1 B_p{slot}
    s_setprio 0
B_p{slot}:""")
        if pm == 3 and slot == 0:
            a(f"""
    s_cmp_lt_u32 s{TT}, {th[0]}
    s_cbranch_scc1 B_p{slot}
    s_setprio 1
    s_cmp_lt_u32 s{TT}, {th[1]}
    s_cbranch_scc1 B_p{slot}
    s_setprio 0
B_p{slot}:""")
        if pm == 4:
            a(f"""
    s_cmp_eq_u32 s{NTI}, 0
    s_cbranch_scc1 B_p{slot}
    s_sub_u32 s{X0}, s{NT}, s{TT}
    s_setprio 2
    s_cmp_ge_u32 s{X0}, {th[1]}
    s_cbranch_scc1 B_p{slot}
    s_setprio 1
    s_cmp_ge_u32 s{X0}, {th[2]}
    s_cbranch_scc1 B_p{slot}
    s_setprio 0
B_p{slot}:""")
        if pm == 2:
            a(f"""
    s_cmp_lt_u32 s{TT}, 4
    s_cbranch_scc1 B_q{slot}
    s_sub_u32 s{X0}, s{NT}, s{TT}
    s_setprio 3
    s_cmp_ge_u32 s{X0}, 3
    s_cbranch_scc1 B_p{slot}
    s_setprio 2
    s_cmp_ge_u32 s{X0}, 2
    s_cbranch_scc1 B_p{slot}
B_q{slot}:
    s_setprio 1
B_p{slot}:""")
        a(f'''
    ds_read_b32 v{MA}, v{mcur} offset:{L_LUT}
    ds_read_b32 v{mnext}, v{MAD} offset:{eo+128}
    s_cmp_lt_u32 s{TT}, s{NT}
    s_cbranch_scc1 B_w4_{slot}
    s_waitcnt vmcnt(0)
B_w4_{slot}:
    s_cmp_lg_u32 s{OWNP}, 0
    s_waitcnt vmcnt(4)
    s_cbranch_scc0 B_rd_{slot}
    s_call_b64 {sp(LINK)}, L_late
B_rd_{slot}:''')
        if opt.get('tprof'):
            a(f'''
    s_memrealtime s[98:99]
    s_min_u32 s100, s{TT}, 10
    s_waitcnt lgkmcnt(0)
    s_mov_b32 m0, s100
    v_writelane_b32 v{ATK}, s98, m0''')
        a(f'''
    ds_read_b128 {vr(XA,4)}, v{RA0} offset:{so}
    ds_read_b128 {vr(XA+4,4)}, v{RA1} offset:{so}
    ds_read_b128 {vr(XA+8,4)}, v{RA0} offset:{so+2048}
    ds_read_b128 {vr(XA+12,4)}, v{RA1} offset:{so+2048}''')
        for fb in range(4):
            a(f'    ds_read_b64_tr_b16 {vr(XT+4*fb,2)}, v{RT+fb} offset:{so}')
            a(f'    ds_read_b64_tr_b16 {vr(XT+4*fb+2,2)}, v{RT+fb} offset:{so+2048}')
        a(f'''
    s_add_u32 s{TT}, s{TT}, 1               ; t+2
    s_waitcnt lgkmcnt(12)
    {f'v_mfma_f32_16x16x16_bf16 {vr(S,4)}, {vr(MA,2)}, {vr(MB,2)}, 0' if opt.get('m16') else f'v_mfma_f32_16x16x32_bf16 {vr(S,4)}, {vr(MA,4)}, {vr(MB,4)}, 0'}
    v_and_b32 v{mnext}, 0x70, v{mnext}
    s_waitcnt lgkmcnt(11)
    v_mfma_f32_16x16x32_bf16 {vr(S,4)}, {vr(XA,4)}, {vr(QLO,4)}, {vr(S,4)}
    s_waitcnt lgkmcnt(10)
    v_mfma_f32_16x16x32_bf16 {vr(S,4)}, {vr(XA+4,4)}, {vr(QLO+4,4)}, {vr(S,4)}
    s_waitcnt lgkmcnt(9)
    v_mfma_f32_16x16x32_bf16 {vr(S,4)}, {vr(XA+8,4)}, {vr(QHI,4)}, {vr(S,4)}
    s_waitcnt lgkmcnt(8)
    v_mfma_f32_16x16x32_bf16 {vr(S,4)}, {vr(XA+12,4)}, {vr(QHI+4,4)}, {vr(S,4)}
    s_waitcnt lgkmcnt(0)
    s_cmp_lt_u32 s{TT}, s{NTI}
    s_cbranch_scc0 B_skip_{slot}
B_dma_{slot}:''')
        dma(EE, slot)
        a(f'''
    ds_read_b128 {vr(EE,4)}, v{EA} offset:{eo+384}
B_cont_{slot}:''')
        for r in range(4):
            a(f'    v_exp_f32 v{S+r}, v{S+r}')
        if slot == 1:
            a(f'    v_add_u32 v{EA}, 256, v{EA}')
            a(f'    v_add_u32 v{MAD}, 256, v{MAD}')
        if pk:
            a(f'    v_pk_add_f32 {vr(S,2)}, {vr(S,2)}, 1.0 op_sel_hi:[1,0]')
            a(f'    v_pk_add_f32 {vr(S+2,2)}, {vr(S+2,2)}, 1.0 op_sel_hi:[1,0]')
        else:
            for r in range(4):
                a(f'    v_add_f32 v{S+r}, 1.0, v{S+r}')
        for r in range(4):
            a(f'    v_rcp_f32 v{S+r}, v{S+r}')
        a(f'''
    v_cvt_pk_bf16_f32 v{PP}, v{S}, v{S+1}
    s_cmp_gt_u32 s{TT}, s{NT}
    v_cvt_pk_bf16_f32 v{PP+1}, v{S+2}, v{S+3}
    s_nop 0
    v_mov_b32_dpp v{PP+2}, v{PP} row_ror:8 row_mask:0xf bank_mask:0xf
    v_mov_b32_dpp v{PP+3}, v{PP+1} row_ror:8 row_mask:0xf bank_mask:0xf
    s_nop 1''')
        for fb in range(4):
            a(f'    v_mfma_f32_16x16x32_bf16 {vr(ACC+4*fb,4)}, {vr(XT+4*fb,4)}, {vr(PP,4)}, {vr(ACC+4*fb,4)}')
        a('    s_cbranch_scc1 B_loopdone' if slot == 0 else '    s_cbranch_scc0 B_loop')
    n0 = len(a.lines)
    body(0)
    body(1)
    drop = []
    if opt.get('x_nords'): drop += ['ds_read_b128 v[4', 'ds_read_b128 v[5', 'ds_read_b64_tr']
    if opt.get('x_nomfma'): drop += ['v_mfma']
    if opt.get('x_novalu'): drop += ['v_exp', 'v_rcp', 'v_add_f32', 'v_cvt', 'v_mov_b32_dpp', 'v_pk_add']
    if opt.get('bench'): drop += [f'v_add_u32 v{EA}, 256', f'v_add_u32 v{MAD}, 256']
    a.lines[n0:] = [l for l in a.lines[n0:] if not any(l.strip().startswith(d) for d in drop)]
    a(f'''
B_loopdone:
    s_cmp_lg_u32 s{MODE}, 0
    s_cbranch_scc1 C_next
B_epi:''')
    if opt.get('epi3'):
        a('    s_setprio 3')
    stamp(9)
    epi = opt.get('epi', 1)
    wve = opt.get('wve', 0)
    wv = [XA, XA+8, QLO, QHI]
    DO = XT
    def wvread(blks):
        for blk in blks:
            ad = WVA if blk == 0 else T+blk
            for ks in range(2):
                for h in range(2):
                    a(f'    ds_read_b64_tr_b16 {vr(wv[blk]+ks*4+h*2,2)}, v{ad} offset:{L_WV+(32*ks+16*h)*128}')
    def wvfirst():
        a(f"""
    v_xor_b32 v{T+1}, 8, v{WVA}
    v_xor_b32 v{T+2}, 16, v{WVA}
    v_xor_b32 v{T+3}, 24, v{WVA}""")
        wvread([0, 1, 2])
    if wve:
        a(f"""
    s_cmp_lg_u32 s{ISSUED}, 3
    s_cbranch_scc0 E_have""")
    wvfirst()
    a('E_have:')
    a('    s_waitcnt lgkmcnt(8)')
    wvread([3])
    if epi:
        a(f"""
    v_xor_b32 v{T+6}, 16, v{EPV}
    v_lshl_add_u32 v{T+5}, v{LANE}, 4, s{RING}""")
    else:
        a(f"""
    v_and_b32 v{T+4}, 7, v{LANE}
    v_lshlrev_b32 v{T+4}, 19, v{T+4}
    v_lshrrev_b32 v{T+5}, 4, v{LANE}
    v_lshl_add_u32 v{T+4}, v{T+5}, 5, v{T+4}
    s_lshl_b32 s{X0}, s{WID}, 15
    s_lshl_b32 s{X0+1}, s2, 7
    s_add_u32 s{PFT}, s{X0}, s{X0+1}""")
    for r in range(8):
        a(f'    v_cvt_pk_bf16_f32 v{S+r}, v{ACC+2*r}, v{ACC+2*r+1}')
    a('    s_nop 0')
    for blk in range(4):
        a(f'    s_waitcnt lgkmcnt({min(8, 12-4*blk)})')
        a(f'    v_mfma_f32_16x16x32_bf16 {vr(DO+4*blk,4)}, {vr(wv[blk],4)}, {vr(S,4)}, 0')
        a(f'    v_mfma_f32_16x16x32_bf16 {vr(DO+4*blk,4)}, {vr(wv[blk]+4,4)}, {vr(S+4,4)}, {vr(DO+4*blk,4)}')
    a(f'''
    s_cmp_lg_u32 s{WID}, 15
    s_cbranch_scc1 K_no2
    s_mov_b64 exec, 1
    s_cmp_lg_u32 s{GAVE}, 0
    s_cbranch_scc1 K_ticket
K_adv:
    v_mov_b32 v{T}, s{EPOCH}
    global_store_dword v{ZERO}, v{T}, s[18:19]
K_skip:
    s_mov_b64 exec, -1
K_no2:
    s_nop 2''')
    for r in range(4):
        a(f'    v_cvt_pk_bf16_f32 v{XA+r}, v{DO+2*r}, v{DO+2*r+1}')
    a(f'    s_mov_b64 exec, {sp(LOM)}')
    if epi:
        a(f'    ds_write_b128 v{EPV}, {vr(XA,4)}')
    else:
        a(f'    buffer_store_dwordx4 {vr(XA,4)}, v{T+4}, {sq(SOUT)}, s{PFT} offen{of}')
    for r in range(4, 8):
        a(f'    v_cvt_pk_bf16_f32 v{XA+r}, v{DO+2*r}, v{DO+2*r+1}')
    if epi:
        a(f'''
    ds_write_b128 v{T+6}, {vr(XA+4,4)}
    s_mov_b64 exec, -1
    ds_read_b128 {vr(XA+8,4)}, v{T+5}
    s_waitcnt lgkmcnt(0)
    buffer_store_dwordx4 {vr(XA+8,4)}, v{ROWOFF}, {sq(SOUT)}, 0 offen{of}''')
    else:
        a(f'''
    buffer_store_dwordx4 {vr(XA+4,4)}, v{T+4}, {sq(SOUT)}, s{PFT} offen offset:16{of}
    s_mov_b64 exec, -1''')
    if st:
        stamp(10)
        a('    s_waitcnt vmcnt(0)')
        stamp(11)
        if opt.get('tprof'):
            a(f'''
    s_mov_b64 exec, 0x7fe
    v_mov_b32 v{STV}, v{ATK}
    s_mov_b64 exec, -1''')
        a(f'''
    s_add_u32 s{X0}, s18, {STAMP_OFF}
    s_addc_u32 s{X0+1}, s19, 0
    s_lshl_b32 s{X0+2}, s2, 4
    s_add_u32 s{X0+2}, s{X0+2}, s{WID}
    s_lshl_b32 s{X0+2}, s{X0+2}, 6
    v_lshl_add_u32 v{T}, v{LANE}, 2, s{X0+2}
    s_mov_b64 exec, 0xffff
    global_store_dword v{T}, v{STV}, {sp(X0)}''')
        if 'amp' in opt:
            a(f'''
    v_readlane_b32 s60, v{STV}, 0
    v_readlane_b32 s61, v{STV}, {opt['amp']}
    v_readlane_b32 s62, v{STV}, 11
    s_sub_u32 s61, s61, s60
    s_mul_i32 s61, s61, {opt.get('ampk', 2)}
    s_min_u32 s61, s61, 20000
D_spin:
    s_memrealtime s[98:99]
    s_waitcnt lgkmcnt(0)
    s_sub_u32 s98, s98, s62
    s_cmp_lt_u32 s98, s61
    s_cbranch_scc1 D_spin''')
    a(f'''
L_end:
    s_endpgm
''')
    for slot in range(2):
        a(f'''
B_skip_{slot}:
    s_cmp_lg_u32 s{NTI}, 0
    s_cbranch_scc1 B_idle_{slot}
    s_mov_b32 s{RET}, {slot}
    s_cmp_ge_u32 s{TT}, {opt.get('pb', 4)}
    s_cbranch_scc1 F_final''')
        complete(EE, f'B_again_{slot}')
        a(f'''
    s_branch B_dma_{slot}
B_again_{slot}:
    ds_read_b128 {vr(EE,4)}, v{EA} offset:{slot*128+256}
    s_waitcnt lgkmcnt(0)''')
        complete(EE, 'F_final')
        a(f'''
    s_branch B_dma_{slot}
F_ret_{slot}:
    ds_read_b128 {vr(EE,4)}, v{EA} offset:{slot*128+256}
    s_waitcnt lgkmcnt(0)
    s_cmp_lt_u32 s{TT}, s{NT}
    s_cbranch_scc1 B_dma_{slot}
B_idle_{slot}:''')
        if wve:
            a(f'''
    s_cmp_le_u32 s{TT}, s{NT}
    s_cbranch_scc1 B_id2_{slot}
    s_cmp_lg_u32 s{MODE}, 0
    s_cbranch_scc1 B_id2_{slot}
    s_mov_b32 s{ISSUED}, 3''')
            wvfirst()
            a(f'    s_branch B_cont_{slot}')
            a(f'B_id2_{slot}:')
        a(f'''
    s_nop 7
    s_branch B_cont_{slot}''')
    a(f"""
L_late:
    s_mov_b64 exec, {sp(S1)}
    s_cbranch_execz Y_done""")
    absorb1()
    a(f"""
    s_mov_b64 exec, {sp(S0)}
    s_cbranch_execz Z_doneb""")
    absorb0('b')
    a(f"""
    s_or_b64 exec, {sp(S0)}, {sp(S1)}
    s_cbranch_execnz L_ret
    s_mov_b32 s{OWNP}, 0
    s_mov_b64 exec, 1
    ds_add_u32 v{ZERO}, v{FOUR} offset:{L_DONE}""")
    if st:
        a(f'    v_writelane_b32 v{STV}, s{POLLN}, 15')
        a('    s_memrealtime s[98:99]')
        a('    s_waitcnt lgkmcnt(0)')
        a(f'    v_writelane_b32 v{STV}, s98, 7')
    a(f"""
L_ret:
    s_mov_b64 exec, -1
    s_waitcnt lgkmcnt(0)
    s_setpc_b64 {sp(LINK)}
G_short:
    v_readfirstlane_b32 s{X0}, v{T+1}
    s_cmp_eq_u32 s{OWNP}, 0
    s_cbranch_scc1 G_s2""")
    if sw < 4:
        a(f"""
    s_cmp_lg_u32 s{OWNP}, 2
    s_cbranch_scc1 G_s1
    s_call_b64 {sp(LINK)}, L_s2
    s_branch G_more
L_s2:
    s_mov_b64 exec, {sp(FR)}""")
        if opt.get('srt') == 2 and sw == 1:
            sort_rest()
        if band:
            for r in range(2):
                a(f'''
    v_cmp_ne_u32 {sp(VM+2*r)}, s{SEMPTY}, v{EN+r}
    s_andn2_b64 {sp(VM+2*r)}, {sp(VM+2*r)}, {sp(B1+2*r)}
    s_mov_b64 exec, {sp(VM+2*r)}
    ds_add_rtn_u32 v{RK+r}, v{G4+r}, v{FOUR} offset:{L_BCNT}
    s_mov_b64 exec, {sp(FR)}''')
            brank(2, sp(FR))
            brank(3, sp(FR))
            for r in range(4):
                a('    s_waitcnt lgkmcnt(3)')
                bput(r)
        else:
            rankwords(list(range(sw, 4)))
        a(settle)
        a(f'    s_setpc_b64 {sp(LINK)}')
        a('G_s1:')
    a(f"""
    s_waitcnt vmcnt(0)
    s_call_b64 {sp(LINK)}, L_late
    s_branch G_more
G_s2:
    s_sleep 1
    s_cmp_lt_u32 s{X0}, 64
    s_cbranch_scc1 G_more""")
    if xw == 4:
        a('    s_waitcnt vmcnt(0)')
        xnread()
        a('    s_waitcnt lgkmcnt(0)')
        qlate()
    if qdef:
        qfinish()
    a(f'''
B_counts:
    s_mov_b32 s{RET}, 2
F_final:
    s_cmp_eq_u32 s{OWNP}, 0
    s_cbranch_scc1 F_spin
    s_waitcnt vmcnt(0)
    s_call_b64 {sp(LINK)}, L_late
    s_branch F_final
F_spin:
    ds_read_b32 v{T+1}, v{CNTA} offset:{L_BCNT}
    s_waitcnt lgkmcnt(0)
    v_readlane_b32 s{X0}, v{T+1}, 26
    v_sub_u32 v{T+3}, v{T+1}, v{LBASE}
    s_cmp_lt_u32 s{X0}, 64
    s_cbranch_scc1 F_spin
    v_cmp_ne_u32 {sp(X0)}, 0, v{T+1}
    v_cmp_lt_u32 vcc, {GSTRIDE}, v{T+3}
    v_readlane_b32 s{NT}, v{T+3}, s{WID}
    s_and_b32 s{X0}, s{X0}, 0x1ff0000
    s_and_b32 s{X0+1}, vcc_lo, 0xffff
    s_or_b32 s{NTI}, s{X0+1}, s{X0}
    s_or_b32 s{NTI}, s{NTI}, s{MODE}
    s_cbranch_scc1 C_slowcnt
B_cntok:
    s_add_u32 s{NT}, s{NT}, 127
    s_lshr_b32 s{NT}, s{NT}, 7              ; tiles
    s_mov_b32 s{NTI}, s{NT}
    s_cbranch_scc0 B_loopdone
    s_cmp_eq_u32 s{RET}, 0
    s_cbranch_scc1 F_ret_0
    s_cmp_eq_u32 s{RET}, 1
    s_cbranch_scc1 F_ret_1
    s_branch B_first
K_ticket:
    v_mov_b32 v{T+1}, 1
    global_atomic_add v{ATK}, v{ZERO}, v{T+1}, s[16:17] sc0 sc1
    s_waitcnt vmcnt(0)
    v_readfirstlane_b32 s{X0}, v{ATK}
    s_cmp_eq_u32 s{X0}, {NWG-1}
    s_cbranch_scc1 K_adv
    s_branch K_skip
B_first:
    ds_read_b128 {vr(XA,4)}, v{EA}
    ds_read_b128 {vr(XA+4,4)}, v{EA} offset:128
    s_waitcnt lgkmcnt(0)
    s_cmp_eq_u32 s{ISSUED}, 1
    s_cbranch_scc1 B_f1''')
    dma(XA, 0)
    a(f'''
B_f1:
    s_cmp_lt_u32 s{NT}, 2
    s_cbranch_scc1 B_go''')
    dma(XA+4, 1)
    a('    s_branch B_go')
    def drop_lines():
        for r in range(4):
            a(f'    v_mov_b32 v{EN+r}, {EMPTY}')
        a(f'''
    v_lshrrev_b32 v{T}, 2, v0
    v_lshrrev_b32 v{T+1}, 5, v{T}
    v_lshlrev_b32 v{T+1}, 2, v{T+1}
    v_lshlrev_b32 v{T}, v{T}, 1
    ds_or_b32 v{T+1}, v{T} offset:{L_RESC}''')
    a(f'''
A_full:
    s_wqm_b64 exec, {sp(S0)}
    v_mov_b32 v40, {FULLM}
    v_mov_b32 v41, {EMPTY}
    v_mov_b32 v42, {EMPTY}
    v_mov_b32 v43, {EMPTY}
    s_mov_b64 exec, -1
    s_branch A_pub''')
    for tag in rare:
        a(f'''
Z_give{tag}:
    ds_write_b32 v{ZERO}, v{FOUR} offset:{L_GAVE}''')
        drop_lines()
        a(f'''
    s_mov_b64 {sp(S0)}, 0
    s_mov_b32 s{POLLN}, 0
    s_branch Z_nr{tag}
Z_full{tag}:
    s_mov_b64 exec, vcc''')
        drop_lines()
        a(f'    s_branch Z_rank{tag}')
    a('Y_lost:')
    for r in range(4, 8):
        a(f'    v_mov_b32 v{EN+r}, {EMPTY}')
    a(f'''
    s_mov_b64 {sp(S1)}, 0
    s_branch Y_nr
C_slowcnt:
    s_cmp_lg_u32 s{MODE}, 0
    s_cbranch_scc1 C_careful''')
    for k in range(8):
        a(f'    v_readlane_b32 s{RESC+k}, v{T+1}, {16+k}')
    a(f'''
    v_readlane_b32 s{GAVE}, v{T+1}, 25
    s_mov_b32 s{MODE}, 2
    s_cmp_lg_u32 s{X0+1}, 0
    s_cbranch_scc1 C_redo
    s_mov_b32 s{MODE}, 1
    s_branch B_cntok
C_redo:
    ; a list ran over its neighbour: forget what was accumulated and redo all entries carefully''')
    for r in range(16):
        a(f'    v_mov_b32 v{ACC+r}, 0')
    a(f'''
    s_branch C_next
C_careful:
    s_min_u32 s{NT}, s{NT}, {GSTRIDE}
    s_bitcmp1_b32 s{X0}, 24
    s_cselect_b32 s{MODE}, 2, 1
    s_branch B_cntok
C_next:
    s_setprio 0
    s_mov_b32 s{ISSUED}, 0
    s_waitcnt vmcnt(0) lgkmcnt(0)
    s_barrier
    s_cmp_eq_u32 s{MODE}, 2
    s_cbranch_scc1 C_round
    s_mov_b32 s{X0}, -1''')
    for k in range(7, -1, -1):
        a(f'''
    s_ff1_i32_b32 s{X0+1}, s{RESC+k}
    s_add_u32 s{X0+1}, s{X0+1}, {32*k}
    s_cmp_lg_u32 s{RESC+k}, 0
    s_cselect_b32 s{X0}, s{X0+1}, s{X0}''')
    a(f'''
    s_cmp_eq_u32 s{X0}, -1
    s_cbranch_scc1 B_epi
    s_lshr_b32 s{X0+1}, s{X0}, 5
    s_lshl_b32 s{X0+2}, 1, s{X0}''')
    for k in range(8):
        a(f'''
    s_andn2_b32 s{X0+3}, s{RESC+k}, s{X0+2}
    s_cmp_eq_u32 s{X0+1}, {k}
    s_cselect_b32 s{RESC+k}, s{X0+3}, s{RESC+k}''')
    a(f'''
    s_mul_i32 s{X0}, s{X0}, {CH*4}''')
    for k in range(4):
        a(f'''
    buffer_load_dword v{ED+k}, v{T4}, {sq(SDST)}, s{X0} offen
    buffer_load_dword v{ES+k}, v{T4}, {sq(SSRC)}, s{X0} offen
    s_add_u32 s{X0}, s{X0}, 4096''')
    for r in range(4, 8):
        a(f'    v_mov_b32 v{EN+r}, {EMPTY}')
    a(f'    v_mov_b32 v{T+1}, {EMPTY}')
    a('    s_waitcnt vmcnt(0)')
    for k in range(4):
        a(f'''
    {f'v_add_u32_sdwa v{T}, v{ED+k}, v{ED+k} dst_sel:DWORD dst_unused:UNUSED_PAD src0_sel:BYTE_0 src1_sel:BYTE_1' if skew else f'v_mov_b32 v{T}, v{ED+k}'}
    v_and_b32 v{T}, 255, v{T}
    v_cmp_eq_u32 vcc, s2, v{T}
    v_lshrrev_b32 v{ED+k}, 8, v{ED+k}
    v_lshl_or_b32 v{ES+k}, v{ES+k}, 7, v{ED+k}''')
        if k == 3:
            a(f'    s_and_b64 vcc, vcc, {sp(M3)}')
        a(f'    v_cndmask_b32 v{EN+k}, v{T+1}, v{ES+k}, vcc')
    a(f'''
C_round:
    v_mov_b32 v{T+4}, {EMPTY}
    v_mov_b32 v{T+5}, {EMPTY}
    v_mov_b32 v{T+6}, {EMPTY}
    v_mov_b32 v{T+7}, {EMPTY}
    v_add_u32 v{T}, {L_LIST}, v{T16}
    ds_write_b128 v{T}, {vr(T+4,4)}
    s_cmp_ge_u32 s{WID}, 6
    s_cbranch_scc1 C_i1
    ds_write_b128 v{T}, {vr(T+4,4)} offset:16384
C_i1:
    s_cmp_lg_u32 s{WID}, 12
    s_cbranch_scc1 C_i2
    s_mov_b64 exec, 0xffff
    ds_write_b32 v{CNTA}, v{LBASE} offset:{L_BCNT}
    ds_write_b32 v{ZERO}, v{ZERO} offset:{L_PEND}
    s_mov_b64 exec, -1
C_i2:
    s_waitcnt lgkmcnt(0)
    s_barrier
    s_mov_b32 s{X0+4}, {GSTRIDE//4}
    s_mov_b32 s{X0+5}, {L_LIST+GSTRIDE}''')
    for r in range(8):
        brank(r, '-1')
        a(f'''
    v_mul_u32_u24 v{T+3}, s{X0+4}, v{G4+r}
    v_add_u32 v{T+3}, s{X0+5}, v{T+3}
    s_mov_b64 exec, {sp(VM+2*r)}
    s_waitcnt lgkmcnt(0)
    v_cmp_lt_u32 vcc, v{RK+r}, v{T+3}
    s_and_saveexec_b64 {sp(X0+6)}, vcc
    ds_write_b32 v{RK+r}, v{EN+r}
    v_mov_b32 v{EN+r}, {EMPTY}
    s_andn2_b64 exec, {sp(X0+6)}, exec
    ds_write_b32 v{ZERO}, v{FOUR} offset:{L_PEND}
    s_mov_b64 exec, -1''')
    a(f'''
    v_mov_b32 v{EA}, v{EA0}
    v_mov_b32 v{MAD}, v{MAD0}
    s_waitcnt lgkmcnt(0)
    s_barrier
L_last:
    s_branch B_counts''')
    if opt.get('red'):
        gen_red(a, opt)
    def kd(name, vg, sg):
        a(f'''
.p2align 6
.amdhsa_kernel {name}
  .amdhsa_next_free_vgpr {vg}
  .amdhsa_next_free_sgpr {sg}
  .amdhsa_accum_offset {vg}
  .amdhsa_group_segment_fixed_size 0
  .amdhsa_kernarg_size 64
  .amdhsa_user_sgpr_count 2
  .amdhsa_user_sgpr_kernarg_segment_ptr 1
  .amdhsa_system_sgpr_workgroup_id_x 1
.end_amdhsa_kernel''')
    a('.section .rodata,"a"')
    kd(KNAME, 128, 102)
    if opt.get('red'):
        kd('red_kernel', 32, 48)
    return a.text()

if __name__ == '__main__':
    out = sys.argv[1]
    opt = {}
    for kv in sys.argv[2:]:
        k, v = kv.split('=')
        try:
            v = int(v)
        except ValueError:
            v = '' if v == 'none' else ' ' + v.replace('+', ' ')
        opt[k] = v
    open(out, 'w').write(build(opt))
```

```python
import sys, struct
from gen3 import gen_red

N, E, D = 25000, 800000, 64
NWG = 256
CH = E // NWG
HSTRIDE = 16384 + 128
SEG_OFF = 4096
H1_OFF = 256 * HSTRIDE
WS_USED = SEG_OFF + 2 * H1_OFF
X_BYTES = N * 128
EMPTY = 0x003FFFFF
FULLM = 0x003FFFFE
KNAME = 'standalone__kernel_systems_refs_featgraph__graph_kernel'

L_ACNT = 0
L_BCNT = 1024
L_RESC = 1088
L_PEND = 1120
L_GAVE = 1124
L_DONE = 1128
L_REDO = 1132
L_LUT = 1152
L_WV = 2048
L_RING = 10240
L_LIST = L_RING + 131072
GSTRIDE = 1408
L_XN = L_RING + 32768
L_WQ = L_RING + 65536
ISTRIDE = 144
L_IMG = L_LIST - 256 * ISTRIDE
LDS = 163840
STAMP_OFF = 0x1000000

def f32bits(x):
    return struct.unpack('<I', struct.pack('<f', x))[0]

class Asm:
    def __init__(self):
        self.lines = []
    def __call__(self, s):
        for ln in s.strip('\n').split('\n'):
            if ln.strip():
                self.lines.append(ln)
    def text(self):
        return '\n'.join(self.lines) + '\n'

def vr(lo, n):
    return f'v[{lo}:{lo+n-1}]'
def sp(lo):
    return f's[{lo}:{lo+1}]'
def sq(lo):
    return f's[{lo}:{lo+3}]'

def srd(a, d, lo, nbytes):
    a(f'    s_mov_b32 s{d}, s{lo}')
    a(f'    s_mov_b32 s{d+1}, s{lo+1}')
    a(f'    s_mov_b32 s{d+2}, {nbytes}')
    a(f'    s_mov_b32 s{d+3}, 0x00020000')

LANE, T4, T16, FOUR, ZERO, ROWOFF, WVA = 1, 2, 3, 4, 5, 6, 7
QLO, QHI, ACC, XA, XT, S, PP, MA, MB, EE = 8, 16, 24, 40, 56, 72, 76, 80, 84, 88
M0R, M1R, RA0, RA1, RT, EA, MAD, CHK, EA0 = 92, 93, 94, 95, 96, 100, 101, 102, 103
T = 104
EN = 112
MAD0, PFD, ATK, STV, CNTA, EPV, LBASE = 120, 121, 122, 123, 124, 125, 126
ED, ES, B4, PS = 40, 44, 48, 52
WD, XN = 56, 60
IMGR, STO, WSA = 68, 69, 70
G4, RK = 40, 48

GAVE = 3
SX, SSRC, SDST, SW, EPOCH, ISSUED, SOUT, SWS = 20, 24, 28, 32, 34, 35, 36, 40
WID, SEGB, AMASK, RING, NT, TT = 44, 45, 46, 47, 48, 49
TAG = 50
SEMPTY, MODE, LOM, M3 = 54, 55, 56, 58
RESC = 60
FR, N1 = 60, 62
VM = 68
X0 = 84
H1SO, KFULL, S0, S1, K88, KTHR, PFT, POLLN, PRIME = 86, 87, 88, 90, 92, 94, 95, 96, 97
NTI, RET = 32, 33
OWNP, LINK = 97, 10

def build(opt):
    a = Asm()
    st = opt.get('stamps')
    def rstamp(k):
        if opt.get('rp'):
            a('    s_memrealtime s[98:99]')
            a('    s_waitcnt lgkmcnt(0)')
            a(f'    v_writelane_b32 v{STV}, s98, {k}')
    def stamp(k):
        if opt.get('rp') and k in (1, 2, 3, 4, 5):
            return
        if st:
            ck = {0: 14, 7: 12, 9: 13}.get(k)
            if ck:
                a('    s_memtime s[100:101]')
            a('    s_memrealtime s[98:99]')
            a('    s_waitcnt lgkmcnt(0)')
            a(f'    v_writelane_b32 v{STV}, s98, {k}')
            if ck:
                a(f'    v_writelane_b32 v{STV}, s100, {ck}')
    launch = (f'; @launch kernel={KNAME} grid=({NWG},1,1) block=(1024,1,1) lds={LDS}' if opt.get('list') else
              f'; @launch grid=({NWG},1,1) block=(1024,1,1) lds={LDS}')
    if opt.get('red'):
        launch += '\n; @launch kernel=red_kernel grid=(1,1,1) block=(64,1,1) lds=0'
    sf = opt.get('st', ' sc1')
    lf = opt.get('ld', ' sc1')
    gf = opt.get('gather', '')
    of = opt.get('out', '')
    a(f'''; FeatGraph (SDDMM sigmoid gate + SpMM) in one launch, one workgroup per CU.
{launch}
.amdgcn_target "amdgcn-amd-amdhsa--gfx950"
.text
.globl {KNAME}
.p2align 8
.type {KNAME},@function
{KNAME}:
    s_cmp_ge_u32 s2, {NWG}
    s_cbranch_scc1 L_end''')
    if st:
        a(f'    v_mov_b32 v{STV}, 0')
        a(f'    v_mov_b32 v{ATK}, 0')
    stamp(0)
    a('    s_load_dwordx16 s[4:19], s[0:1], 0')
    a(f'''
    s_and_b32 s{X0}, s2, 7
    s_lshl_b32 s{X0}, s{X0}, 5
    s_lshr_b32 s2, s2, 3
    s_or_b32 s2, s2, s{X0}''')
    if opt.get('cpf'):
        a(f'''
    s_getpc_b64 {sp(S0)}
I_pc:
    v_lshlrev_b32 v127, 7, v0
    v_cmp_gt_u32 vcc, A_full-I_pc, v127
    s_and_saveexec_b64 {sp(S1)}, vcc
    s_cbranch_execz I_c
    global_load_dword v127, v127, {sp(S0)}
I_c:
    s_mov_b64 exec, -1''')
    a(f'''
    s_mul_i32 s{X0}, s2, {CH*4}
    v_lshlrev_b32 v{T4}, 2, v0
    v_lshrrev_b32 v{T+4}, 6, v0
    v_add_u32 v{T}, s{X0}, v{T4}
    v_readfirstlane_b32 s{WID}, v{T+4}
    v_add_u32 v{T+1}, 4096, v{T}
    v_add_u32 v{T+2}, 8192, v{T}
    v_add_u32 v{T+3}, 12288, v{T}
    v_cmp_gt_u32 {sp(M3)}, {CH-3072}, v0
    v_lshlrev_b32 v{T16}, 4, v0
    v_mov_b32 v{ZERO}, 0
    v_mov_b32 v{T+4}, {EMPTY}
    v_mov_b32 v{T+5}, {EMPTY}
    v_mov_b32 v{T+6}, {EMPTY}
    v_mov_b32 v{T+7}, {EMPTY}
    s_waitcnt lgkmcnt(0)
    {f'global_load_dword v{EPV}, v{ZERO}, s[18:19]      ; epoch word' if opt.get('epf') else ''}
    s_mov_b64 exec, {sp(M3)}
    s_cbranch_execz A_no3a
    global_load_dword v{ED+3}, v{T+3}, s[8:9]{opt.get('ef', '')}
    global_load_dword v{ES+3}, v{T+3}, s[6:7]{opt.get('ef', '')}
A_no3a:
    s_mov_b64 exec, -1''')
    for k in range(3):
        a(f"    global_load_dword v{ED+k}, v{T+k}, s[8:9]{opt.get('ef', '')}")
    for k in range(3):
        a(f"    global_load_dword v{ES+k}, v{T+k}, s[6:7]{opt.get('ef', '')}")
    skew = opt.get('skew', 0)
    xw = opt.get('xw', 0)
    xe = opt.get('xe', 0)
    cw = opt.get('cw', 0)
    assert opt.get('epf')
    def ldsfill():
        a(f"""
    v_add_u32 v{T}, {L_IMG}, v{T16}
    ds_write_b128 v{T}, {vr(T+4,4)}
    ds_write_b128 v{T}, {vr(T+4,4)} offset:16384
    s_cmp_ge_u32 s{WID}, 4
    s_cbranch_scc1 I_a
    ds_write_b128 v{T}, {vr(T+4,4)} offset:32768
    ds_write_b32 v{T4}, v{ZERO} offset:{L_ACNT}
I_a:""")
    def rowsetup():
        a(f"""
    v_and_b32 v{LANE}, 63, v0
    v_mov_b32 v{FOUR}, 4""")
        srd(a, SX, 4, X_BYTES)
        a(f"""
    s_cmp_lt_u32 s{WID}, 8
    s_cselect_b32 s{SW}, s10, s12
    s_cselect_b32 s{SW+1}, s11, s13
    v_lshrrev_b32 v{T}, 3, v{LANE}
    v_and_b32 v{T+1}, 7, v{LANE}
    v_xor_b32 v{T+1}, v{T+1}, v{T}
    v_lshlrev_b32 v{T+1}, 4, v{T+1}""")
        if skew:
            a(f"""
    v_lshl_add_u32 v{T}, v{T}, 4, s{WID}    ; local
    v_sub_u32 v{T+2}, s2, v{T}
    v_and_b32 v{T+2}, 255, v{T+2}
    v_lshl_or_b32 v{T}, v{T}, 8, v{T+2}     ; node
    v_lshl_add_u32 v{ROWOFF}, v{T}, 7, v{T+1}""")
        else:
            a(f"""
    v_lshlrev_b32 v{T}, 19, v{T}
    s_lshl_b32 s{X0}, s{WID}, 15
    s_lshl_b32 s{X0+1}, s2, 7
    s_add_u32 s{X0}, s{X0}, s{X0+1}
    v_add3_u32 v{ROWOFF}, v{T}, v{T+1}, s{X0}""")
        a(f"""
    s_lshl_b32 s{X0}, s{WID}, 10
    s_add_u32 m0, s{X0}, {L_XN}""")
    def wload():
        a(f'    v_and_b32 v{T+3}, 0x1ff0, v{T16}')
        a(f'    global_load_dwordx4 {vr(WD,4)}, v{T+3}, {sp(SW)}')
    def xload():
        a(f'    buffer_load_dwordx4 v{ROWOFF}, {sq(SX)}, 0 offen lds')
    def early():
        if xw in (0, 2, 4):
            wload()
        if xw == 0:
            xload()
        if cw == 1:
            a(f"""
    s_mul_i32 s{PFT}, s2, {98*128}
    s_mul_i32 s{X0}, s{WID}, {7*128}
    s_add_u32 s{PFT}, s{PFT}, s{X0}
    v_lshlrev_b32 v{T}, 7, v{LANE}
    s_cmp_lt_u32 s{WID}, 14
    s_cselect_b32 exec_lo, 0x7f, 1
    s_mov_b32 exec_hi, 0
    buffer_load_dword v{ATK}, v{T}, {sq(SX)}, s{PFT} offen
    s_mov_b64 exec, -1""")
    if xe:
        rowsetup()
        if xe == 2:
            a('    s_barrier')
        early()
        ldsfill()
    else:
        ldsfill()
        rowsetup()
    a("""
    s_waitcnt lgkmcnt(0)
    s_barrier""")
    if not xe:
        early()
    pfpos = [0]
    def prefetch(n):
        lo, hi = pfpos[0], pfpos[0] + n
        pfpos[0] = hi
        m = ((1 << hi) - 1) ^ ((1 << lo) - 1)
        a(f'''
    s_lshr_b32 s{PFT}, s2, 3
    s_lshl_b32 s{PFT}, s{PFT}, 4
    s_add_u32 s{PFT}, s{PFT}, s{WID}
    s_mul_i32 s{PFT}, s{PFT}, {49*128}
    v_lshlrev_b32 v{T}, 7, v{LANE}
    s_mov_b32 exec_lo, 0x{m & 0xffffffff:x}
    s_mov_b32 exec_hi, 0x{m >> 32:x}
    buffer_load_dword v{ATK}, v{T}, {sq(SX)}, s{PFT} offen
    s_mov_b64 exec, -1''')
    p = 1 if cw else 0
    srd(a, SWS, 18, WS_USED)
    if opt.get('tlb'):
        sh = opt['tlb']
        n1 = -(-(SEG_OFF + 2*H1_OFF) // (16 << sh))
        n2 = -(-X_BYTES // (16 << sh))
        srd(a, SOUT, 14, X_BYTES)
        a(f'''
    s_mul_i32 s{PFT}, s{WID}, {n1}
    v_add_u32 v{T}, s{PFT}, v{LANE}
    v_lshlrev_b32 v{T}, {sh}, v{T}
    s_mul_i32 s{PFT}, s{WID}, {n2}
    v_add_u32 v{T+1}, s{PFT}, v{LANE}
    v_lshlrev_b32 v{T+1}, {sh}, v{T+1}
    s_mov_b64 exec, {(1 << n1) - 1}
    buffer_load_dword v{ATK}, v{T}, {sq(SWS)}, 0 offen
    s_mov_b64 exec, {(1 << n2) - 1}
    buffer_load_dword v{ATK}, v{T+1}, {sq(SOUT)}, 0 offen
    s_mov_b64 exec, -1''')
        p += 2
    if opt.get('pf1'):
        prefetch(opt['pf1'])
        p += 1
    nw = {0: 2, 1: 0, 2: 1, 3: 0, 4: 1}[xw]
    y = (0 if opt.get('epf') else 1) + nw + p
    wdec = 1
    if opt.get('x_xnwait'):
        a('    s_waitcnt vmcnt(0)')
    stamp(1)
    a(f'''
    v_add_u32 v{T}, {L_LIST}, v{T16}
    ds_write_b128 v{T}, {vr(T+4,4)}
    s_cmp_ge_u32 s{WID}, 6
    s_cbranch_scc1 I_b
    ds_write_b128 v{T}, {vr(T+4,4)} offset:16384
I_b:
    v_and_b32 v{LBASE}, 15, v{LANE}
    v_mul_u32_u24 v{LBASE}, {GSTRIDE}, v{LBASE}
    v_add_u32 v{LBASE}, {L_LIST}, v{LBASE}
    v_and_b32 v{CNTA}, 0x7c, v{T4}
    s_cmp_lg_u32 s{WID}, 12
    s_cbranch_scc1 I_done
    v_cmp_gt_u32 vcc, 16, v{LANE}
    s_mov_b32 exec_hi, 0
    s_nop 0
    v_cndmask_b32 v{T+2}, 0, v{LBASE}, vcc
    ds_write_b32 v{CNTA}, v{T+2} offset:{L_BCNT}
    s_mov_b64 exec, 0xff
    v_cvt_f32_u32 v{T+2}, v{LANE}
    v_mul_f32 v{T+3}, v{T+2}, v{T+2}
    v_cvt_pk_bf16_f32 v{T+2}, v{T+3}, v{T+2}
    v_lshlrev_b32 v{T+3}, 4, v{LANE}
    ds_write_b32 v{T+3}, v{T+2} offset:{L_LUT}
    s_mov_b64 exec, -1
I_done:''')
    a(f'''
''')
    G = opt.get('grp', 2)
    lg = G.bit_length() - 1
    BLK = G * HSTRIDE
    a(f'''
    s_lshl_b32 s{X0}, s2, {6+lg}
    s_add_u32 s{X0}, s{X0}, {SEG_OFF}
    s_add_u32 s{X0+1}, s{X0}, {H1_OFF}
    s_lshr_b32 s{SEGB}, s2, {lg}
    s_mul_i32 s{SEGB}, s{SEGB}, {BLK}
    s_and_b32 s{S0}, s2, {G-1}
    s_lshl_b32 s{S0}, s{S0}, 6
    s_add_u32 s{SEGB}, s{SEGB}, s{S0}
    s_add_u32 s{SEGB}, s{SEGB}, {SEG_OFF}
    v_lshrrev_b32 v{T}, 2, v0
    v_and_b32 v{T+1}, 3, v0
    v_mul_u32_u24 v{IMGR}, {ISTRIDE}, v{T}
    v_lshl_add_u32 v{IMGR}, v{T+1}, 2, v{IMGR}
    v_add_u32 v{IMGR}, {L_IMG}, v{IMGR}
    v_lshrrev_b32 v{T+2}, {2+lg}, v0
    v_mul_u32_u24 v{STO}, {BLK}, v{T+2}
    v_and_b32 v{T+2}, {64*G-1}, v{T16}
    v_add_u32 v{STO}, v{STO}, v{T+2}
    v_lshlrev_b32 v{T+1}, 4, v{T+1}
    v_lshl_add_u32 v{PFD}, v{T}, {6+lg}, v{T+1}''')
    pair = 1
    LDV = PFD if pair else T16
    a(f'''
    s_mov_b32 s{SEMPTY}, {EMPTY}
    s_mov_b32 s{KTHR}, {L_IMG}
    s_mov_b32 s{K88}, 0x88888888
    s_mov_b32 s{K88+1}, 0x88888888
    v_bfe_u32 v{T}, v0, 3, 6
    v_and_b32 v{T+1}, 7, v0
    v_bfe_u32 v{T+2}, v{T}, 1, 1
    v_and_or_b32 v{T+2}, v{T}, 8, v{T+2}
    v_bfe_u32 v{T+3}, v{T}, 1, 2
    s_cmp_lt_u32 s{WID}, 8
    s_cselect_b64 {sp(S0)}, -1, 0
    s_mov_b32 s{S1}, {L_WV}
    s_cselect_b32 s{S1}, {L_WQ}, s{S1}
    s_bfe_u32 s{S1+1}, s{WID}, 0x20002
    s_cmp_eq_u32 s{S1+1}, 1
    s_cselect_b32 s{S1+1}, 4096, 0
    s_add_u32 s{S1}, s{S1}, s{S1+1}
    v_cndmask_b32 v{T+2}, v{T+3}, v{T+2}, {sp(S0)}
    v_lshlrev_b32 v{T+1}, 1, v{T+1}
    v_xor_b32 v{T+1}, v{T+1}, v{T+2}
    v_lshlrev_b32 v{T+1}, 3, v{T+1}
    v_lshl_add_u32 v{T+1}, v{T}, 7, v{T+1}
    v_add_u32 v{WSA}, s{S1}, v{T+1}
    v_xor_b32 v{WSA+1}, 8, v{WSA}''')
    xp = opt.get('xp', 0)
    a(f'''
    v_bfrev_b32 v{T+4}, -2''')
    def arank(k):
        if skew:
            a(f'''
    v_add_u32_sdwa v{B4+k}, v{ED+k}, v{ED+k} dst_sel:DWORD dst_unused:UNUSED_PAD src0_sel:BYTE_0 src1_sel:BYTE_1''')
        a(f'''
    v_lshlrev_b32_sdwa v{B4+k}, 2, v{B4+k if skew else ED+k} dst_sel:DWORD dst_unused:UNUSED_PAD src0_sel:DWORD src1_sel:BYTE_0
    ds_add_rtn_u32 v{PS+k}, v{B4+k}, v{FOUR} offset:{L_ACNT}''')
    def aentry(k):
        a(f'''
    v_lshrrev_b32 v{ED+k}, 8, v{ED+k}
    v_lshl_or_b32 v{ES+k}, v{ES+k}, 7, v{ED+k}
    v_mad_u32_u24 v{B4+k}, v{B4+k}, {ISTRIDE//4}, s{KTHR}''')
    def aput(k):
        a(f'''
    v_min_u32 v{PS+k}, {ISTRIDE-4}, v{PS+k}
    v_add_u32 v{PS+k}, v{PS+k}, v{B4+k}
    ds_write_b32 v{PS+k}, v{ES+k}''')
    a(f'    s_waitcnt vmcnt({y+3})')
    stamp(2)
    for k in range(3):
        arank(k)
    a(f'    s_waitcnt vmcnt({y})')
    for k in range(3):
        aentry(k)
    for k in range(3):
        a('    s_waitcnt lgkmcnt(2)')
        aput(k)
    a(f'''
    s_mov_b64 exec, {sp(M3)}
    s_cbranch_execz A_no3b''')
    arank(3)
    aentry(3)
    a('    s_waitcnt lgkmcnt(0)')
    aput(3)
    a(f'''
A_no3b:
    s_mov_b64 exec, -1
    s_waitcnt vmcnt({p + nw})
    v_readfirstlane_b32 s{EPOCH}, v{EPV}''')
    if xw == 3:
        wload()
        xload()
    if opt.get('pfr'):
        prefetch(opt['pfr'])
        p += 1
    a(f'''
    {f'ds_write_b64 v{WSA}, {vr(WD,2)}' if not wdec else ''}
    {f'ds_write_b64 v{WSA+1}, {vr(WD+2,2)}' if not wdec else ''}
    s_add_u32 s{EPOCH}, s{EPOCH}, 1
    s_lshl_b32 s{TAG}, s{EPOCH}, 22
    s_lshl_b32 s{TAG+1}, s{EPOCH}, 12
    s_and_b32 s{TAG+1}, s{TAG+1}, 0xffc00000
    s_lshl_b32 s{TAG+2}, s{EPOCH}, 2
    s_and_b32 s{TAG+2}, s{TAG+2}, 0xffc00000
    s_xor_b32 s{TAG+3}, s{TAG}, 0xffc00000
    s_waitcnt lgkmcnt(0)
    s_barrier''')
    stamp(3)
    a(f'''
    ds_read_b32 v48, v{IMGR} offset:128
    ds_read2_b32 {vr(40,2)}, v{IMGR} offset0:0 offset1:4
    ds_read2_b32 {vr(42,2)}, v{IMGR} offset0:8 offset1:12
    ds_read2_b32 {vr(44,2)}, v{IMGR} offset0:16 offset1:20
    ds_read2_b32 {vr(46,2)}, v{IMGR} offset0:24 offset1:28
    s_waitcnt lgkmcnt(4)
    v_cmp_ne_u32 vcc, s{SEMPTY}, v48
    s_waitcnt lgkmcnt(2)
    s_cbranch_vccnz A_full
A_pub:
    v_cmp_ne_u32 vcc, s{SEMPTY}, v43''')
    for r in range(4):
        a(f'    v_or_b32 v{40+r}, s{TAG+r}, v{40+r}')
    a(f'''
    buffer_store_dwordx4 {vr(40,4)}, v{STO}, {sq(SWS)}, s{X0} offen{sf}
    s_and_b64 {sp(S0)}, vcc, {sp(K88)}''')
    if opt.get('h1o'):
        a(f'''
    s_lshr_b64 {sp(S1)}, {sp(S0)}, 4
    s_or_b64 {sp(S0)}, {sp(S0)}, {sp(S1)}
    s_and_b32 s{S0}, s{S0}, 0x08080808
    s_and_b32 s{S0+1}, s{S0+1}, 0x08080808
    s_lshl_b64 {sp(S1)}, {sp(S0)}, 4
    s_or_b64 {sp(S0)}, {sp(S0)}, {sp(S1)}''')
    a(f'''
    s_wqm_b64 vcc, {sp(S0)}
    s_waitcnt lgkmcnt(0)''')
    for r in range(4):
        a(f'    v_or_b32 v{44+r}, s{TAG+r}, v{44+r}')
    a(f'''
''')
    h1f = opt.get('h1f', 0)
    if h1f:
        a(f'''
    v_and_b32 v{T+5}, 0x30, v{T16}
    v_lshlrev_b32 v{STO}, 1, v{STO}
    v_sub_u32 v{STO}, v{STO}, v{T+5}''')
    a(f'''
    v_cndmask_b32 v{STO}, v{T+4}, v{STO}, vcc
    buffer_store_dwordx4 {vr(44,4)}, v{STO}, {sq(SWS)}, s{X0+1} offen{sf}''')
    if h1f == 2:
        a(f'    buffer_store_dwordx4 {vr(44,4)}, v{STO}, {sq(SWS)}, s{X0+1} offen offset:64{sf}')
        p += 1
    H1V = LDV
    if h1f:
        H1V = PFD
        a(f'''
    v_lshlrev_b32 v{PFD}, 1, v{T16}
    v_sub_u32 v{PFD}, v{PFD}, v{T+5}''')
    if opt.get('pfb'):
        prefetch(opt['pfb'])
        p += 1
    stamp(4)
    if xw == 1:
        wload()
    if xw in (1, 2):
        xload()
    def wstage(n):
        a(f'''
    s_waitcnt vmcnt({n})
    ds_write_b64 v{WSA}, {vr(WD,2)}
    ds_write_b64 v{WSA+1}, {vr(WD+2,2)}''')
    if xw in (0, 2):
        wstage(p + 3)
    def stouch():
        step = opt.get('sstep', 128)
        a(f'''
    s_mul_i32 s{X0}, s2, {98*128}
    s_mul_i32 s{X0+1}, s{WID}, {7*128}
    s_add_u32 s{X0}, s{X0}, s{X0+1}
    s_min_u32 s{X0}, s{X0}, {X_BYTES - 7*128}
    s_add_u32 s{X0}, s4, s{X0}
    s_addc_u32 s{X0+1}, s5, 0''')
        for o in range(0, 7*128, step):
            a(f'    s_load_dword s101, {sp(X0)}, {o}')
    if xw == 4:
        wstage(p + 2)
        if opt.get('stc'):
            a('    s_waitcnt lgkmcnt(0)')
            stouch()
    WQA, XNA = 88, 92
    a(f"""
    v_lshrrev_b32 v{T+5}, 4, v{LANE}        ; g
    v_bfe_u32 v{T+1}, v{LANE}, 2, 2
    v_lshl_add_u32 v{T+2}, v{T+5}, 3, v{T+1}
    v_bfe_u32 v{T+3}, v{T+2}, 1, 1
    v_and_or_b32 v{T+3}, v{T+2}, 8, v{T+3}
    v_and_b32 v{T+4}, 3, v{LANE}            ; c
    v_lshlrev_b32 v{T+6}, 1, v{T+4}
    v_xor_b32 v{T+3}, v{T+3}, v{T+6}
    v_lshlrev_b32 v{T+3}, 3, v{T+3}
    v_lshl_add_u32 v{T}, v{T+2}, 7, v{T+3}
    v_add_u32 v{WQA}, {L_WQ}, v{T}
    v_xor_b32 v{WQA+1}, 8, v{WQA}
    v_xor_b32 v{WQA+2}, 64, v{WQA}
    v_xor_b32 v{WQA+3}, 0x48, v{WQA}
    v_and_b32 v{T+7}, 7, v{LANE}
    v_xor_b32 v{T}, v{T+5}, v{T+7}
    v_lshlrev_b32 v{T}, 4, v{T}
    v_lshl_add_u32 v{T}, v{T+7}, 7, v{T}
    s_lshl_b32 s{X0}, s{WID}, {13 if xw == 4 else 10}
    s_add_u32 s{X0}, s{X0}, {L_RING + 7168 if xw == 4 else L_XN}
    v_add_u32 v{XNA}, s{X0}, v{T}
    v_xor_b32 v{XNA+1}, 64, v{XNA}""")
    srd(a, SOUT, 14, X_BYTES)
    srd(a, SSRC, 6, E*4)
    srd(a, SDST, 8, E*4)
    a(f"""
    s_add_u32 s{H1SO}, s{SEGB}, {H1_OFF}
    {f's_mul_i32 s{H1SO}, s2, {2*HSTRIDE}' if h1f else ''}
    {f's_add_u32 s{H1SO}, s{H1SO}, {SEG_OFF+H1_OFF}' if h1f else ''}
    s_mov_b32 s{AMASK}, 0x003fff80
    s_lshl_b32 s{RING}, s{WID}, 13
    s_add_u32 s{RING}, s{RING}, {L_RING}
    s_mov_b32 s{MODE}, 0
    s_mov_b32 s{GAVE}, 0
    s_mov_b32 s{LOM}, 0x00ff00ff
    s_mov_b32 s{LOM+1}, 0x00ff00ff
    v_and_b32 v{T+1}, 15, v{LANE}           ; i
    v_lshrrev_b32 v{T}, 3, v{LANE}
    v_and_b32 v{T+6}, 6, v{T}
    v_xor_b32 v{T+6}, v{T+6}, v{T+7}
    v_lshlrev_b32 v{CHK}, 4, v{T+6}
    s_mul_i32 s{X0}, s{WID}, {GSTRIDE}
    s_add_u32 s{X0}, s{X0}, {L_LIST}
    v_lshl_add_u32 v{EA0}, v{T}, 4, s{X0}
    v_bfe_u32 v{T+6}, v{LANE}, 3, 2
    v_lshl_add_u32 v{T+6}, v{T+7}, 2, v{T+6}
    v_lshl_add_u32 v{MAD0}, v{T+6}, 2, s{X0}
    v_and_b32 v{T+6}, 6, v{T+1}
    v_xor_b32 v{T+6}, v{T+6}, v{T+5}
    v_lshlrev_b32 v{T+6}, 4, v{T+6}
    v_lshl_add_u32 v{T+6}, v{T+1}, 7, v{T+6}
    v_add_u32 v{RA0}, s{RING}, v{T+6}
    v_xor_b32 v{RA1}, 64, v{RA0}
    v_lshrrev_b32 v{T+6}, 2, v{LANE}        ; row = 4g+r
    v_and_b32 v{T+1}, 6, v{T+6}
    v_bfe_u32 v{T+5}, v{LANE}, 1, 1
    v_xor_b32 v{T+1}, v{T+1}, v{T+5}
    v_lshlrev_b32 v{T+1}, 4, v{T+1}
    v_lshl_add_u32 v{T+1}, v{T+6}, 7, v{T+1}
    v_and_b32 v{T+5}, 1, v{LANE}
    v_lshl_add_u32 v{T+1}, v{T+5}, 3, v{T+1}
    v_add_u32 v{RT}, s{RING}, v{T+1}
    v_xor_b32 v{RT+1}, 32, v{RT}
    v_xor_b32 v{RT+2}, 64, v{RT}
    v_xor_b32 v{RT+3}, 0x60, v{RT}
    v_bfe_u32 v{T+5}, v{T+6}, 1, 2
    v_lshl_or_b32 v{T+5}, v{T+4}, 2, v{T+5}
    v_lshlrev_b32 v{T+5}, 3, v{T+5}
    v_lshl_add_u32 v{WVA}, v{T+6}, 7, v{T+5}
    v_lshrrev_b32 v{T+5}, 3, v{LANE}
    v_and_b32 v{T+5}, 6, v{T+5}
    v_xor_b32 v{T+5}, v{T+5}, v{T+7}
    v_lshlrev_b32 v{T+5}, 4, v{T+5}
    v_lshl_add_u32 v{T+5}, v{T+7}, 7, v{T+5}
    v_add_u32 v{EPV}, s{RING}, v{T+5}
    v_mov_b32 v{MA+1}, 0x00003f80
    v_mov_b32 v{MA+2}, 0
    v_mov_b32 v{MA+3}, 0
    v_mov_b32 v{MB}, 0
    v_mov_b32 v{MB+1}, 0
    v_mov_b32 v{MB+2}, 0
    v_mov_b32 v{MB+3}, 0
    v_cvt_f32_u32 v{T+5}, v{T+7}            ; j' = l&7
    v_mov_b32 v{T+6}, 0x71800000            ; BIG = 2^100
    v_mul_f32 v{T+7}, v{T+5}, v{T+6}
    v_mul_f32 v{T+5}, v{T+5}, v{T+7}
    v_mul_f32 v{T+7}, -2.0, v{T+7}
    s_mov_b32 exec_lo, 0xff0000ff
    s_mov_b32 exec_hi, 0
    v_cvt_pk_bf16_f32 v{MB}, v{T+6}, v{T+7}
    v_cvt_pk_bf16_f32 v{MB+1}, v{T+5}, 0
    s_mov_b64 exec, -1""")
    if xw != 4:
        for r in range(16):
            a(f'    v_mov_b32 v{ACC+r}, 0')
    for r in range(8):
        a(f'    v_mov_b32 v{QLO+r}, 0')
    for r in range(4, 8):
        a(f'    v_mov_b32 v{EN+r}, {EMPTY}')
    a(f"""
    s_mov_b32 s{POLLN}, 0
    s_mov_b32 s{KTHR}, 0x400000
    s_mov_b32 s{KFULL}, {FULLM}
    s_mov_b64 {sp(S0)}, -1
    s_mov_b64 {sp(S1)}, 0
""")
    if xw in (1, 3):
        wstage(1 if xw == 1 else 3)
    a(f"""
    s_waitcnt vmcnt(0) {'' if opt.get('stc') else 'lgkmcnt(0)'}
    s_barrier
    buffer_load_dwordx4 {vr(EN,4)}, v{LDV}, {sq(SWS)}, s{SEGB} offen{lf}
    ; ---- Q' = (own rows @ w_q) * (-log2e/8) in B-operand layout; columns 8..15 zero""")
    def xnlate():
        a(f"""
    s_add_u32 m0, s{RING}, 7168
    s_nop 0
    buffer_load_dwordx4 v{ROWOFF}, {sq(SX)}, 0 offen lds""")
    if xp == 1:
        xnlate()
    dreg = [QHI, QHI+4, S, S+4]
    wq = [ACC, ACC+8, XT, XT+8] if xw == 4 else [XA, XA+8, XA+16, XA+24]
    def xnread():
        a(f"""
    s_mov_b64 exec, {sp(LOM)}
    ds_read_b128 {vr(QLO,4)}, v{XNA}
    ds_read_b128 {vr(QLO+4,4)}, v{XNA+1}
    s_mov_b64 exec, -1""")
    def qmfma(blk):
        a(f'    v_mfma_f32_16x16x32_bf16 {vr(dreg[blk],4)}, {vr(wq[blk],4)}, {vr(QLO,4)}, 0')
        a(f'    v_mfma_f32_16x16x32_bf16 {vr(dreg[blk],4)}, {vr(wq[blk]+4,4)}, {vr(QLO+4,4)}, {vr(dreg[blk],4)}')
    if xw != 4:
        xnread()
    for blk in range(4):
        for ks in range(2):
            for h in range(2):
                a(f'    ds_read_b64_tr_b16 {vr(wq[blk]+ks*4+h*2,2)}, v{WQA+blk} offset:{8192*ks + 512*h}')
        if blk == 2:
            a('    s_waitcnt lgkmcnt(8)')
    if xw != 4:
        for blk in range(4):
            a(f'    s_waitcnt lgkmcnt({min(8, 12-4*blk) if blk else 12})')
            qmfma(blk)
    def qlate():
        for blk in range(4):
            qmfma(blk)
        for r in range(16):
            a(f'    v_mov_b32 v{ACC+r}, 0')
    def qfinish():
        a(f'    s_mov_b32 s{X0}, 0x{f32bits(-1.4426950408889634/8):08x}')
        a(f'    s_mov_b32 s{X0+1}, s{X0}')
        a('    s_nop 1')
        for blk in range(4):
            a(f'    v_pk_mul_f32 {vr(dreg[blk],2)}, {vr(dreg[blk],2)}, {sp(X0)}')
            a(f'    v_pk_mul_f32 {vr(dreg[blk]+2,2)}, {vr(dreg[blk]+2,2)}, {sp(X0)}')
        for blk in range(4):
            a(f'    v_cvt_pk_bf16_f32 v{QLO+2*blk}, v{dreg[blk]}, v{dreg[blk]+1}')
            a(f'    v_cvt_pk_bf16_f32 v{QLO+2*blk+1}, v{dreg[blk]+2}, v{dreg[blk]+3}')
        for r in range(8):
            a(f'    v_mov_b32_dpp v{QHI+r}, v{QLO+r} row_ror:8 row_mask:0xf bank_mask:0xf')
    qdef = opt.get('qdef', 0)
    if not qdef:
        qfinish()
    stamp(5)
    def check(h, dst):
        for r in range(4):
            a(f'    v_xor_b32 v{EN+4*h+r}, s{TAG+r}, v{EN+4*h+r}')
        a(f'''
    v_or3_b32 v{T}, v{EN+4*h}, v{EN+4*h+1}, v{EN+4*h+2}
    v_or_b32 v{T}, v{T}, v{EN+4*h+3}
    v_cmp_le_u32 {dst}, s{KTHR}, v{T}''')
    def brank(r, base, skip=None):
        m = VM + 2*r
        a(f'''
    v_cmp_ne_u32 {sp(m)}, s{SEMPTY}, v{EN+r}
    v_and_b32 v{G4+r}, 15, v{EN+r}
    v_lshlrev_b32 v{G4+r}, 2, v{G4+r}
    s_mov_b64 exec, {sp(m)}''')
        if skip:
            a(f'    s_cbranch_execz {skip}')
        a(f'''
    ds_add_rtn_u32 v{RK+r}, v{G4+r}, v{FOUR} offset:{L_BCNT}
    s_mov_b64 exec, {base}''')
    def bput(r):
        a(f'''
    s_mov_b64 exec, {sp(VM+2*r)}
    ds_write_b32 v{RK+r}, v{EN+r}''')
    rare = []
    def rankwords(ws):
        for r in ws:
            brank(r, sp(FR))
        for r in ws:
            a(f'    s_waitcnt lgkmcnt({len(ws)-1})')
            bput(r)
    def sort_rest():
        a(f'''
    v_min3_u32 v{T}, v{EN+1}, v{EN+2}, v{EN+3}
    v_med3_u32 v{T+1}, v{EN+1}, v{EN+2}, v{EN+3}
    v_max3_u32 v{EN+3}, v{EN+1}, v{EN+2}, v{EN+3}
    v_mov_b32 v{EN+1}, v{T}
    v_mov_b32 v{EN+2}, v{T+1}''')
    band = opt.get('band', 0)
    B1 = 64
    sw = opt.get('sw', 4)
    def absorb0(tag, nw=4):
        check(0, 'vcc')
        a(f'''
    s_wqm_b64 vcc, vcc
    s_andn2_b64 {sp(FR)}, {sp(S0)}, vcc
    s_mov_b64 {sp(S0)}, vcc
    s_mov_b64 exec, vcc
    s_cbranch_execz Z_nr{tag}
    s_add_u32 s{POLLN}, s{POLLN}, 1
    s_cmp_gt_u32 s{POLLN}, {opt.get('pollmax', 2000)}
    s_cbranch_scc1 Z_give{tag}
    buffer_load_dwordx4 {vr(EN,4)}, v{LDV}, {sq(SWS)}, s{SEGB} offen{lf}
Z_nr{tag}:
    s_mov_b64 exec, {sp(FR)}
    s_cbranch_execz Z_done{tag}
    v_cmp_ne_u32 {sp(N1)}, s{SEMPTY}, v{EN+3}
    v_cmp_eq_u32 vcc, s{KFULL}, v{EN}
    s_and_b64 {sp(N1)}, {sp(N1)}, {sp(K88)}
    s_wqm_b64 exec, {sp(N1)}
    {'s_mov_b64 exec, 0' if opt.get('x_noh1') else ''}
    s_cbranch_execz Z_nh{tag}
    s_or_b64 {sp(S1)}, {sp(S1)}, exec
    buffer_load_dwordx4 {vr(EN+4,4)}, v{H1V}, {sq(SWS)}, s{H1SO} offen{lf}
Z_nh{tag}:
    s_cbranch_vccnz Z_full{tag}
Z_rank{tag}:
    s_mov_b64 exec, {sp(FR)}''')
        if opt.get('srt') and tag == 'a':
            a(f'''
    v_min_u32 v{T}, v{EN}, v{EN+1}
    v_max_u32 v{EN+1}, v{EN}, v{EN+1}
    v_min_u32 v{T+1}, v{EN+2}, v{EN+3}
    v_max_u32 v{EN+3}, v{EN+2}, v{EN+3}
    v_min_u32 v{EN}, v{T}, v{T+1}
    v_max_u32 v{EN+2}, v{T}, v{T+1}''')
            if opt['srt'] == 2 and nw > 1:
                sort_rest()
        if band and tag == 'a':
            sort_rest()
            a(f'    s_mov_b32 s{X0}, {band << 7}')
            for r in range(2):
                a(f'''
    v_cmp_gt_u32 {sp(B1+2*r)}, s{X0}, v{EN+r}
    v_and_b32 v{G4+r}, 15, v{EN+r}
    v_lshlrev_b32 v{G4+r}, 2, v{G4+r}
    s_mov_b64 exec, {sp(B1+2*r)}
    ds_add_rtn_u32 v{RK+r}, v{G4+r}, v{FOUR} offset:{L_BCNT}
    s_mov_b64 exec, {sp(FR)}''')
            for r in range(2):
                a(f'''
    s_waitcnt lgkmcnt(1)
    s_mov_b64 exec, {sp(B1+2*r)}
    ds_write_b32 v{RK+r}, v{EN+r}''')
        else:
            rankwords(list(range(nw)))
        a(f'Z_done{tag}:')
        rare.append(tag)
    def absorb1():
        check(1, 'vcc')
        if opt.get('x_loseh1'):
            a(f'    s_and_b32 s{X0}, exec_lo, 0x20002000')
            a(f'    s_or_b32 vcc_lo, vcc_lo, s{X0}')
        a(f'''
    s_andn2_b64 {sp(FR)}, {sp(S1)}, vcc
    s_mov_b64 {sp(S1)}, vcc
    s_mov_b64 exec, vcc
    s_cbranch_execz Y_nr
    s_add_u32 s{POLLN}, s{POLLN}, 1
    s_cmp_gt_u32 s{POLLN}, {opt.get('pollmax1', opt.get('pollmax', 2000))}
    s_cbranch_scc1 Y_lost
    buffer_load_dwordx4 {vr(EN+4,4)}, v{H1V}, {sq(SWS)}, s{H1SO} offen{lf}
Y_nr:
    s_mov_b64 exec, {sp(FR)}''')
        for r in range(4, 8):
            brank(r, sp(FR), 'Y_done')
            a('    s_waitcnt lgkmcnt(0)')
            bput(r)
            a(f'    s_mov_b64 exec, {sp(FR)}')
        a('Y_done:')
    def dma(ereg, slot, qs=range(4)):
        for q in qs:
            if q == 3 and len(qs) == 1:
                a(f'    s_add_u32 m0, s{RING}, {4096*slot + 3072}')
            elif q == 0:
                a(f'    s_mov_b32 m0, s{RING}' if slot == 0 else f'    s_add_u32 m0, s{RING}, 4096')
            else:
                a('    s_add_u32 m0, m0, 1024')
            a(f'    v_and_or_b32 v{ereg+q}, v{ereg+q}, s{AMASK}, v{CHK}')
            a(f'    buffer_load_dwordx4 v{ereg+q}, {sq(SX)}, 0 offen{gf} lds')
    def complete(reg, no):
        a(f"""
    v_max3_u32 v{T}, v{reg}, v{reg+1}, v{reg+2}
    v_max_u32 v{T}, v{T}, v{reg+3}
    v_cmp_eq_u32 vcc, s{SEMPTY}, v{T}
    s_cbranch_vccnz {no}""")
    a(f"""
    s_mov_b32 s{ISSUED}, 0
    v_mov_b32 v{EA}, v{EA0}
    v_mov_b32 v{MAD}, v{MAD0}
    s_waitcnt vmcnt({1 if xp == 1 else 0})""")
    stamp(6)
    a('    s_setprio 3')
    absorb0('a', sw)
    settle = f"""
    s_or_b64 exec, {sp(S0)}, {sp(S1)}
    s_cselect_b32 s{OWNP}, 1, 0
    s_cbranch_execnz G_pend
    s_mov_b64 exec, 1
    ds_add_u32 v{ZERO}, v{FOUR} offset:{L_DONE}
G_pend:
    s_mov_b64 exec, -1
    s_waitcnt lgkmcnt(0)"""
    if xp == 2:
        a('    s_mov_b64 exec, -1')
        xnlate()
    if sw == 4:
        a(settle)
    else:
        a(f"""
    s_mov_b32 s{OWNP}, 2
    s_mov_b64 exec, -1
    s_waitcnt lgkmcnt(0)""")
    a('    s_barrier')
    stamp(7)
    rstamp(1)
    if xw == 4 and not xp:
        xnlate()
    if opt.get('hw', 16) < 16:
        a(f"""
    s_cmp_lt_u32 s{WID}, {opt['hw']}
    s_cbranch_scc1 G_more""")
        if sw < 4:
            a(f'    s_call_b64 {sp(LINK)}, L_s2')
        if opt.get('hw2', 0):
            a(f"""
    s_cmp_lt_u32 s{WID}, {opt['hw2']}
    s_cbranch_scc1 G_more""")
        a(f"""
    s_cmp_eq_u32 s{OWNP}, 0
    s_cbranch_scc1 G_more
    s_waitcnt vmcnt({1 if xw == 4 and xp != 1 else 0})
    s_call_b64 {sp(LINK)}, L_late""")
    a('G_more:')
    rstamp(2)
    a(f"""
    ds_read_b32 v{T+1}, v{ZERO} offset:{L_DONE}
    ds_read_b128 {vr(EE,4)}, v{EA0}
    ds_read_b128 {vr(T+4,4)}, v{EA0} offset:128
    s_cmp_eq_u32 s{ISSUED}, 1
    s_waitcnt lgkmcnt(0)
    s_cbranch_scc1 G_m1""")
    complete(EE, 'G_short')
    dma(EE, 0)
    a(f"""
    s_mov_b32 s{ISSUED}, 1
G_m1:""")
    complete(T+4, 'G_short')
    dma(T+4, 1, range(3) if xw == 4 else range(4))
    a(f"""
    s_mov_b32 s{ISSUED}, 2""")
    rstamp(3)
    if sw < 4:
        a(f"""
    s_cmp_lg_u32 s{OWNP}, 2
    s_cbranch_scc1 G_q
    s_call_b64 {sp(LINK)}, L_s2""")
    a('G_q:')
    if xw == 4:
        rstamp(4)
        a('    s_waitcnt vmcnt(7)')
        rstamp(5)
        xnread()
        a('    s_waitcnt lgkmcnt(0)')
        if not opt.get('q3l'):
            dma(T+4, 1, [3])
        qlate()
    a(f"""
G_go:""")
    if not opt.get('q3l'):
        a(f"    s_setprio {opt.get('p0', 2)}")
    if qdef:
        qfinish()
    if opt.get('q3l'):
        dma(T+4, 1, [3])
        a(f"    s_setprio {opt.get('p0', 2)}")
    a(f"""
    s_mov_b32 s{NT}, {opt.get('pb', 4)}
    s_mov_b32 s{NTI}, 0
B_go:
    ds_read_b32 v{M0R}, v{MAD}
    ds_read_b128 {vr(EE,4)}, v{EA} offset:256
    s_mov_b32 s{TT}, 1                      ; t+1
    s_waitcnt lgkmcnt(1)
    v_and_b32 v{M0R}, 0x70, v{M0R}""")
    stamp(8)
    a('B_loop:')
    pk = opt.get('pk', 0)
    th = opt.get('th', 242)
    th = (th // 100, th // 10 % 10, th % 10)
    def body(slot):
        so = slot * 4096
        mcur, mnext = (M0R, M1R) if slot == 0 else (M1R, M0R)
        eo = slot * 128
        pm = opt.get('prio', 1)
        if pm == 1 and slot == 0:
            a(f"""
    s_cmp_lt_u32 s{TT}, {th[0]}
    s_cbranch_scc1 B_p{slot}
    s_setprio 1
    s_cmp_lt_u32 s{TT}, 4
    s_cbranch_scc1 B_p{slot}
    s_sub_u32 s{X0}, s{NT}, s{TT}
    s_cmp_ge_u32 s{X0}, {th[2]}
    s_cbranch_scc1 B_p{slot}
    s_setprio 0
B_p{slot}:""")
        if pm == 3 and slot == 0:
            a(f"""
    s_cmp_lt_u32 s{TT}, {th[0]}
    s_cbranch_scc1 B_p{slot}
    s_setprio 1
    s_cmp_lt_u32 s{TT}, {th[1]}
    s_cbranch_scc1 B_p{slot}
    s_setprio 0
B_p{slot}:""")
        if pm == 4:
            a(f"""
    s_cmp_eq_u32 s{NTI}, 0
    s_cbranch_scc1 B_p{slot}
    s_sub_u32 s{X0}, s{NT}, s{TT}
    s_setprio 2
    s_cmp_ge_u32 s{X0}, {th[1]}
    s_cbranch_scc1 B_p{slot}
    s_setprio 1
    s_cmp_ge_u32 s{X0}, {th[2]}
    s_cbranch_scc1 B_p{slot}
    s_setprio 0
B_p{slot}:""")
        if pm == 2:
            a(f"""
    s_cmp_lt_u32 s{TT}, 4
    s_cbranch_scc1 B_q{slot}
    s_sub_u32 s{X0}, s{NT}, s{TT}
    s_setprio 3
    s_cmp_ge_u32 s{X0}, 3
    s_cbranch_scc1 B_p{slot}
    s_setprio 2
    s_cmp_ge_u32 s{X0}, 2
    s_cbranch_scc1 B_p{slot}
B_q{slot}:
    s_setprio 1
B_p{slot}:""")
        a(f'''
    ds_read_b32 v{MA}, v{mcur} offset:{L_LUT}
    ds_read_b32 v{mnext}, v{MAD} offset:{eo+128}
    s_cmp_lt_u32 s{TT}, s{NT}
    s_cbranch_scc1 B_w4_{slot}
    s_waitcnt vmcnt(0)
B_w4_{slot}:
    s_cmp_lg_u32 s{OWNP}, 0
    s_waitcnt vmcnt(4)
    s_cbranch_scc0 B_rd_{slot}
    {f's_cmp_lt_u32 s{TT}, 2' if opt.get('ll') and slot == 0 else ''}
    {f's_cbranch_scc1 B_rd_{slot}' if opt.get('ll') and slot == 0 else ''}
    s_call_b64 {sp(LINK)}, L_late
B_rd_{slot}:''')
        if opt.get('tprof'):
            a(f'''
    s_memrealtime s[98:99]
    s_min_u32 s100, s{TT}, 10
    s_waitcnt lgkmcnt(0)
    s_mov_b32 m0, s100
    v_writelane_b32 v{ATK}, s98, m0''')
        a(f'''
    ds_read_b128 {vr(XA,4)}, v{RA0} offset:{so}
    ds_read_b128 {vr(XA+4,4)}, v{RA1} offset:{so}
    ds_read_b128 {vr(XA+8,4)}, v{RA0} offset:{so+2048}
    ds_read_b128 {vr(XA+12,4)}, v{RA1} offset:{so+2048}''')
        for fb in range(4):
            a(f'    ds_read_b64_tr_b16 {vr(XT+4*fb,2)}, v{RT+fb} offset:{so}')
            a(f'    ds_read_b64_tr_b16 {vr(XT+4*fb+2,2)}, v{RT+fb} offset:{so+2048}')
        a(f'''
    s_add_u32 s{TT}, s{TT}, 1               ; t+2
    s_waitcnt lgkmcnt(12)
    {f'v_mfma_f32_16x16x16_bf16 {vr(S,4)}, {vr(MA,2)}, {vr(MB,2)}, 0' if opt.get('m16') else f'v_mfma_f32_16x16x32_bf16 {vr(S,4)}, {vr(MA,4)}, {vr(MB,4)}, 0'}
    v_and_b32 v{mnext}, 0x70, v{mnext}
    s_waitcnt lgkmcnt(11)
    v_mfma_f32_16x16x32_bf16 {vr(S,4)}, {vr(XA,4)}, {vr(QLO,4)}, {vr(S,4)}
    s_waitcnt lgkmcnt(10)
    v_mfma_f32_16x16x32_bf16 {vr(S,4)}, {vr(XA+4,4)}, {vr(QLO+4,4)}, {vr(S,4)}
    s_waitcnt lgkmcnt(9)
    v_mfma_f32_16x16x32_bf16 {vr(S,4)}, {vr(XA+8,4)}, {vr(QHI,4)}, {vr(S,4)}
    s_waitcnt lgkmcnt(8)
    v_mfma_f32_16x16x32_bf16 {vr(S,4)}, {vr(XA+12,4)}, {vr(QHI+4,4)}, {vr(S,4)}
    s_waitcnt lgkmcnt(0)
    s_cmp_lt_u32 s{TT}, s{NTI}
    s_cbranch_scc0 B_skip_{slot}
B_dma_{slot}:''')
        dma(EE, slot)
        a(f'''
    ds_read_b128 {vr(EE,4)}, v{EA} offset:{eo+384}
B_cont_{slot}:''')
        for r in range(4):
            a(f'    v_exp_f32 v{S+r}, v{S+r}')
        if slot == 1:
            a(f'    v_add_u32 v{EA}, 256, v{EA}')
            a(f'    v_add_u32 v{MAD}, 256, v{MAD}')
        if pk:
            a(f'    v_pk_add_f32 {vr(S,2)}, {vr(S,2)}, 1.0 op_sel_hi:[1,0]')
            a(f'    v_pk_add_f32 {vr(S+2,2)}, {vr(S+2,2)}, 1.0 op_sel_hi:[1,0]')
        else:
            for r in range(4):
                a(f'    v_add_f32 v{S+r}, 1.0, v{S+r}')
        for r in range(4):
            a(f'    v_rcp_f32 v{S+r}, v{S+r}')
        a(f'''
    v_cvt_pk_bf16_f32 v{PP}, v{S}, v{S+1}
    s_cmp_gt_u32 s{TT}, s{NT}
    v_cvt_pk_bf16_f32 v{PP+1}, v{S+2}, v{S+3}
    s_nop 0
    v_mov_b32_dpp v{PP+2}, v{PP} row_ror:8 row_mask:0xf bank_mask:0xf
    v_mov_b32_dpp v{PP+3}, v{PP+1} row_ror:8 row_mask:0xf bank_mask:0xf
    s_nop 1''')
        for fb in range(4):
            a(f'    v_mfma_f32_16x16x32_bf16 {vr(ACC+4*fb,4)}, {vr(XT+4*fb,4)}, {vr(PP,4)}, {vr(ACC+4*fb,4)}')
        a('    s_cbranch_scc1 B_loopdone' if slot == 0 else '    s_cbranch_scc0 B_loop')
    n0 = len(a.lines)
    body(0)
    body(1)
    drop = []
    if opt.get('x_halfacc'): drop += ['v_mfma_f32_16x16x32_bf16 v[32', 'v_mfma_f32_16x16x32_bf16 v[36', 'v_mov_b32_dpp']
    if opt.get('x_nomask'): drop += ['v_mfma_f32_16x16x32_bf16 v[72:75], v[80']
    if opt.get('x_notr'): drop += ['ds_read_b64_tr']
    if opt.get('x_nords'): drop += ['ds_read_b128 v[4', 'ds_read_b128 v[5', 'ds_read_b64_tr']
    if opt.get('x_nomfma'): drop += ['v_mfma']
    if opt.get('x_novalu'): drop += ['v_exp', 'v_rcp', 'v_add_f32', 'v_cvt', 'v_mov_b32_dpp', 'v_pk_add']
    if opt.get('bench'): drop += [f'v_add_u32 v{EA}, 256', f'v_add_u32 v{MAD}, 256']
    a.lines[n0:] = [l for l in a.lines[n0:] if not any(l.strip().startswith(d) for d in drop)]
    a(f'''
B_loopdone:
    s_cmp_lg_u32 s{MODE}, 0
    s_cbranch_scc1 C_next
B_epi:''')
    if opt.get('epi3'):
        a('    s_setprio 3')
    stamp(9)
    epi = opt.get('epi', 1)
    wve = opt.get('wve', 0)
    wv = [XA, XA+8, QLO, QHI]
    DO = XT
    def wvread(blks):
        for blk in blks:
            ad = WVA if blk == 0 else T+blk
            for ks in range(2):
                for h in range(2):
                    a(f'    ds_read_b64_tr_b16 {vr(wv[blk]+ks*4+h*2,2)}, v{ad} offset:{L_WV+(32*ks+16*h)*128}')
    def wvfirst():
        a(f"""
    v_xor_b32 v{T+1}, 8, v{WVA}
    v_xor_b32 v{T+2}, 16, v{WVA}
    v_xor_b32 v{T+3}, 24, v{WVA}""")
        wvread([0, 1, 2])
    if wve:
        a(f"""
    s_cmp_lg_u32 s{ISSUED}, 3
    s_cbranch_scc0 E_have""")
    wvfirst()
    a('E_have:')
    a('    s_waitcnt lgkmcnt(8)')
    wvread([3])
    if epi:
        a(f"""
    v_xor_b32 v{T+6}, 16, v{EPV}
    v_lshl_add_u32 v{T+5}, v{LANE}, 4, s{RING}""")
    else:
        a(f"""
    v_and_b32 v{T+4}, 7, v{LANE}
    v_lshlrev_b32 v{T+4}, 19, v{T+4}
    v_lshrrev_b32 v{T+5}, 4, v{LANE}
    v_lshl_add_u32 v{T+4}, v{T+5}, 5, v{T+4}
    s_lshl_b32 s{X0}, s{WID}, 15
    s_lshl_b32 s{X0+1}, s2, 7
    s_add_u32 s{PFT}, s{X0}, s{X0+1}""")
    for r in range(8):
        a(f'    v_cvt_pk_bf16_f32 v{S+r}, v{ACC+2*r}, v{ACC+2*r+1}')
    a('    s_nop 0')
    for blk in range(4):
        a(f'    s_waitcnt lgkmcnt({min(8, 12-4*blk)})')
        a(f'    v_mfma_f32_16x16x32_bf16 {vr(DO+4*blk,4)}, {vr(wv[blk],4)}, {vr(S,4)}, 0')
        a(f'    v_mfma_f32_16x16x32_bf16 {vr(DO+4*blk,4)}, {vr(wv[blk]+4,4)}, {vr(S+4,4)}, {vr(DO+4*blk,4)}')
    a(f'''
    s_cmp_lg_u32 s{WID}, 15
    s_cbranch_scc1 K_no2
    s_mov_b64 exec, 1
    s_cmp_lg_u32 s{GAVE}, 0
    s_cbranch_scc1 K_ticket
K_adv:
    v_mov_b32 v{T}, s{EPOCH}
    global_store_dword v{ZERO}, v{T}, s[18:19]
K_skip:
    s_mov_b64 exec, -1
K_no2:
    s_nop 2''')
    for r in range(4):
        a(f'    v_cvt_pk_bf16_f32 v{XA+r}, v{DO+2*r}, v{DO+2*r+1}')
    a(f'    s_mov_b64 exec, {sp(LOM)}')
    if epi:
        a(f'    ds_write_b128 v{EPV}, {vr(XA,4)}')
    else:
        a(f'    buffer_store_dwordx4 {vr(XA,4)}, v{T+4}, {sq(SOUT)}, s{PFT} offen{of}')
    for r in range(4, 8):
        a(f'    v_cvt_pk_bf16_f32 v{XA+r}, v{DO+2*r}, v{DO+2*r+1}')
    if epi:
        a(f'''
    ds_write_b128 v{T+6}, {vr(XA+4,4)}
    s_mov_b64 exec, -1
    ds_read_b128 {vr(XA+8,4)}, v{T+5}
    s_waitcnt lgkmcnt(0)
    buffer_store_dwordx4 {vr(XA+8,4)}, v{ROWOFF}, {sq(SOUT)}, 0 offen{of}''')
    else:
        a(f'''
    buffer_store_dwordx4 {vr(XA+4,4)}, v{T+4}, {sq(SOUT)}, s{PFT} offen offset:16{of}
    s_mov_b64 exec, -1''')
    if st:
        stamp(10)
        a('    s_waitcnt vmcnt(0)')
        stamp(11)
        if opt.get('tprof'):
            a(f'''
    s_mov_b64 exec, 0x7fe
    v_mov_b32 v{STV}, v{ATK}
    s_mov_b64 exec, -1''')
        a(f'''
    s_add_u32 s{X0}, s18, {STAMP_OFF}
    s_addc_u32 s{X0+1}, s19, 0
    s_lshl_b32 s{X0+2}, s2, 4
    s_add_u32 s{X0+2}, s{X0+2}, s{WID}
    s_lshl_b32 s{X0+2}, s{X0+2}, 6
    v_lshl_add_u32 v{T}, v{LANE}, 2, s{X0+2}
    s_mov_b64 exec, 0xffff
    global_store_dword v{T}, v{STV}, {sp(X0)}''')
        if 'amp' in opt:
            a(f'''
    v_readlane_b32 s60, v{STV}, 0
    v_readlane_b32 s61, v{STV}, {opt['amp']}
    v_readlane_b32 s62, v{STV}, 11
    s_sub_u32 s61, s61, s60
    s_mul_i32 s61, s61, {opt.get('ampk', 2)}
    s_min_u32 s61, s61, 20000
D_spin:
    s_memrealtime s[98:99]
    s_waitcnt lgkmcnt(0)
    s_sub_u32 s98, s98, s62
    s_cmp_lt_u32 s98, s61
    s_cbranch_scc1 D_spin''')
    a(f'''
L_end:
    s_endpgm
''')
    for slot in range(2):
        a(f'''
B_skip_{slot}:
    s_cmp_lg_u32 s{NTI}, 0
    s_cbranch_scc1 B_idle_{slot}
    s_mov_b32 s{RET}, {slot}
    s_cmp_ge_u32 s{TT}, {opt.get('pb', 4)}
    s_cbranch_scc1 F_final''')
        complete(EE, f'B_again_{slot}')
        a(f'''
    s_branch B_dma_{slot}
B_again_{slot}:
    ds_read_b128 {vr(EE,4)}, v{EA} offset:{slot*128+256}
    s_waitcnt lgkmcnt(0)''')
        complete(EE, 'F_final')
        a(f'''
    s_branch B_dma_{slot}
F_ret_{slot}:
    ds_read_b128 {vr(EE,4)}, v{EA} offset:{slot*128+256}
    s_waitcnt lgkmcnt(0)
    s_cmp_lt_u32 s{TT}, s{NT}
    s_cbranch_scc1 B_dma_{slot}
B_idle_{slot}:''')
        if wve:
            a(f'''
    s_cmp_le_u32 s{TT}, s{NT}
    s_cbranch_scc1 B_id2_{slot}
    s_cmp_lg_u32 s{MODE}, 0
    s_cbranch_scc1 B_id2_{slot}
    s_mov_b32 s{ISSUED}, 3''')
            wvfirst()
            a(f'    s_branch B_cont_{slot}')
            a(f'B_id2_{slot}:')
        a(f'''
    s_nop 7
    s_branch B_cont_{slot}''')
    a(f"""
L_late:
    s_mov_b64 exec, {sp(S1)}
    s_cbranch_execz Y_done""")
    absorb1()
    a(f"""
    s_mov_b64 exec, {sp(S0)}
    s_cbranch_execz Z_doneb""")
    absorb0('b')
    a(f"""
    s_or_b64 exec, {sp(S0)}, {sp(S1)}
    s_cbranch_execnz L_ret
    s_mov_b32 s{OWNP}, 0
    s_mov_b64 exec, 1
    ds_add_u32 v{ZERO}, v{FOUR} offset:{L_DONE}""")
    if st:
        a(f'    v_writelane_b32 v{STV}, s{POLLN}, 15')
        a('    s_memrealtime s[98:99]')
        a('    s_waitcnt lgkmcnt(0)')
        a(f'    v_writelane_b32 v{STV}, s98, 7')
    a(f"""
L_ret:
    s_mov_b64 exec, -1
    s_waitcnt lgkmcnt(0)
    s_setpc_b64 {sp(LINK)}
G_short:
    v_readfirstlane_b32 s{X0}, v{T+1}
    s_cmp_eq_u32 s{OWNP}, 0
    s_cbranch_scc1 G_s2""")
    if sw < 4:
        a(f"""
    s_cmp_lg_u32 s{OWNP}, 2
    s_cbranch_scc1 G_s1
    s_call_b64 {sp(LINK)}, L_s2
    s_branch G_more
L_s2:
    s_mov_b64 exec, {sp(FR)}""")
        if opt.get('srt') == 2 and sw == 1:
            sort_rest()
        if band:
            for r in range(2):
                a(f'''
    v_cmp_ne_u32 {sp(VM+2*r)}, s{SEMPTY}, v{EN+r}
    s_andn2_b64 {sp(VM+2*r)}, {sp(VM+2*r)}, {sp(B1+2*r)}
    s_mov_b64 exec, {sp(VM+2*r)}
    ds_add_rtn_u32 v{RK+r}, v{G4+r}, v{FOUR} offset:{L_BCNT}
    s_mov_b64 exec, {sp(FR)}''')
            brank(2, sp(FR))
            brank(3, sp(FR))
            for r in range(4):
                a('    s_waitcnt lgkmcnt(3)')
                bput(r)
        else:
            rankwords(list(range(sw, 4)))
        a(settle)
        a(f'    s_setpc_b64 {sp(LINK)}')
        a('G_s1:')
    a(f"""
    s_waitcnt vmcnt(0)
    s_call_b64 {sp(LINK)}, L_late
    s_branch G_more
G_s2:
    s_setprio 0
    s_cmp_lt_u32 s{X0}, 64
    s_cbranch_scc1 G_more""")
    if xw == 4:
        a('    s_waitcnt vmcnt(0)')
        xnread()
        a('    s_waitcnt lgkmcnt(0)')
        qlate()
    if qdef:
        qfinish()
    a(f'''
B_counts:
    s_mov_b32 s{RET}, 2
F_final:
    s_cmp_eq_u32 s{OWNP}, 0
    s_cbranch_scc1 F_spin
    s_waitcnt vmcnt(0)
    s_call_b64 {sp(LINK)}, L_late
    s_branch F_final
F_spin:
    ds_read_b32 v{T+1}, v{CNTA} offset:{L_BCNT}
    s_waitcnt lgkmcnt(0)
    v_readlane_b32 s{X0}, v{T+1}, 26
    v_sub_u32 v{T+3}, v{T+1}, v{LBASE}
    s_cmp_lt_u32 s{X0}, 64
    s_cbranch_scc1 F_spin
    v_cmp_ne_u32 {sp(X0)}, 0, v{T+1}
    v_cmp_lt_u32 vcc, {GSTRIDE}, v{T+3}
    v_readlane_b32 s{NT}, v{T+3}, s{WID}
    s_and_b32 s{X0}, s{X0}, 0x9ff0000
    s_and_b32 s{X0+1}, vcc_lo, 0xffff
    s_or_b32 s{NTI}, s{X0+1}, s{X0}
    s_or_b32 s{NTI}, s{NTI}, s{MODE}
    s_cbranch_scc1 C_slowcnt
B_cntok:
    s_add_u32 s{NT}, s{NT}, 127
    s_lshr_b32 s{NT}, s{NT}, 7              ; tiles
    s_mov_b32 s{NTI}, s{NT}
    s_cbranch_scc0 B_loopdone
    s_cmp_eq_u32 s{RET}, 0
    s_cbranch_scc1 F_ret_0
    s_cmp_eq_u32 s{RET}, 1
    s_cbranch_scc1 F_ret_1
    s_branch B_first
K_ticket:
    v_mov_b32 v{T+1}, 1
    global_atomic_add v{ATK}, v{ZERO}, v{T+1}, s[16:17] sc0 sc1
    s_waitcnt vmcnt(0)
    v_readfirstlane_b32 s{X0}, v{ATK}
    s_cmp_eq_u32 s{X0}, {NWG-1}
    s_cbranch_scc1 K_adv
    s_branch K_skip
B_first:
    ds_read_b128 {vr(XA,4)}, v{EA}
    ds_read_b128 {vr(XA+4,4)}, v{EA} offset:128
    s_waitcnt lgkmcnt(0)
    s_cmp_eq_u32 s{ISSUED}, 1
    s_cbranch_scc1 B_f1''')
    dma(XA, 0)
    a(f'''
B_f1:
    s_cmp_lt_u32 s{NT}, 2
    s_cbranch_scc1 B_go''')
    dma(XA+4, 1)
    a('    s_branch B_go')
    def drop_lines():
        for r in range(4):
            a(f'    v_mov_b32 v{EN+r}, {EMPTY}')
        a(f'''
    v_lshrrev_b32 v{T}, 2, v0
    v_lshrrev_b32 v{T+1}, 5, v{T}
    v_lshlrev_b32 v{T+1}, 2, v{T+1}
    v_lshlrev_b32 v{T}, v{T}, 1
    ds_or_b32 v{T+1}, v{T} offset:{L_RESC}''')
    a(f'''
A_full:
    s_wqm_b64 exec, vcc
    v_mov_b32 v40, {FULLM}
    v_mov_b32 v41, {EMPTY}
    v_mov_b32 v42, {EMPTY}
    v_mov_b32 v43, {EMPTY}
    s_mov_b64 exec, -1
    s_branch A_pub''')
    for tag in rare:
        a(f'''
Z_give{tag}:
    ds_write_b32 v{ZERO}, v{FOUR} offset:{L_GAVE}''')
        drop_lines()
        a(f'''
    s_mov_b64 {sp(S0)}, 0
    s_mov_b32 s{POLLN}, 0
    s_branch Z_nr{tag}
Z_full{tag}:
    s_mov_b64 exec, vcc''')
        drop_lines()
        a(f'    s_branch Z_rank{tag}')
    a(f'''
Y_lost:
    s_wqm_b64 exec, exec
    s_andn2_b64 {sp(FR)}, {sp(FR)}, exec
    ds_write_b32 v{ZERO}, v{FOUR} offset:{L_REDO}''')
    for r in range(4, 8):
        a(f'    v_mov_b32 v{EN+r}, {EMPTY}')
    drop_lines()
    a(f'''
    s_mov_b64 {sp(S1)}, 0
    s_mov_b32 s{POLLN}, 0
    s_branch Y_nr
C_slowcnt:
    s_cmp_lg_u32 s{MODE}, 0
    s_cbranch_scc1 C_careful''')
    for k in range(8):
        a(f'    v_readlane_b32 s{RESC+k}, v{T+1}, {16+k}')
    a(f'''
    v_readlane_b32 s{GAVE}, v{T+1}, 25
    s_mov_b32 s{MODE}, 2
    s_cmp_lg_u32 s{X0+1}, 0
    s_cbranch_scc1 C_redo
    s_bitcmp1_b32 s{X0}, 27
    s_cbranch_scc1 C_redo
    s_mov_b32 s{MODE}, 1
    s_branch B_cntok
C_redo:
    ; a list ran over its neighbour: forget what was accumulated and redo all entries carefully''')
    for r in range(16):
        a(f'    v_mov_b32 v{ACC+r}, 0')
    a(f'''
    s_branch C_next
C_careful:
    s_min_u32 s{NT}, s{NT}, {GSTRIDE}
    s_bitcmp1_b32 s{X0}, 24
    s_cselect_b32 s{MODE}, 2, 1
    s_branch B_cntok
C_next:
    s_setprio 0
    s_mov_b32 s{ISSUED}, 0
    s_waitcnt vmcnt(0) lgkmcnt(0)
    s_barrier
    s_cmp_eq_u32 s{MODE}, 2
    s_cbranch_scc1 C_round
    s_mov_b32 s{X0}, -1''')
    for k in range(7, -1, -1):
        a(f'''
    s_ff1_i32_b32 s{X0+1}, s{RESC+k}
    s_add_u32 s{X0+1}, s{X0+1}, {32*k}
    s_cmp_lg_u32 s{RESC+k}, 0
    s_cselect_b32 s{X0}, s{X0+1}, s{X0}''')
    a(f'''
    s_cmp_eq_u32 s{X0}, -1
    s_cbranch_scc1 B_epi
    s_lshr_b32 s{X0+1}, s{X0}, 5
    s_lshl_b32 s{X0+2}, 1, s{X0}''')
    for k in range(8):
        a(f'''
    s_andn2_b32 s{X0+3}, s{RESC+k}, s{X0+2}
    s_cmp_eq_u32 s{X0+1}, {k}
    s_cselect_b32 s{RESC+k}, s{X0+3}, s{RESC+k}''')
    a(f'''
    s_mul_i32 s{X0}, s{X0}, {CH*4}''')
    for k in range(4):
        a(f'''
    buffer_load_dword v{ED+k}, v{T4}, {sq(SDST)}, s{X0} offen
    buffer_load_dword v{ES+k}, v{T4}, {sq(SSRC)}, s{X0} offen
    s_add_u32 s{X0}, s{X0}, 4096''')
    for r in range(4, 8):
        a(f'    v_mov_b32 v{EN+r}, {EMPTY}')
    a(f'    v_mov_b32 v{T+1}, {EMPTY}')
    a('    s_waitcnt vmcnt(0)')
    for k in range(4):
        a(f'''
    {f'v_add_u32_sdwa v{T}, v{ED+k}, v{ED+k} dst_sel:DWORD dst_unused:UNUSED_PAD src0_sel:BYTE_0 src1_sel:BYTE_1' if skew else f'v_mov_b32 v{T}, v{ED+k}'}
    v_and_b32 v{T}, 255, v{T}
    v_cmp_eq_u32 vcc, s2, v{T}
    v_lshrrev_b32 v{ED+k}, 8, v{ED+k}
    v_lshl_or_b32 v{ES+k}, v{ES+k}, 7, v{ED+k}''')
        if k == 3:
            a(f'    s_and_b64 vcc, vcc, {sp(M3)}')
        a(f'    v_cndmask_b32 v{EN+k}, v{T+1}, v{ES+k}, vcc')
    a(f'''
C_round:
    v_mov_b32 v{T+4}, {EMPTY}
    v_mov_b32 v{T+5}, {EMPTY}
    v_mov_b32 v{T+6}, {EMPTY}
    v_mov_b32 v{T+7}, {EMPTY}
    v_add_u32 v{T}, {L_LIST}, v{T16}
    ds_write_b128 v{T}, {vr(T+4,4)}
    s_cmp_ge_u32 s{WID}, 6
    s_cbranch_scc1 C_i1
    ds_write_b128 v{T}, {vr(T+4,4)} offset:16384
C_i1:
    s_cmp_lg_u32 s{WID}, 12
    s_cbranch_scc1 C_i2
    s_mov_b64 exec, 0xffff
    ds_write_b32 v{CNTA}, v{LBASE} offset:{L_BCNT}
    ds_write_b32 v{ZERO}, v{ZERO} offset:{L_PEND}
    s_mov_b64 exec, -1
C_i2:
    s_waitcnt lgkmcnt(0)
    s_barrier
    s_mov_b32 s{X0+4}, {GSTRIDE//4}
    s_mov_b32 s{X0+5}, {L_LIST+GSTRIDE}''')
    for r in range(8):
        brank(r, '-1')
        a(f'''
    v_mul_u32_u24 v{T+3}, s{X0+4}, v{G4+r}
    v_add_u32 v{T+3}, s{X0+5}, v{T+3}
    s_mov_b64 exec, {sp(VM+2*r)}
    s_waitcnt lgkmcnt(0)
    v_cmp_lt_u32 vcc, v{RK+r}, v{T+3}
    s_and_saveexec_b64 {sp(X0+6)}, vcc
    ds_write_b32 v{RK+r}, v{EN+r}
    v_mov_b32 v{EN+r}, {EMPTY}
    s_andn2_b64 exec, {sp(X0+6)}, exec
    ds_write_b32 v{ZERO}, v{FOUR} offset:{L_PEND}
    s_mov_b64 exec, -1''')
    a(f'''
    v_mov_b32 v{EA}, v{EA0}
    v_mov_b32 v{MAD}, v{MAD0}
    s_waitcnt lgkmcnt(0)
    s_barrier
L_last:
    s_branch B_counts''')
    if opt.get('red'):
        gen_red(a, opt)
    def kd(name, vg, sg):
        a(f'''
.p2align 6
.amdhsa_kernel {name}
  .amdhsa_next_free_vgpr {vg}
  .amdhsa_next_free_sgpr {sg}
  .amdhsa_accum_offset {vg}
  .amdhsa_group_segment_fixed_size 0
  .amdhsa_kernarg_size 64
  .amdhsa_user_sgpr_count 2
  .amdhsa_user_sgpr_kernarg_segment_ptr 1
  .amdhsa_system_sgpr_workgroup_id_x 1
.end_amdhsa_kernel''')
    a('.section .rodata,"a"')
    kd(KNAME, 128, 102)
    if opt.get('red'):
        kd('red_kernel', 32, 48)
    return a.text()

if __name__ == '__main__':
    out = sys.argv[1]
    opt = {}
    for kv in sys.argv[2:]:
        k, v = kv.split('=')
        try:
            v = int(v)
        except ValueError:
            v = '' if v == 'none' else ' ' + v.replace('+', ' ')
        opt[k] = v
    open(out, 'w').write(build(opt))
```

```python
import sys, struct
from gen3 import gen_red

N, E, D = 25000, 800000, 64
NWG = 256
CH = E // NWG
HSTRIDE = 16384 + 128
SEG_OFF = 4096
H1_OFF = 256 * HSTRIDE
WS_USED = SEG_OFF + 2 * H1_OFF
X_BYTES = N * 128
EMPTY = 0x003FFFFF
FULLM = 0x003FFFFE
KNAME = 'standalone__kernel_systems_refs_featgraph__graph_kernel'

L_ACNT = 0
L_BCNT = 1024
L_RESC = 1088
L_PEND = 1120
L_GAVE = 1124
L_DONE = 1128
L_REDO = 1132
L_LUT = 1152
L_WV = 2048
L_RING = 10240
L_LIST = L_RING + 131072
GSTRIDE = 1408
L_XN = L_RING + 32768
L_WQ = L_RING + 65536
ISTRIDE = 144
L_IMG = L_LIST - 256 * ISTRIDE
LDS = 163840
STAMP_OFF = 0x1000000

def f32bits(x):
    return struct.unpack('<I', struct.pack('<f', x))[0]

class Asm:
    def __init__(self):
        self.lines = []
    def __call__(self, s):
        for ln in s.strip('\n').split('\n'):
            if ln.strip():
                self.lines.append(ln)
    def text(self):
        return '\n'.join(self.lines) + '\n'

def vr(lo, n):
    return f'v[{lo}:{lo+n-1}]'
def sp(lo):
    return f's[{lo}:{lo+1}]'
def sq(lo):
    return f's[{lo}:{lo+3}]'

def srd(a, d, lo, nbytes):
    a(f'    s_mov_b32 s{d}, s{lo}')
    a(f'    s_mov_b32 s{d+1}, s{lo+1}')
    a(f'    s_mov_b32 s{d+2}, {nbytes}')
    a(f'    s_mov_b32 s{d+3}, 0x00020000')

LANE, T4, T16, FOUR, ZERO, ROWOFF, WVA = 1, 2, 3, 4, 5, 6, 7
QLO, QHI, ACC, XA, XT, S, PP, MA, MB, EE = 8, 16, 24, 40, 56, 72, 76, 80, 84, 88
M0R, M1R, RA0, RA1, RT, EA, MAD, CHK, EA0 = 92, 93, 94, 95, 96, 100, 101, 102, 103
T = 104
EN = 112
MAD0, PFD, ATK, STV, CNTA, EPV, LBASE = 120, 121, 122, 123, 124, 125, 126
ED, ES, B4, PS = 40, 44, 48, 52
WD, XN = 56, 60
IMGR, STO, WSA = 68, 69, 70
G4, RK = 40, 48

GAVE = 3
SX, SSRC, SDST, SW, EPOCH, ISSUED, SOUT, SWS = 20, 24, 28, 32, 34, 35, 36, 40
WID, SEGB, AMASK, RING, NT, TT = 44, 45, 46, 47, 48, 49
TAG = 50
SEMPTY, MODE, LOM, M3 = 54, 55, 56, 58
RESC = 60
FR, N1 = 60, 62
VM = 68
X0 = 84
H1SO, KFULL, S0, S1, K88, KTHR, PFT, POLLN, PRIME = 86, 87, 88, 90, 92, 94, 95, 96, 97
NTI, RET = 32, 33
OWNP, LINK = 97, 10

def build(opt):
    a = Asm()
    st = opt.get('stamps')
    def rstamp(k):
        if opt.get('rp'):
            a('    s_memrealtime s[98:99]')
            a('    s_waitcnt lgkmcnt(0)')
            a(f'    v_writelane_b32 v{STV}, s98, {k}')
    def stamp(k):
        if opt.get('rp') and k in (1, 2, 3, 4, 5):
            return
        if st:
            ck = {0: 14, 7: 12, 9: 13}.get(k)
            if ck:
                a('    s_memtime s[100:101]')
            a('    s_memrealtime s[98:99]')
            a('    s_waitcnt lgkmcnt(0)')
            a(f'    v_writelane_b32 v{STV}, s98, {k}')
            if ck:
                a(f'    v_writelane_b32 v{STV}, s100, {ck}')
    launch = (f'; @launch kernel={KNAME} grid=({NWG},1,1) block=(1024,1,1) lds={LDS}' if opt.get('list') else
              f'; @launch grid=({NWG},1,1) block=(1024,1,1) lds={LDS}')
    if opt.get('red'):
        launch += '\n; @launch kernel=red_kernel grid=(1,1,1) block=(64,1,1) lds=0'
    sf = opt.get('st', ' sc1')
    lf = opt.get('ld', ' sc1')
    gf = opt.get('gather', '')
    of = opt.get('out', '')
    a(f'''; FeatGraph (SDDMM sigmoid gate + SpMM) in one launch, one workgroup per CU.
{launch}
.amdgcn_target "amdgcn-amd-amdhsa--gfx950"
.text
.globl {KNAME}
.p2align 8
.type {KNAME},@function
{KNAME}:
    s_cmp_ge_u32 s2, {NWG}
    s_cbranch_scc1 L_end''')
    if st:
        a(f'    v_mov_b32 v{STV}, 0')
        a(f'    v_mov_b32 v{ATK}, 0')
    stamp(0)
    a('    s_load_dwordx16 s[4:19], s[0:1], 0')
    a(f'''
    s_and_b32 s{X0}, s2, 7
    s_lshl_b32 s{X0}, s{X0}, 5
    s_lshr_b32 s2, s2, 3
    s_or_b32 s2, s2, s{X0}''')
    if opt.get('cpf'):
        a(f'''
    s_getpc_b64 {sp(S0)}
I_pc:
    v_lshlrev_b32 v127, 7, v0
    v_cmp_gt_u32 vcc, A_full-I_pc, v127
    s_and_saveexec_b64 {sp(S1)}, vcc
    s_cbranch_execz I_c
    global_load_dword v127, v127, {sp(S0)}
I_c:
    s_mov_b64 exec, -1''')
    a(f'''
    s_mul_i32 s{X0}, s2, {CH*4}
    v_lshlrev_b32 v{T4}, 2, v0
    v_lshrrev_b32 v{T+4}, 6, v0
    v_add_u32 v{T}, s{X0}, v{T4}
    v_readfirstlane_b32 s{WID}, v{T+4}
    v_add_u32 v{T+1}, 4096, v{T}
    v_add_u32 v{T+2}, 8192, v{T}
    v_add_u32 v{T+3}, 12288, v{T}
    v_cmp_gt_u32 {sp(M3)}, {CH-3072}, v0
    v_lshlrev_b32 v{T16}, 4, v0
    v_mov_b32 v{ZERO}, 0
    v_mov_b32 v{T+4}, {EMPTY}
    v_mov_b32 v{T+5}, {EMPTY}
    v_mov_b32 v{T+6}, {EMPTY}
    v_mov_b32 v{T+7}, {EMPTY}
    s_waitcnt lgkmcnt(0)
    {f's_add_u32 s18, s18, {opt["wsoff"] << 20}' if opt.get('wsoff') else ''}
    {f's_addc_u32 s19, s19, 0' if opt.get('wsoff') else ''}
    {f'global_load_dword v{EPV}, v{ZERO}, s[18:19]      ; epoch word' if opt.get('epf') else ''}
    s_mov_b64 exec, {sp(M3)}
    s_cbranch_execz A_no3a
    global_load_dword v{ED+3}, v{T+3}, s[8:9]{opt.get('ef', '')}
    global_load_dword v{ES+3}, v{T+3}, s[6:7]{opt.get('ef', '')}
A_no3a:
    s_mov_b64 exec, -1''')
    for k in range(3):
        a(f"    global_load_dword v{ED+k}, v{T+k}, s[8:9]{opt.get('ef', '')}")
    for k in range(3):
        a(f"    global_load_dword v{ES+k}, v{T+k}, s[6:7]{opt.get('ef', '')}")
    skew = opt.get('skew', 0)
    xw = opt.get('xw', 0)
    xe = opt.get('xe', 0)
    cw = opt.get('cw', 0)
    wl = opt.get('wl', 0)
    assert opt.get('epf')
    def ldsfill():
        a(f"""
    v_add_u32 v{T}, {L_IMG}, v{T16}
    ds_write_b128 v{T}, {vr(T+4,4)}
    ds_write_b128 v{T}, {vr(T+4,4)} offset:16384
    s_cmp_ge_u32 s{WID}, 4
    s_cbranch_scc1 I_a
    ds_write_b128 v{T}, {vr(T+4,4)} offset:32768
    ds_write_b32 v{T4}, v{ZERO} offset:{L_ACNT}
I_a:""")
    def rowsetup():
        a(f"""
    v_and_b32 v{LANE}, 63, v0
    v_mov_b32 v{FOUR}, 4""")
        srd(a, SX, 4, X_BYTES)
        a(f"""
    s_cmp_lt_u32 s{WID}, 8
    s_cselect_b32 s{SW}, s10, s12
    s_cselect_b32 s{SW+1}, s11, s13
    v_lshrrev_b32 v{T}, 3, v{LANE}
    v_and_b32 v{T+1}, 7, v{LANE}
    v_xor_b32 v{T+1}, v{T+1}, v{T}
    v_lshlrev_b32 v{T+1}, 4, v{T+1}""")
        if skew:
            a(f"""
    v_lshl_add_u32 v{T}, v{T}, 4, s{WID}    ; local
    v_sub_u32 v{T+2}, s2, v{T}
    v_and_b32 v{T+2}, 255, v{T+2}
    v_lshl_or_b32 v{T}, v{T}, 8, v{T+2}     ; node
    v_lshl_add_u32 v{ROWOFF}, v{T}, 7, v{T+1}""")
        else:
            a(f"""
    v_lshlrev_b32 v{T}, 19, v{T}
    s_lshl_b32 s{X0}, s{WID}, 15
    s_lshl_b32 s{X0+1}, s2, 7
    s_add_u32 s{X0}, s{X0}, s{X0+1}
    v_add3_u32 v{ROWOFF}, v{T}, v{T+1}, s{X0}""")
        a(f"""
    s_lshl_b32 s{X0}, s{WID}, 10
    s_add_u32 m0, s{X0}, {L_XN}""")
    def wload():
        a(f'    v_and_b32 v{T+3}, 0x1ff0, v{T16}')
        a(f'    global_load_dwordx4 {vr(WD,4)}, v{T+3}, {sp(SW)}')
    def xload():
        a(f'    buffer_load_dwordx4 v{ROWOFF}, {sq(SX)}, 0 offen lds')
    def early():
        if xw in (0, 2, 4) and not wl:
            wload()
        if xw == 0:
            xload()
        if cw == 1:
            a(f"""
    s_mul_i32 s{PFT}, s2, {98*128}
    s_mul_i32 s{X0}, s{WID}, {7*128}
    s_add_u32 s{PFT}, s{PFT}, s{X0}
    v_lshlrev_b32 v{T}, 7, v{LANE}
    s_cmp_lt_u32 s{WID}, 14
    s_cselect_b32 exec_lo, 0x7f, 1
    s_mov_b32 exec_hi, 0
    buffer_load_dword v{ATK}, v{T}, {sq(SX)}, s{PFT} offen
    s_mov_b64 exec, -1""")
        if cw == 2:
            a(f"""
    s_mul_i32 s{PFT}, s2, {98*128}
    s_and_b32 s{X0}, s{WID}, 1
    s_mul_i32 s{X0}, s{X0}, {49*128}
    s_add_u32 s{PFT}, s{PFT}, s{X0}
    v_lshlrev_b32 v{T}, 7, v{LANE}
    s_cmp_ge_u32 s{WID}, 14
    s_cselect_b32 s{PFT}, s{PFT}, 0x7ffff000
    s_cselect_b32 exec_lo, -1, 1
    s_cselect_b32 exec_hi, 0x1ffff, 0
    buffer_load_dword v{ATK}, v{T}, {sq(SX)}, s{PFT} offen
    s_mov_b64 exec, -1""")
    if xe:
        rowsetup()
        if xe == 2:
            a('    s_barrier')
        early()
        ldsfill()
    else:
        ldsfill()
        rowsetup()
    a("""
    s_waitcnt lgkmcnt(0)
    s_barrier""")
    if not xe:
        early()
    pfpos = [0]
    def prefetch(n):
        lo, hi = pfpos[0], pfpos[0] + n
        pfpos[0] = hi
        m = ((1 << hi) - 1) ^ ((1 << lo) - 1)
        a(f'''
    s_lshr_b32 s{PFT}, s2, 3
    s_lshl_b32 s{PFT}, s{PFT}, 4
    s_add_u32 s{PFT}, s{PFT}, s{WID}
    s_mul_i32 s{PFT}, s{PFT}, {49*128}
    v_lshlrev_b32 v{T}, 7, v{LANE}
    s_mov_b32 exec_lo, 0x{m & 0xffffffff:x}
    s_mov_b32 exec_hi, 0x{m >> 32:x}
    buffer_load_dword v{ATK}, v{T}, {sq(SX)}, s{PFT} offen
    s_mov_b64 exec, -1''')
    p = 1 if cw else 0
    srd(a, SWS, 18, WS_USED)
    if opt.get('tlb'):
        sh = opt['tlb']
        n1 = -(-(SEG_OFF + 2*H1_OFF) // (16 << sh))
        n2 = -(-X_BYTES // (16 << sh))
        srd(a, SOUT, 14, X_BYTES)
        a(f'''
    s_mul_i32 s{PFT}, s{WID}, {n1}
    v_add_u32 v{T}, s{PFT}, v{LANE}
    v_lshlrev_b32 v{T}, {sh}, v{T}
    s_mul_i32 s{PFT}, s{WID}, {n2}
    v_add_u32 v{T+1}, s{PFT}, v{LANE}
    v_lshlrev_b32 v{T+1}, {sh}, v{T+1}
    s_mov_b64 exec, {(1 << n1) - 1}
    buffer_load_dword v{ATK}, v{T}, {sq(SWS)}, 0 offen
    s_mov_b64 exec, {(1 << n2) - 1}
    buffer_load_dword v{ATK}, v{T+1}, {sq(SOUT)}, 0 offen
    s_mov_b64 exec, -1''')
        p += 2
    if opt.get('pf1'):
        prefetch(opt['pf1'])
        p += 1
    nw = {0: 2, 1: 0, 2: 1, 3: 0, 4: 0 if wl else 1}[xw]
    y = (0 if opt.get('epf') else 1) + nw + p
    wdec = 1
    if opt.get('x_xnwait'):
        a('    s_waitcnt vmcnt(0)')
    stamp(1)
    a(f'''
    v_add_u32 v{T}, {L_LIST}, v{T16}
    ds_write_b128 v{T}, {vr(T+4,4)}
    s_cmp_ge_u32 s{WID}, 6
    s_cbranch_scc1 I_b
    ds_write_b128 v{T}, {vr(T+4,4)} offset:16384
I_b:
    v_and_b32 v{LBASE}, 15, v{LANE}
    v_mul_u32_u24 v{LBASE}, {GSTRIDE}, v{LBASE}
    v_add_u32 v{LBASE}, {L_LIST}, v{LBASE}
    v_and_b32 v{CNTA}, 0x7c, v{T4}
    s_cmp_lg_u32 s{WID}, 12
    s_cbranch_scc1 I_done
    v_cmp_gt_u32 vcc, 16, v{LANE}
    s_mov_b32 exec_hi, 0
    s_nop 0
    v_cndmask_b32 v{T+2}, 0, v{LBASE}, vcc
    ds_write_b32 v{CNTA}, v{T+2} offset:{L_BCNT}
    s_mov_b64 exec, 0xff
    v_cvt_f32_u32 v{T+2}, v{LANE}
    v_mul_f32 v{T+3}, v{T+2}, v{T+2}
    v_cvt_pk_bf16_f32 v{T+2}, v{T+3}, v{T+2}
    v_lshlrev_b32 v{T+3}, 4, v{LANE}
    ds_write_b32 v{T+3}, v{T+2} offset:{L_LUT}
    s_mov_b64 exec, -1
I_done:''')
    a(f'''
''')
    G = opt.get('grp', 2)
    lg = G.bit_length() - 1
    BLK = G * HSTRIDE
    a(f'''
    s_lshl_b32 s{X0}, s2, {6+lg}
    s_add_u32 s{X0}, s{X0}, {SEG_OFF}
    s_add_u32 s{X0+1}, s{X0}, {H1_OFF}
    s_lshr_b32 s{SEGB}, s2, {lg}
    s_mul_i32 s{SEGB}, s{SEGB}, {BLK}
    s_and_b32 s{S0}, s2, {G-1}
    s_lshl_b32 s{S0}, s{S0}, 6
    s_add_u32 s{SEGB}, s{SEGB}, s{S0}
    s_add_u32 s{SEGB}, s{SEGB}, {SEG_OFF}
    v_lshrrev_b32 v{T}, 2, v0
    v_and_b32 v{T+1}, 3, v0
    v_mul_u32_u24 v{IMGR}, {ISTRIDE}, v{T}
    v_lshl_add_u32 v{IMGR}, v{T+1}, 2, v{IMGR}
    v_add_u32 v{IMGR}, {L_IMG}, v{IMGR}
    v_lshrrev_b32 v{T+2}, {2+lg}, v0
    v_mul_u32_u24 v{STO}, {BLK}, v{T+2}
    v_and_b32 v{T+2}, {64*G-1}, v{T16}
    v_add_u32 v{STO}, v{STO}, v{T+2}
    v_lshlrev_b32 v{T+1}, 4, v{T+1}
    v_lshl_add_u32 v{PFD}, v{T}, {6+lg}, v{T+1}''')
    pair = 1
    LDV = PFD if pair else T16
    a(f'''
    s_mov_b32 s{SEMPTY}, {EMPTY}
    s_mov_b32 s{KTHR}, {L_IMG}
    s_mov_b32 s{K88}, 0x88888888
    s_mov_b32 s{K88+1}, 0x88888888
    v_bfe_u32 v{T}, v0, 3, 6
    v_and_b32 v{T+1}, 7, v0
    v_bfe_u32 v{T+2}, v{T}, 1, 1
    v_and_or_b32 v{T+2}, v{T}, 8, v{T+2}
    v_bfe_u32 v{T+3}, v{T}, 1, 2
    s_cmp_lt_u32 s{WID}, 8
    s_cselect_b64 {sp(S0)}, -1, 0
    s_mov_b32 s{S1}, {L_WV}
    s_cselect_b32 s{S1}, {L_WQ}, s{S1}
    s_bfe_u32 s{S1+1}, s{WID}, 0x20002
    s_cmp_eq_u32 s{S1+1}, 1
    s_cselect_b32 s{S1+1}, 4096, 0
    s_add_u32 s{S1}, s{S1}, s{S1+1}
    v_cndmask_b32 v{T+2}, v{T+3}, v{T+2}, {sp(S0)}
    v_lshlrev_b32 v{T+1}, 1, v{T+1}
    v_xor_b32 v{T+1}, v{T+1}, v{T+2}
    v_lshlrev_b32 v{T+1}, 3, v{T+1}
    v_lshl_add_u32 v{T+1}, v{T}, 7, v{T+1}
    v_add_u32 v{WSA}, s{S1}, v{T+1}
    v_xor_b32 v{WSA+1}, 8, v{WSA}''')
    xp = opt.get('xp', 0)
    a(f'''
    v_bfrev_b32 v{T+4}, -2''')
    def arank(k):
        if skew:
            a(f'''
    v_add_u32_sdwa v{B4+k}, v{ED+k}, v{ED+k} dst_sel:DWORD dst_unused:UNUSED_PAD src0_sel:BYTE_0 src1_sel:BYTE_1''')
        a(f'''
    v_lshlrev_b32_sdwa v{B4+k}, 2, v{B4+k if skew else ED+k} dst_sel:DWORD dst_unused:UNUSED_PAD src0_sel:DWORD src1_sel:BYTE_0
    ds_add_rtn_u32 v{PS+k}, v{B4+k}, v{FOUR} offset:{L_ACNT}''')
    def aentry(k):
        a(f'''
    v_lshrrev_b32 v{ED+k}, 8, v{ED+k}
    v_lshl_or_b32 v{ES+k}, v{ES+k}, 7, v{ED+k}
    v_mad_u32_u24 v{B4+k}, v{B4+k}, {ISTRIDE//4}, s{KTHR}''')
    def aput(k):
        a(f'''
    v_min_u32 v{PS+k}, {ISTRIDE-4}, v{PS+k}
    v_add_u32 v{PS+k}, v{PS+k}, v{B4+k}
    ds_write_b32 v{PS+k}, v{ES+k}''')
    a(f'    s_waitcnt vmcnt({y+3})')
    stamp(2)
    for k in range(3):
        arank(k)
    a(f'    s_waitcnt vmcnt({y})')
    for k in range(3):
        aentry(k)
    for k in range(3):
        a('    s_waitcnt lgkmcnt(2)')
        aput(k)
    a(f'''
    s_mov_b64 exec, {sp(M3)}
    s_cbranch_execz A_no3b''')
    arank(3)
    aentry(3)
    a('    s_waitcnt lgkmcnt(0)')
    aput(3)
    a(f'''
A_no3b:
    s_mov_b64 exec, -1
    s_waitcnt vmcnt({p + nw})
    v_readfirstlane_b32 s{EPOCH}, v{EPV}''')
    if xw == 3:
        wload()
        xload()
    if opt.get('pfr'):
        prefetch(opt['pfr'])
        p += 1
    a(f'''
    {f'ds_write_b64 v{WSA}, {vr(WD,2)}' if not wdec else ''}
    {f'ds_write_b64 v{WSA+1}, {vr(WD+2,2)}' if not wdec else ''}
    s_add_u32 s{EPOCH}, s{EPOCH}, 1
    s_lshl_b32 s{TAG}, s{EPOCH}, 22
    s_lshl_b32 s{TAG+1}, s{EPOCH}, 12
    s_and_b32 s{TAG+1}, s{TAG+1}, 0xffc00000
    s_lshl_b32 s{TAG+2}, s{EPOCH}, 2
    s_and_b32 s{TAG+2}, s{TAG+2}, 0xffc00000
    s_xor_b32 s{TAG+3}, s{TAG}, 0xffc00000
    s_waitcnt lgkmcnt(0)
    s_barrier''')
    stamp(3)
    a(f'''
    ds_read_b32 v48, v{IMGR} offset:128
    ds_read2_b32 {vr(40,2)}, v{IMGR} offset0:0 offset1:4
    ds_read2_b32 {vr(42,2)}, v{IMGR} offset0:8 offset1:12
    ds_read2_b32 {vr(44,2)}, v{IMGR} offset0:16 offset1:20
    ds_read2_b32 {vr(46,2)}, v{IMGR} offset0:24 offset1:28
    s_waitcnt lgkmcnt(4)
    v_cmp_ne_u32 vcc, s{SEMPTY}, v48
    s_waitcnt lgkmcnt(2)
    s_cbranch_vccnz A_full
A_pub:
    v_cmp_ne_u32 vcc, s{SEMPTY}, v43''')
    for r in range(4):
        a(f'    v_or_b32 v{40+r}, s{TAG+r}, v{40+r}')
    a(f'''
    buffer_store_dwordx4 {vr(40,4)}, v{STO}, {sq(SWS)}, s{X0} offen{sf}
    s_and_b64 {sp(S0)}, vcc, {sp(K88)}''')
    if opt.get('h1o'):
        a(f'''
    s_lshr_b64 {sp(S1)}, {sp(S0)}, 4
    s_or_b64 {sp(S0)}, {sp(S0)}, {sp(S1)}
    s_and_b32 s{S0}, s{S0}, 0x08080808
    s_and_b32 s{S0+1}, s{S0+1}, 0x08080808
    s_lshl_b64 {sp(S1)}, {sp(S0)}, 4
    s_or_b64 {sp(S0)}, {sp(S0)}, {sp(S1)}''')
    a(f'''
    s_wqm_b64 vcc, {sp(S0)}
    s_waitcnt lgkmcnt(0)''')
    for r in range(4):
        a(f'    v_or_b32 v{44+r}, s{TAG+r}, v{44+r}')
    a(f'''
''')
    h1f = opt.get('h1f', 0)
    if h1f:
        a(f'''
    v_and_b32 v{T+5}, 0x30, v{T16}
    v_lshlrev_b32 v{STO}, 1, v{STO}
    v_sub_u32 v{STO}, v{STO}, v{T+5}''')
    a(f'''
    v_cndmask_b32 v{STO}, v{T+4}, v{STO}, vcc
    buffer_store_dwordx4 {vr(44,4)}, v{STO}, {sq(SWS)}, s{X0+1} offen{sf}''')
    if h1f == 2:
        a(f'    buffer_store_dwordx4 {vr(44,4)}, v{STO}, {sq(SWS)}, s{X0+1} offen offset:64{sf}')
        p += 1
    H1V = LDV
    if h1f:
        H1V = PFD
        a(f'''
    v_lshlrev_b32 v{PFD}, 1, v{T16}
    v_sub_u32 v{PFD}, v{PFD}, v{T+5}''')
    if opt.get('pfb'):
        prefetch(opt['pfb'])
        p += 1
    stamp(4)
    if xw == 1:
        wload()
    if xw in (1, 2):
        xload()
    def wstage(n):
        a(f'''
    s_waitcnt vmcnt({n})
    ds_write_b64 v{WSA}, {vr(WD,2)}
    ds_write_b64 v{WSA+1}, {vr(WD+2,2)}''')
    if xw in (0, 2):
        wstage(p + 3)
    def stouch():
        step = opt.get('sstep', 128)
        a(f'''
    s_mul_i32 s{X0}, s2, {98*128}
    s_mul_i32 s{X0+1}, s{WID}, {7*128}
    s_add_u32 s{X0}, s{X0}, s{X0+1}
    s_min_u32 s{X0}, s{X0}, {X_BYTES - 7*128}
    s_add_u32 s{X0}, s4, s{X0}
    s_addc_u32 s{X0+1}, s5, 0''')
        for o in range(0, 7*128, step):
            a(f'    s_load_dword s101, {sp(X0)}, {o}')
    if xw == 4 and wl:
        wload()
    elif xw == 4:
        wstage(p + 2)
        if opt.get('stc'):
            a('    s_waitcnt lgkmcnt(0)')
            stouch()
    WQA, XNA = 88, 92
    a(f"""
    v_lshrrev_b32 v{T+5}, 4, v{LANE}        ; g
    v_bfe_u32 v{T+1}, v{LANE}, 2, 2
    v_lshl_add_u32 v{T+2}, v{T+5}, 3, v{T+1}
    v_bfe_u32 v{T+3}, v{T+2}, 1, 1
    v_and_or_b32 v{T+3}, v{T+2}, 8, v{T+3}
    v_and_b32 v{T+4}, 3, v{LANE}            ; c
    v_lshlrev_b32 v{T+6}, 1, v{T+4}
    v_xor_b32 v{T+3}, v{T+3}, v{T+6}
    v_lshlrev_b32 v{T+3}, 3, v{T+3}
    v_lshl_add_u32 v{T}, v{T+2}, 7, v{T+3}
    v_add_u32 v{WQA}, {L_WQ}, v{T}
    v_xor_b32 v{WQA+1}, 8, v{WQA}
    v_xor_b32 v{WQA+2}, 64, v{WQA}
    v_xor_b32 v{WQA+3}, 0x48, v{WQA}
    v_and_b32 v{T+7}, 7, v{LANE}
    v_xor_b32 v{T}, v{T+5}, v{T+7}
    v_lshlrev_b32 v{T}, 4, v{T}
    v_lshl_add_u32 v{T}, v{T+7}, 7, v{T}
    s_lshl_b32 s{X0}, s{WID}, {13 if xw == 4 else 10}
    s_add_u32 s{X0}, s{X0}, {L_RING + 7168 if xw == 4 else L_XN}
    v_add_u32 v{XNA}, s{X0}, v{T}
    v_xor_b32 v{XNA+1}, 64, v{XNA}""")
    srd(a, SOUT, 14, X_BYTES)
    srd(a, SSRC, 6, E*4)
    srd(a, SDST, 8, E*4)
    a(f"""
    s_add_u32 s{H1SO}, s{SEGB}, {H1_OFF}
    {f's_mul_i32 s{H1SO}, s2, {2*HSTRIDE}' if h1f else ''}
    {f's_add_u32 s{H1SO}, s{H1SO}, {SEG_OFF+H1_OFF}' if h1f else ''}
    s_mov_b32 s{AMASK}, 0x003fff80
    s_lshl_b32 s{RING}, s{WID}, 13
    s_add_u32 s{RING}, s{RING}, {L_RING}
    s_mov_b32 s{MODE}, 0
    s_mov_b32 s{GAVE}, 0
    s_mov_b32 s{LOM}, 0x00ff00ff
    s_mov_b32 s{LOM+1}, 0x00ff00ff
    v_and_b32 v{T+1}, 15, v{LANE}           ; i
    v_lshrrev_b32 v{T}, 3, v{LANE}
    v_and_b32 v{T+6}, 6, v{T}
    v_xor_b32 v{T+6}, v{T+6}, v{T+7}
    v_lshlrev_b32 v{CHK}, 4, v{T+6}
    s_mul_i32 s{X0}, s{WID}, {GSTRIDE}
    s_add_u32 s{X0}, s{X0}, {L_LIST}
    v_lshl_add_u32 v{EA0}, v{T}, 4, s{X0}
    v_bfe_u32 v{T+6}, v{LANE}, 3, 2
    v_lshl_add_u32 v{T+6}, v{T+7}, 2, v{T+6}
    v_lshl_add_u32 v{MAD0}, v{T+6}, 2, s{X0}
    v_and_b32 v{T+6}, 6, v{T+1}
    v_xor_b32 v{T+6}, v{T+6}, v{T+5}
    v_lshlrev_b32 v{T+6}, 4, v{T+6}
    v_lshl_add_u32 v{T+6}, v{T+1}, 7, v{T+6}
    v_add_u32 v{RA0}, s{RING}, v{T+6}
    v_xor_b32 v{RA1}, 64, v{RA0}
    v_lshrrev_b32 v{T+6}, 2, v{LANE}        ; row = 4g+r
    v_and_b32 v{T+1}, 6, v{T+6}
    v_bfe_u32 v{T+5}, v{LANE}, 1, 1
    v_xor_b32 v{T+1}, v{T+1}, v{T+5}
    v_lshlrev_b32 v{T+1}, 4, v{T+1}
    v_lshl_add_u32 v{T+1}, v{T+6}, 7, v{T+1}
    v_and_b32 v{T+5}, 1, v{LANE}
    v_lshl_add_u32 v{T+1}, v{T+5}, 3, v{T+1}
    v_add_u32 v{RT}, s{RING}, v{T+1}
    v_xor_b32 v{RT+1}, 32, v{RT}
    v_xor_b32 v{RT+2}, 64, v{RT}
    v_xor_b32 v{RT+3}, 0x60, v{RT}
    v_bfe_u32 v{T+5}, v{T+6}, 1, 2
    v_lshl_or_b32 v{T+5}, v{T+4}, 2, v{T+5}
    v_lshlrev_b32 v{T+5}, 3, v{T+5}
    v_lshl_add_u32 v{WVA}, v{T+6}, 7, v{T+5}
    v_lshrrev_b32 v{T+5}, 3, v{LANE}
    v_and_b32 v{T+5}, 6, v{T+5}
    v_xor_b32 v{T+5}, v{T+5}, v{T+7}
    v_lshlrev_b32 v{T+5}, 4, v{T+5}
    v_lshl_add_u32 v{T+5}, v{T+7}, 7, v{T+5}
    v_add_u32 v{EPV}, s{RING}, v{T+5}
    v_mov_b32 v{MA+1}, 0x00003f80
    v_mov_b32 v{MA+2}, 0
    v_mov_b32 v{MA+3}, 0
    v_mov_b32 v{MB}, 0
    v_mov_b32 v{MB+1}, 0
    v_mov_b32 v{MB+2}, 0
    v_mov_b32 v{MB+3}, 0
    v_cvt_f32_u32 v{T+5}, v{T+7}            ; j' = l&7
    v_mov_b32 v{T+6}, 0x71800000            ; BIG = 2^100
    v_mul_f32 v{T+7}, v{T+5}, v{T+6}
    v_mul_f32 v{T+5}, v{T+5}, v{T+7}
    v_mul_f32 v{T+7}, -2.0, v{T+7}
    s_mov_b32 exec_lo, 0xff0000ff
    s_mov_b32 exec_hi, 0
    v_cvt_pk_bf16_f32 v{MB}, v{T+6}, v{T+7}
    v_cvt_pk_bf16_f32 v{MB+1}, v{T+5}, 0
    s_mov_b64 exec, -1""")
    if xw != 4:
        for r in range(16):
            a(f'    v_mov_b32 v{ACC+r}, 0')
    for r in range(8):
        a(f'    v_mov_b32 v{QLO+r}, 0')
    for r in range(4, 8):
        a(f'    v_mov_b32 v{EN+r}, {EMPTY}')
    a(f"""
    s_mov_b32 s{POLLN}, 0
    s_mov_b32 s{KTHR}, 0x400000
    s_mov_b32 s{KFULL}, {FULLM}
    s_mov_b64 {sp(S0)}, -1
    s_mov_b64 {sp(S1)}, 0
""")
    if xw in (1, 3):
        wstage(1 if xw == 1 else 3)
    if wl:
        wstage(0)
    a(f"""
    s_waitcnt vmcnt(0) {'' if opt.get('stc') else 'lgkmcnt(0)'}
    s_barrier
    buffer_load_dwordx4 {vr(EN,4)}, v{LDV}, {sq(SWS)}, s{SEGB} offen{lf}
    ; ---- Q' = (own rows @ w_q) * (-log2e/8) in B-operand layout; columns 8..15 zero""")
    def xnlate():
        a(f"""
    s_add_u32 m0, s{RING}, 7168
    s_nop 0
    buffer_load_dwordx4 v{ROWOFF}, {sq(SX)}, 0 offen lds""")
    if xp == 1:
        xnlate()
    dreg = [QHI, QHI+4, S, S+4]
    wq = [ACC, ACC+8, XT, XT+8] if xw == 4 else [XA, XA+8, XA+16, XA+24]
    def xnread():
        a(f"""
    s_mov_b64 exec, {sp(LOM)}
    ds_read_b128 {vr(QLO,4)}, v{XNA}
    ds_read_b128 {vr(QLO+4,4)}, v{XNA+1}
    s_mov_b64 exec, -1""")
    def qmfma(blk):
        a(f'    v_mfma_f32_16x16x32_bf16 {vr(dreg[blk],4)}, {vr(wq[blk],4)}, {vr(QLO,4)}, 0')
        a(f'    v_mfma_f32_16x16x32_bf16 {vr(dreg[blk],4)}, {vr(wq[blk]+4,4)}, {vr(QLO+4,4)}, {vr(dreg[blk],4)}')
    if xw != 4:
        xnread()
    for blk in range(4):
        for ks in range(2):
            for h in range(2):
                a(f'    ds_read_b64_tr_b16 {vr(wq[blk]+ks*4+h*2,2)}, v{WQA+blk} offset:{8192*ks + 512*h}')
        if blk == 2:
            a('    s_waitcnt lgkmcnt(8)')
    if xw != 4:
        for blk in range(4):
            a(f'    s_waitcnt lgkmcnt({min(8, 12-4*blk) if blk else 12})')
            qmfma(blk)
    def qlate():
        for blk in range(4):
            qmfma(blk)
        for r in range(16):
            a(f'    v_mov_b32 v{ACC+r}, 0')
    def qfinish():
        a(f'    s_mov_b32 s{X0}, 0x{f32bits(-1.4426950408889634/8):08x}')
        a(f'    s_mov_b32 s{X0+1}, s{X0}')
        a('    s_nop 1')
        for blk in range(4):
            a(f'    v_pk_mul_f32 {vr(dreg[blk],2)}, {vr(dreg[blk],2)}, {sp(X0)}')
            a(f'    v_pk_mul_f32 {vr(dreg[blk]+2,2)}, {vr(dreg[blk]+2,2)}, {sp(X0)}')
        for blk in range(4):
            a(f'    v_cvt_pk_bf16_f32 v{QLO+2*blk}, v{dreg[blk]}, v{dreg[blk]+1}')
            a(f'    v_cvt_pk_bf16_f32 v{QLO+2*blk+1}, v{dreg[blk]+2}, v{dreg[blk]+3}')
        for r in range(8):
            a(f'    v_mov_b32_dpp v{QHI+r}, v{QLO+r} row_ror:8 row_mask:0xf bank_mask:0xf')
    qdef = opt.get('qdef', 0)
    if not qdef:
        qfinish()
    stamp(5)
    def check(h, dst):
        for r in range(4):
            a(f'    v_xor_b32 v{EN+4*h+r}, s{TAG+r}, v{EN+4*h+r}')
        a(f'''
    v_or3_b32 v{T}, v{EN+4*h}, v{EN+4*h+1}, v{EN+4*h+2}
    v_or_b32 v{T}, v{T}, v{EN+4*h+3}
    v_cmp_le_u32 {dst}, s{KTHR}, v{T}''')
    def brank(r, base, skip=None):
        m = VM + 2*r
        a(f'''
    v_cmp_ne_u32 {sp(m)}, s{SEMPTY}, v{EN+r}
    v_and_b32 v{G4+r}, 15, v{EN+r}
    v_lshlrev_b32 v{G4+r}, 2, v{G4+r}
    s_mov_b64 exec, {sp(m)}''')
        if skip:
            a(f'    s_cbranch_execz {skip}')
        a(f'''
    ds_add_rtn_u32 v{RK+r}, v{G4+r}, v{FOUR} offset:{L_BCNT}
    s_mov_b64 exec, {base}''')
    def bput(r):
        a(f'''
    s_mov_b64 exec, {sp(VM+2*r)}
    ds_write_b32 v{RK+r}, v{EN+r}''')
    rare = []
    def rankwords(ws):
        for r in ws:
            brank(r, sp(FR))
        for r in ws:
            a(f'    s_waitcnt lgkmcnt({len(ws)-1})')
            bput(r)
    def sort_rest():
        a(f'''
    v_min3_u32 v{T}, v{EN+1}, v{EN+2}, v{EN+3}
    v_med3_u32 v{T+1}, v{EN+1}, v{EN+2}, v{EN+3}
    v_max3_u32 v{EN+3}, v{EN+1}, v{EN+2}, v{EN+3}
    v_mov_b32 v{EN+1}, v{T}
    v_mov_b32 v{EN+2}, v{T+1}''')
    band = opt.get('band', 0)
    B1 = 64
    sw = opt.get('sw', 4)
    def absorb0(tag, nw=4):
        check(0, 'vcc')
        a(f'''
    s_wqm_b64 vcc, vcc
    s_andn2_b64 {sp(FR)}, {sp(S0)}, vcc
    s_mov_b64 {sp(S0)}, vcc
    s_mov_b64 exec, vcc
    s_cbranch_execz Z_nr{tag}
    s_add_u32 s{POLLN}, s{POLLN}, 1
    s_cmp_gt_u32 s{POLLN}, {opt.get('pollmax', 2000)}
    s_cbranch_scc1 Z_give{tag}
    buffer_load_dwordx4 {vr(EN,4)}, v{LDV}, {sq(SWS)}, s{SEGB} offen{lf}
Z_nr{tag}:
    s_mov_b64 exec, {sp(FR)}
    s_cbranch_execz Z_done{tag}
    v_cmp_ne_u32 {sp(N1)}, s{SEMPTY}, v{EN+3}
    v_cmp_eq_u32 vcc, s{KFULL}, v{EN}
    s_and_b64 {sp(N1)}, {sp(N1)}, {sp(K88)}
    s_wqm_b64 exec, {sp(N1)}
    {'s_mov_b64 exec, 0' if opt.get('x_noh1') else ''}
    s_cbranch_execz Z_nh{tag}
    s_or_b64 {sp(S1)}, {sp(S1)}, exec
    buffer_load_dwordx4 {vr(EN+4,4)}, v{H1V}, {sq(SWS)}, s{H1SO} offen{lf}
Z_nh{tag}:
    s_cbranch_vccnz Z_full{tag}
Z_rank{tag}:
    s_mov_b64 exec, {sp(FR)}''')
        if opt.get('srt') and tag == 'a':
            a(f'''
    v_min_u32 v{T}, v{EN}, v{EN+1}
    v_max_u32 v{EN+1}, v{EN}, v{EN+1}
    v_min_u32 v{T+1}, v{EN+2}, v{EN+3}
    v_max_u32 v{EN+3}, v{EN+2}, v{EN+3}
    v_min_u32 v{EN}, v{T}, v{T+1}
    v_max_u32 v{EN+2}, v{T}, v{T+1}''')
            if opt['srt'] == 2 and nw > 1:
                sort_rest()
        if band and tag == 'a':
            sort_rest()
            a(f'    s_mov_b32 s{X0}, {band << 7}')
            for r in range(2):
                a(f'''
    v_cmp_gt_u32 {sp(B1+2*r)}, s{X0}, v{EN+r}
    v_and_b32 v{G4+r}, 15, v{EN+r}
    v_lshlrev_b32 v{G4+r}, 2, v{G4+r}
    s_mov_b64 exec, {sp(B1+2*r)}
    ds_add_rtn_u32 v{RK+r}, v{G4+r}, v{FOUR} offset:{L_BCNT}
    s_mov_b64 exec, {sp(FR)}''')
            for r in range(2):
                a(f'''
    s_waitcnt lgkmcnt(1)
    s_mov_b64 exec, {sp(B1+2*r)}
    ds_write_b32 v{RK+r}, v{EN+r}''')
        else:
            rankwords(list(range(nw)))
        a(f'Z_done{tag}:')
        rare.append(tag)
    def absorb1():
        check(1, 'vcc')
        if opt.get('x_loseh1'):
            a(f'    s_and_b32 s{X0}, exec_lo, 0x20002000')
            a(f'    s_or_b32 vcc_lo, vcc_lo, s{X0}')
        a(f'''
    s_andn2_b64 {sp(FR)}, {sp(S1)}, vcc
    s_mov_b64 {sp(S1)}, vcc
    s_mov_b64 exec, vcc
    s_cbranch_execz Y_nr
    s_add_u32 s{POLLN}, s{POLLN}, 1
    s_cmp_gt_u32 s{POLLN}, {opt.get('pollmax1', opt.get('pollmax', 2000))}
    s_cbranch_scc1 Y_lost
    buffer_load_dwordx4 {vr(EN+4,4)}, v{H1V}, {sq(SWS)}, s{H1SO} offen{lf}
Y_nr:
    s_mov_b64 exec, {sp(FR)}''')
        for r in range(4, 8):
            brank(r, sp(FR), 'Y_done')
            a('    s_waitcnt lgkmcnt(0)')
            bput(r)
            a(f'    s_mov_b64 exec, {sp(FR)}')
        a('Y_done:')
    def dma(ereg, slot, qs=range(4)):
        for q in qs:
            if q == 3 and len(qs) == 1:
                a(f'    s_add_u32 m0, s{RING}, {4096*slot + 3072}')
            elif q == 0:
                a(f'    s_mov_b32 m0, s{RING}' if slot == 0 else f'    s_add_u32 m0, s{RING}, 4096')
            else:
                a('    s_add_u32 m0, m0, 1024')
            a(f'    v_and_or_b32 v{ereg+q}, v{ereg+q}, s{AMASK}, v{CHK}')
            a(f'    buffer_load_dwordx4 v{ereg+q}, {sq(SX)}, 0 offen{gf} lds')
    def complete(reg, no):
        a(f"""
    v_max3_u32 v{T}, v{reg}, v{reg+1}, v{reg+2}
    v_max_u32 v{T}, v{T}, v{reg+3}
    v_cmp_eq_u32 vcc, s{SEMPTY}, v{T}
    s_cbranch_vccnz {no}""")
    a(f"""
    s_mov_b32 s{ISSUED}, 0
    v_mov_b32 v{EA}, v{EA0}
    v_mov_b32 v{MAD}, v{MAD0}
    s_waitcnt vmcnt({1 if xp == 1 else 0})""")
    stamp(6)
    a('    s_setprio 3')
    absorb0('a', sw)
    settle = f"""
    s_or_b64 exec, {sp(S0)}, {sp(S1)}
    s_cselect_b32 s{OWNP}, 1, 0
    s_cbranch_execnz G_pend
    s_mov_b64 exec, 1
    ds_add_u32 v{ZERO}, v{FOUR} offset:{L_DONE}
G_pend:
    s_mov_b64 exec, -1
    s_waitcnt lgkmcnt(0)"""
    if xp == 2:
        a('    s_mov_b64 exec, -1')
        xnlate()
    if sw == 4:
        a(settle)
    else:
        a(f"""
    s_mov_b32 s{OWNP}, 2
    s_mov_b64 exec, -1
    s_waitcnt lgkmcnt(0)""")
    a('    s_barrier')
    stamp(7)
    rstamp(1)
    if xw == 4 and not xp:
        xnlate()
    if opt.get('hw', 16) < 16:
        a(f"""
    s_cmp_lt_u32 s{WID}, {opt['hw']}
    s_cbranch_scc1 G_more""")
        if sw < 4:
            a(f'    s_call_b64 {sp(LINK)}, L_s2')
        if opt.get('hw2', 0):
            a(f"""
    s_cmp_lt_u32 s{WID}, {opt['hw2']}
    s_cbranch_scc1 G_more""")
        a(f"""
    s_cmp_eq_u32 s{OWNP}, 0
    s_cbranch_scc1 G_more
    s_waitcnt vmcnt({1 if xw == 4 and xp != 1 else 0})
    s_call_b64 {sp(LINK)}, L_late""")
    a('G_more:')
    rstamp(2)
    a(f"""
    ds_read_b32 v{T+1}, v{ZERO} offset:{L_DONE}
    ds_read_b128 {vr(EE,4)}, v{EA0}
    ds_read_b128 {vr(T+4,4)}, v{EA0} offset:128
    s_cmp_eq_u32 s{ISSUED}, 1
    s_waitcnt lgkmcnt(0)
    s_cbranch_scc1 G_m1""")
    complete(EE, 'G_short')
    dma(EE, 0)
    a(f"""
    s_mov_b32 s{ISSUED}, 1
G_m1:""")
    complete(T+4, 'G_short')
    dma(T+4, 1, range(3) if xw == 4 else range(4))
    a(f"""
    s_mov_b32 s{ISSUED}, 2""")
    rstamp(3)
    if sw < 4:
        a(f"""
    s_cmp_lg_u32 s{OWNP}, 2
    s_cbranch_scc1 G_q
    s_call_b64 {sp(LINK)}, L_s2""")
    a('G_q:')
    if xw == 4:
        rstamp(4)
        a('    s_waitcnt vmcnt(7)')
        rstamp(5)
        xnread()
        a('    s_waitcnt lgkmcnt(0)')
        if not opt.get('q3l'):
            dma(T+4, 1, [3])
        qlate()
    a(f"""
G_go:""")
    if not opt.get('q3l'):
        a(f"    s_setprio {opt.get('p0', 2)}")
    if qdef:
        qfinish()
    if opt.get('q3l'):
        dma(T+4, 1, [3])
        a(f"    s_setprio {opt.get('p0', 2)}")
    a(f"""
    s_mov_b32 s{NT}, {opt.get('pb', 4)}
    s_mov_b32 s{NTI}, 0
B_go:
    ds_read_b32 v{M0R}, v{MAD}
    ds_read_b128 {vr(EE,4)}, v{EA} offset:256
    s_mov_b32 s{TT}, 1                      ; t+1
    s_waitcnt lgkmcnt(1)
    v_and_b32 v{M0R}, 0x70, v{M0R}""")
    stamp(8)
    a('B_loop:')
    pk = opt.get('pk', 0)
    th = opt.get('th', 242)
    th = (th // 100, th // 10 % 10, th % 10)
    def body(slot):
        so = slot * 4096
        mcur, mnext = (M0R, M1R) if slot == 0 else (M1R, M0R)
        eo = slot * 128
        pm = opt.get('prio', 1)
        if pm == 1 and slot == 0:
            a(f"""
    s_cmp_lt_u32 s{TT}, {th[0]}
    s_cbranch_scc1 B_p{slot}
    s_setprio 1
    s_cmp_lt_u32 s{TT}, 4
    s_cbranch_scc1 B_p{slot}
    s_sub_u32 s{X0}, s{NT}, s{TT}
    s_cmp_ge_u32 s{X0}, {th[2]}
    s_cbranch_scc1 B_p{slot}
    s_setprio 0
B_p{slot}:""")
        if pm == 3 and slot == 0:
            a(f"""
    s_cmp_lt_u32 s{TT}, {th[0]}
    s_cbranch_scc1 B_p{slot}
    s_setprio 1
    s_cmp_lt_u32 s{TT}, {th[1]}
    s_cbranch_scc1 B_p{slot}
    s_setprio 0
B_p{slot}:""")
        if pm == 4:
            a(f"""
    s_cmp_eq_u32 s{NTI}, 0
    s_cbranch_scc1 B_p{slot}
    s_sub_u32 s{X0}, s{NT}, s{TT}
    s_setprio 2
    s_cmp_ge_u32 s{X0}, {th[1]}
    s_cbranch_scc1 B_p{slot}
    s_setprio 1
    s_cmp_ge_u32 s{X0}, {th[2]}
    s_cbranch_scc1 B_p{slot}
    s_setprio 0
B_p{slot}:""")
        if pm == 2:
            a(f"""
    s_cmp_lt_u32 s{TT}, 4
    s_cbranch_scc1 B_q{slot}
    s_sub_u32 s{X0}, s{NT}, s{TT}
    s_setprio 3
    s_cmp_ge_u32 s{X0}, 3
    s_cbranch_scc1 B_p{slot}
    s_setprio 2
    s_cmp_ge_u32 s{X0}, 2
    s_cbranch_scc1 B_p{slot}
B_q{slot}:
    s_setprio 1
B_p{slot}:""")
        a(f'''
    ds_read_b32 v{MA}, v{mcur} offset:{L_LUT}
    ds_read_b32 v{mnext}, v{MAD} offset:{eo+128}
    s_cmp_lt_u32 s{TT}, s{NT}
    s_cbranch_scc1 B_w4_{slot}
    s_waitcnt vmcnt(0)
B_w4_{slot}:
    s_cmp_lg_u32 s{OWNP}, 0
    s_waitcnt vmcnt(4)
    s_cbranch_scc0 B_rd_{slot}
    {f's_cmp_lt_u32 s{TT}, 2' if opt.get('ll') and slot == 0 else ''}
    {f's_cbranch_scc1 B_rd_{slot}' if opt.get('ll') and slot == 0 else ''}
    s_call_b64 {sp(LINK)}, L_late
B_rd_{slot}:''')
        if opt.get('tprof'):
            a(f'''
    s_memrealtime s[98:99]
    s_min_u32 s100, s{TT}, 10
    s_waitcnt lgkmcnt(0)
    s_mov_b32 m0, s100
    v_writelane_b32 v{ATK}, s98, m0''')
        a(f'''
    ds_read_b128 {vr(XA,4)}, v{RA0} offset:{so}
    ds_read_b128 {vr(XA+4,4)}, v{RA1} offset:{so}
    ds_read_b128 {vr(XA+8,4)}, v{RA0} offset:{so+2048}
    ds_read_b128 {vr(XA+12,4)}, v{RA1} offset:{so+2048}''')
        for fb in range(4):
            a(f'    ds_read_b64_tr_b16 {vr(XT+4*fb,2)}, v{RT+fb} offset:{so}')
            a(f'    ds_read_b64_tr_b16 {vr(XT+4*fb+2,2)}, v{RT+fb} offset:{so+2048}')
        a(f'''
    s_add_u32 s{TT}, s{TT}, 1               ; t+2
    s_waitcnt lgkmcnt(12)
    {f'v_mfma_f32_16x16x16_bf16 {vr(S,4)}, {vr(MA,2)}, {vr(MB,2)}, 0' if opt.get('m16') else f'v_mfma_f32_16x16x32_bf16 {vr(S,4)}, {vr(MA,4)}, {vr(MB,4)}, 0'}
    v_and_b32 v{mnext}, 0x70, v{mnext}
    s_waitcnt lgkmcnt(11)
    v_mfma_f32_16x16x32_bf16 {vr(S,4)}, {vr(XA,4)}, {vr(QLO,4)}, {vr(S,4)}
    s_waitcnt lgkmcnt(10)
    v_mfma_f32_16x16x32_bf16 {vr(S,4)}, {vr(XA+4,4)}, {vr(QLO+4,4)}, {vr(S,4)}
    s_waitcnt lgkmcnt(9)
    v_mfma_f32_16x16x32_bf16 {vr(S,4)}, {vr(XA+8,4)}, {vr(QHI,4)}, {vr(S,4)}
    s_waitcnt lgkmcnt(8)
    v_mfma_f32_16x16x32_bf16 {vr(S,4)}, {vr(XA+12,4)}, {vr(QHI+4,4)}, {vr(S,4)}
    s_waitcnt lgkmcnt(0)
    s_cmp_lt_u32 s{TT}, s{NTI}
    s_cbranch_scc0 B_skip_{slot}
B_dma_{slot}:''')
        dma(EE, slot)
        a(f'''
    ds_read_b128 {vr(EE,4)}, v{EA} offset:{eo+384}
B_cont_{slot}:''')
        for r in range(4):
            a(f'    v_exp_f32 v{S+r}, v{S+r}')
        if slot == 1:
            a(f'    v_add_u32 v{EA}, 256, v{EA}')
            a(f'    v_add_u32 v{MAD}, 256, v{MAD}')
        if pk:
            a(f'    v_pk_add_f32 {vr(S,2)}, {vr(S,2)}, 1.0 op_sel_hi:[1,0]')
            a(f'    v_pk_add_f32 {vr(S+2,2)}, {vr(S+2,2)}, 1.0 op_sel_hi:[1,0]')
        else:
            for r in range(4):
                a(f'    v_add_f32 v{S+r}, 1.0, v{S+r}')
        for r in range(4):
            a(f'    v_rcp_f32 v{S+r}, v{S+r}')
        a(f'''
    v_cvt_pk_bf16_f32 v{PP}, v{S}, v{S+1}
    s_cmp_gt_u32 s{TT}, s{NT}
    v_cvt_pk_bf16_f32 v{PP+1}, v{S+2}, v{S+3}
    s_nop 0
    v_mov_b32_dpp v{PP+2}, v{PP} row_ror:8 row_mask:0xf bank_mask:0xf
    v_mov_b32_dpp v{PP+3}, v{PP+1} row_ror:8 row_mask:0xf bank_mask:0xf
    s_nop 1''')
        for fb in range(4):
            a(f'    v_mfma_f32_16x16x32_bf16 {vr(ACC+4*fb,4)}, {vr(XT+4*fb,4)}, {vr(PP,4)}, {vr(ACC+4*fb,4)}')
        a('    s_cbranch_scc1 B_loopdone' if slot == 0 else '    s_cbranch_scc0 B_loop')
    n0 = len(a.lines)
    body(0)
    body(1)
    drop = []
    if opt.get('x_halfacc'): drop += ['v_mfma_f32_16x16x32_bf16 v[32', 'v_mfma_f32_16x16x32_bf16 v[36', 'v_mov_b32_dpp']
    if opt.get('x_nomask'): drop += ['v_mfma_f32_16x16x32_bf16 v[72:75], v[80']
    if opt.get('x_notr'): drop += ['ds_read_b64_tr']
    if opt.get('x_nords'): drop += ['ds_read_b128 v[4', 'ds_read_b128 v[5', 'ds_read_b64_tr']
    if opt.get('x_nomfma'): drop += ['v_mfma']
    if opt.get('x_novalu'): drop += ['v_exp', 'v_rcp', 'v_add_f32', 'v_cvt', 'v_mov_b32_dpp', 'v_pk_add']
    if opt.get('bench'): drop += [f'v_add_u32 v{EA}, 256', f'v_add_u32 v{MAD}, 256']
    a.lines[n0:] = [l for l in a.lines[n0:] if not any(l.strip().startswith(d) for d in drop)]
    a(f'''
B_loopdone:
    s_cmp_lg_u32 s{MODE}, 0
    s_cbranch_scc1 C_next
B_epi:''')
    if opt.get('epi3'):
        a('    s_setprio 3')
    stamp(9)
    epi = opt.get('epi', 1)
    wve = opt.get('wve', 0)
    wv = [XA, XA+8, QLO, QHI]
    DO = XT
    def wvread(blks):
        for blk in blks:
            ad = WVA if blk == 0 else T+blk
            for ks in range(2):
                for h in range(2):
                    a(f'    ds_read_b64_tr_b16 {vr(wv[blk]+ks*4+h*2,2)}, v{ad} offset:{L_WV+(32*ks+16*h)*128}')
    def wvfirst():
        a(f"""
    v_xor_b32 v{T+1}, 8, v{WVA}
    v_xor_b32 v{T+2}, 16, v{WVA}
    v_xor_b32 v{T+3}, 24, v{WVA}""")
        wvread([0, 1, 2])
    if wve:
        a(f"""
    s_cmp_lg_u32 s{ISSUED}, 3
    s_cbranch_scc0 E_have""")
    wvfirst()
    a('E_have:')
    a('    s_waitcnt lgkmcnt(8)')
    wvread([3])
    if epi:
        a(f"""
    v_xor_b32 v{T+6}, 16, v{EPV}
    v_lshl_add_u32 v{T+5}, v{LANE}, 4, s{RING}""")
    else:
        a(f"""
    v_and_b32 v{T+4}, 7, v{LANE}
    v_lshlrev_b32 v{T+4}, 19, v{T+4}
    v_lshrrev_b32 v{T+5}, 4, v{LANE}
    v_lshl_add_u32 v{T+4}, v{T+5}, 5, v{T+4}
    s_lshl_b32 s{X0}, s{WID}, 15
    s_lshl_b32 s{X0+1}, s2, 7
    s_add_u32 s{PFT}, s{X0}, s{X0+1}""")
    for r in range(8):
        a(f'    v_cvt_pk_bf16_f32 v{S+r}, v{ACC+2*r}, v{ACC+2*r+1}')
    a('    s_nop 0')
    for blk in range(4):
        a(f'    s_waitcnt lgkmcnt({min(8, 12-4*blk)})')
        a(f'    v_mfma_f32_16x16x32_bf16 {vr(DO+4*blk,4)}, {vr(wv[blk],4)}, {vr(S,4)}, 0')
        a(f'    v_mfma_f32_16x16x32_bf16 {vr(DO+4*blk,4)}, {vr(wv[blk]+4,4)}, {vr(S+4,4)}, {vr(DO+4*blk,4)}')
    a(f'''
    s_cmp_lg_u32 s{WID}, 15
    s_cbranch_scc1 K_no2
    s_mov_b64 exec, 1
    s_cmp_lg_u32 s{GAVE}, 0
    s_cbranch_scc1 K_ticket
K_adv:
    v_mov_b32 v{T}, s{EPOCH}
    global_store_dword v{ZERO}, v{T}, s[18:19]
K_skip:
    s_mov_b64 exec, -1
K_no2:
    s_nop 2''')
    for r in range(4):
        a(f'    v_cvt_pk_bf16_f32 v{XA+r}, v{DO+2*r}, v{DO+2*r+1}')
    a(f'    s_mov_b64 exec, {sp(LOM)}')
    if epi:
        a(f'    ds_write_b128 v{EPV}, {vr(XA,4)}')
    else:
        a(f'    buffer_store_dwordx4 {vr(XA,4)}, v{T+4}, {sq(SOUT)}, s{PFT} offen{of}')
    for r in range(4, 8):
        a(f'    v_cvt_pk_bf16_f32 v{XA+r}, v{DO+2*r}, v{DO+2*r+1}')
    if epi:
        a(f'''
    ds_write_b128 v{T+6}, {vr(XA+4,4)}
    s_mov_b64 exec, -1
    ds_read_b128 {vr(XA+8,4)}, v{T+5}
    s_waitcnt lgkmcnt(0)
    buffer_store_dwordx4 {vr(XA+8,4)}, v{ROWOFF}, {sq(SOUT)}, 0 offen{of}''')
    else:
        a(f'''
    buffer_store_dwordx4 {vr(XA+4,4)}, v{T+4}, {sq(SOUT)}, s{PFT} offen offset:16{of}
    s_mov_b64 exec, -1''')
    if st:
        stamp(10)
        a('    s_waitcnt vmcnt(0)')
        stamp(11)
        if opt.get('tprof'):
            a(f'''
    s_mov_b64 exec, 0x7fe
    v_mov_b32 v{STV}, v{ATK}
    s_mov_b64 exec, -1''')
        a(f'''
    s_sub_u32 s18, s18, {opt.get('wsoff', 0) << 20}
    s_subb_u32 s19, s19, 0
    s_add_u32 s{X0}, s18, {STAMP_OFF}
    s_addc_u32 s{X0+1}, s19, 0
    s_lshl_b32 s{X0+2}, s2, 4
    s_add_u32 s{X0+2}, s{X0+2}, s{WID}
    s_lshl_b32 s{X0+2}, s{X0+2}, 6
    v_lshl_add_u32 v{T}, v{LANE}, 2, s{X0+2}
    s_mov_b64 exec, 0xffff
    global_store_dword v{T}, v{STV}, {sp(X0)}''')
        if 'amp' in opt:
            a(f'''
    v_readlane_b32 s60, v{STV}, 0
    v_readlane_b32 s61, v{STV}, {opt['amp']}
    v_readlane_b32 s62, v{STV}, 11
    s_sub_u32 s61, s61, s60
    s_mul_i32 s61, s61, {opt.get('ampk', 2)}
    s_min_u32 s61, s61, 20000
D_spin:
    s_memrealtime s[98:99]
    s_waitcnt lgkmcnt(0)
    s_sub_u32 s98, s98, s62
    s_cmp_lt_u32 s98, s61
    s_cbranch_scc1 D_spin''')
    a(f'''
L_end:
    s_endpgm
''')
    for slot in range(2):
        a(f'''
B_skip_{slot}:
    s_cmp_lg_u32 s{NTI}, 0
    s_cbranch_scc1 B_idle_{slot}
    s_mov_b32 s{RET}, {slot}
    s_cmp_ge_u32 s{TT}, {opt.get('pb', 4)}
    s_cbranch_scc1 F_final''')
        complete(EE, f'B_again_{slot}')
        a(f'''
    s_branch B_dma_{slot}
B_again_{slot}:
    ds_read_b128 {vr(EE,4)}, v{EA} offset:{slot*128+256}
    s_waitcnt lgkmcnt(0)''')
        complete(EE, 'F_final')
        a(f'''
    s_branch B_dma_{slot}
F_ret_{slot}:
    ds_read_b128 {vr(EE,4)}, v{EA} offset:{slot*128+256}
    s_waitcnt lgkmcnt(0)
    s_cmp_lt_u32 s{TT}, s{NT}
    s_cbranch_scc1 B_dma_{slot}
B_idle_{slot}:''')
        if wve:
            a(f'''
    s_cmp_le_u32 s{TT}, s{NT}
    s_cbranch_scc1 B_id2_{slot}
    s_cmp_lg_u32 s{MODE}, 0
    s_cbranch_scc1 B_id2_{slot}
    s_mov_b32 s{ISSUED}, 3''')
            wvfirst()
            a(f'    s_branch B_cont_{slot}')
            a(f'B_id2_{slot}:')
        a(f'''
    s_nop 7
    s_branch B_cont_{slot}''')
    a(f"""
L_late:
    s_mov_b64 exec, {sp(S1)}
    s_cbranch_execz Y_done""")
    absorb1()
    a(f"""
    s_mov_b64 exec, {sp(S0)}
    s_cbranch_execz Z_doneb""")
    absorb0('b')
    a(f"""
    s_or_b64 exec, {sp(S0)}, {sp(S1)}
    s_cbranch_execnz L_ret
    s_mov_b32 s{OWNP}, 0
    s_mov_b64 exec, 1
    ds_add_u32 v{ZERO}, v{FOUR} offset:{L_DONE}""")
    if st:
        a(f'    v_writelane_b32 v{STV}, s{POLLN}, 15')
        a('    s_memrealtime s[98:99]')
        a('    s_waitcnt lgkmcnt(0)')
        a(f'    v_writelane_b32 v{STV}, s98, 7')
    a(f"""
L_ret:
    s_mov_b64 exec, -1
    s_waitcnt lgkmcnt(0)
    s_setpc_b64 {sp(LINK)}
G_short:
    v_readfirstlane_b32 s{X0}, v{T+1}
    s_cmp_eq_u32 s{OWNP}, 0
    s_cbranch_scc1 G_s2""")
    if sw < 4:
        a(f"""
    s_cmp_lg_u32 s{OWNP}, 2
    s_cbranch_scc1 G_s1
    s_call_b64 {sp(LINK)}, L_s2
    s_branch G_more
L_s2:
    s_mov_b64 exec, {sp(FR)}""")
        if opt.get('srt') == 2 and sw == 1:
            sort_rest()
        if band:
            for r in range(2):
                a(f'''
    v_cmp_ne_u32 {sp(VM+2*r)}, s{SEMPTY}, v{EN+r}
    s_andn2_b64 {sp(VM+2*r)}, {sp(VM+2*r)}, {sp(B1+2*r)}
    s_mov_b64 exec, {sp(VM+2*r)}
    ds_add_rtn_u32 v{RK+r}, v{G4+r}, v{FOUR} offset:{L_BCNT}
    s_mov_b64 exec, {sp(FR)}''')
            brank(2, sp(FR))
            brank(3, sp(FR))
            for r in range(4):
                a('    s_waitcnt lgkmcnt(3)')
                bput(r)
        else:
            rankwords(list(range(sw, 4)))
        a(settle)
        a(f'    s_setpc_b64 {sp(LINK)}')
        a('G_s1:')
    a(f"""
    s_waitcnt vmcnt(0)
    s_call_b64 {sp(LINK)}, L_late
    s_branch G_more
G_s2:
    s_setprio 0
    s_cmp_lt_u32 s{X0}, 64
    s_cbranch_scc1 G_more""")
    if xw == 4:
        a('    s_waitcnt vmcnt(0)')
        xnread()
        a('    s_waitcnt lgkmcnt(0)')
        qlate()
    if qdef:
        qfinish()
    a(f'''
B_counts:
    s_mov_b32 s{RET}, 2
F_final:
    s_cmp_eq_u32 s{OWNP}, 0
    s_cbranch_scc1 F_spin
    s_waitcnt vmcnt(0)
    s_call_b64 {sp(LINK)}, L_late
    s_branch F_final
F_spin:
    ds_read_b32 v{T+1}, v{CNTA} offset:{L_BCNT}
    s_waitcnt lgkmcnt(0)
    v_readlane_b32 s{X0}, v{T+1}, 26
    v_sub_u32 v{T+3}, v{T+1}, v{LBASE}
    s_cmp_lt_u32 s{X0}, 64
    s_cbranch_scc1 F_spin
    v_cmp_ne_u32 {sp(X0)}, 0, v{T+1}
    v_cmp_lt_u32 vcc, {GSTRIDE}, v{T+3}
    v_readlane_b32 s{NT}, v{T+3}, s{WID}
    s_and_b32 s{X0}, s{X0}, 0x9ff0000
    s_and_b32 s{X0+1}, vcc_lo, 0xffff
    s_or_b32 s{NTI}, s{X0+1}, s{X0}
    s_or_b32 s{NTI}, s{NTI}, s{MODE}
    s_cbranch_scc1 C_slowcnt
B_cntok:
    s_add_u32 s{NT}, s{NT}, 127
    s_lshr_b32 s{NT}, s{NT}, 7              ; tiles
    s_mov_b32 s{NTI}, s{NT}
    s_cbranch_scc0 B_loopdone
    s_cmp_eq_u32 s{RET}, 0
    s_cbranch_scc1 F_ret_0
    s_cmp_eq_u32 s{RET}, 1
    s_cbranch_scc1 F_ret_1
    s_branch B_first
K_ticket:
    v_mov_b32 v{T+1}, 1
    global_atomic_add v{ATK}, v{ZERO}, v{T+1}, s[16:17] sc0 sc1
    s_waitcnt vmcnt(0)
    v_readfirstlane_b32 s{X0}, v{ATK}
    s_cmp_eq_u32 s{X0}, {NWG-1}
    s_cbranch_scc1 K_adv
    s_branch K_skip
B_first:
    ds_read_b128 {vr(XA,4)}, v{EA}
    ds_read_b128 {vr(XA+4,4)}, v{EA} offset:128
    s_waitcnt lgkmcnt(0)
    s_cmp_eq_u32 s{ISSUED}, 1
    s_cbranch_scc1 B_f1''')
    dma(XA, 0)
    a(f'''
B_f1:
    s_cmp_lt_u32 s{NT}, 2
    s_cbranch_scc1 B_go''')
    dma(XA+4, 1)
    a('    s_branch B_go')
    def drop_lines():
        for r in range(4):
            a(f'    v_mov_b32 v{EN+r}, {EMPTY}')
        a(f'''
    v_lshrrev_b32 v{T}, 2, v0
    v_lshrrev_b32 v{T+1}, 5, v{T}
    v_lshlrev_b32 v{T+1}, 2, v{T+1}
    v_lshlrev_b32 v{T}, v{T}, 1
    ds_or_b32 v{T+1}, v{T} offset:{L_RESC}''')
    a(f'''
A_full:
    s_wqm_b64 exec, vcc
    v_mov_b32 v40, {FULLM}
    v_mov_b32 v41, {EMPTY}
    v_mov_b32 v42, {EMPTY}
    v_mov_b32 v43, {EMPTY}
    s_mov_b64 exec, -1
    s_branch A_pub''')
    for tag in rare:
        a(f'''
Z_give{tag}:
    ds_write_b32 v{ZERO}, v{FOUR} offset:{L_GAVE}''')
        drop_lines()
        a(f'''
    s_mov_b64 {sp(S0)}, 0
    s_mov_b32 s{POLLN}, 0
    s_branch Z_nr{tag}
Z_full{tag}:
    s_mov_b64 exec, vcc''')
        drop_lines()
        a(f'    s_branch Z_rank{tag}')
    a(f'''
Y_lost:
    s_wqm_b64 exec, exec
    s_andn2_b64 {sp(FR)}, {sp(FR)}, exec
    ds_write_b32 v{ZERO}, v{FOUR} offset:{L_REDO}''')
    for r in range(4, 8):
        a(f'    v_mov_b32 v{EN+r}, {EMPTY}')
    drop_lines()
    a(f'''
    s_mov_b64 {sp(S1)}, 0
    s_mov_b32 s{POLLN}, 0
    s_branch Y_nr
C_slowcnt:
    s_cmp_lg_u32 s{MODE}, 0
    s_cbranch_scc1 C_careful''')
    for k in range(8):
        a(f'    v_readlane_b32 s{RESC+k}, v{T+1}, {16+k}')
    a(f'''
    v_readlane_b32 s{GAVE}, v{T+1}, 25
    s_mov_b32 s{MODE}, 2
    s_cmp_lg_u32 s{X0+1}, 0
    s_cbranch_scc1 C_redo
    s_bitcmp1_b32 s{X0}, 27
    s_cbranch_scc1 C_redo
    s_mov_b32 s{MODE}, 1
    s_branch B_cntok
C_redo:
    ; a list ran over its neighbour: forget what was accumulated and redo all entries carefully''')
    for r in range(16):
        a(f'    v_mov_b32 v{ACC+r}, 0')
    a(f'''
    s_branch C_next
C_careful:
    s_min_u32 s{NT}, s{NT}, {GSTRIDE}
    s_bitcmp1_b32 s{X0}, 24
    s_cselect_b32 s{MODE}, 2, 1
    s_branch B_cntok
C_next:
    s_setprio 0
    s_mov_b32 s{ISSUED}, 0
    s_waitcnt vmcnt(0) lgkmcnt(0)
    s_barrier
    s_cmp_eq_u32 s{MODE}, 2
    s_cbranch_scc1 C_round
    s_mov_b32 s{X0}, -1''')
    for k in range(7, -1, -1):
        a(f'''
    s_ff1_i32_b32 s{X0+1}, s{RESC+k}
    s_add_u32 s{X0+1}, s{X0+1}, {32*k}
    s_cmp_lg_u32 s{RESC+k}, 0
    s_cselect_b32 s{X0}, s{X0+1}, s{X0}''')
    a(f'''
    s_cmp_eq_u32 s{X0}, -1
    s_cbranch_scc1 B_epi
    s_lshr_b32 s{X0+1}, s{X0}, 5
    s_lshl_b32 s{X0+2}, 1, s{X0}''')
    for k in range(8):
        a(f'''
    s_andn2_b32 s{X0+3}, s{RESC+k}, s{X0+2}
    s_cmp_eq_u32 s{X0+1}, {k}
    s_cselect_b32 s{RESC+k}, s{X0+3}, s{RESC+k}''')
    a(f'''
    s_mul_i32 s{X0}, s{X0}, {CH*4}''')
    for k in range(4):
        a(f'''
    buffer_load_dword v{ED+k}, v{T4}, {sq(SDST)}, s{X0} offen
    buffer_load_dword v{ES+k}, v{T4}, {sq(SSRC)}, s{X0} offen
    s_add_u32 s{X0}, s{X0}, 4096''')
    for r in range(4, 8):
        a(f'    v_mov_b32 v{EN+r}, {EMPTY}')
    a(f'    v_mov_b32 v{T+1}, {EMPTY}')
    a('    s_waitcnt vmcnt(0)')
    for k in range(4):
        a(f'''
    {f'v_add_u32_sdwa v{T}, v{ED+k}, v{ED+k} dst_sel:DWORD dst_unused:UNUSED_PAD src0_sel:BYTE_0 src1_sel:BYTE_1' if skew else f'v_mov_b32 v{T}, v{ED+k}'}
    v_and_b32 v{T}, 255, v{T}
    v_cmp_eq_u32 vcc, s2, v{T}
    v_lshrrev_b32 v{ED+k}, 8, v{ED+k}
    v_lshl_or_b32 v{ES+k}, v{ES+k}, 7, v{ED+k}''')
        if k == 3:
            a(f'    s_and_b64 vcc, vcc, {sp(M3)}')
        a(f'    v_cndmask_b32 v{EN+k}, v{T+1}, v{ES+k}, vcc')
    a(f'''
C_round:
    v_mov_b32 v{T+4}, {EMPTY}
    v_mov_b32 v{T+5}, {EMPTY}
    v_mov_b32 v{T+6}, {EMPTY}
    v_mov_b32 v{T+7}, {EMPTY}
    v_add_u32 v{T}, {L_LIST}, v{T16}
    ds_write_b128 v{T}, {vr(T+4,4)}
    s_cmp_ge_u32 s{WID}, 6
    s_cbranch_scc1 C_i1
    ds_write_b128 v{T}, {vr(T+4,4)} offset:16384
C_i1:
    s_cmp_lg_u32 s{WID}, 12
    s_cbranch_scc1 C_i2
    s_mov_b64 exec, 0xffff
    ds_write_b32 v{CNTA}, v{LBASE} offset:{L_BCNT}
    ds_write_b32 v{ZERO}, v{ZERO} offset:{L_PEND}
    s_mov_b64 exec, -1
C_i2:
    s_waitcnt lgkmcnt(0)
    s_barrier
    s_mov_b32 s{X0+4}, {GSTRIDE//4}
    s_mov_b32 s{X0+5}, {L_LIST+GSTRIDE}''')
    for r in range(8):
        brank(r, '-1')
        a(f'''
    v_mul_u32_u24 v{T+3}, s{X0+4}, v{G4+r}
    v_add_u32 v{T+3}, s{X0+5}, v{T+3}
    s_mov_b64 exec, {sp(VM+2*r)}
    s_waitcnt lgkmcnt(0)
    v_cmp_lt_u32 vcc, v{RK+r}, v{T+3}
    s_and_saveexec_b64 {sp(X0+6)}, vcc
    ds_write_b32 v{RK+r}, v{EN+r}
    v_mov_b32 v{EN+r}, {EMPTY}
    s_andn2_b64 exec, {sp(X0+6)}, exec
    ds_write_b32 v{ZERO}, v{FOUR} offset:{L_PEND}
    s_mov_b64 exec, -1''')
    a(f'''
    v_mov_b32 v{EA}, v{EA0}
    v_mov_b32 v{MAD}, v{MAD0}
    s_waitcnt lgkmcnt(0)
    s_barrier
L_last:
    s_branch B_counts''')
    if opt.get('red'):
        gen_red(a, opt)
    def kd(name, vg, sg):
        a(f'''
.p2align 6
.amdhsa_kernel {name}
  .amdhsa_next_free_vgpr {vg}
  .amdhsa_next_free_sgpr {sg}
  .amdhsa_accum_offset {vg}
  .amdhsa_group_segment_fixed_size 0
  .amdhsa_kernarg_size 64
  .amdhsa_user_sgpr_count 2
  .amdhsa_user_sgpr_kernarg_segment_ptr 1
  .amdhsa_system_sgpr_workgroup_id_x 1
.end_amdhsa_kernel''')
    a('.section .rodata,"a"')
    kd(KNAME, 128, 102)
    if opt.get('red'):
        kd('red_kernel', 32, 48)
    return a.text()

if __name__ == '__main__':
    out = sys.argv[1]
    opt = {}
    for kv in sys.argv[2:]:
        k, v = kv.split('=')
        try:
            v = int(v)
        except ValueError:
            v = '' if v == 'none' else ' ' + v.replace('+', ' ')
        opt[k] = v
    open(out, 'w').write(build(opt))
```

```python
import sys, struct
from gen3 import gen_red

N, E, D = 25000, 800000, 64
NWG = 256
CH = E // NWG
HSTRIDE = 16384 + 128
SEG_OFF = 4096
H1_OFF = 256 * HSTRIDE
WS_USED = SEG_OFF + 2 * H1_OFF
X_BYTES = N * 128
EMPTY = 0x003FFFFF
FULLM = 0x003FFFFE
KNAME = 'standalone__kernel_systems_refs_featgraph__graph_kernel'

L_ACNT = 0
L_BCNT = 1024
L_RESC = 1088
L_PEND = 1120
L_GAVE = 1124
L_DONE = 1128
L_REDO = 1132
L_LUT = 1152
L_WV = 2048
L_RING = 10240
L_LIST = L_RING + 131072
GSTRIDE = 1408
L_XN = L_RING + 32768
L_WQ = L_RING + 65536
ISTRIDE = 144
L_IMG = L_LIST - 256 * ISTRIDE
LDS = 163840
STAMP_OFF = 0x1000000

def f32bits(x):
    return struct.unpack('<I', struct.pack('<f', x))[0]

class Asm:
    def __init__(self):
        self.lines = []
    def __call__(self, s):
        for ln in s.strip('\n').split('\n'):
            if ln.strip():
                self.lines.append(ln)
    def text(self):
        return '\n'.join(self.lines) + '\n'

def vr(lo, n):
    return f'v[{lo}:{lo+n-1}]'
def sp(lo):
    return f's[{lo}:{lo+1}]'
def sq(lo):
    return f's[{lo}:{lo+3}]'

def srd(a, d, lo, nbytes):
    a(f'    s_mov_b32 s{d}, s{lo}')
    a(f'    s_mov_b32 s{d+1}, s{lo+1}')
    a(f'    s_mov_b32 s{d+2}, {nbytes}')
    a(f'    s_mov_b32 s{d+3}, 0x00020000')

LANE, T4, T16, FOUR, ZERO, ROWOFF, WVA = 1, 2, 3, 4, 5, 6, 7
QLO, QHI, ACC, XA, XT, S, PP, MA, MB, EE = 8, 16, 24, 40, 56, 72, 76, 80, 84, 88
M0R, M1R, RA0, RA1, RT, EA, MAD, CHK, EA0 = 92, 93, 94, 95, 96, 100, 101, 102, 103
T = 104
EN = 112
MAD0, PFD, ATK, STV, CNTA, EPV, LBASE = 120, 121, 122, 123, 124, 125, 126
ED, ES, B4, PS = 40, 44, 48, 52
WD, XN = 56, 60
IMGR, STO, WSA = 68, 69, 70
G4, RK = 40, 48

GAVE = 3
SX, SSRC, SDST, SW, EPOCH, ISSUED, SOUT, SWS = 20, 24, 28, 32, 34, 35, 36, 40
WID, SEGB, AMASK, RING, NT, TT = 44, 45, 46, 47, 48, 49
TAG = 50
SEMPTY, MODE, LOM, M3 = 54, 55, 56, 58
RESC = 60
FR, N1 = 60, 62
VM = 68
X0 = 84
H1SO, KFULL, S0, S1, K88, KTHR, PFT, POLLN, PRIME = 86, 87, 88, 90, 92, 94, 95, 96, 97
NTI, RET = 32, 33
OWNP, LINK = 97, 10

def build(opt):
    a = Asm()
    st = opt.get('stamps')
    def rstamp(k):
        if opt.get('rp'):
            a('    s_memrealtime s[98:99]')
            a('    s_waitcnt lgkmcnt(0)')
            a(f'    v_writelane_b32 v{STV}, s98, {k}')
    def stamp(k):
        if opt.get('rp') and k in (1, 2, 3, 4, 5):
            return
        if st:
            ck = {0: 14, 7: 12, 9: 13}.get(k)
            if ck:
                a('    s_memtime s[100:101]')
            a('    s_memrealtime s[98:99]')
            a('    s_waitcnt lgkmcnt(0)')
            a(f'    v_writelane_b32 v{STV}, s98, {k}')
            if ck:
                a(f'    v_writelane_b32 v{STV}, s100, {ck}')
    launch = (f'; @launch kernel={KNAME} grid=({NWG},1,1) block=(1024,1,1) lds={LDS}' if opt.get('list') else
              f'; @launch grid=({NWG},1,1) block=(1024,1,1) lds={LDS}')
    if opt.get('red'):
        launch += '\n; @launch kernel=red_kernel grid=(1,1,1) block=(64,1,1) lds=0'
    sf = opt.get('st', ' sc1')
    lf = opt.get('ld', ' sc1')
    gf = opt.get('gather', '')
    of = opt.get('out', '')
    a(f'''; FeatGraph (SDDMM sigmoid gate + SpMM) in one launch, one workgroup per CU.
{launch}
.amdgcn_target "amdgcn-amd-amdhsa--gfx950"
.text
.globl {KNAME}
.p2align 8
.type {KNAME},@function
{KNAME}:
    s_cmp_ge_u32 s2, {NWG}
    s_cbranch_scc1 L_end''')
    if st:
        a(f'    v_mov_b32 v{STV}, 0')
        a(f'    v_mov_b32 v{ATK}, 0')
    stamp(0)
    a('    s_load_dwordx16 s[4:19], s[0:1], 0')
    a(f'''
    s_and_b32 s{X0}, s2, 7
    s_lshl_b32 s{X0}, s{X0}, 5
    s_lshr_b32 s2, s2, 3
    s_or_b32 s2, s2, s{X0}''')
    if opt.get('cpf'):
        a(f'''
    s_getpc_b64 {sp(S0)}
I_pc:
    v_lshlrev_b32 v127, 7, v0
    v_cmp_gt_u32 vcc, A_full-I_pc, v127
    s_and_saveexec_b64 {sp(S1)}, vcc
    s_cbranch_execz I_c
    global_load_dword v127, v127, {sp(S0)}
I_c:
    s_mov_b64 exec, -1''')
    a(f'''
    s_mul_i32 s{X0}, s2, {CH*4}
    v_lshlrev_b32 v{T4}, 2, v0
    v_lshrrev_b32 v{T+4}, 6, v0
    v_add_u32 v{T}, s{X0}, v{T4}
    v_readfirstlane_b32 s{WID}, v{T+4}
    v_add_u32 v{T+1}, 4096, v{T}
    v_add_u32 v{T+2}, 8192, v{T}
    v_add_u32 v{T+3}, 12288, v{T}
    v_cmp_gt_u32 {sp(M3)}, {CH-3072}, v0
    v_lshlrev_b32 v{T16}, 4, v0
    v_mov_b32 v{ZERO}, 0
    v_mov_b32 v{T+4}, {EMPTY}
    v_mov_b32 v{T+5}, {EMPTY}
    v_mov_b32 v{T+6}, {EMPTY}
    v_mov_b32 v{T+7}, {EMPTY}
    s_waitcnt lgkmcnt(0)
    {f's_add_u32 s18, s18, {opt["wsoff"] << 20}' if opt.get('wsoff') else ''}
    {f's_addc_u32 s19, s19, 0' if opt.get('wsoff') else ''}
    {f'global_load_dword v{EPV}, v{ZERO}, s[18:19]      ; epoch word' if opt.get('epf') else ''}
    s_mov_b64 exec, {sp(M3)}
    s_cbranch_execz A_no3a
    global_load_dword v{ED+3}, v{T+3}, s[8:9]{opt.get('ef', '')}
    global_load_dword v{ES+3}, v{T+3}, s[6:7]{opt.get('ef', '')}
A_no3a:
    s_mov_b64 exec, -1''')
    for k in range(3):
        a(f"    global_load_dword v{ED+k}, v{T+k}, s[8:9]{opt.get('ef', '')}")
    for k in range(3):
        a(f"    global_load_dword v{ES+k}, v{T+k}, s[6:7]{opt.get('ef', '')}")
    skew = opt.get('skew', 0)
    xw = opt.get('xw', 0)
    xe = opt.get('xe', 0)
    cw = opt.get('cw', 0)
    wl = opt.get('wl', 0)
    assert opt.get('epf')
    def ldsfill():
        a(f"""
    v_add_u32 v{T}, {L_IMG}, v{T16}
    ds_write_b128 v{T}, {vr(T+4,4)}
    ds_write_b128 v{T}, {vr(T+4,4)} offset:16384
    s_cmp_ge_u32 s{WID}, 4
    s_cbranch_scc1 I_a
    ds_write_b128 v{T}, {vr(T+4,4)} offset:32768
    ds_write_b32 v{T4}, v{ZERO} offset:{L_ACNT}
I_a:""")
    def rowsetup():
        a(f"""
    v_and_b32 v{LANE}, 63, v0
    v_mov_b32 v{FOUR}, 4""")
        srd(a, SX, 4, X_BYTES)
        a(f"""
    s_cmp_lt_u32 s{WID}, 8
    s_cselect_b32 s{SW}, s10, s12
    s_cselect_b32 s{SW+1}, s11, s13
    v_lshrrev_b32 v{T}, 3, v{LANE}
    v_and_b32 v{T+1}, 7, v{LANE}
    v_xor_b32 v{T+1}, v{T+1}, v{T}
    v_lshlrev_b32 v{T+1}, 4, v{T+1}""")
        if skew:
            a(f"""
    v_lshl_add_u32 v{T}, v{T}, 4, s{WID}    ; local
    v_sub_u32 v{T+2}, s2, v{T}
    v_and_b32 v{T+2}, 255, v{T+2}
    v_lshl_or_b32 v{T}, v{T}, 8, v{T+2}     ; node
    v_lshl_add_u32 v{ROWOFF}, v{T}, 7, v{T+1}""")
        else:
            a(f"""
    v_lshlrev_b32 v{T}, 19, v{T}
    s_lshl_b32 s{X0}, s{WID}, 15
    s_lshl_b32 s{X0+1}, s2, 7
    s_add_u32 s{X0}, s{X0}, s{X0+1}
    v_add3_u32 v{ROWOFF}, v{T}, v{T+1}, s{X0}""")
        a(f"""
    s_lshl_b32 s{X0}, s{WID}, 10
    s_add_u32 m0, s{X0}, {L_XN}""")
    def wload():
        a(f'    v_and_b32 v{T+3}, 0x1ff0, v{T16}')
        a(f'    global_load_dwordx4 {vr(WD,4)}, v{T+3}, {sp(SW)}')
    def xload():
        a(f'    buffer_load_dwordx4 v{ROWOFF}, {sq(SX)}, 0 offen lds')
    def early():
        if xw in (0, 2, 4) and not wl:
            wload()
        if xw == 0:
            xload()
        if cw == 1:
            a(f"""
    s_mul_i32 s{PFT}, s2, {98*128}
    s_mul_i32 s{X0}, s{WID}, {7*128}
    s_add_u32 s{PFT}, s{PFT}, s{X0}
    v_lshlrev_b32 v{T}, 7, v{LANE}
    s_cmp_lt_u32 s{WID}, 14
    s_cselect_b32 exec_lo, 0x7f, 1
    s_mov_b32 exec_hi, 0
    buffer_load_dword v{ATK}, v{T}, {sq(SX)}, s{PFT} offen
    s_mov_b64 exec, -1""")
        if cw == 2:
            a(f"""
    s_mul_i32 s{PFT}, s2, {98*128}
    s_and_b32 s{X0}, s{WID}, 1
    s_mul_i32 s{X0}, s{X0}, {49*128}
    s_add_u32 s{PFT}, s{PFT}, s{X0}
    v_lshlrev_b32 v{T}, 7, v{LANE}
    s_cmp_ge_u32 s{WID}, 14
    s_cselect_b32 s{PFT}, s{PFT}, 0x7ffff000
    s_cselect_b32 exec_lo, -1, 1
    s_cselect_b32 exec_hi, 0x1ffff, 0
    buffer_load_dword v{ATK}, v{T}, {sq(SX)}, s{PFT} offen
    s_mov_b64 exec, -1""")
    if xe:
        rowsetup()
        if xe == 2:
            a('    s_barrier')
        early()
        ldsfill()
    else:
        ldsfill()
        rowsetup()
    a("""
    s_waitcnt lgkmcnt(0)
    s_barrier""")
    if not xe:
        early()
    pfpos = [0]
    def prefetch(n):
        lo, hi = pfpos[0], pfpos[0] + n
        pfpos[0] = hi
        m = ((1 << hi) - 1) ^ ((1 << lo) - 1)
        a(f'''
    s_lshr_b32 s{PFT}, s2, 3
    s_lshl_b32 s{PFT}, s{PFT}, 4
    s_add_u32 s{PFT}, s{PFT}, s{WID}
    s_mul_i32 s{PFT}, s{PFT}, {49*128}
    v_lshlrev_b32 v{T}, 7, v{LANE}
    s_mov_b32 exec_lo, 0x{m & 0xffffffff:x}
    s_mov_b32 exec_hi, 0x{m >> 32:x}
    buffer_load_dword v{ATK}, v{T}, {sq(SX)}, s{PFT} offen
    s_mov_b64 exec, -1''')
    p = 1 if cw else 0
    srd(a, SWS, 18, WS_USED)
    if opt.get('tlb'):
        sh = opt['tlb']
        n1 = -(-(SEG_OFF + 2*H1_OFF) // (16 << sh))
        n2 = -(-X_BYTES // (16 << sh))
        srd(a, SOUT, 14, X_BYTES)
        a(f'''
    s_mul_i32 s{PFT}, s{WID}, {n1}
    v_add_u32 v{T}, s{PFT}, v{LANE}
    v_lshlrev_b32 v{T}, {sh}, v{T}
    s_mul_i32 s{PFT}, s{WID}, {n2}
    v_add_u32 v{T+1}, s{PFT}, v{LANE}
    v_lshlrev_b32 v{T+1}, {sh}, v{T+1}
    s_mov_b64 exec, {(1 << n1) - 1}
    buffer_load_dword v{ATK}, v{T}, {sq(SWS)}, 0 offen
    s_mov_b64 exec, {(1 << n2) - 1}
    buffer_load_dword v{ATK}, v{T+1}, {sq(SOUT)}, 0 offen
    s_mov_b64 exec, -1''')
        p += 2
    if opt.get('pf1'):
        prefetch(opt['pf1'])
        p += 1
    nw = {0: 2, 1: 0, 2: 1, 3: 0, 4: 0 if wl else 1}[xw]
    y = (0 if opt.get('epf') else 1) + nw + p
    wdec = 1
    if opt.get('x_xnwait'):
        a('    s_waitcnt vmcnt(0)')
    stamp(1)
    a(f'''
    v_add_u32 v{T}, {L_LIST}, v{T16}
    ds_write_b128 v{T}, {vr(T+4,4)}
    s_cmp_ge_u32 s{WID}, 6
    s_cbranch_scc1 I_b
    ds_write_b128 v{T}, {vr(T+4,4)} offset:16384
I_b:
    v_and_b32 v{LBASE}, 15, v{LANE}
    v_mul_u32_u24 v{LBASE}, {GSTRIDE}, v{LBASE}
    v_add_u32 v{LBASE}, {L_LIST}, v{LBASE}
    v_and_b32 v{CNTA}, 0x7c, v{T4}
    s_cmp_lg_u32 s{WID}, 12
    s_cbranch_scc1 I_done
    v_cmp_gt_u32 vcc, 16, v{LANE}
    s_mov_b32 exec_hi, 0
    s_nop 0
    v_cndmask_b32 v{T+2}, 0, v{LBASE}, vcc
    ds_write_b32 v{CNTA}, v{T+2} offset:{L_BCNT}
    s_mov_b64 exec, 0xff
    v_cvt_f32_u32 v{T+2}, v{LANE}
    v_mul_f32 v{T+3}, v{T+2}, v{T+2}
    v_cvt_pk_bf16_f32 v{T+2}, v{T+3}, v{T+2}
    v_lshlrev_b32 v{T+3}, 4, v{LANE}
    ds_write_b32 v{T+3}, v{T+2} offset:{L_LUT}
    s_mov_b64 exec, -1
I_done:''')
    a(f'''
''')
    G = opt.get('grp', 2)
    lg = G.bit_length() - 1
    BLK = G * HSTRIDE
    a(f'''
    s_lshl_b32 s{X0}, s2, {6+lg}
    s_add_u32 s{X0}, s{X0}, {SEG_OFF}
    s_add_u32 s{X0+1}, s{X0}, {H1_OFF}
    s_lshr_b32 s{SEGB}, s2, {lg}
    s_mul_i32 s{SEGB}, s{SEGB}, {BLK}
    s_and_b32 s{S0}, s2, {G-1}
    s_lshl_b32 s{S0}, s{S0}, 6
    s_add_u32 s{SEGB}, s{SEGB}, s{S0}
    s_add_u32 s{SEGB}, s{SEGB}, {SEG_OFF}
    v_lshrrev_b32 v{T}, 2, v0
    v_and_b32 v{T+1}, 3, v0
    v_mul_u32_u24 v{IMGR}, {ISTRIDE}, v{T}
    v_lshl_add_u32 v{IMGR}, v{T+1}, 2, v{IMGR}
    v_add_u32 v{IMGR}, {L_IMG}, v{IMGR}
    v_lshrrev_b32 v{T+2}, {2+lg}, v0
    v_mul_u32_u24 v{STO}, {BLK}, v{T+2}
    v_and_b32 v{T+2}, {64*G-1}, v{T16}
    v_add_u32 v{STO}, v{STO}, v{T+2}
    v_lshlrev_b32 v{T+1}, 4, v{T+1}
    v_lshl_add_u32 v{PFD}, v{T}, {6+lg}, v{T+1}''')
    pair = 1
    LDV = PFD if pair else T16
    a(f'''
    s_mov_b32 s{SEMPTY}, {EMPTY}
    s_mov_b32 s{KTHR}, {L_IMG}
    s_mov_b32 s{K88}, 0x88888888
    s_mov_b32 s{K88+1}, 0x88888888
    v_bfe_u32 v{T}, v0, 3, 6
    v_and_b32 v{T+1}, 7, v0
    v_bfe_u32 v{T+2}, v{T}, 1, 1
    v_and_or_b32 v{T+2}, v{T}, 8, v{T+2}
    v_bfe_u32 v{T+3}, v{T}, 1, 2
    s_cmp_lt_u32 s{WID}, 8
    s_cselect_b64 {sp(S0)}, -1, 0
    s_mov_b32 s{S1}, {L_WV}
    s_cselect_b32 s{S1}, {L_WQ}, s{S1}
    s_bfe_u32 s{S1+1}, s{WID}, 0x20002
    s_cmp_eq_u32 s{S1+1}, 1
    s_cselect_b32 s{S1+1}, 4096, 0
    s_add_u32 s{S1}, s{S1}, s{S1+1}
    v_cndmask_b32 v{T+2}, v{T+3}, v{T+2}, {sp(S0)}
    v_lshlrev_b32 v{T+1}, 1, v{T+1}
    v_xor_b32 v{T+1}, v{T+1}, v{T+2}
    v_lshlrev_b32 v{T+1}, 3, v{T+1}
    v_lshl_add_u32 v{T+1}, v{T}, 7, v{T+1}
    v_add_u32 v{WSA}, s{S1}, v{T+1}
    v_xor_b32 v{WSA+1}, 8, v{WSA}''')
    xp = opt.get('xp', 0)
    a(f'''
    v_bfrev_b32 v{T+4}, -2''')
    def arank(k):
        if skew:
            a(f'''
    v_add_u32_sdwa v{B4+k}, v{ED+k}, v{ED+k} dst_sel:DWORD dst_unused:UNUSED_PAD src0_sel:BYTE_0 src1_sel:BYTE_1''')
        a(f'''
    v_lshlrev_b32_sdwa v{B4+k}, 2, v{B4+k if skew else ED+k} dst_sel:DWORD dst_unused:UNUSED_PAD src0_sel:DWORD src1_sel:BYTE_0
    ds_add_rtn_u32 v{PS+k}, v{B4+k}, v{FOUR} offset:{L_ACNT}''')
    def aentry(k):
        a(f'''
    v_lshrrev_b32 v{ED+k}, 8, v{ED+k}
    v_lshl_or_b32 v{ES+k}, v{ES+k}, 7, v{ED+k}
    v_mad_u32_u24 v{B4+k}, v{B4+k}, {ISTRIDE//4}, s{KTHR}''')
    def aput(k):
        a(f'''
    v_min_u32 v{PS+k}, {ISTRIDE-4}, v{PS+k}
    v_add_u32 v{PS+k}, v{PS+k}, v{B4+k}
    ds_write_b32 v{PS+k}, v{ES+k}''')
    a(f'    s_waitcnt vmcnt({y+3})')
    stamp(2)
    for k in range(3):
        arank(k)
    a(f'    s_waitcnt vmcnt({y})')
    for k in range(3):
        aentry(k)
    for k in range(3):
        a('    s_waitcnt lgkmcnt(2)')
        aput(k)
    a(f'''
    s_mov_b64 exec, {sp(M3)}
    s_cbranch_execz A_no3b''')
    arank(3)
    aentry(3)
    a('    s_waitcnt lgkmcnt(0)')
    aput(3)
    a(f'''
A_no3b:
    s_mov_b64 exec, -1
    s_waitcnt vmcnt({p + nw})
    v_readfirstlane_b32 s{EPOCH}, v{EPV}''')
    if xw == 3:
        wload()
        xload()
    if opt.get('pfr'):
        prefetch(opt['pfr'])
        p += 1
    a(f'''
    {f'ds_write_b64 v{WSA}, {vr(WD,2)}' if not wdec else ''}
    {f'ds_write_b64 v{WSA+1}, {vr(WD+2,2)}' if not wdec else ''}
    s_add_u32 s{EPOCH}, s{EPOCH}, 1
    s_lshl_b32 s{TAG}, s{EPOCH}, 22
    s_lshl_b32 s{TAG+1}, s{EPOCH}, 12
    s_and_b32 s{TAG+1}, s{TAG+1}, 0xffc00000
    s_lshl_b32 s{TAG+2}, s{EPOCH}, 2
    s_and_b32 s{TAG+2}, s{TAG+2}, 0xffc00000
    s_add_u32 s{TAG+1}, s{TAG+1}, s{TAG}
    s_add_u32 s{TAG+2}, s{TAG+2}, s{TAG}
    s_xor_b32 s{TAG+3}, s{TAG}, 0xffc00000
    s_waitcnt lgkmcnt(0)
    s_barrier''')
    stamp(3)
    a(f'''
    ds_read_b32 v48, v{IMGR} offset:128
    ds_read2_b32 {vr(40,2)}, v{IMGR} offset0:0 offset1:4
    ds_read2_b32 {vr(42,2)}, v{IMGR} offset0:8 offset1:12
    ds_read2_b32 {vr(44,2)}, v{IMGR} offset0:16 offset1:20
    ds_read2_b32 {vr(46,2)}, v{IMGR} offset0:24 offset1:28
    s_waitcnt lgkmcnt(4)
    v_cmp_ne_u32 vcc, s{SEMPTY}, v48
    s_waitcnt lgkmcnt(2)
    s_cbranch_vccnz A_full
A_pub:
    v_cmp_ne_u32 vcc, s{SEMPTY}, v43''')
    for r in range(4):
        a(f'    v_or_b32 v{40+r}, s{TAG+r}, v{40+r}')
    a(f'''
    buffer_store_dwordx4 {vr(40,4)}, v{STO}, {sq(SWS)}, s{X0} offen{sf}
    s_and_b64 {sp(S0)}, vcc, {sp(K88)}''')
    if opt.get('h1o'):
        a(f'''
    s_lshr_b64 {sp(S1)}, {sp(S0)}, 4
    s_or_b64 {sp(S0)}, {sp(S0)}, {sp(S1)}
    s_and_b32 s{S0}, s{S0}, 0x08080808
    s_and_b32 s{S0+1}, s{S0+1}, 0x08080808
    s_lshl_b64 {sp(S1)}, {sp(S0)}, 4
    s_or_b64 {sp(S0)}, {sp(S0)}, {sp(S1)}''')
    a(f'''
    s_wqm_b64 vcc, {sp(S0)}
    {'s_mov_b64 vcc, 0' if opt.get('x_noh1') == 2 else ''}
    s_waitcnt lgkmcnt(0)''')
    for r in range(4):
        a(f'    v_or_b32 v{44+r}, s{TAG+r}, v{44+r}')
    a(f'''
''')
    h1f = opt.get('h1f', 0)
    if h1f:
        a(f'''
    v_and_b32 v{T+5}, 0x30, v{T16}
    v_lshlrev_b32 v{STO}, 1, v{STO}
    v_sub_u32 v{STO}, v{STO}, v{T+5}''')
    a(f'''
    v_cndmask_b32 v{STO}, v{T+4}, v{STO}, vcc
    buffer_store_dwordx4 {vr(44,4)}, v{STO}, {sq(SWS)}, s{X0+1} offen{sf}''')
    if h1f == 2:
        a(f'    buffer_store_dwordx4 {vr(44,4)}, v{STO}, {sq(SWS)}, s{X0+1} offen offset:64{sf}')
        p += 1
    H1V = LDV
    if h1f:
        H1V = PFD
        a(f'''
    v_lshlrev_b32 v{PFD}, 1, v{T16}
    v_sub_u32 v{PFD}, v{PFD}, v{T+5}''')
    if opt.get('pfb'):
        prefetch(opt['pfb'])
        p += 1
    stamp(4)
    if xw == 1:
        wload()
    if xw in (1, 2):
        xload()
    def wstage(n):
        a(f'''
    s_waitcnt vmcnt({n})
    ds_write_b64 v{WSA}, {vr(WD,2)}
    ds_write_b64 v{WSA+1}, {vr(WD+2,2)}''')
    if xw in (0, 2):
        wstage(p + 3)
    def stouch():
        step = opt.get('sstep', 128)
        a(f'''
    s_mul_i32 s{X0}, s2, {98*128}
    s_mul_i32 s{X0+1}, s{WID}, {7*128}
    s_add_u32 s{X0}, s{X0}, s{X0+1}
    s_min_u32 s{X0}, s{X0}, {X_BYTES - 7*128}
    s_add_u32 s{X0}, s4, s{X0}
    s_addc_u32 s{X0+1}, s5, 0''')
        for o in range(0, 7*128, step):
            a(f'    s_load_dword s101, {sp(X0)}, {o}')
    if xw == 4 and wl:
        wload()
    elif xw == 4:
        wstage(p + 2)
        if opt.get('stc'):
            a('    s_waitcnt lgkmcnt(0)')
            stouch()
    WQA, XNA = 88, 92
    a(f"""
    v_lshrrev_b32 v{T+5}, 4, v{LANE}        ; g
    v_bfe_u32 v{T+1}, v{LANE}, 2, 2
    v_lshl_add_u32 v{T+2}, v{T+5}, 3, v{T+1}
    v_bfe_u32 v{T+3}, v{T+2}, 1, 1
    v_and_or_b32 v{T+3}, v{T+2}, 8, v{T+3}
    v_and_b32 v{T+4}, 3, v{LANE}            ; c
    v_lshlrev_b32 v{T+6}, 1, v{T+4}
    v_xor_b32 v{T+3}, v{T+3}, v{T+6}
    v_lshlrev_b32 v{T+3}, 3, v{T+3}
    v_lshl_add_u32 v{T}, v{T+2}, 7, v{T+3}
    v_add_u32 v{WQA}, {L_WQ}, v{T}
    v_xor_b32 v{WQA+1}, 8, v{WQA}
    v_xor_b32 v{WQA+2}, 64, v{WQA}
    v_xor_b32 v{WQA+3}, 0x48, v{WQA}
    v_and_b32 v{T+7}, 7, v{LANE}
    v_xor_b32 v{T}, v{T+5}, v{T+7}
    v_lshlrev_b32 v{T}, 4, v{T}
    v_lshl_add_u32 v{T}, v{T+7}, 7, v{T}
    s_lshl_b32 s{X0}, s{WID}, {13 if xw == 4 else 10}
    s_add_u32 s{X0}, s{X0}, {L_RING + 7168 if xw == 4 else L_XN}
    v_add_u32 v{XNA}, s{X0}, v{T}
    v_xor_b32 v{XNA+1}, 64, v{XNA}""")
    srd(a, SOUT, 14, X_BYTES)
    srd(a, SSRC, 6, E*4)
    srd(a, SDST, 8, E*4)
    a(f"""
    s_add_u32 s{H1SO}, s{SEGB}, {H1_OFF}
    {f's_mul_i32 s{H1SO}, s2, {2*HSTRIDE}' if h1f else ''}
    {f's_add_u32 s{H1SO}, s{H1SO}, {SEG_OFF+H1_OFF}' if h1f else ''}
    s_mov_b32 s{AMASK}, 0x003fff80
    s_lshl_b32 s{RING}, s{WID}, 13
    s_add_u32 s{RING}, s{RING}, {L_RING}
    s_mov_b32 s{MODE}, 0
    s_mov_b32 s{GAVE}, 0
    s_mov_b32 s{LOM}, 0x00ff00ff
    s_mov_b32 s{LOM+1}, 0x00ff00ff
    v_and_b32 v{T+1}, 15, v{LANE}           ; i
    v_lshrrev_b32 v{T}, 3, v{LANE}
    v_and_b32 v{T+6}, 6, v{T}
    v_xor_b32 v{T+6}, v{T+6}, v{T+7}
    v_lshlrev_b32 v{CHK}, 4, v{T+6}
    s_mul_i32 s{X0}, s{WID}, {GSTRIDE}
    s_add_u32 s{X0}, s{X0}, {L_LIST}
    v_lshl_add_u32 v{EA0}, v{T}, 4, s{X0}
    v_bfe_u32 v{T+6}, v{LANE}, 3, 2
    v_lshl_add_u32 v{T+6}, v{T+7}, 2, v{T+6}
    v_lshl_add_u32 v{MAD0}, v{T+6}, 2, s{X0}
    v_and_b32 v{T+6}, 6, v{T+1}
    v_xor_b32 v{T+6}, v{T+6}, v{T+5}
    v_lshlrev_b32 v{T+6}, 4, v{T+6}
    v_lshl_add_u32 v{T+6}, v{T+1}, 7, v{T+6}
    v_add_u32 v{RA0}, s{RING}, v{T+6}
    v_xor_b32 v{RA1}, 64, v{RA0}
    v_lshrrev_b32 v{T+6}, 2, v{LANE}        ; row = 4g+r
    v_and_b32 v{T+1}, 6, v{T+6}
    v_bfe_u32 v{T+5}, v{LANE}, 1, 1
    v_xor_b32 v{T+1}, v{T+1}, v{T+5}
    v_lshlrev_b32 v{T+1}, 4, v{T+1}
    v_lshl_add_u32 v{T+1}, v{T+6}, 7, v{T+1}
    v_and_b32 v{T+5}, 1, v{LANE}
    v_lshl_add_u32 v{T+1}, v{T+5}, 3, v{T+1}
    v_add_u32 v{RT}, s{RING}, v{T+1}
    v_xor_b32 v{RT+1}, 32, v{RT}
    v_xor_b32 v{RT+2}, 64, v{RT}
    v_xor_b32 v{RT+3}, 0x60, v{RT}
    v_bfe_u32 v{T+5}, v{T+6}, 1, 2
    v_lshl_or_b32 v{T+5}, v{T+4}, 2, v{T+5}
    v_lshlrev_b32 v{T+5}, 3, v{T+5}
    v_lshl_add_u32 v{WVA}, v{T+6}, 7, v{T+5}
    v_lshrrev_b32 v{T+5}, 3, v{LANE}
    v_and_b32 v{T+5}, 6, v{T+5}
    v_xor_b32 v{T+5}, v{T+5}, v{T+7}
    v_lshlrev_b32 v{T+5}, 4, v{T+5}
    v_lshl_add_u32 v{T+5}, v{T+7}, 7, v{T+5}
    v_add_u32 v{EPV}, s{RING}, v{T+5}
    v_mov_b32 v{MA+1}, 0x00003f80
    v_mov_b32 v{MA+2}, 0
    v_mov_b32 v{MA+3}, 0
    v_mov_b32 v{MB}, 0
    v_mov_b32 v{MB+1}, 0
    v_mov_b32 v{MB+2}, 0
    v_mov_b32 v{MB+3}, 0
    v_cvt_f32_u32 v{T+5}, v{T+7}            ; j' = l&7
    v_mov_b32 v{T+6}, 0x71800000            ; BIG = 2^100
    v_mul_f32 v{T+7}, v{T+5}, v{T+6}
    v_mul_f32 v{T+5}, v{T+5}, v{T+7}
    v_mul_f32 v{T+7}, -2.0, v{T+7}
    s_mov_b32 exec_lo, 0xff0000ff
    s_mov_b32 exec_hi, 0
    v_cvt_pk_bf16_f32 v{MB}, v{T+6}, v{T+7}
    v_cvt_pk_bf16_f32 v{MB+1}, v{T+5}, 0
    s_mov_b64 exec, -1""")
    if xw != 4:
        for r in range(16):
            a(f'    v_mov_b32 v{ACC+r}, 0')
    for r in range(8):
        a(f'    v_mov_b32 v{QLO+r}, 0')
    for r in range(4, 8):
        a(f'    v_mov_b32 v{EN+r}, {EMPTY}')
    if opt.get('peek'):
        for r in range(4):
            a(f'    v_not_b32 v{EN+r}, s{TAG+r}')
    a(f"""
    s_mov_b32 s{POLLN}, 0
    s_mov_b32 s{KTHR}, 0x400000
    s_mov_b32 s{KFULL}, {FULLM}
    s_mov_b64 {sp(S0)}, -1
    s_mov_b64 {sp(S1)}, 0
""")
    if xw in (1, 3):
        wstage(1 if xw == 1 else 3)
    if wl:
        wstage(0)
    a(f"""
    s_waitcnt {'' if opt.get('peek') else 'vmcnt(0)'} lgkmcnt(0)
    s_barrier
    {f'buffer_load_dwordx4 {vr(EN,4)}, v{LDV}, {sq(SWS)}, s{SEGB} offen{lf}' if not opt.get('pd') else ''}
    ; ---- Q' = (own rows @ w_q) * (-log2e/8) in B-operand layout; columns 8..15 zero""")
    def xnlate():
        a(f"""
    s_add_u32 m0, s{RING}, 7168
    s_nop 0
    buffer_load_dwordx4 v{ROWOFF}, {sq(SX)}, 0 offen lds""")
    if xp == 1:
        xnlate()
    dreg = [QHI, QHI+4, S, S+4]
    wq = [ACC, ACC+8, XT, XT+8] if xw == 4 else [XA, XA+8, XA+16, XA+24]
    def xnread():
        a(f"""
    s_mov_b64 exec, {sp(LOM)}
    ds_read_b128 {vr(QLO,4)}, v{XNA}
    ds_read_b128 {vr(QLO+4,4)}, v{XNA+1}
    s_mov_b64 exec, -1""")
    def qmfma(blk):
        a(f'    v_mfma_f32_16x16x32_bf16 {vr(dreg[blk],4)}, {vr(wq[blk],4)}, {vr(QLO,4)}, 0')
        a(f'    v_mfma_f32_16x16x32_bf16 {vr(dreg[blk],4)}, {vr(wq[blk]+4,4)}, {vr(QLO+4,4)}, {vr(dreg[blk],4)}')
    if xw != 4:
        xnread()
    for blk in range(4):
        for ks in range(2):
            for h in range(2):
                a(f'    ds_read_b64_tr_b16 {vr(wq[blk]+ks*4+h*2,2)}, v{WQA+blk} offset:{8192*ks + 512*h}')
        if blk == 2:
            a('    s_waitcnt lgkmcnt(8)')
    if opt.get('pd'):
        if opt['pd'] == 2:
            a('    s_waitcnt lgkmcnt(0)')
        if opt['pd'] == 3:
            a('    s_waitcnt lgkmcnt(0)')
            a('    s_barrier')
        a(f'    buffer_load_dwordx4 {vr(EN,4)}, v{LDV}, {sq(SWS)}, s{SEGB} offen{lf}')
    if xw != 4:
        for blk in range(4):
            a(f'    s_waitcnt lgkmcnt({min(8, 12-4*blk) if blk else 12})')
            qmfma(blk)
    def qlate():
        for blk in range(4):
            qmfma(blk)
        for r in range(16):
            a(f'    v_mov_b32 v{ACC+r}, 0')
    def qfinish():
        a(f'    s_mov_b32 s{X0}, 0x{f32bits(-1.4426950408889634/8):08x}')
        a(f'    s_mov_b32 s{X0+1}, s{X0}')
        a('    s_nop 1')
        for blk in range(4):
            a(f'    v_pk_mul_f32 {vr(dreg[blk],2)}, {vr(dreg[blk],2)}, {sp(X0)}')
            a(f'    v_pk_mul_f32 {vr(dreg[blk]+2,2)}, {vr(dreg[blk]+2,2)}, {sp(X0)}')
        for blk in range(4):
            a(f'    v_cvt_pk_bf16_f32 v{QLO+2*blk}, v{dreg[blk]}, v{dreg[blk]+1}')
            a(f'    v_cvt_pk_bf16_f32 v{QLO+2*blk+1}, v{dreg[blk]+2}, v{dreg[blk]+3}')
        for r in range(8):
            a(f'    v_mov_b32_dpp v{QHI+r}, v{QLO+r} row_ror:8 row_mask:0xf bank_mask:0xf')
    qdef = opt.get('qdef', 0)
    if not qdef:
        qfinish()
    stamp(5)
    def check(h, dst):
        for r in range(4):
            a(f'    v_xor_b32 v{EN+4*h+r}, s{TAG+r}, v{EN+4*h+r}')
        a(f'''
    v_or3_b32 v{T}, v{EN+4*h}, v{EN+4*h+1}, v{EN+4*h+2}
    v_or_b32 v{T}, v{T}, v{EN+4*h+3}
    v_cmp_le_u32 {dst}, s{KTHR}, v{T}''')
    def brank(r, base, skip=None):
        m = VM + 2*r
        a(f'''
    v_cmp_ne_u32 {sp(m)}, s{SEMPTY}, v{EN+r}
    v_and_b32 v{G4+r}, 15, v{EN+r}
    v_lshlrev_b32 v{G4+r}, 2, v{G4+r}
    s_mov_b64 exec, {sp(m)}''')
        if skip:
            a(f'    s_cbranch_execz {skip}')
        a(f'''
    ds_add_rtn_u32 v{RK+r}, v{G4+r}, v{FOUR} offset:{L_BCNT}
    s_mov_b64 exec, {base}''')
    def bput(r):
        a(f'''
    s_mov_b64 exec, {sp(VM+2*r)}
    ds_write_b32 v{RK+r}, v{EN+r}''')
    rare = []
    def rankwords(ws):
        for r in ws:
            brank(r, sp(FR))
        for r in ws:
            a(f'    s_waitcnt lgkmcnt({len(ws)-1})')
            bput(r)
    def sort_rest():
        a(f'''
    v_min3_u32 v{T}, v{EN+1}, v{EN+2}, v{EN+3}
    v_med3_u32 v{T+1}, v{EN+1}, v{EN+2}, v{EN+3}
    v_max3_u32 v{EN+3}, v{EN+1}, v{EN+2}, v{EN+3}
    v_mov_b32 v{EN+1}, v{T}
    v_mov_b32 v{EN+2}, v{T+1}''')
    band = opt.get('band', 0)
    B1 = 64
    sw = opt.get('sw', 4)
    def absorb0(tag, nw=4):
        br = opt.get('br', 0) if tag == 'a' else 0
        if br:
            a('P_again:')
        check(0, 'vcc')
        if br:
            a(f'''
    s_wqm_b64 vcc, vcc
    s_mov_b64 {sp(S0)}, vcc
    s_not_b64 {sp(FR)}, vcc
    s_mov_b64 exec, vcc
    s_cbranch_execz Z_nr{tag}
    s_add_u32 s{POLLN}, s{POLLN}, 1
    buffer_load_dwordx4 {vr(EN,4)}, v{LDV}, {sq(SWS)}, s{SEGB} offen{lf}
    s_cmp_gt_u32 s{POLLN}, {br}
    s_cbranch_scc1 Z_nr{tag}
    s_waitcnt vmcnt(0)
    s_branch P_again''')
        else:
            a(f'''
    s_wqm_b64 vcc, vcc
    s_andn2_b64 {sp(FR)}, {sp(S0)}, vcc
    s_mov_b64 {sp(S0)}, vcc
    s_mov_b64 exec, vcc
    s_cbranch_execz Z_nr{tag}
    s_add_u32 s{POLLN}, s{POLLN}, 1
    s_cmp_gt_u32 s{POLLN}, {opt.get('pollmax', 2000)}
    s_cbranch_scc1 Z_give{tag}
    buffer_load_dwordx4 {vr(EN,4)}, v{LDV}, {sq(SWS)}, s{SEGB} offen{lf}''')
        a(f'''
Z_nr{tag}:
    s_mov_b64 exec, {sp(FR)}
    s_cbranch_execz Z_done{tag}
    v_cmp_ne_u32 {sp(N1)}, s{SEMPTY}, v{EN+3}
    v_cmp_eq_u32 vcc, s{KFULL}, v{EN}
    s_and_b64 {sp(N1)}, {sp(N1)}, {sp(K88)}
    s_wqm_b64 exec, {sp(N1)}
    {'s_mov_b64 exec, 0' if opt.get('x_noh1') else ''}
    s_cbranch_execz Z_nh{tag}
    s_or_b64 {sp(S1)}, {sp(S1)}, exec
    buffer_load_dwordx4 {vr(EN+4,4)}, v{H1V}, {sq(SWS)}, s{H1SO} offen{lf}
Z_nh{tag}:
    s_cbranch_vccnz Z_full{tag}
Z_rank{tag}:
    s_mov_b64 exec, {sp(FR)}''')
        if opt.get('srt') and tag == 'a':
            a(f'''
    v_min_u32 v{T}, v{EN}, v{EN+1}
    v_max_u32 v{EN+1}, v{EN}, v{EN+1}
    v_min_u32 v{T+1}, v{EN+2}, v{EN+3}
    v_max_u32 v{EN+3}, v{EN+2}, v{EN+3}
    v_min_u32 v{EN}, v{T}, v{T+1}
    v_max_u32 v{EN+2}, v{T}, v{T+1}''')
            if opt['srt'] == 2 and nw > 1:
                sort_rest()
        if band and tag == 'a':
            sort_rest()
            a(f'    s_mov_b32 s{X0}, {band << 7}')
            for r in range(2):
                a(f'''
    v_cmp_gt_u32 {sp(B1+2*r)}, s{X0}, v{EN+r}
    v_and_b32 v{G4+r}, 15, v{EN+r}
    v_lshlrev_b32 v{G4+r}, 2, v{G4+r}
    s_mov_b64 exec, {sp(B1+2*r)}
    ds_add_rtn_u32 v{RK+r}, v{G4+r}, v{FOUR} offset:{L_BCNT}
    s_mov_b64 exec, {sp(FR)}''')
            for r in range(2):
                a(f'''
    s_waitcnt lgkmcnt(1)
    s_mov_b64 exec, {sp(B1+2*r)}
    ds_write_b32 v{RK+r}, v{EN+r}''')
        else:
            rankwords(list(range(nw)))
        a(f'Z_done{tag}:')
        rare.append(tag)
    def absorb1():
        check(1, 'vcc')
        if opt.get('x_loseh1'):
            a(f'    s_and_b32 s{X0}, exec_lo, 0x20002000')
            a(f'    s_or_b32 vcc_lo, vcc_lo, s{X0}')
        a(f'''
    s_andn2_b64 {sp(FR)}, {sp(S1)}, vcc
    s_mov_b64 {sp(S1)}, vcc
    s_mov_b64 exec, vcc
    s_cbranch_execz Y_nr
    s_add_u32 s{POLLN}, s{POLLN}, 1
    s_cmp_gt_u32 s{POLLN}, {opt.get('pollmax1', opt.get('pollmax', 2000))}
    s_cbranch_scc1 Y_lost
    buffer_load_dwordx4 {vr(EN+4,4)}, v{H1V}, {sq(SWS)}, s{H1SO} offen{lf}
Y_nr:
    s_mov_b64 exec, {sp(FR)}''')
        for r in range(4, 8):
            brank(r, sp(FR), 'Y_done')
            a('    s_waitcnt lgkmcnt(0)')
            bput(r)
            a(f'    s_mov_b64 exec, {sp(FR)}')
        a('Y_done:')
    def dma(ereg, slot, qs=range(4)):
        for q in qs:
            if q == 3 and len(qs) == 1:
                a(f'    s_add_u32 m0, s{RING}, {4096*slot + 3072}')
            elif q == 0:
                a(f'    s_mov_b32 m0, s{RING}' if slot == 0 else f'    s_add_u32 m0, s{RING}, 4096')
            else:
                a('    s_add_u32 m0, m0, 1024')
            a(f'    v_and_or_b32 v{ereg+q}, v{ereg+q}, s{AMASK}, v{CHK}')
            a(f'    buffer_load_dwordx4 v{ereg+q}, {sq(SX)}, 0 offen{gf} lds')
    def complete(reg, no):
        a(f"""
    v_max3_u32 v{T}, v{reg}, v{reg+1}, v{reg+2}
    v_max_u32 v{T}, v{T}, v{reg+3}
    v_cmp_eq_u32 vcc, s{SEMPTY}, v{T}
    s_cbranch_vccnz {no}""")
    a(f"""
    s_mov_b32 s{ISSUED}, 0
    v_mov_b32 v{EA}, v{EA0}
    v_mov_b32 v{MAD}, v{MAD0}""")
    if opt.get('peek'):
        a(f"""
    s_mov_b32 s{X0}, 0
K_peek:
    v_xor_b32 v{T}, s{TAG}, v{EN}
    v_xor_b32 v{T+1}, s{TAG+1}, v{EN+1}
    v_xor_b32 v{T+2}, s{TAG+2}, v{EN+2}
    v_xor_b32 v{T+3}, s{TAG+3}, v{EN+3}
    v_or3_b32 v{T}, v{T}, v{T+1}, v{T+2}
    v_or_b32 v{T}, v{T}, v{T+3}
    v_cmp_le_u32 vcc, s{KTHR}, v{T}
    s_cbranch_vccz K_seen
    s_add_u32 s{X0}, s{X0}, 1
    s_cmp_gt_u32 s{X0}, 500
    s_cbranch_scc1 K_wait
    s_getreg_b32 s{X0+1}, hwreg(HW_REG_IB_STS, 0, 4)
    s_cmp_lg_u32 s{X0+1}, 0
    s_cbranch_scc1 K_peek
K_wait:""")
    a(f"""
    s_waitcnt vmcnt({1 if xp == 1 else 0})
K_seen:""")
    stamp(6)
    a('    s_setprio 3')
    absorb0('a', sw)
    settle = f"""
    s_or_b64 exec, {sp(S0)}, {sp(S1)}
    s_cselect_b32 s{OWNP}, 1, 0
    s_cbranch_execnz G_pend
    s_mov_b64 exec, 1
    ds_add_u32 v{ZERO}, v{FOUR} offset:{L_DONE}
G_pend:
    s_mov_b64 exec, -1
    s_waitcnt lgkmcnt(0)"""
    if xp == 2:
        a('    s_mov_b64 exec, -1')
        xnlate()
    if sw == 4:
        a(settle)
    else:
        a(f"""
    s_mov_b32 s{OWNP}, 2
    s_mov_b64 exec, -1
    s_waitcnt lgkmcnt(0)""")
    a('    s_barrier')
    stamp(7)
    rstamp(1)
    if xw == 4 and not xp:
        xnlate()
    if opt.get('hw', 16) < 16:
        a(f"""
    s_cmp_lt_u32 s{WID}, {opt['hw']}
    s_cbranch_scc1 G_more""")
        if sw < 4:
            a(f'    s_call_b64 {sp(LINK)}, L_s2')
        if opt.get('hw2', 0):
            a(f"""
    s_cmp_lt_u32 s{WID}, {opt['hw2']}
    s_cbranch_scc1 G_more""")
        a(f"""
    s_cmp_eq_u32 s{OWNP}, 0
    s_cbranch_scc1 G_more
    s_waitcnt vmcnt({1 if xw == 4 and xp != 1 else 0})
    s_call_b64 {sp(LINK)}, L_late""")
    a('G_more:')
    rstamp(2)
    a(f"""
    ds_read_b32 v{T+1}, v{ZERO} offset:{L_DONE}
    ds_read_b128 {vr(EE,4)}, v{EA0}
    ds_read_b128 {vr(T+4,4)}, v{EA0} offset:128
    s_cmp_eq_u32 s{ISSUED}, 1
    s_waitcnt lgkmcnt(0)
    s_cbranch_scc1 G_m1""")
    complete(EE, 'G_short')
    dma(EE, 0)
    a(f"""
    s_mov_b32 s{ISSUED}, 1
G_m1:""")
    complete(T+4, 'G_short')
    dma(T+4, 1, range(3) if xw == 4 else range(4))
    a(f"""
    s_mov_b32 s{ISSUED}, 2""")
    rstamp(3)
    if sw < 4:
        a(f"""
    s_cmp_lg_u32 s{OWNP}, 2
    s_cbranch_scc1 G_q
    s_call_b64 {sp(LINK)}, L_s2""")
    a('G_q:')
    if xw == 4:
        rstamp(4)
        a('    s_waitcnt vmcnt(7)')
        rstamp(5)
        xnread()
        a('    s_waitcnt lgkmcnt(0)')
        if not opt.get('q3l'):
            dma(T+4, 1, [3])
        qlate()
    a(f"""
G_go:""")
    if not opt.get('q3l'):
        a(f"    s_setprio {opt.get('p0', 2)}")
    if qdef:
        qfinish()
    if opt.get('q3l'):
        dma(T+4, 1, [3])
        a(f"    s_setprio {opt.get('p0', 2)}")
    a(f"""
    s_mov_b32 s{NT}, {opt.get('pb', 4)}
    s_mov_b32 s{NTI}, 0
B_go:
    ds_read_b32 v{M0R}, v{MAD}
    ds_read_b128 {vr(EE,4)}, v{EA} offset:256
    s_mov_b32 s{TT}, 1                      ; t+1
    s_waitcnt lgkmcnt(1)
    v_and_b32 v{M0R}, 0x70, v{M0R}""")
    stamp(8)
    a('B_loop:')
    pk = opt.get('pk', 0)
    th = opt.get('th', 242)
    th = (th // 100, th // 10 % 10, th % 10)
    def body(slot):
        so = slot * 4096
        mcur, mnext = (M0R, M1R) if slot == 0 else (M1R, M0R)
        eo = slot * 128
        pm = opt.get('prio', 1)
        if pm == 1 and slot == 0:
            a(f"""
    s_cmp_lt_u32 s{TT}, {th[0]}
    s_cbranch_scc1 B_p{slot}
    s_setprio 1
    s_cmp_lt_u32 s{TT}, 4
    s_cbranch_scc1 B_p{slot}
    s_sub_u32 s{X0}, s{NT}, s{TT}
    s_cmp_ge_u32 s{X0}, {th[2]}
    s_cbranch_scc1 B_p{slot}
    s_setprio 0
B_p{slot}:""")
        if pm == 3 and slot == 0:
            a(f"""
    s_cmp_lt_u32 s{TT}, {th[0]}
    s_cbranch_scc1 B_p{slot}
    s_setprio 1
    s_cmp_lt_u32 s{TT}, {th[1]}
    s_cbranch_scc1 B_p{slot}
    s_setprio 0
B_p{slot}:""")
        if pm == 4:
            a(f"""
    s_cmp_eq_u32 s{NTI}, 0
    s_cbranch_scc1 B_p{slot}
    s_sub_u32 s{X0}, s{NT}, s{TT}
    s_setprio 2
    s_cmp_ge_u32 s{X0}, {th[1]}
    s_cbranch_scc1 B_p{slot}
    s_setprio 1
    s_cmp_ge_u32 s{X0}, {th[2]}
    s_cbranch_scc1 B_p{slot}
    s_setprio 0
B_p{slot}:""")
        if pm == 2:
            a(f"""
    s_cmp_lt_u32 s{TT}, 4
    s_cbranch_scc1 B_q{slot}
    s_sub_u32 s{X0}, s{NT}, s{TT}
    s_setprio 3
    s_cmp_ge_u32 s{X0}, 3
    s_cbranch_scc1 B_p{slot}
    s_setprio 2
    s_cmp_ge_u32 s{X0}, 2
    s_cbranch_scc1 B_p{slot}
B_q{slot}:
    s_setprio 1
B_p{slot}:""")
        a(f'''
    ds_read_b32 v{MA}, v{mcur} offset:{L_LUT}
    ds_read_b32 v{mnext}, v{MAD} offset:{eo+128}
    s_cmp_lt_u32 s{TT}, s{NT}
    s_cbranch_scc1 B_w4_{slot}
    s_waitcnt vmcnt(0)
B_w4_{slot}:
    s_cmp_lg_u32 s{OWNP}, 0
    s_waitcnt vmcnt(4)
    s_cbranch_scc0 B_rd_{slot}
    {f's_cmp_lt_u32 s{TT}, 2' if opt.get('ll') and slot == 0 else ''}
    {f's_cbranch_scc1 B_rd_{slot}' if opt.get('ll') and slot == 0 else ''}
    s_call_b64 {sp(LINK)}, L_late
B_rd_{slot}:''')
        if opt.get('tprof'):
            a(f'''
    s_memrealtime s[98:99]
    s_min_u32 s100, s{TT}, 10
    s_waitcnt lgkmcnt(0)
    s_mov_b32 m0, s100
    v_writelane_b32 v{ATK}, s98, m0''')
        a(f'''
    ds_read_b128 {vr(XA,4)}, v{RA0} offset:{so}
    ds_read_b128 {vr(XA+4,4)}, v{RA1} offset:{so}
    ds_read_b128 {vr(XA+8,4)}, v{RA0} offset:{so+2048}
    ds_read_b128 {vr(XA+12,4)}, v{RA1} offset:{so+2048}''')
        for fb in range(4):
            a(f'    ds_read_b64_tr_b16 {vr(XT+4*fb,2)}, v{RT+fb} offset:{so}')
            a(f'    ds_read_b64_tr_b16 {vr(XT+4*fb+2,2)}, v{RT+fb} offset:{so+2048}')
        a(f'''
    s_add_u32 s{TT}, s{TT}, 1               ; t+2
    s_waitcnt lgkmcnt(12)
    {f'v_mfma_f32_16x16x16_bf16 {vr(S,4)}, {vr(MA,2)}, {vr(MB,2)}, 0' if opt.get('m16') else f'v_mfma_f32_16x16x32_bf16 {vr(S,4)}, {vr(MA,4)}, {vr(MB,4)}, 0'}
    v_and_b32 v{mnext}, 0x70, v{mnext}
    s_waitcnt lgkmcnt(11)
    v_mfma_f32_16x16x32_bf16 {vr(S,4)}, {vr(XA,4)}, {vr(QLO,4)}, {vr(S,4)}
    s_waitcnt lgkmcnt(10)
    v_mfma_f32_16x16x32_bf16 {vr(S,4)}, {vr(XA+4,4)}, {vr(QLO+4,4)}, {vr(S,4)}
    s_waitcnt lgkmcnt(9)
    v_mfma_f32_16x16x32_bf16 {vr(S,4)}, {vr(XA+8,4)}, {vr(QHI,4)}, {vr(S,4)}
    s_waitcnt lgkmcnt(8)
    v_mfma_f32_16x16x32_bf16 {vr(S,4)}, {vr(XA+12,4)}, {vr(QHI+4,4)}, {vr(S,4)}
''')
        dl = opt.get('dl', 0)
        def issue():
            a(f'''
    s_cmp_lt_u32 s{TT}, s{NTI}
    s_cbranch_scc0 B_skip_{slot}
B_dma_{slot}:''')
            dma(EE, slot)
            a(f'''
    ds_read_b128 {vr(EE,4)}, v{EA} offset:{eo+384}
B_cont_{slot}:''')
        def adv():
            if slot == 1:
                a(f'    v_add_u32 v{EA}, 256, v{EA}')
                a(f'    v_add_u32 v{MAD}, 256, v{MAD}')
        if dl == 0:
            a('    s_waitcnt lgkmcnt(0)')
            issue()
        elif opt.get('wve') == 2:
            a(f'''
    s_cmp_gt_u32 s{TT}, s{NT}
    s_cbranch_scc1 B_lastw_{slot}
    s_nop 5
B_sig_{slot}:''')
        else:
            a('    s_nop 7')
        for r in range(4):
            a(f'    v_exp_f32 v{S+r}, v{S+r}')
        if dl == 0:
            adv()
        if pk:
            a(f'    v_pk_add_f32 {vr(S,2)}, {vr(S,2)}, 1.0 op_sel_hi:[1,0]')
            a(f'    v_pk_add_f32 {vr(S+2,2)}, {vr(S+2,2)}, 1.0 op_sel_hi:[1,0]')
        else:
            for r in range(4):
                a(f'    v_add_f32 v{S+r}, 1.0, v{S+r}')
        for r in range(4):
            a(f'    v_rcp_f32 v{S+r}, v{S+r}')
        a(f'''
    v_cvt_pk_bf16_f32 v{PP}, v{S}, v{S+1}
    s_cmp_gt_u32 s{TT}, s{NT}
    v_cvt_pk_bf16_f32 v{PP+1}, v{S+2}, v{S+3}
    s_nop 0
    v_mov_b32_dpp v{PP+2}, v{PP} row_ror:8 row_mask:0xf bank_mask:0xf
    v_mov_b32_dpp v{PP+3}, v{PP+1} row_ror:8 row_mask:0xf bank_mask:0xf
    s_nop {0 if dl else 1}''')
        if dl:
            a('    s_waitcnt lgkmcnt(0)')
        if dl == 2:
            issue()
            adv()
            a(f'    s_cmp_gt_u32 s{TT}, s{NT}')
        for fb in range(4):
            a(f'    v_mfma_f32_16x16x32_bf16 {vr(ACC+4*fb,4)}, {vr(XT+4*fb,4)}, {vr(PP,4)}, {vr(ACC+4*fb,4)}')
        if dl == 1:
            issue()
            adv()
            a(f'    s_cmp_gt_u32 s{TT}, s{NT}')
        a('    s_cbranch_scc1 B_loopdone' if slot == 0 else '    s_cbranch_scc0 B_loop')
    n0 = len(a.lines)
    body(0)
    body(1)
    drop = []
    if opt.get('x_halfacc'): drop += ['v_mfma_f32_16x16x32_bf16 v[32', 'v_mfma_f32_16x16x32_bf16 v[36', 'v_mov_b32_dpp']
    if opt.get('x_nomask'): drop += ['v_mfma_f32_16x16x32_bf16 v[72:75], v[80']
    if opt.get('x_notr'): drop += ['ds_read_b64_tr']
    if opt.get('x_nords'): drop += ['ds_read_b128 v[4', 'ds_read_b128 v[5', 'ds_read_b64_tr']
    if opt.get('x_nomfma'): drop += ['v_mfma']
    if opt.get('x_novalu'): drop += ['v_exp', 'v_rcp', 'v_add_f32', 'v_cvt', 'v_mov_b32_dpp', 'v_pk_add']
    if opt.get('bench'): drop += [f'v_add_u32 v{EA}, 256', f'v_add_u32 v{MAD}, 256']
    a.lines[n0:] = [l for l in a.lines[n0:] if not any(l.strip().startswith(d) for d in drop)]
    a(f'''
B_loopdone:
    s_cmp_lg_u32 s{MODE}, 0
    s_cbranch_scc1 C_next
B_epi:''')
    if opt.get('epi3'):
        a('    s_setprio 3')
    stamp(9)
    epi = opt.get('epi', 1)
    wve = opt.get('wve', 0)
    wv = [XA, XA+8, QLO, QHI]
    DO = XT
    def wvread(blks):
        for blk in blks:
            ad = WVA if blk == 0 else T+blk
            for ks in range(2):
                for h in range(2):
                    a(f'    ds_read_b64_tr_b16 {vr(wv[blk]+ks*4+h*2,2)}, v{ad} offset:{L_WV+(32*ks+16*h)*128}')
    def wvfirst():
        a(f"""
    v_xor_b32 v{T+1}, 8, v{WVA}
    v_xor_b32 v{T+2}, 16, v{WVA}
    v_xor_b32 v{T+3}, 24, v{WVA}""")
        wvread([0, 1, 2])
    if wve:
        a(f"""
    s_cmp_lg_u32 s{ISSUED}, 3
    s_cbranch_scc0 E_have""")
    wvfirst()
    a('E_have:')
    a('    s_waitcnt lgkmcnt(8)')
    wvread([3])
    if epi:
        a(f"""
    v_xor_b32 v{T+6}, 16, v{EPV}
    v_lshl_add_u32 v{T+5}, v{LANE}, 4, s{RING}""")
    else:
        a(f"""
    v_and_b32 v{T+4}, 7, v{LANE}
    v_lshlrev_b32 v{T+4}, 19, v{T+4}
    v_lshrrev_b32 v{T+5}, 4, v{LANE}
    v_lshl_add_u32 v{T+4}, v{T+5}, 5, v{T+4}
    s_lshl_b32 s{X0}, s{WID}, 15
    s_lshl_b32 s{X0+1}, s2, 7
    s_add_u32 s{PFT}, s{X0}, s{X0+1}""")
    for r in range(8):
        a(f'    v_cvt_pk_bf16_f32 v{S+r}, v{ACC+2*r}, v{ACC+2*r+1}')
    a('    s_nop 0')
    for blk in range(4):
        a(f'    s_waitcnt lgkmcnt({min(8, 12-4*blk)})')
        a(f'    v_mfma_f32_16x16x32_bf16 {vr(DO+4*blk,4)}, {vr(wv[blk],4)}, {vr(S,4)}, 0')
        a(f'    v_mfma_f32_16x16x32_bf16 {vr(DO+4*blk,4)}, {vr(wv[blk]+4,4)}, {vr(S+4,4)}, {vr(DO+4*blk,4)}')
    a(f'''
    s_cmp_lg_u32 s{WID}, 15
    s_cbranch_scc1 K_no2
    s_mov_b64 exec, 1
    s_cmp_lg_u32 s{GAVE}, 0
    s_cbranch_scc1 K_ticket
K_adv:
    v_mov_b32 v{T}, s{EPOCH}
    global_store_dword v{ZERO}, v{T}, s[18:19]
K_skip:
    s_mov_b64 exec, -1
K_no2:
    s_nop 2''')
    for r in range(4):
        a(f'    v_cvt_pk_bf16_f32 v{XA+r}, v{DO+2*r}, v{DO+2*r+1}')
    a(f'    s_mov_b64 exec, {sp(LOM)}')
    if epi:
        a(f'    ds_write_b128 v{EPV}, {vr(XA,4)}')
    else:
        a(f'    buffer_store_dwordx4 {vr(XA,4)}, v{T+4}, {sq(SOUT)}, s{PFT} offen{of}')
    for r in range(4, 8):
        a(f'    v_cvt_pk_bf16_f32 v{XA+r}, v{DO+2*r}, v{DO+2*r+1}')
    if epi:
        a(f'''
    ds_write_b128 v{T+6}, {vr(XA+4,4)}
    s_mov_b64 exec, -1
    ds_read_b128 {vr(XA+8,4)}, v{T+5}
    s_waitcnt lgkmcnt(0)
    buffer_store_dwordx4 {vr(XA+8,4)}, v{ROWOFF}, {sq(SOUT)}, 0 offen{of}''')
    else:
        a(f'''
    buffer_store_dwordx4 {vr(XA+4,4)}, v{T+4}, {sq(SOUT)}, s{PFT} offen offset:16{of}
    s_mov_b64 exec, -1''')
    if st:
        stamp(10)
        a('    s_waitcnt vmcnt(0)')
        stamp(11)
        if opt.get('tprof'):
            a(f'''
    s_mov_b64 exec, 0x7fe
    v_mov_b32 v{STV}, v{ATK}
    s_mov_b64 exec, -1''')
        a(f'''
    s_sub_u32 s18, s18, {opt.get('wsoff', 0) << 20}
    s_subb_u32 s19, s19, 0
    s_add_u32 s{X0}, s18, {STAMP_OFF}
    s_addc_u32 s{X0+1}, s19, 0
    s_lshl_b32 s{X0+2}, s2, 4
    s_add_u32 s{X0+2}, s{X0+2}, s{WID}
    s_lshl_b32 s{X0+2}, s{X0+2}, 6
    v_lshl_add_u32 v{T}, v{LANE}, 2, s{X0+2}
    s_mov_b64 exec, 0xffff
    global_store_dword v{T}, v{STV}, {sp(X0)}''')
        if 'amp' in opt:
            a(f'''
    v_readlane_b32 s60, v{STV}, 0
    v_readlane_b32 s61, v{STV}, {opt['amp']}
    v_readlane_b32 s62, v{STV}, 11
    s_sub_u32 s61, s61, s60
    s_mul_i32 s61, s61, {opt.get('ampk', 2)}
    s_min_u32 s61, s61, 20000
D_spin:
    s_memrealtime s[98:99]
    s_waitcnt lgkmcnt(0)
    s_sub_u32 s98, s98, s62
    s_cmp_lt_u32 s98, s61
    s_cbranch_scc1 D_spin''')
    a(f'''
L_end:
    s_endpgm
''')
    for slot in range(2):
        a(f'''
B_skip_{slot}:
    s_cmp_lg_u32 s{NTI}, 0
    s_cbranch_scc1 B_idle_{slot}
    s_mov_b32 s{RET}, {slot}
    s_cmp_ge_u32 s{TT}, {opt.get('pb', 4)}
    s_cbranch_scc1 F_final''')
        complete(EE, f'B_again_{slot}')
        a(f'''
    s_branch B_dma_{slot}
B_again_{slot}:
    ds_read_b128 {vr(EE,4)}, v{EA} offset:{slot*128+256}
    s_waitcnt lgkmcnt(0)''')
        complete(EE, 'F_final')
        a(f'''
    s_branch B_dma_{slot}
F_ret_{slot}:
    ds_read_b128 {vr(EE,4)}, v{EA} offset:{slot*128+256}
    s_waitcnt lgkmcnt(0)
    s_cmp_lt_u32 s{TT}, s{NT}
    s_cbranch_scc1 B_dma_{slot}
B_idle_{slot}:''')
        if opt.get('dl'):
            a(f'    s_branch B_cont_{slot}')
            if wve == 2:
                a(f'''
B_lastw_{slot}:
    s_waitcnt lgkmcnt(0)
    s_nop 3
    s_cmp_lg_u32 s{MODE}, 0
    s_cbranch_scc1 B_sig_{slot}
    s_mov_b32 s{ISSUED}, 3''')
                wvfirst()
                a(f'    s_branch B_sig_{slot}')
            continue
        if wve:
            a(f'''
    s_cmp_le_u32 s{TT}, s{NT}
    s_cbranch_scc1 B_id2_{slot}
    s_cmp_lg_u32 s{MODE}, 0
    s_cbranch_scc1 B_id2_{slot}
    s_mov_b32 s{ISSUED}, 3''')
            wvfirst()
            a(f'    s_branch B_cont_{slot}')
            a(f'B_id2_{slot}:')
        a(f'''
    s_nop 7
    s_branch B_cont_{slot}''')
    a(f"""
L_late:
    s_mov_b64 exec, {sp(S1)}
    s_cbranch_execz Y_done""")
    absorb1()
    a(f"""
    s_mov_b64 exec, {sp(S0)}
    s_cbranch_execz Z_doneb""")
    absorb0('b')
    a(f"""
    s_or_b64 exec, {sp(S0)}, {sp(S1)}
    s_cbranch_execnz L_ret
    s_mov_b32 s{OWNP}, 0
    s_mov_b64 exec, 1
    ds_add_u32 v{ZERO}, v{FOUR} offset:{L_DONE}""")
    if st:
        a(f'    v_writelane_b32 v{STV}, s{POLLN}, 15')
        a('    s_memrealtime s[98:99]')
        a('    s_waitcnt lgkmcnt(0)')
        a(f'    v_writelane_b32 v{STV}, s98, 7')
    a(f"""
L_ret:
    s_mov_b64 exec, -1
    s_waitcnt lgkmcnt(0)
    s_setpc_b64 {sp(LINK)}
G_short:
    v_readfirstlane_b32 s{X0}, v{T+1}
    s_cmp_eq_u32 s{OWNP}, 0
    s_cbranch_scc1 G_s2""")
    if sw < 4:
        a(f"""
    s_cmp_lg_u32 s{OWNP}, 2
    s_cbranch_scc1 G_s1
    s_call_b64 {sp(LINK)}, L_s2
    s_branch G_more
L_s2:
    s_mov_b64 exec, {sp(FR)}""")
        if opt.get('srt') == 2 and sw == 1:
            sort_rest()
        if band:
            for r in range(2):
                a(f'''
    v_cmp_ne_u32 {sp(VM+2*r)}, s{SEMPTY}, v{EN+r}
    s_andn2_b64 {sp(VM+2*r)}, {sp(VM+2*r)}, {sp(B1+2*r)}
    s_mov_b64 exec, {sp(VM+2*r)}
    ds_add_rtn_u32 v{RK+r}, v{G4+r}, v{FOUR} offset:{L_BCNT}
    s_mov_b64 exec, {sp(FR)}''')
            brank(2, sp(FR))
            brank(3, sp(FR))
            for r in range(4):
                a('    s_waitcnt lgkmcnt(3)')
                bput(r)
        else:
            rankwords(list(range(sw, 4)))
        a(settle)
        a(f'    s_setpc_b64 {sp(LINK)}')
        a('G_s1:')
    a(f"""
    s_waitcnt vmcnt(0)
    s_call_b64 {sp(LINK)}, L_late
    s_branch G_more
G_s2:
    s_setprio 0
    s_cmp_lt_u32 s{X0}, 64
    s_cbranch_scc1 G_more""")
    if xw == 4:
        a('    s_waitcnt vmcnt(0)')
        xnread()
        a('    s_waitcnt lgkmcnt(0)')
        qlate()
    if qdef:
        qfinish()
    a(f'''
B_counts:
    s_mov_b32 s{RET}, 2
F_final:
    s_cmp_eq_u32 s{OWNP}, 0
    s_cbranch_scc1 F_spin
    s_waitcnt vmcnt(0)
    s_call_b64 {sp(LINK)}, L_late
    s_branch F_final
F_spin:
    ds_read_b32 v{T+1}, v{CNTA} offset:{L_BCNT}
    s_waitcnt lgkmcnt(0)
    v_readlane_b32 s{X0}, v{T+1}, 26
    v_sub_u32 v{T+3}, v{T+1}, v{LBASE}
    s_cmp_lt_u32 s{X0}, 64
    s_cbranch_scc1 F_spin
    v_cmp_ne_u32 {sp(X0)}, 0, v{T+1}
    v_cmp_lt_u32 vcc, {GSTRIDE}, v{T+3}
    v_readlane_b32 s{NT}, v{T+3}, s{WID}
    s_and_b32 s{X0}, s{X0}, 0x9ff0000
    s_and_b32 s{X0+1}, vcc_lo, 0xffff
    s_or_b32 s{NTI}, s{X0+1}, s{X0}
    s_or_b32 s{NTI}, s{NTI}, s{MODE}
    s_cbranch_scc1 C_slowcnt
B_cntok:
    s_add_u32 s{NT}, s{NT}, 127
    s_lshr_b32 s{NT}, s{NT}, 7              ; tiles
    s_mov_b32 s{NTI}, s{NT}
    s_cbranch_scc0 B_loopdone
    s_cmp_eq_u32 s{RET}, 0
    s_cbranch_scc1 F_ret_0
    s_cmp_eq_u32 s{RET}, 1
    s_cbranch_scc1 F_ret_1
    s_branch B_first
K_ticket:
    v_mov_b32 v{T+1}, 1
    global_atomic_add v{ATK}, v{ZERO}, v{T+1}, s[16:17] sc0 sc1
    s_waitcnt vmcnt(0)
    v_readfirstlane_b32 s{X0}, v{ATK}
    s_cmp_eq_u32 s{X0}, {NWG-1}
    s_cbranch_scc1 K_adv
    s_branch K_skip
B_first:
    ds_read_b128 {vr(XA,4)}, v{EA}
    ds_read_b128 {vr(XA+4,4)}, v{EA} offset:128
    s_waitcnt lgkmcnt(0)
    s_cmp_eq_u32 s{ISSUED}, 1
    s_cbranch_scc1 B_f1''')
    dma(XA, 0)
    a(f'''
B_f1:
    s_cmp_lt_u32 s{NT}, 2
    s_cbranch_scc1 B_go''')
    dma(XA+4, 1)
    a('    s_branch B_go')
    def drop_lines():
        for r in range(4):
            a(f'    v_mov_b32 v{EN+r}, {EMPTY}')
        a(f'''
    v_lshrrev_b32 v{T}, 2, v0
    v_lshrrev_b32 v{T+1}, 5, v{T}
    v_lshlrev_b32 v{T+1}, 2, v{T+1}
    v_lshlrev_b32 v{T}, v{T}, 1
    ds_or_b32 v{T+1}, v{T} offset:{L_RESC}''')
    a(f'''
A_full:
    s_wqm_b64 exec, vcc
    v_mov_b32 v40, {FULLM}
    v_mov_b32 v41, {EMPTY}
    v_mov_b32 v42, {EMPTY}
    v_mov_b32 v43, {EMPTY}
    s_mov_b64 exec, -1
    s_branch A_pub''')
    for tag in rare:
        a(f'''
Z_give{tag}:
    ds_write_b32 v{ZERO}, v{FOUR} offset:{L_GAVE}''')
        drop_lines()
        a(f'''
    s_mov_b64 {sp(S0)}, 0
    s_mov_b32 s{POLLN}, 0
    s_branch Z_nr{tag}
Z_full{tag}:
    s_mov_b64 exec, vcc''')
        drop_lines()
        a(f'    s_branch Z_rank{tag}')
    a(f'''
Y_lost:
    s_wqm_b64 exec, exec
    s_andn2_b64 {sp(FR)}, {sp(FR)}, exec
    ds_write_b32 v{ZERO}, v{FOUR} offset:{L_REDO}''')
    for r in range(4, 8):
        a(f'    v_mov_b32 v{EN+r}, {EMPTY}')
    drop_lines()
    a(f'''
    s_mov_b64 {sp(S1)}, 0
    s_mov_b32 s{POLLN}, 0
    s_branch Y_nr
C_slowcnt:
    s_cmp_lg_u32 s{MODE}, 0
    s_cbranch_scc1 C_careful''')
    for k in range(8):
        a(f'    v_readlane_b32 s{RESC+k}, v{T+1}, {16+k}')
    a(f'''
    v_readlane_b32 s{GAVE}, v{T+1}, 25
    s_mov_b32 s{MODE}, 2
    s_cmp_lg_u32 s{X0+1}, 0
    s_cbranch_scc1 C_redo
    s_bitcmp1_b32 s{X0}, 27
    s_cbranch_scc1 C_redo
    s_mov_b32 s{MODE}, 1
    s_branch B_cntok
C_redo:
    ; a list ran over its neighbour: forget what was accumulated and redo all entries carefully''')
    for r in range(16):
        a(f'    v_mov_b32 v{ACC+r}, 0')
    a(f'''
    s_branch C_next
C_careful:
    s_min_u32 s{NT}, s{NT}, {GSTRIDE}
    s_bitcmp1_b32 s{X0}, 24
    s_cselect_b32 s{MODE}, 2, 1
    s_branch B_cntok
C_next:
    s_setprio 0
    s_mov_b32 s{ISSUED}, 0
    s_waitcnt vmcnt(0) lgkmcnt(0)
    s_barrier
    s_cmp_eq_u32 s{MODE}, 2
    s_cbranch_scc1 C_round
    s_mov_b32 s{X0}, -1''')
    for k in range(7, -1, -1):
        a(f'''
    s_ff1_i32_b32 s{X0+1}, s{RESC+k}
    s_add_u32 s{X0+1}, s{X0+1}, {32*k}
    s_cmp_lg_u32 s{RESC+k}, 0
    s_cselect_b32 s{X0}, s{X0+1}, s{X0}''')
    a(f'''
    s_cmp_eq_u32 s{X0}, -1
    s_cbranch_scc1 B_epi
    s_lshr_b32 s{X0+1}, s{X0}, 5
    s_lshl_b32 s{X0+2}, 1, s{X0}''')
    for k in range(8):
        a(f'''
    s_andn2_b32 s{X0+3}, s{RESC+k}, s{X0+2}
    s_cmp_eq_u32 s{X0+1}, {k}
    s_cselect_b32 s{RESC+k}, s{X0+3}, s{RESC+k}''')
    a(f'''
    s_mul_i32 s{X0}, s{X0}, {CH*4}''')
    for k in range(4):
        a(f'''
    buffer_load_dword v{ED+k}, v{T4}, {sq(SDST)}, s{X0} offen
    buffer_load_dword v{ES+k}, v{T4}, {sq(SSRC)}, s{X0} offen
    s_add_u32 s{X0}, s{X0}, 4096''')
    for r in range(4, 8):
        a(f'    v_mov_b32 v{EN+r}, {EMPTY}')
    a(f'    v_mov_b32 v{T+1}, {EMPTY}')
    a('    s_waitcnt vmcnt(0)')
    for k in range(4):
        a(f'''
    {f'v_add_u32_sdwa v{T}, v{ED+k}, v{ED+k} dst_sel:DWORD dst_unused:UNUSED_PAD src0_sel:BYTE_0 src1_sel:BYTE_1' if skew else f'v_mov_b32 v{T}, v{ED+k}'}
    v_and_b32 v{T}, 255, v{T}
    v_cmp_eq_u32 vcc, s2, v{T}
    v_lshrrev_b32 v{ED+k}, 8, v{ED+k}
    v_lshl_or_b32 v{ES+k}, v{ES+k}, 7, v{ED+k}''')
        if k == 3:
            a(f'    s_and_b64 vcc, vcc, {sp(M3)}')
        a(f'    v_cndmask_b32 v{EN+k}, v{T+1}, v{ES+k}, vcc')
    a(f'''
C_round:
    v_mov_b32 v{T+4}, {EMPTY}
    v_mov_b32 v{T+5}, {EMPTY}
    v_mov_b32 v{T+6}, {EMPTY}
    v_mov_b32 v{T+7}, {EMPTY}
    v_add_u32 v{T}, {L_LIST}, v{T16}
    ds_write_b128 v{T}, {vr(T+4,4)}
    s_cmp_ge_u32 s{WID}, 6
    s_cbranch_scc1 C_i1
    ds_write_b128 v{T}, {vr(T+4,4)} offset:16384
C_i1:
    s_cmp_lg_u32 s{WID}, 12
    s_cbranch_scc1 C_i2
    s_mov_b64 exec, 0xffff
    ds_write_b32 v{CNTA}, v{LBASE} offset:{L_BCNT}
    ds_write_b32 v{ZERO}, v{ZERO} offset:{L_PEND}
    s_mov_b64 exec, -1
C_i2:
    s_waitcnt lgkmcnt(0)
    s_barrier
    s_mov_b32 s{X0+4}, {GSTRIDE//4}
    s_mov_b32 s{X0+5}, {L_LIST+GSTRIDE}''')
    for r in range(8):
        brank(r, '-1')
        a(f'''
    v_mul_u32_u24 v{T+3}, s{X0+4}, v{G4+r}
    v_add_u32 v{T+3}, s{X0+5}, v{T+3}
    s_mov_b64 exec, {sp(VM+2*r)}
    s_waitcnt lgkmcnt(0)
    v_cmp_lt_u32 vcc, v{RK+r}, v{T+3}
    s_and_saveexec_b64 {sp(X0+6)}, vcc
    ds_write_b32 v{RK+r}, v{EN+r}
    v_mov_b32 v{EN+r}, {EMPTY}
    s_andn2_b64 exec, {sp(X0+6)}, exec
    ds_write_b32 v{ZERO}, v{FOUR} offset:{L_PEND}
    s_mov_b64 exec, -1''')
    a(f'''
    v_mov_b32 v{EA}, v{EA0}
    v_mov_b32 v{MAD}, v{MAD0}
    s_waitcnt lgkmcnt(0)
    s_barrier
L_last:
    s_branch B_counts''')
    if opt.get('red'):
        gen_red(a, opt)
    def kd(name, vg, sg):
        a(f'''
.p2align 6
.amdhsa_kernel {name}
  .amdhsa_next_free_vgpr {vg}
  .amdhsa_next_free_sgpr {sg}
  .amdhsa_accum_offset {vg}
  .amdhsa_group_segment_fixed_size 0
  .amdhsa_kernarg_size 64
  .amdhsa_user_sgpr_count 2
  .amdhsa_user_sgpr_kernarg_segment_ptr 1
  .amdhsa_system_sgpr_workgroup_id_x 1
.end_amdhsa_kernel''')
    a('.section .rodata,"a"')
    kd(KNAME, 128, 102)
    if opt.get('red'):
        kd('red_kernel', 32, 48)
    return a.text()

if __name__ == '__main__':
    out = sys.argv[1]
    opt = {}
    for kv in sys.argv[2:]:
        k, v = kv.split('=')
        try:
            v = int(v)
        except ValueError:
            v = '' if v == 'none' else ' ' + v.replace('+', ' ')
        opt[k] = v
    open(out, 'w').write(build(opt))
```

```python
import sys, struct
from gen3 import gen_red

N, E, D = 25000, 800000, 64
NWG = 256
CH = E // NWG
HSTRIDE = 16384 + 128
SEG_OFF = 4096
H1_OFF = 256 * HSTRIDE
WS_USED = SEG_OFF + 2 * H1_OFF
X_BYTES = N * 128
EMPTY = 0x003FFFFF
FULLM = 0x003FFFFE
KNAME = 'standalone__kernel_systems_refs_featgraph__graph_kernel'

L_ACNT = 0
L_BCNT = 1024
L_RESC = 1088
L_PEND = 1120
L_GAVE = 1124
L_DONE = 1128
L_REDO = 1132
L_LUT = 1152
L_WV = 2048
L_RING = 10240
L_LIST = L_RING + 131072
GSTRIDE = 1408
L_XN = L_RING + 32768
L_WQ = L_RING + 65536
ISTRIDE = 144
L_IMG = L_LIST - 256 * ISTRIDE
LDS = 163840
STAMP_OFF = 0x1000000

def f32bits(x):
    return struct.unpack('<I', struct.pack('<f', x))[0]

class Asm:
    def __init__(self):
        self.lines = []
    def __call__(self, s):
        for ln in s.strip('\n').split('\n'):
            if ln.strip():
                self.lines.append(ln)
    def text(self):
        return '\n'.join(self.lines) + '\n'

def vr(lo, n):
    return f'v[{lo}:{lo+n-1}]'
def sp(lo):
    return f's[{lo}:{lo+1}]'
def sq(lo):
    return f's[{lo}:{lo+3}]'

def srd(a, d, lo, nbytes):
    a(f'    s_mov_b32 s{d}, s{lo}')
    a(f'    s_mov_b32 s{d+1}, s{lo+1}')
    a(f'    s_mov_b32 s{d+2}, {nbytes}')
    a(f'    s_mov_b32 s{d+3}, 0x00020000')

LANE, T4, T16, FOUR, ZERO, ROWOFF, WVA = 1, 2, 3, 4, 5, 6, 7
QLO, QHI, ACC, XA, XT, S, PP, MA, MB, EE = 8, 16, 24, 40, 56, 72, 76, 80, 84, 88
M0R, M1R, RA0, RA1, RT, EA, MAD, CHK, EA0 = 92, 93, 94, 95, 96, 100, 101, 102, 103
T = 104
EN = 112
MAD0, PFD, ATK, STV, CNTA, EPV, LBASE = 120, 121, 122, 123, 124, 125, 126
ED, ES, B4, PS = 40, 44, 48, 52
WD, XN = 56, 60
IMGR, STO, WSA = 68, 69, 70
G4, RK = 40, 48

GAVE = 3
SX, SSRC, SDST, SW, EPOCH, ISSUED, SOUT, SWS = 20, 24, 28, 32, 34, 35, 36, 40
WID, SEGB, AMASK, RING, NT, TT = 44, 45, 46, 47, 48, 49
TAG = 50
SEMPTY, MODE, LOM, M3 = 54, 55, 56, 58
RESC = 60
FR, N1 = 60, 62
VM = 68
X0 = 84
H1SO, KFULL, S0, S1, K88, KTHR, PFT, POLLN, PRIME = 86, 87, 88, 90, 92, 94, 95, 96, 97
NTI, RET = 32, 33
OWNP, LINK = 97, 10

def build(opt):
    a = Asm()
    st = opt.get('stamps')
    def rstamp(k):
        if opt.get('rp'):
            a('    s_memrealtime s[98:99]')
            a('    s_waitcnt lgkmcnt(0)')
            a(f'    v_writelane_b32 v{STV}, s98, {k}')
    def stamp(k):
        if opt.get('rp') and k in (1, 2, 3, 4, 5):
            return
        if st:
            ck = {0: 14, 7: 12, 9: 13}.get(k)
            if ck:
                a('    s_memtime s[100:101]')
            a('    s_memrealtime s[98:99]')
            a('    s_waitcnt lgkmcnt(0)')
            a(f'    v_writelane_b32 v{STV}, s98, {k}')
            if ck:
                a(f'    v_writelane_b32 v{STV}, s100, {ck}')
    launch = (f'; @launch kernel={KNAME} grid=({NWG},1,1) block=(1024,1,1) lds={LDS}' if opt.get('list') else
              f'; @launch grid=({NWG},1,1) block=(1024,1,1) lds={LDS}')
    if opt.get('red'):
        launch += '\n; @launch kernel=red_kernel grid=(1,1,1) block=(64,1,1) lds=0'
    sf = opt.get('st', ' sc1')
    lf = opt.get('ld', ' sc1')
    gf = opt.get('gather', '')
    of = opt.get('out', '')
    a(f'''; FeatGraph (SDDMM sigmoid gate + SpMM) in one launch, one workgroup per CU.
{launch}
.amdgcn_target "amdgcn-amd-amdhsa--gfx950"
.text
.globl {KNAME}
.p2align 8
.type {KNAME},@function
{KNAME}:
    s_cmp_ge_u32 s2, {NWG}
    s_cbranch_scc1 L_end''')
    if st:
        a(f'    v_mov_b32 v{STV}, 0')
        a(f'    v_mov_b32 v{ATK}, 0')
    stamp(0)
    a('    s_load_dwordx16 s[4:19], s[0:1], 0')
    a(f'''
    s_and_b32 s{X0}, s2, 7
    s_lshl_b32 s{X0}, s{X0}, 5
    s_lshr_b32 s2, s2, 3
    s_or_b32 s2, s2, s{X0}''')
    if opt.get('cpf'):
        a(f'''
    s_getpc_b64 {sp(S0)}
I_pc:
    v_lshlrev_b32 v127, 7, v0
    v_cmp_gt_u32 vcc, A_full-I_pc, v127
    s_and_saveexec_b64 {sp(S1)}, vcc
    s_cbranch_execz I_c
    global_load_dword v127, v127, {sp(S0)}
I_c:
    s_mov_b64 exec, -1''')
    a(f'''
    s_mul_i32 s{X0}, s2, {CH*4}
    v_lshlrev_b32 v{T4}, 2, v0
    v_lshrrev_b32 v{T+4}, 6, v0
    v_add_u32 v{T}, s{X0}, v{T4}
    v_readfirstlane_b32 s{WID}, v{T+4}
    v_add_u32 v{T+1}, 4096, v{T}
    v_add_u32 v{T+2}, 8192, v{T}
    v_add_u32 v{T+3}, 12288, v{T}
    v_cmp_gt_u32 {sp(M3)}, {CH-3072}, v0
    v_lshlrev_b32 v{T16}, 4, v0
    v_mov_b32 v{ZERO}, 0
    v_mov_b32 v{T+4}, {EMPTY}
    v_mov_b32 v{T+5}, {EMPTY}
    v_mov_b32 v{T+6}, {EMPTY}
    v_mov_b32 v{T+7}, {EMPTY}
    s_waitcnt lgkmcnt(0)
    {f's_add_u32 s18, s18, {opt["wsoff"] << 20}' if opt.get('wsoff') else ''}
    {f's_addc_u32 s19, s19, 0' if opt.get('wsoff') else ''}
    {f'global_load_dword v{EPV}, v{ZERO}, s[18:19]      ; epoch word' if opt.get('epf') else ''}
    s_mov_b64 exec, {sp(M3)}
    s_cbranch_execz A_no3a
    global_load_dword v{ED+3}, v{T+3}, s[8:9]{opt.get('ef', '')}
    global_load_dword v{ES+3}, v{T+3}, s[6:7]{opt.get('ef', '')}
A_no3a:
    s_mov_b64 exec, -1''')
    for k in range(3):
        a(f"    global_load_dword v{ED+k}, v{T+k}, s[8:9]{opt.get('ef', '')}")
    for k in range(3):
        a(f"    global_load_dword v{ES+k}, v{T+k}, s[6:7]{opt.get('ef', '')}")
    skew = opt.get('skew', 0)
    xw = opt.get('xw', 0)
    xe = opt.get('xe', 0)
    cw = opt.get('cw', 0)
    wl = opt.get('wl', 0)
    assert opt.get('epf')
    def ldsfill():
        a(f"""
    v_add_u32 v{T}, {L_IMG}, v{T16}
    ds_write_b128 v{T}, {vr(T+4,4)}
    ds_write_b128 v{T}, {vr(T+4,4)} offset:16384
    s_cmp_ge_u32 s{WID}, 4
    s_cbranch_scc1 I_a
    ds_write_b128 v{T}, {vr(T+4,4)} offset:32768
    ds_write_b32 v{T4}, v{ZERO} offset:{L_ACNT}
I_a:""")
    def rowsetup():
        a(f"""
    v_and_b32 v{LANE}, 63, v0
    v_mov_b32 v{FOUR}, 4""")
        srd(a, SX, 4, X_BYTES)
        a(f"""
    s_cmp_lt_u32 s{WID}, 8
    s_cselect_b32 s{SW}, s10, s12
    s_cselect_b32 s{SW+1}, s11, s13
    v_lshrrev_b32 v{T}, 3, v{LANE}
    v_and_b32 v{T+1}, 7, v{LANE}
    v_xor_b32 v{T+1}, v{T+1}, v{T}
    v_lshlrev_b32 v{T+1}, 4, v{T+1}""")
        if skew:
            a(f"""
    v_lshl_add_u32 v{T}, v{T}, 4, s{WID}    ; local
    v_sub_u32 v{T+2}, s2, v{T}
    v_and_b32 v{T+2}, 255, v{T+2}
    v_lshl_or_b32 v{T}, v{T}, 8, v{T+2}     ; node
    v_lshl_add_u32 v{ROWOFF}, v{T}, 7, v{T+1}""")
        else:
            a(f"""
    v_lshlrev_b32 v{T}, 19, v{T}
    s_lshl_b32 s{X0}, s{WID}, 15
    s_lshl_b32 s{X0+1}, s2, 7
    s_add_u32 s{X0}, s{X0}, s{X0+1}
    v_add3_u32 v{ROWOFF}, v{T}, v{T+1}, s{X0}""")
        a(f"""
    s_lshl_b32 s{X0}, s{WID}, 10
    s_add_u32 m0, s{X0}, {L_XN}""")
    def wload():
        a(f'    v_and_b32 v{T+3}, 0x1ff0, v{T16}')
        a(f'    global_load_dwordx4 {vr(WD,4)}, v{T+3}, {sp(SW)}')
    def xload():
        a(f'    buffer_load_dwordx4 v{ROWOFF}, {sq(SX)}, 0 offen lds')
    def early():
        if xw in (0, 2, 4) and not wl:
            wload()
        if xw == 0:
            xload()
        if cw == 1:
            a(f"""
    s_mul_i32 s{PFT}, s2, {98*128}
    s_mul_i32 s{X0}, s{WID}, {7*128}
    s_add_u32 s{PFT}, s{PFT}, s{X0}
    v_lshlrev_b32 v{T}, 7, v{LANE}
    s_cmp_lt_u32 s{WID}, 14
    s_cselect_b32 exec_lo, 0x7f, 1
    s_mov_b32 exec_hi, 0
    buffer_load_dword v{ATK}, v{T}, {sq(SX)}, s{PFT} offen
    s_mov_b64 exec, -1""")
        if cw == 2:
            a(f"""
    s_mul_i32 s{PFT}, s2, {98*128}
    s_and_b32 s{X0}, s{WID}, 1
    s_mul_i32 s{X0}, s{X0}, {49*128}
    s_add_u32 s{PFT}, s{PFT}, s{X0}
    v_lshlrev_b32 v{T}, 7, v{LANE}
    s_cmp_ge_u32 s{WID}, 14
    s_cselect_b32 s{PFT}, s{PFT}, 0x7ffff000
    s_cselect_b32 exec_lo, -1, 1
    s_cselect_b32 exec_hi, 0x1ffff, 0
    buffer_load_dword v{ATK}, v{T}, {sq(SX)}, s{PFT} offen
    s_mov_b64 exec, -1""")
    if xe:
        rowsetup()
        if xe == 2:
            a('    s_barrier')
        early()
        ldsfill()
    else:
        ldsfill()
        rowsetup()
    a("""
    s_waitcnt lgkmcnt(0)
    s_barrier""")
    if not xe:
        early()
    pfpos = [0]
    def prefetch(n):
        lo, hi = pfpos[0], pfpos[0] + n
        pfpos[0] = hi
        m = ((1 << hi) - 1) ^ ((1 << lo) - 1)
        a(f'''
    s_lshr_b32 s{PFT}, s2, 3
    s_lshl_b32 s{PFT}, s{PFT}, 4
    s_add_u32 s{PFT}, s{PFT}, s{WID}
    s_mul_i32 s{PFT}, s{PFT}, {49*128}
    v_lshlrev_b32 v{T}, 7, v{LANE}
    s_mov_b32 exec_lo, 0x{m & 0xffffffff:x}
    s_mov_b32 exec_hi, 0x{m >> 32:x}
    buffer_load_dword v{ATK}, v{T}, {sq(SX)}, s{PFT} offen
    s_mov_b64 exec, -1''')
    p = 1 if cw else 0
    srd(a, SWS, 18, WS_USED)
    if opt.get('tlb'):
        sh = opt['tlb']
        n1 = -(-(SEG_OFF + 2*H1_OFF) // (16 << sh))
        n2 = -(-X_BYTES // (16 << sh))
        srd(a, SOUT, 14, X_BYTES)
        a(f'''
    s_mul_i32 s{PFT}, s{WID}, {n1}
    v_add_u32 v{T}, s{PFT}, v{LANE}
    v_lshlrev_b32 v{T}, {sh}, v{T}
    s_mul_i32 s{PFT}, s{WID}, {n2}
    v_add_u32 v{T+1}, s{PFT}, v{LANE}
    v_lshlrev_b32 v{T+1}, {sh}, v{T+1}
    s_mov_b64 exec, {(1 << n1) - 1}
    buffer_load_dword v{ATK}, v{T}, {sq(SWS)}, 0 offen
    s_mov_b64 exec, {(1 << n2) - 1}
    buffer_load_dword v{ATK}, v{T+1}, {sq(SOUT)}, 0 offen
    s_mov_b64 exec, -1''')
        p += 2
    if opt.get('pf1'):
        prefetch(opt['pf1'])
        p += 1
    nw = {0: 2, 1: 0, 2: 1, 3: 0, 4: 0 if wl else 1}[xw]
    y = (0 if opt.get('epf') else 1) + nw + p
    wdec = 1
    if opt.get('x_xnwait'):
        a('    s_waitcnt vmcnt(0)')
    stamp(1)
    a(f'''
    v_add_u32 v{T}, {L_LIST}, v{T16}
    ds_write_b128 v{T}, {vr(T+4,4)}
    s_cmp_ge_u32 s{WID}, 6
    s_cbranch_scc1 I_b
    ds_write_b128 v{T}, {vr(T+4,4)} offset:16384
I_b:
    v_and_b32 v{LBASE}, 15, v{LANE}
    v_mul_u32_u24 v{LBASE}, {GSTRIDE}, v{LBASE}
    v_add_u32 v{LBASE}, {L_LIST}, v{LBASE}
    v_and_b32 v{CNTA}, 0x7c, v{T4}
    s_cmp_lg_u32 s{WID}, 12
    s_cbranch_scc1 I_done
    v_cmp_gt_u32 vcc, 16, v{LANE}
    s_mov_b32 exec_hi, 0
    s_nop 0
    v_cndmask_b32 v{T+2}, 0, v{LBASE}, vcc
    ds_write_b32 v{CNTA}, v{T+2} offset:{L_BCNT}
    s_mov_b64 exec, 0xff
    v_cvt_f32_u32 v{T+2}, v{LANE}
    v_mul_f32 v{T+3}, v{T+2}, v{T+2}
    v_cvt_pk_bf16_f32 v{T+2}, v{T+3}, v{T+2}
    v_lshlrev_b32 v{T+3}, 4, v{LANE}
    ds_write_b32 v{T+3}, v{T+2} offset:{L_LUT}
    s_mov_b64 exec, -1
I_done:''')
    a(f'''
''')
    G = opt.get('grp', 2)
    lg = G.bit_length() - 1
    BLK = G * HSTRIDE
    a(f'''
    s_lshl_b32 s{X0}, s2, {6+lg}
    s_add_u32 s{X0}, s{X0}, {SEG_OFF}
    s_add_u32 s{X0+1}, s{X0}, {H1_OFF}
    s_lshr_b32 s{SEGB}, s2, {lg}
    s_mul_i32 s{SEGB}, s{SEGB}, {BLK}
    s_and_b32 s{S0}, s2, {G-1}
    s_lshl_b32 s{S0}, s{S0}, 6
    s_add_u32 s{SEGB}, s{SEGB}, s{S0}
    s_add_u32 s{SEGB}, s{SEGB}, {SEG_OFF}
    v_lshrrev_b32 v{T}, 2, v0
    v_and_b32 v{T+1}, 3, v0
    v_mul_u32_u24 v{IMGR}, {ISTRIDE}, v{T}
    v_lshl_add_u32 v{IMGR}, v{T+1}, 2, v{IMGR}
    v_add_u32 v{IMGR}, {L_IMG}, v{IMGR}
    v_lshrrev_b32 v{T+2}, {2+lg}, v0
    v_mul_u32_u24 v{STO}, {BLK}, v{T+2}
    v_and_b32 v{T+2}, {64*G-1}, v{T16}
    v_add_u32 v{STO}, v{STO}, v{T+2}
    v_lshlrev_b32 v{T+1}, 4, v{T+1}
    v_lshl_add_u32 v{PFD}, v{T}, {6+lg}, v{T+1}''')
    pair = 1
    LDV = PFD if pair else T16
    a(f'''
    s_mov_b32 s{SEMPTY}, {EMPTY}
    s_mov_b32 s{KTHR}, {L_IMG}
    s_mov_b32 s{K88}, 0x88888888
    s_mov_b32 s{K88+1}, 0x88888888
    v_bfe_u32 v{T}, v0, 3, 6
    v_and_b32 v{T+1}, 7, v0
    v_bfe_u32 v{T+2}, v{T}, 1, 1
    v_and_or_b32 v{T+2}, v{T}, 8, v{T+2}
    v_bfe_u32 v{T+3}, v{T}, 1, 2
    s_cmp_lt_u32 s{WID}, 8
    s_cselect_b64 {sp(S0)}, -1, 0
    s_mov_b32 s{S1}, {L_WV}
    s_cselect_b32 s{S1}, {L_WQ}, s{S1}
    s_bfe_u32 s{S1+1}, s{WID}, 0x20002
    s_cmp_eq_u32 s{S1+1}, 1
    s_cselect_b32 s{S1+1}, 4096, 0
    s_add_u32 s{S1}, s{S1}, s{S1+1}
    v_cndmask_b32 v{T+2}, v{T+3}, v{T+2}, {sp(S0)}
    v_lshlrev_b32 v{T+1}, 1, v{T+1}
    v_xor_b32 v{T+1}, v{T+1}, v{T+2}
    v_lshlrev_b32 v{T+1}, 3, v{T+1}
    v_lshl_add_u32 v{T+1}, v{T}, 7, v{T+1}
    v_add_u32 v{WSA}, s{S1}, v{T+1}
    v_xor_b32 v{WSA+1}, 8, v{WSA}''')
    xp = opt.get('xp', 0)
    a(f'''
    v_bfrev_b32 v{T+4}, -2''')
    def arank(k):
        if skew:
            a(f'''
    v_add_u32_sdwa v{B4+k}, v{ED+k}, v{ED+k} dst_sel:DWORD dst_unused:UNUSED_PAD src0_sel:BYTE_0 src1_sel:BYTE_1''')
        a(f'''
    v_lshlrev_b32_sdwa v{B4+k}, 2, v{B4+k if skew else ED+k} dst_sel:DWORD dst_unused:UNUSED_PAD src0_sel:DWORD src1_sel:BYTE_0
    ds_add_rtn_u32 v{PS+k}, v{B4+k}, v{FOUR} offset:{L_ACNT}''')
    def aentry(k):
        a(f'''
    v_lshrrev_b32 v{ED+k}, 8, v{ED+k}
    v_lshl_or_b32 v{ES+k}, v{ES+k}, 7, v{ED+k}
    v_mad_u32_u24 v{B4+k}, v{B4+k}, {ISTRIDE//4}, s{KTHR}''')
    def aput(k):
        a(f'''
    v_min_u32 v{PS+k}, {ISTRIDE-4}, v{PS+k}
    v_add_u32 v{PS+k}, v{PS+k}, v{B4+k}
    ds_write_b32 v{PS+k}, v{ES+k}''')
    a(f'    s_waitcnt vmcnt({y+3})')
    stamp(2)
    for k in range(3):
        arank(k)
    a(f'    s_waitcnt vmcnt({y})')
    for k in range(3):
        aentry(k)
    for k in range(3):
        a('    s_waitcnt lgkmcnt(2)')
        aput(k)
    a(f'''
    s_mov_b64 exec, {sp(M3)}
    s_cbranch_execz A_no3b''')
    arank(3)
    aentry(3)
    a('    s_waitcnt lgkmcnt(0)')
    aput(3)
    a(f'''
A_no3b:
    s_mov_b64 exec, -1
    s_waitcnt vmcnt({p + nw})
    v_readfirstlane_b32 s{EPOCH}, v{EPV}''')
    if xw == 3:
        wload()
        xload()
    if opt.get('pfr'):
        prefetch(opt['pfr'])
        p += 1
    a(f'''
    {f'ds_write_b64 v{WSA}, {vr(WD,2)}' if not wdec else ''}
    {f'ds_write_b64 v{WSA+1}, {vr(WD+2,2)}' if not wdec else ''}
    s_add_u32 s{EPOCH}, s{EPOCH}, 1
    s_lshl_b32 s{TAG}, s{EPOCH}, 22
    s_lshl_b32 s{TAG+1}, s{EPOCH}, 12
    s_and_b32 s{TAG+1}, s{TAG+1}, 0xffc00000
    s_lshl_b32 s{TAG+2}, s{EPOCH}, 2
    s_and_b32 s{TAG+2}, s{TAG+2}, 0xffc00000
    s_add_u32 s{TAG+1}, s{TAG+1}, s{TAG}
    s_add_u32 s{TAG+2}, s{TAG+2}, s{TAG}
    s_xor_b32 s{TAG+3}, s{TAG}, 0xffc00000
    s_waitcnt lgkmcnt(0)
    s_barrier''')
    stamp(3)
    a(f'''
    ds_read_b32 v48, v{IMGR} offset:128
    ds_read2_b32 {vr(40,2)}, v{IMGR} offset0:0 offset1:4
    ds_read2_b32 {vr(42,2)}, v{IMGR} offset0:8 offset1:12
    ds_read2_b32 {vr(44,2)}, v{IMGR} offset0:16 offset1:20
    ds_read2_b32 {vr(46,2)}, v{IMGR} offset0:24 offset1:28
    s_waitcnt lgkmcnt(4)
    v_cmp_ne_u32 vcc, s{SEMPTY}, v48
    s_waitcnt lgkmcnt(2)
    s_cbranch_vccnz A_full
A_pub:
    v_cmp_ne_u32 vcc, s{SEMPTY}, v43''')
    for r in range(4):
        a(f'    v_or_b32 v{40+r}, s{TAG+r}, v{40+r}')
    a(f'''
    buffer_store_dwordx4 {vr(40,4)}, v{STO}, {sq(SWS)}, s{X0} offen{sf}
    s_and_b64 {sp(S0)}, vcc, {sp(K88)}''')
    if opt.get('h1o'):
        a(f'''
    s_lshr_b64 {sp(S1)}, {sp(S0)}, 4
    s_or_b64 {sp(S0)}, {sp(S0)}, {sp(S1)}
    s_and_b32 s{S0}, s{S0}, 0x08080808
    s_and_b32 s{S0+1}, s{S0+1}, 0x08080808
    s_lshl_b64 {sp(S1)}, {sp(S0)}, 4
    s_or_b64 {sp(S0)}, {sp(S0)}, {sp(S1)}''')
    a(f'''
    s_wqm_b64 vcc, {sp(S0)}
    {'s_mov_b64 vcc, 0' if opt.get('x_noh1') == 2 else ''}
    s_waitcnt lgkmcnt(0)''')
    for r in range(4):
        a(f'    v_or_b32 v{44+r}, s{TAG+r}, v{44+r}')
    a(f'''
''')
    h1f = opt.get('h1f', 0)
    if h1f:
        a(f'''
    v_and_b32 v{T+5}, 0x30, v{T16}
    v_lshlrev_b32 v{STO}, 1, v{STO}
    v_sub_u32 v{STO}, v{STO}, v{T+5}''')
    a(f'''
    v_cndmask_b32 v{STO}, v{T+4}, v{STO}, vcc
    buffer_store_dwordx4 {vr(44,4)}, v{STO}, {sq(SWS)}, s{X0+1} offen{sf}''')
    if h1f == 2:
        a(f'    buffer_store_dwordx4 {vr(44,4)}, v{STO}, {sq(SWS)}, s{X0+1} offen offset:64{sf}')
        p += 1
    H1V = LDV
    if h1f:
        H1V = PFD
        a(f'''
    v_lshlrev_b32 v{PFD}, 1, v{T16}
    v_sub_u32 v{PFD}, v{PFD}, v{T+5}''')
    if opt.get('pfb'):
        prefetch(opt['pfb'])
        p += 1
    stamp(4)
    if xw == 1:
        wload()
    if xw in (1, 2):
        xload()
    def wstage(n):
        a(f'''
    s_waitcnt vmcnt({n})
    ds_write_b64 v{WSA}, {vr(WD,2)}
    ds_write_b64 v{WSA+1}, {vr(WD+2,2)}''')
    if xw in (0, 2):
        wstage(p + 3)
    def stouch():
        step = opt.get('sstep', 128)
        a(f'''
    s_mul_i32 s{X0}, s2, {98*128}
    s_mul_i32 s{X0+1}, s{WID}, {7*128}
    s_add_u32 s{X0}, s{X0}, s{X0+1}
    s_min_u32 s{X0}, s{X0}, {X_BYTES - 7*128}
    s_add_u32 s{X0}, s4, s{X0}
    s_addc_u32 s{X0+1}, s5, 0''')
        for o in range(0, 7*128, step):
            a(f'    s_load_dword s101, {sp(X0)}, {o}')
    if xw == 4 and wl:
        wload()
    elif xw == 4:
        wstage(p + 2)
        if opt.get('stc'):
            a('    s_waitcnt lgkmcnt(0)')
            stouch()
    WQA, XNA = 88, 92
    a(f"""
    v_lshrrev_b32 v{T+5}, 4, v{LANE}        ; g
    v_bfe_u32 v{T+1}, v{LANE}, 2, 2
    v_lshl_add_u32 v{T+2}, v{T+5}, 3, v{T+1}
    v_bfe_u32 v{T+3}, v{T+2}, 1, 1
    v_and_or_b32 v{T+3}, v{T+2}, 8, v{T+3}
    v_and_b32 v{T+4}, 3, v{LANE}            ; c
    v_lshlrev_b32 v{T+6}, 1, v{T+4}
    v_xor_b32 v{T+3}, v{T+3}, v{T+6}
    v_lshlrev_b32 v{T+3}, 3, v{T+3}
    v_lshl_add_u32 v{T}, v{T+2}, 7, v{T+3}
    v_add_u32 v{WQA}, {L_WQ}, v{T}
    v_xor_b32 v{WQA+1}, 8, v{WQA}
    v_xor_b32 v{WQA+2}, 64, v{WQA}
    v_xor_b32 v{WQA+3}, 0x48, v{WQA}
    v_and_b32 v{T+7}, 7, v{LANE}
    v_xor_b32 v{T}, v{T+5}, v{T+7}
    v_lshlrev_b32 v{T}, 4, v{T}
    v_lshl_add_u32 v{T}, v{T+7}, 7, v{T}
    s_lshl_b32 s{X0}, s{WID}, {13 if xw == 4 else 10}
    s_add_u32 s{X0}, s{X0}, {L_RING + 7168 if xw == 4 else L_XN}
    v_add_u32 v{XNA}, s{X0}, v{T}
    v_xor_b32 v{XNA+1}, 64, v{XNA}""")
    nb = opt.get('nb', 0)
    wq = [ACC, ACC+8, XT, XT+8] if xw == 4 else [XA, XA+8, XA+16, XA+24]
    def wqread():
        for blk in range(4):
            for ks in range(2):
                for h in range(2):
                    a(f'    ds_read_b64_tr_b16 {vr(wq[blk]+ks*4+h*2,2)}, v{WQA+blk} offset:{8192*ks + 512*h}')
            if blk == 2:
                a('    s_waitcnt lgkmcnt(8)')
    if nb:
        a('    s_waitcnt lgkmcnt(0)')
        a('    s_barrier')
        wqread()
    srd(a, SOUT, 14, X_BYTES)
    srd(a, SSRC, 6, E*4)
    srd(a, SDST, 8, E*4)
    a(f"""
    s_add_u32 s{H1SO}, s{SEGB}, {H1_OFF}
    {f's_mul_i32 s{H1SO}, s2, {2*HSTRIDE}' if h1f else ''}
    {f's_add_u32 s{H1SO}, s{H1SO}, {SEG_OFF+H1_OFF}' if h1f else ''}
    s_mov_b32 s{AMASK}, 0x003fff80
    s_lshl_b32 s{RING}, s{WID}, 13
    s_add_u32 s{RING}, s{RING}, {L_RING}
    s_mov_b32 s{MODE}, 0
    s_mov_b32 s{GAVE}, 0
    s_mov_b32 s{LOM}, 0x00ff00ff
    s_mov_b32 s{LOM+1}, 0x00ff00ff
    v_and_b32 v{T+1}, 15, v{LANE}           ; i
    v_lshrrev_b32 v{T}, 3, v{LANE}
    v_and_b32 v{T+6}, 6, v{T}
    v_xor_b32 v{T+6}, v{T+6}, v{T+7}
    v_lshlrev_b32 v{CHK}, 4, v{T+6}
    s_mul_i32 s{X0}, s{WID}, {GSTRIDE}
    s_add_u32 s{X0}, s{X0}, {L_LIST}
    v_lshl_add_u32 v{EA0}, v{T}, 4, s{X0}
    v_bfe_u32 v{T+6}, v{LANE}, 3, 2
    v_lshl_add_u32 v{T+6}, v{T+7}, 2, v{T+6}
    v_lshl_add_u32 v{MAD0}, v{T+6}, 2, s{X0}
    v_and_b32 v{T+6}, 6, v{T+1}
    v_xor_b32 v{T+6}, v{T+6}, v{T+5}
    v_lshlrev_b32 v{T+6}, 4, v{T+6}
    v_lshl_add_u32 v{T+6}, v{T+1}, 7, v{T+6}
    v_add_u32 v{RA0}, s{RING}, v{T+6}
    v_xor_b32 v{RA1}, 64, v{RA0}
    v_lshrrev_b32 v{T+6}, 2, v{LANE}        ; row = 4g+r
    v_and_b32 v{T+1}, 6, v{T+6}
    v_bfe_u32 v{T+5}, v{LANE}, 1, 1
    v_xor_b32 v{T+1}, v{T+1}, v{T+5}
    v_lshlrev_b32 v{T+1}, 4, v{T+1}
    v_lshl_add_u32 v{T+1}, v{T+6}, 7, v{T+1}
    v_and_b32 v{T+5}, 1, v{LANE}
    v_lshl_add_u32 v{T+1}, v{T+5}, 3, v{T+1}
    v_add_u32 v{RT}, s{RING}, v{T+1}
    v_xor_b32 v{RT+1}, 32, v{RT}
    v_xor_b32 v{RT+2}, 64, v{RT}
    v_xor_b32 v{RT+3}, 0x60, v{RT}
    v_bfe_u32 v{T+5}, v{T+6}, 1, 2
    v_lshl_or_b32 v{T+5}, v{T+4}, 2, v{T+5}
    v_lshlrev_b32 v{T+5}, 3, v{T+5}
    v_lshl_add_u32 v{WVA}, v{T+6}, 7, v{T+5}
    v_lshrrev_b32 v{T+5}, 3, v{LANE}
    v_and_b32 v{T+5}, 6, v{T+5}
    v_xor_b32 v{T+5}, v{T+5}, v{T+7}
    v_lshlrev_b32 v{T+5}, 4, v{T+5}
    v_lshl_add_u32 v{T+5}, v{T+7}, 7, v{T+5}
    v_add_u32 v{EPV}, s{RING}, v{T+5}
    v_mov_b32 v{MA+1}, 0x00003f80
    v_mov_b32 v{MA+2}, 0
    v_mov_b32 v{MA+3}, 0
    v_mov_b32 v{MB}, 0
    v_mov_b32 v{MB+1}, 0
    v_mov_b32 v{MB+2}, 0
    v_mov_b32 v{MB+3}, 0
    v_cvt_f32_u32 v{T+5}, v{T+7}            ; j' = l&7
    v_mov_b32 v{T+6}, 0x71800000            ; BIG = 2^100
    v_mul_f32 v{T+7}, v{T+5}, v{T+6}
    v_mul_f32 v{T+5}, v{T+5}, v{T+7}
    v_mul_f32 v{T+7}, -2.0, v{T+7}
    s_mov_b32 exec_lo, 0xff0000ff
    s_mov_b32 exec_hi, 0
    v_cvt_pk_bf16_f32 v{MB}, v{T+6}, v{T+7}
    v_cvt_pk_bf16_f32 v{MB+1}, v{T+5}, 0
    s_mov_b64 exec, -1""")
    if xw != 4:
        for r in range(16):
            a(f'    v_mov_b32 v{ACC+r}, 0')
    for r in range(8):
        a(f'    v_mov_b32 v{QLO+r}, 0')
    for r in range(4, 8):
        a(f'    v_mov_b32 v{EN+r}, {EMPTY}')
    if opt.get('peek'):
        for r in range(4):
            a(f'    v_not_b32 v{EN+r}, s{TAG+r}')
    a(f"""
    s_mov_b32 s{POLLN}, 0
    s_mov_b32 s{KTHR}, 0x400000
    s_mov_b32 s{KFULL}, {FULLM}
    s_mov_b64 {sp(S0)}, -1
    s_mov_b64 {sp(S1)}, 0
""")
    if xw in (1, 3):
        wstage(1 if xw == 1 else 3)
    if wl:
        wstage(0)
    a(f"""
    s_waitcnt {'' if opt.get('peek') else 'vmcnt(0)'} lgkmcnt(0)
    s_barrier
    {f'buffer_load_dwordx4 {vr(EN,4)}, v{LDV}, {sq(SWS)}, s{SEGB} offen{lf}' if not opt.get('pd') else ''}
    ; ---- Q' = (own rows @ w_q) * (-log2e/8) in B-operand layout; columns 8..15 zero""")
    def xnlate():
        a(f"""
    s_add_u32 m0, s{RING}, 7168
    s_nop 0
    buffer_load_dwordx4 v{ROWOFF}, {sq(SX)}, 0 offen lds""")
    if xp == 1:
        xnlate()
    dreg = [QHI, QHI+4, S, S+4]
    wq = [ACC, ACC+8, XT, XT+8] if xw == 4 else [XA, XA+8, XA+16, XA+24]
    def xnread():
        a(f"""
    s_mov_b64 exec, {sp(LOM)}
    ds_read_b128 {vr(QLO,4)}, v{XNA}
    ds_read_b128 {vr(QLO+4,4)}, v{XNA+1}
    s_mov_b64 exec, -1""")
    def qmfma(blk):
        a(f'    v_mfma_f32_16x16x32_bf16 {vr(dreg[blk],4)}, {vr(wq[blk],4)}, {vr(QLO,4)}, 0')
        a(f'    v_mfma_f32_16x16x32_bf16 {vr(dreg[blk],4)}, {vr(wq[blk]+4,4)}, {vr(QLO+4,4)}, {vr(dreg[blk],4)}')
    if xw != 4:
        xnread()
    if not nb:
        wqread()
    if opt.get('pd'):
        if opt['pd'] == 2:
            a('    s_waitcnt lgkmcnt(0)')
        if opt['pd'] == 3:
            a('    s_waitcnt lgkmcnt(0)')
            a('    s_barrier')
        a(f'    buffer_load_dwordx4 {vr(EN,4)}, v{LDV}, {sq(SWS)}, s{SEGB} offen{lf}')
    if xw != 4:
        for blk in range(4):
            a(f'    s_waitcnt lgkmcnt({min(8, 12-4*blk) if blk else 12})')
            qmfma(blk)
    def qlate():
        for blk in range(4):
            qmfma(blk)
        for r in range(16):
            a(f'    v_mov_b32 v{ACC+r}, 0')
    def qfinish():
        a(f'    s_mov_b32 s{X0}, 0x{f32bits(-1.4426950408889634/8):08x}')
        a(f'    s_mov_b32 s{X0+1}, s{X0}')
        a('    s_nop 1')
        for blk in range(4):
            a(f'    v_pk_mul_f32 {vr(dreg[blk],2)}, {vr(dreg[blk],2)}, {sp(X0)}')
            a(f'    v_pk_mul_f32 {vr(dreg[blk]+2,2)}, {vr(dreg[blk]+2,2)}, {sp(X0)}')
        for blk in range(4):
            a(f'    v_cvt_pk_bf16_f32 v{QLO+2*blk}, v{dreg[blk]}, v{dreg[blk]+1}')
            a(f'    v_cvt_pk_bf16_f32 v{QLO+2*blk+1}, v{dreg[blk]+2}, v{dreg[blk]+3}')
        for r in range(8):
            a(f'    v_mov_b32_dpp v{QHI+r}, v{QLO+r} row_ror:8 row_mask:0xf bank_mask:0xf')
    qdef = opt.get('qdef', 0)
    if not qdef:
        qfinish()
    stamp(5)
    def check(h, dst):
        for r in range(4):
            a(f'    v_xor_b32 v{EN+4*h+r}, s{TAG+r}, v{EN+4*h+r}')
        a(f'''
    v_or3_b32 v{T}, v{EN+4*h}, v{EN+4*h+1}, v{EN+4*h+2}
    v_or_b32 v{T}, v{T}, v{EN+4*h+3}
    v_cmp_le_u32 {dst}, s{KTHR}, v{T}''')
    def brank(r, base, skip=None):
        m = VM + 2*r
        a(f'''
    v_cmp_ne_u32 {sp(m)}, s{SEMPTY}, v{EN+r}
    v_and_b32 v{G4+r}, 15, v{EN+r}
    v_lshlrev_b32 v{G4+r}, 2, v{G4+r}
    s_mov_b64 exec, {sp(m)}''')
        if skip:
            a(f'    s_cbranch_execz {skip}')
        a(f'''
    ds_add_rtn_u32 v{RK+r}, v{G4+r}, v{FOUR} offset:{L_BCNT}
    s_mov_b64 exec, {base}''')
    def bput(r):
        a(f'''
    s_mov_b64 exec, {sp(VM+2*r)}
    ds_write_b32 v{RK+r}, v{EN+r}''')
    rare = []
    def rankwords(ws):
        for r in ws:
            brank(r, sp(FR))
        for r in ws:
            a(f'    s_waitcnt lgkmcnt({len(ws)-1})')
            bput(r)
    def sort_rest():
        a(f'''
    v_min3_u32 v{T}, v{EN+1}, v{EN+2}, v{EN+3}
    v_med3_u32 v{T+1}, v{EN+1}, v{EN+2}, v{EN+3}
    v_max3_u32 v{EN+3}, v{EN+1}, v{EN+2}, v{EN+3}
    v_mov_b32 v{EN+1}, v{T}
    v_mov_b32 v{EN+2}, v{T+1}''')
    band = opt.get('band', 0)
    B1 = 64
    sw = opt.get('sw', 4)
    def absorb0(tag, nw=4):
        br = opt.get('br', 0) if tag == 'a' else 0
        if br:
            a('P_again:')
        check(0, 'vcc')
        if br:
            a(f'''
    s_wqm_b64 vcc, vcc
    s_mov_b64 {sp(S0)}, vcc
    s_not_b64 {sp(FR)}, vcc
    s_mov_b64 exec, vcc
    s_cbranch_execz Z_nr{tag}
    s_add_u32 s{POLLN}, s{POLLN}, 1
    buffer_load_dwordx4 {vr(EN,4)}, v{LDV}, {sq(SWS)}, s{SEGB} offen{lf}
    s_cmp_gt_u32 s{POLLN}, {br}
    s_cbranch_scc1 Z_nr{tag}
    s_waitcnt vmcnt(0)
    s_branch P_again''')
        else:
            a(f'''
    s_wqm_b64 vcc, vcc
    s_andn2_b64 {sp(FR)}, {sp(S0)}, vcc
    s_mov_b64 {sp(S0)}, vcc
    s_mov_b64 exec, vcc
    s_cbranch_execz Z_nr{tag}
    s_add_u32 s{POLLN}, s{POLLN}, 1
    s_cmp_gt_u32 s{POLLN}, {opt.get('pollmax', 2000)}
    s_cbranch_scc1 Z_give{tag}
    buffer_load_dwordx4 {vr(EN,4)}, v{LDV}, {sq(SWS)}, s{SEGB} offen{lf}''')
        a(f'''
Z_nr{tag}:
    s_mov_b64 exec, {sp(FR)}
    s_cbranch_execz Z_done{tag}
    v_cmp_ne_u32 {sp(N1)}, s{SEMPTY}, v{EN+3}
    v_cmp_eq_u32 vcc, s{KFULL}, v{EN}
    s_and_b64 {sp(N1)}, {sp(N1)}, {sp(K88)}
    s_wqm_b64 exec, {sp(N1)}
    {'s_mov_b64 exec, 0' if opt.get('x_noh1') else ''}
    s_cbranch_execz Z_nh{tag}
    s_or_b64 {sp(S1)}, {sp(S1)}, exec
    buffer_load_dwordx4 {vr(EN+4,4)}, v{H1V}, {sq(SWS)}, s{H1SO} offen{lf}
Z_nh{tag}:
    s_cbranch_vccnz Z_full{tag}
Z_rank{tag}:
    s_mov_b64 exec, {sp(FR)}''')
        if opt.get('srt') and tag == 'a':
            a(f'''
    v_min_u32 v{T}, v{EN}, v{EN+1}
    v_max_u32 v{EN+1}, v{EN}, v{EN+1}
    v_min_u32 v{T+1}, v{EN+2}, v{EN+3}
    v_max_u32 v{EN+3}, v{EN+2}, v{EN+3}
    v_min_u32 v{EN}, v{T}, v{T+1}
    v_max_u32 v{EN+2}, v{T}, v{T+1}''')
            if opt['srt'] == 2 and nw > 1:
                sort_rest()
        if band and tag == 'a':
            sort_rest()
            a(f'    s_mov_b32 s{X0}, {band << 7}')
            for r in range(2):
                a(f'''
    v_cmp_gt_u32 {sp(B1+2*r)}, s{X0}, v{EN+r}
    v_and_b32 v{G4+r}, 15, v{EN+r}
    v_lshlrev_b32 v{G4+r}, 2, v{G4+r}
    s_mov_b64 exec, {sp(B1+2*r)}
    ds_add_rtn_u32 v{RK+r}, v{G4+r}, v{FOUR} offset:{L_BCNT}
    s_mov_b64 exec, {sp(FR)}''')
            for r in range(2):
                a(f'''
    s_waitcnt lgkmcnt(1)
    s_mov_b64 exec, {sp(B1+2*r)}
    ds_write_b32 v{RK+r}, v{EN+r}''')
        else:
            rankwords(list(range(nw)))
        a(f'Z_done{tag}:')
        rare.append(tag)
    def absorb1():
        check(1, 'vcc')
        if opt.get('x_loseh1'):
            a(f'    s_and_b32 s{X0}, exec_lo, 0x20002000')
            a(f'    s_or_b32 vcc_lo, vcc_lo, s{X0}')
        a(f'''
    s_andn2_b64 {sp(FR)}, {sp(S1)}, vcc
    s_mov_b64 {sp(S1)}, vcc
    s_mov_b64 exec, vcc
    s_cbranch_execz Y_nr
    s_add_u32 s{POLLN}, s{POLLN}, 1
    s_cmp_gt_u32 s{POLLN}, {opt.get('pollmax1', opt.get('pollmax', 2000))}
    s_cbranch_scc1 Y_lost
    buffer_load_dwordx4 {vr(EN+4,4)}, v{H1V}, {sq(SWS)}, s{H1SO} offen{lf}
Y_nr:
    s_mov_b64 exec, {sp(FR)}''')
        for r in range(4, 8):
            brank(r, sp(FR), 'Y_done')
            a('    s_waitcnt lgkmcnt(0)')
            bput(r)
            a(f'    s_mov_b64 exec, {sp(FR)}')
        a('Y_done:')
    def dma(ereg, slot, qs=range(4)):
        for q in qs:
            if q == 3 and len(qs) == 1:
                a(f'    s_add_u32 m0, s{RING}, {4096*slot + 3072}')
            elif q == 0:
                a(f'    s_mov_b32 m0, s{RING}' if slot == 0 else f'    s_add_u32 m0, s{RING}, 4096')
            else:
                a('    s_add_u32 m0, m0, 1024')
            a(f'    v_and_or_b32 v{ereg+q}, v{ereg+q}, s{AMASK}, v{CHK}')
            a(f'    buffer_load_dwordx4 v{ereg+q}, {sq(SX)}, 0 offen{gf} lds')
    def complete(reg, no):
        a(f"""
    v_max3_u32 v{T}, v{reg}, v{reg+1}, v{reg+2}
    v_max_u32 v{T}, v{T}, v{reg+3}
    v_cmp_eq_u32 vcc, s{SEMPTY}, v{T}
    s_cbranch_vccnz {no}""")
    a(f"""
    s_mov_b32 s{ISSUED}, 0
    v_mov_b32 v{EA}, v{EA0}
    v_mov_b32 v{MAD}, v{MAD0}""")
    if opt.get('peek'):
        a(f"""
    s_mov_b32 s{X0}, 0
K_peek:
    v_xor_b32 v{T}, s{TAG}, v{EN}
    v_xor_b32 v{T+1}, s{TAG+1}, v{EN+1}
    v_xor_b32 v{T+2}, s{TAG+2}, v{EN+2}
    v_xor_b32 v{T+3}, s{TAG+3}, v{EN+3}
    v_or3_b32 v{T}, v{T}, v{T+1}, v{T+2}
    v_or_b32 v{T}, v{T}, v{T+3}
    v_cmp_le_u32 vcc, s{KTHR}, v{T}
    s_cbranch_vccz K_seen
    s_add_u32 s{X0}, s{X0}, 1
    s_cmp_gt_u32 s{X0}, 500
    s_cbranch_scc1 K_wait
    s_getreg_b32 s{X0+1}, hwreg(HW_REG_IB_STS, 0, 4)
    s_cmp_lg_u32 s{X0+1}, 0
    s_cbranch_scc1 K_peek
K_wait:""")
    a(f"""
    s_waitcnt vmcnt({1 if xp == 1 else 0})
K_seen:""")
    stamp(6)
    a('    s_setprio 3')
    absorb0('a', sw)
    settle = f"""
    s_or_b64 exec, {sp(S0)}, {sp(S1)}
    s_cselect_b32 s{OWNP}, 1, 0
    s_cbranch_execnz G_pend
    s_mov_b64 exec, 1
    ds_add_u32 v{ZERO}, v{FOUR} offset:{L_DONE}
G_pend:
    s_mov_b64 exec, -1
    s_waitcnt lgkmcnt(0)"""
    if xp == 2:
        a('    s_mov_b64 exec, -1')
        xnlate()
    if sw == 4:
        a(settle)
    else:
        a(f"""
    s_mov_b32 s{OWNP}, 2
    s_mov_b64 exec, -1
    s_waitcnt lgkmcnt(0)""")
    if nb != 1:
        a('    s_barrier')
    stamp(7)
    rstamp(1)
    if xw == 4 and not xp:
        xnlate()
    if opt.get('hw', 16) < 16:
        a(f"""
    s_cmp_lt_u32 s{WID}, {opt['hw']}
    s_cbranch_scc1 G_more""")
        if sw < 4:
            a(f'    s_call_b64 {sp(LINK)}, L_s2')
        if opt.get('hw2', 0):
            a(f"""
    s_cmp_lt_u32 s{WID}, {opt['hw2']}
    s_cbranch_scc1 G_more""")
        a(f"""
    s_cmp_eq_u32 s{OWNP}, 0
    s_cbranch_scc1 G_more
    s_waitcnt vmcnt({1 if xw == 4 and xp != 1 else 0})
    s_call_b64 {sp(LINK)}, L_late""")
    a('G_more:')
    rstamp(2)
    a(f"""
    ds_read_b32 v{T+1}, v{ZERO} offset:{L_DONE}
    ds_read_b128 {vr(EE,4)}, v{EA0}
    ds_read_b128 {vr(T+4,4)}, v{EA0} offset:128
    s_cmp_eq_u32 s{ISSUED}, 1
    s_waitcnt lgkmcnt(0)
    s_cbranch_scc1 G_m1""")
    complete(EE, 'G_short')
    dma(EE, 0)
    a(f"""
    s_mov_b32 s{ISSUED}, 1
G_m1:""")
    complete(T+4, 'G_short')
    dma(T+4, 1, range(3) if xw == 4 else range(4))
    a(f"""
    s_mov_b32 s{ISSUED}, 2""")
    rstamp(3)
    if sw < 4:
        a(f"""
    s_cmp_lg_u32 s{OWNP}, 2
    s_cbranch_scc1 G_q
    s_call_b64 {sp(LINK)}, L_s2""")
    a('G_q:')
    if xw == 4:
        rstamp(4)
        a('    s_waitcnt vmcnt(7)')
        rstamp(5)
        xnread()
        a('    s_waitcnt lgkmcnt(0)')
        if not opt.get('q3l'):
            dma(T+4, 1, [3])
        qlate()
    a(f"""
G_go:""")
    if not opt.get('q3l'):
        a(f"    s_setprio {opt.get('p0', 2)}")
    if qdef:
        qfinish()
    if opt.get('q3l'):
        dma(T+4, 1, [3])
        a(f"    s_setprio {opt.get('p0', 2)}")
    a(f"""
    s_mov_b32 s{NT}, {opt.get('pb', 4)}
    s_mov_b32 s{NTI}, 0
B_go:
    ds_read_b32 v{M0R}, v{MAD}
    ds_read_b128 {vr(EE,4)}, v{EA} offset:256
    s_mov_b32 s{TT}, 1                      ; t+1
    s_waitcnt lgkmcnt(1)
    v_and_b32 v{M0R}, 0x70, v{M0R}""")
    stamp(8)
    a('B_loop:')
    pk = opt.get('pk', 0)
    th = opt.get('th', 242)
    th = (th // 100, th // 10 % 10, th % 10)
    def body(slot):
        so = slot * 4096
        mcur, mnext = (M0R, M1R) if slot == 0 else (M1R, M0R)
        eo = slot * 128
        pm = opt.get('prio', 1)
        if pm == 1 and slot == 0:
            a(f"""
    s_cmp_lt_u32 s{TT}, {th[0]}
    s_cbranch_scc1 B_p{slot}
    s_setprio 1
    s_cmp_lt_u32 s{TT}, 4
    s_cbranch_scc1 B_p{slot}
    s_sub_u32 s{X0}, s{NT}, s{TT}
    s_cmp_ge_u32 s{X0}, {th[2]}
    s_cbranch_scc1 B_p{slot}
    s_setprio 0
B_p{slot}:""")
        if pm == 3 and slot == 0:
            a(f"""
    s_cmp_lt_u32 s{TT}, {th[0]}
    s_cbranch_scc1 B_p{slot}
    s_setprio 1
    s_cmp_lt_u32 s{TT}, {th[1]}
    s_cbranch_scc1 B_p{slot}
    s_setprio 0
B_p{slot}:""")
        if pm == 4:
            a(f"""
    s_cmp_eq_u32 s{NTI}, 0
    s_cbranch_scc1 B_p{slot}
    s_sub_u32 s{X0}, s{NT}, s{TT}
    s_setprio 2
    s_cmp_ge_u32 s{X0}, {th[1]}
    s_cbranch_scc1 B_p{slot}
    s_setprio 1
    s_cmp_ge_u32 s{X0}, {th[2]}
    s_cbranch_scc1 B_p{slot}
    s_setprio 0
B_p{slot}:""")
        if pm == 2:
            a(f"""
    s_cmp_lt_u32 s{TT}, 4
    s_cbranch_scc1 B_q{slot}
    s_sub_u32 s{X0}, s{NT}, s{TT}
    s_setprio 3
    s_cmp_ge_u32 s{X0}, 3
    s_cbranch_scc1 B_p{slot}
    s_setprio 2
    s_cmp_ge_u32 s{X0}, 2
    s_cbranch_scc1 B_p{slot}
B_q{slot}:
    s_setprio 1
B_p{slot}:""")
        a(f'''
    ds_read_b32 v{MA}, v{mcur} offset:{L_LUT}
    ds_read_b32 v{mnext}, v{MAD} offset:{eo+128}
    s_cmp_lt_u32 s{TT}, s{NT}
    s_cbranch_scc1 B_w4_{slot}
    s_waitcnt vmcnt(0)
B_w4_{slot}:
    s_cmp_lg_u32 s{OWNP}, 0
    s_waitcnt vmcnt(4)
    s_cbranch_scc0 B_rd_{slot}
    {f's_cmp_lt_u32 s{TT}, 2' if opt.get('ll') and slot == 0 else ''}
    {f's_cbranch_scc1 B_rd_{slot}' if opt.get('ll') and slot == 0 else ''}
    s_call_b64 {sp(LINK)}, L_late
B_rd_{slot}:''')
        if opt.get('tprof'):
            a(f'''
    s_memrealtime s[98:99]
    s_min_u32 s100, s{TT}, 10
    s_waitcnt lgkmcnt(0)
    s_mov_b32 m0, s100
    v_writelane_b32 v{ATK}, s98, m0''')
        a(f'''
    ds_read_b128 {vr(XA,4)}, v{RA0} offset:{so}
    ds_read_b128 {vr(XA+4,4)}, v{RA1} offset:{so}
    ds_read_b128 {vr(XA+8,4)}, v{RA0} offset:{so+2048}
    ds_read_b128 {vr(XA+12,4)}, v{RA1} offset:{so+2048}''')
        for fb in range(4):
            a(f'    ds_read_b64_tr_b16 {vr(XT+4*fb,2)}, v{RT+fb} offset:{so}')
            a(f'    ds_read_b64_tr_b16 {vr(XT+4*fb+2,2)}, v{RT+fb} offset:{so+2048}')
        a(f'''
    s_add_u32 s{TT}, s{TT}, 1               ; t+2
    s_waitcnt lgkmcnt(12)
    {f'v_mfma_f32_16x16x16_bf16 {vr(S,4)}, {vr(MA,2)}, {vr(MB,2)}, 0' if opt.get('m16') else f'v_mfma_f32_16x16x32_bf16 {vr(S,4)}, {vr(MA,4)}, {vr(MB,4)}, 0'}
    v_and_b32 v{mnext}, 0x70, v{mnext}
    s_waitcnt lgkmcnt(11)
    v_mfma_f32_16x16x32_bf16 {vr(S,4)}, {vr(XA,4)}, {vr(QLO,4)}, {vr(S,4)}
    s_waitcnt lgkmcnt(10)
    v_mfma_f32_16x16x32_bf16 {vr(S,4)}, {vr(XA+4,4)}, {vr(QLO+4,4)}, {vr(S,4)}
    s_waitcnt lgkmcnt(9)
    v_mfma_f32_16x16x32_bf16 {vr(S,4)}, {vr(XA+8,4)}, {vr(QHI,4)}, {vr(S,4)}
    s_waitcnt lgkmcnt(8)
    v_mfma_f32_16x16x32_bf16 {vr(S,4)}, {vr(XA+12,4)}, {vr(QHI+4,4)}, {vr(S,4)}
''')
        dl = opt.get('dl', 0)
        def issue():
            a(f'''
    s_cmp_lt_u32 s{TT}, s{NTI}
    s_cbranch_scc0 B_skip_{slot}
B_dma_{slot}:''')
            dma(EE, slot)
            a(f'''
    ds_read_b128 {vr(EE,4)}, v{EA} offset:{eo+384}
B_cont_{slot}:''')
        def adv():
            if slot == 1:
                a(f'    v_add_u32 v{EA}, 256, v{EA}')
                a(f'    v_add_u32 v{MAD}, 256, v{MAD}')
        if dl == 0:
            a('    s_waitcnt lgkmcnt(0)')
            issue()
        elif opt.get('wve') == 2:
            a(f'''
    s_cmp_gt_u32 s{TT}, s{NT}
    s_cbranch_scc1 B_lastw_{slot}
    s_nop 5
B_sig_{slot}:''')
        else:
            a('    s_nop 7')
        for r in range(4):
            a(f'    v_exp_f32 v{S+r}, v{S+r}')
        if dl == 0:
            adv()
        if pk:
            a(f'    v_pk_add_f32 {vr(S,2)}, {vr(S,2)}, 1.0 op_sel_hi:[1,0]')
            a(f'    v_pk_add_f32 {vr(S+2,2)}, {vr(S+2,2)}, 1.0 op_sel_hi:[1,0]')
        else:
            for r in range(4):
                a(f'    v_add_f32 v{S+r}, 1.0, v{S+r}')
        for r in range(4):
            a(f'    v_rcp_f32 v{S+r}, v{S+r}')
        a(f'''
    v_cvt_pk_bf16_f32 v{PP}, v{S}, v{S+1}
    s_cmp_gt_u32 s{TT}, s{NT}
    v_cvt_pk_bf16_f32 v{PP+1}, v{S+2}, v{S+3}
    s_nop 0
    v_mov_b32_dpp v{PP+2}, v{PP} row_ror:8 row_mask:0xf bank_mask:0xf
    v_mov_b32_dpp v{PP+3}, v{PP+1} row_ror:8 row_mask:0xf bank_mask:0xf
    s_nop {0 if dl else 1}''')
        if dl:
            a('    s_waitcnt lgkmcnt(0)')
        if dl == 2:
            issue()
            adv()
            a(f'    s_cmp_gt_u32 s{TT}, s{NT}')
        for fb in range(4):
            a(f'    v_mfma_f32_16x16x32_bf16 {vr(ACC+4*fb,4)}, {vr(XT+4*fb,4)}, {vr(PP,4)}, {vr(ACC+4*fb,4)}')
        if dl == 1:
            issue()
            adv()
            a(f'    s_cmp_gt_u32 s{TT}, s{NT}')
        a('    s_cbranch_scc1 B_loopdone' if slot == 0 else '    s_cbranch_scc0 B_loop')
    n0 = len(a.lines)
    body(0)
    body(1)
    drop = []
    if opt.get('x_halfacc'): drop += ['v_mfma_f32_16x16x32_bf16 v[32', 'v_mfma_f32_16x16x32_bf16 v[36', 'v_mov_b32_dpp']
    if opt.get('x_nomask'): drop += ['v_mfma_f32_16x16x32_bf16 v[72:75], v[80']
    if opt.get('x_notr'): drop += ['ds_read_b64_tr']
    if opt.get('x_nords'): drop += ['ds_read_b128 v[4', 'ds_read_b128 v[5', 'ds_read_b64_tr']
    if opt.get('x_nomfma'): drop += ['v_mfma']
    if opt.get('x_novalu'): drop += ['v_exp', 'v_rcp', 'v_add_f32', 'v_cvt', 'v_mov_b32_dpp', 'v_pk_add']
    if opt.get('bench'): drop += [f'v_add_u32 v{EA}, 256', f'v_add_u32 v{MAD}, 256']
    a.lines[n0:] = [l for l in a.lines[n0:] if not any(l.strip().startswith(d) for d in drop)]
    a(f'''
B_loopdone:
    s_cmp_lg_u32 s{MODE}, 0
    s_cbranch_scc1 C_next
B_epi:''')
    if opt.get('epi3'):
        a('    s_setprio 3')
    stamp(9)
    epi = opt.get('epi', 1)
    wve = opt.get('wve', 0)
    wv = [XA, XA+8, QLO, QHI]
    DO = XT
    def wvread(blks):
        for blk in blks:
            ad = WVA if blk == 0 else T+blk
            for ks in range(2):
                for h in range(2):
                    a(f'    ds_read_b64_tr_b16 {vr(wv[blk]+ks*4+h*2,2)}, v{ad} offset:{L_WV+(32*ks+16*h)*128}')
    def wvfirst():
        a(f"""
    v_xor_b32 v{T+1}, 8, v{WVA}
    v_xor_b32 v{T+2}, 16, v{WVA}
    v_xor_b32 v{T+3}, 24, v{WVA}""")
        wvread([0, 1, 2])
    if wve:
        a(f"""
    s_cmp_lg_u32 s{ISSUED}, 3
    s_cbranch_scc0 E_have""")
    wvfirst()
    a('E_have:')
    a('    s_waitcnt lgkmcnt(8)')
    wvread([3])
    if epi:
        a(f"""
    v_xor_b32 v{T+6}, 16, v{EPV}
    v_lshl_add_u32 v{T+5}, v{LANE}, 4, s{RING}""")
    else:
        a(f"""
    v_and_b32 v{T+4}, 7, v{LANE}
    v_lshlrev_b32 v{T+4}, 19, v{T+4}
    v_lshrrev_b32 v{T+5}, 4, v{LANE}
    v_lshl_add_u32 v{T+4}, v{T+5}, 5, v{T+4}
    s_lshl_b32 s{X0}, s{WID}, 15
    s_lshl_b32 s{X0+1}, s2, 7
    s_add_u32 s{PFT}, s{X0}, s{X0+1}""")
    for r in range(8):
        a(f'    v_cvt_pk_bf16_f32 v{S+r}, v{ACC+2*r}, v{ACC+2*r+1}')
    a('    s_nop 0')
    for blk in range(4):
        a(f'    s_waitcnt lgkmcnt({min(8, 12-4*blk)})')
        a(f'    v_mfma_f32_16x16x32_bf16 {vr(DO+4*blk,4)}, {vr(wv[blk],4)}, {vr(S,4)}, 0')
        a(f'    v_mfma_f32_16x16x32_bf16 {vr(DO+4*blk,4)}, {vr(wv[blk]+4,4)}, {vr(S+4,4)}, {vr(DO+4*blk,4)}')
    a(f'''
    s_cmp_lg_u32 s{WID}, 15
    s_cbranch_scc1 K_no2
    s_mov_b64 exec, 1
    s_cmp_lg_u32 s{GAVE}, 0
    s_cbranch_scc1 K_ticket
K_adv:
    v_mov_b32 v{T}, s{EPOCH}
    global_store_dword v{ZERO}, v{T}, s[18:19]
K_skip:
    s_mov_b64 exec, -1
K_no2:
    s_nop 2''')
    for r in range(4):
        a(f'    v_cvt_pk_bf16_f32 v{XA+r}, v{DO+2*r}, v{DO+2*r+1}')
    a(f'    s_mov_b64 exec, {sp(LOM)}')
    if epi:
        a(f'    ds_write_b128 v{EPV}, {vr(XA,4)}')
    else:
        a(f'    buffer_store_dwordx4 {vr(XA,4)}, v{T+4}, {sq(SOUT)}, s{PFT} offen{of}')
    for r in range(4, 8):
        a(f'    v_cvt_pk_bf16_f32 v{XA+r}, v{DO+2*r}, v{DO+2*r+1}')
    if epi:
        a(f'''
    ds_write_b128 v{T+6}, {vr(XA+4,4)}
    s_mov_b64 exec, -1
    ds_read_b128 {vr(XA+8,4)}, v{T+5}
    s_waitcnt lgkmcnt(0)
    buffer_store_dwordx4 {vr(XA+8,4)}, v{ROWOFF}, {sq(SOUT)}, 0 offen{of}''')
    else:
        a(f'''
    buffer_store_dwordx4 {vr(XA+4,4)}, v{T+4}, {sq(SOUT)}, s{PFT} offen offset:16{of}
    s_mov_b64 exec, -1''')
    if st:
        stamp(10)
        a('    s_waitcnt vmcnt(0)')
        stamp(11)
        if opt.get('tprof'):
            a(f'''
    s_mov_b64 exec, 0x7fe
    v_mov_b32 v{STV}, v{ATK}
    s_mov_b64 exec, -1''')
        a(f'''
    s_sub_u32 s18, s18, {opt.get('wsoff', 0) << 20}
    s_subb_u32 s19, s19, 0
    s_add_u32 s{X0}, s18, {STAMP_OFF}
    s_addc_u32 s{X0+1}, s19, 0
    s_lshl_b32 s{X0+2}, s2, 4
    s_add_u32 s{X0+2}, s{X0+2}, s{WID}
    s_lshl_b32 s{X0+2}, s{X0+2}, 6
    v_lshl_add_u32 v{T}, v{LANE}, 2, s{X0+2}
    s_mov_b64 exec, 0xffff
    global_store_dword v{T}, v{STV}, {sp(X0)}''')
        if 'amp' in opt:
            a(f'''
    v_readlane_b32 s60, v{STV}, 0
    v_readlane_b32 s61, v{STV}, {opt['amp']}
    v_readlane_b32 s62, v{STV}, 11
    s_sub_u32 s61, s61, s60
    s_mul_i32 s61, s61, {opt.get('ampk', 2)}
    s_min_u32 s61, s61, 20000
D_spin:
    s_memrealtime s[98:99]
    s_waitcnt lgkmcnt(0)
    s_sub_u32 s98, s98, s62
    s_cmp_lt_u32 s98, s61
    s_cbranch_scc1 D_spin''')
    a(f'''
L_end:
    s_endpgm
''')
    for slot in range(2):
        a(f'''
B_skip_{slot}:
    s_cmp_lg_u32 s{NTI}, 0
    s_cbranch_scc1 B_idle_{slot}
    s_mov_b32 s{RET}, {slot}
    s_cmp_ge_u32 s{TT}, {opt.get('pb', 4)}
    s_cbranch_scc1 F_final''')
        complete(EE, f'B_again_{slot}')
        a(f'''
    s_branch B_dma_{slot}
B_again_{slot}:
    ds_read_b128 {vr(EE,4)}, v{EA} offset:{slot*128+256}
    s_waitcnt lgkmcnt(0)''')
        complete(EE, 'F_final')
        a(f'''
    s_branch B_dma_{slot}
F_ret_{slot}:
    ds_read_b128 {vr(EE,4)}, v{EA} offset:{slot*128+256}
    s_waitcnt lgkmcnt(0)
    s_cmp_lt_u32 s{TT}, s{NT}
    s_cbranch_scc1 B_dma_{slot}
B_idle_{slot}:''')
        if opt.get('dl'):
            a(f'    s_branch B_cont_{slot}')
            if wve == 2:
                a(f'''
B_lastw_{slot}:
    s_waitcnt lgkmcnt(0)
    s_nop 3
    s_cmp_lg_u32 s{MODE}, 0
    s_cbranch_scc1 B_sig_{slot}
    s_mov_b32 s{ISSUED}, 3''')
                wvfirst()
                a(f'    s_branch B_sig_{slot}')
            continue
        if wve:
            a(f'''
    s_cmp_le_u32 s{TT}, s{NT}
    s_cbranch_scc1 B_id2_{slot}
    s_cmp_lg_u32 s{MODE}, 0
    s_cbranch_scc1 B_id2_{slot}
    s_mov_b32 s{ISSUED}, 3''')
            wvfirst()
            a(f'    s_branch B_cont_{slot}')
            a(f'B_id2_{slot}:')
        a(f'''
    s_nop 7
    s_branch B_cont_{slot}''')
    a(f"""
L_late:
    s_mov_b64 exec, {sp(S1)}
    s_cbranch_execz Y_done""")
    absorb1()
    a(f"""
    s_mov_b64 exec, {sp(S0)}
    s_cbranch_execz Z_doneb""")
    absorb0('b')
    a(f"""
    s_or_b64 exec, {sp(S0)}, {sp(S1)}
    s_cbranch_execnz L_ret
    s_mov_b32 s{OWNP}, 0
    s_mov_b64 exec, 1
    ds_add_u32 v{ZERO}, v{FOUR} offset:{L_DONE}""")
    if st:
        a(f'    v_writelane_b32 v{STV}, s{POLLN}, 15')
        a('    s_memrealtime s[98:99]')
        a('    s_waitcnt lgkmcnt(0)')
        a(f'    v_writelane_b32 v{STV}, s98, 7')
    a(f"""
L_ret:
    s_mov_b64 exec, -1
    s_waitcnt lgkmcnt(0)
    s_setpc_b64 {sp(LINK)}
G_short:
    v_readfirstlane_b32 s{X0}, v{T+1}
    s_cmp_eq_u32 s{OWNP}, 0
    s_cbranch_scc1 G_s2""")
    if sw < 4:
        a(f"""
    s_cmp_lg_u32 s{OWNP}, 2
    s_cbranch_scc1 G_s1
    s_call_b64 {sp(LINK)}, L_s2
    s_branch G_more
L_s2:
    s_mov_b64 exec, {sp(FR)}""")
        if opt.get('srt') == 2 and sw == 1:
            sort_rest()
        if band:
            for r in range(2):
                a(f'''
    v_cmp_ne_u32 {sp(VM+2*r)}, s{SEMPTY}, v{EN+r}
    s_andn2_b64 {sp(VM+2*r)}, {sp(VM+2*r)}, {sp(B1+2*r)}
    s_mov_b64 exec, {sp(VM+2*r)}
    ds_add_rtn_u32 v{RK+r}, v{G4+r}, v{FOUR} offset:{L_BCNT}
    s_mov_b64 exec, {sp(FR)}''')
            brank(2, sp(FR))
            brank(3, sp(FR))
            for r in range(4):
                a('    s_waitcnt lgkmcnt(3)')
                bput(r)
        else:
            rankwords(list(range(sw, 4)))
        a(settle)
        a(f'    s_setpc_b64 {sp(LINK)}')
        a('G_s1:')
    a(f"""
    s_waitcnt vmcnt(0)
    s_call_b64 {sp(LINK)}, L_late
    s_branch G_more
G_s2:
    s_setprio 0
    s_cmp_lt_u32 s{X0}, 64
    s_cbranch_scc1 G_more""")
    if xw == 4:
        a('    s_waitcnt vmcnt(0)')
        xnread()
        a('    s_waitcnt lgkmcnt(0)')
        qlate()
    if qdef:
        qfinish()
    a(f'''
B_counts:
    s_mov_b32 s{RET}, 2
F_final:
    s_cmp_eq_u32 s{OWNP}, 0
    s_cbranch_scc1 F_spin
    s_waitcnt vmcnt(0)
    s_call_b64 {sp(LINK)}, L_late
    s_branch F_final
F_spin:
    ds_read_b32 v{T+1}, v{CNTA} offset:{L_BCNT}
    s_waitcnt lgkmcnt(0)
    v_readlane_b32 s{X0}, v{T+1}, 26
    v_sub_u32 v{T+3}, v{T+1}, v{LBASE}
    s_cmp_lt_u32 s{X0}, 64
    s_cbranch_scc1 F_spin
    v_cmp_ne_u32 {sp(X0)}, 0, v{T+1}
    v_cmp_lt_u32 vcc, {GSTRIDE}, v{T+3}
    v_readlane_b32 s{NT}, v{T+3}, s{WID}
    s_and_b32 s{X0}, s{X0}, 0x9ff0000
    s_and_b32 s{X0+1}, vcc_lo, 0xffff
    s_or_b32 s{NTI}, s{X0+1}, s{X0}
    s_or_b32 s{NTI}, s{NTI}, s{MODE}
    s_cbranch_scc1 C_slowcnt
B_cntok:
    s_add_u32 s{NT}, s{NT}, 127
    s_lshr_b32 s{NT}, s{NT}, 7              ; tiles
    s_mov_b32 s{NTI}, s{NT}
    s_cbranch_scc0 B_loopdone
    s_cmp_eq_u32 s{RET}, 0
    s_cbranch_scc1 F_ret_0
    s_cmp_eq_u32 s{RET}, 1
    s_cbranch_scc1 F_ret_1
    s_branch B_first
K_ticket:
    v_mov_b32 v{T+1}, 1
    global_atomic_add v{ATK}, v{ZERO}, v{T+1}, s[16:17] sc0 sc1
    s_waitcnt vmcnt(0)
    v_readfirstlane_b32 s{X0}, v{ATK}
    s_cmp_eq_u32 s{X0}, {NWG-1}
    s_cbranch_scc1 K_adv
    s_branch K_skip
B_first:
    ds_read_b128 {vr(XA,4)}, v{EA}
    ds_read_b128 {vr(XA+4,4)}, v{EA} offset:128
    s_waitcnt lgkmcnt(0)
    s_cmp_eq_u32 s{ISSUED}, 1
    s_cbranch_scc1 B_f1''')
    dma(XA, 0)
    a(f'''
B_f1:
    s_cmp_lt_u32 s{NT}, 2
    s_cbranch_scc1 B_go''')
    dma(XA+4, 1)
    a('    s_branch B_go')
    def drop_lines():
        for r in range(4):
            a(f'    v_mov_b32 v{EN+r}, {EMPTY}')
        a(f'''
    v_lshrrev_b32 v{T}, 2, v0
    v_lshrrev_b32 v{T+1}, 5, v{T}
    v_lshlrev_b32 v{T+1}, 2, v{T+1}
    v_lshlrev_b32 v{T}, v{T}, 1
    ds_or_b32 v{T+1}, v{T} offset:{L_RESC}''')
    a(f'''
A_full:
    s_wqm_b64 exec, vcc
    v_mov_b32 v40, {FULLM}
    v_mov_b32 v41, {EMPTY}
    v_mov_b32 v42, {EMPTY}
    v_mov_b32 v43, {EMPTY}
    s_mov_b64 exec, -1
    s_branch A_pub''')
    for tag in rare:
        a(f'''
Z_give{tag}:
    ds_write_b32 v{ZERO}, v{FOUR} offset:{L_GAVE}''')
        drop_lines()
        a(f'''
    s_mov_b64 {sp(S0)}, 0
    s_mov_b32 s{POLLN}, 0
    s_branch Z_nr{tag}
Z_full{tag}:
    s_mov_b64 exec, vcc''')
        drop_lines()
        a(f'    s_branch Z_rank{tag}')
    a(f'''
Y_lost:
    s_wqm_b64 exec, exec
    s_andn2_b64 {sp(FR)}, {sp(FR)}, exec
    ds_write_b32 v{ZERO}, v{FOUR} offset:{L_REDO}''')
    for r in range(4, 8):
        a(f'    v_mov_b32 v{EN+r}, {EMPTY}')
    drop_lines()
    a(f'''
    s_mov_b64 {sp(S1)}, 0
    s_mov_b32 s{POLLN}, 0
    s_branch Y_nr
C_slowcnt:
    s_cmp_lg_u32 s{MODE}, 0
    s_cbranch_scc1 C_careful''')
    for k in range(8):
        a(f'    v_readlane_b32 s{RESC+k}, v{T+1}, {16+k}')
    a(f'''
    v_readlane_b32 s{GAVE}, v{T+1}, 25
    s_mov_b32 s{MODE}, 2
    s_cmp_lg_u32 s{X0+1}, 0
    s_cbranch_scc1 C_redo
    s_bitcmp1_b32 s{X0}, 27
    s_cbranch_scc1 C_redo
    s_mov_b32 s{MODE}, 1
    s_branch B_cntok
C_redo:
    ; a list ran over its neighbour: forget what was accumulated and redo all entries carefully''')
    for r in range(16):
        a(f'    v_mov_b32 v{ACC+r}, 0')
    a(f'''
    s_branch C_next
C_careful:
    s_min_u32 s{NT}, s{NT}, {GSTRIDE}
    s_bitcmp1_b32 s{X0}, 24
    s_cselect_b32 s{MODE}, 2, 1
    s_branch B_cntok
C_next:
    s_setprio 0
    s_mov_b32 s{ISSUED}, 0
    s_waitcnt vmcnt(0) lgkmcnt(0)
    s_barrier
    s_cmp_eq_u32 s{MODE}, 2
    s_cbranch_scc1 C_round
    s_mov_b32 s{X0}, -1''')
    for k in range(7, -1, -1):
        a(f'''
    s_ff1_i32_b32 s{X0+1}, s{RESC+k}
    s_add_u32 s{X0+1}, s{X0+1}, {32*k}
    s_cmp_lg_u32 s{RESC+k}, 0
    s_cselect_b32 s{X0}, s{X0+1}, s{X0}''')
    a(f'''
    s_cmp_eq_u32 s{X0}, -1
    s_cbranch_scc1 B_epi
    s_lshr_b32 s{X0+1}, s{X0}, 5
    s_lshl_b32 s{X0+2}, 1, s{X0}''')
    for k in range(8):
        a(f'''
    s_andn2_b32 s{X0+3}, s{RESC+k}, s{X0+2}
    s_cmp_eq_u32 s{X0+1}, {k}
    s_cselect_b32 s{RESC+k}, s{X0+3}, s{RESC+k}''')
    a(f'''
    s_mul_i32 s{X0}, s{X0}, {CH*4}''')
    for k in range(4):
        a(f'''
    buffer_load_dword v{ED+k}, v{T4}, {sq(SDST)}, s{X0} offen
    buffer_load_dword v{ES+k}, v{T4}, {sq(SSRC)}, s{X0} offen
    s_add_u32 s{X0}, s{X0}, 4096''')
    for r in range(4, 8):
        a(f'    v_mov_b32 v{EN+r}, {EMPTY}')
    a(f'    v_mov_b32 v{T+1}, {EMPTY}')
    a('    s_waitcnt vmcnt(0)')
    for k in range(4):
        a(f'''
    {f'v_add_u32_sdwa v{T}, v{ED+k}, v{ED+k} dst_sel:DWORD dst_unused:UNUSED_PAD src0_sel:BYTE_0 src1_sel:BYTE_1' if skew else f'v_mov_b32 v{T}, v{ED+k}'}
    v_and_b32 v{T}, 255, v{T}
    v_cmp_eq_u32 vcc, s2, v{T}
    v_lshrrev_b32 v{ED+k}, 8, v{ED+k}
    v_lshl_or_b32 v{ES+k}, v{ES+k}, 7, v{ED+k}''')
        if k == 3:
            a(f'    s_and_b64 vcc, vcc, {sp(M3)}')
        a(f'    v_cndmask_b32 v{EN+k}, v{T+1}, v{ES+k}, vcc')
    a(f'''
C_round:
    v_mov_b32 v{T+4}, {EMPTY}
    v_mov_b32 v{T+5}, {EMPTY}
    v_mov_b32 v{T+6}, {EMPTY}
    v_mov_b32 v{T+7}, {EMPTY}
    v_add_u32 v{T}, {L_LIST}, v{T16}
    ds_write_b128 v{T}, {vr(T+4,4)}
    s_cmp_ge_u32 s{WID}, 6
    s_cbranch_scc1 C_i1
    ds_write_b128 v{T}, {vr(T+4,4)} offset:16384
C_i1:
    s_cmp_lg_u32 s{WID}, 12
    s_cbranch_scc1 C_i2
    s_mov_b64 exec, 0xffff
    ds_write_b32 v{CNTA}, v{LBASE} offset:{L_BCNT}
    ds_write_b32 v{ZERO}, v{ZERO} offset:{L_PEND}
    s_mov_b64 exec, -1
C_i2:
    s_waitcnt lgkmcnt(0)
    s_barrier
    s_mov_b32 s{X0+4}, {GSTRIDE//4}
    s_mov_b32 s{X0+5}, {L_LIST+GSTRIDE}''')
    for r in range(8):
        brank(r, '-1')
        a(f'''
    v_mul_u32_u24 v{T+3}, s{X0+4}, v{G4+r}
    v_add_u32 v{T+3}, s{X0+5}, v{T+3}
    s_mov_b64 exec, {sp(VM+2*r)}
    s_waitcnt lgkmcnt(0)
    v_cmp_lt_u32 vcc, v{RK+r}, v{T+3}
    s_and_saveexec_b64 {sp(X0+6)}, vcc
    ds_write_b32 v{RK+r}, v{EN+r}
    v_mov_b32 v{EN+r}, {EMPTY}
    s_andn2_b64 exec, {sp(X0+6)}, exec
    ds_write_b32 v{ZERO}, v{FOUR} offset:{L_PEND}
    s_mov_b64 exec, -1''')
    a(f'''
    v_mov_b32 v{EA}, v{EA0}
    v_mov_b32 v{MAD}, v{MAD0}
    s_waitcnt lgkmcnt(0)
    s_barrier
L_last:
    s_branch B_counts''')
    if opt.get('red'):
        gen_red(a, opt)
    def kd(name, vg, sg):
        a(f'''
.p2align 6
.amdhsa_kernel {name}
  .amdhsa_next_free_vgpr {vg}
  .amdhsa_next_free_sgpr {sg}
  .amdhsa_accum_offset {vg}
  .amdhsa_group_segment_fixed_size 0
  .amdhsa_kernarg_size 64
  .amdhsa_user_sgpr_count 2
  .amdhsa_user_sgpr_kernarg_segment_ptr 1
  .amdhsa_system_sgpr_workgroup_id_x 1
.end_amdhsa_kernel''')
    a('.section .rodata,"a"')
    kd(KNAME, 128, 102)
    if opt.get('red'):
        kd('red_kernel', 32, 48)
    return a.text()

if __name__ == '__main__':
    out = sys.argv[1]
    opt = {}
    for kv in sys.argv[2:]:
        k, v = kv.split('=')
        try:
            v = int(v)
        except ValueError:
            v = '' if v == 'none' else ' ' + v.replace('+', ' ')
        opt[k] = v
    open(out, 'w').write(build(opt))
```
